```python
import torch

def _softmax(x, axis=-1):
    return torch.softmax(x, dim=axis)
def _gelu(x):
    return torch.nn.functional.gelu(x, approximate="tanh")
def _silu(x):
    return torch.nn.functional.silu(x)
def _sigmoid(x):
    return torch.sigmoid(x)
def _layernorm(x, axis=-1, eps=1e-5):
    m = x.mean(dim=axis, keepdim=True)
    v = x.var(dim=axis, keepdim=True, unbiased=False)
    return (x - m) / torch.sqrt(v + eps)
def _scatter_add(tgt, idx, src, axis=0):
    return tgt.clone().index_add_(axis, idx, src)
def _segment_sum(src, seg, n):
    out = torch.zeros((n,) + src.shape[1:], dtype=src.dtype)
    return out.index_add_(0, seg, src)
def _pad(x, pw):
    flat = tuple(v for pair in reversed(pw) for v in pair)
    return torch.nn.functional.pad(x, flat)

kernel_name = 'recurrent_scan__sliding_block_cached__dense_activation_squared_relu__decode'

def setup_inputs():

    _w = (lambda a: (lambda t: t.to(torch.bfloat16) if t.is_floating_point() else t)(torch.as_tensor(a)))
    def _A_setup():
        B, Sq, D = 2, 1, 512
        Hq, Hkv, Sk, Dh = 32, 8, 32768, 128
        assert Hq % Hkv == 0, (Hq, Hkv)
        return {
            "x": _w((lambda *s: torch.randn(*s, dtype=torch.bfloat16) * 0.05)(B, Sq, D)),
            "k_cache": _w((lambda *s: torch.randn(*s, dtype=torch.bfloat16) * 1.6)(B, Hkv, Sk, Dh)),
            "v_cache": _w((lambda *s: torch.randn(*s, dtype=torch.bfloat16) * 0.2)(B, Hkv, Sk, Dh)),
            "wq": _w((lambda *s: torch.randn(*s, dtype=torch.bfloat16) * 1.6)(D, Hq * Dh) * (D ** -0.5)),
            "wo": _w((lambda *s: torch.randn(*s, dtype=torch.bfloat16) * 0.2)(Hq * Dh, D) * ((Hq * Dh) ** -0.5)),
        }
    _A_in = _A_setup()

    def _B_setup():
        B, S, D, F = 2, 1, 512, 1792
        return {
            "x": _w((lambda *s: torch.randn(*s, dtype=torch.bfloat16) * 0.05)(B, S, D)),
            "w1": _w((lambda *s: torch.randn(*s, dtype=torch.bfloat16) * 0.1)(D, F)),
            "b1": _w((lambda *s: torch.randn(*s, dtype=torch.bfloat16) * 0.8)(F)),
            "w2": _w((lambda *s: torch.randn(*s, dtype=torch.bfloat16) * 0.1)(F, D)),
            "b2": _w((lambda *s: torch.randn(*s, dtype=torch.bfloat16) * 12.8)(D)),
        }
    _B_in = _B_setup()

    return {
        "A_x": _A_in["x"],
        "A_k_cache": _A_in["k_cache"],
        "A_v_cache": _A_in["v_cache"],
        "A_wq": _A_in["wq"],
        "A_wo": _A_in["wo"],
        "B_x": _B_in["x"],
        "B_w1": _B_in["w1"],
        "B_b1": _B_in["b1"],
        "B_w2": _B_in["w2"],
        "B_b2": _B_in["b2"],
    }

def reference(A_x, A_k_cache, A_v_cache, A_wq, A_wo, B_x, B_w1, B_b1, B_w2, B_b2):
    def _A_ref(x, k_cache, v_cache, wq, wo):
        B, Sq, D = x.shape
        Hq, Dh = 32, 128
        Hkv, Sk = k_cache.shape[1], k_cache.shape[2]
        W = min(4096, max(256, Sk // 4))
        rep = Hq // Hkv
        q = (lambda x, *d: x.permute(*d))((x @ wq).reshape(B, Sq, Hq, Dh), 0, 2, 1, 3)
        k = (lambda x, n, axis: torch.repeat_interleave(x, n, dim=axis))(k_cache[:, :, Sk - W:, :], rep, axis=1)
        v = (lambda x, n, axis: torch.repeat_interleave(x, n, dim=axis))(v_cache[:, :, Sk - W:, :], rep, axis=1)
        scores = torch.einsum("bhqd,bhkd->bhqk", q, k) * (Dh ** -0.5)
        p = _softmax(scores, axis=-1)
        o = torch.einsum("bhqk,bhkd->bhqd", p, v)
        return (lambda x, *d: x.permute(*d))(o, 0, 2, 1, 3).reshape(B, Sq, Hq * Dh) @ wo

    def _B_ref(x, w1, b1, w2, b2):
        h = torch.einsum("bsd,df->bsf", x, w1) + b1
        zero = torch.zeros_like(h)
        r = torch.where(h > zero, h, zero)
        h = r * r
        out = torch.einsum("bsf,fd->bsd", h, w2) + b2
        return out

    x = A_x
    xn = _layernorm(x, axis=-1)
    s = _A_ref(xn, A_k_cache, A_v_cache, A_wq, A_wo)
    g = _silu(_B_ref(xn, B_w1, B_b1, B_w2, B_b2))
    return x + s * g
```

```python
import sys
KNAME = "recurrent_scan__sliding_block_cached__dense_activation_squared_relu__decode_kernel"

class Cfg:
    diag = False
    win = 32
    ntK = "nt"; ntW = "nt"
    rotmul = 1
cfg = Cfg()

L_K, L_V, L_WO = 0, 65536, 131072
SCR = 147456
L_QS = SCR
L_PB = SCR + 1152
L_SB = L_PB + 2048
L_WT = L_SB + 128
L_OB = L_WT + 128
L_ACTA = L_OB + 256
L_ACTB = L_ACTA + 576
L_FL = L_ACTB + 576
LDS_TOTAL = L_FL + 64
F_Q, F_K, F_P, F_V, F_T, F_WO, F_W, F_O = [4*k for k in range(8)]
W_QP, W_HP, W_FP, W_ST, W_OP, W_SP = 0x10000, 0x40000, 0x50000, 0x60000, 0x80000, 0x100000
WS_BYTES = 0x200000
SPIN_CAP = 20000
LOG2E = 0x3fb8aa3b
SCALE = 0x3db504f3

sWAVE, sG, sI, sNON = 30, 31, 32, 33
sT0, sT1, sT2, sT3 = 33, 34, 35, 40
SRD_WS = 36
sSLOT = 41
sRS = 42
sCAP = 43
STAMP0 = 80

out = []
def e(s):
    for ln in s.strip("\n").split("\n"):
        out.append("    " + ln.strip() if not ln.strip().endswith(":") else ln.strip())

def stamp(k):
    if cfg.diag:
        e(f"s_memrealtime s[{STAMP0+2*k}:{STAMP0+2*k+1}]")

def stamps_out(n):
    if not cfg.diag: return
    e(f"""
    s_waitcnt lgkmcnt(0)
    s_lshl_b32 s60, s2, 4
    s_add_u32 s60, s60, s{sWAVE}
    s_lshl_b32 s60, s60, 6
    s_add_u32 s68, s28, s60
    s_addc_u32 s69, s29, 0
    s_add_u32 s68, s68, 0x10000000
    s_addc_u32 s69, s69, 0
    s_mov_b64 exec, 1
    v_mov_b32 v1, 0
    """)
    for k in range(8):
        if k < n:
            e(f"v_mov_b32 v4, s{STAMP0+2*k}\nv_mov_b32 v5, s{STAMP0+2*k+1}")
        else:
            e(f"v_mov_b32 v4, s{STAMP0}\nv_mov_b32 v5, s{STAMP0+1}")
        e(f"global_store_dwordx2 v1, v[4:5], s[68:69] offset:{8*k}\ns_nop 1")
    e("s_waitcnt vmcnt(0)")

lblc = [0]
def lbl(p="L"):
    lblc[0] += 1
    return f"{p}_{lblc[0]}"

def flag_set(vfl, off, vval):
    e(f"s_mov_b64 exec, 1\nds_write_b32 v{vfl}, v{vval} offset:{off}\ns_mov_b64 exec, -1")
def flag_add(vfl, off, vone):
    e(f"s_mov_b64 exec, 1\nds_add_u32 v{vfl}, v{vone} offset:{off}\ns_mov_b64 exec, -1")
def spin_ge(vfl, off, target, vtmp, extra=""):
    L = lbl("L_sp")
    e(f"""{L}:
    ds_read_b32 v{vtmp}, v{vfl} offset:{off}
    {extra}
    s_waitcnt lgkmcnt(0)
    v_cmp_le_u32 vcc, {target}, v{vtmp}
    s_cbranch_vccz {L}""")

def tag_check(regs, acc, first):
    T = [sT0, sT1, sT2, sT3]
    for k in range(4):
        if first and k == 0:
            e(f"v_xor_b32 v{acc}, s{T[0]}, v{regs}")
        else:
            e(f"v_bitop3_b32 v{acc}, v{regs+k}, s{T[k]}, v{acc} bitop3:0xbe")
def tag_branch(acc, Lretry, Ldone=None):
    Ld = lbl("L_ok")
    e(f"""
    v_and_b32 v{acc}, 0xff, v{acc}
    v_cmp_ne_u32 vcc, 0, v{acc}
    s_cbranch_vccz {Ld}
    s_sub_u32 s{sCAP}, s{sCAP}, 1
    s_cbranch_scc0 {Lretry}
    s_mov_b32 s{sCAP}, 0
    {Ld}:""")
def tag_insert(regs, vff):
    T = [sT0, sT1, sT2, sT3]
    for k in range(4):
        e(f"v_bfi_b32 v{regs+k}, v{vff}, s{T[k]}, v{regs+k}")

def nonce_from_epoch():
    e(f"""
    s_add_u32 s{sT0}, s{sT0}, 0x01010101
    s_lshr_b32 s{sT1}, s{sT0}, 8
    s_lshr_b32 s{sT2}, s{sT0}, 16
    s_lshr_b32 s{sT3}, s{sT0}, 24
    """)

def srd(r, lo, hi, nbytes):
    pass

def reduce4_rows(x, t):
    e(f"""
    s_nop 1
    v_permlane32_swap_b32 v{x}, v{x+1}
    v_permlane32_swap_b32 v{x+2}, v{x+3}
    s_nop 0
    v_add_f32 v{x}, v{x}, v{x+1}
    v_add_f32 v{x+2}, v{x+2}, v{x+3}
    s_nop 1
    v_permlane16_swap_b32 v{x}, v{x+2}
    s_nop 0
    v_add_f32 v{x}, v{x}, v{x+2}
    """)
def dpp_add(x, rots):
    for r in rots:
        e(f"s_nop 1\nv_add_f32_dpp v{x}, v{x}, v{x} row_ror:{r} row_mask:0xf bank_mask:0xf")
def dpp_max(x, rots):
    for r in rots:
        e(f"s_nop 1\nv_max_f32_dpp v{x}, v{x}, v{x} row_ror:{r} row_mask:0xf bank_mask:0xf")
def rnd_bf16(x):
    e(f"v_cvt_pk_bf16_f32 v{x}, v{x}, v{x}\nv_and_b32 v{x}, 0xffff0000, v{x}")

def build():
    out.clear()
    stamp(0)
    e(f"""
    s_load_dwordx16 s[4:19], s[0:1], 0
    s_load_dwordx8 s[20:27], s[0:1], 64
    s_load_dwordx2 s[28:29], s[0:1], 96
    s_cmp_ge_u32 s2, 256
    s_cbranch_scc1 L_end
    v_lshrrev_b32 v1, 6, v0
    v_and_b32 v0, 63, v0
    v_readfirstlane_b32 s{sWAVE}, v1
    v_and_b32 v2, 15, v0
    v_lshrrev_b32 v3, 4, v0
    s_and_b32 s{sG}, s2, 7
    s_lshr_b32 s{sI}, s2, 3
    s_lshl_b32 s{sSLOT}, s{sG}, 5
    s_add_u32 s{sSLOT}, s{sSLOT}, s{sI}
    s_mul_i32 s44, s2, {cfg.rotmul}
    s_lshr_b32 s{sRS}, s44, 2
    s_and_b32 s{sRS}, s{sRS}, 3
    s_mov_b32 s{sCAP}, {SPIN_CAP}
    v_mov_b32 v1, {L_FL}
    s_lshl_b32 s45, s{sI}, 3
    s_add_u32 s45, s45, s{sWAVE}
    s_cmp_eq_u32 s45, 6
    s_cbranch_scc0 L_nopf
    s_getpc_b64 s[46:47]
    L_pc:
    s_sub_u32 s46, s46, L_pc-{KNAME}
    s_subb_u32 s47, s47, 0
    v_lshlrev_b32 v5, 7, v0
    v_add_u32 v6, 8192, v5
    v_min_u32 v5, L_codeend-{KNAME}-4, v5
    v_min_u32 v6, L_codeend-{KNAME}-4, v6
    global_load_dword v190, v5, s[46:47]
    global_load_dword v191, v6, s[46:47]
    L_nopf:
    s_cmp_lg_u32 s{sWAVE}, 0
    s_cbranch_scc1 L_notloader
    """)
    e("v_lshlrev_b32 v12, 8, v3")
    for p in range(4):
        e(f"v_add_u32 v13, {4*p}, v3\nv_xor_b32 v13, v13, v2\nv_lshl_add_u32 v{4+p}, v13, 4, v12")
    for a in range(2):
        e(f"v_add_u32 v13, {4*a}, v3\nv_lshlrev_b32 v13, 1, v13\nv_xor_b32 v13, v13, v2\nv_lshl_add_u32 v{8+a}, v13, 4, v12")
    e(f"""
    s_lshr_b32 s45, s{sI}, 4
    s_lshl_b32 s45, s45, 26
    s_lshl_b32 s46, s{sG}, 23
    s_add_u32 s45, s45, s46
    s_and_b32 s46, s{sI}, 15
    s_lshl_b32 s46, s46, 16
    s_add_u32 s45, s45, s46
    s_add_u32 s45, s45, {28672*256}
    s_mov_b32 s50, 0x10000
    s_mov_b32 s51, 0x20000
    s_mov_b32 s54, 0x10000
    s_mov_b32 s55, 0x20000
    s_and_b32 s44, s44, 15
    s_lshl_b32 s47, s44, 12
    s_mov_b32 s60, 0
    s_waitcnt lgkmcnt(0)
    s_add_u32 s48, s6, s45
    s_addc_u32 s49, s7, 0
    s_add_u32 s52, s8, s45
    s_addc_u32 s53, s9, 0
    """)
    G = cfg.win // 4
    nt = cfg.ntK
    e(f"""L_ldK0:
    s_mov_b32 m0, s47
    s_add_u32 s60, s60, 1
    buffer_load_dwordx4 v4, s[48:51], s47 offen {nt} lds
    buffer_load_dwordx4 v5, s[48:51], s47 offen offset:1024 {nt} lds
    buffer_load_dwordx4 v6, s[48:51], s47 offen offset:2048 {nt} lds
    buffer_load_dwordx4 v7, s[48:51], s47 offen offset:3072 {nt} lds
    s_add_u32 s47, s47, 4096
    s_and_b32 s47, s47, 0xffff
    s_cmp_lt_u32 s60, {G}
    s_cbranch_scc1 L_ldK0
    """)
    stamp(1)
    e(f"v_lshlrev_b32 v12, 10, v3")
    for a in range(2):
        e(f"v_or_b32 v13, {4*a}, v3\nv_lshlrev_b32 v13, 1, v13\nv_xor_b32 v13, v13, v2\nv_lshl_add_u32 v{10+a}, v13, 4, v12")
    e(f"""
    s_lshl_b32 s45, s{sG}, 19
    s_lshr_b32 s46, s{sI}, 2
    s_lshl_b32 s46, s46, 16
    s_add_u32 s45, s45, s46
    s_and_b32 s46, s{sI}, 3
    s_lshl_b32 s46, s46, 8
    s_add_u32 s45, s45, s46
    s_add_u32 s56, s12, s45
    s_addc_u32 s57, s13, 0
    s_sub_u32 s58, 0x400000, s45
    s_mov_b32 s59, 0x20000
    v_mov_b32 v14, 1
    s_barrier
    """)
    if G < 16:
        e(f"""L_ldK1:
        s_mov_b32 m0, s47
        s_add_u32 s60, s60, 1
        s_waitcnt vmcnt({cfg.win-4})
        buffer_load_dwordx4 v4, s[48:51], s47 offen {nt} lds
        buffer_load_dwordx4 v5, s[48:51], s47 offen offset:1024 {nt} lds
        buffer_load_dwordx4 v6, s[48:51], s47 offen offset:2048 {nt} lds
        buffer_load_dwordx4 v7, s[48:51], s47 offen offset:3072 {nt} lds
        s_add_u32 s47, s47, 4096
        s_and_b32 s47, s47, 0xffff
        s_cmp_lt_u32 s60, 16
        s_cbranch_scc1 L_ldK1
        """)
    def landed_actions(upto):
        acts = []
        if upto == 15: acts.append((F_K, 1))
        for s in range(4):
            if upto == 16 + 4*s + 3: acts.append((F_V, s+1))
        if upto == 35: acts.append((F_WO, 1))
        for off, val in acts:
            e(f"v_mov_b32 v15, {val}")
            flag_set(1, off, 15)
            if off == F_K: stamp(2)
            if off == F_V and val == 4: stamp(4)
    e(f"s_and_b32 s61, s44, 3")
    for n in range(16, 36):
        if n < 32:
            sp, q = (n-16)//4, (n-16) % 4
            e(f"""
            s_add_u32 s47, s{sRS}, {sp}
            s_and_b32 s47, s47, 3
            s_lshl_b32 s47, s47, 2
            s_add_u32 s62, s61, {q}
            s_and_b32 s62, s62, 3
            s_add_u32 s47, s47, s62
            s_lshl_b32 s47, s47, 12
            s_add_u32 s62, s47, {L_V}
            s_mov_b32 m0, s62
            """)
            if n == 24:
                spin_ge(1, F_T, 2, 15)
            e(f"s_waitcnt vmcnt({cfg.win-4})")
            for p in range(4):
                e(f"buffer_load_dwordx4 v{8+(p&1)}, s[52:55], s47 offen offset:{1024*p} {nt} lds")
        else:
            e(f"s_waitcnt vmcnt({cfg.win-4})")
            for pp in range(4):
                p = (n-32)*4 + pp
                e(f"s_mov_b32 m0, {L_WO + p*1024}\ns_mov_b32 s47, {p*4096}")
                e(f"buffer_load_dwordx4 v{10+((p>>1)&1)}, s[56:59], s47 offen {cfg.ntW} lds")
        landed_actions(n - G)
    stamp(3)
    for upto in range(36 - G, 36):
        need = any(upto == x for x in (15, 19, 23, 27, 31, 35))
        if need:
            e(f"s_waitcnt vmcnt({4*(35-upto)})")
            landed_actions(upto)
    stamp(5)
    stamps_out(6)
    e("s_endpgm")

    e(f"""L_notloader:
    s_setprio 1
    v_mov_b32 v4, 0xff
    s_cmp_ge_u32 s{sWAVE}, 3
    s_cbranch_scc1 L_compute
    """)
    e(f"""
    s_cmp_eq_u32 s{sWAVE}, 1
    s_cbranch_scc0 L_roleB
    s_mov_b32 s44, 0
    s_and_b32 s53, s{sI}, 3
    s_lshl_b32 s45, s53, 20
    s_lshl_b32 s46, s{sG}, 10
    s_add_u32 s45, s45, s46
    s_lshr_b32 s46, s{sI}, 2
    s_lshl_b32 s46, s46, 7
    s_add_u32 s45, s45, s46
    s_mov_b32 s46, 8192
    s_mov_b32 s47, 0x400000
    s_lshl_b32 s52, s{sSLOT}, 9
    s_add_u32 s52, s52, {W_QP}
    s_add_u32 s54, s{sRS}, 2
    s_mov_b32 s55, {L_ACTA}
    s_waitcnt lgkmcnt(0)
    s_mov_b32 s48, s10
    s_mov_b32 s49, s11
    s_branch L_tilecommon
    L_roleB:
    s_add_u32 s54, s{sRS}, 3
    s_mov_b32 s55, {L_ACTB}
    s_mov_b32 s47, {512*1792*2}
    s_cmp_lt_u32 s{sI}, 14
    s_cbranch_scc0 L_roleB2
    s_mov_b32 s44, 0
    s_and_b32 s53, s2, 3
    s_mul_i32 s45, s53, {128*3584}
    s_lshr_b32 s46, s2, 2
    s_lshl_b32 s46, s46, 7
    s_add_u32 s45, s45, s46
    s_mov_b32 s46, 3584
    s_lshl_b32 s52, s2, 9
    s_add_u32 s52, s52, {W_HP}
    s_waitcnt lgkmcnt(0)
    s_mov_b32 s48, s16
    s_mov_b32 s49, s17
    s_branch L_tilecommon
    L_roleB2:
    s_cmp_lt_u32 s{sI}, 28
    s_cselect_b32 s44, 1, 2
    s_sub_u32 s53, s{sI}, 14
    s_min_u32 s53, s53, 13
    s_lshl_b32 s45, s53, 17
    s_lshl_b32 s46, s{sG}, 7
    s_add_u32 s45, s45, s46
    s_mov_b32 s46, 1024
    s_sub_u32 s52, s2, 112
    s_lshl_b32 s52, s52, 9
    s_add_u32 s52, s52, {W_FP}
    s_waitcnt lgkmcnt(0)
    s_mov_b32 s48, s20
    s_mov_b32 s49, s21
    L_tilecommon:
    s_load_dword s{sT0}, s[28:29], 0
    s_add_u32 s48, s48, s45
    s_addc_u32 s49, s49, 0
    s_sub_u32 s50, s47, s45
    s_mov_b32 s51, 0x20000
    s_and_b32 s54, s54, 3
    s_lshl_b32 s54, s54, 14
    s_add_u32 s54, s54, {L_V}
    s_mov_b32 s{SRD_WS}, s28
    s_mov_b32 s{SRD_WS+1}, s29
    s_mov_b32 s{SRD_WS+2}, {WS_BYTES}
    s_mov_b32 s{SRD_WS+3}, 0x20000
    s_cmp_eq_u32 s44, 0
    s_cbranch_scc0 L_nox
    v_lshlrev_b32 v5, 5, v0
    global_load_dwordx4 v[8:11], v5, s[4:5]
    global_load_dwordx4 v[12:15], v5, s[4:5] offset:16
    L_nox:
    v_lshrrev_b32 v5, 3, v0
    v_mul_lo_u32 v5, v5, s46
    v_and_b32 v6, 7, v0
    v_and_b32 v7, 1, v3
    v_lshlrev_b32 v7, 1, v7
    v_xor_b32 v6, v6, v7
    v_lshl_add_u32 v16, v6, 4, v5
    v_xor_b32 v6, 4, v6
    v_lshl_add_u32 v17, v6, 4, v5
    s_lshl_b32 s46, s46, 3
    s_cmp_eq_u32 s44, 2
    s_cbranch_scc1 L_tile_issued
    s_mov_b32 s56, 0
    s_mov_b32 s57, s54
    s_mov_b32 s58, 0
    L_tdma:
    s_mov_b32 m0, s57
    s_add_u32 s57, s57, 1024
    buffer_load_dwordx4 v16, s[48:51], s56 offen {cfg.ntW} lds
    s_add_u32 s56, s56, s46
    s_mov_b32 m0, s57
    s_add_u32 s57, s57, 1024
    buffer_load_dwordx4 v17, s[48:51], s56 offen {cfg.ntW} lds
    s_add_u32 s56, s56, s46
    s_add_u32 s58, s58, 1
    s_cmp_lt_u32 s58, 8
    s_cbranch_scc1 L_tdma
    L_tile_issued:
    """)
    stamp(1)
    e(f"""
    v_lshrrev_b32 v5, 2, v2
    v_lshl_add_u32 v5, v3, 3, v5
    v_lshlrev_b32 v5, 7, v5
    v_and_b32 v6, 3, v2
    v_lshl_add_u32 v5, v6, 3, v5
    v_add_u32 v5, s54, v5
    v_lshrrev_b32 v6, 3, v2
    v_and_b32 v7, 1, v3
    v_lshl_or_b32 v6, v7, 1, v6
    """)
    for u in range(4):
        e(f"v_xor_b32 v7, {u}, v6\nv_lshl_add_u32 v{16+u}, v7, 5, v5")
    e(f"""
    v_and_b32 v5, 1, v0
    v_mul_u32_u24 v5, 288, v5
    v_lshl_add_u32 v5, v3, 4, v5
    v_add_u32 v20, s55, v5
    v_mov_b32 v21, 1
    s_waitcnt lgkmcnt(0)
    """)
    nonce_from_epoch()
    e("s_barrier")
    e(f"""
    s_cmp_eq_u32 s44, 0
    s_cbranch_scc0 L_noLN
    """)
    e("s_waitcnt vmcnt(16)")
    for k in range(8):
        e(f"v_lshlrev_b32 v{24+2*k}, 16, v{8+k}\nv_and_b32 v{25+2*k}, 0xffff0000, v{8+k}")
    e("v_pk_add_f32 v[40:41], v[24:25], v[26:27]")
    for k in range(2, 8):
        e(f"v_pk_add_f32 v[40:41], v[40:41], v[{24+2*k}:{25+2*k}]")
    e("v_add_f32 v40, v40, v41")
    dpp_add(40, (8, 4, 2, 1))
    e("v_mov_b32 v41, v40\ns_nop 1\nv_permlane16_swap_b32 v40, v41\ns_nop 0\nv_add_f32 v40, v40, v41")
    e("v_mul_f32 v40, 0xbb000000, v40\nv_mov_b32 v41, v40")
    e("v_pk_add_f32 v[42:43], v[24:25], v[40:41]\nv_pk_mul_f32 v[44:45], v[42:43], v[42:43]")
    for k in range(1, 8):
        e(f"v_pk_add_f32 v[42:43], v[{24+2*k}:{25+2*k}], v[40:41]\nv_pk_fma_f32 v[44:45], v[42:43], v[42:43], v[44:45]")
    e("v_add_f32 v44, v44, v45")
    dpp_add(44, (8, 4, 2, 1))
    e("v_mov_b32 v45, v44\ns_nop 1\nv_permlane16_swap_b32 v44, v45\ns_nop 0\nv_add_f32 v44, v44, v45")
    e("v_mul_f32 v44, 0x3b000000, v44")
    rnd_bf16(44)
    e("v_add_f32 v44, 0x3727c5ac, v44")
    rnd_bf16(44)
    e("v_sqrt_f32 v44, v44\ns_nop 0")
    rnd_bf16(44)
    e("v_rcp_f32 v44, v44")
    rnd_bf16(40)
    e("v_mov_b32 v41, v40\nv_mov_b32 v45, v44")
    for k in range(8):
        e(f"v_pk_add_f32 v[42:43], v[{24+2*k}:{25+2*k}], v[40:41]")
        e(f"v_cvt_pk_bf16_f32 v42, v42, v43\nv_and_b32 v43, 0xffff0000, v42\nv_lshlrev_b32 v42, 16, v42")
        e(f"v_pk_mul_f32 v[42:43], v[42:43], v[44:45]\nv_cvt_pk_bf16_f32 v{8+k}, v42, v43")
    e(f"""
    v_bfe_u32 v5, v0, 3, 2
    v_lshrrev_b32 v6, 5, v0
    v_mul_u32_u24 v6, 288, v6
    v_and_b32 v7, 7, v0
    v_lshl_add_u32 v6, v7, 5, v6
    v_add_u32 v6, s55, v6
    v_cmp_eq_u32 vcc, s53, v5
    s_and_saveexec_b64 s[56:57], vcc
    ds_write_b128 v6, v[8:11]
    ds_write_b128 v6, v[12:15] offset:16
    s_mov_b64 exec, -1
    L_noLN:
    """)
    stamp(2)
    e(f"""
    s_cmp_eq_u32 s44, 2
    s_cbranch_scc1 L_notile
    s_waitcnt vmcnt(0)
    """)
    for u in range(4):
        for t in range(4):
            r = 64 + 16*u + 4*t
            e(f"ds_read_b64_tr_b16 v[{r}:{r+1}], v{16+u} offset:{t*4096}")
            e(f"ds_read_b64_tr_b16 v[{r+2}:{r+3}], v{16+u} offset:{t*4096+512}")
    e(f"""
    s_waitcnt lgkmcnt(0)
    L_notile:
    """)
    flag_add(1, F_T, 21)
    stamp(3)
    e(f"""
    s_cmp_eq_u32 s44, 1
    s_cbranch_scc0 L_noH
    """)
    e(f"""
    v_bfe_u32 v5, v0, 4, 1
    v_lshlrev_b32 v5, 11, v5
    v_lshrrev_b32 v6, 5, v0
    v_lshl_add_u32 v5, v6, 8, v5
    v_lshl_add_u32 v5, v2, 4, v5
    s_lshl_b32 s56, s53, 12
    s_add_u32 s56, s56, {W_HP}
    v_add_u32 v5, s56, v5
    v_and_b32 v7, 31, v0
    v_lshlrev_b32 v7, 3, v7
    s_lshl_b32 s56, s53, 8
    v_add_u32 v22, s56, v7
    global_load_dwordx2 v[22:23], v22, s[18:19]
    v_mul_u32_u24 v6, 288, v6
    v_add3_u32 v6, v6, v7, s55
    L_hretry:
    """)
    for k in range(4):
        e(f"buffer_load_dwordx4 v[{24+4*k}:{27+4*k}], v5, s[{SRD_WS}:{SRD_WS+3}], 0 offen offset:{512*k} sc1")
    e("s_waitcnt vmcnt(0)")
    for k in range(4): tag_check(24+4*k, 7, k == 0)
    tag_branch(7, "L_hretry")
    for k in range(16): e(f"v_and_b32 v{24+k}, 0xffffff00, v{24+k}")
    e("""
    v_pk_add_f32 v[24:25], v[24:25], v[28:29]
    v_pk_add_f32 v[26:27], v[26:27], v[30:31]
    v_pk_add_f32 v[32:33], v[32:33], v[36:37]
    v_pk_add_f32 v[34:35], v[34:35], v[38:39]
    v_pk_add_f32 v[24:25], v[24:25], v[32:33]
    v_pk_add_f32 v[26:27], v[26:27], v[34:35]
    v_cvt_pk_bf16_f32 v24, v24, v25
    v_cvt_pk_bf16_f32 v26, v26, v27
    v_and_b32 v25, 0xffff0000, v24
    v_lshlrev_b32 v24, 16, v24
    v_and_b32 v27, 0xffff0000, v26
    v_lshlrev_b32 v26, 16, v26
    v_lshlrev_b32 v28, 16, v22
    v_and_b32 v29, 0xffff0000, v22
    v_lshlrev_b32 v30, 16, v23
    v_and_b32 v31, 0xffff0000, v23
    v_pk_add_f32 v[24:25], v[24:25], v[28:29]
    v_pk_add_f32 v[26:27], v[26:27], v[30:31]
    v_cvt_pk_bf16_f32 v24, v24, v25
    v_cvt_pk_bf16_f32 v26, v26, v27
    v_and_b32 v25, 0xffff0000, v24
    v_lshlrev_b32 v24, 16, v24
    v_and_b32 v27, 0xffff0000, v26
    v_lshlrev_b32 v26, 16, v26
    v_max_f32 v24, 0, v24
    v_max_f32 v25, 0, v25
    v_max_f32 v26, 0, v26
    v_max_f32 v27, 0, v27
    v_pk_mul_f32 v[24:25], v[24:25], v[24:25]
    v_pk_mul_f32 v[26:27], v[26:27], v[26:27]
    v_cvt_pk_bf16_f32 v24, v24, v25
    v_cvt_pk_bf16_f32 v25, v26, v27
    ds_write_b64 v6, v[24:25]
    L_noH:
    s_cmp_eq_u32 s44, 2
    s_cbranch_scc1 L_nopub
    """)
    e("s_waitcnt lgkmcnt(0)")
    for t in range(4):
        e(f"ds_read_b128 v[{24+4*t}:{27+4*t}], v20 offset:{64*t}")
    e(f"""
    v_and_b32 v5, 1, v0
    v_lshlrev_b32 v5, 8, v5
    v_bfe_u32 v6, v0, 1, 2
    v_lshl_add_u32 v5, v6, 6, v5
    v_lshl_add_u32 v5, v3, 4, v5
    v_add_u32 v5, s52, v5
    v_and_b32 v6, 2, v0
    v_cmp_ne_u32 s[56:57], 0, v6
    v_and_b32 v6, 4, v0
    v_cmp_ne_u32 s[58:59], 0, v6
    s_waitcnt lgkmcnt(0)
    """)
    for t in range(4):
        for u in range(4):
            r = 64 + 16*u + 4*t
            c = f"v[{40+4*u}:{43+4*u}]"
            e(f"v_mfma_f32_16x16x32_bf16 {c}, v[{r}:{r+3}], v[{24+4*t}:{27+4*t}], {c if t else 0}")
    e("s_nop 7")
    for k in range(4):
        e(f"v_cndmask_b32 v{40+k}, v{40+k}, v{44+k}, s[56:57]")
    for k in range(4):
        e(f"v_cndmask_b32 v{48+k}, v{48+k}, v{52+k}, s[56:57]")
    for k in range(4):
        e(f"v_cndmask_b32 v{40+k}, v{40+k}, v{48+k}, s[58:59]")
    tag_insert(40, 4)
    e(f"""
    s_mov_b32 s56, 0x00ff00ff
    s_mov_b32 s57, 0x00ff00ff
    s_mov_b64 exec, s[56:57]
    buffer_store_dwordx4 v[40:43], v5, s[{SRD_WS}:{SRD_WS+3}], 0 offen sc1
    s_mov_b64 exec, -1
    L_nopub:
    """)
    stamp(4)
    e(f"""
    s_cmp_eq_u32 s{sWAVE}, 1
    s_cbranch_scc0 L_final
    """)
    e(f"""
    v_lshlrev_b32 v5, 11, v3
    v_lshl_add_u32 v5, v2, 4, v5
    s_lshl_b32 s56, s{sG}, 14
    s_lshr_b32 s57, s{sI}, 4
    s_lshl_b32 s57, s57, 8
    s_add_u32 s56, s56, s57
    s_add_u32 s56, s56, {W_QP}
    v_add_u32 v5, s56, v5
    v_add_u32 v6, 8192, v5
    v_lshrrev_b32 v8, 5, v0
    v_lshlrev_b32 v8, 5, v8
    v_lshl_add_u32 v8, v0, 3, v8
    v_add_u32 v8, {L_QS}, v8
    L_qretry:
    """)
    for v in range(2):
        for k in range(4):
            r = 24 + 16*v + 4*k
            e(f"buffer_load_dwordx4 v[{r}:{r+3}], v{5+v}, s[{SRD_WS}:{SRD_WS+3}], 0 offen offset:{512*k} sc1")
    e("s_waitcnt vmcnt(0)")
    for k in range(8): tag_check(24+4*k, 7, k == 0)
    tag_branch(7, "L_qretry")
    for k in range(32): e(f"v_and_b32 v{24+k}, 0xffffff00, v{24+k}")
    for v in range(2):
        r = 24 + 16*v
        e(f"""
        v_pk_add_f32 v[{r}:{r+1}], v[{r}:{r+1}], v[{r+4}:{r+5}]
        v_pk_add_f32 v[{r+2}:{r+3}], v[{r+2}:{r+3}], v[{r+6}:{r+7}]
        v_pk_add_f32 v[{r+8}:{r+9}], v[{r+8}:{r+9}], v[{r+12}:{r+13}]
        v_pk_add_f32 v[{r+10}:{r+11}], v[{r+10}:{r+11}], v[{r+14}:{r+15}]
        v_pk_add_f32 v[{r}:{r+1}], v[{r}:{r+1}], v[{r+8}:{r+9}]
        v_pk_add_f32 v[{r+2}:{r+3}], v[{r+2}:{r+3}], v[{r+10}:{r+11}]
        v_cvt_pk_bf16_f32 v{r}, v{r}, v{r+1}
        v_cvt_pk_bf16_f32 v{r+1}, v{r+2}, v{r+3}
        ds_write_b64 v8, v[{r}:{r+1}] offset:{576*v}
        """)
    flag_set(1, F_Q, 21)
    stamp(5)
    e(f"""
    v_and_b32 v5, 31, v0
    v_lshlrev_b32 v9, 2, v5
    v_add_u32 v9, {L_WT}, v9
    v_lshlrev_b32 v5, 7, v5
    s_lshl_b32 s56, s{sG}, 12
    s_lshr_b32 s57, s{sI}, 3
    s_lshl_b32 s57, s57, 4
    s_add_u32 s56, s56, s57
    s_add_u32 s56, s56, {W_ST}
    v_add_u32 v5, s56, v5
    L_sretry:
    buffer_load_dwordx4 v[24:27], v5, s[{SRD_WS}:{SRD_WS+3}], 0 offen sc1
    s_waitcnt vmcnt(0)
    """)
    tag_check(24, 7, True)
    tag_branch(7, "L_sretry")
    e("v_and_b32 v24, 0xffffff00, v24\nv_and_b32 v25, 0xffffff00, v25\nv_mov_b32 v28, v24")
    dpp_max(28, (8, 4, 2, 1))
    e(f"""
    v_sub_f32 v24, v24, v28
    v_mul_f32 v24, {LOG2E}, v24
    v_exp_f32 v24, v24
    s_nop 0
    v_mul_f32 v25, v24, v25
    """)
    dpp_add(25, (8, 4, 2, 1))
    e(f"""
    v_rcp_f32 v25, v25
    s_nop 0
    v_mul_f32 v24, v24, v25
    ds_write_b32 v9, v24
    """)
    flag_set(1, F_W, 21)
    stamp(6)
    stamps_out(7)
    e("s_endpgm")

    e(f"""L_final:
    s_lshr_b32 s56, s{sI}, 3
    s_lshl_b32 s56, s56, 3
    s_add_u32 s56, s56, s{sG}
    s_lshl_b32 s56, s56, 3
    s_and_b32 s57, s{sI}, 7
    s_add_u32 s56, s56, s57          ; Q
    s_lshr_b32 s57, s56, 7           ; b_f
    s_and_b32 s58, s56, 127          ; nq
    v_and_b32 v5, 1, v3
    v_lshlrev_b32 v5, 1, v5
    v_lshrrev_b32 v6, 1, v3
    v_or_b32 v5, v5, v6              ; e(R)
    v_lshlrev_b32 v5, 1, v5
    s_lshl_b32 s59, s58, 3
    v_add_u32 v6, s59, v5
    global_load_ushort v10, v6, s[22:23]
    s_lshl_b32 s59, s56, 3
    v_add_u32 v8, s59, v5
    global_load_ushort v11, v8, s[4:5]
    s_lshr_b32 s59, s58, 4           ; ctile8
    s_lshl_b32 s59, s59, 9
    s_lshl_b32 s60, s57, 8
    s_add_u32 s59, s59, s60
    s_and_b32 s60, s58, 15
    s_lshl_b32 s60, s60, 4
    s_add_u32 s59, s59, s60
    s_add_u32 s59, s59, {W_FP}
    v_min_u32 v5, 13, v0
    v_lshlrev_b32 v5, 12, v5
    v_add_u32 v5, s59, v5
    s_lshr_b32 s59, s58, 5           ; ctile
    s_lshl_b32 s59, s59, 10
    s_lshl_b32 s60, s57, 9
    s_add_u32 s59, s59, s60
    s_and_b32 s60, s58, 31
    s_lshl_b32 s60, s60, 4
    s_add_u32 s59, s59, s60
    s_add_u32 s59, s59, {W_SP}
    v_lshlrev_b32 v6, 12, v0
    v_add_u32 v6, s59, v6
    v_cmp_gt_u32 s[60:61], 14, v0
    s_mov_b32 s64, s24
    s_mov_b32 s65, s25
    s_mov_b32 s66, 2048
    s_mov_b32 s67, 0x20000
    L_fretry:
    buffer_load_dwordx4 v[24:27], v5, s[{SRD_WS}:{SRD_WS+3}], 0 offen sc1
    s_waitcnt vmcnt(0)
    """)
    tag_check(24, 7, True)
    tag_branch(7, "L_fretry")
    for k in range(4):
        e(f"v_and_b32 v{24+k}, 0xffffff00, v{24+k}")
    for k in range(4):
        e(f"v_cndmask_b32 v{24+k}, 0, v{24+k}, s[60:61]")
    reduce4_rows(24, 28)
    dpp_add(24, (8, 4, 2, 1))
    rnd_bf16(24)
    e("v_lshlrev_b32 v10, 16, v10\nv_add_f32 v24, v24, v10")
    rnd_bf16(24)
    e(f"""
    v_mul_f32 v25, 0xbfb8aa3b, v24
    v_exp_f32 v25, v25
    s_nop 0
    v_add_f32 v25, 1.0, v25
    v_rcp_f32 v25, v25
    s_nop 0
    v_mul_f32 v12, v24, v25
    """)
    rnd_bf16(12)
    e("v_lshlrev_b32 v11, 16, v11")
    stamp(5)
    e(f"""L_3retry:
    buffer_load_dwordx4 v[24:27], v6, s[{SRD_WS}:{SRD_WS+3}], 0 offen sc1
    s_waitcnt vmcnt(0)
    """)
    tag_check(24, 7, True)
    tag_branch(7, "L_3retry")
    stamp(6)
    for k in range(4):
        e(f"v_and_b32 v{24+k}, 0xffffff00, v{24+k}")
    reduce4_rows(24, 28)
    dpp_add(24, (8, 4, 2, 1))
    rnd_bf16(24)
    e("v_mul_f32 v24, v24, v12")
    rnd_bf16(24)
    e(f"""
    v_add_f32 v24, v24, v11
    v_cvt_pk_bf16_f32 v24, v24, v24
    s_mov_b32 s56, 0x00010001
    s_mov_b32 s57, 0x00010001
    s_mov_b64 exec, s[56:57]
    buffer_store_short v24, v8, s[64:67], 0 offen
    s_cmp_eq_u32 s2, 0
    s_cbranch_scc0 L_fin2
    s_mov_b64 exec, 1
    v_mov_b32 v25, s{sT0}
    v_mov_b32 v26, 0
    buffer_store_dword v25, v26, s[{SRD_WS}:{SRD_WS+3}], 0 offen sc1
    L_fin2:
    """)
    stamp(7)
    stamps_out(8)
    e("s_endpgm")

    sW = 44
    e(f"""L_compute:
    s_sub_u32 s{sW}, s{sWAVE}, 3
    v_mov_b32 v5, 0
    v_lshlrev_b32 v6, 2, v2
    v_add_u32 v6, {L_FL}, v6
    s_cmp_eq_u32 s{sW}, 0
    s_cbranch_scc0 L_nozero
    ds_write_b32 v6, v5
    L_nozero:
    s_waitcnt lgkmcnt(0)
    s_load_dword s{sT0}, s[28:29], 0
    s_mov_b32 s{SRD_WS}, s28
    s_mov_b32 s{SRD_WS+1}, s29
    s_mov_b32 s{SRD_WS+2}, {WS_BYTES}
    s_mov_b32 s{SRD_WS+3}, 0x20000
    """)
    for r in range(64, 128): e(f"v_mov_b32 v{r}, 0")
    e(f"""
    s_lshl_b32 s45, s{sW}, 14
    v_lshlrev_b32 v5, 8, v2
    v_add_u32 v5, s45, v5
    v_xor_b32 v6, v3, v2
    """)
    for t in range(4):
        e(f"v_xor_b32 v7, {4*t}, v6\nv_lshl_add_u32 v{8+t}, v7, 4, v5")
    e(f"""
    v_and_b32 v13, 3, v2
    v_mul_u32_u24 v12, 288, v13
    v_lshl_add_u32 v12, v3, 4, v12
    v_add_u32 v12, {L_QS}, v12
    """)
    e(f"""
    v_lshl_add_u32 v15, v3, 2, v13
    v_lshlrev_b32 v15, 4, v15
    v_add_u32 v15, {L_PB}, v15
    v_lshrrev_b32 v5, 3, v2
    v_lshl_add_u32 v14, v5, 8, v15
    v_bfe_u32 v5, v2, 2, 1
    v_lshl_add_u32 v14, v5, 3, v14
    s_lshl_b32 s45, s{sW}, 9
    v_add_u32 v14, s45, v14
    v_lshlrev_b32 v17, 3, v13
    v_add_u32 v17, {L_SB}, v17
    s_lshl_b32 s45, s{sW}, 5
    v_add_u32 v16, s45, v17
    """)
    e(f"""
    v_lshrrev_b32 v5, 2, v2
    v_and_b32 v6, 1, v3
    v_lshl_add_u32 v6, v6, 2, v5
    s_lshl_b32 s45, s{sW}, 1
    v_xor_b32 v6, s45, v6
    v_lshlrev_b32 v7, 3, v13
    v_lshl_add_u32 v22, v6, 5, v7
    v_xor_b32 v23, 32, v22
    v_lshl_add_u32 v6, v3, 2, v5
    v_lshlrev_b32 v6, 8, v6
    v_add_u32 v6, {L_V}, v6
    v_add_u32 v18, v6, v22
    v_add_u32 v19, v6, v23
    v_lshl_add_u32 v6, v3, 3, v5
    v_lshlrev_b32 v6, 8, v6
    v_add_u32 v6, {L_WO}, v6
    v_add_u32 v20, v6, v22
    v_add_u32 v21, v6, v23
    """)
    e(f"""
    s_lshl_b32 s45, s{sW}, 7
    v_lshl_add_u32 v5, v3, 4, s45
    s_lshl_b32 s46, s{sSLOT}, 11
    s_add_u32 s46, s46, {W_OP}
    v_lshl_add_u32 v22, v13, 9, v5
    v_bfe_u32 v6, v2, 2, 1
    v_lshl_add_u32 v22, v6, 6, v22
    v_add_u32 v22, s46, v22
    s_lshl_b32 s46, s{sSLOT}, 10
    s_add_u32 s46, s46, {W_SP}
    v_and_b32 v6, 1, v2
    v_lshl_add_u32 v23, v6, 9, v5
    v_lshlrev_b32 v28, 7, v6
    v_lshl_add_u32 v28, v3, 4, v28
    v_add_u32 v28, {L_OB}, v28
    v_bfe_u32 v6, v2, 1, 1
    v_lshl_add_u32 v23, v6, 6, v23
    v_add_u32 v23, s46, v23
    s_lshr_b32 s45, s{sW}, 1          ; b'
    s_and_b32 s46, s{sW}, 1           ; dsub
    s_lshl_b32 s47, s{sG}, 16
    s_lshl_b32 s48, s45, 15
    s_add_u32 s47, s47, s48
    s_lshr_b32 s48, s{sI}, 2
    s_lshl_b32 s48, s48, 8
    s_add_u32 s47, s47, s48
    s_lshl_b32 s48, s46, 7
    s_add_u32 s47, s47, s48
    s_add_u32 s47, s47, {W_OP}
    v_lshrrev_b32 v5, 3, v0
    v_and_b32 v6, 7, v0
    v_lshlrev_b32 v24, 11, v5
    v_lshl_add_u32 v24, v6, 4, v24
    v_add_u32 v24, s47, v24
    v_add_u32 v25, 16384, v24
    s_lshl_b32 s47, s45, 6
    s_add_u32 s47, s47, {L_WT}
    v_lshl_add_u32 v26, v5, 2, s47
    v_and_b32 v5, 1, v3
    v_lshlrev_b32 v5, 1, v5
    v_lshrrev_b32 v7, 1, v3
    v_or_b32 v5, v5, v7
    v_lshl_add_u32 v5, v6, 2, v5
    s_lshl_b32 s47, s45, 7
    s_lshl_b32 s48, s46, 6
    s_add_u32 s47, s47, s48
    s_add_u32 s47, s47, {L_OB}
    v_lshl_add_u32 v27, v5, 1, s47
    s_lshl_b32 s47, s{sSLOT}, 7
    s_add_u32 s47, s47, {W_ST}
    v_lshl_add_u32 v29, v13, 4, s47
    v_and_b32 v5, 4, v0
    v_cmp_ne_u32 s[50:51], 0, v5
    v_and_b32 v5, 2, v0
    v_cmp_ne_u32 s[52:53], 0, v5
    v_mov_b32 v30, 1
    s_waitcnt lgkmcnt(0)
    """)
    nonce_from_epoch()
    e("s_barrier")
    stamp(1)
    L = lbl("L_sp")
    e(f"""{L}:
    ds_read_b64 v[6:7], v1 offset:{F_Q}
    s_waitcnt lgkmcnt(0)
    v_and_b32 v6, v6, v7
    v_cmp_ne_u32 vcc, 0, v6
    s_cbranch_vccz {L}""")
    stamp(2)
    for tau in range(4):
        m = 0x000f000f << (4*tau)
        e(f"s_mov_b32 s54, {m:#x}\ns_mov_b32 s55, {m:#x}\ns_mov_b64 exec, s[54:55]")
        for t in range(4):
            r = 64 + 16*tau + 4*t
            e(f"ds_read_b128 v[{r}:{r+3}], v12 offset:{64*t}")
    e("s_mov_b64 exec, -1")
    for tau in range(4):
        for t in range(4):
            r = 128 + 16*tau + 4*t
            e(f"ds_read_b128 v[{r}:{r+3}], v{8+t} offset:{4096*tau}")
    for tau in range(4):
        for t in range(4):
            n = 4*tau + t
            r = 128 + 16*tau + 4*t; q = 64 + 16*tau + 4*t
            if not cfg.diag or True:
                e(f"s_waitcnt lgkmcnt({min(15-n, 15)})")
            e(f"v_mfma_f32_16x16x32_bf16 v[32:35], v[{r}:{r+3}], v[{q}:{q+3}], {'v[32:35]' if n else 0}")
    e(f"""
    s_mov_b32 s54, {SCALE:#x}
    s_mov_b32 s55, {LOG2E:#x}
    s_nop 5
    v_cvt_pk_bf16_f32 v32, v32, v33
    v_cvt_pk_bf16_f32 v34, v34, v35
    v_and_b32 v33, 0xffff0000, v32
    v_lshlrev_b32 v32, 16, v32
    v_and_b32 v35, 0xffff0000, v34
    v_lshlrev_b32 v34, 16, v34
    v_mul_f32 v32, s54, v32
    v_mul_f32 v33, s54, v33
    v_mul_f32 v34, s54, v34
    v_mul_f32 v35, s54, v35
    v_cvt_pk_bf16_f32 v32, v32, v33
    v_cvt_pk_bf16_f32 v34, v34, v35
    v_and_b32 v33, 0xffff0000, v32
    v_lshlrev_b32 v32, 16, v32
    v_and_b32 v35, 0xffff0000, v34
    v_lshlrev_b32 v34, 16, v34
    v_max_f32 v36, v32, v33
    v_max3_f32 v36, v34, v35, v36
    """)
    dpp_max(36, (8, 4))
    e("""
    v_mov_b32 v37, v36
    s_nop 1
    v_permlane16_swap_b32 v36, v37
    s_nop 0
    v_max_f32 v36, v36, v37
    v_mov_b32 v37, v36
    s_nop 1
    v_permlane32_swap_b32 v36, v37
    s_nop 0
    v_max_f32 v36, v36, v37
    v_sub_f32 v32, v32, v36
    v_sub_f32 v33, v33, v36
    v_sub_f32 v34, v34, v36
    v_sub_f32 v35, v35, v36
    v_mul_f32 v32, s55, v32
    v_mul_f32 v33, s55, v33
    v_mul_f32 v34, s55, v34
    v_mul_f32 v35, s55, v35
    v_exp_f32 v32, v32
    v_exp_f32 v33, v33
    v_exp_f32 v34, v34
    v_exp_f32 v35, v35
    v_add_f32 v37, v32, v33
    v_cvt_pk_bf16_f32 v32, v32, v33
    v_add_f32 v38, v34, v35
    v_cvt_pk_bf16_f32 v33, v34, v35
    v_add_f32 v37, v37, v38
    ds_write_b64 v14, v[32:33]
    """)
    dpp_add(37, (8, 4))
    e("""
    v_mov_b32 v38, v37
    s_nop 1
    v_permlane16_swap_b32 v37, v38
    s_nop 0
    v_add_f32 v37, v37, v38
    v_mov_b32 v38, v37
    s_nop 1
    v_permlane32_swap_b32 v37, v38
    s_nop 0
    v_add_f32 v37, v37, v38
    s_mov_b64 exec, 15
    ds_write_b64 v16, v[36:37]
    s_mov_b64 exec, -1
    """)
    flag_add(1, F_P, 30)
    for sp in range(4):
        e(f"""
        s_add_u32 s56, s{sRS}, {sp}
        s_and_b32 s56, s56, 3
        s_lshl_b32 s57, s56, 9
        v_add_u32 v{40+sp}, s57, v15
        s_lshl_b32 s57, s56, 5
        v_add_u32 v{44+sp}, s57, v17
        s_lshl_b32 s57, s56, 14
        v_add_u32 v{48+2*sp}, s57, v18
        v_add_u32 v{49+2*sp}, s57, v19
        """)
    spin_ge(1, F_P, 4, 6)
    for sp in range(4):
        e(f"ds_read_b64 v[{56+2*sp}:{57+2*sp}], v{44+sp}")
    for sp in range(4):
        for sg in range(2):
            r = 64 + 8*sp + 4*sg
            e(f"ds_read_b128 v[{r}:{r+3}], v{40+sp} offset:{256*sg}")
    e("""
    s_waitcnt lgkmcnt(8)
    v_max_f32 v32, v56, v58
    v_max3_f32 v32, v60, v62, v32
    v_sub_f32 v56, v56, v32
    v_sub_f32 v58, v58, v32
    v_sub_f32 v60, v60, v32
    v_sub_f32 v62, v62, v32
    v_mul_f32 v56, s55, v56
    v_mul_f32 v58, s55, v58
    v_mul_f32 v60, s55, v60
    v_mul_f32 v62, s55, v62
    v_exp_f32 v56, v56
    v_exp_f32 v58, v58
    v_exp_f32 v60, v60
    v_exp_f32 v62, v62
    v_mul_f32 v33, v56, v57
    v_fmac_f32 v33, v58, v59
    v_fmac_f32 v33, v60, v61
    v_fmac_f32 v33, v62, v63
    v_mov_b32 v34, 0
    v_mov_b32 v35, 0
    """)
    e(f"s_cmp_eq_u32 s{sW}, 0\ns_cbranch_scc0 L_nostat")
    tag_insert(32, 4)
    e(f"""
    s_mov_b64 exec, 15
    buffer_store_dwordx4 v[32:35], v29, s[{SRD_WS}:{SRD_WS+3}], 0 offen sc1
    s_mov_b64 exec, -1
    L_nostat:
    """)
    stamp(3)
    def fold(sp):
        for k in range(8):
            a = 96 + 8*sp + k
            if sp == 0: e(f"v_mul_f32 v{144+k}, v{56+2*sp}, v{a}")
            else: e(f"v_fmac_f32 v{144+k}, v{56+2*sp}, v{a}")
    for sp in range(4):
        spin_ge(1, F_V, sp+1, 6)
        if sp == 3: stamp(4)
        for sg in range(2):
            for ee in range(2):
                r = 128 + 8*sg + 4*ee
                e(f"ds_read_b64_tr_b16 v[{r}:{r+1}], v{48+2*sp+ee} offset:{8192*sg}")
                e(f"ds_read_b64_tr_b16 v[{r+2}:{r+3}], v{48+2*sp+ee} offset:{8192*sg+4096}")
        if sp > 0: fold(sp-1)
        for sg in range(2):
            for ee in range(2):
                r = 128 + 8*sg + 4*ee
                a = 96 + 8*sp + 4*ee
                p = 64 + 8*sp + 4*sg
                e(f"s_waitcnt lgkmcnt({6 - 2*(2*sg+ee)})" if not cfg.diag else "s_waitcnt lgkmcnt(0)")
                e(f"v_mfma_f32_16x16x32_bf16 v[{a}:{a+3}], v[{r}:{r+3}], v[{p}:{p+3}], {f'v[{a}:{a+3}]' if sg else 0}")
        if sp < 3: e("s_nop 2")
    e("s_nop 6")
    fold(3)
    for k in range(4):
        e(f"v_cndmask_b32 v{144+k}, v{144+k}, v{148+k}, s[50:51]")
    tag_insert(144, 4)
    e(f"""
    s_mov_b32 s56, 0x00ff00ff
    s_mov_b32 s57, 0x00ff00ff
    s_mov_b64 exec, s[56:57]
    buffer_store_dwordx4 v[144:147], v22, s[{SRD_WS}:{SRD_WS+3}], 0 offen sc1
    s_mov_b64 exec, -1
    buffer_load_dwordx4 v[32:35], v24, s[{SRD_WS}:{SRD_WS+3}], 0 offen sc1
    buffer_load_dwordx4 v[36:39], v25, s[{SRD_WS}:{SRD_WS+3}], 0 offen sc1
    """)
    stamp(5)
    spin_ge(1, F_WO, 1, 6)
    for ee in range(2):
        for t in range(2):
            r = 64 + 8*ee + 4*t
            e(f"ds_read_b64_tr_b16 v[{r}:{r+1}], v{20+ee} offset:{8192*t}")
            e(f"ds_read_b64_tr_b16 v[{r+2}:{r+3}], v{20+ee} offset:{8192*t+1024}")
    spin_ge(1, F_W, 1, 6, extra="ds_read_b32 v40, v26\nds_read_b32 v41, v26 offset:32")
    e(f"""
    s_branch L_ochk
    L_oretry:
    buffer_load_dwordx4 v[32:35], v24, s[{SRD_WS}:{SRD_WS+3}], 0 offen sc1
    buffer_load_dwordx4 v[36:39], v25, s[{SRD_WS}:{SRD_WS+3}], 0 offen sc1
    L_ochk:
    s_waitcnt vmcnt(0)
    """)
    tag_check(32, 7, True); tag_check(36, 7, False)
    tag_branch(7, "L_oretry")
    stamp(6)
    for k in range(8): e(f"v_and_b32 v{32+k}, 0xffffff00, v{32+k}")
    for k in range(4): e(f"v_mul_f32 v{32+k}, v40, v{32+k}")
    for k in range(4): e(f"v_fmac_f32 v{32+k}, v41, v{36+k}")
    reduce4_rows(32, 36)
    dpp_add(32, (8,))
    e("""
    v_cvt_pk_bf16_f32 v32, v32, v32
    ds_write_b16 v27, v32
    """)
    flag_add(1, F_O, 30)
    spin_ge(1, F_O, 4, 6, extra="ds_read_b128 v[40:43], v28\nds_read_b128 v[44:47], v28 offset:64")
    for t in range(2):
        for ee in range(2):
            r = 64 + 8*ee + 4*t
            a = 32 + 4*ee
            e(f"v_mfma_f32_16x16x32_bf16 v[{a}:{a+3}], v[{r}:{r+3}], v[{40+4*t}:{43+4*t}], {f'v[{a}:{a+3}]' if t else 0}")
    e(f"""
    s_mov_b32 s56, 0x000f000f
    s_mov_b32 s57, 0x000f000f
    s_nop 5
    """)
    for k in range(4):
        e(f"v_cndmask_b32 v{32+k}, v{32+k}, v{36+k}, s[52:53]")
    tag_insert(32, 4)
    e(f"""
    s_mov_b64 exec, s[56:57]
    buffer_store_dwordx4 v[32:35], v23, s[{SRD_WS}:{SRD_WS+3}], 0 offen sc1
    """)
    stamp(7)
    stamps_out(8)
    e("L_end:\ns_endpgm\nL_codeend:")
    body = "\n".join(out)
    hdr = open("recurrent_scan__sliding_block_cached__dense_activation_squared_relu__decode.s.ref").read().split("; Override launch")[0]
    return f"""{hdr}; Single fused launch: 256 workgroups (one per CU) x 7 waves.
; @launch grid=(256,1,1) block=(448,1,1) lds={LDS_TOTAL}
.amdgcn_target "amdgcn-amd-amdhsa--gfx950"
.text
.globl {KNAME}
.p2align 8
.type {KNAME},@function
{KNAME}:
{body}
.section .rodata,"a"
.p2align 6
.amdhsa_kernel {KNAME}
  .amdhsa_next_free_vgpr 192
  .amdhsa_next_free_sgpr 102
  .amdhsa_accum_offset 192
  .amdhsa_group_segment_fixed_size 0
  .amdhsa_kernarg_size 104
  .amdhsa_user_sgpr_count 2
  .amdhsa_user_sgpr_kernarg_segment_ptr 1
  .amdhsa_system_sgpr_workgroup_id_x 1
.end_amdhsa_kernel
"""

if __name__ == "__main__":
    path = sys.argv[1]
    for a in sys.argv[2:]:
        k, v = a.split("=")
        cur = getattr(cfg, k)
        setattr(cfg, k, type(cur)(int(v)) if isinstance(cur, (bool, int)) else v.replace("+", " "))
    open(path, "w").write(build())
```

```python
import sys
KNAME = "recurrent_scan__sliding_block_cached__dense_activation_squared_relu__decode_kernel"

cfg_dbgsel = {6: [(0,0,1),(0,1,0),(1,2,1),(1,3,0),(2,4,0),(4,5,1),(4,6,0),(5,7,0)], 7: [(4,8,0),(5,9,0),(6,10,0)], 8: [(5,11,0),(6,12,1),(6,13,0),(7,14,0)]}
class Cfg:
    dbg = False
    diag = False
    win = 32
    ntK = "nt"; ntW = "nt"
    rotmul = 1
cfg = Cfg()

L_K, L_V, L_WO = 0, 65536, 131072
SCR = 147456
L_QS = SCR
L_PB = SCR + 1152
L_SB = L_PB + 2048
L_WT = L_SB + 128
L_OB = L_WT + 128
L_ACTA = L_OB + 256
L_ACTB = L_ACTA + 576
L_FL = L_ACTB + 576
LDS_TOTAL = L_FL + 64
F_Q, F_K, F_P, F_V, F_T, F_WO, F_W, F_O = [4*k for k in range(8)]
W_QP, W_HP, W_FP, W_ST, W_OP, W_SP = 0x10000, 0x40000, 0x50000, 0x60000, 0x80000, 0x100000
WS_BYTES = 0x200000
SPIN_CAP = 20000
LOG2E = 0x3fb8aa3b
SCALE = 0x3db504f3

sWAVE, sG, sI, sNON = 30, 31, 32, 33
sT0, sT1, sT2, sT3 = 33, 34, 35, 40
SRD_WS = 36
sSLOT = 41
sRS = 42
sCAP = 43
STAMP0 = 80

out = []
def e(s):
    for ln in s.strip("\n").split("\n"):
        out.append("    " + ln.strip() if not ln.strip().endswith(":") else ln.strip())

def stamp(k):
    if cfg.diag:
        e(f"s_memrealtime s[{STAMP0+2*k}:{STAMP0+2*k+1}]")

def stamps_out(n):
    if not cfg.diag: return
    if cfg.dbg:
        sel = cfg_dbgsel[n] if n in cfg_dbgsel else []
        e("s_waitcnt lgkmcnt(0)\ns_mov_b64 exec, 1\nv_mov_b32 v1, 0")
        if n == 8: e(f"s_cmp_eq_u32 s{sWAVE}, 2\ns_cbranch_scc0 L_dbgskip{len(out)}"); lab = f"L_dbgskip{len(out)-2}"
        for (k, slot, mn) in sel:
            e(f"v_mov_b32 v4, s{STAMP0+2*k}")
            if mn: e("v_not_b32 v4, v4")
            e(f"global_atomic_umax v1, v4, s[26:27] offset:{4*slot}\ns_nop 1")
        if n == 8: e(f"{lab}:")
        e("s_waitcnt vmcnt(0)")
        return
    e(f"""
    s_waitcnt lgkmcnt(0)
    s_lshl_b32 s60, s2, 4
    s_add_u32 s60, s60, s{sWAVE}
    s_lshl_b32 s60, s60, 6
    s_add_u32 s68, s28, s60
    s_addc_u32 s69, s29, 0
    s_add_u32 s68, s68, 0x10000000
    s_addc_u32 s69, s69, 0
    s_mov_b64 exec, 1
    v_mov_b32 v1, 0
    """)
    for k in range(8):
        if k < n:
            e(f"v_mov_b32 v4, s{STAMP0+2*k}\nv_mov_b32 v5, s{STAMP0+2*k+1}")
        else:
            e(f"v_mov_b32 v4, s{STAMP0}\nv_mov_b32 v5, s{STAMP0+1}")
        e(f"global_store_dwordx2 v1, v[4:5], s[68:69] offset:{8*k}\ns_nop 1")
    e("s_waitcnt vmcnt(0)")

lblc = [0]
def lbl(p="L"):
    lblc[0] += 1
    return f"{p}_{lblc[0]}"

def flag_set(vfl, off, vval):
    e(f"s_mov_b64 exec, 1\nds_write_b32 v{vfl}, v{vval} offset:{off}\ns_mov_b64 exec, -1")
def flag_add(vfl, off, vone):
    e(f"s_mov_b64 exec, 1\nds_add_u32 v{vfl}, v{vone} offset:{off}\ns_mov_b64 exec, -1")
def spin_ge(vfl, off, target, vtmp, extra=""):
    L = lbl("L_sp")
    e(f"""{L}:
    ds_read_b32 v{vtmp}, v{vfl} offset:{off}
    {extra}
    s_waitcnt lgkmcnt(0)
    v_cmp_le_u32 vcc, {target}, v{vtmp}
    s_cbranch_vccz {L}""")

def tag_check(regs, acc, first):
    T = [sT0, sT1, sT2, sT3]
    for k in range(4):
        if first and k == 0:
            e(f"v_xor_b32 v{acc}, s{T[0]}, v{regs}")
        else:
            e(f"v_bitop3_b32 v{acc}, v{regs+k}, s{T[k]}, v{acc} bitop3:0xbe")
def tag_branch(acc, Lretry, Ldone=None):
    Ld = lbl("L_ok")
    e(f"""
    v_and_b32 v{acc}, 0xff, v{acc}
    v_cmp_ne_u32 vcc, 0, v{acc}
    s_cbranch_vccz {Ld}
    s_sub_u32 s{sCAP}, s{sCAP}, 1
    s_cbranch_scc0 {Lretry}
    s_mov_b32 s{sCAP}, 0
    {Ld}:""")
def tag_insert(regs, vff):
    T = [sT0, sT1, sT2, sT3]
    for k in range(4):
        e(f"v_bfi_b32 v{regs+k}, v{vff}, s{T[k]}, v{regs+k}")

def nonce_from_epoch():
    e(f"""
    s_add_u32 s{sT0}, s{sT0}, 0x01010101
    s_lshr_b32 s{sT1}, s{sT0}, 8
    s_lshr_b32 s{sT2}, s{sT0}, 16
    s_lshr_b32 s{sT3}, s{sT0}, 24
    """)

def srd(r, lo, hi, nbytes):
    pass

def reduce4_rows(x, t):
    e(f"""
    s_nop 1
    v_permlane32_swap_b32 v{x}, v{x+1}
    v_permlane32_swap_b32 v{x+2}, v{x+3}
    s_nop 0
    v_add_f32 v{x}, v{x}, v{x+1}
    v_add_f32 v{x+2}, v{x+2}, v{x+3}
    s_nop 1
    v_permlane16_swap_b32 v{x}, v{x+2}
    s_nop 0
    v_add_f32 v{x}, v{x}, v{x+2}
    """)
def dpp_add(x, rots):
    for r in rots:
        e(f"s_nop 1\nv_add_f32_dpp v{x}, v{x}, v{x} row_ror:{r} row_mask:0xf bank_mask:0xf")
def dpp_max(x, rots):
    for r in rots:
        e(f"s_nop 1\nv_max_f32_dpp v{x}, v{x}, v{x} row_ror:{r} row_mask:0xf bank_mask:0xf")
def rnd_bf16(x):
    e(f"v_cvt_pk_bf16_f32 v{x}, v{x}, v{x}\nv_and_b32 v{x}, 0xffff0000, v{x}")

def build():
    out.clear()
    stamp(0)
    e(f"""
    s_load_dwordx16 s[4:19], s[0:1], 0
    s_load_dwordx8 s[20:27], s[0:1], 64
    s_load_dwordx2 s[28:29], s[0:1], 96
    s_cmp_ge_u32 s2, 256
    s_cbranch_scc1 L_end
    v_lshrrev_b32 v1, 6, v0
    v_and_b32 v0, 63, v0
    v_readfirstlane_b32 s{sWAVE}, v1
    v_and_b32 v2, 15, v0
    v_lshrrev_b32 v3, 4, v0
    s_and_b32 s{sG}, s2, 7
    s_lshr_b32 s{sI}, s2, 3
    s_lshl_b32 s{sSLOT}, s{sG}, 5
    s_add_u32 s{sSLOT}, s{sSLOT}, s{sI}
    s_mul_i32 s44, s2, {cfg.rotmul}
    s_lshr_b32 s{sRS}, s44, 2
    s_and_b32 s{sRS}, s{sRS}, 3
    s_mov_b32 s{sCAP}, {SPIN_CAP}
    v_mov_b32 v1, {L_FL}
    s_lshl_b32 s45, s{sI}, 3
    s_add_u32 s45, s45, s{sWAVE}
    s_cmp_eq_u32 s45, 6
    s_cbranch_scc0 L_nopf
    s_getpc_b64 s[46:47]
    L_pc:
    s_sub_u32 s46, s46, L_pc-{KNAME}
    s_subb_u32 s47, s47, 0
    v_lshlrev_b32 v5, 7, v0
    v_add_u32 v6, 8192, v5
    v_min_u32 v5, L_codeend-{KNAME}-4, v5
    v_min_u32 v6, L_codeend-{KNAME}-4, v6
    global_load_dword v190, v5, s[46:47]
    global_load_dword v191, v6, s[46:47]
    L_nopf:
    s_cmp_lg_u32 s{sWAVE}, 0
    s_cbranch_scc1 L_notloader
    """)
    e("v_lshlrev_b32 v12, 8, v3")
    for p in range(4):
        e(f"v_add_u32 v13, {4*p}, v3\nv_xor_b32 v13, v13, v2\nv_lshl_add_u32 v{4+p}, v13, 4, v12")
    for a in range(2):
        e(f"v_add_u32 v13, {4*a}, v3\nv_lshlrev_b32 v13, 1, v13\nv_xor_b32 v13, v13, v2\nv_lshl_add_u32 v{8+a}, v13, 4, v12")
    e(f"""
    s_lshr_b32 s45, s{sI}, 4
    s_lshl_b32 s45, s45, 26
    s_lshl_b32 s46, s{sG}, 23
    s_add_u32 s45, s45, s46
    s_and_b32 s46, s{sI}, 15
    s_lshl_b32 s46, s46, 16
    s_add_u32 s45, s45, s46
    s_add_u32 s45, s45, {28672*256}
    s_mov_b32 s50, 0x10000
    s_mov_b32 s51, 0x20000
    s_mov_b32 s54, 0x10000
    s_mov_b32 s55, 0x20000
    s_and_b32 s44, s44, 15
    s_lshl_b32 s47, s44, 12
    s_mov_b32 s60, 0
    s_waitcnt lgkmcnt(0)
    s_add_u32 s48, s6, s45
    s_addc_u32 s49, s7, 0
    s_add_u32 s52, s8, s45
    s_addc_u32 s53, s9, 0
    """)
    G = cfg.win // 4
    nt = cfg.ntK
    e(f"""L_ldK0:
    s_mov_b32 m0, s47
    s_add_u32 s60, s60, 1
    buffer_load_dwordx4 v4, s[48:51], s47 offen {nt} lds
    buffer_load_dwordx4 v5, s[48:51], s47 offen offset:1024 {nt} lds
    buffer_load_dwordx4 v6, s[48:51], s47 offen offset:2048 {nt} lds
    buffer_load_dwordx4 v7, s[48:51], s47 offen offset:3072 {nt} lds
    s_add_u32 s47, s47, 4096
    s_and_b32 s47, s47, 0xffff
    s_cmp_lt_u32 s60, {G}
    s_cbranch_scc1 L_ldK0
    """)
    stamp(1)
    e(f"v_lshlrev_b32 v12, 10, v3")
    for a in range(2):
        e(f"v_or_b32 v13, {4*a}, v3\nv_lshlrev_b32 v13, 1, v13\nv_xor_b32 v13, v13, v2\nv_lshl_add_u32 v{10+a}, v13, 4, v12")
    e(f"""
    s_lshl_b32 s45, s{sG}, 19
    s_lshr_b32 s46, s{sI}, 2
    s_lshl_b32 s46, s46, 16
    s_add_u32 s45, s45, s46
    s_and_b32 s46, s{sI}, 3
    s_lshl_b32 s46, s46, 8
    s_add_u32 s45, s45, s46
    s_add_u32 s56, s12, s45
    s_addc_u32 s57, s13, 0
    s_sub_u32 s58, 0x400000, s45
    s_mov_b32 s59, 0x20000
    v_mov_b32 v14, 1
    s_barrier
    """)
    if G < 16:
        e(f"""L_ldK1:
        s_mov_b32 m0, s47
        s_add_u32 s60, s60, 1
        s_waitcnt vmcnt({cfg.win-4})
        buffer_load_dwordx4 v4, s[48:51], s47 offen {nt} lds
        buffer_load_dwordx4 v5, s[48:51], s47 offen offset:1024 {nt} lds
        buffer_load_dwordx4 v6, s[48:51], s47 offen offset:2048 {nt} lds
        buffer_load_dwordx4 v7, s[48:51], s47 offen offset:3072 {nt} lds
        s_add_u32 s47, s47, 4096
        s_and_b32 s47, s47, 0xffff
        s_cmp_lt_u32 s60, 16
        s_cbranch_scc1 L_ldK1
        """)
    def landed_actions(upto):
        acts = []
        if upto == 15: acts.append((F_K, 1))
        for s in range(4):
            if upto == 16 + 4*s + 3: acts.append((F_V, s+1))
        if upto == 35: acts.append((F_WO, 1))
        for off, val in acts:
            e(f"v_mov_b32 v15, {val}")
            flag_set(1, off, 15)
            if off == F_K: stamp(2)
            if off == F_V and val == 4: stamp(4)
    e(f"s_and_b32 s61, s44, 3")
    for n in range(16, 36):
        if n < 32:
            sp, q = (n-16)//4, (n-16) % 4
            e(f"""
            s_add_u32 s47, s{sRS}, {sp}
            s_and_b32 s47, s47, 3
            s_lshl_b32 s47, s47, 2
            s_add_u32 s62, s61, {q}
            s_and_b32 s62, s62, 3
            s_add_u32 s47, s47, s62
            s_lshl_b32 s47, s47, 12
            s_add_u32 s62, s47, {L_V}
            s_mov_b32 m0, s62
            """)
            if n == 24:
                spin_ge(1, F_T, 2, 15)
            e(f"s_waitcnt vmcnt({cfg.win-4})")
            for p in range(4):
                e(f"buffer_load_dwordx4 v{8+(p&1)}, s[52:55], s47 offen offset:{1024*p} {nt} lds")
        else:
            e(f"s_waitcnt vmcnt({cfg.win-4})")
            for pp in range(4):
                p = (n-32)*4 + pp
                e(f"s_mov_b32 m0, {L_WO + p*1024}\ns_mov_b32 s47, {p*4096}")
                e(f"buffer_load_dwordx4 v{10+((p>>1)&1)}, s[56:59], s47 offen {cfg.ntW} lds")
        landed_actions(n - G)
    stamp(3)
    for upto in range(36 - G, 36):
        need = any(upto == x for x in (15, 19, 23, 27, 31, 35))
        if need:
            e(f"s_waitcnt vmcnt({4*(35-upto)})")
            landed_actions(upto)
    stamp(5)
    stamps_out(6)
    e("s_endpgm")

    e(f"""L_notloader:
    s_setprio 1
    v_mov_b32 v4, 0xff
    s_cmp_ge_u32 s{sWAVE}, 3
    s_cbranch_scc1 L_compute
    """)
    e(f"""
    s_cmp_eq_u32 s{sWAVE}, 1
    s_cbranch_scc0 L_roleB
    s_mov_b32 s44, 0
    s_and_b32 s53, s{sI}, 3
    s_lshl_b32 s45, s53, 20
    s_lshl_b32 s46, s{sG}, 10
    s_add_u32 s45, s45, s46
    s_lshr_b32 s46, s{sI}, 2
    s_lshl_b32 s46, s46, 7
    s_add_u32 s45, s45, s46
    s_mov_b32 s46, 8192
    s_mov_b32 s47, 0x400000
    s_lshl_b32 s52, s{sSLOT}, 9
    s_add_u32 s52, s52, {W_QP}
    s_add_u32 s54, s{sRS}, 2
    s_mov_b32 s55, {L_ACTA}
    s_waitcnt lgkmcnt(0)
    s_mov_b32 s48, s10
    s_mov_b32 s49, s11
    s_branch L_tilecommon
    L_roleB:
    s_add_u32 s54, s{sRS}, 3
    s_mov_b32 s55, {L_ACTB}
    s_mov_b32 s47, {512*1792*2}
    s_cmp_lt_u32 s{sI}, 14
    s_cbranch_scc0 L_roleB2
    s_mov_b32 s44, 0
    s_and_b32 s53, s2, 3
    s_mul_i32 s45, s53, {128*3584}
    s_lshr_b32 s46, s2, 2
    s_lshl_b32 s46, s46, 7
    s_add_u32 s45, s45, s46
    s_mov_b32 s46, 3584
    s_lshl_b32 s52, s2, 9
    s_add_u32 s52, s52, {W_HP}
    s_waitcnt lgkmcnt(0)
    s_mov_b32 s48, s16
    s_mov_b32 s49, s17
    s_branch L_tilecommon
    L_roleB2:
    s_cmp_lt_u32 s{sI}, 28
    s_cselect_b32 s44, 1, 2
    s_sub_u32 s53, s{sI}, 14
    s_min_u32 s53, s53, 13
    s_lshl_b32 s45, s53, 17
    s_lshl_b32 s46, s{sG}, 7
    s_add_u32 s45, s45, s46
    s_mov_b32 s46, 1024
    s_sub_u32 s52, s2, 112
    s_lshl_b32 s52, s52, 9
    s_add_u32 s52, s52, {W_FP}
    s_waitcnt lgkmcnt(0)
    s_mov_b32 s48, s20
    s_mov_b32 s49, s21
    L_tilecommon:
    s_load_dword s{sT0}, s[28:29], 0
    s_add_u32 s48, s48, s45
    s_addc_u32 s49, s49, 0
    s_sub_u32 s50, s47, s45
    s_mov_b32 s51, 0x20000
    s_and_b32 s54, s54, 3
    s_lshl_b32 s54, s54, 14
    s_add_u32 s54, s54, {L_V}
    s_mov_b32 s{SRD_WS}, s28
    s_mov_b32 s{SRD_WS+1}, s29
    s_mov_b32 s{SRD_WS+2}, {WS_BYTES}
    s_mov_b32 s{SRD_WS+3}, 0x20000
    s_cmp_eq_u32 s44, 0
    s_cbranch_scc0 L_nox
    v_lshlrev_b32 v5, 5, v0
    global_load_dwordx4 v[8:11], v5, s[4:5]
    global_load_dwordx4 v[12:15], v5, s[4:5] offset:16
    L_nox:
    v_lshrrev_b32 v5, 3, v0
    v_mul_lo_u32 v5, v5, s46
    v_and_b32 v6, 7, v0
    v_and_b32 v7, 1, v3
    v_lshlrev_b32 v7, 1, v7
    v_xor_b32 v6, v6, v7
    v_lshl_add_u32 v16, v6, 4, v5
    v_xor_b32 v6, 4, v6
    v_lshl_add_u32 v17, v6, 4, v5
    s_lshl_b32 s46, s46, 3
    s_cmp_eq_u32 s44, 2
    s_cbranch_scc1 L_tile_issued
    s_mov_b32 s56, 0
    s_mov_b32 s57, s54
    s_mov_b32 s58, 0
    L_tdma:
    s_mov_b32 m0, s57
    s_add_u32 s57, s57, 1024
    buffer_load_dwordx4 v16, s[48:51], s56 offen {cfg.ntW} lds
    s_add_u32 s56, s56, s46
    s_mov_b32 m0, s57
    s_add_u32 s57, s57, 1024
    buffer_load_dwordx4 v17, s[48:51], s56 offen {cfg.ntW} lds
    s_add_u32 s56, s56, s46
    s_add_u32 s58, s58, 1
    s_cmp_lt_u32 s58, 8
    s_cbranch_scc1 L_tdma
    L_tile_issued:
    """)
    stamp(1)
    e(f"""
    v_lshrrev_b32 v5, 2, v2
    v_lshl_add_u32 v5, v3, 3, v5
    v_lshlrev_b32 v5, 7, v5
    v_and_b32 v6, 3, v2
    v_lshl_add_u32 v5, v6, 3, v5
    v_add_u32 v5, s54, v5
    v_lshrrev_b32 v6, 3, v2
    v_and_b32 v7, 1, v3
    v_lshl_or_b32 v6, v7, 1, v6
    """)
    for u in range(4):
        e(f"v_xor_b32 v7, {u}, v6\nv_lshl_add_u32 v{16+u}, v7, 5, v5")
    e(f"""
    v_and_b32 v5, 1, v0
    v_mul_u32_u24 v5, 288, v5
    v_lshl_add_u32 v5, v3, 4, v5
    v_add_u32 v20, s55, v5
    v_mov_b32 v21, 1
    s_waitcnt lgkmcnt(0)
    """)
    nonce_from_epoch()
    e("s_barrier")
    e(f"""
    s_cmp_eq_u32 s44, 0
    s_cbranch_scc0 L_noLN
    """)
    e("s_waitcnt vmcnt(16)")
    for k in range(8):
        e(f"v_lshlrev_b32 v{24+2*k}, 16, v{8+k}\nv_and_b32 v{25+2*k}, 0xffff0000, v{8+k}")
    e("v_pk_add_f32 v[40:41], v[24:25], v[26:27]")
    for k in range(2, 8):
        e(f"v_pk_add_f32 v[40:41], v[40:41], v[{24+2*k}:{25+2*k}]")
    e("v_add_f32 v40, v40, v41")
    dpp_add(40, (8, 4, 2, 1))
    e("v_mov_b32 v41, v40\ns_nop 1\nv_permlane16_swap_b32 v40, v41\ns_nop 0\nv_add_f32 v40, v40, v41")
    e("v_mul_f32 v40, 0xbb000000, v40\nv_mov_b32 v41, v40")
    e("v_pk_add_f32 v[42:43], v[24:25], v[40:41]\nv_pk_mul_f32 v[44:45], v[42:43], v[42:43]")
    for k in range(1, 8):
        e(f"v_pk_add_f32 v[42:43], v[{24+2*k}:{25+2*k}], v[40:41]\nv_pk_fma_f32 v[44:45], v[42:43], v[42:43], v[44:45]")
    e("v_add_f32 v44, v44, v45")
    dpp_add(44, (8, 4, 2, 1))
    e("v_mov_b32 v45, v44\ns_nop 1\nv_permlane16_swap_b32 v44, v45\ns_nop 0\nv_add_f32 v44, v44, v45")
    e("v_mul_f32 v44, 0x3b000000, v44")
    rnd_bf16(44)
    e("v_add_f32 v44, 0x3727c5ac, v44")
    rnd_bf16(44)
    e("v_sqrt_f32 v44, v44\ns_nop 0")
    rnd_bf16(44)
    e("v_rcp_f32 v44, v44")
    rnd_bf16(40)
    e("v_mov_b32 v41, v40\nv_mov_b32 v45, v44")
    for k in range(8):
        e(f"v_pk_add_f32 v[42:43], v[{24+2*k}:{25+2*k}], v[40:41]")
        e(f"v_cvt_pk_bf16_f32 v42, v42, v43\nv_and_b32 v43, 0xffff0000, v42\nv_lshlrev_b32 v42, 16, v42")
        e(f"v_pk_mul_f32 v[42:43], v[42:43], v[44:45]\nv_cvt_pk_bf16_f32 v{8+k}, v42, v43")
    e(f"""
    v_bfe_u32 v5, v0, 3, 2
    v_lshrrev_b32 v6, 5, v0
    v_mul_u32_u24 v6, 288, v6
    v_and_b32 v7, 7, v0
    v_lshl_add_u32 v6, v7, 5, v6
    v_add_u32 v6, s55, v6
    v_cmp_eq_u32 vcc, s53, v5
    s_and_saveexec_b64 s[56:57], vcc
    ds_write_b128 v6, v[8:11]
    ds_write_b128 v6, v[12:15] offset:16
    s_mov_b64 exec, -1
    L_noLN:
    """)
    stamp(2)
    e(f"""
    s_cmp_eq_u32 s44, 2
    s_cbranch_scc1 L_notile
    s_waitcnt vmcnt(0)
    """)
    for u in range(4):
        for t in range(4):
            r = 64 + 16*u + 4*t
            e(f"ds_read_b64_tr_b16 v[{r}:{r+1}], v{16+u} offset:{t*4096}")
            e(f"ds_read_b64_tr_b16 v[{r+2}:{r+3}], v{16+u} offset:{t*4096+512}")
    e(f"""
    s_waitcnt lgkmcnt(0)
    L_notile:
    """)
    flag_add(1, F_T, 21)
    stamp(3)
    e(f"""
    s_cmp_eq_u32 s44, 1
    s_cbranch_scc0 L_noH
    """)
    e(f"""
    v_bfe_u32 v5, v0, 4, 1
    v_lshlrev_b32 v5, 11, v5
    v_lshrrev_b32 v6, 5, v0
    v_lshl_add_u32 v5, v6, 8, v5
    v_lshl_add_u32 v5, v2, 4, v5
    s_lshl_b32 s56, s53, 12
    s_add_u32 s56, s56, {W_HP}
    v_add_u32 v5, s56, v5
    v_and_b32 v7, 31, v0
    v_lshlrev_b32 v7, 3, v7
    s_lshl_b32 s56, s53, 8
    v_add_u32 v22, s56, v7
    global_load_dwordx2 v[22:23], v22, s[18:19]
    v_mul_u32_u24 v6, 288, v6
    v_add3_u32 v6, v6, v7, s55
    L_hretry:
    """)
    for k in range(4):
        e(f"buffer_load_dwordx4 v[{24+4*k}:{27+4*k}], v5, s[{SRD_WS}:{SRD_WS+3}], 0 offen offset:{512*k} sc1")
    e("s_waitcnt vmcnt(0)")
    for k in range(4): tag_check(24+4*k, 7, k == 0)
    tag_branch(7, "L_hretry")
    for k in range(16): e(f"v_and_b32 v{24+k}, 0xffffff00, v{24+k}")
    e("""
    v_pk_add_f32 v[24:25], v[24:25], v[28:29]
    v_pk_add_f32 v[26:27], v[26:27], v[30:31]
    v_pk_add_f32 v[32:33], v[32:33], v[36:37]
    v_pk_add_f32 v[34:35], v[34:35], v[38:39]
    v_pk_add_f32 v[24:25], v[24:25], v[32:33]
    v_pk_add_f32 v[26:27], v[26:27], v[34:35]
    v_cvt_pk_bf16_f32 v24, v24, v25
    v_cvt_pk_bf16_f32 v26, v26, v27
    v_and_b32 v25, 0xffff0000, v24
    v_lshlrev_b32 v24, 16, v24
    v_and_b32 v27, 0xffff0000, v26
    v_lshlrev_b32 v26, 16, v26
    v_lshlrev_b32 v28, 16, v22
    v_and_b32 v29, 0xffff0000, v22
    v_lshlrev_b32 v30, 16, v23
    v_and_b32 v31, 0xffff0000, v23
    v_pk_add_f32 v[24:25], v[24:25], v[28:29]
    v_pk_add_f32 v[26:27], v[26:27], v[30:31]
    v_cvt_pk_bf16_f32 v24, v24, v25
    v_cvt_pk_bf16_f32 v26, v26, v27
    v_and_b32 v25, 0xffff0000, v24
    v_lshlrev_b32 v24, 16, v24
    v_and_b32 v27, 0xffff0000, v26
    v_lshlrev_b32 v26, 16, v26
    v_max_f32 v24, 0, v24
    v_max_f32 v25, 0, v25
    v_max_f32 v26, 0, v26
    v_max_f32 v27, 0, v27
    v_pk_mul_f32 v[24:25], v[24:25], v[24:25]
    v_pk_mul_f32 v[26:27], v[26:27], v[26:27]
    v_cvt_pk_bf16_f32 v24, v24, v25
    v_cvt_pk_bf16_f32 v25, v26, v27
    ds_write_b64 v6, v[24:25]
    L_noH:
    s_cmp_eq_u32 s44, 2
    s_cbranch_scc1 L_nopub
    """)
    e("s_waitcnt lgkmcnt(0)")
    for t in range(4):
        e(f"ds_read_b128 v[{24+4*t}:{27+4*t}], v20 offset:{64*t}")
    e(f"""
    v_and_b32 v5, 1, v0
    v_lshlrev_b32 v5, 8, v5
    v_bfe_u32 v6, v0, 1, 2
    v_lshl_add_u32 v5, v6, 6, v5
    v_lshl_add_u32 v5, v3, 4, v5
    v_add_u32 v5, s52, v5
    v_and_b32 v6, 2, v0
    v_cmp_ne_u32 s[56:57], 0, v6
    v_and_b32 v6, 4, v0
    v_cmp_ne_u32 s[58:59], 0, v6
    s_waitcnt lgkmcnt(0)
    """)
    for t in range(4):
        for u in range(4):
            r = 64 + 16*u + 4*t
            c = f"v[{40+4*u}:{43+4*u}]"
            e(f"v_mfma_f32_16x16x32_bf16 {c}, v[{r}:{r+3}], v[{24+4*t}:{27+4*t}], {c if t else 0}")
    e("s_nop 7")
    for k in range(4):
        e(f"v_cndmask_b32 v{40+k}, v{40+k}, v{44+k}, s[56:57]")
    for k in range(4):
        e(f"v_cndmask_b32 v{48+k}, v{48+k}, v{52+k}, s[56:57]")
    for k in range(4):
        e(f"v_cndmask_b32 v{40+k}, v{40+k}, v{48+k}, s[58:59]")
    tag_insert(40, 4)
    e(f"""
    s_mov_b32 s56, 0x00ff00ff
    s_mov_b32 s57, 0x00ff00ff
    s_mov_b64 exec, s[56:57]
    buffer_store_dwordx4 v[40:43], v5, s[{SRD_WS}:{SRD_WS+3}], 0 offen sc1
    s_mov_b64 exec, -1
    L_nopub:
    """)
    stamp(4)
    e(f"""
    s_cmp_eq_u32 s{sWAVE}, 1
    s_cbranch_scc0 L_final
    """)
    e(f"""
    v_lshlrev_b32 v5, 11, v3
    v_lshl_add_u32 v5, v2, 4, v5
    s_lshl_b32 s56, s{sG}, 14
    s_lshr_b32 s57, s{sI}, 4
    s_lshl_b32 s57, s57, 8
    s_add_u32 s56, s56, s57
    s_add_u32 s56, s56, {W_QP}
    v_add_u32 v5, s56, v5
    v_add_u32 v6, 8192, v5
    v_lshrrev_b32 v8, 5, v0
    v_lshlrev_b32 v8, 5, v8
    v_lshl_add_u32 v8, v0, 3, v8
    v_add_u32 v8, {L_QS}, v8
    L_qretry:
    """)
    for v in range(2):
        for k in range(4):
            r = 24 + 16*v + 4*k
            e(f"buffer_load_dwordx4 v[{r}:{r+3}], v{5+v}, s[{SRD_WS}:{SRD_WS+3}], 0 offen offset:{512*k} sc1")
    e("s_waitcnt vmcnt(0)")
    for k in range(8): tag_check(24+4*k, 7, k == 0)
    tag_branch(7, "L_qretry")
    for k in range(32): e(f"v_and_b32 v{24+k}, 0xffffff00, v{24+k}")
    for v in range(2):
        r = 24 + 16*v
        e(f"""
        v_pk_add_f32 v[{r}:{r+1}], v[{r}:{r+1}], v[{r+4}:{r+5}]
        v_pk_add_f32 v[{r+2}:{r+3}], v[{r+2}:{r+3}], v[{r+6}:{r+7}]
        v_pk_add_f32 v[{r+8}:{r+9}], v[{r+8}:{r+9}], v[{r+12}:{r+13}]
        v_pk_add_f32 v[{r+10}:{r+11}], v[{r+10}:{r+11}], v[{r+14}:{r+15}]
        v_pk_add_f32 v[{r}:{r+1}], v[{r}:{r+1}], v[{r+8}:{r+9}]
        v_pk_add_f32 v[{r+2}:{r+3}], v[{r+2}:{r+3}], v[{r+10}:{r+11}]
        v_cvt_pk_bf16_f32 v{r}, v{r}, v{r+1}
        v_cvt_pk_bf16_f32 v{r+1}, v{r+2}, v{r+3}
        ds_write_b64 v8, v[{r}:{r+1}] offset:{576*v}
        """)
    flag_set(1, F_Q, 21)
    stamp(5)
    e(f"""
    v_and_b32 v5, 31, v0
    v_lshlrev_b32 v9, 2, v5
    v_add_u32 v9, {L_WT}, v9
    v_lshlrev_b32 v5, 7, v5
    s_lshl_b32 s56, s{sG}, 12
    s_lshr_b32 s57, s{sI}, 3
    s_lshl_b32 s57, s57, 4
    s_add_u32 s56, s56, s57
    s_add_u32 s56, s56, {W_ST}
    v_add_u32 v5, s56, v5
    L_sretry:
    buffer_load_dwordx4 v[24:27], v5, s[{SRD_WS}:{SRD_WS+3}], 0 offen sc1
    s_waitcnt vmcnt(0)
    """)
    tag_check(24, 7, True)
    tag_branch(7, "L_sretry")
    e("v_and_b32 v24, 0xffffff00, v24\nv_and_b32 v25, 0xffffff00, v25\nv_mov_b32 v28, v24")
    dpp_max(28, (8, 4, 2, 1))
    e(f"""
    v_sub_f32 v24, v24, v28
    v_mul_f32 v24, {LOG2E}, v24
    v_exp_f32 v24, v24
    s_nop 0
    v_mul_f32 v25, v24, v25
    """)
    dpp_add(25, (8, 4, 2, 1))
    e(f"""
    v_rcp_f32 v25, v25
    s_nop 0
    v_mul_f32 v24, v24, v25
    ds_write_b32 v9, v24
    """)
    flag_set(1, F_W, 21)
    stamp(6)
    stamps_out(7)
    e("s_endpgm")

    e(f"""L_final:
    s_lshr_b32 s56, s{sI}, 3
    s_lshl_b32 s56, s56, 3
    s_add_u32 s56, s56, s{sG}
    s_lshl_b32 s56, s56, 3
    s_and_b32 s57, s{sI}, 7
    s_add_u32 s56, s56, s57          ; Q
    s_lshr_b32 s57, s56, 7           ; b_f
    s_and_b32 s58, s56, 127          ; nq
    v_and_b32 v5, 1, v3
    v_lshlrev_b32 v5, 1, v5
    v_lshrrev_b32 v6, 1, v3
    v_or_b32 v5, v5, v6              ; e(R)
    v_lshlrev_b32 v5, 1, v5
    s_lshl_b32 s59, s58, 3
    v_add_u32 v6, s59, v5
    global_load_ushort v10, v6, s[22:23]
    s_lshl_b32 s59, s56, 3
    v_add_u32 v8, s59, v5
    global_load_ushort v11, v8, s[4:5]
    s_lshr_b32 s59, s58, 4           ; ctile8
    s_lshl_b32 s59, s59, 9
    s_lshl_b32 s60, s57, 8
    s_add_u32 s59, s59, s60
    s_and_b32 s60, s58, 15
    s_lshl_b32 s60, s60, 4
    s_add_u32 s59, s59, s60
    s_add_u32 s59, s59, {W_FP}
    v_min_u32 v5, 13, v0
    v_lshlrev_b32 v5, 12, v5
    v_add_u32 v5, s59, v5
    s_lshr_b32 s59, s58, 5           ; ctile
    s_lshl_b32 s59, s59, 10
    s_lshl_b32 s60, s57, 9
    s_add_u32 s59, s59, s60
    s_and_b32 s60, s58, 31
    s_lshl_b32 s60, s60, 4
    s_add_u32 s59, s59, s60
    s_add_u32 s59, s59, {W_SP}
    v_lshlrev_b32 v6, 12, v0
    v_add_u32 v6, s59, v6
    v_cmp_gt_u32 s[60:61], 14, v0
    s_mov_b32 s64, s24
    s_mov_b32 s65, s25
    s_mov_b32 s66, 2048
    s_mov_b32 s67, 0x20000
    L_fretry:
    buffer_load_dwordx4 v[24:27], v5, s[{SRD_WS}:{SRD_WS+3}], 0 offen sc1
    s_waitcnt vmcnt(0)
    """)
    tag_check(24, 7, True)
    tag_branch(7, "L_fretry")
    for k in range(4):
        e(f"v_and_b32 v{24+k}, 0xffffff00, v{24+k}")
    for k in range(4):
        e(f"v_cndmask_b32 v{24+k}, 0, v{24+k}, s[60:61]")
    reduce4_rows(24, 28)
    dpp_add(24, (8, 4, 2, 1))
    rnd_bf16(24)
    e("v_lshlrev_b32 v10, 16, v10\nv_add_f32 v24, v24, v10")
    rnd_bf16(24)
    e(f"""
    v_mul_f32 v25, 0xbfb8aa3b, v24
    v_exp_f32 v25, v25
    s_nop 0
    v_add_f32 v25, 1.0, v25
    v_rcp_f32 v25, v25
    s_nop 0
    v_mul_f32 v12, v24, v25
    """)
    rnd_bf16(12)
    e("v_lshlrev_b32 v11, 16, v11")
    stamp(5)
    e(f"""L_3retry:
    buffer_load_dwordx4 v[24:27], v6, s[{SRD_WS}:{SRD_WS+3}], 0 offen sc1
    s_waitcnt vmcnt(0)
    """)
    tag_check(24, 7, True)
    tag_branch(7, "L_3retry")
    stamp(6)
    for k in range(4):
        e(f"v_and_b32 v{24+k}, 0xffffff00, v{24+k}")
    reduce4_rows(24, 28)
    dpp_add(24, (8, 4, 2, 1))
    rnd_bf16(24)
    e("v_mul_f32 v24, v24, v12")
    rnd_bf16(24)
    e(f"""
    v_add_f32 v24, v24, v11
    v_cvt_pk_bf16_f32 v24, v24, v24
    s_mov_b32 s56, 0x00010001
    s_mov_b32 s57, 0x00010001
    s_mov_b64 exec, s[56:57]
    buffer_store_short v24, v8, s[64:67], 0 offen
    s_cmp_eq_u32 s2, 0
    s_cbranch_scc0 L_fin2
    s_mov_b64 exec, 1
    v_mov_b32 v25, s{sT0}
    v_mov_b32 v26, 0
    buffer_store_dword v25, v26, s[{SRD_WS}:{SRD_WS+3}], 0 offen sc1
    L_fin2:
    """)
    stamp(7)
    stamps_out(8)
    e("s_endpgm")

    sW = 44
    e(f"""L_compute:
    s_sub_u32 s{sW}, s{sWAVE}, 3
    v_mov_b32 v5, 0
    v_lshlrev_b32 v6, 2, v2
    v_add_u32 v6, {L_FL}, v6
    s_cmp_eq_u32 s{sW}, 0
    s_cbranch_scc0 L_nozero
    ds_write_b32 v6, v5
    L_nozero:
    s_waitcnt lgkmcnt(0)
    s_load_dword s{sT0}, s[28:29], 0
    s_mov_b32 s{SRD_WS}, s28
    s_mov_b32 s{SRD_WS+1}, s29
    s_mov_b32 s{SRD_WS+2}, {WS_BYTES}
    s_mov_b32 s{SRD_WS+3}, 0x20000
    """)
    for r in range(64, 128): e(f"v_mov_b32 v{r}, 0")
    e(f"""
    s_lshl_b32 s45, s{sW}, 14
    v_lshlrev_b32 v5, 8, v2
    v_add_u32 v5, s45, v5
    v_xor_b32 v6, v3, v2
    """)
    for t in range(4):
        e(f"v_xor_b32 v7, {4*t}, v6\nv_lshl_add_u32 v{8+t}, v7, 4, v5")
    e(f"""
    v_and_b32 v13, 3, v2
    v_mul_u32_u24 v12, 288, v13
    v_lshl_add_u32 v12, v3, 4, v12
    v_add_u32 v12, {L_QS}, v12
    """)
    e(f"""
    v_lshl_add_u32 v15, v3, 2, v13
    v_lshlrev_b32 v15, 4, v15
    v_add_u32 v15, {L_PB}, v15
    v_lshrrev_b32 v5, 3, v2
    v_lshl_add_u32 v14, v5, 8, v15
    v_bfe_u32 v5, v2, 2, 1
    v_lshl_add_u32 v14, v5, 3, v14
    s_lshl_b32 s45, s{sW}, 9
    v_add_u32 v14, s45, v14
    v_lshlrev_b32 v17, 3, v13
    v_add_u32 v17, {L_SB}, v17
    s_lshl_b32 s45, s{sW}, 5
    v_add_u32 v16, s45, v17
    """)
    e(f"""
    v_lshrrev_b32 v5, 2, v2
    v_and_b32 v6, 1, v3
    v_lshl_add_u32 v6, v6, 2, v5
    s_lshl_b32 s45, s{sW}, 1
    v_xor_b32 v6, s45, v6
    v_lshlrev_b32 v7, 3, v13
    v_lshl_add_u32 v22, v6, 5, v7
    v_xor_b32 v23, 32, v22
    v_lshl_add_u32 v6, v3, 2, v5
    v_lshlrev_b32 v6, 8, v6
    v_add_u32 v6, {L_V}, v6
    v_add_u32 v18, v6, v22
    v_add_u32 v19, v6, v23
    v_lshl_add_u32 v6, v3, 3, v5
    v_lshlrev_b32 v6, 8, v6
    v_add_u32 v6, {L_WO}, v6
    v_add_u32 v20, v6, v22
    v_add_u32 v21, v6, v23
    """)
    e(f"""
    s_lshl_b32 s45, s{sW}, 7
    v_lshl_add_u32 v5, v3, 4, s45
    s_lshl_b32 s46, s{sSLOT}, 11
    s_add_u32 s46, s46, {W_OP}
    v_lshl_add_u32 v22, v13, 9, v5
    v_bfe_u32 v6, v2, 2, 1
    v_lshl_add_u32 v22, v6, 6, v22
    v_add_u32 v22, s46, v22
    s_lshl_b32 s46, s{sSLOT}, 10
    s_add_u32 s46, s46, {W_SP}
    v_and_b32 v6, 1, v2
    v_lshl_add_u32 v23, v6, 9, v5
    v_lshlrev_b32 v28, 7, v6
    v_lshl_add_u32 v28, v3, 4, v28
    v_add_u32 v28, {L_OB}, v28
    v_bfe_u32 v6, v2, 1, 1
    v_lshl_add_u32 v23, v6, 6, v23
    v_add_u32 v23, s46, v23
    s_lshr_b32 s45, s{sW}, 1          ; b'
    s_and_b32 s46, s{sW}, 1           ; dsub
    s_lshl_b32 s47, s{sG}, 16
    s_lshl_b32 s48, s45, 15
    s_add_u32 s47, s47, s48
    s_lshr_b32 s48, s{sI}, 2
    s_lshl_b32 s48, s48, 8
    s_add_u32 s47, s47, s48
    s_lshl_b32 s48, s46, 7
    s_add_u32 s47, s47, s48
    s_add_u32 s47, s47, {W_OP}
    v_lshrrev_b32 v5, 3, v0
    v_and_b32 v6, 7, v0
    v_lshlrev_b32 v24, 11, v5
    v_lshl_add_u32 v24, v6, 4, v24
    v_add_u32 v24, s47, v24
    v_add_u32 v25, 16384, v24
    s_lshl_b32 s47, s45, 6
    s_add_u32 s47, s47, {L_WT}
    v_lshl_add_u32 v26, v5, 2, s47
    v_and_b32 v5, 1, v3
    v_lshlrev_b32 v5, 1, v5
    v_lshrrev_b32 v7, 1, v3
    v_or_b32 v5, v5, v7
    v_lshl_add_u32 v5, v6, 2, v5
    s_lshl_b32 s47, s45, 7
    s_lshl_b32 s48, s46, 6
    s_add_u32 s47, s47, s48
    s_add_u32 s47, s47, {L_OB}
    v_lshl_add_u32 v27, v5, 1, s47
    s_lshl_b32 s47, s{sSLOT}, 7
    s_add_u32 s47, s47, {W_ST}
    v_lshl_add_u32 v29, v13, 4, s47
    v_and_b32 v5, 4, v0
    v_cmp_ne_u32 s[50:51], 0, v5
    v_and_b32 v5, 2, v0
    v_cmp_ne_u32 s[52:53], 0, v5
    v_mov_b32 v30, 1
    s_waitcnt lgkmcnt(0)
    """)
    nonce_from_epoch()
    e("s_barrier")
    stamp(1)
    L = lbl("L_sp")
    e(f"""{L}:
    ds_read_b64 v[6:7], v1 offset:{F_Q}
    s_waitcnt lgkmcnt(0)
    v_and_b32 v6, v6, v7
    v_cmp_ne_u32 vcc, 0, v6
    s_cbranch_vccz {L}""")
    stamp(2)
    for tau in range(4):
        m = 0x000f000f << (4*tau)
        e(f"s_mov_b32 s54, {m:#x}\ns_mov_b32 s55, {m:#x}\ns_mov_b64 exec, s[54:55]")
        for t in range(4):
            r = 64 + 16*tau + 4*t
            e(f"ds_read_b128 v[{r}:{r+3}], v12 offset:{64*t}")
    e("s_mov_b64 exec, -1")
    for tau in range(4):
        for t in range(4):
            r = 128 + 16*tau + 4*t
            e(f"ds_read_b128 v[{r}:{r+3}], v{8+t} offset:{4096*tau}")
    for tau in range(4):
        for t in range(4):
            n = 4*tau + t
            r = 128 + 16*tau + 4*t; q = 64 + 16*tau + 4*t
            if not cfg.diag or True:
                e(f"s_waitcnt lgkmcnt({min(15-n, 15)})")
            e(f"v_mfma_f32_16x16x32_bf16 v[32:35], v[{r}:{r+3}], v[{q}:{q+3}], {'v[32:35]' if n else 0}")
    e(f"""
    s_mov_b32 s54, {SCALE:#x}
    s_mov_b32 s55, {LOG2E:#x}
    s_nop 5
    v_cvt_pk_bf16_f32 v32, v32, v33
    v_cvt_pk_bf16_f32 v34, v34, v35
    v_and_b32 v33, 0xffff0000, v32
    v_lshlrev_b32 v32, 16, v32
    v_and_b32 v35, 0xffff0000, v34
    v_lshlrev_b32 v34, 16, v34
    v_mul_f32 v32, s54, v32
    v_mul_f32 v33, s54, v33
    v_mul_f32 v34, s54, v34
    v_mul_f32 v35, s54, v35
    v_cvt_pk_bf16_f32 v32, v32, v33
    v_cvt_pk_bf16_f32 v34, v34, v35
    v_and_b32 v33, 0xffff0000, v32
    v_lshlrev_b32 v32, 16, v32
    v_and_b32 v35, 0xffff0000, v34
    v_lshlrev_b32 v34, 16, v34
    v_max_f32 v36, v32, v33
    v_max3_f32 v36, v34, v35, v36
    """)
    dpp_max(36, (8, 4))
    e("""
    v_mov_b32 v37, v36
    s_nop 1
    v_permlane16_swap_b32 v36, v37
    s_nop 0
    v_max_f32 v36, v36, v37
    v_mov_b32 v37, v36
    s_nop 1
    v_permlane32_swap_b32 v36, v37
    s_nop 0
    v_max_f32 v36, v36, v37
    v_sub_f32 v32, v32, v36
    v_sub_f32 v33, v33, v36
    v_sub_f32 v34, v34, v36
    v_sub_f32 v35, v35, v36
    v_mul_f32 v32, s55, v32
    v_mul_f32 v33, s55, v33
    v_mul_f32 v34, s55, v34
    v_mul_f32 v35, s55, v35
    v_exp_f32 v32, v32
    v_exp_f32 v33, v33
    v_exp_f32 v34, v34
    v_exp_f32 v35, v35
    v_add_f32 v37, v32, v33
    v_cvt_pk_bf16_f32 v32, v32, v33
    v_add_f32 v38, v34, v35
    v_cvt_pk_bf16_f32 v33, v34, v35
    v_add_f32 v37, v37, v38
    ds_write_b64 v14, v[32:33]
    """)
    dpp_add(37, (8, 4))
    e("""
    v_mov_b32 v38, v37
    s_nop 1
    v_permlane16_swap_b32 v37, v38
    s_nop 0
    v_add_f32 v37, v37, v38
    v_mov_b32 v38, v37
    s_nop 1
    v_permlane32_swap_b32 v37, v38
    s_nop 0
    v_add_f32 v37, v37, v38
    s_mov_b64 exec, 15
    ds_write_b64 v16, v[36:37]
    s_mov_b64 exec, -1
    """)
    flag_add(1, F_P, 30)
    for sp in range(4):
        e(f"""
        s_add_u32 s56, s{sRS}, {sp}
        s_and_b32 s56, s56, 3
        s_lshl_b32 s57, s56, 9
        v_add_u32 v{40+sp}, s57, v15
        s_lshl_b32 s57, s56, 5
        v_add_u32 v{44+sp}, s57, v17
        s_lshl_b32 s57, s56, 14
        v_add_u32 v{48+2*sp}, s57, v18
        v_add_u32 v{49+2*sp}, s57, v19
        """)
    spin_ge(1, F_P, 4, 6)
    for sp in range(4):
        e(f"ds_read_b64 v[{56+2*sp}:{57+2*sp}], v{44+sp}")
    for sp in range(4):
        for sg in range(2):
            r = 64 + 8*sp + 4*sg
            e(f"ds_read_b128 v[{r}:{r+3}], v{40+sp} offset:{256*sg}")
    e("""
    s_waitcnt lgkmcnt(8)
    v_max_f32 v32, v56, v58
    v_max3_f32 v32, v60, v62, v32
    v_sub_f32 v56, v56, v32
    v_sub_f32 v58, v58, v32
    v_sub_f32 v60, v60, v32
    v_sub_f32 v62, v62, v32
    v_mul_f32 v56, s55, v56
    v_mul_f32 v58, s55, v58
    v_mul_f32 v60, s55, v60
    v_mul_f32 v62, s55, v62
    v_exp_f32 v56, v56
    v_exp_f32 v58, v58
    v_exp_f32 v60, v60
    v_exp_f32 v62, v62
    v_mul_f32 v33, v56, v57
    v_fmac_f32 v33, v58, v59
    v_fmac_f32 v33, v60, v61
    v_fmac_f32 v33, v62, v63
    v_mov_b32 v34, 0
    v_mov_b32 v35, 0
    """)
    e(f"s_cmp_eq_u32 s{sW}, 0\ns_cbranch_scc0 L_nostat")
    tag_insert(32, 4)
    e(f"""
    s_mov_b64 exec, 15
    buffer_store_dwordx4 v[32:35], v29, s[{SRD_WS}:{SRD_WS+3}], 0 offen sc1
    s_mov_b64 exec, -1
    L_nostat:
    """)
    stamp(3)
    def fold(sp):
        for k in range(8):
            a = 96 + 8*sp + k
            if sp == 0: e(f"v_mul_f32 v{144+k}, v{56+2*sp}, v{a}")
            else: e(f"v_fmac_f32 v{144+k}, v{56+2*sp}, v{a}")
    for sp in range(4):
        spin_ge(1, F_V, sp+1, 6)
        if sp == 3: stamp(4)
        for sg in range(2):
            for ee in range(2):
                r = 128 + 8*sg + 4*ee
                e(f"ds_read_b64_tr_b16 v[{r}:{r+1}], v{48+2*sp+ee} offset:{8192*sg}")
                e(f"ds_read_b64_tr_b16 v[{r+2}:{r+3}], v{48+2*sp+ee} offset:{8192*sg+4096}")
        if sp > 0: fold(sp-1)
        for sg in range(2):
            for ee in range(2):
                r = 128 + 8*sg + 4*ee
                a = 96 + 8*sp + 4*ee
                p = 64 + 8*sp + 4*sg
                e(f"s_waitcnt lgkmcnt({6 - 2*(2*sg+ee)})" if not cfg.diag else "s_waitcnt lgkmcnt(0)")
                e(f"v_mfma_f32_16x16x32_bf16 v[{a}:{a+3}], v[{r}:{r+3}], v[{p}:{p+3}], {f'v[{a}:{a+3}]' if sg else 0}")
        if sp < 3: e("s_nop 2")
    e("s_nop 6")
    fold(3)
    for k in range(4):
        e(f"v_cndmask_b32 v{144+k}, v{144+k}, v{148+k}, s[50:51]")
    tag_insert(144, 4)
    e(f"""
    s_mov_b32 s56, 0x00ff00ff
    s_mov_b32 s57, 0x00ff00ff
    s_mov_b64 exec, s[56:57]
    buffer_store_dwordx4 v[144:147], v22, s[{SRD_WS}:{SRD_WS+3}], 0 offen sc1
    s_mov_b64 exec, -1
    buffer_load_dwordx4 v[32:35], v24, s[{SRD_WS}:{SRD_WS+3}], 0 offen sc1
    buffer_load_dwordx4 v[36:39], v25, s[{SRD_WS}:{SRD_WS+3}], 0 offen sc1
    """)
    stamp(5)
    spin_ge(1, F_WO, 1, 6)
    for ee in range(2):
        for t in range(2):
            r = 64 + 8*ee + 4*t
            e(f"ds_read_b64_tr_b16 v[{r}:{r+1}], v{20+ee} offset:{8192*t}")
            e(f"ds_read_b64_tr_b16 v[{r+2}:{r+3}], v{20+ee} offset:{8192*t+1024}")
    spin_ge(1, F_W, 1, 6, extra="ds_read_b32 v40, v26\nds_read_b32 v41, v26 offset:32")
    e(f"""
    s_branch L_ochk
    L_oretry:
    buffer_load_dwordx4 v[32:35], v24, s[{SRD_WS}:{SRD_WS+3}], 0 offen sc1
    buffer_load_dwordx4 v[36:39], v25, s[{SRD_WS}:{SRD_WS+3}], 0 offen sc1
    L_ochk:
    s_waitcnt vmcnt(0)
    """)
    tag_check(32, 7, True); tag_check(36, 7, False)
    tag_branch(7, "L_oretry")
    stamp(6)
    for k in range(8): e(f"v_and_b32 v{32+k}, 0xffffff00, v{32+k}")
    for k in range(4): e(f"v_mul_f32 v{32+k}, v40, v{32+k}")
    for k in range(4): e(f"v_fmac_f32 v{32+k}, v41, v{36+k}")
    reduce4_rows(32, 36)
    dpp_add(32, (8,))
    e("""
    v_cvt_pk_bf16_f32 v32, v32, v32
    ds_write_b16 v27, v32
    """)
    flag_add(1, F_O, 30)
    spin_ge(1, F_O, 4, 6, extra="ds_read_b128 v[40:43], v28\nds_read_b128 v[44:47], v28 offset:64")
    for t in range(2):
        for ee in range(2):
            r = 64 + 8*ee + 4*t
            a = 32 + 4*ee
            e(f"v_mfma_f32_16x16x32_bf16 v[{a}:{a+3}], v[{r}:{r+3}], v[{40+4*t}:{43+4*t}], {f'v[{a}:{a+3}]' if t else 0}")
    e(f"""
    s_mov_b32 s56, 0x000f000f
    s_mov_b32 s57, 0x000f000f
    s_nop 5
    """)
    for k in range(4):
        e(f"v_cndmask_b32 v{32+k}, v{32+k}, v{36+k}, s[52:53]")
    tag_insert(32, 4)
    e(f"""
    s_mov_b64 exec, s[56:57]
    buffer_store_dwordx4 v[32:35], v23, s[{SRD_WS}:{SRD_WS+3}], 0 offen sc1
    """)
    stamp(7)
    stamps_out(8)
    e("L_end:\ns_endpgm\nL_codeend:")
    body = "\n".join(out)
    hdr = open("recurrent_scan__sliding_block_cached__dense_activation_squared_relu__decode.s.ref").read().split("; Override launch")[0]
    return f"""{hdr}; Single fused launch: 256 workgroups (one per CU) x 7 waves.
; @launch grid=(256,1,1) block=(448,1,1) lds={LDS_TOTAL}
.amdgcn_target "amdgcn-amd-amdhsa--gfx950"
.text
.globl {KNAME}
.p2align 8
.type {KNAME},@function
{KNAME}:
{body}
.section .rodata,"a"
.p2align 6
.amdhsa_kernel {KNAME}
  .amdhsa_next_free_vgpr 192
  .amdhsa_next_free_sgpr 102
  .amdhsa_accum_offset 192
  .amdhsa_group_segment_fixed_size 0
  .amdhsa_kernarg_size 104
  .amdhsa_user_sgpr_count 2
  .amdhsa_user_sgpr_kernarg_segment_ptr 1
  .amdhsa_system_sgpr_workgroup_id_x 1
.end_amdhsa_kernel
"""

if __name__ == "__main__":
    path = sys.argv[1]
    for a in sys.argv[2:]:
        k, v = a.split("=")
        cur = getattr(cfg, k)
        setattr(cfg, k, type(cur)(int(v)) if isinstance(cur, (bool, int)) else v.replace("+", " "))
    open(path, "w").write(build())
```

```python
import sys
KNAME = "recurrent_scan__sliding_block_cached__dense_activation_squared_relu__decode_kernel"

cfg_dbgsel = {6: [(0,0,1),(0,1,0),(1,2,1),(1,3,0),(2,4,0),(4,5,1),(4,6,0),(5,7,0)], 7: [(4,8,0),(5,9,0),(6,10,0)], 8: [(5,11,0),(6,12,1),(6,13,0),(7,14,0)]}
class Cfg:
    ampw = -1
    ampk = 0
    dbg = False
    diag = False
    win = 32
    ntK = "nt"; ntW = "nt"
    rotmul = 1
cfg = Cfg()

L_K, L_V, L_WO = 0, 65536, 131072
SCR = 147456
L_QS = SCR
L_PB = SCR + 1152
L_SB = L_PB + 2048
L_WT = L_SB + 128
L_OB = L_WT + 128
L_ACTA = L_OB + 256
L_ACTB = L_ACTA + 576
L_FL = L_ACTB + 576
LDS_TOTAL = L_FL + 64
F_Q, F_K, F_P, F_V, F_T, F_WO, F_W, F_O = [4*k for k in range(8)]
W_QP, W_HP, W_FP, W_ST, W_OP, W_SP = 0x10000, 0x40000, 0x50000, 0x60000, 0x80000, 0x100000
WS_BYTES = 0x200000
SPIN_CAP = 20000
LOG2E = 0x3fb8aa3b
SCALE = 0x3db504f3

sWAVE, sG, sI, sNON = 30, 31, 32, 33
sT0, sT1, sT2, sT3 = 33, 34, 35, 40
SRD_WS = 36
sSLOT = 41
sRS = 42
sCAP = 43
STAMP0 = 80

out = []
def e(s):
    for ln in s.strip("\n").split("\n"):
        out.append("    " + ln.strip() if not ln.strip().endswith(":") else ln.strip())

def stamp(k):
    if cfg.diag:
        e(f"s_memrealtime s[{STAMP0+2*k}:{STAMP0+2*k+1}]")

def stamps_out(n):
    if not cfg.diag: return
    if cfg.ampw >= 0:
        L = lbl("L_amp"); Ls = lbl("L_amps")
        if cfg.ampk < n:
            e(f"""
            s_waitcnt lgkmcnt(0)
            s_cmp_eq_u32 s{sWAVE}, {cfg.ampw}
            s_cbranch_scc0 {Ls}
            s_sub_u32 s60, s{STAMP0+2*cfg.ampk}, s{STAMP0}
            s_min_u32 s60, s60, 20000
            s_mul_i32 s60, s60, 10
            s_memrealtime s[62:63]
            s_waitcnt lgkmcnt(0)
            {L}:
            s_memrealtime s[68:69]
            s_waitcnt lgkmcnt(0)
            s_sub_u32 s61, s68, s62
            s_cmp_lt_u32 s61, s60
            s_cbranch_scc1 {L}
            {Ls}:
            """)
        return
    if cfg.dbg:
        sel = cfg_dbgsel[n] if n in cfg_dbgsel else []
        e("s_waitcnt lgkmcnt(0)\ns_mov_b64 exec, 1\nv_mov_b32 v1, 0")
        if n == 8: e(f"s_cmp_eq_u32 s{sWAVE}, 2\ns_cbranch_scc0 L_dbgskip{len(out)}"); lab = f"L_dbgskip{len(out)-2}"
        for (k, slot, mn) in sel:
            e(f"v_mov_b32 v4, s{STAMP0+2*k}")
            if mn: e("v_not_b32 v4, v4")
            e(f"global_atomic_umax v1, v4, s[26:27] offset:{4*slot}\ns_nop 1")
        if n == 8: e(f"{lab}:")
        e("s_waitcnt vmcnt(0)")
        return
    e(f"""
    s_waitcnt lgkmcnt(0)
    s_lshl_b32 s60, s2, 4
    s_add_u32 s60, s60, s{sWAVE}
    s_lshl_b32 s60, s60, 6
    s_add_u32 s68, s28, s60
    s_addc_u32 s69, s29, 0
    s_add_u32 s68, s68, 0x10000000
    s_addc_u32 s69, s69, 0
    s_mov_b64 exec, 1
    v_mov_b32 v1, 0
    """)
    for k in range(8):
        if k < n:
            e(f"v_mov_b32 v4, s{STAMP0+2*k}\nv_mov_b32 v5, s{STAMP0+2*k+1}")
        else:
            e(f"v_mov_b32 v4, s{STAMP0}\nv_mov_b32 v5, s{STAMP0+1}")
        e(f"global_store_dwordx2 v1, v[4:5], s[68:69] offset:{8*k}\ns_nop 1")
    e("s_waitcnt vmcnt(0)")

lblc = [0]
def lbl(p="L"):
    lblc[0] += 1
    return f"{p}_{lblc[0]}"

def flag_set(vfl, off, vval):
    e(f"s_mov_b64 exec, 1\nds_write_b32 v{vfl}, v{vval} offset:{off}\ns_mov_b64 exec, -1")
def flag_add(vfl, off, vone):
    e(f"s_mov_b64 exec, 1\nds_add_u32 v{vfl}, v{vone} offset:{off}\ns_mov_b64 exec, -1")
def spin_ge(vfl, off, target, vtmp, extra=""):
    L = lbl("L_sp")
    e(f"""{L}:
    ds_read_b32 v{vtmp}, v{vfl} offset:{off}
    {extra}
    s_waitcnt lgkmcnt(0)
    v_cmp_le_u32 vcc, {target}, v{vtmp}
    s_cbranch_vccz {L}""")

def tag_check(regs, acc, first):
    T = [sT0, sT1, sT2, sT3]
    for k in range(4):
        if first and k == 0:
            e(f"v_xor_b32 v{acc}, s{T[0]}, v{regs}")
        else:
            e(f"v_bitop3_b32 v{acc}, v{regs+k}, s{T[k]}, v{acc} bitop3:0xbe")
def tag_branch(acc, Lretry, Ldone=None):
    Ld = lbl("L_ok")
    e(f"""
    v_and_b32 v{acc}, 0xff, v{acc}
    v_cmp_ne_u32 vcc, 0, v{acc}
    s_cbranch_vccz {Ld}
    s_sub_u32 s{sCAP}, s{sCAP}, 1
    s_cbranch_scc0 {Lretry}
    s_mov_b32 s{sCAP}, 0
    {Ld}:""")
def tag_insert(regs, vff):
    T = [sT0, sT1, sT2, sT3]
    for k in range(4):
        e(f"v_bfi_b32 v{regs+k}, v{vff}, s{T[k]}, v{regs+k}")

def nonce_from_epoch():
    e(f"""
    s_add_u32 s{sT0}, s{sT0}, 0x01010101
    s_lshr_b32 s{sT1}, s{sT0}, 8
    s_lshr_b32 s{sT2}, s{sT0}, 16
    s_lshr_b32 s{sT3}, s{sT0}, 24
    """)

def srd(r, lo, hi, nbytes):
    pass

def reduce4_rows(x, t):
    e(f"""
    s_nop 1
    v_permlane32_swap_b32 v{x}, v{x+1}
    v_permlane32_swap_b32 v{x+2}, v{x+3}
    s_nop 0
    v_add_f32 v{x}, v{x}, v{x+1}
    v_add_f32 v{x+2}, v{x+2}, v{x+3}
    s_nop 1
    v_permlane16_swap_b32 v{x}, v{x+2}
    s_nop 0
    v_add_f32 v{x}, v{x}, v{x+2}
    """)
def dpp_add(x, rots):
    for r in rots:
        e(f"s_nop 1\nv_add_f32_dpp v{x}, v{x}, v{x} row_ror:{r} row_mask:0xf bank_mask:0xf")
def dpp_max(x, rots):
    for r in rots:
        e(f"s_nop 1\nv_max_f32_dpp v{x}, v{x}, v{x} row_ror:{r} row_mask:0xf bank_mask:0xf")
def rnd_bf16(x):
    e(f"v_cvt_pk_bf16_f32 v{x}, v{x}, v{x}\nv_and_b32 v{x}, 0xffff0000, v{x}")

def build():
    out.clear()
    stamp(0)
    e(f"""
    s_load_dwordx16 s[4:19], s[0:1], 0
    s_load_dwordx8 s[20:27], s[0:1], 64
    s_load_dwordx2 s[28:29], s[0:1], 96
    s_cmp_ge_u32 s2, 256
    s_cbranch_scc1 L_end
    v_lshrrev_b32 v1, 6, v0
    v_and_b32 v0, 63, v0
    v_readfirstlane_b32 s{sWAVE}, v1
    v_and_b32 v2, 15, v0
    v_lshrrev_b32 v3, 4, v0
    s_and_b32 s{sG}, s2, 7
    s_lshr_b32 s{sI}, s2, 3
    s_lshl_b32 s{sSLOT}, s{sG}, 5
    s_add_u32 s{sSLOT}, s{sSLOT}, s{sI}
    s_mul_i32 s44, s2, {cfg.rotmul}
    s_lshr_b32 s{sRS}, s44, 2
    s_and_b32 s{sRS}, s{sRS}, 3
    s_mov_b32 s{sCAP}, {SPIN_CAP}
    v_mov_b32 v1, {L_FL}
    s_lshl_b32 s45, s{sI}, 3
    s_add_u32 s45, s45, s{sWAVE}
    s_cmp_eq_u32 s45, 6
    s_cbranch_scc0 L_nopf
    s_getpc_b64 s[46:47]
    L_pc:
    s_sub_u32 s46, s46, L_pc-{KNAME}
    s_subb_u32 s47, s47, 0
    v_lshlrev_b32 v5, 7, v0
    v_add_u32 v6, 8192, v5
    v_min_u32 v5, L_codeend-{KNAME}-4, v5
    v_min_u32 v6, L_codeend-{KNAME}-4, v6
    global_load_dword v190, v5, s[46:47]
    global_load_dword v191, v6, s[46:47]
    L_nopf:
    s_cmp_lg_u32 s{sWAVE}, 0
    s_cbranch_scc1 L_notloader
    """)
    e("v_lshlrev_b32 v12, 8, v3")
    for p in range(4):
        e(f"v_add_u32 v13, {4*p}, v3\nv_xor_b32 v13, v13, v2\nv_lshl_add_u32 v{4+p}, v13, 4, v12")
    for a in range(2):
        e(f"v_add_u32 v13, {4*a}, v3\nv_lshlrev_b32 v13, 1, v13\nv_xor_b32 v13, v13, v2\nv_lshl_add_u32 v{8+a}, v13, 4, v12")
    e(f"""
    s_lshr_b32 s45, s{sI}, 4
    s_lshl_b32 s45, s45, 26
    s_lshl_b32 s46, s{sG}, 23
    s_add_u32 s45, s45, s46
    s_and_b32 s46, s{sI}, 15
    s_lshl_b32 s46, s46, 16
    s_add_u32 s45, s45, s46
    s_add_u32 s45, s45, {28672*256}
    s_mov_b32 s50, 0x10000
    s_mov_b32 s51, 0x20000
    s_mov_b32 s54, 0x10000
    s_mov_b32 s55, 0x20000
    s_and_b32 s44, s44, 15
    s_lshl_b32 s47, s44, 12
    s_mov_b32 s60, 0
    s_waitcnt lgkmcnt(0)
    s_add_u32 s48, s6, s45
    s_addc_u32 s49, s7, 0
    s_add_u32 s52, s8, s45
    s_addc_u32 s53, s9, 0
    """)
    G = cfg.win // 4
    nt = cfg.ntK
    e(f"""L_ldK0:
    s_mov_b32 m0, s47
    s_add_u32 s60, s60, 1
    buffer_load_dwordx4 v4, s[48:51], s47 offen {nt} lds
    buffer_load_dwordx4 v5, s[48:51], s47 offen offset:1024 {nt} lds
    buffer_load_dwordx4 v6, s[48:51], s47 offen offset:2048 {nt} lds
    buffer_load_dwordx4 v7, s[48:51], s47 offen offset:3072 {nt} lds
    s_add_u32 s47, s47, 4096
    s_and_b32 s47, s47, 0xffff
    s_cmp_lt_u32 s60, {G}
    s_cbranch_scc1 L_ldK0
    """)
    stamp(1)
    e(f"v_lshlrev_b32 v12, 10, v3")
    for a in range(2):
        e(f"v_or_b32 v13, {4*a}, v3\nv_lshlrev_b32 v13, 1, v13\nv_xor_b32 v13, v13, v2\nv_lshl_add_u32 v{10+a}, v13, 4, v12")
    e(f"""
    s_lshl_b32 s45, s{sG}, 19
    s_lshr_b32 s46, s{sI}, 2
    s_lshl_b32 s46, s46, 16
    s_add_u32 s45, s45, s46
    s_and_b32 s46, s{sI}, 3
    s_lshl_b32 s46, s46, 8
    s_add_u32 s45, s45, s46
    s_add_u32 s56, s12, s45
    s_addc_u32 s57, s13, 0
    s_sub_u32 s58, 0x400000, s45
    s_mov_b32 s59, 0x20000
    v_mov_b32 v14, 1
    s_barrier
    """)
    if G < 16:
        e(f"""L_ldK1:
        s_mov_b32 m0, s47
        s_add_u32 s60, s60, 1
        s_waitcnt vmcnt({cfg.win-4})
        buffer_load_dwordx4 v4, s[48:51], s47 offen {nt} lds
        buffer_load_dwordx4 v5, s[48:51], s47 offen offset:1024 {nt} lds
        buffer_load_dwordx4 v6, s[48:51], s47 offen offset:2048 {nt} lds
        buffer_load_dwordx4 v7, s[48:51], s47 offen offset:3072 {nt} lds
        s_add_u32 s47, s47, 4096
        s_and_b32 s47, s47, 0xffff
        s_cmp_lt_u32 s60, 16
        s_cbranch_scc1 L_ldK1
        """)
    def landed_actions(upto):
        acts = []
        if upto == 15: acts.append((F_K, 1))
        for s in range(4):
            if upto == 16 + 4*s + 3: acts.append((F_V, s+1))
        if upto == 35: acts.append((F_WO, 1))
        for off, val in acts:
            e(f"v_mov_b32 v15, {val}")
            flag_set(1, off, 15)
            if off == F_K: stamp(2)
            if off == F_V and val == 4: stamp(4)
    e(f"s_and_b32 s61, s44, 3")
    for n in range(16, 36):
        if n < 32:
            sp, q = (n-16)//4, (n-16) % 4
            e(f"""
            s_add_u32 s47, s{sRS}, {sp}
            s_and_b32 s47, s47, 3
            s_lshl_b32 s47, s47, 2
            s_add_u32 s62, s61, {q}
            s_and_b32 s62, s62, 3
            s_add_u32 s47, s47, s62
            s_lshl_b32 s47, s47, 12
            s_add_u32 s62, s47, {L_V}
            s_mov_b32 m0, s62
            """)
            if n == 24:
                spin_ge(1, F_T, 2, 15)
            e(f"s_waitcnt vmcnt({cfg.win-4})")
            for p in range(4):
                e(f"buffer_load_dwordx4 v{8+(p&1)}, s[52:55], s47 offen offset:{1024*p} {nt} lds")
        else:
            e(f"s_waitcnt vmcnt({cfg.win-4})")
            for pp in range(4):
                p = (n-32)*4 + pp
                e(f"s_mov_b32 m0, {L_WO + p*1024}\ns_mov_b32 s47, {p*4096}")
                e(f"buffer_load_dwordx4 v{10+((p>>1)&1)}, s[56:59], s47 offen {cfg.ntW} lds")
        landed_actions(n - G)
    stamp(3)
    for upto in range(36 - G, 36):
        need = any(upto == x for x in (15, 19, 23, 27, 31, 35))
        if need:
            e(f"s_waitcnt vmcnt({4*(35-upto)})")
            landed_actions(upto)
    stamp(5)
    stamps_out(6)
    e("s_endpgm")

    e(f"""L_notloader:
    s_setprio 1
    v_mov_b32 v4, 0xff
    s_cmp_ge_u32 s{sWAVE}, 3
    s_cbranch_scc1 L_compute
    """)
    e(f"""
    s_cmp_eq_u32 s{sWAVE}, 1
    s_cbranch_scc0 L_roleB
    s_mov_b32 s44, 0
    s_and_b32 s53, s{sI}, 3
    s_lshl_b32 s45, s53, 20
    s_lshl_b32 s46, s{sG}, 10
    s_add_u32 s45, s45, s46
    s_lshr_b32 s46, s{sI}, 2
    s_lshl_b32 s46, s46, 7
    s_add_u32 s45, s45, s46
    s_mov_b32 s46, 8192
    s_mov_b32 s47, 0x400000
    s_lshl_b32 s52, s{sSLOT}, 9
    s_add_u32 s52, s52, {W_QP}
    s_add_u32 s54, s{sRS}, 2
    s_mov_b32 s55, {L_ACTA}
    s_waitcnt lgkmcnt(0)
    s_mov_b32 s48, s10
    s_mov_b32 s49, s11
    s_branch L_tilecommon
    L_roleB:
    s_add_u32 s54, s{sRS}, 3
    s_mov_b32 s55, {L_ACTB}
    s_mov_b32 s47, {512*1792*2}
    s_cmp_lt_u32 s{sI}, 14
    s_cbranch_scc0 L_roleB2
    s_mov_b32 s44, 0
    s_and_b32 s53, s2, 3
    s_mul_i32 s45, s53, {128*3584}
    s_lshr_b32 s46, s2, 2
    s_lshl_b32 s46, s46, 7
    s_add_u32 s45, s45, s46
    s_mov_b32 s46, 3584
    s_lshl_b32 s52, s2, 9
    s_add_u32 s52, s52, {W_HP}
    s_waitcnt lgkmcnt(0)
    s_mov_b32 s48, s16
    s_mov_b32 s49, s17
    s_branch L_tilecommon
    L_roleB2:
    s_cmp_lt_u32 s{sI}, 28
    s_cselect_b32 s44, 1, 2
    s_sub_u32 s53, s{sI}, 14
    s_min_u32 s53, s53, 13
    s_lshl_b32 s45, s53, 17
    s_lshl_b32 s46, s{sG}, 7
    s_add_u32 s45, s45, s46
    s_mov_b32 s46, 1024
    s_sub_u32 s52, s2, 112
    s_lshl_b32 s52, s52, 9
    s_add_u32 s52, s52, {W_FP}
    s_waitcnt lgkmcnt(0)
    s_mov_b32 s48, s20
    s_mov_b32 s49, s21
    L_tilecommon:
    s_load_dword s{sT0}, s[28:29], 0
    s_add_u32 s48, s48, s45
    s_addc_u32 s49, s49, 0
    s_sub_u32 s50, s47, s45
    s_mov_b32 s51, 0x20000
    s_and_b32 s54, s54, 3
    s_lshl_b32 s54, s54, 14
    s_add_u32 s54, s54, {L_V}
    s_mov_b32 s{SRD_WS}, s28
    s_mov_b32 s{SRD_WS+1}, s29
    s_mov_b32 s{SRD_WS+2}, {WS_BYTES}
    s_mov_b32 s{SRD_WS+3}, 0x20000
    s_cmp_eq_u32 s44, 0
    s_cbranch_scc0 L_nox
    v_lshlrev_b32 v5, 5, v0
    global_load_dwordx4 v[8:11], v5, s[4:5]
    global_load_dwordx4 v[12:15], v5, s[4:5] offset:16
    L_nox:
    v_lshrrev_b32 v5, 3, v0
    v_mul_lo_u32 v5, v5, s46
    v_and_b32 v6, 7, v0
    v_and_b32 v7, 1, v3
    v_lshlrev_b32 v7, 1, v7
    v_xor_b32 v6, v6, v7
    v_lshl_add_u32 v16, v6, 4, v5
    v_xor_b32 v6, 4, v6
    v_lshl_add_u32 v17, v6, 4, v5
    s_lshl_b32 s46, s46, 3
    s_cmp_eq_u32 s44, 2
    s_cbranch_scc1 L_tile_issued
    s_mov_b32 s56, 0
    s_mov_b32 s57, s54
    s_mov_b32 s58, 0
    L_tdma:
    s_mov_b32 m0, s57
    s_add_u32 s57, s57, 1024
    buffer_load_dwordx4 v16, s[48:51], s56 offen {cfg.ntW} lds
    s_add_u32 s56, s56, s46
    s_mov_b32 m0, s57
    s_add_u32 s57, s57, 1024
    buffer_load_dwordx4 v17, s[48:51], s56 offen {cfg.ntW} lds
    s_add_u32 s56, s56, s46
    s_add_u32 s58, s58, 1
    s_cmp_lt_u32 s58, 8
    s_cbranch_scc1 L_tdma
    L_tile_issued:
    """)
    stamp(1)
    e(f"""
    v_lshrrev_b32 v5, 2, v2
    v_lshl_add_u32 v5, v3, 3, v5
    v_lshlrev_b32 v5, 7, v5
    v_and_b32 v6, 3, v2
    v_lshl_add_u32 v5, v6, 3, v5
    v_add_u32 v5, s54, v5
    v_lshrrev_b32 v6, 3, v2
    v_and_b32 v7, 1, v3
    v_lshl_or_b32 v6, v7, 1, v6
    """)
    for u in range(4):
        e(f"v_xor_b32 v7, {u}, v6\nv_lshl_add_u32 v{16+u}, v7, 5, v5")
    e(f"""
    v_and_b32 v5, 1, v0
    v_mul_u32_u24 v5, 288, v5
    v_lshl_add_u32 v5, v3, 4, v5
    v_add_u32 v20, s55, v5
    v_mov_b32 v21, 1
    s_waitcnt lgkmcnt(0)
    """)
    nonce_from_epoch()
    e("s_barrier")
    e(f"""
    s_cmp_eq_u32 s44, 0
    s_cbranch_scc0 L_noLN
    """)
    e("s_waitcnt vmcnt(16)")
    for k in range(8):
        e(f"v_lshlrev_b32 v{24+2*k}, 16, v{8+k}\nv_and_b32 v{25+2*k}, 0xffff0000, v{8+k}")
    e("v_pk_add_f32 v[40:41], v[24:25], v[26:27]")
    for k in range(2, 8):
        e(f"v_pk_add_f32 v[40:41], v[40:41], v[{24+2*k}:{25+2*k}]")
    e("v_add_f32 v40, v40, v41")
    dpp_add(40, (8, 4, 2, 1))
    e("v_mov_b32 v41, v40\ns_nop 1\nv_permlane16_swap_b32 v40, v41\ns_nop 0\nv_add_f32 v40, v40, v41")
    e("v_mul_f32 v40, 0xbb000000, v40\nv_mov_b32 v41, v40")
    e("v_pk_add_f32 v[42:43], v[24:25], v[40:41]\nv_pk_mul_f32 v[44:45], v[42:43], v[42:43]")
    for k in range(1, 8):
        e(f"v_pk_add_f32 v[42:43], v[{24+2*k}:{25+2*k}], v[40:41]\nv_pk_fma_f32 v[44:45], v[42:43], v[42:43], v[44:45]")
    e("v_add_f32 v44, v44, v45")
    dpp_add(44, (8, 4, 2, 1))
    e("v_mov_b32 v45, v44\ns_nop 1\nv_permlane16_swap_b32 v44, v45\ns_nop 0\nv_add_f32 v44, v44, v45")
    e("v_mul_f32 v44, 0x3b000000, v44")
    rnd_bf16(44)
    e("v_add_f32 v44, 0x3727c5ac, v44")
    rnd_bf16(44)
    e("v_sqrt_f32 v44, v44\ns_nop 0")
    rnd_bf16(44)
    e("v_rcp_f32 v44, v44")
    rnd_bf16(40)
    e("v_mov_b32 v41, v40\nv_mov_b32 v45, v44")
    for k in range(8):
        e(f"v_pk_add_f32 v[42:43], v[{24+2*k}:{25+2*k}], v[40:41]")
        e(f"v_cvt_pk_bf16_f32 v42, v42, v43\nv_and_b32 v43, 0xffff0000, v42\nv_lshlrev_b32 v42, 16, v42")
        e(f"v_pk_mul_f32 v[42:43], v[42:43], v[44:45]\nv_cvt_pk_bf16_f32 v{8+k}, v42, v43")
    e(f"""
    v_bfe_u32 v5, v0, 3, 2
    v_lshrrev_b32 v6, 5, v0
    v_mul_u32_u24 v6, 288, v6
    v_and_b32 v7, 7, v0
    v_lshl_add_u32 v6, v7, 5, v6
    v_add_u32 v6, s55, v6
    v_cmp_eq_u32 vcc, s53, v5
    s_and_saveexec_b64 s[56:57], vcc
    ds_write_b128 v6, v[8:11]
    ds_write_b128 v6, v[12:15] offset:16
    s_mov_b64 exec, -1
    L_noLN:
    """)
    stamp(2)
    e(f"""
    s_cmp_eq_u32 s44, 2
    s_cbranch_scc1 L_notile
    s_waitcnt vmcnt(0)
    """)
    for u in range(4):
        for t in range(4):
            r = 64 + 16*u + 4*t
            e(f"ds_read_b64_tr_b16 v[{r}:{r+1}], v{16+u} offset:{t*4096}")
            e(f"ds_read_b64_tr_b16 v[{r+2}:{r+3}], v{16+u} offset:{t*4096+512}")
    e(f"""
    s_waitcnt lgkmcnt(0)
    L_notile:
    """)
    flag_add(1, F_T, 21)
    stamp(3)
    e(f"""
    s_cmp_eq_u32 s44, 1
    s_cbranch_scc0 L_noH
    """)
    e(f"""
    v_bfe_u32 v5, v0, 4, 1
    v_lshlrev_b32 v5, 11, v5
    v_lshrrev_b32 v6, 5, v0
    v_lshl_add_u32 v5, v6, 8, v5
    v_lshl_add_u32 v5, v2, 4, v5
    s_lshl_b32 s56, s53, 12
    s_add_u32 s56, s56, {W_HP}
    v_add_u32 v5, s56, v5
    v_and_b32 v7, 31, v0
    v_lshlrev_b32 v7, 3, v7
    s_lshl_b32 s56, s53, 8
    v_add_u32 v22, s56, v7
    global_load_dwordx2 v[22:23], v22, s[18:19]
    v_mul_u32_u24 v6, 288, v6
    v_add3_u32 v6, v6, v7, s55
    L_hretry:
    """)
    for k in range(4):
        e(f"buffer_load_dwordx4 v[{24+4*k}:{27+4*k}], v5, s[{SRD_WS}:{SRD_WS+3}], 0 offen offset:{512*k} sc1")
    e("s_waitcnt vmcnt(0)")
    for k in range(4): tag_check(24+4*k, 7, k == 0)
    tag_branch(7, "L_hretry")
    for k in range(16): e(f"v_and_b32 v{24+k}, 0xffffff00, v{24+k}")
    e("""
    v_pk_add_f32 v[24:25], v[24:25], v[28:29]
    v_pk_add_f32 v[26:27], v[26:27], v[30:31]
    v_pk_add_f32 v[32:33], v[32:33], v[36:37]
    v_pk_add_f32 v[34:35], v[34:35], v[38:39]
    v_pk_add_f32 v[24:25], v[24:25], v[32:33]
    v_pk_add_f32 v[26:27], v[26:27], v[34:35]
    v_cvt_pk_bf16_f32 v24, v24, v25
    v_cvt_pk_bf16_f32 v26, v26, v27
    v_and_b32 v25, 0xffff0000, v24
    v_lshlrev_b32 v24, 16, v24
    v_and_b32 v27, 0xffff0000, v26
    v_lshlrev_b32 v26, 16, v26
    v_lshlrev_b32 v28, 16, v22
    v_and_b32 v29, 0xffff0000, v22
    v_lshlrev_b32 v30, 16, v23
    v_and_b32 v31, 0xffff0000, v23
    v_pk_add_f32 v[24:25], v[24:25], v[28:29]
    v_pk_add_f32 v[26:27], v[26:27], v[30:31]
    v_cvt_pk_bf16_f32 v24, v24, v25
    v_cvt_pk_bf16_f32 v26, v26, v27
    v_and_b32 v25, 0xffff0000, v24
    v_lshlrev_b32 v24, 16, v24
    v_and_b32 v27, 0xffff0000, v26
    v_lshlrev_b32 v26, 16, v26
    v_max_f32 v24, 0, v24
    v_max_f32 v25, 0, v25
    v_max_f32 v26, 0, v26
    v_max_f32 v27, 0, v27
    v_pk_mul_f32 v[24:25], v[24:25], v[24:25]
    v_pk_mul_f32 v[26:27], v[26:27], v[26:27]
    v_cvt_pk_bf16_f32 v24, v24, v25
    v_cvt_pk_bf16_f32 v25, v26, v27
    ds_write_b64 v6, v[24:25]
    L_noH:
    s_cmp_eq_u32 s44, 2
    s_cbranch_scc1 L_nopub
    """)
    e("s_waitcnt lgkmcnt(0)")
    for t in range(4):
        e(f"ds_read_b128 v[{24+4*t}:{27+4*t}], v20 offset:{64*t}")
    e(f"""
    v_and_b32 v5, 1, v0
    v_lshlrev_b32 v5, 8, v5
    v_bfe_u32 v6, v0, 1, 2
    v_lshl_add_u32 v5, v6, 6, v5
    v_lshl_add_u32 v5, v3, 4, v5
    v_add_u32 v5, s52, v5
    v_and_b32 v6, 2, v0
    v_cmp_ne_u32 s[56:57], 0, v6
    v_and_b32 v6, 4, v0
    v_cmp_ne_u32 s[58:59], 0, v6
    s_waitcnt lgkmcnt(0)
    """)
    for t in range(4):
        for u in range(4):
            r = 64 + 16*u + 4*t
            c = f"v[{40+4*u}:{43+4*u}]"
            e(f"v_mfma_f32_16x16x32_bf16 {c}, v[{r}:{r+3}], v[{24+4*t}:{27+4*t}], {c if t else 0}")
    e("s_nop 7")
    for k in range(4):
        e(f"v_cndmask_b32 v{40+k}, v{40+k}, v{44+k}, s[56:57]")
    for k in range(4):
        e(f"v_cndmask_b32 v{48+k}, v{48+k}, v{52+k}, s[56:57]")
    for k in range(4):
        e(f"v_cndmask_b32 v{40+k}, v{40+k}, v{48+k}, s[58:59]")
    tag_insert(40, 4)
    e(f"""
    s_mov_b32 s56, 0x00ff00ff
    s_mov_b32 s57, 0x00ff00ff
    s_mov_b64 exec, s[56:57]
    buffer_store_dwordx4 v[40:43], v5, s[{SRD_WS}:{SRD_WS+3}], 0 offen sc1
    s_mov_b64 exec, -1
    L_nopub:
    """)
    stamp(4)
    e(f"""
    s_cmp_eq_u32 s{sWAVE}, 1
    s_cbranch_scc0 L_final
    """)
    e(f"""
    v_lshlrev_b32 v5, 11, v3
    v_lshl_add_u32 v5, v2, 4, v5
    s_lshl_b32 s56, s{sG}, 14
    s_lshr_b32 s57, s{sI}, 4
    s_lshl_b32 s57, s57, 8
    s_add_u32 s56, s56, s57
    s_add_u32 s56, s56, {W_QP}
    v_add_u32 v5, s56, v5
    v_add_u32 v6, 8192, v5
    v_lshrrev_b32 v8, 5, v0
    v_lshlrev_b32 v8, 5, v8
    v_lshl_add_u32 v8, v0, 3, v8
    v_add_u32 v8, {L_QS}, v8
    L_qretry:
    """)
    for v in range(2):
        for k in range(4):
            r = 24 + 16*v + 4*k
            e(f"buffer_load_dwordx4 v[{r}:{r+3}], v{5+v}, s[{SRD_WS}:{SRD_WS+3}], 0 offen offset:{512*k} sc1")
    e("s_waitcnt vmcnt(0)")
    for k in range(8): tag_check(24+4*k, 7, k == 0)
    tag_branch(7, "L_qretry")
    for k in range(32): e(f"v_and_b32 v{24+k}, 0xffffff00, v{24+k}")
    for v in range(2):
        r = 24 + 16*v
        e(f"""
        v_pk_add_f32 v[{r}:{r+1}], v[{r}:{r+1}], v[{r+4}:{r+5}]
        v_pk_add_f32 v[{r+2}:{r+3}], v[{r+2}:{r+3}], v[{r+6}:{r+7}]
        v_pk_add_f32 v[{r+8}:{r+9}], v[{r+8}:{r+9}], v[{r+12}:{r+13}]
        v_pk_add_f32 v[{r+10}:{r+11}], v[{r+10}:{r+11}], v[{r+14}:{r+15}]
        v_pk_add_f32 v[{r}:{r+1}], v[{r}:{r+1}], v[{r+8}:{r+9}]
        v_pk_add_f32 v[{r+2}:{r+3}], v[{r+2}:{r+3}], v[{r+10}:{r+11}]
        v_cvt_pk_bf16_f32 v{r}, v{r}, v{r+1}
        v_cvt_pk_bf16_f32 v{r+1}, v{r+2}, v{r+3}
        ds_write_b64 v8, v[{r}:{r+1}] offset:{576*v}
        """)
    flag_set(1, F_Q, 21)
    stamp(5)
    e(f"""
    v_and_b32 v5, 31, v0
    v_lshlrev_b32 v9, 2, v5
    v_add_u32 v9, {L_WT}, v9
    v_lshlrev_b32 v5, 7, v5
    s_lshl_b32 s56, s{sG}, 12
    s_lshr_b32 s57, s{sI}, 3
    s_lshl_b32 s57, s57, 4
    s_add_u32 s56, s56, s57
    s_add_u32 s56, s56, {W_ST}
    v_add_u32 v5, s56, v5
    L_sretry:
    buffer_load_dwordx4 v[24:27], v5, s[{SRD_WS}:{SRD_WS+3}], 0 offen sc1
    s_waitcnt vmcnt(0)
    """)
    tag_check(24, 7, True)
    tag_branch(7, "L_sretry")
    e("v_and_b32 v24, 0xffffff00, v24\nv_and_b32 v25, 0xffffff00, v25\nv_mov_b32 v28, v24")
    dpp_max(28, (8, 4, 2, 1))
    e(f"""
    v_sub_f32 v24, v24, v28
    v_mul_f32 v24, {LOG2E}, v24
    v_exp_f32 v24, v24
    s_nop 0
    v_mul_f32 v25, v24, v25
    """)
    dpp_add(25, (8, 4, 2, 1))
    e(f"""
    v_rcp_f32 v25, v25
    s_nop 0
    v_mul_f32 v24, v24, v25
    ds_write_b32 v9, v24
    """)
    flag_set(1, F_W, 21)
    stamp(6)
    stamps_out(7)
    e("s_endpgm")

    e(f"""L_final:
    s_lshr_b32 s56, s{sI}, 3
    s_lshl_b32 s56, s56, 3
    s_add_u32 s56, s56, s{sG}
    s_lshl_b32 s56, s56, 3
    s_and_b32 s57, s{sI}, 7
    s_add_u32 s56, s56, s57          ; Q
    s_lshr_b32 s57, s56, 7           ; b_f
    s_and_b32 s58, s56, 127          ; nq
    v_and_b32 v5, 1, v3
    v_lshlrev_b32 v5, 1, v5
    v_lshrrev_b32 v6, 1, v3
    v_or_b32 v5, v5, v6              ; e(R)
    v_lshlrev_b32 v5, 1, v5
    s_lshl_b32 s59, s58, 3
    v_add_u32 v6, s59, v5
    global_load_ushort v10, v6, s[22:23]
    s_lshl_b32 s59, s56, 3
    v_add_u32 v8, s59, v5
    global_load_ushort v11, v8, s[4:5]
    s_lshr_b32 s59, s58, 4           ; ctile8
    s_lshl_b32 s59, s59, 9
    s_lshl_b32 s60, s57, 8
    s_add_u32 s59, s59, s60
    s_and_b32 s60, s58, 15
    s_lshl_b32 s60, s60, 4
    s_add_u32 s59, s59, s60
    s_add_u32 s59, s59, {W_FP}
    v_min_u32 v5, 13, v0
    v_lshlrev_b32 v5, 12, v5
    v_add_u32 v5, s59, v5
    s_lshr_b32 s59, s58, 5           ; ctile
    s_lshl_b32 s59, s59, 10
    s_lshl_b32 s60, s57, 9
    s_add_u32 s59, s59, s60
    s_and_b32 s60, s58, 31
    s_lshl_b32 s60, s60, 4
    s_add_u32 s59, s59, s60
    s_add_u32 s59, s59, {W_SP}
    v_lshlrev_b32 v6, 12, v0
    v_add_u32 v6, s59, v6
    v_cmp_gt_u32 s[60:61], 14, v0
    s_mov_b32 s64, s24
    s_mov_b32 s65, s25
    s_mov_b32 s66, 2048
    s_mov_b32 s67, 0x20000
    L_fretry:
    buffer_load_dwordx4 v[24:27], v5, s[{SRD_WS}:{SRD_WS+3}], 0 offen sc1
    s_waitcnt vmcnt(0)
    """)
    tag_check(24, 7, True)
    tag_branch(7, "L_fretry")
    for k in range(4):
        e(f"v_and_b32 v{24+k}, 0xffffff00, v{24+k}")
    for k in range(4):
        e(f"v_cndmask_b32 v{24+k}, 0, v{24+k}, s[60:61]")
    reduce4_rows(24, 28)
    dpp_add(24, (8, 4, 2, 1))
    rnd_bf16(24)
    e("v_lshlrev_b32 v10, 16, v10\nv_add_f32 v24, v24, v10")
    rnd_bf16(24)
    e(f"""
    v_mul_f32 v25, 0xbfb8aa3b, v24
    v_exp_f32 v25, v25
    s_nop 0
    v_add_f32 v25, 1.0, v25
    v_rcp_f32 v25, v25
    s_nop 0
    v_mul_f32 v12, v24, v25
    """)
    rnd_bf16(12)
    e("v_lshlrev_b32 v11, 16, v11")
    stamp(5)
    e(f"""L_3retry:
    buffer_load_dwordx4 v[24:27], v6, s[{SRD_WS}:{SRD_WS+3}], 0 offen sc1
    s_waitcnt vmcnt(0)
    """)
    tag_check(24, 7, True)
    tag_branch(7, "L_3retry")
    stamp(6)
    for k in range(4):
        e(f"v_and_b32 v{24+k}, 0xffffff00, v{24+k}")
    reduce4_rows(24, 28)
    dpp_add(24, (8, 4, 2, 1))
    rnd_bf16(24)
    e("v_mul_f32 v24, v24, v12")
    rnd_bf16(24)
    e(f"""
    v_add_f32 v24, v24, v11
    v_cvt_pk_bf16_f32 v24, v24, v24
    s_mov_b32 s56, 0x00010001
    s_mov_b32 s57, 0x00010001
    s_mov_b64 exec, s[56:57]
    buffer_store_short v24, v8, s[64:67], 0 offen
    s_cmp_eq_u32 s2, 0
    s_cbranch_scc0 L_fin2
    s_mov_b64 exec, 1
    v_mov_b32 v25, s{sT0}
    v_mov_b32 v26, 0
    buffer_store_dword v25, v26, s[{SRD_WS}:{SRD_WS+3}], 0 offen sc1
    L_fin2:
    """)
    stamp(7)
    stamps_out(8)
    e("s_endpgm")

    sW = 44
    e(f"""L_compute:
    s_sub_u32 s{sW}, s{sWAVE}, 3
    v_mov_b32 v5, 0
    v_lshlrev_b32 v6, 2, v2
    v_add_u32 v6, {L_FL}, v6
    s_cmp_eq_u32 s{sW}, 0
    s_cbranch_scc0 L_nozero
    ds_write_b32 v6, v5
    L_nozero:
    s_waitcnt lgkmcnt(0)
    s_load_dword s{sT0}, s[28:29], 0
    s_mov_b32 s{SRD_WS}, s28
    s_mov_b32 s{SRD_WS+1}, s29
    s_mov_b32 s{SRD_WS+2}, {WS_BYTES}
    s_mov_b32 s{SRD_WS+3}, 0x20000
    """)
    for r in range(64, 128): e(f"v_mov_b32 v{r}, 0")
    e(f"""
    s_lshl_b32 s45, s{sW}, 14
    v_lshlrev_b32 v5, 8, v2
    v_add_u32 v5, s45, v5
    v_xor_b32 v6, v3, v2
    """)
    for t in range(4):
        e(f"v_xor_b32 v7, {4*t}, v6\nv_lshl_add_u32 v{8+t}, v7, 4, v5")
    e(f"""
    v_and_b32 v13, 3, v2
    v_mul_u32_u24 v12, 288, v13
    v_lshl_add_u32 v12, v3, 4, v12
    v_add_u32 v12, {L_QS}, v12
    """)
    e(f"""
    v_lshl_add_u32 v15, v3, 2, v13
    v_lshlrev_b32 v15, 4, v15
    v_add_u32 v15, {L_PB}, v15
    v_lshrrev_b32 v5, 3, v2
    v_lshl_add_u32 v14, v5, 8, v15
    v_bfe_u32 v5, v2, 2, 1
    v_lshl_add_u32 v14, v5, 3, v14
    s_lshl_b32 s45, s{sW}, 9
    v_add_u32 v14, s45, v14
    v_lshlrev_b32 v17, 3, v13
    v_add_u32 v17, {L_SB}, v17
    s_lshl_b32 s45, s{sW}, 5
    v_add_u32 v16, s45, v17
    """)
    e(f"""
    v_lshrrev_b32 v5, 2, v2
    v_and_b32 v6, 1, v3
    v_lshl_add_u32 v6, v6, 2, v5
    s_lshl_b32 s45, s{sW}, 1
    v_xor_b32 v6, s45, v6
    v_lshlrev_b32 v7, 3, v13
    v_lshl_add_u32 v22, v6, 5, v7
    v_xor_b32 v23, 32, v22
    v_lshl_add_u32 v6, v3, 2, v5
    v_lshlrev_b32 v6, 8, v6
    v_add_u32 v6, {L_V}, v6
    v_add_u32 v18, v6, v22
    v_add_u32 v19, v6, v23
    v_lshl_add_u32 v6, v3, 3, v5
    v_lshlrev_b32 v6, 8, v6
    v_add_u32 v6, {L_WO}, v6
    v_add_u32 v20, v6, v22
    v_add_u32 v21, v6, v23
    """)
    e(f"""
    s_lshl_b32 s45, s{sW}, 7
    v_lshl_add_u32 v5, v3, 4, s45
    s_lshl_b32 s46, s{sSLOT}, 11
    s_add_u32 s46, s46, {W_OP}
    v_lshl_add_u32 v22, v13, 9, v5
    v_bfe_u32 v6, v2, 2, 1
    v_lshl_add_u32 v22, v6, 6, v22
    v_add_u32 v22, s46, v22
    s_lshl_b32 s46, s{sSLOT}, 10
    s_add_u32 s46, s46, {W_SP}
    v_and_b32 v6, 1, v2
    v_lshl_add_u32 v23, v6, 9, v5
    v_lshlrev_b32 v28, 7, v6
    v_lshl_add_u32 v28, v3, 4, v28
    v_add_u32 v28, {L_OB}, v28
    v_bfe_u32 v6, v2, 1, 1
    v_lshl_add_u32 v23, v6, 6, v23
    v_add_u32 v23, s46, v23
    s_lshr_b32 s45, s{sW}, 1          ; b'
    s_and_b32 s46, s{sW}, 1           ; dsub
    s_lshl_b32 s47, s{sG}, 16
    s_lshl_b32 s48, s45, 15
    s_add_u32 s47, s47, s48
    s_lshr_b32 s48, s{sI}, 2
    s_lshl_b32 s48, s48, 8
    s_add_u32 s47, s47, s48
    s_lshl_b32 s48, s46, 7
    s_add_u32 s47, s47, s48
    s_add_u32 s47, s47, {W_OP}
    v_lshrrev_b32 v5, 3, v0
    v_and_b32 v6, 7, v0
    v_lshlrev_b32 v24, 11, v5
    v_lshl_add_u32 v24, v6, 4, v24
    v_add_u32 v24, s47, v24
    v_add_u32 v25, 16384, v24
    s_lshl_b32 s47, s45, 6
    s_add_u32 s47, s47, {L_WT}
    v_lshl_add_u32 v26, v5, 2, s47
    v_and_b32 v5, 1, v3
    v_lshlrev_b32 v5, 1, v5
    v_lshrrev_b32 v7, 1, v3
    v_or_b32 v5, v5, v7
    v_lshl_add_u32 v5, v6, 2, v5
    s_lshl_b32 s47, s45, 7
    s_lshl_b32 s48, s46, 6
    s_add_u32 s47, s47, s48
    s_add_u32 s47, s47, {L_OB}
    v_lshl_add_u32 v27, v5, 1, s47
    s_lshl_b32 s47, s{sSLOT}, 7
    s_add_u32 s47, s47, {W_ST}
    v_lshl_add_u32 v29, v13, 4, s47
    v_and_b32 v5, 4, v0
    v_cmp_ne_u32 s[50:51], 0, v5
    v_and_b32 v5, 2, v0
    v_cmp_ne_u32 s[52:53], 0, v5
    v_mov_b32 v30, 1
    s_waitcnt lgkmcnt(0)
    """)
    nonce_from_epoch()
    e("s_barrier")
    stamp(1)
    L = lbl("L_sp")
    e(f"""{L}:
    ds_read_b64 v[6:7], v1 offset:{F_Q}
    s_waitcnt lgkmcnt(0)
    v_and_b32 v6, v6, v7
    v_cmp_ne_u32 vcc, 0, v6
    s_cbranch_vccz {L}""")
    stamp(2)
    for tau in range(4):
        m = 0x000f000f << (4*tau)
        e(f"s_mov_b32 s54, {m:#x}\ns_mov_b32 s55, {m:#x}\ns_mov_b64 exec, s[54:55]")
        for t in range(4):
            r = 64 + 16*tau + 4*t
            e(f"ds_read_b128 v[{r}:{r+3}], v12 offset:{64*t}")
    e("s_mov_b64 exec, -1")
    for tau in range(4):
        for t in range(4):
            r = 128 + 16*tau + 4*t
            e(f"ds_read_b128 v[{r}:{r+3}], v{8+t} offset:{4096*tau}")
    for tau in range(4):
        for t in range(4):
            n = 4*tau + t
            r = 128 + 16*tau + 4*t; q = 64 + 16*tau + 4*t
            if not cfg.diag or True:
                e(f"s_waitcnt lgkmcnt({min(15-n, 15)})")
            e(f"v_mfma_f32_16x16x32_bf16 v[32:35], v[{r}:{r+3}], v[{q}:{q+3}], {'v[32:35]' if n else 0}")
    e(f"""
    s_mov_b32 s54, {SCALE:#x}
    s_mov_b32 s55, {LOG2E:#x}
    s_nop 5
    v_cvt_pk_bf16_f32 v32, v32, v33
    v_cvt_pk_bf16_f32 v34, v34, v35
    v_and_b32 v33, 0xffff0000, v32
    v_lshlrev_b32 v32, 16, v32
    v_and_b32 v35, 0xffff0000, v34
    v_lshlrev_b32 v34, 16, v34
    v_mul_f32 v32, s54, v32
    v_mul_f32 v33, s54, v33
    v_mul_f32 v34, s54, v34
    v_mul_f32 v35, s54, v35
    v_cvt_pk_bf16_f32 v32, v32, v33
    v_cvt_pk_bf16_f32 v34, v34, v35
    v_and_b32 v33, 0xffff0000, v32
    v_lshlrev_b32 v32, 16, v32
    v_and_b32 v35, 0xffff0000, v34
    v_lshlrev_b32 v34, 16, v34
    v_max_f32 v36, v32, v33
    v_max3_f32 v36, v34, v35, v36
    """)
    dpp_max(36, (8, 4))
    e("""
    v_mov_b32 v37, v36
    s_nop 1
    v_permlane16_swap_b32 v36, v37
    s_nop 0
    v_max_f32 v36, v36, v37
    v_mov_b32 v37, v36
    s_nop 1
    v_permlane32_swap_b32 v36, v37
    s_nop 0
    v_max_f32 v36, v36, v37
    v_sub_f32 v32, v32, v36
    v_sub_f32 v33, v33, v36
    v_sub_f32 v34, v34, v36
    v_sub_f32 v35, v35, v36
    v_mul_f32 v32, s55, v32
    v_mul_f32 v33, s55, v33
    v_mul_f32 v34, s55, v34
    v_mul_f32 v35, s55, v35
    v_exp_f32 v32, v32
    v_exp_f32 v33, v33
    v_exp_f32 v34, v34
    v_exp_f32 v35, v35
    v_add_f32 v37, v32, v33
    v_cvt_pk_bf16_f32 v32, v32, v33
    v_add_f32 v38, v34, v35
    v_cvt_pk_bf16_f32 v33, v34, v35
    v_add_f32 v37, v37, v38
    ds_write_b64 v14, v[32:33]
    """)
    dpp_add(37, (8, 4))
    e("""
    v_mov_b32 v38, v37
    s_nop 1
    v_permlane16_swap_b32 v37, v38
    s_nop 0
    v_add_f32 v37, v37, v38
    v_mov_b32 v38, v37
    s_nop 1
    v_permlane32_swap_b32 v37, v38
    s_nop 0
    v_add_f32 v37, v37, v38
    s_mov_b64 exec, 15
    ds_write_b64 v16, v[36:37]
    s_mov_b64 exec, -1
    """)
    flag_add(1, F_P, 30)
    for sp in range(4):
        e(f"""
        s_add_u32 s56, s{sRS}, {sp}
        s_and_b32 s56, s56, 3
        s_lshl_b32 s57, s56, 9
        v_add_u32 v{40+sp}, s57, v15
        s_lshl_b32 s57, s56, 5
        v_add_u32 v{44+sp}, s57, v17
        s_lshl_b32 s57, s56, 14
        v_add_u32 v{48+2*sp}, s57, v18
        v_add_u32 v{49+2*sp}, s57, v19
        """)
    spin_ge(1, F_P, 4, 6)
    for sp in range(4):
        e(f"ds_read_b64 v[{56+2*sp}:{57+2*sp}], v{44+sp}")
    for sp in range(4):
        for sg in range(2):
            r = 64 + 8*sp + 4*sg
            e(f"ds_read_b128 v[{r}:{r+3}], v{40+sp} offset:{256*sg}")
    e("""
    s_waitcnt lgkmcnt(8)
    v_max_f32 v32, v56, v58
    v_max3_f32 v32, v60, v62, v32
    v_sub_f32 v56, v56, v32
    v_sub_f32 v58, v58, v32
    v_sub_f32 v60, v60, v32
    v_sub_f32 v62, v62, v32
    v_mul_f32 v56, s55, v56
    v_mul_f32 v58, s55, v58
    v_mul_f32 v60, s55, v60
    v_mul_f32 v62, s55, v62
    v_exp_f32 v56, v56
    v_exp_f32 v58, v58
    v_exp_f32 v60, v60
    v_exp_f32 v62, v62
    v_mul_f32 v33, v56, v57
    v_fmac_f32 v33, v58, v59
    v_fmac_f32 v33, v60, v61
    v_fmac_f32 v33, v62, v63
    v_mov_b32 v34, 0
    v_mov_b32 v35, 0
    """)
    e(f"s_cmp_eq_u32 s{sW}, 0\ns_cbranch_scc0 L_nostat")
    tag_insert(32, 4)
    e(f"""
    s_mov_b64 exec, 15
    buffer_store_dwordx4 v[32:35], v29, s[{SRD_WS}:{SRD_WS+3}], 0 offen sc1
    s_mov_b64 exec, -1
    L_nostat:
    """)
    stamp(3)
    def fold(sp):
        for k in range(8):
            a = 96 + 8*sp + k
            if sp == 0: e(f"v_mul_f32 v{144+k}, v{56+2*sp}, v{a}")
            else: e(f"v_fmac_f32 v{144+k}, v{56+2*sp}, v{a}")
    for sp in range(4):
        spin_ge(1, F_V, sp+1, 6)
        if sp == 3: stamp(4)
        for sg in range(2):
            for ee in range(2):
                r = 128 + 8*sg + 4*ee
                e(f"ds_read_b64_tr_b16 v[{r}:{r+1}], v{48+2*sp+ee} offset:{8192*sg}")
                e(f"ds_read_b64_tr_b16 v[{r+2}:{r+3}], v{48+2*sp+ee} offset:{8192*sg+4096}")
        if sp > 0: fold(sp-1)
        for sg in range(2):
            for ee in range(2):
                r = 128 + 8*sg + 4*ee
                a = 96 + 8*sp + 4*ee
                p = 64 + 8*sp + 4*sg
                e(f"s_waitcnt lgkmcnt({6 - 2*(2*sg+ee)})" if not cfg.diag else "s_waitcnt lgkmcnt(0)")
                e(f"v_mfma_f32_16x16x32_bf16 v[{a}:{a+3}], v[{r}:{r+3}], v[{p}:{p+3}], {f'v[{a}:{a+3}]' if sg else 0}")
        if sp < 3: e("s_nop 2")
    e("s_nop 6")
    fold(3)
    for k in range(4):
        e(f"v_cndmask_b32 v{144+k}, v{144+k}, v{148+k}, s[50:51]")
    tag_insert(144, 4)
    e(f"""
    s_mov_b32 s56, 0x00ff00ff
    s_mov_b32 s57, 0x00ff00ff
    s_mov_b64 exec, s[56:57]
    buffer_store_dwordx4 v[144:147], v22, s[{SRD_WS}:{SRD_WS+3}], 0 offen sc1
    s_mov_b64 exec, -1
    buffer_load_dwordx4 v[32:35], v24, s[{SRD_WS}:{SRD_WS+3}], 0 offen sc1
    buffer_load_dwordx4 v[36:39], v25, s[{SRD_WS}:{SRD_WS+3}], 0 offen sc1
    """)
    stamp(5)
    spin_ge(1, F_WO, 1, 6)
    for ee in range(2):
        for t in range(2):
            r = 64 + 8*ee + 4*t
            e(f"ds_read_b64_tr_b16 v[{r}:{r+1}], v{20+ee} offset:{8192*t}")
            e(f"ds_read_b64_tr_b16 v[{r+2}:{r+3}], v{20+ee} offset:{8192*t+1024}")
    spin_ge(1, F_W, 1, 6, extra="ds_read_b32 v40, v26\nds_read_b32 v41, v26 offset:32")
    e(f"""
    s_branch L_ochk
    L_oretry:
    buffer_load_dwordx4 v[32:35], v24, s[{SRD_WS}:{SRD_WS+3}], 0 offen sc1
    buffer_load_dwordx4 v[36:39], v25, s[{SRD_WS}:{SRD_WS+3}], 0 offen sc1
    L_ochk:
    s_waitcnt vmcnt(0)
    """)
    tag_check(32, 7, True); tag_check(36, 7, False)
    tag_branch(7, "L_oretry")
    stamp(6)
    for k in range(8): e(f"v_and_b32 v{32+k}, 0xffffff00, v{32+k}")
    for k in range(4): e(f"v_mul_f32 v{32+k}, v40, v{32+k}")
    for k in range(4): e(f"v_fmac_f32 v{32+k}, v41, v{36+k}")
    reduce4_rows(32, 36)
    dpp_add(32, (8,))
    e("""
    v_cvt_pk_bf16_f32 v32, v32, v32
    ds_write_b16 v27, v32
    """)
    flag_add(1, F_O, 30)
    spin_ge(1, F_O, 4, 6, extra="ds_read_b128 v[40:43], v28\nds_read_b128 v[44:47], v28 offset:64")
    for t in range(2):
        for ee in range(2):
            r = 64 + 8*ee + 4*t
            a = 32 + 4*ee
            e(f"v_mfma_f32_16x16x32_bf16 v[{a}:{a+3}], v[{r}:{r+3}], v[{40+4*t}:{43+4*t}], {f'v[{a}:{a+3}]' if t else 0}")
    e(f"""
    s_mov_b32 s56, 0x000f000f
    s_mov_b32 s57, 0x000f000f
    s_nop 5
    """)
    for k in range(4):
        e(f"v_cndmask_b32 v{32+k}, v{32+k}, v{36+k}, s[52:53]")
    tag_insert(32, 4)
    e(f"""
    s_mov_b64 exec, s[56:57]
    buffer_store_dwordx4 v[32:35], v23, s[{SRD_WS}:{SRD_WS+3}], 0 offen sc1
    """)
    stamp(7)
    stamps_out(8)
    e("L_end:\ns_endpgm\nL_codeend:")
    body = "\n".join(out)
    hdr = open("recurrent_scan__sliding_block_cached__dense_activation_squared_relu__decode.s.ref").read().split("; Override launch")[0]
    return f"""{hdr}; Single fused launch: 256 workgroups (one per CU) x 7 waves.
; @launch grid=(256,1,1) block=(448,1,1) lds={LDS_TOTAL}
.amdgcn_target "amdgcn-amd-amdhsa--gfx950"
.text
.globl {KNAME}
.p2align 8
.type {KNAME},@function
{KNAME}:
{body}
.section .rodata,"a"
.p2align 6
.amdhsa_kernel {KNAME}
  .amdhsa_next_free_vgpr 192
  .amdhsa_next_free_sgpr 102
  .amdhsa_accum_offset 192
  .amdhsa_group_segment_fixed_size 0
  .amdhsa_kernarg_size 104
  .amdhsa_user_sgpr_count 2
  .amdhsa_user_sgpr_kernarg_segment_ptr 1
  .amdhsa_system_sgpr_workgroup_id_x 1
.end_amdhsa_kernel
"""

if __name__ == "__main__":
    path = sys.argv[1]
    for a in sys.argv[2:]:
        k, v = a.split("=")
        cur = getattr(cfg, k)
        setattr(cfg, k, type(cur)(int(v)) if isinstance(cur, (bool, int)) else v.replace("+", " "))
    open(path, "w").write(build())
```

```python
import sys
KNAME = "recurrent_scan__sliding_block_cached__dense_activation_squared_relu__decode_kernel"

cfg_dbgsel = {6: [(0,0,1),(0,1,0),(1,2,1),(1,3,0),(2,4,0),(4,5,1),(4,6,0),(5,7,0)], 7: [(4,8,0),(5,9,0),(6,10,0)], 8: [(5,11,0),(6,12,1),(6,13,0),(7,14,0)]}
class Cfg:
    early = False
    ampw = -1
    ampk = 0
    dbg = False
    diag = False
    win = 20
    qlead = 5
    slead = 8
    flead = 8
    hgate = 16
    ldA = 'sc1'
    pf = 1
    first = 'sc1'
    ntK = "nt"; ntW = "nt"
    rotmul = 1
cfg = Cfg()

L_K, L_V, L_WO = 0, 65536, 131072
SCR = 147456
L_QS = SCR
L_PB = SCR + 1152
L_SB = L_PB + 2048
L_WT = L_SB + 128
L_OB = L_WT + 128
L_ACTA = L_OB + 256
L_ACTB = L_ACTA + 576
L_FL = L_ACTB + 576
L_LAND = L_FL + 64
LDS_TOTAL = L_LAND + 256
F_Q, F_K, F_P, F_V, F_T, F_WO, F_W, F_O = [4*k for k in range(8)]
W_QP, W_ST, W_OP, B_OFF, W_SP, W_HP, W_FP = 0x10000, 0x30000, 0x40000, 0xC0000, 0x180000, 0x1C0000, 0x1D0000
WS_BYTES = 0x200000
SPIN_CAP = 20000
LOG2E = 0x3fb8aa3b
SCALE = 0x3db504f3

sWAVE, sG, sI, sNON = 30, 31, 32, 33
sT0, sT1, sT2, sT3 = 33, 34, 35, 40
SRD_WS = 36
sSLOT = 41
sRS = 42
sCAP = 43
sVB, sOFF, sBOFF = 71, 72, 73
sKEND = sVB
O_LAND = 64
STAMP0 = 80

out = []
def e(s):
    for ln in s.strip("\n").split("\n"):
        out.append("    " + ln.strip() if not ln.strip().endswith(":") else ln.strip())

def estamp(k):
    if cfg.diag and cfg.early:
        e(f"s_memrealtime s[{STAMP0+2*k}:{STAMP0+2*k+1}]")
def stamp(k):
    if cfg.diag and (not cfg.early or k == 0 or k >= 6):
        e(f"s_memrealtime s[{STAMP0+2*k}:{STAMP0+2*k+1}]")

def stamps_out(n):
    if not cfg.diag: return
    if cfg.ampw >= 0:
        L = lbl("L_amp"); Ls = lbl("L_amps")
        if cfg.ampk < n:
            e(f"""
            s_waitcnt lgkmcnt(0)
            s_cmp_eq_u32 s{sWAVE}, {cfg.ampw}
            s_cbranch_scc0 {Ls}
            s_sub_u32 s60, s{STAMP0+2*cfg.ampk}, s{STAMP0}
            s_min_u32 s60, s60, 20000
            s_mul_i32 s60, s60, 10
            s_memrealtime s[62:63]
            s_waitcnt lgkmcnt(0)
            {L}:
            s_memrealtime s[68:69]
            s_waitcnt lgkmcnt(0)
            s_sub_u32 s61, s68, s62
            s_cmp_lt_u32 s61, s60
            s_cbranch_scc1 {L}
            {Ls}:
            """)
        return
    if cfg.dbg:
        sel = cfg_dbgsel[n] if n in cfg_dbgsel else []
        e("s_waitcnt lgkmcnt(0)\ns_mov_b64 exec, 1\nv_mov_b32 v1, 0")
        if n == 8: e(f"s_cmp_eq_u32 s{sWAVE}, 2\ns_cbranch_scc0 L_dbgskip{len(out)}"); lab = f"L_dbgskip{len(out)-2}"
        for (k, slot, mn) in sel:
            e(f"v_mov_b32 v4, s{STAMP0+2*k}")
            if mn: e("v_not_b32 v4, v4")
            e(f"global_atomic_umax v1, v4, s[26:27] offset:{4*slot}\ns_nop 1")
        if n == 8: e(f"{lab}:")
        e("s_waitcnt vmcnt(0)")
        return
    e(f"""
    s_waitcnt lgkmcnt(0)
    s_lshl_b32 s60, s2, 4
    s_add_u32 s60, s60, s{sWAVE}
    s_lshl_b32 s60, s60, 6
    s_add_u32 s68, s28, s60
    s_addc_u32 s69, s29, 0
    s_add_u32 s68, s68, 0x10000000
    s_addc_u32 s69, s69, 0
    s_mov_b64 exec, 1
    v_mov_b32 v1, 0
    """)
    for k in range(8):
        if k < n:
            e(f"v_mov_b32 v4, s{STAMP0+2*k}\nv_mov_b32 v5, s{STAMP0+2*k+1}")
        else:
            e(f"v_mov_b32 v4, s{STAMP0}\nv_mov_b32 v5, s{STAMP0+1}")
        e(f"global_store_dwordx2 v1, v[4:5], s[68:69] offset:{8*k}\ns_nop 1")
    e("s_waitcnt vmcnt(0)")

lblc = [0]
def lbl(p="L"):
    lblc[0] += 1
    return f"{p}_{lblc[0]}"

def flag_set(vfl, off, vval):
    e(f"s_mov_b64 exec, 1\nds_write_b32 v{vfl}, v{vval} offset:{off}\ns_mov_b64 exec, -1")
def flag_add(vfl, off, vone):
    e(f"s_mov_b64 exec, 1\nds_add_u32 v{vfl}, v{vone} offset:{off}\ns_mov_b64 exec, -1")
def spin_ge(vfl, off, target, vtmp, extra=""):
    L = lbl("L_sp")
    e(f"""{L}:
    ds_read_b32 v{vtmp}, v{vfl} offset:{off}
    {extra}
    s_waitcnt lgkmcnt(0)
    v_cmp_le_u32 vcc, {target}, v{vtmp}
    s_cbranch_vccz {L}""")

def spin_land(sreg, vtmp, extra=""):
    L = lbl("L_sl")
    e(f"""{L}:
    ds_read_b32 v{vtmp}, v1 offset:{O_LAND}
    {extra}
    s_waitcnt lgkmcnt(0)
    v_cmp_le_i32 vcc, s{sreg}, v{vtmp}
    s_cbranch_vccz {L}""")

def tag_check(regs, acc, first):
    T = [sT0, sT1, sT2, sT3]
    for k in range(4):
        if first and k == 0:
            e(f"v_xor_b32 v{acc}, s{T[0]}, v{regs}")
        else:
            e(f"v_bitop3_b32 v{acc}, v{regs+k}, s{T[k]}, v{acc} bitop3:0xbe")
def tag_branch(acc, Lretry, toggle=False):
    Ld = lbl("L_ok")
    e(f"""
    v_and_b32 v{acc}, 0xff, v{acc}
    v_cmp_ne_u32 vcc, 0, v{acc}
    s_cbranch_vccz {Ld}
    {f's_xor_b32 s{sOFF}, s{sOFF}, s{sBOFF}' if toggle else ''}
    s_sub_u32 s{sCAP}, s{sCAP}, 1
    s_cbranch_scc0 {Lretry}
    s_mov_b32 s{sCAP}, 0
    {Ld}:""")
def tag_insert(regs, vff):
    T = [sT0, sT1, sT2, sT3]
    for k in range(4):
        e(f"v_bfi_b32 v{regs+k}, v{vff}, s{T[k]}, v{regs+k}")

def nonce_from_epoch():
    e(f"""
    s_add_u32 s{sT0}, s{sT0}, 0x01010101
    s_lshr_b32 s{sT1}, s{sT0}, 8
    s_lshr_b32 s{sT2}, s{sT0}, 16
    s_lshr_b32 s{sT3}, s{sT0}, 24
    """)

def srd(r, lo, hi, nbytes):
    pass

def reduce4_rows(x, t):
    e(f"""
    s_nop 1
    v_permlane32_swap_b32 v{x}, v{x+1}
    v_permlane32_swap_b32 v{x+2}, v{x+3}
    s_nop 0
    v_add_f32 v{x}, v{x}, v{x+1}
    v_add_f32 v{x+2}, v{x+2}, v{x+3}
    s_nop 1
    v_permlane16_swap_b32 v{x}, v{x+2}
    s_nop 0
    v_add_f32 v{x}, v{x}, v{x+2}
    """)
def dpp_add(x, rots):
    for r in rots:
        e(f"s_nop 1\nv_add_f32_dpp v{x}, v{x}, v{x} row_ror:{r} row_mask:0xf bank_mask:0xf")
def dpp_max(x, rots):
    for r in rots:
        e(f"s_nop 1\nv_max_f32_dpp v{x}, v{x}, v{x} row_ror:{r} row_mask:0xf bank_mask:0xf")
def rnd_bf16(x):
    e(f"v_cvt_pk_bf16_f32 v{x}, v{x}, v{x}\nv_and_b32 v{x}, 0xffff0000, v{x}")

def build():
    out.clear()
    stamp(0)
    G = cfg.win // 4
    nt = cfg.ntK
    e(f"""
    s_load_dwordx16 s[4:19], s[0:1], 0
    s_load_dwordx8 s[20:27], s[0:1], 64
    s_load_dwordx2 s[28:29], s[0:1], 96
    s_cmp_ge_u32 s2, 256
    s_cbranch_scc1 L_end
    v_lshrrev_b32 v1, 6, v0
    v_and_b32 v0, 63, v0
    v_readfirstlane_b32 s{sWAVE}, v1
    s_lshr_b32 s{sI}, s2, 3
    v_mov_b32 v1, {L_FL}
    v_mov_b32 v5, 0
    v_lshl_add_u32 v16, v0, 2, v1
    ds_write_b32 v16, v5
    """)
    if cfg.pf:
        e(f"""
        s_lshl_b32 s45, s{sI}, 3
        s_add_u32 s45, s45, s{sWAVE}
        s_cmp_eq_u32 s45, 6
        s_cbranch_scc0 L_nopf
        s_getpc_b64 s[46:47]
        L_pc:
        v_lshlrev_b32 v5, 7, v0
        v_add_u32 v6, 8192, v5
        v_min_u32 v5, L_codeend-L_pc-4, v5
        v_min_u32 v6, L_codeend-L_pc-4, v6
        global_load_dword v190, v5, s[46:47]
        global_load_dword v191, v6, s[46:47]
        L_nopf:""")
    e(f"""
    v_and_b32 v2, 15, v0
    v_lshrrev_b32 v3, 4, v0
    s_and_b32 s{sG}, s2, 7
    s_mul_i32 s44, s2, {cfg.rotmul}
    s_bfe_u32 s{sRS}, s44, 0x20002
    v_lshrrev_b32 v12, 3, v0
    v_and_b32 v13, 7, v0
    v_and_b32 v14, 1, v3
    v_lshlrev_b32 v14, 1, v14
    v_xor_b32 v13, v13, v14
    v_lshlrev_b32 v13, 4, v13
    v_lshl_add_u32 v10, v12, 13, v13
    v_xor_b32 v11, 64, v10
    s_and_b32 s45, s{sI}, 3
    s_lshl_b32 s45, s45, 20
    s_lshl_b32 s46, s{sG}, 10
    s_add_u32 s45, s45, s46
    s_lshr_b32 s46, s{sI}, 2
    s_lshl_b32 s46, s46, 7
    s_add_u32 s45, s45, s46
    s_sub_u32 s58, 0x400000, s45
    s_mov_b32 s59, 0x20000
    s_add_u32 s62, s{sRS}, 2
    s_and_b32 s62, s62, 3
    s_add_u32 s62, s62, 4
    s_lshl_b32 s62, s62, 14
    s_mov_b32 s47, 0
    s_mov_b32 s46, 0x10000
    v_add_u32 v16, {O_LAND}, v16
    v_mov_b32 v15, {1-G}
    s_cmp_lg_u32 s{sWAVE}, 0
    s_waitcnt lgkmcnt(0)
    s_barrier
    s_cbranch_scc1 L_notloader
    s_add_u32 s56, s10, s45
    s_addc_u32 s57, s11, 0
    """)
    estamp(1)
    def tile_loop(name):
        e(f"""
        s_add_u32 s63, s62, 16384
        {name}:
        s_waitcnt vmcnt({cfg.win-4})""")
        for p in range(4):
            e(f"""
            s_mov_b32 m0, s62
            s_add_u32 s62, s62, 1024
            buffer_load_dwordx4 v{10+(p&1)}, s[56:59], s47 offen {cfg.ntW} lds
            s_add_u32 s47, s47, s46""")
        e(f"""
        ds_write_b32 v16, v15
        v_add_u32 v15, 1, v15""")
        if cfg.early and name == "L_ldA":
            e(f"s_cmp_eq_u32 s47, 0x40000\ns_cbranch_scc0 L_es\ns_memrealtime s[84:85]\nL_es:")
        e(f"""
        s_cmp_lt_u32 s62, s63
        s_cbranch_scc1 {name}""")
    tile_loop("L_ldA")
    estamp(3)
    stamp(1)
    e("v_lshlrev_b32 v14, 8, v3")
    for p in range(4):
        e(f"v_add_u32 v17, {4*p}, v3\nv_xor_b32 v17, v17, v2\nv_lshl_add_u32 v{4+p}, v17, 4, v14")
    for a_ in range(2):
        e(f"v_add_u32 v17, {4*a_}, v3\nv_lshlrev_b32 v17, 1, v17\nv_xor_b32 v17, v17, v2\nv_lshl_add_u32 v{8+a_}, v17, 4, v14")
    e(f"""
    s_lshr_b32 s45, s{sI}, 4
    s_lshl_b32 s45, s45, 26
    s_lshl_b32 s46, s{sG}, 23
    s_add_u32 s45, s45, s46
    s_and_b32 s46, s{sI}, 15
    s_lshl_b32 s46, s46, 16
    s_add_u32 s45, s45, s46
    s_add_u32 s45, s45, {28672*256}
    s_mov_b32 s50, 0x10000
    s_mov_b32 s51, 0x20000
    s_mov_b32 s54, 0x10000
    s_mov_b32 s55, 0x20000
    s_add_u32 s48, s6, s45
    s_addc_u32 s49, s7, 0
    s_add_u32 s52, s8, s45
    s_addc_u32 s53, s9, 0
    s_and_b32 s44, s44, 15
    s_add_u32 s62, s{sRS}, 3
    s_and_b32 s62, s62, 3
    s_add_u32 s62, s62, 4
    s_lshl_b32 s62, s62, 14
    s_mov_b32 s47, 0
    s_cmp_lt_u32 s{sI}, 28
    s_cbranch_scc0 L_ld_now1
    s_cmp_lt_u32 s{sI}, 14
    s_cbranch_scc0 L_ld_w2
    s_and_b32 s45, s2, 3
    s_mul_i32 s45, s45, {128*3584}
    s_lshr_b32 s46, s2, 2
    s_lshl_b32 s46, s46, 7
    s_add_u32 s45, s45, s46
    s_add_u32 s56, s16, s45
    s_addc_u32 s57, s17, 0
    v_mul_u32_u24 v10, 3584, v12
    v_add_u32 v10, v10, v13
    s_mov_b32 s46, {8*3584}
    s_branch L_ld_B
    L_ld_w2:
    s_sub_u32 s45, s{sI}, 14
    s_lshl_b32 s45, s45, 17
    s_lshl_b32 s46, s{sG}, 7
    s_add_u32 s45, s45, s46
    s_add_u32 s56, s20, s45
    s_addc_u32 s57, s21, 0
    v_lshl_add_u32 v10, v12, 10, v13
    s_mov_b32 s46, 8192
    L_ld_B:
    s_sub_u32 s58, {512*1792*2}, s45
    v_xor_b32 v11, 64, v10
    """)
    tile_loop("L_ldB1")
    e(f"""L_ld_now1:
    s_lshl_b32 s47, s44, 12
    s_mov_b32 s60, 0
    L_ldK:
    s_mov_b32 m0, s47
    s_add_u32 s60, s60, 1
    s_waitcnt vmcnt({cfg.win-4})
    buffer_load_dwordx4 v4, s[48:51], s47 offen {nt} lds
    buffer_load_dwordx4 v5, s[48:51], s47 offen offset:1024 {nt} lds
    buffer_load_dwordx4 v6, s[48:51], s47 offen offset:2048 {nt} lds
    buffer_load_dwordx4 v7, s[48:51], s47 offen offset:3072 {nt} lds
    ds_write_b32 v16, v15
    v_add_u32 v15, 1, v15
    s_add_u32 s47, s47, 4096
    s_and_b32 s47, s47, 0xffff
    s_cmp_lt_u32 s60, 16
    s_cbranch_scc1 L_ldK
    """)
    stamp(2)
    e(f"""L_ld_now2:
    s_mov_b32 s60, 0
    s_and_b32 s61, s44, 3
    L_ldV:
    s_lshr_b32 s47, s60, 2
    s_add_u32 s47, s47, s{sRS}
    s_and_b32 s47, s47, 3
    s_lshl_b32 s47, s47, 2
    s_add_u32 s62, s61, s60
    s_and_b32 s62, s62, 3
    s_add_u32 s47, s47, s62
    s_lshl_b32 s47, s47, 12
    s_add_u32 s62, s47, {L_V}
    s_mov_b32 m0, s62
    s_cmp_eq_u32 s60, 8
    s_cbranch_scc0 L_ldV_go
    """)
    spin_ge(1, F_T, 2, 17)
    e(f"""L_ldV_go:
    s_add_u32 s60, s60, 1
    s_waitcnt vmcnt({cfg.win-4})
    buffer_load_dwordx4 v8, s[52:55], s47 offen {nt} lds
    buffer_load_dwordx4 v9, s[52:55], s47 offen offset:1024 {nt} lds
    buffer_load_dwordx4 v8, s[52:55], s47 offen offset:2048 {nt} lds
    buffer_load_dwordx4 v9, s[52:55], s47 offen offset:3072 {nt} lds
    ds_write_b32 v16, v15
    v_add_u32 v15, 1, v15
    s_cmp_lt_u32 s60, 16
    s_cbranch_scc1 L_ldV
    """)
    e(f"v_lshlrev_b32 v14, 10, v3")
    e(f"v_lshlrev_b32 v17, 1, v3\nv_xor_b32 v17, v17, v2\nv_lshl_add_u32 v10, v17, 4, v14\nv_xor_b32 v11, 128, v10")
    e(f"""
    s_lshl_b32 s45, s{sG}, 19
    s_lshr_b32 s46, s{sI}, 2
    s_lshl_b32 s46, s46, 16
    s_add_u32 s45, s45, s46
    s_and_b32 s46, s{sI}, 3
    s_lshl_b32 s46, s46, 8
    s_add_u32 s45, s45, s46
    s_add_u32 s56, s12, s45
    s_addc_u32 s57, s13, 0
    s_sub_u32 s58, 0x400000, s45
    s_mov_b32 s62, {L_WO}
    s_mov_b32 s47, 0
    L_ldWO:
    s_waitcnt vmcnt({cfg.win-4})""")
    for p in range(4):
        e(f"""
        s_mov_b32 m0, s62
        s_add_u32 s62, s62, 1024
        buffer_load_dwordx4 v{10+(p>>1)}, s[56:59], s47 offen {cfg.ntW} lds
        s_add_u32 s47, s47, 4096""")
    e(f"""
    ds_write_b32 v16, v15
    v_add_u32 v15, 1, v15
    s_cmp_lt_u32 s47, 0x10000
    s_cbranch_scc1 L_ldWO""")
    stamp(3)
    for k in range(G-1, -1, -1):
        e(f"s_waitcnt vmcnt({4*k})\nds_write_b32 v16, v15\nv_add_u32 v15, 1, v15")
        if k == 4: stamp(4)
    stamp(5)
    stamps_out(6)
    e("s_endpgm")

    e(f"""L_notloader:
    s_load_dword s{sT0}, s[28:29], 0
    s_setprio 1
    s_lshl_b32 s{sSLOT}, s{sG}, 5
    s_add_u32 s{sSLOT}, s{sSLOT}, s{sI}
    s_mov_b32 s{sCAP}, {SPIN_CAP}
    s_cmp_lt_u32 s{sI}, 28
    s_cselect_b32 s{sVB}, 24, 20
    v_mov_b32 v4, 0xff
    s_mov_b32 s{SRD_WS}, s28
    s_mov_b32 s{SRD_WS+1}, s29
    s_mov_b32 s{SRD_WS+2}, {WS_BYTES}
    s_mov_b32 s{SRD_WS+3}, 0x20000
    s_mov_b32 s{sOFF}, 0
    s_mov_b32 s{sBOFF}, {B_OFF}
    s_cmp_ge_u32 s{sWAVE}, 3
    s_cbranch_scc1 L_compute
    """)
    e(f"""
    s_cmp_eq_u32 s{sWAVE}, 1
    s_cbranch_scc0 L_roleB
    s_mov_b32 s44, 0
    s_and_b32 s53, s{sI}, 3
    s_lshl_b32 s52, s{sSLOT}, 9
    s_add_u32 s52, s52, {W_QP}
    s_add_u32 s54, s{sRS}, 2
    s_mov_b32 s55, {L_ACTA}
    s_mov_b32 s45, 4
    s_branch L_tilecommon
    L_roleB:
    s_add_u32 s54, s{sRS}, 3
    s_mov_b32 s55, {L_ACTB}
    s_cmp_lt_u32 s{sI}, 14
    s_cbranch_scc0 L_roleB2
    s_mov_b32 s44, 0
    s_and_b32 s53, s2, 3
    s_lshl_b32 s52, s2, 9
    s_add_u32 s52, s52, {W_HP}
    s_mov_b32 s45, 8
    s_branch L_tilecommon
    L_roleB2:
    s_cmp_lt_u32 s{sI}, 28
    s_cselect_b32 s44, 1, 2
    s_sub_u32 s53, s{sI}, 14
    s_min_u32 s53, s53, 13
    s_sub_u32 s52, s2, 112
    s_lshl_b32 s52, s52, 9
    s_add_u32 s52, s52, {W_FP}
    s_mov_b32 s45, 8
    L_tilecommon:
    s_and_b32 s54, s54, 3
    s_lshl_b32 s54, s54, 14
    s_add_u32 s54, s54, {L_V}
    s_cmp_eq_u32 s44, 0
    s_cbranch_scc0 L_nox
    v_lshlrev_b32 v5, 5, v0
    global_load_dwordx4 v[8:11], v5, s[4:5]
    global_load_dwordx4 v[12:15], v5, s[4:5] offset:16
    L_nox:
    """)
    estamp(2)
    stamp(1)
    e(f"""
    v_lshrrev_b32 v5, 2, v2
    v_lshl_add_u32 v5, v3, 3, v5
    v_lshlrev_b32 v5, 7, v5
    v_and_b32 v6, 3, v2
    v_lshl_add_u32 v5, v6, 3, v5
    v_add_u32 v5, s54, v5
    v_lshrrev_b32 v6, 3, v2
    v_and_b32 v7, 1, v3
    v_lshl_or_b32 v6, v7, 1, v6
    """)
    for u in range(4):
        e(f"v_xor_b32 v7, {u}, v6\nv_lshl_add_u32 v{16+u}, v7, 5, v5")
    e(f"""
    v_and_b32 v5, 1, v0
    v_mul_u32_u24 v5, 288, v5
    v_lshl_add_u32 v5, v3, 4, v5
    v_add_u32 v20, s55, v5
    v_mov_b32 v21, 1
    s_waitcnt lgkmcnt(0)
    """)
    nonce_from_epoch()
    e(f"""
    s_cmp_eq_u32 s44, 0
    s_cbranch_scc0 L_noLN
    """)
    e("s_waitcnt vmcnt(0)")
    estamp(4)
    for k in range(8):
        e(f"v_lshlrev_b32 v{24+2*k}, 16, v{8+k}\nv_and_b32 v{25+2*k}, 0xffff0000, v{8+k}")
    e("v_pk_add_f32 v[40:41], v[24:25], v[26:27]")
    for k in range(2, 8):
        e(f"v_pk_add_f32 v[40:41], v[40:41], v[{24+2*k}:{25+2*k}]")
    e("v_add_f32 v40, v40, v41")
    dpp_add(40, (8, 4, 2, 1))
    e("v_mov_b32 v41, v40\ns_nop 1\nv_permlane16_swap_b32 v40, v41\ns_nop 0\nv_add_f32 v40, v40, v41")
    e("v_mul_f32 v40, 0xbb000000, v40\nv_mov_b32 v41, v40")
    e("v_pk_add_f32 v[42:43], v[24:25], v[40:41]\nv_pk_mul_f32 v[44:45], v[42:43], v[42:43]")
    for k in range(1, 8):
        e(f"v_pk_add_f32 v[42:43], v[{24+2*k}:{25+2*k}], v[40:41]\nv_pk_fma_f32 v[44:45], v[42:43], v[42:43], v[44:45]")
    e("v_add_f32 v44, v44, v45")
    dpp_add(44, (8, 4, 2, 1))
    e("v_mov_b32 v45, v44\ns_nop 1\nv_permlane16_swap_b32 v44, v45\ns_nop 0\nv_add_f32 v44, v44, v45")
    e("v_mul_f32 v44, 0x3b000000, v44")
    rnd_bf16(44)
    e("v_add_f32 v44, 0x3727c5ac, v44")
    rnd_bf16(44)
    e("v_sqrt_f32 v44, v44\ns_nop 0")
    rnd_bf16(44)
    e("v_rcp_f32 v44, v44")
    rnd_bf16(40)
    e("v_mov_b32 v41, v40\nv_mov_b32 v45, v44")
    for k in range(8):
        e(f"v_pk_add_f32 v[42:43], v[{24+2*k}:{25+2*k}], v[40:41]")
        e(f"v_cvt_pk_bf16_f32 v42, v42, v43\nv_and_b32 v43, 0xffff0000, v42\nv_lshlrev_b32 v42, 16, v42")
        e(f"v_pk_mul_f32 v[42:43], v[42:43], v[44:45]\nv_cvt_pk_bf16_f32 v{8+k}, v42, v43")
    e(f"""
    v_bfe_u32 v5, v0, 3, 2
    v_lshrrev_b32 v6, 5, v0
    v_mul_u32_u24 v6, 288, v6
    v_and_b32 v7, 7, v0
    v_lshl_add_u32 v6, v7, 5, v6
    v_add_u32 v6, s55, v6
    v_cmp_eq_u32 vcc, s53, v5
    s_and_saveexec_b64 s[56:57], vcc
    ds_write_b128 v6, v[8:11]
    ds_write_b128 v6, v[12:15] offset:16
    s_mov_b64 exec, -1
    L_noLN:
    """)
    stamp(2)
    e(f"""
    s_cmp_eq_u32 s44, 2
    s_cbranch_scc1 L_notile
    """)
    spin_land(45, 5)
    estamp(5)
    for u in range(4):
        for t in range(4):
            r = 64 + 16*u + 4*t
            e(f"ds_read_b64_tr_b16 v[{r}:{r+1}], v{16+u} offset:{t*4096}")
            e(f"ds_read_b64_tr_b16 v[{r+2}:{r+3}], v{16+u} offset:{t*4096+512}")
    e(f"""
    s_waitcnt lgkmcnt(0)
    L_notile:
    """)
    flag_add(1, F_T, 21)
    stamp(3)
    e(f"""
    s_cmp_eq_u32 s44, 1
    s_cbranch_scc0 L_noH
    """)
    e(f"""
    v_bfe_u32 v5, v0, 4, 1
    v_lshlrev_b32 v5, 11, v5
    v_lshrrev_b32 v6, 5, v0
    v_lshl_add_u32 v5, v6, 8, v5
    v_lshl_add_u32 v5, v2, 4, v5
    s_lshl_b32 s56, s53, 12
    s_add_u32 s56, s56, {W_HP}
    v_add_u32 v5, s56, v5
    v_and_b32 v7, 31, v0
    v_lshlrev_b32 v7, 3, v7
    s_lshl_b32 s56, s53, 8
    v_add_u32 v22, s56, v7
    global_load_dwordx2 v[22:23], v22, s[18:19]
    v_mul_u32_u24 v6, 288, v6
    v_add3_u32 v6, v6, v7, s55
    s_mov_b32 s45, {cfg.hgate}
    """)
    spin_land(45, 7)
    e("L_hretry:")
    for k in range(4):
        e(f"buffer_load_dwordx4 v[{24+4*k}:{27+4*k}], v5, s[{SRD_WS}:{SRD_WS+3}], 0 offen offset:{512*k} sc1")
    e("s_waitcnt vmcnt(0)")
    for k in range(4): tag_check(24+4*k, 7, k == 0)
    tag_branch(7, "L_hretry")
    for k in range(16): e(f"v_and_b32 v{24+k}, 0xffffff00, v{24+k}")
    e("""
    v_pk_add_f32 v[24:25], v[24:25], v[28:29]
    v_pk_add_f32 v[26:27], v[26:27], v[30:31]
    v_pk_add_f32 v[32:33], v[32:33], v[36:37]
    v_pk_add_f32 v[34:35], v[34:35], v[38:39]
    v_pk_add_f32 v[24:25], v[24:25], v[32:33]
    v_pk_add_f32 v[26:27], v[26:27], v[34:35]
    v_cvt_pk_bf16_f32 v24, v24, v25
    v_cvt_pk_bf16_f32 v26, v26, v27
    v_and_b32 v25, 0xffff0000, v24
    v_lshlrev_b32 v24, 16, v24
    v_and_b32 v27, 0xffff0000, v26
    v_lshlrev_b32 v26, 16, v26
    v_lshlrev_b32 v28, 16, v22
    v_and_b32 v29, 0xffff0000, v22
    v_lshlrev_b32 v30, 16, v23
    v_and_b32 v31, 0xffff0000, v23
    v_pk_add_f32 v[24:25], v[24:25], v[28:29]
    v_pk_add_f32 v[26:27], v[26:27], v[30:31]
    v_cvt_pk_bf16_f32 v24, v24, v25
    v_cvt_pk_bf16_f32 v26, v26, v27
    v_and_b32 v25, 0xffff0000, v24
    v_lshlrev_b32 v24, 16, v24
    v_and_b32 v27, 0xffff0000, v26
    v_lshlrev_b32 v26, 16, v26
    v_max_f32 v24, 0, v24
    v_max_f32 v25, 0, v25
    v_max_f32 v26, 0, v26
    v_max_f32 v27, 0, v27
    v_pk_mul_f32 v[24:25], v[24:25], v[24:25]
    v_pk_mul_f32 v[26:27], v[26:27], v[26:27]
    v_cvt_pk_bf16_f32 v24, v24, v25
    v_cvt_pk_bf16_f32 v25, v26, v27
    ds_write_b64 v6, v[24:25]
    L_noH:
    s_cmp_eq_u32 s44, 2
    s_cbranch_scc1 L_nopub
    """)
    e("s_waitcnt lgkmcnt(0)")
    for t in range(4):
        e(f"ds_read_b128 v[{24+4*t}:{27+4*t}], v20 offset:{64*t}")
    e(f"""
    v_and_b32 v5, 1, v0
    v_lshlrev_b32 v5, 8, v5
    v_bfe_u32 v6, v0, 1, 2
    v_lshl_add_u32 v5, v6, 6, v5
    v_lshl_add_u32 v5, v3, 4, v5
    v_add_u32 v5, s52, v5
    v_and_b32 v6, 2, v0
    v_cmp_ne_u32 s[56:57], 0, v6
    v_and_b32 v6, 4, v0
    v_cmp_ne_u32 s[58:59], 0, v6
    s_waitcnt lgkmcnt(0)
    """)
    for t in range(4):
        for u in range(4):
            r = 64 + 16*u + 4*t
            c = f"v[{40+4*u}:{43+4*u}]"
            e(f"v_mfma_f32_16x16x32_bf16 {c}, v[{r}:{r+3}], v[{24+4*t}:{27+4*t}], {c if t else 0}")
    e("s_nop 7")
    for k in range(4):
        e(f"v_cndmask_b32 v{40+k}, v{40+k}, v{44+k}, s[56:57]")
    for k in range(4):
        e(f"v_cndmask_b32 v{48+k}, v{48+k}, v{52+k}, s[56:57]")
    for k in range(4):
        e(f"v_cndmask_b32 v{40+k}, v{40+k}, v{48+k}, s[58:59]")
    tag_insert(40, 4)
    e(f"""
    s_mov_b32 s56, 0x00ff00ff
    s_mov_b32 s57, 0x00ff00ff
    s_mov_b64 exec, s[56:57]
    s_cmp_eq_u32 s{sWAVE}, 1
    s_cbranch_scc0 L_pubB
    buffer_store_dwordx4 v[40:43], v5, s[{SRD_WS}:{SRD_WS+3}], 0 offen
    v_add_u32 v5, {B_OFF}, v5
    L_pubB:
    buffer_store_dwordx4 v[40:43], v5, s[{SRD_WS}:{SRD_WS+3}], 0 offen sc1
    s_mov_b64 exec, -1
    L_nopub:
    """)
    stamp(4)
    e(f"""
    s_cmp_eq_u32 s{sWAVE}, 1
    s_cbranch_scc0 L_final
    """)
    e(f"""
    v_lshlrev_b32 v5, 11, v3
    v_lshl_add_u32 v5, v2, 4, v5
    s_lshl_b32 s56, s{sG}, 14
    s_lshr_b32 s57, s{sI}, 4
    s_lshl_b32 s57, s57, 8
    s_add_u32 s56, s56, s57
    s_add_u32 s56, s56, {W_QP}
    v_add_u32 v5, s56, v5
    v_add_u32 v6, 8192, v5
    v_lshrrev_b32 v8, 5, v0
    v_lshlrev_b32 v8, 5, v8
    v_lshl_add_u32 v8, v0, 3, v8
    v_add_u32 v8, {L_QS}, v8
    s_sub_u32 s45, s{sKEND}, {cfg.qlead}
    """)
    spin_land(45, 7)
    e("L_qretry:")
    for v in range(2):
        for k in range(4):
            r = 24 + 16*v + 4*k
            e(f"buffer_load_dwordx4 v[{r}:{r+3}], v{5+v}, s[{SRD_WS}:{SRD_WS+3}], s{sOFF} offen offset:{512*k} {cfg.ldA}")
    e("s_waitcnt vmcnt(0)")
    for k in range(8): tag_check(24+4*k, 7, k == 0)
    tag_branch(7, "L_qretry", toggle=True)
    for k in range(32): e(f"v_and_b32 v{24+k}, 0xffffff00, v{24+k}")
    for v in range(2):
        r = 24 + 16*v
        e(f"""
        v_pk_add_f32 v[{r}:{r+1}], v[{r}:{r+1}], v[{r+4}:{r+5}]
        v_pk_add_f32 v[{r+2}:{r+3}], v[{r+2}:{r+3}], v[{r+6}:{r+7}]
        v_pk_add_f32 v[{r+8}:{r+9}], v[{r+8}:{r+9}], v[{r+12}:{r+13}]
        v_pk_add_f32 v[{r+10}:{r+11}], v[{r+10}:{r+11}], v[{r+14}:{r+15}]
        v_pk_add_f32 v[{r}:{r+1}], v[{r}:{r+1}], v[{r+8}:{r+9}]
        v_pk_add_f32 v[{r+2}:{r+3}], v[{r+2}:{r+3}], v[{r+10}:{r+11}]
        v_cvt_pk_bf16_f32 v{r}, v{r}, v{r+1}
        v_cvt_pk_bf16_f32 v{r+1}, v{r+2}, v{r+3}
        ds_write_b64 v8, v[{r}:{r+1}] offset:{576*v}
        """)
    flag_set(1, F_Q, 21)
    stamp(5)
    e(f"""
    v_and_b32 v5, 31, v0
    v_lshlrev_b32 v9, 2, v5
    v_add_u32 v9, {L_WT}, v9
    v_lshlrev_b32 v5, 7, v5
    s_lshl_b32 s56, s{sG}, 12
    s_lshr_b32 s57, s{sI}, 3
    s_lshl_b32 s57, s57, 4
    s_add_u32 s56, s56, s57
    s_add_u32 s56, s56, {W_ST}
    v_add_u32 v5, s56, v5
    s_add_u32 s45, s{sVB}, {cfg.slead}
    """)
    spin_land(45, 7)
    e(f"""L_sretry:
    buffer_load_dwordx4 v[24:27], v5, s[{SRD_WS}:{SRD_WS+3}], s{sOFF} offen {cfg.ldA}
    s_waitcnt vmcnt(0)
    """)
    tag_check(24, 7, True)
    tag_branch(7, "L_sretry", toggle=True)
    e(f"""
    s_getreg_b32 s56, hwreg(HW_REG_XCC_ID, 0, 4)
    v_lshrrev_b32 v26, 8, v26
    v_cmp_ne_u32 vcc, s56, v26
    v_and_b32 v24, 0xffffff00, v24
    v_and_b32 v25, 0xffffff00, v25
    v_mov_b32 v28, v24
    s_cmp_eq_u64 vcc, 0
    s_cselect_b32 s57, 1, {B_OFF}+1
    v_mov_b32 v29, s57
    """)
    dpp_max(28, (8, 4, 2, 1))
    e(f"""
    v_sub_f32 v24, v24, v28
    v_mul_f32 v24, {LOG2E}, v24
    v_exp_f32 v24, v24
    s_nop 0
    v_mul_f32 v25, v24, v25
    """)
    dpp_add(25, (8, 4, 2, 1))
    e(f"""
    v_rcp_f32 v25, v25
    s_nop 0
    v_mul_f32 v24, v24, v25
    ds_write_b32 v9, v24
    """)
    flag_set(1, F_W, 29)
    stamp(6)
    stamps_out(7)
    e("s_endpgm")

    e(f"""L_final:
    s_lshr_b32 s56, s{sI}, 3
    s_lshl_b32 s56, s56, 3
    s_add_u32 s56, s56, s{sG}
    s_lshl_b32 s56, s56, 3
    s_and_b32 s57, s{sI}, 7
    s_add_u32 s56, s56, s57          ; Q
    s_lshr_b32 s57, s56, 7           ; b_f
    s_and_b32 s58, s56, 127          ; nq
    v_and_b32 v5, 1, v3
    v_lshlrev_b32 v5, 1, v5
    v_lshrrev_b32 v6, 1, v3
    v_or_b32 v5, v5, v6              ; e(R)
    v_lshlrev_b32 v5, 1, v5
    s_lshl_b32 s59, s58, 3
    v_add_u32 v6, s59, v5
    global_load_ushort v10, v6, s[22:23]
    s_lshl_b32 s59, s56, 3
    v_add_u32 v8, s59, v5
    global_load_ushort v11, v8, s[4:5]
    s_lshr_b32 s59, s58, 4           ; ctile8
    s_lshl_b32 s59, s59, 9
    s_lshl_b32 s60, s57, 8
    s_add_u32 s59, s59, s60
    s_and_b32 s60, s58, 15
    s_lshl_b32 s60, s60, 4
    s_add_u32 s59, s59, s60
    s_add_u32 s59, s59, {W_FP}
    v_min_u32 v5, 13, v0
    v_lshlrev_b32 v5, 12, v5
    v_add_u32 v5, s59, v5
    s_lshr_b32 s59, s58, 5           ; ctile
    s_lshl_b32 s59, s59, 10
    s_lshl_b32 s60, s57, 9
    s_add_u32 s59, s59, s60
    s_and_b32 s60, s58, 31
    s_lshl_b32 s60, s60, 4
    s_add_u32 s59, s59, s60
    s_add_u32 s59, s59, {W_SP}
    v_lshlrev_b32 v6, 12, v0
    v_add_u32 v6, s59, v6
    v_cmp_gt_u32 s[60:61], 14, v0
    s_mov_b32 s64, s24
    s_mov_b32 s65, s25
    s_mov_b32 s66, 2048
    s_mov_b32 s67, 0x20000
    s_add_u32 s45, s{sVB}, {cfg.flead}
    """)
    spin_land(45, 7)
    e(f"""L_fretry:
    buffer_load_dwordx4 v[24:27], v5, s[{SRD_WS}:{SRD_WS+3}], 0 offen sc1
    s_waitcnt vmcnt(0)
    """)
    tag_check(24, 7, True)
    tag_branch(7, "L_fretry")
    for k in range(4):
        e(f"v_and_b32 v{24+k}, 0xffffff00, v{24+k}")
    for k in range(4):
        e(f"v_cndmask_b32 v{24+k}, 0, v{24+k}, s[60:61]")
    reduce4_rows(24, 28)
    dpp_add(24, (8, 4, 2, 1))
    rnd_bf16(24)
    e("v_lshlrev_b32 v10, 16, v10\nv_add_f32 v24, v24, v10")
    rnd_bf16(24)
    e(f"""
    v_mul_f32 v25, 0xbfb8aa3b, v24
    v_exp_f32 v25, v25
    s_nop 0
    v_add_f32 v25, 1.0, v25
    v_rcp_f32 v25, v25
    s_nop 0
    v_mul_f32 v12, v24, v25
    """)
    rnd_bf16(12)
    e("v_lshlrev_b32 v11, 16, v11")
    stamp(5)
    spin_ge(1, F_O, 4, 7)
    e(f"""L_3retry:
    buffer_load_dwordx4 v[24:27], v6, s[{SRD_WS}:{SRD_WS+3}], 0 offen sc1
    s_waitcnt vmcnt(0)
    """)
    tag_check(24, 7, True)
    tag_branch(7, "L_3retry")
    stamp(6)
    for k in range(4):
        e(f"v_and_b32 v{24+k}, 0xffffff00, v{24+k}")
    reduce4_rows(24, 28)
    dpp_add(24, (8, 4, 2, 1))
    rnd_bf16(24)
    e("v_mul_f32 v24, v24, v12")
    rnd_bf16(24)
    e(f"""
    v_add_f32 v24, v24, v11
    v_cvt_pk_bf16_f32 v24, v24, v24
    s_mov_b32 s56, 0x00010001
    s_mov_b32 s57, 0x00010001
    s_mov_b64 exec, s[56:57]
    buffer_store_short v24, v8, s[64:67], 0 offen
    s_cmp_eq_u32 s2, 0
    s_cbranch_scc0 L_fin2
    s_mov_b64 exec, 1
    v_mov_b32 v25, s{sT0}
    v_mov_b32 v26, 0
    buffer_store_dword v25, v26, s[{SRD_WS}:{SRD_WS+3}], 0 offen sc1
    L_fin2:
    """)
    stamp(7)
    stamps_out(8)
    e("s_endpgm")

    sW = 44
    e(f"""L_compute:
    s_sub_u32 s{sW}, s{sWAVE}, 3
    """)
    for r in range(64, 128): e(f"v_mov_b32 v{r}, 0")
    e(f"""
    s_lshl_b32 s45, s{sW}, 14
    v_lshlrev_b32 v5, 8, v2
    v_add_u32 v5, s45, v5
    v_xor_b32 v6, v3, v2
    """)
    for t in range(4):
        e(f"v_xor_b32 v7, {4*t}, v6\nv_lshl_add_u32 v{8+t}, v7, 4, v5")
    e(f"""
    v_and_b32 v13, 3, v2
    v_mul_u32_u24 v12, 288, v13
    v_lshl_add_u32 v12, v3, 4, v12
    v_add_u32 v12, {L_QS}, v12
    """)
    e(f"""
    v_lshl_add_u32 v15, v3, 2, v13
    v_lshlrev_b32 v15, 4, v15
    v_add_u32 v15, {L_PB}, v15
    v_lshrrev_b32 v5, 3, v2
    v_lshl_add_u32 v14, v5, 8, v15
    v_bfe_u32 v5, v2, 2, 1
    v_lshl_add_u32 v14, v5, 3, v14
    s_lshl_b32 s45, s{sW}, 9
    v_add_u32 v14, s45, v14
    v_lshlrev_b32 v17, 3, v13
    v_add_u32 v17, {L_SB}, v17
    s_lshl_b32 s45, s{sW}, 5
    v_add_u32 v16, s45, v17
    """)
    e(f"""
    v_lshrrev_b32 v5, 2, v2
    v_and_b32 v6, 1, v3
    v_lshl_add_u32 v6, v6, 2, v5
    s_lshl_b32 s45, s{sW}, 1
    v_xor_b32 v6, s45, v6
    v_lshlrev_b32 v7, 3, v13
    v_lshl_add_u32 v22, v6, 5, v7
    v_xor_b32 v23, 32, v22
    v_lshl_add_u32 v6, v3, 2, v5
    v_lshlrev_b32 v6, 8, v6
    v_add_u32 v6, {L_V}, v6
    v_add_u32 v18, v6, v22
    v_add_u32 v19, v6, v23
    v_lshl_add_u32 v6, v3, 3, v5
    v_lshlrev_b32 v6, 8, v6
    v_add_u32 v6, {L_WO}, v6
    v_add_u32 v20, v6, v22
    v_add_u32 v21, v6, v23
    """)
    e(f"""
    s_lshl_b32 s45, s{sW}, 7
    v_lshl_add_u32 v5, v3, 4, s45
    s_lshl_b32 s46, s{sSLOT}, 11
    s_add_u32 s46, s46, {W_OP}
    v_lshl_add_u32 v22, v13, 9, v5
    v_bfe_u32 v6, v2, 2, 1
    v_lshl_add_u32 v22, v6, 6, v22
    v_add_u32 v22, s46, v22
    s_lshl_b32 s46, s{sSLOT}, 10
    s_add_u32 s46, s46, {W_SP}
    v_and_b32 v6, 1, v2
    v_lshl_add_u32 v23, v6, 9, v5
    v_lshlrev_b32 v28, 7, v6
    v_lshl_add_u32 v28, v3, 4, v28
    v_add_u32 v28, {L_OB}, v28
    v_bfe_u32 v6, v2, 1, 1
    v_lshl_add_u32 v23, v6, 6, v23
    v_add_u32 v23, s46, v23
    s_lshr_b32 s45, s{sW}, 1          ; b'
    s_and_b32 s46, s{sW}, 1           ; dsub
    s_lshl_b32 s47, s{sG}, 16
    s_lshl_b32 s48, s45, 15
    s_add_u32 s47, s47, s48
    s_lshr_b32 s48, s{sI}, 2
    s_lshl_b32 s48, s48, 8
    s_add_u32 s47, s47, s48
    s_lshl_b32 s48, s46, 7
    s_add_u32 s47, s47, s48
    s_add_u32 s47, s47, {W_OP}
    v_lshrrev_b32 v5, 3, v0
    v_and_b32 v6, 7, v0
    v_lshlrev_b32 v24, 11, v5
    v_lshl_add_u32 v24, v6, 4, v24
    v_add_u32 v24, s47, v24
    v_add_u32 v25, 16384, v24
    s_lshl_b32 s47, s45, 6
    s_add_u32 s47, s47, {L_WT}
    v_lshl_add_u32 v26, v5, 2, s47
    v_and_b32 v5, 1, v3
    v_lshlrev_b32 v5, 1, v5
    v_lshrrev_b32 v7, 1, v3
    v_or_b32 v5, v5, v7
    v_lshl_add_u32 v5, v6, 2, v5
    s_lshl_b32 s47, s45, 7
    s_lshl_b32 s48, s46, 6
    s_add_u32 s47, s47, s48
    s_add_u32 s47, s47, {L_OB}
    v_lshl_add_u32 v27, v5, 1, s47
    s_lshl_b32 s47, s{sSLOT}, 7
    s_add_u32 s47, s47, {W_ST}
    v_lshl_add_u32 v29, v13, 4, s47
    v_and_b32 v5, 4, v0
    v_cmp_ne_u32 s[50:51], 0, v5
    v_and_b32 v5, 2, v0
    v_cmp_ne_u32 s[52:53], 0, v5
    v_mov_b32 v30, 1
    s_waitcnt lgkmcnt(0)
    """)
    nonce_from_epoch()
    stamp(1)
    spin_land(sKEND, 6)
    spin_ge(1, F_Q, 1, 6)
    stamp(2)
    for tau in range(4):
        m = 0x000f000f << (4*tau)
        e(f"s_mov_b32 s54, {m:#x}\ns_mov_b32 s55, {m:#x}\ns_mov_b64 exec, s[54:55]")
        for t in range(4):
            r = 64 + 16*tau + 4*t
            e(f"ds_read_b128 v[{r}:{r+3}], v12 offset:{64*t}")
    e("s_mov_b64 exec, -1")
    for tau in range(4):
        for t in range(4):
            r = 128 + 16*tau + 4*t
            e(f"ds_read_b128 v[{r}:{r+3}], v{8+t} offset:{4096*tau}")
    for tau in range(4):
        for t in range(4):
            n = 4*tau + t
            r = 128 + 16*tau + 4*t; q = 64 + 16*tau + 4*t
            if not cfg.diag or True:
                e(f"s_waitcnt lgkmcnt({min(15-n, 15)})")
            e(f"v_mfma_f32_16x16x32_bf16 v[32:35], v[{r}:{r+3}], v[{q}:{q+3}], {'v[32:35]' if n else 0}")
    e(f"""
    s_mov_b32 s54, {SCALE:#x}
    s_mov_b32 s55, {LOG2E:#x}
    s_nop 5
    v_cvt_pk_bf16_f32 v32, v32, v33
    v_cvt_pk_bf16_f32 v34, v34, v35
    v_and_b32 v33, 0xffff0000, v32
    v_lshlrev_b32 v32, 16, v32
    v_and_b32 v35, 0xffff0000, v34
    v_lshlrev_b32 v34, 16, v34
    v_mul_f32 v32, s54, v32
    v_mul_f32 v33, s54, v33
    v_mul_f32 v34, s54, v34
    v_mul_f32 v35, s54, v35
    v_cvt_pk_bf16_f32 v32, v32, v33
    v_cvt_pk_bf16_f32 v34, v34, v35
    v_and_b32 v33, 0xffff0000, v32
    v_lshlrev_b32 v32, 16, v32
    v_and_b32 v35, 0xffff0000, v34
    v_lshlrev_b32 v34, 16, v34
    v_max_f32 v36, v32, v33
    v_max3_f32 v36, v34, v35, v36
    """)
    dpp_max(36, (8, 4))
    e("""
    v_mov_b32 v37, v36
    s_nop 1
    v_permlane16_swap_b32 v36, v37
    s_nop 0
    v_max_f32 v36, v36, v37
    v_mov_b32 v37, v36
    s_nop 1
    v_permlane32_swap_b32 v36, v37
    s_nop 0
    v_max_f32 v36, v36, v37
    v_sub_f32 v32, v32, v36
    v_sub_f32 v33, v33, v36
    v_sub_f32 v34, v34, v36
    v_sub_f32 v35, v35, v36
    v_mul_f32 v32, s55, v32
    v_mul_f32 v33, s55, v33
    v_mul_f32 v34, s55, v34
    v_mul_f32 v35, s55, v35
    v_exp_f32 v32, v32
    v_exp_f32 v33, v33
    v_exp_f32 v34, v34
    v_exp_f32 v35, v35
    v_add_f32 v37, v32, v33
    v_cvt_pk_bf16_f32 v32, v32, v33
    v_add_f32 v38, v34, v35
    v_cvt_pk_bf16_f32 v33, v34, v35
    v_add_f32 v37, v37, v38
    ds_write_b64 v14, v[32:33]
    """)
    dpp_add(37, (8, 4))
    e("""
    v_mov_b32 v38, v37
    s_nop 1
    v_permlane16_swap_b32 v37, v38
    s_nop 0
    v_add_f32 v37, v37, v38
    v_mov_b32 v38, v37
    s_nop 1
    v_permlane32_swap_b32 v37, v38
    s_nop 0
    v_add_f32 v37, v37, v38
    s_mov_b64 exec, 15
    ds_write_b64 v16, v[36:37]
    s_mov_b64 exec, -1
    """)
    flag_add(1, F_P, 30)
    for sp in range(4):
        e(f"""
        s_add_u32 s56, s{sRS}, {sp}
        s_and_b32 s56, s56, 3
        s_lshl_b32 s57, s56, 9
        v_add_u32 v{40+sp}, s57, v15
        s_lshl_b32 s57, s56, 5
        v_add_u32 v{44+sp}, s57, v17
        s_lshl_b32 s57, s56, 14
        v_add_u32 v{48+2*sp}, s57, v18
        v_add_u32 v{49+2*sp}, s57, v19
        """)
    spin_ge(1, F_P, 4, 6)
    for sp in range(4):
        e(f"ds_read_b64 v[{56+2*sp}:{57+2*sp}], v{44+sp}")
    for sp in range(4):
        for sg in range(2):
            r = 64 + 8*sp + 4*sg
            e(f"ds_read_b128 v[{r}:{r+3}], v{40+sp} offset:{256*sg}")
    e("""
    s_waitcnt lgkmcnt(8)
    v_max_f32 v32, v56, v58
    v_max3_f32 v32, v60, v62, v32
    v_sub_f32 v56, v56, v32
    v_sub_f32 v58, v58, v32
    v_sub_f32 v60, v60, v32
    v_sub_f32 v62, v62, v32
    v_mul_f32 v56, s55, v56
    v_mul_f32 v58, s55, v58
    v_mul_f32 v60, s55, v60
    v_mul_f32 v62, s55, v62
    v_exp_f32 v56, v56
    v_exp_f32 v58, v58
    v_exp_f32 v60, v60
    v_exp_f32 v62, v62
    v_mul_f32 v33, v56, v57
    v_fmac_f32 v33, v58, v59
    v_fmac_f32 v33, v60, v61
    v_fmac_f32 v33, v62, v63
    s_getreg_b32 s56, hwreg(HW_REG_XCC_ID, 0, 4)
    s_lshl_b32 s56, s56, 8
    v_mov_b32 v34, s56
    v_mov_b32 v35, 0
    """)
    e(f"s_cmp_eq_u32 s{sW}, 0\ns_cbranch_scc0 L_nostat")
    tag_insert(32, 4)
    e(f"""
    s_mov_b64 exec, 15
    buffer_store_dwordx4 v[32:35], v29, s[{SRD_WS}:{SRD_WS+3}], 0 offen
    buffer_store_dwordx4 v[32:35], v29, s[{SRD_WS}:{SRD_WS+3}], s{sBOFF} offen sc1
    s_mov_b64 exec, -1
    L_nostat:
    """)
    stamp(3)
    def fold(sp):
        for k in range(8):
            a = 96 + 8*sp + k
            if sp == 0: e(f"v_mul_f32 v{144+k}, v{56+2*sp}, v{a}")
            else: e(f"v_fmac_f32 v{144+k}, v{56+2*sp}, v{a}")
    for sp in range(4):
        e(f"s_add_u32 s58, s{sVB}, {4*(sp+1)}")
        spin_land(58, 6)
        if sp == 3: stamp(4)
        for sg in range(2):
            for ee in range(2):
                r = 128 + 8*sg + 4*ee
                e(f"ds_read_b64_tr_b16 v[{r}:{r+1}], v{48+2*sp+ee} offset:{8192*sg}")
                e(f"ds_read_b64_tr_b16 v[{r+2}:{r+3}], v{48+2*sp+ee} offset:{8192*sg+4096}")
        if sp > 0: fold(sp-1)
        for sg in range(2):
            for ee in range(2):
                r = 128 + 8*sg + 4*ee
                a = 96 + 8*sp + 4*ee
                p = 64 + 8*sp + 4*sg
                e(f"s_waitcnt lgkmcnt({6 - 2*(2*sg+ee)})" if not cfg.diag else "s_waitcnt lgkmcnt(0)")
                e(f"v_mfma_f32_16x16x32_bf16 v[{a}:{a+3}], v[{r}:{r+3}], v[{p}:{p+3}], {f'v[{a}:{a+3}]' if sg else 0}")
        if sp < 3: e("s_nop 2")
    e("s_nop 6")
    fold(3)
    for k in range(4):
        e(f"v_cndmask_b32 v{144+k}, v{144+k}, v{148+k}, s[50:51]")
    tag_insert(144, 4)
    e(f"""
    s_mov_b32 s56, 0x00ff00ff
    s_mov_b32 s57, 0x00ff00ff
    s_mov_b64 exec, s[56:57]
    buffer_store_dwordx4 v[144:147], v22, s[{SRD_WS}:{SRD_WS+3}], 0 offen
    buffer_store_dwordx4 v[144:147], v22, s[{SRD_WS}:{SRD_WS+3}], s{sBOFF} offen sc1
    s_mov_b64 exec, -1
    """)
    stamp(5)
    spin_ge(1, F_W, 1, 6, extra="ds_read_b32 v40, v26\nds_read_b32 v41, v26 offset:32")
    e(f"""
    v_readfirstlane_b32 s{sOFF}, v6
    s_add_u32 s58, s{sVB}, 20
    s_nop 2
    s_and_b32 s{sOFF}, s{sOFF}, -2
    buffer_load_dwordx4 v[32:35], v24, s[{SRD_WS}:{SRD_WS+3}], s{sOFF} offen {cfg.ldA}
    buffer_load_dwordx4 v[36:39], v25, s[{SRD_WS}:{SRD_WS+3}], s{sOFF} offen {cfg.ldA}
    """)
    spin_land(58, 6)
    for ee in range(2):
        for t in range(2):
            r = 64 + 8*ee + 4*t
            e(f"ds_read_b64_tr_b16 v[{r}:{r+1}], v{20+ee} offset:{8192*t}")
            e(f"ds_read_b64_tr_b16 v[{r+2}:{r+3}], v{20+ee} offset:{8192*t+1024}")
    e(f"""
    s_branch L_ochk
    L_oretry:
    buffer_load_dwordx4 v[32:35], v24, s[{SRD_WS}:{SRD_WS+3}], s{sOFF} offen {cfg.ldA}
    buffer_load_dwordx4 v[36:39], v25, s[{SRD_WS}:{SRD_WS+3}], s{sOFF} offen {cfg.ldA}
    L_ochk:
    s_waitcnt vmcnt(0)
    """)
    tag_check(32, 7, True); tag_check(36, 7, False)
    tag_branch(7, "L_oretry")
    stamp(6)
    for k in range(8): e(f"v_and_b32 v{32+k}, 0xffffff00, v{32+k}")
    for k in range(4): e(f"v_mul_f32 v{32+k}, v40, v{32+k}")
    for k in range(4): e(f"v_fmac_f32 v{32+k}, v41, v{36+k}")
    reduce4_rows(32, 36)
    dpp_add(32, (8,))
    e("""
    v_cvt_pk_bf16_f32 v32, v32, v32
    ds_write_b16 v27, v32
    """)
    flag_add(1, F_O, 30)
    spin_ge(1, F_O, 4, 6, extra="ds_read_b128 v[40:43], v28\nds_read_b128 v[44:47], v28 offset:64")
    for t in range(2):
        for ee in range(2):
            r = 64 + 8*ee + 4*t
            a = 32 + 4*ee
            e(f"v_mfma_f32_16x16x32_bf16 v[{a}:{a+3}], v[{r}:{r+3}], v[{40+4*t}:{43+4*t}], {f'v[{a}:{a+3}]' if t else 0}")
    e(f"""
    s_mov_b32 s56, 0x000f000f
    s_mov_b32 s57, 0x000f000f
    s_nop 5
    """)
    for k in range(4):
        e(f"v_cndmask_b32 v{32+k}, v{32+k}, v{36+k}, s[52:53]")
    tag_insert(32, 4)
    e(f"""
    s_mov_b64 exec, s[56:57]
    buffer_store_dwordx4 v[32:35], v23, s[{SRD_WS}:{SRD_WS+3}], 0 offen sc1
    """)
    stamp(7)
    stamps_out(8)
    e("L_end:\ns_endpgm\nL_codeend:")
    body = "\n".join(out)
    hdr = open("recurrent_scan__sliding_block_cached__dense_activation_squared_relu__decode.s.ref").read().split("; Override launch")[0]
    return f"""{hdr}; Single fused launch: 256 workgroups (one per CU) x 7 waves.
; @launch grid=(256,1,1) block=(448,1,1) lds={LDS_TOTAL}
.amdgcn_target "amdgcn-amd-amdhsa--gfx950"
.text
.globl {KNAME}
.p2align 8
.type {KNAME},@function
{KNAME}:
{body}
.section .rodata,"a"
.p2align 6
.amdhsa_kernel {KNAME}
  .amdhsa_next_free_vgpr 192
  .amdhsa_next_free_sgpr 102
  .amdhsa_accum_offset 192
  .amdhsa_group_segment_fixed_size 0
  .amdhsa_kernarg_size 104
  .amdhsa_user_sgpr_count 2
  .amdhsa_user_sgpr_kernarg_segment_ptr 1
  .amdhsa_system_sgpr_workgroup_id_x 1
.end_amdhsa_kernel
"""

if __name__ == "__main__":
    path = sys.argv[1]
    for a in sys.argv[2:]:
        k, v = a.split("=")
        cur = getattr(cfg, k)
        setattr(cfg, k, type(cur)(int(v)) if isinstance(cur, (bool, int)) else v.replace("+", " "))
    open(path, "w").write(build())
```

```python
import sys
KNAME = "recurrent_scan__sliding_block_cached__dense_activation_squared_relu__decode_kernel"

cfg_dbgsel = {6: [(0,0,1),(0,1,0),(1,2,1),(1,3,0),(2,4,0),(4,5,1),(4,6,0),(5,7,0)], 7: [(4,8,0),(5,9,0),(6,10,0)], 8: [(5,11,0),(6,12,1),(6,13,0),(7,14,0)]}
class Cfg:
    early = False
    ampw = -1
    ampk = 0
    ampg = -1
    dbg = False
    diag = False
    win = 20
    qlead = 10
    woe = 2
    slead = 8
    flead = 8
    hgate = 16
    ldA = 'sc1'
    pf = 1
    first = 'sc1'
    ntK = "nt"; ntW = "nt"
    rotmul = 1
cfg = Cfg()

L_K, L_V, L_WO = 0, 65536, 131072
SCR = 147456
L_QS = SCR
L_PB = SCR + 1152
L_SB = L_PB + 2048
L_WT = L_SB + 128
L_OB = L_WT + 128
L_ACTA = L_OB + 256
L_ACTB = L_ACTA + 576
L_FL = L_ACTB + 576
L_LAND = L_FL + 64
LDS_TOTAL = L_LAND + 256
F_Q, F_K, F_P, F_V, F_T, F_WO, F_W, F_O = [4*k for k in range(8)]
W_QP, W_ST, W_OP, B_OFF, W_SP, W_HP, W_FP = 0x10000, 0x30000, 0x40000, 0xC0000, 0x180000, 0x1C0000, 0x1D0000
WS_BYTES = 0x200000
SPIN_CAP = 20002
LOG2E = 0x3fb8aa3b
SCALE = 0x3db504f3

sWAVE, sG, sI, sNON = 30, 31, 32, 33
sT0, sT1, sT2, sT3 = 33, 34, 35, 40
SRD_WS = 36
sSLOT = 41
sRS = 42
sCAP = 43
sVB, sOFF, sBOFF = 71, 72, 73
sKEND = sVB
O_LAND = 64
STAMP0 = 80

out = []
def e(s):
    for ln in s.strip("\n").split("\n"):
        out.append("    " + ln.strip() if not ln.strip().endswith(":") else ln.strip())

def estamp(k):
    if cfg.diag and cfg.early:
        e(f"s_memrealtime s[{STAMP0+2*k}:{STAMP0+2*k+1}]")
def stamp(k):
    if cfg.diag and (not cfg.early or k == 0 or k >= 6):
        e(f"s_memrealtime s[{STAMP0+2*k}:{STAMP0+2*k+1}]")

def stamps_out(n):
    if not cfg.diag: return
    if cfg.ampw >= 0:
        L = lbl("L_amp"); Ls = lbl("L_amps")
        if cfg.ampk < n:
            e(f"""
            s_waitcnt lgkmcnt(0)
            s_cmp_eq_u32 s{sWAVE}, {cfg.ampw}
            s_cbranch_scc0 {Ls}
            {f's_cmp_eq_u32 s{sG}, {cfg.ampg}; s_cbranch_scc0 {Ls}'.replace('; ', chr(10)) if cfg.ampg >= 0 else ''}
            s_sub_u32 s60, s{STAMP0+2*cfg.ampk}, s{STAMP0}
            s_min_u32 s60, s60, 20000
            s_mul_i32 s60, s60, 10
            s_memrealtime s[62:63]
            s_waitcnt lgkmcnt(0)
            {L}:
            s_memrealtime s[68:69]
            s_waitcnt lgkmcnt(0)
            s_sub_u32 s61, s68, s62
            s_cmp_lt_u32 s61, s60
            s_cbranch_scc1 {L}
            {Ls}:
            """)
        return
    if cfg.dbg:
        sel = cfg_dbgsel[n] if n in cfg_dbgsel else []
        e("s_waitcnt lgkmcnt(0)\ns_mov_b64 exec, 1\nv_mov_b32 v1, 0")
        if n == 8: e(f"s_cmp_eq_u32 s{sWAVE}, 2\ns_cbranch_scc0 L_dbgskip{len(out)}"); lab = f"L_dbgskip{len(out)-2}"
        for (k, slot, mn) in sel:
            e(f"v_mov_b32 v4, s{STAMP0+2*k}")
            if mn: e("v_not_b32 v4, v4")
            e(f"global_atomic_umax v1, v4, s[26:27] offset:{4*slot}\ns_nop 1")
        if n == 8: e(f"{lab}:")
        e("s_waitcnt vmcnt(0)")
        return
    L = lbl("L_dly")
    e(f"""
    s_waitcnt lgkmcnt(0)
    s_add_u32 s61, s{STAMP0}, 1600
    {L}:
    s_sleep 8
    s_memrealtime s[68:69]
    s_waitcnt lgkmcnt(0)
    s_cmp_lt_u32 s68, s61
    s_cbranch_scc1 {L}
    s_lshl_b32 s60, s2, 4
    s_add_u32 s60, s60, s{sWAVE}
    s_lshl_b32 s60, s60, 6
    s_add_u32 s68, s28, s60
    s_addc_u32 s69, s29, 0
    s_add_u32 s68, s68, 0x10000000
    s_addc_u32 s69, s69, 0
    s_mov_b64 exec, 1
    v_mov_b32 v1, 0
    """)
    for k in range(8):
        if k < n:
            e(f"v_mov_b32 v4, s{STAMP0+2*k}\nv_mov_b32 v5, s{STAMP0+2*k+1}")
        else:
            e(f"v_mov_b32 v4, s{STAMP0}\nv_mov_b32 v5, s{STAMP0+1}")
        e(f"global_store_dwordx2 v1, v[4:5], s[68:69] offset:{8*k}\ns_nop 1")
    e("s_waitcnt vmcnt(0)")

lblc = [0]
def lbl(p="L"):
    lblc[0] += 1
    return f"{p}_{lblc[0]}"

def flag_set(vfl, off, vval):
    e(f"s_mov_b64 exec, 1\nds_write_b32 v{vfl}, v{vval} offset:{off}\ns_mov_b64 exec, -1")
def flag_add(vfl, off, vone):
    e(f"s_mov_b64 exec, 1\nds_add_u32 v{vfl}, v{vone} offset:{off}\ns_mov_b64 exec, -1")
def spin_ge(vfl, off, target, vtmp, extra=""):
    L = lbl("L_sp")
    e(f"""{L}:
    ds_read_b32 v{vtmp}, v{vfl} offset:{off}
    {extra}
    s_waitcnt lgkmcnt(0)
    v_cmp_le_u32 vcc, {target}, v{vtmp}
    s_cbranch_vccz {L}""")

def spin_land(sreg, vtmp, extra=""):
    L = lbl("L_sl")
    e(f"""{L}:
    ds_read_b32 v{vtmp}, v1 offset:{O_LAND}
    {extra}
    s_waitcnt lgkmcnt(0)
    v_cmp_le_i32 vcc, s{sreg}, v{vtmp}
    s_cbranch_vccz {L}""")

def tag_check(regs, acc, first):
    T = [sT0, sT1, sT2, sT3]
    for k in range(4):
        if first and k == 0:
            e(f"v_xor_b32 v{acc}, s{T[0]}, v{regs}")
        else:
            e(f"v_bitop3_b32 v{acc}, v{regs+k}, s{T[k]}, v{acc} bitop3:0xbe")
def tag_branch(acc, Lretry, toggle=False, masked=False):
    Ld = lbl("L_ok")
    e(f"""
    v_and_b32 v{acc}, 0xff, v{acc}
    v_cmp_ne_u32 vcc, 0, v{acc}
    s_cbranch_vccz {Ld}""")
    if masked: e("s_mov_b64 exec, vcc")
    if toggle:
        e(f"""
        s_and_b32 s{sOFF}, s{sCAP}, 3
        s_cselect_b32 s{sOFF}, 0, s{sBOFF}""")
    e(f"""
    s_sub_u32 s{sCAP}, s{sCAP}, 1
    s_cbranch_scc0 {Lretry}
    s_mov_b32 s{sCAP}, 0
    {Ld}:""")
    if masked: e("s_mov_b64 exec, -1")
def tag_insert(regs, vff):
    T = [sT0, sT1, sT2, sT3]
    for k in range(4):
        e(f"v_bfi_b32 v{regs+k}, v{vff}, s{T[k]}, v{regs+k}")

def nonce_from_epoch():
    e(f"""
    s_add_u32 s{sT0}, s{sT0}, 0x01010101
    s_lshr_b32 s{sT1}, s{sT0}, 8
    s_lshr_b32 s{sT2}, s{sT0}, 16
    s_lshr_b32 s{sT3}, s{sT0}, 24
    """)

def srd(r, lo, hi, nbytes):
    pass

def reduce4_rows(x, t):
    e(f"""
    s_nop 1
    v_permlane32_swap_b32 v{x}, v{x+1}
    v_permlane32_swap_b32 v{x+2}, v{x+3}
    s_nop 0
    v_add_f32 v{x}, v{x}, v{x+1}
    v_add_f32 v{x+2}, v{x+2}, v{x+3}
    s_nop 1
    v_permlane16_swap_b32 v{x}, v{x+2}
    s_nop 0
    v_add_f32 v{x}, v{x}, v{x+2}
    """)
def dpp_add(x, rots):
    for r in rots:
        e(f"s_nop 1\nv_add_f32_dpp v{x}, v{x}, v{x} row_ror:{r} row_mask:0xf bank_mask:0xf")
def dpp_max(x, rots):
    for r in rots:
        e(f"s_nop 1\nv_max_f32_dpp v{x}, v{x}, v{x} row_ror:{r} row_mask:0xf bank_mask:0xf")
def rnd_bf16(x):
    e(f"v_cvt_pk_bf16_f32 v{x}, v{x}, v{x}\nv_and_b32 v{x}, 0xffff0000, v{x}")

def build():
    out.clear()
    stamp(0)
    G = cfg.win // 4
    nt = cfg.ntK
    e(f"""
    s_load_dwordx16 s[4:19], s[0:1], 0
    s_load_dwordx8 s[20:27], s[0:1], 64
    s_load_dwordx2 s[28:29], s[0:1], 96
    v_readfirstlane_b32 s{sWAVE}, v0
    s_cmpk_ge_u32 s2, 0x100
    s_cbranch_scc1 L_end
    s_and_b32 s{sG}, s2, 7
    s_lshr_b32 s{sI}, s2, 3
    s_cmp_lg_u32 s{sWAVE}, 0
    s_cbranch_scc1 L_notloader
    v_lshrrev_b32 v12, 3, v0
    v_and_b32 v13, 7, v0
    v_and_b32 v14, 2, v12
    v_xor_b32 v13, v13, v14
    v_lshlrev_b32 v13, 4, v13
    v_lshl_add_u32 v10, v12, 13, v13
    v_xor_b32 v11, 64, v10
    s_lshr_b32 s45, s2, 6
    s_lshl_b32 s45, s45, 20
    s_and_b32 s46, s{sI}, 7
    s_lshl3_add_u32 s46, s{sG}, s46
    s_lshl_b32 s46, s46, 7
    s_add_u32 s45, s45, s46
    s_mov_b32 s58, {127*8192+128}
    s_mov_b32 s59, 0x20000
    s_mov_b32 m0, {L_WO}
    s_mov_b32 s47, 0
    s_mov_b32 s46, 0x10000
    s_waitcnt lgkmcnt(0)
    s_add_u32 s56, s10, s45
    s_addc_u32 s57, s11, 0
    L_ldA:
    buffer_load_dwordx4 v10, s[56:59], s47 offen {cfg.ntW} lds
    s_addk_i32 m0, 0x400
    s_add_u32 s47, s47, s46
    buffer_load_dwordx4 v11, s[56:59], s47 offen {cfg.ntW} lds
    s_addk_i32 m0, 0x400
    s_add_u32 s47, s47, s46
    s_bitcmp0_b32 s47, 20
    s_cbranch_scc1 L_ldA
    s_mul_i32 s44, s2, {cfg.rotmul}
    s_bfe_u32 s{sRS}, s44, 0x20002
    v_and_b32 v2, 15, v0
    v_lshrrev_b32 v3, 4, v0
    s_branch L_ld2
    .p2align 8
    """)
    e(f"""L_notloader:
    v_and_b32 v0, 63, v0
    v_mov_b32 v1, {L_FL}
    v_mov_b32 v5, 0
    v_lshl_add_u32 v6, v0, 2, v1
    ds_write_b32 v6, v5
    s_lshr_b32 s{sWAVE}, s{sWAVE}, 6
    """)
    if cfg.pf:
        e(f"""
        s_lshl3_add_u32 s45, s{sI}, s{sWAVE}
        s_cmp_eq_u32 s45, 6
        s_cbranch_scc0 L_nopf
        s_getpc_b64 s[46:47]
        L_pc:
        v_lshlrev_b32 v5, 7, v0
        v_add_u32 v6, 8192, v5
        v_min_u32 v5, L_codeend-L_pc-4, v5
        v_min_u32 v6, L_codeend-L_pc-4, v6
        global_load_dword v190, v5, s[46:47]
        global_load_dword v191, v6, s[46:47]
        L_nopf:""")
    e(f"""
    v_lshlrev_b32 v5, 5, v0
    s_cmp_ge_u32 s{sWAVE}, 3
    s_waitcnt lgkmcnt(0)
    s_load_dword s{sT0}, s[28:29], 0
    s_cbranch_scc1 L_nox
    global_load_dwordx4 v[8:11], v5, s[4:5]
    global_load_dwordx4 v[12:15], v5, s[4:5] offset:16
    L_nox:
    s_barrier
    s_branch L_nl2
    """)
    e(f"""L_ld2:
    v_mov_b32 v1, {L_FL}
    v_lshl_add_u32 v16, v0, 2, v1
    v_add_u32 v16, {O_LAND}, v16
    v_mov_b32 v15, {5-G}
    s_add_u32 s62, s{sRS}, 3
    s_and_b32 s62, s62, 3
    s_add_u32 s62, s62, 4
    s_lshl_b32 s62, s62, 14
    s_mov_b32 s47, 0
    s_barrier
    """)
    estamp(1)
    stamp(1)
    e(f"""
    s_cmp_lt_u32 s{sI}, 28
    s_cbranch_scc0 L_ld_noB
    s_cmp_lt_u32 s{sI}, 14
    s_cbranch_scc0 L_ld_w2
    s_and_b32 s45, s2, 3
    s_mul_i32 s45, s45, {128*3584}
    s_lshr_b32 s46, s2, 2
    s_lshl_b32 s46, s46, 7
    s_add_u32 s45, s45, s46
    s_add_u32 s56, s16, s45
    s_addc_u32 s57, s17, 0
    v_mul_u32_u24 v10, 3584, v12
    v_add_u32 v10, v10, v13
    s_mov_b32 s46, {8*3584}
    s_branch L_ld_B
    L_ld_w2:
    s_sub_u32 s45, s{sI}, 14
    s_lshl_b32 s45, s45, 17
    s_lshl_b32 s46, s{sG}, 7
    s_add_u32 s45, s45, s46
    s_add_u32 s56, s20, s45
    s_addc_u32 s57, s21, 0
    v_lshl_add_u32 v10, v12, 10, v13
    s_mov_b32 s46, 8192
    L_ld_B:
    s_sub_u32 s58, {512*1792*2}, s45
    v_xor_b32 v11, 64, v10
    s_mov_b32 m0, s62
    s_mov_b32 s60, 0
    L_ldB:
    s_waitcnt vmcnt({cfg.win-4})""")
    for p in range(4):
        e(f"""
        buffer_load_dwordx4 v{10+(p&1)}, s[56:59], s47 offen {cfg.ntW} lds
        s_addk_i32 m0, 0x400
        s_add_u32 s47, s47, s46""")
    e(f"""
    ds_write_b32 v16, v15
    v_add_u32 v15, 1, v15
    s_add_u32 s60, s60, 1
    s_cmp_lt_u32 s60, 4
    s_cbranch_scc1 L_ldB
    L_ld_noB:""")
    e(f"""
    v_lshlrev_b32 v14, 8, v3
    v_xor_b32 v17, v3, v2
    v_lshl_add_u32 v4, v17, 4, v14
    v_xor_b32 v5, 64, v4
    v_xor_b32 v6, 0x80, v4
    v_xor_b32 v7, 0xc0, v4
    s_lshr_b32 s45, s{sI}, 4
    s_lshl_b32 s45, s45, 26
    s_lshl_b32 s46, s{sG}, 23
    s_add_u32 s45, s45, s46
    s_and_b32 s46, s{sI}, 15
    s_lshl_b32 s46, s46, 16
    s_add_u32 s45, s45, s46
    s_add_u32 s45, s45, {28672*256}
    s_mov_b32 s50, 0x10000
    s_mov_b32 s51, 0x20000
    s_add_u32 s48, s6, s45
    s_addc_u32 s49, s7, 0
    s_and_b32 s44, s44, 15
    s_lshl_b32 s47, s44, 12
    s_mov_b32 s60, 0
    L_ldK:
    s_mov_b32 m0, s47
    s_add_u32 s60, s60, 1
    s_waitcnt vmcnt({cfg.win-4})
    buffer_load_dwordx4 v4, s[48:51], s47 offen {nt} lds
    buffer_load_dwordx4 v5, s[48:51], s47 offen offset:1024 {nt} lds
    buffer_load_dwordx4 v6, s[48:51], s47 offen offset:2048 {nt} lds
    buffer_load_dwordx4 v7, s[48:51], s47 offen offset:3072 {nt} lds
    ds_write_b32 v16, v15
    v_add_u32 v15, 1, v15
    s_add_u32 s47, s47, 4096
    s_and_b32 s47, s47, 0xffff
    s_cmp_lt_u32 s60, 16
    s_cbranch_scc1 L_ldK
    """)
    stamp(2)
    e(f"""
    v_lshlrev_b32 v17, 1, v3
    v_xor_b32 v17, v17, v2
    v_lshl_add_u32 v8, v17, 4, v14
    v_xor_b32 v9, 0x80, v8
    v_lshlrev_b32 v14, 10, v3
    v_lshl_add_u32 v10, v17, 4, v14
    v_xor_b32 v11, 0x80, v10
    s_add_u32 s52, s8, s45
    s_addc_u32 s53, s9, 0
    s_mov_b32 s54, 0x10000
    s_mov_b32 s55, 0x20000
    s_mov_b32 s60, 0
    s_and_b32 s61, s44, 3
    """)
    def vloop(name, end):
        e(f"""{name}:
        s_lshr_b32 s47, s60, 2
        s_add_u32 s47, s47, s{sRS}
        s_and_b32 s47, s47, 3
        s_add_u32 s62, s61, s60
        s_and_b32 s62, s62, 3
        s_lshl2_add_u32 s47, s47, s62
        s_lshl_b32 s47, s47, 12
        s_add_u32 m0, s47, {L_V}
        s_add_u32 s60, s60, 1
        s_waitcnt vmcnt({cfg.win-4})
        buffer_load_dwordx4 v8, s[52:55], s47 offen {nt} lds
        buffer_load_dwordx4 v9, s[52:55], s47 offen offset:1024 {nt} lds
        buffer_load_dwordx4 v8, s[52:55], s47 offen offset:2048 {nt} lds
        buffer_load_dwordx4 v9, s[52:55], s47 offen offset:3072 {nt} lds
        ds_write_b32 v16, v15
        v_add_u32 v15, 1, v15
        s_cmp_lt_u32 s60, {end}
        s_cbranch_scc1 {name}
        """)
    def woloop(name, g0, g1):
        if g0 == g1: return
        e(f"""
        s_mov_b32 m0, {L_WO + 4096*g0}
        s_mov_b32 s47, {16384*g0}
        {name}:
        s_waitcnt vmcnt({cfg.win-4})""")
        for p in range(4):
            e(f"""
            buffer_load_dwordx4 v{10+(p>>1)}, s[56:59], s47 offen {cfg.ntW} lds
            s_addk_i32 m0, 0x400
            s_addk_i32 s47, 0x1000""")
        e(f"""
        ds_write_b32 v16, v15
        v_add_u32 v15, 1, v15
        s_cmp_lt_u32 s47, {16384*g1}
        s_cbranch_scc1 {name}""")
    vloop("L_ldV1", 12)
    e(f"""
    s_lshl_b32 s45, s{sG}, 19
    s_lshr_b32 s46, s{sI}, 2
    s_lshl_b32 s46, s46, 16
    s_add_u32 s45, s45, s46
    s_and_b32 s46, s{sI}, 3
    s_lshl_b32 s46, s46, 8
    s_add_u32 s45, s45, s46
    s_add_u32 s56, s12, s45
    s_addc_u32 s57, s13, 0
    s_mov_b32 s58, {63*1024+256}
    """)
    spin_ge(1, F_T, 2, 17)
    woloop("L_ldWO1", 0, cfg.woe)
    vloop("L_ldV2", 16)
    woloop("L_ldWO2", cfg.woe, 4)
    stamp(3)
    for k in range(G-1, -1, -1):
        e(f"s_waitcnt vmcnt({4*k})\nds_write_b32 v16, v15\nv_add_u32 v15, 1, v15")
        if k == 4 - cfg.woe: stamp(4)
    stamp(5)
    stamps_out(6)
    e("s_endpgm")

    e(f"""L_nl2:
    s_setprio 1
    v_and_b32 v2, 15, v0
    v_lshrrev_b32 v3, 4, v0
    s_mul_i32 s44, s2, {cfg.rotmul}
    s_bfe_u32 s{sRS}, s44, 0x20002
    s_lshl_b32 s{sSLOT}, s{sG}, 5
    s_add_u32 s{sSLOT}, s{sSLOT}, s{sI}
    s_mov_b32 s{sCAP}, {SPIN_CAP}
    s_cmp_lt_u32 s{sI}, 28
    s_cselect_b32 s{sVB}, 24, 20
    v_mov_b32 v4, 0xff
    s_mov_b32 s{SRD_WS}, s28
    s_mov_b32 s{SRD_WS+1}, s29
    s_mov_b32 s{SRD_WS+2}, {WS_BYTES}
    s_mov_b32 s{SRD_WS+3}, 0x20000
    s_mov_b32 s{sOFF}, 0
    s_mov_b32 s{sBOFF}, {B_OFF}
    s_cmp_ge_u32 s{sWAVE}, 3
    s_cbranch_scc1 L_compute
    """)
    e(f"""
    s_cmp_eq_u32 s{sWAVE}, 1
    s_cbranch_scc0 L_roleB
    s_mov_b32 s44, 0
    s_lshr_b32 s53, s{sI}, 3
    s_lshl_b32 s52, s{sSLOT}, 9
    s_add_u32 s52, s52, {W_QP}
    s_mov_b32 s54, {L_WO}
    s_mov_b32 s55, {L_ACTA}
    s_mov_b32 s45, 4
    s_branch L_tilecommon
    L_roleB:
    s_add_u32 s54, s{sRS}, 3
    s_and_b32 s54, s54, 3
    s_add_u32 s54, s54, 4
    s_lshl_b32 s54, s54, 14
    s_mov_b32 s55, {L_ACTB}
    s_cmp_lt_u32 s{sI}, 14
    s_cbranch_scc0 L_roleB2
    s_mov_b32 s44, 0
    s_and_b32 s53, s2, 3
    s_lshl_b32 s52, s2, 9
    s_add_u32 s52, s52, {W_HP}
    s_mov_b32 s45, 8
    s_branch L_tilecommon
    L_roleB2:
    s_cmp_lt_u32 s{sI}, 28
    s_cselect_b32 s44, 1, 2
    s_sub_u32 s53, s{sI}, 14
    s_min_u32 s53, s53, 13
    s_sub_u32 s52, s2, 112
    s_lshl_b32 s52, s52, 9
    s_add_u32 s52, s52, {W_FP}
    s_mov_b32 s45, 8
    L_tilecommon:
    """)
    estamp(2)
    stamp(1)
    e(f"""
    v_lshrrev_b32 v5, 2, v2
    v_lshl_add_u32 v5, v3, 3, v5
    v_lshlrev_b32 v5, 7, v5
    v_and_b32 v6, 3, v2
    v_lshl_add_u32 v5, v6, 3, v5
    v_add_u32 v5, s54, v5
    v_lshrrev_b32 v6, 3, v2
    v_and_b32 v7, 1, v3
    v_lshl_or_b32 v6, v7, 1, v6
    """)
    for u in range(4):
        e(f"v_xor_b32 v7, {u}, v6\nv_lshl_add_u32 v{16+u}, v7, 5, v5")
    e(f"""
    v_and_b32 v5, 1, v0
    v_mul_u32_u24 v5, 288, v5
    v_lshl_add_u32 v5, v3, 4, v5
    v_add_u32 v20, s55, v5
    v_mov_b32 v21, 1
    s_waitcnt lgkmcnt(0)
    """)
    nonce_from_epoch()
    e(f"""
    s_cmp_eq_u32 s44, 0
    s_waitcnt vmcnt(0)
    s_cbranch_scc0 L_noLN
    """)
    estamp(4)
    for k in range(8):
        e(f"v_lshlrev_b32 v{24+2*k}, 16, v{8+k}\nv_and_b32 v{25+2*k}, 0xffff0000, v{8+k}")
    e("v_pk_add_f32 v[40:41], v[24:25], v[26:27]")
    for k in range(2, 8):
        e(f"v_pk_add_f32 v[40:41], v[40:41], v[{24+2*k}:{25+2*k}]")
    e("v_add_f32 v40, v40, v41")
    dpp_add(40, (8, 4, 2, 1))
    e("v_mov_b32 v41, v40\ns_nop 1\nv_permlane16_swap_b32 v40, v41\ns_nop 0\nv_add_f32 v40, v40, v41")
    e("v_mul_f32 v40, 0xbb000000, v40\nv_mov_b32 v41, v40")
    e("v_pk_add_f32 v[42:43], v[24:25], v[40:41]\nv_pk_mul_f32 v[44:45], v[42:43], v[42:43]")
    for k in range(1, 8):
        e(f"v_pk_add_f32 v[42:43], v[{24+2*k}:{25+2*k}], v[40:41]\nv_pk_fma_f32 v[44:45], v[42:43], v[42:43], v[44:45]")
    e("v_add_f32 v44, v44, v45")
    dpp_add(44, (8, 4, 2, 1))
    e("v_mov_b32 v45, v44\ns_nop 1\nv_permlane16_swap_b32 v44, v45\ns_nop 0\nv_add_f32 v44, v44, v45")
    e("v_mul_f32 v44, 0x3b000000, v44")
    rnd_bf16(44)
    e("v_add_f32 v44, 0x3727c5ac, v44")
    rnd_bf16(44)
    e("v_sqrt_f32 v44, v44\ns_nop 0")
    rnd_bf16(44)
    e("v_rcp_f32 v44, v44")
    rnd_bf16(40)
    e("v_mov_b32 v41, v40\nv_mov_b32 v45, v44")
    for k in range(8):
        e(f"v_pk_add_f32 v[42:43], v[{24+2*k}:{25+2*k}], v[40:41]")
        e(f"v_cvt_pk_bf16_f32 v42, v42, v43\nv_and_b32 v43, 0xffff0000, v42\nv_lshlrev_b32 v42, 16, v42")
        e(f"v_pk_mul_f32 v[42:43], v[42:43], v[44:45]\nv_cvt_pk_bf16_f32 v{8+k}, v42, v43")
    e(f"""
    v_bfe_u32 v5, v0, 3, 2
    v_lshrrev_b32 v6, 5, v0
    v_mul_u32_u24 v6, 288, v6
    v_and_b32 v7, 7, v0
    v_lshl_add_u32 v6, v7, 5, v6
    v_add_u32 v6, s55, v6
    v_cmp_eq_u32 vcc, s53, v5
    s_and_saveexec_b64 s[56:57], vcc
    ds_write_b128 v6, v[8:11]
    ds_write_b128 v6, v[12:15] offset:16
    s_mov_b64 exec, -1
    L_noLN:
    """)
    stamp(2)
    e(f"""
    s_cmp_eq_u32 s44, 2
    s_cbranch_scc1 L_notile
    """)
    spin_land(45, 5)
    estamp(5)
    for u in range(4):
        for t in range(4):
            r = 64 + 16*u + 4*t
            e(f"ds_read_b64_tr_b16 v[{r}:{r+1}], v{16+u} offset:{t*4096}")
            e(f"ds_read_b64_tr_b16 v[{r+2}:{r+3}], v{16+u} offset:{t*4096+512}")
    e(f"""
    s_waitcnt lgkmcnt(0)
    L_notile:
    """)
    flag_add(1, F_T, 21)
    stamp(3)
    e(f"""
    s_cmp_eq_u32 s44, 1
    s_cbranch_scc0 L_noH
    """)
    e(f"""
    v_bfe_u32 v5, v0, 4, 1
    v_lshlrev_b32 v5, 11, v5
    v_lshrrev_b32 v6, 5, v0
    v_lshl_add_u32 v5, v6, 8, v5
    v_lshl_add_u32 v5, v2, 4, v5
    s_lshl_b32 s56, s53, 12
    s_add_u32 s56, s56, {W_HP}
    v_add_u32 v5, s56, v5
    v_and_b32 v7, 31, v0
    v_lshlrev_b32 v7, 3, v7
    s_lshl_b32 s56, s53, 8
    v_add_u32 v22, s56, v7
    global_load_dwordx2 v[22:23], v22, s[18:19]
    v_mul_u32_u24 v6, 288, v6
    v_add3_u32 v6, v6, v7, s55
    s_mov_b32 s45, {cfg.hgate}
    """)
    spin_land(45, 7)
    e("L_hretry:")
    for k in range(4):
        e(f"buffer_load_dwordx4 v[{24+4*k}:{27+4*k}], v5, s[{SRD_WS}:{SRD_WS+3}], 0 offen offset:{512*k} sc1")
    e("s_waitcnt vmcnt(0)")
    for k in range(4): tag_check(24+4*k, 7, k == 0)
    tag_branch(7, "L_hretry")
    for k in range(16): e(f"v_and_b32 v{24+k}, 0xffffff00, v{24+k}")
    e("""
    v_pk_add_f32 v[24:25], v[24:25], v[28:29]
    v_pk_add_f32 v[26:27], v[26:27], v[30:31]
    v_pk_add_f32 v[32:33], v[32:33], v[36:37]
    v_pk_add_f32 v[34:35], v[34:35], v[38:39]
    v_pk_add_f32 v[24:25], v[24:25], v[32:33]
    v_pk_add_f32 v[26:27], v[26:27], v[34:35]
    v_cvt_pk_bf16_f32 v24, v24, v25
    v_cvt_pk_bf16_f32 v26, v26, v27
    v_and_b32 v25, 0xffff0000, v24
    v_lshlrev_b32 v24, 16, v24
    v_and_b32 v27, 0xffff0000, v26
    v_lshlrev_b32 v26, 16, v26
    v_lshlrev_b32 v28, 16, v22
    v_and_b32 v29, 0xffff0000, v22
    v_lshlrev_b32 v30, 16, v23
    v_and_b32 v31, 0xffff0000, v23
    v_pk_add_f32 v[24:25], v[24:25], v[28:29]
    v_pk_add_f32 v[26:27], v[26:27], v[30:31]
    v_cvt_pk_bf16_f32 v24, v24, v25
    v_cvt_pk_bf16_f32 v26, v26, v27
    v_and_b32 v25, 0xffff0000, v24
    v_lshlrev_b32 v24, 16, v24
    v_and_b32 v27, 0xffff0000, v26
    v_lshlrev_b32 v26, 16, v26
    v_max_f32 v24, 0, v24
    v_max_f32 v25, 0, v25
    v_max_f32 v26, 0, v26
    v_max_f32 v27, 0, v27
    v_pk_mul_f32 v[24:25], v[24:25], v[24:25]
    v_pk_mul_f32 v[26:27], v[26:27], v[26:27]
    v_cvt_pk_bf16_f32 v24, v24, v25
    v_cvt_pk_bf16_f32 v25, v26, v27
    ds_write_b64 v6, v[24:25]
    L_noH:
    s_cmp_eq_u32 s44, 2
    s_cbranch_scc1 L_nopub
    """)
    e("s_waitcnt lgkmcnt(0)")
    for t in range(4):
        e(f"ds_read_b128 v[{24+4*t}:{27+4*t}], v20 offset:{64*t}")
    e(f"""
    v_and_b32 v5, 1, v0
    v_lshlrev_b32 v5, 8, v5
    v_bfe_u32 v6, v0, 1, 2
    v_lshl_add_u32 v5, v6, 6, v5
    v_lshl_add_u32 v5, v3, 4, v5
    v_add_u32 v5, s52, v5
    v_and_b32 v6, 2, v0
    v_cmp_ne_u32 s[56:57], 0, v6
    v_and_b32 v6, 4, v0
    v_cmp_ne_u32 s[58:59], 0, v6
    s_waitcnt lgkmcnt(0)
    """)
    for t in range(4):
        for u in range(4):
            r = 64 + 16*u + 4*t
            c = f"v[{40+4*u}:{43+4*u}]"
            e(f"v_mfma_f32_16x16x32_bf16 {c}, v[{r}:{r+3}], v[{24+4*t}:{27+4*t}], {c if t else 0}")
    e("s_nop 7")
    for k in range(4):
        e(f"v_cndmask_b32 v{40+k}, v{40+k}, v{44+k}, s[56:57]")
    for k in range(4):
        e(f"v_cndmask_b32 v{48+k}, v{48+k}, v{52+k}, s[56:57]")
    for k in range(4):
        e(f"v_cndmask_b32 v{40+k}, v{40+k}, v{48+k}, s[58:59]")
    tag_insert(40, 4)
    e(f"""
    s_mov_b32 s56, 0x00ff00ff
    s_mov_b32 s57, 0x00ff00ff
    s_mov_b64 exec, s[56:57]
    s_cmp_eq_u32 s{sWAVE}, 1
    s_cbranch_scc0 L_pubB
    buffer_store_dwordx4 v[40:43], v5, s[{SRD_WS}:{SRD_WS+3}], 0 offen
    v_add_u32 v5, {B_OFF}, v5
    L_pubB:
    buffer_store_dwordx4 v[40:43], v5, s[{SRD_WS}:{SRD_WS+3}], 0 offen sc1
    s_mov_b64 exec, -1
    L_nopub:
    """)
    stamp(4)
    e(f"""
    s_cmp_eq_u32 s{sWAVE}, 1
    s_cbranch_scc0 L_final
    """)
    e(f"""
    v_lshlrev_b32 v10, 9, v3
    v_lshl_add_u32 v10, v2, 4, v10
    s_lshl_b32 s56, s{sG}, 14
    s_lshr_b32 s57, s{sI}, 4
    s_lshl_b32 s57, s57, 8
    s_add_u32 s56, s56, s57
    s_add_u32 s56, s56, {W_QP}
    v_add_u32 v10, s56, v10
    v_add_u32 v11, 0x1000, v10
    v_add_u32 v12, 0x2000, v10
    v_add_u32 v13, 0x3000, v10
    v_lshrrev_b32 v8, 5, v0
    v_lshlrev_b32 v8, 5, v8
    v_lshl_add_u32 v8, v0, 3, v8
    v_add_u32 v8, {L_QS}, v8
    s_sub_u32 s45, s{sKEND}, {cfg.qlead}
    """)
    spin_land(45, 7)
    e("L_qretry:")
    for v in range(2):
        for k in range(4):
            r = 24 + 16*v + 4*k
            e(f"buffer_load_dwordx4 v[{r}:{r+3}], v{10+k}, s[{SRD_WS}:{SRD_WS+3}], s{sOFF} offen offset:{2048*v} {cfg.ldA}")
    e("s_waitcnt vmcnt(0)")
    for k in range(8): tag_check(24+4*k, 7, k == 0)
    tag_branch(7, "L_qretry", toggle=True)
    for k in range(32): e(f"v_and_b32 v{24+k}, 0xffffff00, v{24+k}")
    for v in range(2):
        r = 24 + 16*v
        e(f"""
        v_pk_add_f32 v[{r}:{r+1}], v[{r}:{r+1}], v[{r+4}:{r+5}]
        v_pk_add_f32 v[{r+2}:{r+3}], v[{r+2}:{r+3}], v[{r+6}:{r+7}]
        v_pk_add_f32 v[{r+8}:{r+9}], v[{r+8}:{r+9}], v[{r+12}:{r+13}]
        v_pk_add_f32 v[{r+10}:{r+11}], v[{r+10}:{r+11}], v[{r+14}:{r+15}]
        v_pk_add_f32 v[{r}:{r+1}], v[{r}:{r+1}], v[{r+8}:{r+9}]
        v_pk_add_f32 v[{r+2}:{r+3}], v[{r+2}:{r+3}], v[{r+10}:{r+11}]
        v_cvt_pk_bf16_f32 v{r}, v{r}, v{r+1}
        v_cvt_pk_bf16_f32 v{r+1}, v{r+2}, v{r+3}
        ds_write_b64 v8, v[{r}:{r+1}] offset:{576*v}
        """)
    flag_set(1, F_Q, 21)
    stamp(5)
    e(f"""
    v_and_b32 v5, 31, v0
    v_lshlrev_b32 v9, 2, v5
    v_add_u32 v9, {L_WT}, v9
    v_lshlrev_b32 v5, 7, v5
    s_lshl_b32 s56, s{sG}, 12
    s_lshr_b32 s57, s{sI}, 3
    s_lshl_b32 s57, s57, 4
    s_add_u32 s56, s56, s57
    s_add_u32 s56, s56, {W_ST}
    v_add_u32 v5, s56, v5
    s_mov_b32 s{sOFF}, 0
    """)
    spin_ge(1, F_P, 4, 7)
    e(f"""L_sretry:
    buffer_load_dwordx4 v[24:27], v5, s[{SRD_WS}:{SRD_WS+3}], s{sOFF} offen {cfg.ldA}
    s_waitcnt vmcnt(0)
    """)
    tag_check(24, 7, True)
    tag_branch(7, "L_sretry", toggle=True, masked=True)
    e(f"""
    s_getreg_b32 s56, hwreg(HW_REG_XCC_ID, 0, 4)
    v_lshrrev_b32 v26, 8, v26
    v_cmp_ne_u32 vcc, s56, v26
    v_and_b32 v24, 0xffffff00, v24
    v_and_b32 v25, 0xffffff00, v25
    v_mov_b32 v28, v24
    s_cmp_eq_u64 vcc, 0
    s_cselect_b32 s57, 1, {B_OFF}+1
    v_mov_b32 v29, s57
    """)
    dpp_max(28, (8, 4, 2, 1))
    e(f"""
    v_sub_f32 v24, v24, v28
    v_mul_f32 v24, {LOG2E}, v24
    v_exp_f32 v24, v24
    s_nop 0
    v_mul_f32 v25, v24, v25
    """)
    dpp_add(25, (8, 4, 2, 1))
    e(f"""
    v_rcp_f32 v25, v25
    s_nop 0
    v_mul_f32 v24, v24, v25
    ds_write_b32 v9, v24
    """)
    flag_set(1, F_W, 29)
    stamp(6)
    stamps_out(7)
    e("s_endpgm")

    e(f"""L_final:
    s_lshr_b32 s56, s{sI}, 3
    s_lshl_b32 s56, s56, 3
    s_add_u32 s56, s56, s{sG}
    s_lshl_b32 s56, s56, 3
    s_and_b32 s57, s{sI}, 7
    s_add_u32 s56, s56, s57          ; Q
    s_lshr_b32 s57, s56, 7           ; b_f
    s_and_b32 s58, s56, 127          ; nq
    v_and_b32 v5, 1, v3
    v_lshlrev_b32 v5, 1, v5
    v_lshrrev_b32 v6, 1, v3
    v_or_b32 v5, v5, v6              ; e(R)
    v_lshlrev_b32 v5, 1, v5
    s_lshl_b32 s59, s58, 3
    v_add_u32 v6, s59, v5
    global_load_ushort v10, v6, s[22:23]
    s_lshl_b32 s59, s56, 3
    v_add_u32 v8, s59, v5
    global_load_ushort v11, v8, s[4:5]
    s_lshr_b32 s59, s58, 4           ; ctile8
    s_lshl_b32 s59, s59, 9
    s_lshl_b32 s60, s57, 8
    s_add_u32 s59, s59, s60
    s_and_b32 s60, s58, 15
    s_lshl_b32 s60, s60, 4
    s_add_u32 s59, s59, s60
    s_add_u32 s59, s59, {W_FP}
    v_min_u32 v5, 13, v0
    v_lshlrev_b32 v5, 12, v5
    v_add_u32 v5, s59, v5
    s_lshr_b32 s59, s58, 5           ; ctile
    s_lshl_b32 s59, s59, 10
    s_lshl_b32 s60, s57, 9
    s_add_u32 s59, s59, s60
    s_and_b32 s60, s58, 31
    s_lshl_b32 s60, s60, 4
    s_add_u32 s59, s59, s60
    s_add_u32 s59, s59, {W_SP}
    v_lshlrev_b32 v6, 12, v0
    v_add_u32 v6, s59, v6
    v_cmp_gt_u32 s[60:61], 14, v0
    s_mov_b32 s64, s24
    s_mov_b32 s65, s25
    s_mov_b32 s66, 2048
    s_mov_b32 s67, 0x20000
    s_add_u32 s45, s{sVB}, {cfg.flead}
    """)
    spin_land(45, 7)
    e(f"""L_fretry:
    buffer_load_dwordx4 v[24:27], v5, s[{SRD_WS}:{SRD_WS+3}], 0 offen sc1
    s_waitcnt vmcnt(0)
    """)
    tag_check(24, 7, True)
    tag_branch(7, "L_fretry", masked=True)
    for k in range(4):
        e(f"v_and_b32 v{24+k}, 0xffffff00, v{24+k}")
    for k in range(4):
        e(f"v_cndmask_b32 v{24+k}, 0, v{24+k}, s[60:61]")
    reduce4_rows(24, 28)
    dpp_add(24, (8, 4, 2, 1))
    rnd_bf16(24)
    e("v_lshlrev_b32 v10, 16, v10\nv_add_f32 v24, v24, v10")
    rnd_bf16(24)
    e(f"""
    v_mul_f32 v25, 0xbfb8aa3b, v24
    v_exp_f32 v25, v25
    s_nop 0
    v_add_f32 v25, 1.0, v25
    v_rcp_f32 v25, v25
    s_nop 0
    v_mul_f32 v12, v24, v25
    """)
    rnd_bf16(12)
    e("v_lshlrev_b32 v11, 16, v11")
    stamp(5)
    spin_ge(1, F_O, 4, 7)
    e(f"""L_3retry:
    buffer_load_dwordx4 v[24:27], v6, s[{SRD_WS}:{SRD_WS+3}], 0 offen sc1
    s_waitcnt vmcnt(0)
    """)
    tag_check(24, 7, True)
    tag_branch(7, "L_3retry", masked=True)
    stamp(6)
    for k in range(4):
        e(f"v_and_b32 v{24+k}, 0xffffff00, v{24+k}")
    reduce4_rows(24, 28)
    dpp_add(24, (8, 4, 2, 1))
    rnd_bf16(24)
    e("v_mul_f32 v24, v24, v12")
    rnd_bf16(24)
    e(f"""
    v_add_f32 v24, v24, v11
    v_cvt_pk_bf16_f32 v24, v24, v24
    s_mov_b32 s56, 0x00010001
    s_mov_b32 s57, 0x00010001
    s_mov_b64 exec, s[56:57]
    buffer_store_short v24, v8, s[64:67], 0 offen
    s_cmp_eq_u32 s2, 0
    s_cbranch_scc0 L_fin2
    s_mov_b64 exec, 1
    v_mov_b32 v25, s{sT0}
    v_mov_b32 v26, 0
    buffer_store_dword v25, v26, s[{SRD_WS}:{SRD_WS+3}], 0 offen sc1
    L_fin2:
    """)
    stamp(7)
    stamps_out(8)
    e("s_endpgm")

    sW = 44
    e(f"""L_compute:
    s_sub_u32 s{sW}, s{sWAVE}, 3
    """)
    for r in range(64, 128): e(f"v_mov_b32 v{r}, 0")
    e(f"""
    s_lshl_b32 s45, s{sW}, 14
    v_lshlrev_b32 v5, 8, v2
    v_add_u32 v5, s45, v5
    v_xor_b32 v6, v3, v2
    """)
    for t in range(4):
        e(f"v_xor_b32 v7, {4*t}, v6\nv_lshl_add_u32 v{8+t}, v7, 4, v5")
    e(f"""
    v_and_b32 v13, 3, v2
    v_mul_u32_u24 v12, 288, v13
    v_lshl_add_u32 v12, v3, 4, v12
    v_add_u32 v12, {L_QS}, v12
    """)
    e(f"""
    v_lshl_add_u32 v15, v3, 2, v13
    v_lshlrev_b32 v15, 4, v15
    v_add_u32 v15, {L_PB}, v15
    v_lshrrev_b32 v5, 3, v2
    v_lshl_add_u32 v14, v5, 8, v15
    v_bfe_u32 v5, v2, 2, 1
    v_lshl_add_u32 v14, v5, 3, v14
    s_lshl_b32 s45, s{sW}, 9
    v_add_u32 v14, s45, v14
    v_lshlrev_b32 v17, 3, v13
    v_add_u32 v17, {L_SB}, v17
    s_lshl_b32 s45, s{sW}, 5
    v_add_u32 v16, s45, v17
    """)
    e(f"""
    v_lshrrev_b32 v5, 2, v2
    v_and_b32 v6, 1, v3
    v_lshl_add_u32 v6, v6, 2, v5
    s_lshl_b32 s45, s{sW}, 1
    v_xor_b32 v6, s45, v6
    v_lshlrev_b32 v7, 3, v13
    v_lshl_add_u32 v22, v6, 5, v7
    v_xor_b32 v23, 32, v22
    v_lshl_add_u32 v6, v3, 2, v5
    v_lshlrev_b32 v6, 8, v6
    v_add_u32 v6, {L_V}, v6
    v_add_u32 v18, v6, v22
    v_add_u32 v19, v6, v23
    v_lshl_add_u32 v6, v3, 3, v5
    v_lshlrev_b32 v6, 8, v6
    v_add_u32 v6, {L_WO}, v6
    v_add_u32 v20, v6, v22
    v_add_u32 v21, v6, v23
    """)
    e(f"""
    s_lshl_b32 s45, s{sW}, 7
    v_lshl_add_u32 v5, v3, 4, s45
    s_lshl_b32 s46, s{sSLOT}, 11
    s_add_u32 s46, s46, {W_OP}
    v_lshl_add_u32 v22, v13, 9, v5
    v_bfe_u32 v6, v2, 2, 1
    v_lshl_add_u32 v22, v6, 6, v22
    v_add_u32 v22, s46, v22
    s_lshl_b32 s46, s{sSLOT}, 10
    s_add_u32 s46, s46, {W_SP}
    v_and_b32 v6, 1, v2
    v_lshl_add_u32 v23, v6, 9, v5
    v_lshlrev_b32 v28, 7, v6
    v_lshl_add_u32 v28, v3, 4, v28
    v_add_u32 v28, {L_OB}, v28
    v_bfe_u32 v6, v2, 1, 1
    v_lshl_add_u32 v23, v6, 6, v23
    v_add_u32 v23, s46, v23
    s_lshr_b32 s45, s{sW}, 1          ; b'
    s_and_b32 s46, s{sW}, 1           ; dsub
    s_lshl_b32 s47, s{sG}, 16
    s_lshl_b32 s48, s45, 15
    s_add_u32 s47, s47, s48
    s_lshr_b32 s48, s{sI}, 2
    s_lshl_b32 s48, s48, 8
    s_add_u32 s47, s47, s48
    s_lshl_b32 s48, s46, 7
    s_add_u32 s47, s47, s48
    s_add_u32 s47, s47, {W_OP}
    v_lshrrev_b32 v5, 3, v0
    v_and_b32 v6, 7, v0
    v_lshlrev_b32 v24, 11, v5
    v_lshl_add_u32 v24, v6, 4, v24
    v_add_u32 v24, s47, v24
    v_add_u32 v25, 16384, v24
    s_lshl_b32 s47, s45, 6
    s_add_u32 s47, s47, {L_WT}
    v_lshl_add_u32 v26, v5, 2, s47
    v_and_b32 v5, 1, v3
    v_lshlrev_b32 v5, 1, v5
    v_lshrrev_b32 v7, 1, v3
    v_or_b32 v5, v5, v7
    v_lshl_add_u32 v5, v6, 2, v5
    s_lshl_b32 s47, s45, 7
    s_lshl_b32 s48, s46, 6
    s_add_u32 s47, s47, s48
    s_add_u32 s47, s47, {L_OB}
    v_lshl_add_u32 v27, v5, 1, s47
    s_lshl_b32 s47, s{sSLOT}, 7
    s_add_u32 s47, s47, {W_ST}
    v_lshl_add_u32 v29, v13, 4, s47
    v_and_b32 v5, 4, v0
    v_cmp_ne_u32 s[50:51], 0, v5
    v_and_b32 v5, 2, v0
    v_cmp_ne_u32 s[52:53], 0, v5
    v_mov_b32 v30, 1
    s_waitcnt lgkmcnt(0)
    """)
    nonce_from_epoch()
    stamp(1)
    spin_ge(1, F_Q, 1, 6)
    for tau in range(4):
        m = 0x000f000f << (4*tau)
        e(f"s_mov_b32 s54, {m:#x}\ns_mov_b32 s55, {m:#x}\ns_mov_b64 exec, s[54:55]")
        for t in range(4):
            r = 64 + 16*tau + 4*t
            e(f"ds_read_b128 v[{r}:{r+3}], v12 offset:{64*t}")
    e("s_mov_b64 exec, -1")
    spin_land(sKEND, 6)
    stamp(2)
    for tau in range(4):
        for t in range(4):
            r = 128 + 16*tau + 4*t
            e(f"ds_read_b128 v[{r}:{r+3}], v{8+t} offset:{4096*tau}")
    for tau in range(4):
        for t in range(4):
            n = 4*tau + t
            r = 128 + 16*tau + 4*t; q = 64 + 16*tau + 4*t
            if not cfg.diag or True:
                e(f"s_waitcnt lgkmcnt({min(15-n, 15)})")
            e(f"v_mfma_f32_16x16x32_bf16 v[32:35], v[{r}:{r+3}], v[{q}:{q+3}], {'v[32:35]' if n else 0}")
    e(f"""
    s_mov_b32 s54, {SCALE:#x}
    s_mov_b32 s55, {LOG2E:#x}
    s_nop 5
    v_cvt_pk_bf16_f32 v32, v32, v33
    v_cvt_pk_bf16_f32 v34, v34, v35
    v_and_b32 v33, 0xffff0000, v32
    v_lshlrev_b32 v32, 16, v32
    v_and_b32 v35, 0xffff0000, v34
    v_lshlrev_b32 v34, 16, v34
    v_mul_f32 v32, s54, v32
    v_mul_f32 v33, s54, v33
    v_mul_f32 v34, s54, v34
    v_mul_f32 v35, s54, v35
    v_cvt_pk_bf16_f32 v32, v32, v33
    v_cvt_pk_bf16_f32 v34, v34, v35
    v_and_b32 v33, 0xffff0000, v32
    v_lshlrev_b32 v32, 16, v32
    v_and_b32 v35, 0xffff0000, v34
    v_lshlrev_b32 v34, 16, v34
    v_max_f32 v36, v32, v33
    v_max3_f32 v36, v34, v35, v36
    """)
    dpp_max(36, (8, 4))
    e("""
    v_mov_b32 v37, v36
    s_nop 1
    v_permlane16_swap_b32 v36, v37
    s_nop 0
    v_max_f32 v36, v36, v37
    v_mov_b32 v37, v36
    s_nop 1
    v_permlane32_swap_b32 v36, v37
    s_nop 0
    v_max_f32 v36, v36, v37
    v_sub_f32 v32, v32, v36
    v_sub_f32 v33, v33, v36
    v_sub_f32 v34, v34, v36
    v_sub_f32 v35, v35, v36
    v_mul_f32 v32, s55, v32
    v_mul_f32 v33, s55, v33
    v_mul_f32 v34, s55, v34
    v_mul_f32 v35, s55, v35
    v_exp_f32 v32, v32
    v_exp_f32 v33, v33
    v_exp_f32 v34, v34
    v_exp_f32 v35, v35
    v_add_f32 v37, v32, v33
    v_cvt_pk_bf16_f32 v32, v32, v33
    v_add_f32 v38, v34, v35
    v_cvt_pk_bf16_f32 v33, v34, v35
    v_add_f32 v37, v37, v38
    ds_write_b64 v14, v[32:33]
    """)
    dpp_add(37, (8, 4))
    e("""
    v_mov_b32 v38, v37
    s_nop 1
    v_permlane16_swap_b32 v37, v38
    s_nop 0
    v_add_f32 v37, v37, v38
    v_mov_b32 v38, v37
    s_nop 1
    v_permlane32_swap_b32 v37, v38
    s_nop 0
    v_add_f32 v37, v37, v38
    s_mov_b64 exec, 15
    ds_write_b64 v16, v[36:37]
    s_mov_b64 exec, -1
    """)
    flag_add(1, F_P, 30)
    for sp in range(4):
        e(f"""
        s_add_u32 s56, s{sRS}, {sp}
        s_and_b32 s56, s56, 3
        s_lshl_b32 s57, s56, 9
        v_add_u32 v{40+sp}, s57, v15
        s_lshl_b32 s57, s56, 5
        v_add_u32 v{44+sp}, s57, v17
        s_lshl_b32 s57, s56, 14
        v_add_u32 v{48+2*sp}, s57, v18
        v_add_u32 v{49+2*sp}, s57, v19
        """)
    spin_ge(1, F_P, 4, 6)
    for sp in range(4):
        e(f"ds_read_b64 v[{56+2*sp}:{57+2*sp}], v{44+sp}")
    for sp in range(4):
        for sg in range(2):
            r = 64 + 8*sp + 4*sg
            e(f"ds_read_b128 v[{r}:{r+3}], v{40+sp} offset:{256*sg}")
    e("""
    s_waitcnt lgkmcnt(8)
    v_max_f32 v32, v56, v58
    v_max3_f32 v32, v60, v62, v32
    v_sub_f32 v56, v56, v32
    v_sub_f32 v58, v58, v32
    v_sub_f32 v60, v60, v32
    v_sub_f32 v62, v62, v32
    v_mul_f32 v56, s55, v56
    v_mul_f32 v58, s55, v58
    v_mul_f32 v60, s55, v60
    v_mul_f32 v62, s55, v62
    v_exp_f32 v56, v56
    v_exp_f32 v58, v58
    v_exp_f32 v60, v60
    v_exp_f32 v62, v62
    v_mul_f32 v33, v56, v57
    v_fmac_f32 v33, v58, v59
    v_fmac_f32 v33, v60, v61
    v_fmac_f32 v33, v62, v63
    s_getreg_b32 s56, hwreg(HW_REG_XCC_ID, 0, 4)
    s_lshl_b32 s56, s56, 8
    v_mov_b32 v34, s56
    v_mov_b32 v35, 0
    """)
    e(f"s_cmp_eq_u32 s{sW}, 0\ns_cbranch_scc0 L_nostat")
    tag_insert(32, 4)
    e(f"""
    s_mov_b64 exec, 15
    buffer_store_dwordx4 v[32:35], v29, s[{SRD_WS}:{SRD_WS+3}], 0 offen
    buffer_store_dwordx4 v[32:35], v29, s[{SRD_WS}:{SRD_WS+3}], s{sBOFF} offen sc1
    s_mov_b64 exec, -1
    L_nostat:
    """)
    stamp(3)
    def fold(sp):
        for k in range(8):
            a = 96 + 8*sp + k
            if sp == 0: e(f"v_mul_f32 v{144+k}, v{56+2*sp}, v{a}")
            else: e(f"v_fmac_f32 v{144+k}, v{56+2*sp}, v{a}")
    for sp in range(4):
        e(f"s_add_u32 s58, s{sVB}, {4*(sp+1) + (cfg.woe if sp == 3 else 0)}")
        spin_land(58, 6, extra=(f"ds_read_b32 v42, v1 offset:{F_W}\nds_read_b32 v40, v26\nds_read_b32 v41, v26 offset:32" if sp == 3 else ""))
        if sp == 3: stamp(4)
        for sg in range(2):
            for ee in range(2):
                r = 128 + 8*sg + 4*ee
                e(f"ds_read_b64_tr_b16 v[{r}:{r+1}], v{48+2*sp+ee} offset:{8192*sg}")
                e(f"ds_read_b64_tr_b16 v[{r+2}:{r+3}], v{48+2*sp+ee} offset:{8192*sg+4096}")
        if sp == 3: e("v_readfirstlane_b32 s59, v42")
        if sp > 0: fold(sp-1)
        for sg in range(2):
            for ee in range(2):
                r = 128 + 8*sg + 4*ee
                a = 96 + 8*sp + 4*ee
                p = 64 + 8*sp + 4*sg
                e(f"s_waitcnt lgkmcnt({6 - 2*(2*sg+ee)})" if not cfg.diag else "s_waitcnt lgkmcnt(0)")
                e(f"v_mfma_f32_16x16x32_bf16 v[{a}:{a+3}], v[{r}:{r+3}], v[{p}:{p+3}], {f'v[{a}:{a+3}]' if sg else 0}")
        if sp < 3: e("s_nop 2")
    e("s_nop 6")
    fold(3)
    for k in range(4):
        e(f"v_cndmask_b32 v{144+k}, v{144+k}, v{148+k}, s[50:51]")
    tag_insert(144, 4)
    e(f"""
    s_mov_b32 s56, 0x00ff00ff
    s_mov_b32 s57, 0x00ff00ff
    s_mov_b64 exec, s[56:57]
    buffer_store_dwordx4 v[144:147], v22, s[{SRD_WS}:{SRD_WS+3}], 0 offen
    s_cmp_eq_u32 s59, 1
    s_cbranch_scc1 L_oloc
    buffer_store_dwordx4 v[144:147], v22, s[{SRD_WS}:{SRD_WS+3}], s{sBOFF} offen sc1
    s_mov_b64 exec, -1
    """)
    spin_ge(1, F_W, 1, 42, extra="ds_read_b32 v40, v26\nds_read_b32 v41, v26 offset:32")
    e(f"""
    v_readfirstlane_b32 s59, v42
    s_nop 3
    s_and_b32 s{sOFF}, s59, -2
    L_oloc:
    s_mov_b64 exec, -1
    buffer_load_dwordx4 v[32:35], v24, s[{SRD_WS}:{SRD_WS+3}], s{sOFF} offen {cfg.ldA}
    buffer_load_dwordx4 v[36:39], v25, s[{SRD_WS}:{SRD_WS+3}], s{sOFF} offen {cfg.ldA}
    s_add_u32 s58, s{sVB}, 20
    """)
    stamp(5)
    spin_land(58, 6)
    for ee in range(2):
        for t in range(2):
            r = 64 + 8*ee + 4*t
            e(f"ds_read_b64_tr_b16 v[{r}:{r+1}], v{20+ee} offset:{8192*t}")
            e(f"ds_read_b64_tr_b16 v[{r+2}:{r+3}], v{20+ee} offset:{8192*t+1024}")
    e(f"""
    s_branch L_ochk
    L_oretry:
    buffer_load_dwordx4 v[32:35], v24, s[{SRD_WS}:{SRD_WS+3}], s{sOFF} offen {cfg.ldA}
    buffer_load_dwordx4 v[36:39], v25, s[{SRD_WS}:{SRD_WS+3}], s{sOFF} offen {cfg.ldA}
    L_ochk:
    s_waitcnt vmcnt(0)
    """)
    tag_check(32, 7, True); tag_check(36, 7, False)
    tag_branch(7, "L_oretry", masked=True)
    stamp(6)
    for k in range(8): e(f"v_and_b32 v{32+k}, 0xffffff00, v{32+k}")
    for k in range(4): e(f"v_mul_f32 v{32+k}, v40, v{32+k}")
    for k in range(4): e(f"v_fmac_f32 v{32+k}, v41, v{36+k}")
    reduce4_rows(32, 36)
    dpp_add(32, (8,))
    e("""
    v_cvt_pk_bf16_f32 v32, v32, v32
    ds_write_b16 v27, v32
    """)
    flag_add(1, F_O, 30)
    spin_ge(1, F_O, 4, 6, extra="ds_read_b128 v[40:43], v28\nds_read_b128 v[44:47], v28 offset:64")
    for t in range(2):
        for ee in range(2):
            r = 64 + 8*ee + 4*t
            a = 32 + 4*ee
            e(f"v_mfma_f32_16x16x32_bf16 v[{a}:{a+3}], v[{r}:{r+3}], v[{40+4*t}:{43+4*t}], {f'v[{a}:{a+3}]' if t else 0}")
    e(f"""
    s_mov_b32 s56, 0x000f000f
    s_mov_b32 s57, 0x000f000f
    s_nop 5
    """)
    for k in range(4):
        e(f"v_cndmask_b32 v{32+k}, v{32+k}, v{36+k}, s[52:53]")
    tag_insert(32, 4)
    e(f"""
    s_mov_b64 exec, s[56:57]
    buffer_store_dwordx4 v[32:35], v23, s[{SRD_WS}:{SRD_WS+3}], 0 offen sc1
    """)
    stamp(7)
    stamps_out(8)
    e("L_end:\ns_endpgm\nL_codeend:")
    body = "\n".join(out)
    hdr = open("recurrent_scan__sliding_block_cached__dense_activation_squared_relu__decode.s.ref").read().split("; Override launch")[0]
    return f"""{hdr}; Single fused launch: 256 workgroups (one per CU) x 7 waves.
; @launch grid=(256,1,1) block=(448,1,1) lds={LDS_TOTAL}
.amdgcn_target "amdgcn-amd-amdhsa--gfx950"
.text
.globl {KNAME}
.p2align 8
.type {KNAME},@function
{KNAME}:
{body}
.section .rodata,"a"
.p2align 6
.amdhsa_kernel {KNAME}
  .amdhsa_next_free_vgpr 192
  .amdhsa_next_free_sgpr 102
  .amdhsa_accum_offset 192
  .amdhsa_group_segment_fixed_size 0
  .amdhsa_kernarg_size 104
  .amdhsa_user_sgpr_count 2
  .amdhsa_user_sgpr_kernarg_segment_ptr 1
  .amdhsa_system_sgpr_workgroup_id_x 1
.end_amdhsa_kernel
"""

if __name__ == "__main__":
    path = sys.argv[1]
    for a in sys.argv[2:]:
        k, v = a.split("=")
        cur = getattr(cfg, k)
        setattr(cfg, k, type(cur)(int(v)) if isinstance(cur, (bool, int)) else v.replace("+", " "))
    open(path, "w").write(build())
```

```python
import sys
KNAME = "recurrent_scan__sliding_block_cached__dense_activation_squared_relu__decode_kernel"

cfg_dbgsel = {6: [(0,0,1),(0,1,0),(1,2,1),(1,3,0),(2,4,0),(4,5,1),(4,6,0),(5,7,0)], 7: [(4,8,0),(5,9,0),(6,10,0)], 8: [(5,11,0),(6,12,1),(6,13,0),(7,14,0)]}
class Cfg:
    early = False
    ampw = -1
    ampk = 0
    ampg = -1
    dbg = False
    diag = False
    lw = 6
    lw2 = 6
    win = 20
    qlead = 10
    woe = 2
    ntmo = 4
    skip = ''
    only = 0
    pfi = 28
    slp = 0
    win2 = 20
    w2at = 4
    slead = 8
    flead = 13
    hgate = 13
    ldA = 'sc1'
    pf = 1
    first = 'sc1'
    ntK = "nt"; ntW = "nt"
    rotmul = 1
cfg = Cfg()

L_K, L_V, L_WO = 0, 65536, 131072
SCR = 147456
L_QS = SCR
L_PB = SCR + 1152
L_SB = L_PB + 2048
L_WT = L_SB + 128
L_OB = L_WT + 128
L_ACTA = L_OB + 256
L_ACTB = L_ACTA + 576
L_FL = L_ACTB + 576
L_LAND = L_FL + 64
LDS_TOTAL = L_LAND + 16 + 256
F_Q, F_K, F_P, F_V, F_T, F_WO, F_W, F_O = [4*k for k in range(8)]
W_ST, W_QP, W_HP, W_OP, B_OFF, W_SP, W_FP = 0x8000, 0x10000, 0x30000, 0x40000, 0xC0000, 0x180000, 0x1C0000
WS_BYTES = 0x200000
SPIN_CAP = 20002
LOG2E = 0x3fb8aa3b
SCALE = 0x3db504f3

sWAVE, sG, sI, sNON = 30, 31, 32, 33
sT0, sT1, sT2, sT3 = 33, 34, 35, 40
SRD_WS = 36
sSLOT = 41
sRS = 42
sCAP = 43
sVB, sOFF, sBOFF = 71, 72, 73
sKEND = sVB
O_LAND = 64
STAMP0 = 80

out = []
def e(s):
    for ln in s.strip("\n").split("\n"):
        out.append("    " + ln.strip() if not ln.strip().endswith(":") else ln.strip())

def estamp(k):
    if cfg.diag and cfg.early:
        e(f"s_memrealtime s[{STAMP0+2*k}:{STAMP0+2*k+1}]")
def stamp(k):
    if cfg.diag and (not cfg.early or k == 0 or k >= 6):
        e(f"s_memrealtime s[{STAMP0+2*k}:{STAMP0+2*k+1}]")

def stamps_out(n):
    if not cfg.diag: return
    if cfg.ampw >= 0:
        L = lbl("L_amp"); Ls = lbl("L_amps")
        if cfg.ampk < n:
            e(f"""
            s_waitcnt lgkmcnt(0)
            s_cmp_eq_u32 s{sWAVE}, {cfg.ampw}
            s_cbranch_scc0 {Ls}
            {f's_cmp_eq_u32 s{sG}, {cfg.ampg}; s_cbranch_scc0 {Ls}'.replace('; ', chr(10)) if cfg.ampg >= 0 else ''}
            s_sub_u32 s60, s{STAMP0+2*cfg.ampk}, s{STAMP0}
            s_min_u32 s60, s60, 20000
            s_mul_i32 s60, s60, 10
            s_memrealtime s[62:63]
            s_waitcnt lgkmcnt(0)
            {L}:
            s_memrealtime s[68:69]
            s_waitcnt lgkmcnt(0)
            s_sub_u32 s61, s68, s62
            s_cmp_lt_u32 s61, s60
            s_cbranch_scc1 {L}
            {Ls}:
            """)
        return
    if cfg.dbg:
        sel = cfg_dbgsel[n] if n in cfg_dbgsel else []
        e("s_waitcnt lgkmcnt(0)\ns_mov_b64 exec, 1\nv_mov_b32 v1, 0")
        if n == 8: e(f"s_cmp_eq_u32 s{sWAVE}, 2\ns_cbranch_scc0 L_dbgskip{len(out)}"); lab = f"L_dbgskip{len(out)-2}"
        for (k, slot, mn) in sel:
            e(f"v_mov_b32 v4, s{STAMP0+2*k}")
            if mn: e("v_not_b32 v4, v4")
            e(f"global_atomic_umax v1, v4, s[26:27] offset:{4*slot}\ns_nop 1")
        if n == 8: e(f"{lab}:")
        e("s_waitcnt vmcnt(0)")
        return
    L = lbl("L_dly")
    e(f"""
    s_waitcnt lgkmcnt(0)
    s_add_u32 s61, s{STAMP0}, 1600
    {L}:
    s_sleep 8
    s_memrealtime s[68:69]
    s_waitcnt lgkmcnt(0)
    s_cmp_lt_u32 s68, s61
    s_cbranch_scc1 {L}
    s_lshl_b32 s60, s2, 4
    s_add_u32 s60, s60, s{sWAVE}
    s_lshl_b32 s60, s60, 6
    s_add_u32 s68, s28, s60
    s_addc_u32 s69, s29, 0
    s_add_u32 s68, s68, 0x10000000
    s_addc_u32 s69, s69, 0
    s_mov_b64 exec, 1
    v_mov_b32 v1, 0
    """)
    for k in range(8):
        if k < n:
            e(f"v_mov_b32 v4, s{STAMP0+2*k}\nv_mov_b32 v5, s{STAMP0+2*k+1}")
        else:
            e(f"v_mov_b32 v4, s{STAMP0}\nv_mov_b32 v5, s{STAMP0+1}")
        e(f"global_store_dwordx2 v1, v[4:5], s[68:69] offset:{8*k}\ns_nop 1")
    e("s_waitcnt vmcnt(0)")

lblc = [0]
def lbl(p="L"):
    lblc[0] += 1
    return f"{p}_{lblc[0]}"

def flag_set(vfl, off, vval):
    e(f"s_mov_b64 exec, 1\nds_write_b32 v{vfl}, v{vval} offset:{off}\ns_mov_b64 exec, -1")
def flag_add(vfl, off, vone):
    e(f"s_mov_b64 exec, 1\nds_add_u32 v{vfl}, v{vone} offset:{off}\ns_mov_b64 exec, -1")
def spin_ge(vfl, off, target, vtmp, extra="", slp=0):
    L = lbl("L_sp")
    e(f"""{L}:
    {f's_sleep {slp}' if slp else ''}
    ds_read_b32 v{vtmp}, v{vfl} offset:{off}
    {extra}
    s_waitcnt lgkmcnt(0)
    v_cmp_le_u32 vcc, {target}, v{vtmp}
    s_cbranch_vccz {L}""")

def spin_land(sreg, vtmp, extra="", slp=0):
    L = lbl("L_sl")
    e(f"""{L}:
    {f's_sleep {slp}' if slp else ''}
    ds_read_b128 v[160:163], v1 offset:{O_LAND}
    {extra}
    s_waitcnt lgkmcnt(0)
    v_min3_i32 v160, v160, v161, v162
    v_min_i32 v160, v160, v163
    v_cmp_le_i32 vcc, s{sreg}, v160
    s_cbranch_vccz {L}""")

def get_loc(vtmp, slp=None):
    spin_ge(1, F_Q, 1, vtmp, slp=cfg.slp if slp is None else slp)
    e(f"v_readfirstlane_b32 s{sOFF}, v{vtmp}\ns_nop 3\ns_and_b32 s{sOFF}, s{sOFF}, -2")

def tag_check(regs, acc, first):
    T = [sT0, sT1, sT2, sT3]
    for k in range(4):
        if first and k == 0:
            e(f"v_xor_b32 v{acc}, s{T[0]}, v{regs}")
        else:
            e(f"v_bitop3_b32 v{acc}, v{regs+k}, s{T[k]}, v{acc} bitop3:0xbe")
def tag_branch(acc, Lretry, toggle=False, masked=False):
    Ld = lbl("L_ok")
    e(f"""
    v_and_b32 v{acc}, 0xff, v{acc}
    v_cmp_ne_u32 vcc, 0, v{acc}
    s_cbranch_vccz {Ld}""")
    if masked: e("s_mov_b64 exec, vcc")
    if toggle:
        e(f"""
        s_and_b32 s{sOFF}, s{sCAP}, 3
        s_cselect_b32 s{sOFF}, 0, s{sBOFF}""")
    e(f"""
    s_sub_u32 s{sCAP}, s{sCAP}, 1
    s_cbranch_scc0 {Lretry}
    s_mov_b32 s{sCAP}, 0
    {Ld}:""")
    if masked: e("s_mov_b64 exec, -1")
def tag_insert(regs, vff):
    T = [sT0, sT1, sT2, sT3]
    for k in range(4):
        e(f"v_bfi_b32 v{regs+k}, v{vff}, s{T[k]}, v{regs+k}")

def nonce_from_epoch():
    e(f"""
    s_add_u32 s{sT0}, s{sT0}, 0x01010101
    s_lshr_b32 s{sT1}, s{sT0}, 8
    s_lshr_b32 s{sT2}, s{sT0}, 16
    s_lshr_b32 s{sT3}, s{sT0}, 24
    """)

def srd(r, lo, hi, nbytes):
    pass

def reduce4_rows(x, t):
    e(f"""
    s_nop 1
    v_permlane32_swap_b32 v{x}, v{x+1}
    v_permlane32_swap_b32 v{x+2}, v{x+3}
    s_nop 0
    v_add_f32 v{x}, v{x}, v{x+1}
    v_add_f32 v{x+2}, v{x+2}, v{x+3}
    s_nop 1
    v_permlane16_swap_b32 v{x}, v{x+2}
    s_nop 0
    v_add_f32 v{x}, v{x}, v{x+2}
    """)
def dpp_add(x, rots):
    for r in rots:
        e(f"s_nop 1\nv_add_f32_dpp v{x}, v{x}, v{x} row_ror:{r} row_mask:0xf bank_mask:0xf")
def dpp_max(x, rots):
    for r in rots:
        e(f"s_nop 1\nv_max_f32_dpp v{x}, v{x}, v{x} row_ror:{r} row_mask:0xf bank_mask:0xf")
def rnd_bf16(x):
    e(f"v_cvt_pk_bf16_f32 v{x}, v{x}, v{x}\nv_and_b32 v{x}, 0xffff0000, v{x}")

def build():
    out.clear()
    stamp(0)
    nt = cfg.ntK
    W = cfg.lw; W2 = cfg.lw2
    e(f"""
    s_load_dwordx16 s[4:19], s[0:1], 0
    s_load_dwordx8 s[20:27], s[0:1], 64
    s_load_dwordx2 s[28:29], s[0:1], 96
    v_readfirstlane_b32 s{sWAVE}, v0
    s_cmpk_ge_u32 s2, 0x100
    s_cbranch_scc1 L_end
    v_and_b32 v0, 63, v0
    s_and_b32 s{sG}, s2, 7
    s_lshr_b32 s{sI}, s2, 3
    s_cmpk_ge_u32 s{sWAVE}, 0x100
    s_cbranch_scc1 L_notloader
    v_lshrrev_b32 v12, 3, v0
    v_and_b32 v13, 7, v0
    v_and_b32 v14, 2, v12
    v_xor_b32 v13, v13, v14
    v_lshlrev_b32 v13, 4, v13
    s_and_b32 s63, s{sWAVE}, 64
    v_xor_b32 v13, s63, v13
    v_lshl_add_u32 v10, v12, 13, v13
    s_lshr_b32 s45, s2, 6
    s_lshl_b32 s45, s45, 20
    s_and_b32 s46, s{sI}, 7
    s_lshl3_add_u32 s46, s{sG}, s46
    s_lshl_b32 s46, s46, 7
    s_add_u32 s45, s45, s46
    s_mov_b32 s58, {127*8192+128}
    s_mov_b32 s59, 0x20000
    s_lshl4_add_u32 m0, s{sWAVE}, {L_WO}
    s_lshl_b32 s47, s{sWAVE}, 10
    s_waitcnt lgkmcnt(0)
    s_add_u32 s56, s10, s45
    s_addc_u32 s57, s11, 0
    L_ldA:
    buffer_load_dwordx4 v10, s[56:59], s47 offen {cfg.ntW} lds
    s_addk_i32 m0, 0x1000
    s_add_u32 s47, s47, 0x40000
    s_bitcmp0_b32 s47, 20
    s_cbranch_scc1 L_ldA
    s_mul_i32 s44, s2, {cfg.rotmul}
    s_bfe_u32 s{sRS}, s44, 0x20002
    v_and_b32 v2, 15, v0
    v_lshrrev_b32 v3, 4, v0
    s_lshl_b32 s64, s{sWAVE}, 4
    s_add_u32 s62, s{sRS}, 3
    s_and_b32 s62, s62, 3
    s_add_u32 s62, s62, 4
    s_lshl_b32 s62, s62, 14
    s_branch L_ld2
    .p2align 8
    """)
    e(f"""L_notloader:
    v_mov_b32 v1, {L_FL}
    v_mov_b32 v5, 0
    v_lshl_add_u32 v6, v0, 2, v1
    ds_write_b32 v6, v5
    s_lshr_b32 s{sWAVE}, s{sWAVE}, 6
    """)
    if cfg.pf:
        e(f"""
        s_cmp_eq_u32 s{sWAVE}, 9
        s_cbranch_scc0 L_nopf
        s_getpc_b64 s[46:47]
        L_pc:
        s_mul_i32 s45, s{sI}, 3
        v_min_u32 v5, 2, v0
        v_add_u32 v5, s45, v5
        v_lshlrev_b32 v5, 7, v5
        v_min_u32 v5, L_codeend-L_pc-4, v5
        global_load_dword v166, v5, s[46:47]
        L_nopf:""")
    e(f"""
    v_lshlrev_b32 v5, 5, v0
    s_cmp_ge_u32 s{sWAVE}, 6
    s_waitcnt lgkmcnt(0)
    s_load_dword s{sT0}, s[28:29], 0
    s_cbranch_scc1 L_nox
    global_load_dwordx4 v[8:11], v5, s[4:5]
    global_load_dwordx4 v[12:15], v5, s[4:5] offset:16
    L_nox:
    s_barrier
    s_branch L_nl2
    """)
    def flagw():
        e("ds_write_b32 v16, v15\nv_add_u32 v15, 1, v15")
    e(f"""L_ld2:
    v_mov_b32 v1, {L_FL}
    s_lshr_b32 s45, s{sWAVE}, 4
    s_add_u32 s45, s45, {L_LAND}
    v_lshl_add_u32 v16, v0, 2, v1
    v_add_u32 v16, {O_LAND+16}, v16
    v_writelane_b32 v16, s45, 0
    v_mov_b32 v15, {5-W}
    s_barrier
    """)
    estamp(1)
    stamp(1)
    e(f"""
    s_cmp_lt_u32 s{sG}, 7
    s_cbranch_scc0 L_ld_noB
    s_add_u32 m0, s62, s64
    s_and_b32 s65, s{sI}, 15
    s_lshl4_add_u32 s65, s{sG}, s65
    s_cmp_lt_u32 s{sI}, 16
    s_cbranch_scc0 L_ld_w2
    s_and_b32 s45, s65, 3
    s_mul_i32 s45, s45, {128*3584}
    s_lshr_b32 s46, s65, 2
    s_lshl_b32 s46, s46, 7
    s_add_u32 s45, s45, s46
    s_add_u32 s56, s16, s45
    s_addc_u32 s57, s17, 0
    v_mul_u32_u24 v10, 3584, v12
    v_add_u32 v10, v10, v13
    s_mul_i32 s47, s64, 28
    s_mov_b32 s46, {32*3584}
    s_branch L_ld_B
    L_ld_w2:
    s_lshr_b32 s45, s65, 3
    s_lshl_b32 s45, s45, 17
    s_and_b32 s46, s65, 7
    s_lshl_b32 s46, s46, 7
    s_add_u32 s45, s45, s46
    s_add_u32 s56, s20, s45
    s_addc_u32 s57, s21, 0
    v_lshl_add_u32 v10, v12, 10, v13
    s_lshl_b32 s47, s64, 3
    s_mov_b32 s46, 0x8000
    L_ld_B:
    s_sub_u32 s58, {512*1792*2}, s45
    s_mov_b32 s60, 0
    L_ldB:
    s_waitcnt vmcnt({W-1})
    buffer_load_dwordx4 v10, s[56:59], s47 offen {cfg.ntW} lds
    s_addk_i32 m0, 0x1000
    s_add_u32 s47, s47, s46""")
    flagw()
    e(f"""
    s_add_u32 s60, s60, 1
    s_cmp_lt_u32 s60, 4
    s_cbranch_scc1 L_ldB
    L_ld_noB:
    v_lshlrev_b32 v14, 8, v3
    v_xor_b32 v17, v3, v2
    v_lshl_add_u32 v4, v17, 4, v14
    v_xor_b32 v4, s{sWAVE}, v4
    s_lshr_b32 s45, s{sI}, 4
    s_lshl_b32 s45, s45, 26
    s_lshl_b32 s46, s{sG}, 23
    s_add_u32 s45, s45, s46
    s_and_b32 s46, s{sI}, 15
    s_lshl_b32 s46, s46, 16
    s_add_u32 s45, s45, s46
    s_add_u32 s45, s45, {28672*256}
    s_mov_b32 s50, 0x10000
    s_mov_b32 s51, 0x20000
    s_add_u32 s48, s6, s45
    s_addc_u32 s49, s7, 0
    s_and_b32 s44, s44, 15
    s_lshl_b32 s47, s44, 12
    s_add_u32 s47, s47, s64
    s_mov_b32 s60, 0
    L_ldK:
    s_mov_b32 m0, s47
    s_add_u32 s60, s60, 1
    s_waitcnt vmcnt({W-1})
    buffer_load_dwordx4 v4, s[48:51], s47 offen {nt} lds""")
    flagw()
    e(f"""
    s_addk_i32 s47, 0x1000
    s_and_b32 s47, s47, 0xffff
    s_cmp_lt_u32 s60, 16
    s_cbranch_scc1 L_ldK
    """)
    stamp(2)
    e(f"""
    v_lshlrev_b32 v17, 1, v3
    v_xor_b32 v17, v17, v2
    v_lshl_add_u32 v8, v17, 4, v14
    s_lshl_b32 s63, s63, 1
    v_xor_b32 v8, s63, v8
    v_lshlrev_b32 v14, 10, v3
    v_lshl_add_u32 v10, v17, 4, v14
    s_and_b32 s63, s{sWAVE}, 0x80
    v_xor_b32 v10, s63, v10
    s_add_u32 s52, s8, s45
    s_addc_u32 s53, s9, 0
    s_mov_b32 s54, 0x10000
    s_mov_b32 s55, 0x20000
    s_mov_b32 s60, 0
    s_and_b32 s61, s44, 3
    """)
    def vloop(name, end, win, noflag=False):
        e(f"""{name}:
        s_lshr_b32 s47, s60, 2
        s_add_u32 s47, s47, s{sRS}
        s_and_b32 s47, s47, 3
        s_add_u32 s62, s61, s60
        s_and_b32 s62, s62, 3
        s_lshl2_add_u32 s47, s47, s62
        s_lshl_b32 s47, s47, 12
        s_add_u32 s47, s47, s64
        s_add_u32 m0, s47, {L_V}
        s_add_u32 s60, s60, 1
        s_waitcnt vmcnt({win-1})
        buffer_load_dwordx4 v8, s[52:55], s47 offen {nt} lds""")
        if not noflag: flagw()
        e(f"""
        s_cmp_lt_u32 s60, {end}
        s_cbranch_scc1 {name}
        """)
    def woloop(name, g0, g1):
        if g0 == g1: return
        e(f"""
        s_add_u32 m0, s64, {L_WO + 4096*g0}
        s_lshl_b32 s47, s64, 2
        s_add_u32 s47, s47, {16384*g0}
        {name}:
        s_waitcnt vmcnt({W2-1})
        buffer_load_dwordx4 v10, s[56:59], s47 offen {cfg.ntW} lds
        s_addk_i32 m0, 0x1000
        s_addk_i32 s47, 0x4000""")
        flagw()
        e(f"""
        s_cmp_lt_u32 s47, {16384*g1}
        s_cbranch_scc1 {name}""")
    if W2 > W:
        assert cfg.w2at + (W2 - W) <= 12
        if cfg.w2at > 0: vloop("L_ldV0", cfg.w2at, W)
        vloop("L_ldV0b", cfg.w2at + W2 - W, W2, noflag=True)
        if cfg.w2at + W2 - W < 12: vloop("L_ldV1", 12, W2)
    else:
        assert W2 == W
        vloop("L_ldV1", 12, W)
    e(f"""
    s_lshl_b32 s45, s{sG}, 19
    s_lshr_b32 s46, s{sI}, 2
    s_lshl_b32 s46, s46, 16
    s_add_u32 s45, s45, s46
    s_and_b32 s46, s{sI}, 3
    s_lshl_b32 s46, s46, 8
    s_add_u32 s45, s45, s46
    s_add_u32 s56, s12, s45
    s_addc_u32 s57, s13, 0
    s_mov_b32 s58, {63*1024+256}
    """)
    spin_ge(1, F_T, 2, 17)
    woloop("L_ldWO1", 0, cfg.woe)
    vloop("L_ldV2", 16, W2)
    woloop("L_ldWO2", cfg.woe, 4)
    stamp(3)
    for k in range(W2-1, -1, -1):
        e(f"s_waitcnt vmcnt({k})")
        flagw()
        if k == 4 - cfg.woe: stamp(4)
    stamp(5)
    if cfg.diag: e(f"s_lshr_b32 s{sWAVE}, s{sWAVE}, 6")
    stamps_out(6)
    e("s_endpgm")

    e(f"""L_nl2:
    {f"s_mov_b64 exec, 1; v_mov_b32 v5, 2; ds_write_b32 v1, v5 offset:{F_T}; s_waitcnt vmcnt(0) lgkmcnt(0); s_endpgm".replace("; ", chr(10)) if cfg.only == 1 else ""}
    s_setprio 1
    v_and_b32 v2, 15, v0
    v_lshrrev_b32 v3, 4, v0
    s_mul_i32 s44, s2, {cfg.rotmul}
    s_bfe_u32 s{sRS}, s44, 0x20002
    s_lshl_b32 s{sSLOT}, s{sG}, 5
    s_add_u32 s{sSLOT}, s{sSLOT}, s{sI}
    s_mov_b32 s{sCAP}, {SPIN_CAP}
    s_cmp_lt_u32 s{sG}, 7
    s_cselect_b32 s{sVB}, 24, 20
    v_mov_b32 v4, 0xff
    s_mov_b32 s{SRD_WS}, s28
    s_mov_b32 s{SRD_WS+1}, s29
    s_mov_b32 s{SRD_WS+2}, {WS_BYTES}
    s_mov_b32 s{SRD_WS+3}, 0x20000
    s_mov_b32 s{sOFF}, 0
    s_mov_b32 s{sBOFF}, {B_OFF}
    s_cmp_ge_u32 s{sWAVE}, 6
    s_cbranch_scc1 L_compute
    """)
    e(f"""
    s_cmp_eq_u32 s{sWAVE}, 4
    s_cbranch_scc0 L_roleB
    s_mov_b32 s44, 0
    s_lshr_b32 s53, s{sI}, 3
    s_lshl_b32 s52, s{sSLOT}, 9
    s_add_u32 s52, s52, {W_QP}
    s_mov_b32 s54, {L_WO}
    s_mov_b32 s55, {L_ACTA}
    s_mov_b32 s45, 4
    s_branch L_tilecommon
    L_roleB:
    s_add_u32 s54, s{sRS}, 3
    s_and_b32 s54, s54, 3
    s_add_u32 s54, s54, 4
    s_lshl_b32 s54, s54, 14
    s_mov_b32 s55, {L_ACTB}
    s_mov_b32 s45, 8
    s_and_b32 s52, s{sI}, 15
    s_lshl4_add_u32 s52, s{sG}, s52
    s_lshr_b32 s44, s{sI}, 4
    s_and_b32 s53, s52, 3
    s_lshr_b32 s46, s52, 3
    s_lshl_b32 s52, s52, 9
    s_cmp_eq_u32 s44, 0
    s_cselect_b32 s53, s53, s46
    s_mov_b32 s46, {W_FP}
    s_cselect_b32 s46, {W_HP}, s46
    s_add_u32 s52, s52, s46
    s_cmp_eq_u32 s{sG}, 7
    s_cselect_b32 s44, 2, s44
    L_tilecommon:
    """)
    estamp(2)
    stamp(1)
    e(f"""
    v_lshrrev_b32 v5, 2, v2
    v_lshl_add_u32 v5, v3, 3, v5
    v_lshlrev_b32 v5, 7, v5
    v_and_b32 v6, 3, v2
    v_lshl_add_u32 v5, v6, 3, v5
    v_add_u32 v5, s54, v5
    v_lshrrev_b32 v6, 3, v2
    v_and_b32 v7, 1, v3
    v_lshl_or_b32 v6, v7, 1, v6
    """)
    for u in range(4):
        e(f"v_xor_b32 v7, {u}, v6\nv_lshl_add_u32 v{16+u}, v7, 5, v5")
    e(f"""
    v_and_b32 v5, 1, v0
    v_mul_u32_u24 v5, 288, v5
    v_lshl_add_u32 v5, v3, 4, v5
    v_add_u32 v20, s55, v5
    v_mov_b32 v21, 1
    v_mov_b32 v60, 0
    s_waitcnt lgkmcnt(0)
    """)
    nonce_from_epoch()
    e(f"""
    s_cmp_eq_u32 s44, 0
    s_waitcnt vmcnt(0)
    s_cbranch_scc0 L_noLN
    """)
    estamp(4)
    for k in range(8):
        e(f"v_lshlrev_b32 v{24+2*k}, 16, v{8+k}\nv_and_b32 v{25+2*k}, 0xffff0000, v{8+k}")
    e("v_pk_add_f32 v[40:41], v[24:25], v[26:27]")
    for k in range(2, 8):
        e(f"v_pk_add_f32 v[40:41], v[40:41], v[{24+2*k}:{25+2*k}]")
    e("v_add_f32 v40, v40, v41")
    dpp_add(40, (8, 4, 2, 1))
    e("v_mov_b32 v41, v40\ns_nop 1\nv_permlane16_swap_b32 v40, v41\ns_nop 0\nv_add_f32 v40, v40, v41")
    e("v_mul_f32 v40, 0xbb000000, v40\nv_mov_b32 v41, v40")
    e("v_pk_add_f32 v[42:43], v[24:25], v[40:41]\nv_pk_mul_f32 v[44:45], v[42:43], v[42:43]")
    for k in range(1, 8):
        e(f"v_pk_add_f32 v[42:43], v[{24+2*k}:{25+2*k}], v[40:41]\nv_pk_fma_f32 v[44:45], v[42:43], v[42:43], v[44:45]")
    e("v_add_f32 v44, v44, v45")
    dpp_add(44, (8, 4, 2, 1))
    e("v_mov_b32 v45, v44\ns_nop 1\nv_permlane16_swap_b32 v44, v45\ns_nop 0\nv_add_f32 v44, v44, v45")
    e("v_mul_f32 v44, 0x3b000000, v44")
    rnd_bf16(44)
    e("v_add_f32 v44, 0x3727c5ac, v44")
    rnd_bf16(44)
    e("v_sqrt_f32 v44, v44\ns_nop 0")
    rnd_bf16(44)
    e("v_rcp_f32 v44, v44")
    rnd_bf16(40)
    e("v_mov_b32 v41, v40\nv_mov_b32 v45, v44")
    for k in range(8):
        e(f"v_pk_add_f32 v[42:43], v[{24+2*k}:{25+2*k}], v[40:41]")
        e(f"v_cvt_pk_bf16_f32 v42, v42, v43\nv_and_b32 v43, 0xffff0000, v42\nv_lshlrev_b32 v42, 16, v42")
        e(f"v_pk_mul_f32 v[42:43], v[42:43], v[44:45]\nv_cvt_pk_bf16_f32 v{8+k}, v42, v43")
    e(f"""
    v_bfe_u32 v5, v0, 3, 2
    v_lshrrev_b32 v6, 5, v0
    v_mul_u32_u24 v6, 288, v6
    v_and_b32 v7, 7, v0
    v_lshl_add_u32 v6, v7, 5, v6
    v_add_u32 v6, s55, v6
    v_cmp_eq_u32 vcc, s53, v5
    s_and_saveexec_b64 s[56:57], vcc
    ds_write_b128 v6, v[8:11]
    ds_write_b128 v6, v[12:15] offset:16
    s_mov_b64 exec, -1
    L_noLN:
    """)
    stamp(2)
    e(f"""
    s_cmp_eq_u32 s44, 2
    s_cbranch_scc1 L_notile
    """)
    spin_land(45, 5, slp=cfg.slp)
    estamp(5)
    for u in range(4):
        for t in range(4):
            r = 64 + 16*u + 4*t
            e(f"ds_read_b64_tr_b16 v[{r}:{r+1}], v{16+u} offset:{t*4096}")
            e(f"ds_read_b64_tr_b16 v[{r+2}:{r+3}], v{16+u} offset:{t*4096+512}")
    e(f"""
    s_waitcnt lgkmcnt(0)
    L_notile:
    """)
    flag_add(1, F_T, 21)
    stamp(3)
    e(f"""
    s_cmp_eq_u32 s44, 1
    s_cbranch_scc0 L_noH
    """)
    e(f"""
    v_bfe_u32 v5, v0, 4, 1
    v_lshlrev_b32 v5, 11, v5
    v_lshrrev_b32 v6, 5, v0
    v_lshl_add_u32 v5, v6, 8, v5
    v_lshl_add_u32 v5, v2, 4, v5
    s_lshl_b32 s56, s53, 12
    s_add_u32 s56, s56, {W_HP}
    v_add_u32 v5, s56, v5
    v_and_b32 v7, 31, v0
    v_lshlrev_b32 v7, 3, v7
    s_lshl_b32 s56, s53, 8
    v_add_u32 v22, s56, v7
    global_load_dwordx2 v[22:23], v22, s[18:19]
    v_mul_u32_u24 v6, 288, v6
    v_add3_u32 v6, v6, v7, s55
    """)
    e(f"s_mov_b32 s45, {cfg.hgate}")
    spin_land(45, 7, slp=cfg.slp)
    e("L_hretry:")
    for k in range(4):
        e(f"buffer_load_dwordx4 v[{24+4*k}:{27+4*k}], v5, s[{SRD_WS}:{SRD_WS+3}], s{sOFF} offen offset:{512*k} sc1")
    e("s_waitcnt vmcnt(0)")
    for k in range(4): tag_check(24+4*k, 7, k == 0)
    e(f"""
    v_and_b32 v7, 0xff, v7
    v_cmp_ne_u32 vcc, 0, v7
    s_cbranch_vccz L_hok""")
    get_loc(7)
    e(f"""
    s_sub_u32 s{sCAP}, s{sCAP}, 1
    s_cbranch_scc0 L_hretry
    s_mov_b32 s{sCAP}, 0
    L_hok:""")
    for k in range(16): e(f"v_and_b32 v{24+k}, 0xffffff00, v{24+k}")
    e("""
    v_pk_add_f32 v[24:25], v[24:25], v[28:29]
    v_pk_add_f32 v[26:27], v[26:27], v[30:31]
    v_pk_add_f32 v[32:33], v[32:33], v[36:37]
    v_pk_add_f32 v[34:35], v[34:35], v[38:39]
    v_pk_add_f32 v[24:25], v[24:25], v[32:33]
    v_pk_add_f32 v[26:27], v[26:27], v[34:35]
    v_cvt_pk_bf16_f32 v24, v24, v25
    v_cvt_pk_bf16_f32 v26, v26, v27
    v_and_b32 v25, 0xffff0000, v24
    v_lshlrev_b32 v24, 16, v24
    v_and_b32 v27, 0xffff0000, v26
    v_lshlrev_b32 v26, 16, v26
    v_lshlrev_b32 v28, 16, v22
    v_and_b32 v29, 0xffff0000, v22
    v_lshlrev_b32 v30, 16, v23
    v_and_b32 v31, 0xffff0000, v23
    v_pk_add_f32 v[24:25], v[24:25], v[28:29]
    v_pk_add_f32 v[26:27], v[26:27], v[30:31]
    v_cvt_pk_bf16_f32 v24, v24, v25
    v_cvt_pk_bf16_f32 v26, v26, v27
    v_and_b32 v25, 0xffff0000, v24
    v_lshlrev_b32 v24, 16, v24
    v_and_b32 v27, 0xffff0000, v26
    v_lshlrev_b32 v26, 16, v26
    v_max_f32 v24, 0, v24
    v_max_f32 v25, 0, v25
    v_max_f32 v26, 0, v26
    v_max_f32 v27, 0, v27
    v_pk_mul_f32 v[24:25], v[24:25], v[24:25]
    v_pk_mul_f32 v[26:27], v[26:27], v[26:27]
    v_cvt_pk_bf16_f32 v24, v24, v25
    v_cvt_pk_bf16_f32 v25, v26, v27
    ds_write_b64 v6, v[24:25]
    L_noH:
    s_cmp_eq_u32 s44, 2
    s_cbranch_scc1 L_nopub
    """)
    e("s_waitcnt lgkmcnt(0)")
    for t in range(4):
        e(f"ds_read_b128 v[{24+4*t}:{27+4*t}], v20 offset:{64*t}")
    e(f"""
    s_cmp_eq_u32 s44, 0
    s_cselect_b32 s56, 8, 4
    s_cselect_b32 s57, 6, 5
    s_cselect_b32 s58, 4, 7
    v_and_b32 v5, 1, v0
    v_lshlrev_b32 v5, s56, v5
    v_bfe_u32 v6, v0, 1, 2
    v_lshl_add_u32 v5, v6, s57, v5
    v_lshl_add_u32 v5, v3, s58, v5
    v_add_u32 v60, s52, v5
    v_and_b32 v6, 2, v0
    v_cmp_ne_u32 s[56:57], 0, v6
    v_and_b32 v6, 4, v0
    v_cmp_ne_u32 s[58:59], 0, v6
    s_waitcnt lgkmcnt(0)
    """)
    for t in range(4):
        for u in range(4):
            r = 64 + 16*u + 4*t
            c = f"v[{40+4*u}:{43+4*u}]"
            e(f"v_mfma_f32_16x16x32_bf16 {c}, v[{r}:{r+3}], v[{24+4*t}:{27+4*t}], {c if t else 0}")
    e("s_nop 7")
    for k in range(4):
        e(f"v_cndmask_b32 v{40+k}, v{40+k}, v{44+k}, s[56:57]")
    for k in range(4):
        e(f"v_cndmask_b32 v{48+k}, v{48+k}, v{52+k}, s[56:57]")
    for k in range(4):
        e(f"v_cndmask_b32 v{56+k}, v{40+k}, v{48+k}, s[58:59]")
    tag_insert(56, 4)
    e(f"""
    s_mov_b32 s74, 0x00ff00ff
    s_mov_b32 s75, 0x00ff00ff
    s_mov_b64 exec, s[74:75]
    s_cmp_eq_u32 s44, 0
    s_cbranch_scc0 L_pubB
    buffer_store_dwordx4 v[56:59], v60, s[{SRD_WS}:{SRD_WS+3}], 0 offen
    s_branch L_pubE
    L_pubB:
    buffer_store_dwordx4 v[56:59], v60, s[{SRD_WS}:{SRD_WS+3}], 0 offen sc1
    L_pubE:
    s_mov_b64 exec, -1
    L_nopub:
    """)
    stamp(4)
    e(f"""
    s_cmp_eq_u32 s{sWAVE}, 4
    s_cbranch_scc0 L_final
    """)
    e(f"""
    v_lshlrev_b32 v10, 9, v3
    v_lshl_add_u32 v10, v2, 4, v10
    s_lshl_b32 s56, s{sG}, 14
    s_lshr_b32 s57, s{sI}, 4
    s_lshl_b32 s57, s57, 8
    s_add_u32 s56, s56, s57
    s_add_u32 s56, s56, {W_QP}
    v_add_u32 v10, s56, v10
    v_add_u32 v11, 0x1000, v10
    v_add_u32 v12, 0x2000, v10
    v_add_u32 v13, 0x3000, v10
    v_lshrrev_b32 v8, 5, v0
    v_lshlrev_b32 v8, 5, v8
    v_lshl_add_u32 v8, v0, 3, v8
    v_add_u32 v8, {L_QS}, v8
    s_sub_u32 s45, s{sKEND}, {cfg.qlead}
    s_getreg_b32 s76, hwreg(HW_REG_XCC_ID, 0, 4)
    s_lshl_b32 s56, s76, 8
    v_mov_b32 v64, s56
    v_mov_b32 v65, 0
    v_mov_b32 v66, 0
    v_mov_b32 v67, 0
    s_lshl_b32 s56, s{sSLOT}, 7
    s_add_u32 s56, s56, {W_ST+64}
    v_mov_b32 v61, s56
    v_and_b32 v62, 31, v0
    v_lshlrev_b32 v62, 7, v62
    s_lshl_b32 s56, s{sG}, 12
    s_add_u32 s56, s56, {W_ST+64}
    v_add_u32 v62, s56, v62
    s_mov_b32 s77, 0
    s_mov_b32 s78, 0
    """)
    tag_insert(64, 4)
    e(f"""
    s_mov_b64 exec, 1
    buffer_store_dwordx4 v[64:67], v61, s[{SRD_WS}:{SRD_WS+3}], 0 offen
    s_mov_b64 exec, -1
    """)
    def pubB_q():
        L = lbl("L_pb")
        e(f"""
        s_cmp_eq_u32 s77, 0
        s_cbranch_scc0 {L}
        s_mov_b32 s77, 1
        s_mov_b64 exec, s[74:75]
        buffer_store_dwordx4 v[56:59], v60, s[{SRD_WS}:{SRD_WS+3}], s{sBOFF} offen sc1
        s_mov_b64 exec, 1
        buffer_store_dwordx4 v[64:67], v61, s[{SRD_WS}:{SRD_WS+3}], s{sBOFF} offen sc1
        s_mov_b64 exec, -1
        {L}:""")
    spin_land(45, 7, slp=cfg.slp)
    e("L_qretry:")
    for v in range(2):
        for k in range(4):
            r = 24 + 16*v + 4*k
            e(f"buffer_load_dwordx4 v[{r}:{r+3}], v{10+k}, s[{SRD_WS}:{SRD_WS+3}], s{sOFF} offen offset:{2048*v} {cfg.ldA}")
    e(f"buffer_load_dwordx4 v[68:71], v62, s[{SRD_WS}:{SRD_WS+3}], s{sOFF} offen {cfg.ldA}")
    e("s_waitcnt vmcnt(0)")
    for k in range(8): tag_check(24+4*k, 7, k == 0)
    tag_check(68, 7, False)
    e(f"""
    v_and_b32 v7, 0xff, v7
    v_cmp_ne_u32 vcc, 0, v7
    s_cbranch_vccz L_qok
    s_add_u32 s78, s78, 1
    s_cmp_lt_u32 s78, {cfg.ntmo}
    s_cbranch_scc1 L_qretry
    s_xor_b32 s{sOFF}, s{sOFF}, s{sBOFF}
    """)
    pubB_q()
    e(f"""
    s_sub_u32 s{sCAP}, s{sCAP}, 1
    s_cbranch_scc0 L_qretry
    s_mov_b32 s{sCAP}, 0
    L_qok:
    v_lshrrev_b32 v68, 8, v68
    v_cmp_ne_u32 vcc, s76, v68
    s_mov_b32 s{sOFF}, 0
    s_cbranch_vccz L_qloc
    s_mov_b32 s{sOFF}, s{sBOFF}
    """)
    pubB_q()
    e(f"""L_qloc:
    s_add_u32 s56, s{sOFF}, 1
    v_mov_b32 v9, s56
    """)
    for k in range(32): e(f"v_and_b32 v{24+k}, 0xffffff00, v{24+k}")
    for v in range(2):
        r = 24 + 16*v
        e(f"""
        v_pk_add_f32 v[{r}:{r+1}], v[{r}:{r+1}], v[{r+4}:{r+5}]
        v_pk_add_f32 v[{r+2}:{r+3}], v[{r+2}:{r+3}], v[{r+6}:{r+7}]
        v_pk_add_f32 v[{r+8}:{r+9}], v[{r+8}:{r+9}], v[{r+12}:{r+13}]
        v_pk_add_f32 v[{r+10}:{r+11}], v[{r+10}:{r+11}], v[{r+14}:{r+15}]
        v_pk_add_f32 v[{r}:{r+1}], v[{r}:{r+1}], v[{r+8}:{r+9}]
        v_pk_add_f32 v[{r+2}:{r+3}], v[{r+2}:{r+3}], v[{r+10}:{r+11}]
        v_cvt_pk_bf16_f32 v{r}, v{r}, v{r+1}
        v_cvt_pk_bf16_f32 v{r+1}, v{r+2}, v{r+3}
        ds_write_b64 v8, v[{r}:{r+1}] offset:{576*v}
        """)
    flag_set(1, F_Q, 9)
    stamp(5)
    e(f"""
    v_and_b32 v5, 31, v0
    v_lshlrev_b32 v9, 2, v5
    v_add_u32 v9, {L_WT}, v9
    v_lshlrev_b32 v5, 7, v5
    s_lshl_b32 s56, s{sG}, 12
    s_lshr_b32 s57, s{sI}, 3
    s_lshl_b32 s57, s57, 4
    s_add_u32 s56, s56, s57
    s_add_u32 s56, s56, {W_ST}
    v_add_u32 v5, s56, v5
    """)
    spin_ge(1, F_P, 4, 7, slp=cfg.slp)
    e(f"""L_sretry:
    buffer_load_dwordx4 v[24:27], v5, s[{SRD_WS}:{SRD_WS+3}], s{sOFF} offen {cfg.ldA}
    s_waitcnt vmcnt(0)
    """)
    tag_check(24, 7, True)
    tag_branch(7, "L_sretry", masked=True)
    e(f"""
    v_and_b32 v24, 0xffffff00, v24
    v_and_b32 v25, 0xffffff00, v25
    v_mov_b32 v28, v24
    """)
    dpp_max(28, (8, 4, 2, 1))
    e(f"""
    v_sub_f32 v24, v24, v28
    v_mul_f32 v24, {LOG2E}, v24
    v_exp_f32 v24, v24
    s_nop 0
    v_mul_f32 v25, v24, v25
    """)
    dpp_add(25, (8, 4, 2, 1))
    e(f"""
    v_rcp_f32 v25, v25
    s_nop 0
    v_mul_f32 v24, v24, v25
    ds_write_b32 v9, v24
    """)
    flag_set(1, F_W, 21)
    stamp(6)
    if cfg.diag: e(f"s_waitcnt lgkmcnt(0)\ns_sub_u32 s94, {SPIN_CAP}, s{sCAP}\ns_lshl_b32 s94, s94, 8\ns_add_u32 s94, s94, s78\ns_mov_b32 s95, 0")
    stamps_out(8)
    e("s_endpgm")

    e(f"""L_final:
    s_cmp_eq_u32 s44, 0
    s_cbranch_scc0 L_fin0
    """)
    get_loc(7)
    e(f"""
    s_cmp_eq_u32 s{sOFF}, 0
    s_cbranch_scc1 L_fin0
    s_mov_b64 exec, s[74:75]
    buffer_store_dwordx4 v[56:59], v60, s[{SRD_WS}:{SRD_WS+3}], s{sBOFF} offen sc1
    s_mov_b64 exec, -1
    L_fin0:
    s_lshr_b32 s56, s{sI}, 3          ; ctile
    s_and_b32 s57, s{sI}, 1           ; b
    s_bfe_u32 s58, s{sI}, 0x10001     ; e
    s_bfe_u32 s59, s{sI}, 0x10002
    s_and_b32 s60, s{sG}, 1
    s_lshl1_add_u32 s59, s60, s59     ; G
    s_lshr_b32 s60, s{sG}, 1          ; w
    s_lshl2_add_u32 s61, s56, s60     ; 4*ctile + w
    s_lshl1_add_u32 s62, s61, s58
    s_lshl2_add_u32 s62, s62, s59     ; nq = n0/4
    v_and_b32 v5, 1, v3
    v_lshlrev_b32 v5, 1, v5
    v_lshrrev_b32 v6, 1, v3
    v_or_b32 v5, v5, v6              ; e(R)
    v_lshlrev_b32 v5, 1, v5
    s_lshl_b32 s63, s62, 3
    v_add_u32 v6, s63, v5
    global_load_ushort v10, v6, s[22:23]
    s_lshl_b32 s63, s57, 10
    v_add_u32 v8, s63, v6
    global_load_ushort v11, v8, s[4:5]
    s_lshr_b32 s63, s62, 4           ; ctile8
    s_lshl2_add_u32 s63, s63, s59
    s_lshl_b32 s63, s63, 2
    s_bfe_u32 s61, s62, 0x20002      ; u
    s_add_u32 s63, s63, s61
    s_lshl1_add_u32 s63, s63, s57
    s_lshl4_add_u32 s63, s63, {W_FP}
    v_min_u32 v5, 13, v0
    v_lshlrev_b32 v5, 12, v5
    v_add_u32 v5, s63, v5
    s_lshl3_add_u32 s63, s56, s{sG}
    s_and_b32 s61, s{sI}, 7
    s_lshl3_add_u32 s63, s63, s61
    s_lshl4_add_u32 s63, s63, {W_SP}
    v_lshlrev_b32 v6, 12, v0
    v_add_u32 v6, s63, v6
    v_cmp_gt_u32 s[60:61], 14, v0
    s_mov_b32 s64, s24
    s_mov_b32 s65, s25
    s_mov_b32 s66, 2048
    s_mov_b32 s67, 0x20000
    s_add_u32 s45, s{sVB}, {cfg.flead}
    """)
    spin_land(45, 7, slp=cfg.slp)
    e(f"""L_fretry:
    buffer_load_dwordx4 v[24:27], v5, s[{SRD_WS}:{SRD_WS+3}], 0 offen sc1
    s_waitcnt vmcnt(0)
    """)
    tag_check(24, 7, True)
    tag_branch(7, "L_fretry", masked=True)
    for k in range(4):
        e(f"v_and_b32 v{24+k}, 0xffffff00, v{24+k}")
    for k in range(4):
        e(f"v_cndmask_b32 v{24+k}, 0, v{24+k}, s[60:61]")
    reduce4_rows(24, 28)
    dpp_add(24, (8, 4, 2, 1))
    rnd_bf16(24)
    e("v_lshlrev_b32 v10, 16, v10\nv_add_f32 v24, v24, v10")
    rnd_bf16(24)
    e(f"""
    v_mul_f32 v25, 0xbfb8aa3b, v24
    v_exp_f32 v25, v25
    s_nop 0
    v_add_f32 v25, 1.0, v25
    v_rcp_f32 v25, v25
    s_nop 0
    v_mul_f32 v12, v24, v25
    """)
    rnd_bf16(12)
    e("v_lshlrev_b32 v11, 16, v11")
    stamp(5)
    spin_ge(1, F_O, 4, 7, slp=cfg.slp)
    e(f"""L_3retry:
    buffer_load_dwordx4 v[24:27], v6, s[{SRD_WS}:{SRD_WS+3}], 0 offen sc1
    s_waitcnt vmcnt(0)
    """)
    tag_check(24, 7, True)
    tag_branch(7, "L_3retry", masked=True)
    stamp(6)
    for k in range(4):
        e(f"v_and_b32 v{24+k}, 0xffffff00, v{24+k}")
    reduce4_rows(24, 28)
    dpp_add(24, (8, 4, 2, 1))
    rnd_bf16(24)
    e("v_mul_f32 v24, v24, v12")
    rnd_bf16(24)
    e(f"""
    v_add_f32 v24, v24, v11
    v_cvt_pk_bf16_f32 v24, v24, v24
    s_mov_b32 s56, 0x00010001
    s_mov_b32 s57, 0x00010001
    s_mov_b64 exec, s[56:57]
    buffer_store_short v24, v8, s[64:67], 0 offen
    s_cmp_eq_u32 s2, 0
    s_cbranch_scc0 L_fin2
    s_mov_b64 exec, 1
    v_mov_b32 v25, s{sT0}
    v_mov_b32 v26, 0
    buffer_store_dword v25, v26, s[{SRD_WS}:{SRD_WS+3}], 0 offen sc1
    L_fin2:
    """)
    stamp(7)
    stamps_out(8)
    e("s_endpgm")

    sW = 44
    e(f"""L_compute:
    s_sub_u32 s{sW}, s{sWAVE}, 6
    """)
    for r in range(64, 128): e(f"v_mov_b32 v{r}, 0")
    e(f"""
    s_lshl_b32 s45, s{sW}, 14
    v_lshlrev_b32 v5, 8, v2
    v_add_u32 v5, s45, v5
    v_xor_b32 v6, v3, v2
    """)
    for t in range(4):
        e(f"v_xor_b32 v7, {4*t}, v6\nv_lshl_add_u32 v{8+t}, v7, 4, v5")
    e(f"""
    v_and_b32 v13, 3, v2
    v_mul_u32_u24 v12, 288, v13
    v_lshl_add_u32 v12, v3, 4, v12
    v_add_u32 v12, {L_QS}, v12
    """)
    e(f"""
    v_lshl_add_u32 v15, v3, 2, v13
    v_lshlrev_b32 v15, 4, v15
    v_add_u32 v15, {L_PB}, v15
    v_lshrrev_b32 v5, 3, v2
    v_lshl_add_u32 v14, v5, 8, v15
    v_bfe_u32 v5, v2, 2, 1
    v_lshl_add_u32 v14, v5, 3, v14
    s_lshl_b32 s45, s{sW}, 9
    v_add_u32 v14, s45, v14
    v_lshlrev_b32 v17, 3, v13
    v_add_u32 v17, {L_SB}, v17
    s_lshl_b32 s45, s{sW}, 5
    v_add_u32 v16, s45, v17
    """)
    e(f"""
    v_lshrrev_b32 v5, 2, v2
    v_and_b32 v6, 1, v3
    v_lshl_add_u32 v6, v6, 2, v5
    s_lshl_b32 s45, s{sW}, 1
    v_xor_b32 v6, s45, v6
    v_lshlrev_b32 v7, 3, v13
    v_lshl_add_u32 v22, v6, 5, v7
    v_xor_b32 v23, 32, v22
    v_lshl_add_u32 v6, v3, 2, v5
    v_lshlrev_b32 v6, 8, v6
    v_add_u32 v6, {L_V}, v6
    v_add_u32 v18, v6, v22
    v_add_u32 v19, v6, v23
    v_lshl_add_u32 v6, v3, 3, v5
    v_lshlrev_b32 v6, 8, v6
    v_add_u32 v6, {L_WO}, v6
    v_add_u32 v20, v6, v22
    v_add_u32 v21, v6, v23
    """)
    e(f"""
    s_lshl_b32 s45, s{sW}, 7
    v_lshl_add_u32 v5, v3, 4, s45
    s_lshl_b32 s46, s{sSLOT}, 11
    s_add_u32 s46, s46, {W_OP}
    v_lshl_add_u32 v22, v13, 9, v5
    v_bfe_u32 v6, v2, 2, 1
    v_lshl_add_u32 v22, v6, 6, v22
    v_add_u32 v22, s46, v22
    s_lshl_b32 s46, s{sSLOT}, 10
    s_add_u32 s46, s46, {W_SP}
    s_lshl1_add_u32 s46, s45, s46
    v_lshlrev_b32 v23, 4, v13
    v_lshl_add_u32 v23, v3, 6, v23
    v_add_u32 v23, s46, v23
    v_and_b32 v6, 1, v2
    v_lshlrev_b32 v28, 7, v6
    v_lshl_add_u32 v28, v3, 4, v28
    v_add_u32 v28, {L_OB}, v28
    s_lshr_b32 s45, s{sW}, 1          ; b'
    s_and_b32 s46, s{sW}, 1           ; dsub
    s_lshl_b32 s47, s{sG}, 16
    s_lshl_b32 s48, s45, 15
    s_add_u32 s47, s47, s48
    s_lshr_b32 s48, s{sI}, 2
    s_lshl_b32 s48, s48, 8
    s_add_u32 s47, s47, s48
    s_lshl_b32 s48, s46, 7
    s_add_u32 s47, s47, s48
    s_add_u32 s47, s47, {W_OP}
    v_lshrrev_b32 v5, 3, v0
    v_and_b32 v6, 7, v0
    v_lshlrev_b32 v24, 11, v5
    v_lshl_add_u32 v24, v6, 4, v24
    v_add_u32 v24, s47, v24
    v_add_u32 v25, 16384, v24
    s_lshl_b32 s47, s45, 6
    s_add_u32 s47, s47, {L_WT}
    v_lshl_add_u32 v26, v5, 2, s47
    v_and_b32 v5, 1, v3
    v_lshlrev_b32 v5, 1, v5
    v_lshrrev_b32 v7, 1, v3
    v_or_b32 v5, v5, v7
    v_lshl_add_u32 v5, v6, 2, v5
    s_lshl_b32 s47, s45, 7
    s_lshl_b32 s48, s46, 6
    s_add_u32 s47, s47, s48
    s_add_u32 s47, s47, {L_OB}
    v_lshl_add_u32 v27, v5, 1, s47
    s_lshl_b32 s47, s{sSLOT}, 7
    s_add_u32 s47, s47, {W_ST}
    v_lshl_add_u32 v29, v13, 4, s47
    v_and_b32 v5, 4, v0
    v_cmp_ne_u32 s[50:51], 0, v5
    v_and_b32 v5, 2, v0
    v_cmp_ne_u32 s[52:53], 0, v5
    v_mov_b32 v30, 1
    s_waitcnt lgkmcnt(0)
    """)
    nonce_from_epoch()
    stamp(1)
    get_loc(6)
    for tau in range(4):
        m = 0x000f000f << (4*tau)
        e(f"s_mov_b32 s54, {m:#x}\ns_mov_b32 s55, {m:#x}\ns_mov_b64 exec, s[54:55]")
        for t in range(4):
            r = 64 + 16*tau + 4*t
            e(f"ds_read_b128 v[{r}:{r+3}], v12 offset:{64*t}")
    e("s_mov_b64 exec, -1")
    spin_land(sKEND, 6, slp=cfg.slp)
    stamp(2)
    def kread(tau, t):
        r = 128 + 16*(tau & 1) + 4*t
        e(f"ds_read_b128 v[{r}:{r+3}], v{8+t} offset:{4096*tau}")
    for tau in range(2):
        for t in range(4): kread(tau, t)
    for tau in range(4):
        for t in range(4):
            n = 4*tau + t
            r = 128 + 16*(tau & 1) + 4*t; q = 64 + 16*tau + 4*t
            e(f"s_waitcnt lgkmcnt({7 if n < 8 else 15-n})")
            e(f"v_mfma_f32_16x16x32_bf16 v[32:35], v[{r}:{r+3}], v[{q}:{q+3}], {'v[32:35]' if n else 0}")
            if tau < 2: kread(tau+2, t)
    e(f"""
    s_mov_b32 s54, {SCALE:#x}
    s_mov_b32 s55, {LOG2E:#x}
    s_nop 5
    v_cvt_pk_bf16_f32 v32, v32, v33
    v_cvt_pk_bf16_f32 v34, v34, v35
    v_and_b32 v33, 0xffff0000, v32
    v_lshlrev_b32 v32, 16, v32
    v_and_b32 v35, 0xffff0000, v34
    v_lshlrev_b32 v34, 16, v34
    v_mul_f32 v32, s54, v32
    v_mul_f32 v33, s54, v33
    v_mul_f32 v34, s54, v34
    v_mul_f32 v35, s54, v35
    v_cvt_pk_bf16_f32 v32, v32, v33
    v_cvt_pk_bf16_f32 v34, v34, v35
    v_and_b32 v33, 0xffff0000, v32
    v_lshlrev_b32 v32, 16, v32
    v_and_b32 v35, 0xffff0000, v34
    v_lshlrev_b32 v34, 16, v34
    v_max_f32 v36, v32, v33
    v_max3_f32 v36, v34, v35, v36
    """)
    dpp_max(36, (8, 4))
    e("""
    v_mov_b32 v37, v36
    s_nop 1
    v_permlane16_swap_b32 v36, v37
    s_nop 0
    v_max_f32 v36, v36, v37
    v_mov_b32 v37, v36
    s_nop 1
    v_permlane32_swap_b32 v36, v37
    s_nop 0
    v_max_f32 v36, v36, v37
    v_sub_f32 v32, v32, v36
    v_sub_f32 v33, v33, v36
    v_sub_f32 v34, v34, v36
    v_sub_f32 v35, v35, v36
    v_mul_f32 v32, s55, v32
    v_mul_f32 v33, s55, v33
    v_mul_f32 v34, s55, v34
    v_mul_f32 v35, s55, v35
    v_exp_f32 v32, v32
    v_exp_f32 v33, v33
    v_exp_f32 v34, v34
    v_exp_f32 v35, v35
    v_add_f32 v37, v32, v33
    v_cvt_pk_bf16_f32 v32, v32, v33
    v_add_f32 v38, v34, v35
    v_cvt_pk_bf16_f32 v33, v34, v35
    v_add_f32 v37, v37, v38
    ds_write_b64 v14, v[32:33]
    """)
    dpp_add(37, (8, 4))
    e("""
    v_mov_b32 v38, v37
    s_nop 1
    v_permlane16_swap_b32 v37, v38
    s_nop 0
    v_add_f32 v37, v37, v38
    v_mov_b32 v38, v37
    s_nop 1
    v_permlane32_swap_b32 v37, v38
    s_nop 0
    v_add_f32 v37, v37, v38
    s_mov_b64 exec, 15
    ds_write_b64 v16, v[36:37]
    s_mov_b64 exec, -1
    """)
    flag_add(1, F_P, 30)
    for sp in range(4):
        e(f"""
        s_add_u32 s56, s{sRS}, {sp}
        s_and_b32 s56, s56, 3
        s_lshl_b32 s57, s56, 9
        v_add_u32 v{40+sp}, s57, v15
        s_lshl_b32 s57, s56, 5
        v_add_u32 v{44+sp}, s57, v17
        s_lshl_b32 s57, s56, 14
        v_add_u32 v{48+2*sp}, s57, v18
        v_add_u32 v{49+2*sp}, s57, v19
        """)
    spin_ge(1, F_P, 4, 6)
    for sp in range(4):
        e(f"ds_read_b64 v[{56+2*sp}:{57+2*sp}], v{44+sp}")
    for sp in range(4):
        for sg in range(2):
            r = 64 + 8*sp + 4*sg
            e(f"ds_read_b128 v[{r}:{r+3}], v{40+sp} offset:{256*sg}")
    e("""
    s_waitcnt lgkmcnt(8)
    v_max_f32 v32, v56, v58
    v_max3_f32 v32, v60, v62, v32
    v_sub_f32 v56, v56, v32
    v_sub_f32 v58, v58, v32
    v_sub_f32 v60, v60, v32
    v_sub_f32 v62, v62, v32
    v_mul_f32 v56, s55, v56
    v_mul_f32 v58, s55, v58
    v_mul_f32 v60, s55, v60
    v_mul_f32 v62, s55, v62
    v_exp_f32 v56, v56
    v_exp_f32 v58, v58
    v_exp_f32 v60, v60
    v_exp_f32 v62, v62
    v_mul_f32 v33, v56, v57
    v_fmac_f32 v33, v58, v59
    v_fmac_f32 v33, v60, v61
    v_fmac_f32 v33, v62, v63
    v_mov_b32 v34, 0
    v_mov_b32 v35, 0
    """)
    e(f"s_cmp_eq_u32 s{sW}, 0\ns_cbranch_scc0 L_nostat")
    tag_insert(32, 4)
    e(f"""
    s_mov_b64 exec, 15
    buffer_store_dwordx4 v[32:35], v29, s[{SRD_WS}:{SRD_WS+3}], 0 offen
    s_cmp_eq_u32 s{sOFF}, 0
    s_cbranch_scc1 L_nostatB
    buffer_store_dwordx4 v[32:35], v29, s[{SRD_WS}:{SRD_WS+3}], s{sBOFF} offen sc1
    L_nostatB:
    s_mov_b64 exec, -1
    L_nostat:
    """)
    stamp(3)
    def fold(sp):
        for k in range(8):
            a = 96 + 8*sp + k
            if sp == 0: e(f"v_mul_f32 v{144+k}, v{56+2*sp}, v{a}")
            else: e(f"v_fmac_f32 v{144+k}, v{56+2*sp}, v{a}")
    for sp in range(4):
        e(f"s_add_u32 s58, s{sVB}, {4*(sp+1) + (cfg.woe if sp == 3 else 0)}")
        spin_land(58, 6, slp=(cfg.slp if sp < 3 else 0))
        if sp == 3: stamp(4)
        for sg in range(2):
            for ee in range(2):
                r = 128 + 8*sg + 4*ee
                e(f"ds_read_b64_tr_b16 v[{r}:{r+1}], v{48+2*sp+ee} offset:{8192*sg}")
                e(f"ds_read_b64_tr_b16 v[{r+2}:{r+3}], v{48+2*sp+ee} offset:{8192*sg+4096}")
        if sp > 0: fold(sp-1)
        for sg in range(2):
            for ee in range(2):
                r = 128 + 8*sg + 4*ee
                a = 96 + 8*sp + 4*ee
                p = 64 + 8*sp + 4*sg
                e(f"s_waitcnt lgkmcnt({6 - 2*(2*sg+ee)})" if not cfg.diag else "s_waitcnt lgkmcnt(0)")
                e(f"v_mfma_f32_16x16x32_bf16 v[{a}:{a+3}], v[{r}:{r+3}], v[{p}:{p+3}], {f'v[{a}:{a+3}]' if sg else 0}")
        if sp < 3: e("s_nop 2")
    e(f"s_mov_b32 s56, 0x00ff00ff\ns_mov_b32 s57, 0x00ff00ff\ns_cmp_eq_u32 s{sOFF}, 0\ns_nop 3")
    fold(3)
    for k in range(4):
        e(f"v_cndmask_b32 v{144+k}, v{144+k}, v{148+k}, s[50:51]")
    tag_insert(144, 4)
    e(f"""
    s_mov_b64 exec, s[56:57]
    buffer_store_dwordx4 v[144:147], v22, s[{SRD_WS}:{SRD_WS+3}], 0 offen
    s_cbranch_scc1 L_oloc
    buffer_store_dwordx4 v[144:147], v22, s[{SRD_WS}:{SRD_WS+3}], s{sBOFF} offen sc1
    L_oloc:
    s_mov_b64 exec, -1
    buffer_load_dwordx4 v[32:35], v24, s[{SRD_WS}:{SRD_WS+3}], s{sOFF} offen {cfg.ldA}
    buffer_load_dwordx4 v[36:39], v25, s[{SRD_WS}:{SRD_WS+3}], s{sOFF} offen {cfg.ldA}
    s_add_u32 s58, s{sVB}, 20
    """)
    stamp(5)
    spin_land(58, 6)
    for ee in range(2):
        for t in range(2):
            r = 64 + 8*ee + 4*t
            e(f"ds_read_b64_tr_b16 v[{r}:{r+1}], v{20+ee} offset:{8192*t}")
            e(f"ds_read_b64_tr_b16 v[{r+2}:{r+3}], v{20+ee} offset:{8192*t+1024}")
    spin_ge(1, F_W, 1, 6, extra="ds_read_b32 v40, v26\nds_read_b32 v41, v26 offset:32")
    e(f"""
    s_branch L_ochk
    L_oretry:
    buffer_load_dwordx4 v[32:35], v24, s[{SRD_WS}:{SRD_WS+3}], s{sOFF} offen {cfg.ldA}
    buffer_load_dwordx4 v[36:39], v25, s[{SRD_WS}:{SRD_WS+3}], s{sOFF} offen {cfg.ldA}
    L_ochk:
    s_waitcnt vmcnt(0)
    """)
    tag_check(32, 7, True); tag_check(36, 7, False)
    tag_branch(7, "L_oretry", masked=True)
    stamp(6)
    for k in range(8): e(f"v_and_b32 v{32+k}, 0xffffff00, v{32+k}")
    for k in range(4): e(f"v_mul_f32 v{32+k}, v40, v{32+k}")
    for k in range(4): e(f"v_fmac_f32 v{32+k}, v41, v{36+k}")
    reduce4_rows(32, 36)
    dpp_add(32, (8,))
    e("""
    v_cvt_pk_bf16_f32 v32, v32, v32
    ds_write_b16 v27, v32
    """)
    flag_add(1, F_O, 30)
    spin_ge(1, F_O, 4, 6, extra="ds_read_b128 v[40:43], v28\nds_read_b128 v[44:47], v28 offset:64")
    for t in range(2):
        for ee in range(2):
            r = 64 + 8*ee + 4*t
            a = 32 + 4*ee
            e(f"v_mfma_f32_16x16x32_bf16 v[{a}:{a+3}], v[{r}:{r+3}], v[{40+4*t}:{43+4*t}], {f'v[{a}:{a+3}]' if t else 0}")
    e(f"""
    s_mov_b32 s56, 0x000f000f
    s_mov_b32 s57, 0x000f000f
    s_nop 5
    """)
    for k in range(4):
        e(f"v_cndmask_b32 v{32+k}, v{32+k}, v{36+k}, s[52:53]")
    tag_insert(32, 4)
    e(f"""
    s_mov_b64 exec, s[56:57]
    buffer_store_dwordx4 v[32:35], v23, s[{SRD_WS}:{SRD_WS+3}], 0 offen sc1
    """)
    stamp(7)
    stamps_out(8)
    e("L_end:\ns_endpgm\nL_codeend:")
    if cfg.skip:
        res = []; sect = None
        for ln in out:
            t = ln.strip()
            if t.endswith(":"): sect = t[:-1]
            drop = False
            isg = t.startswith("buffer_load_dwordx4 v[") and "s[36:39]" in t
            if isg and sect in ("L_qretry",) and 'q' in cfg.skip: drop = True
            if isg and sect in ("L_hretry",) and 'h' in cfg.skip: drop = True
            if isg and sect in ("L_sretry",) and 's' in cfg.skip: drop = True
            if isg and sect in ("L_fretry",) and 'f' in cfg.skip: drop = True
            if t.startswith("s_cbranch_scc0 L_qretry") and 'q' in cfg.skip: drop = True
            if t.startswith("s_cbranch_scc0 L_hretry") and 'h' in cfg.skip: drop = True
            if t.startswith("s_cbranch_scc0 L_sretry") and 's' in cfg.skip: drop = True
            if t.startswith("s_cbranch_scc0 L_fretry") and 'f' in cfg.skip: drop = True
            if 'b' in cfg.skip and t.startswith("buffer_store_dwordx4") and "sc1" in t and ("v[56:59]" in t and sect == "L_pubB"): drop = True
            if 'a' in cfg.skip and t.startswith("buffer_store_dwordx4") and "sc1" not in t and ("v[56:59]" in t or "v[64:67]" in t or "v29" in t): drop = True
            if 'q' in cfg.skip and t.startswith("s_cbranch_vccz L_q"): ln = ln.replace("s_cbranch_vccz", "s_branch")
            if 'k' in cfg.skip and t.startswith("ds_read_b128 v[1") and "v1 offset" not in t: drop = True
            if 'v' in cfg.skip and t.startswith("ds_read_b64_tr_b16 v[1"): drop = True
            if not drop: res.append(ln)
        out[:] = res
    body = "\n".join(out)
    hdr = open("recurrent_scan__sliding_block_cached__dense_activation_squared_relu__decode.s.ref").read().split("; Override launch")[0]
    return f"""{hdr}; Single fused launch: 256 workgroups (one per CU) x 10 waves.
; @launch grid=(256,1,1) block=(640,1,1) lds={LDS_TOTAL}
.amdgcn_target "amdgcn-amd-amdhsa--gfx950"
.text
.globl {KNAME}
.p2align 8
.type {KNAME},@function
{KNAME}:
{body}
.section .rodata,"a"
.p2align 6
.amdhsa_kernel {KNAME}
  .amdhsa_next_free_vgpr 168
  .amdhsa_next_free_sgpr 102
  .amdhsa_accum_offset 168
  .amdhsa_group_segment_fixed_size 0
  .amdhsa_kernarg_size 104
  .amdhsa_user_sgpr_count 2
  .amdhsa_user_sgpr_kernarg_segment_ptr 1
  .amdhsa_system_sgpr_workgroup_id_x 1
.end_amdhsa_kernel
"""

if __name__ == "__main__":
    path = sys.argv[1]
    for a in sys.argv[2:]:
        k, v = a.split("=")
        cur = getattr(cfg, k)
        setattr(cfg, k, type(cur)(int(v)) if isinstance(cur, (bool, int)) else v.replace("+", " "))
    open(path, "w").write(build())
```

```python
import sys
KNAME = "recurrent_scan__sliding_block_cached__dense_activation_squared_relu__decode_kernel"

cfg_dbgsel = {6: [(0,0,1),(0,1,0),(1,2,1),(1,3,0),(2,4,0),(4,5,1),(4,6,0),(5,7,0)], 7: [(4,8,0),(5,9,0),(6,10,0)], 8: [(5,11,0),(6,12,1),(6,13,0),(7,14,0)]}
class Cfg:
    early = False
    ampw = -1
    ampk = 0
    ampg = -1
    dbg = False
    diag = False
    lw = 5
    lw2 = 5
    win = 20
    qlead = 10
    woe = 0
    dirty = 0
    h3gate = 2
    h3slp = 0
    h3loop = 0
    o2loop = 0
    mark = 0
    ntmo = 4
    skip = ''
    only = 0
    pfi = 28
    slp = 0
    win2 = 20
    w2at = 4
    slead = 8
    flead = 11
    hgate = 13
    ldA = 'sc1'
    pf = 1
    first = 'sc1'
    ntK = "nt"; ntW = "nt"
    rotmul = 1
cfg = Cfg()

L_K, L_V, L_WO = 0, 65536, 131072
SCR = 147456
L_QS = SCR
L_PB = SCR + 1152
L_SB = L_PB + 2048
L_WT = L_SB + 128
L_OB = L_WT + 128
L_ACTA = L_OB + 256
L_ACTB = L_ACTA + 576
L_FL = L_ACTB + 576
L_LAND = L_FL + 64
LDS_TOTAL = L_LAND + 16 + 256
F_Q, F_K, F_P, F_V, F_T, F_WO, F_W, F_O = [4*k for k in range(8)]
W_ST, W_QP, W_HP, W_OP, B_OFF, W_SP, W_FP = 0x8000, 0x10000, 0x30000, 0x40000, 0xC0000, 0x180000, 0x1C0000
WS_BYTES = 0x200000
SPIN_CAP = 1000002
LOG2E = 0x3fb8aa3b
SCALE = 0x3db504f3

sWAVE, sG, sI, sNON = 30, 31, 32, 33
sT0, sT1, sT2, sT3 = 34, 33, 40, 79
TMASK, VMASK, TB = 0x7ff, 0xfffff800, 11
SRD_WS = 36
sSLOT = 41
sRS = 42
sCAP = 43
sVB, sOFF, sBOFF = 71, 72, 73
sKEND = sVB
O_LAND = 64
STAMP0 = 80

out = []
def e(s):
    for ln in s.strip("\n").split("\n"):
        out.append("    " + ln.strip() if not ln.strip().endswith(":") else ln.strip())

def estamp(k):
    if cfg.diag and cfg.early:
        e(f"s_memrealtime s[{STAMP0+2*k}:{STAMP0+2*k+1}]")
def stamp(k):
    if cfg.diag and (not cfg.early or k == 0 or k >= 6):
        e(f"s_memrealtime s[{STAMP0+2*k}:{STAMP0+2*k+1}]")

def stamps_out(n):
    if not cfg.diag: return
    if cfg.ampw >= 0:
        L = lbl("L_amp"); Ls = lbl("L_amps")
        if cfg.ampk < n:
            e(f"""
            s_waitcnt lgkmcnt(0)
            s_cmp_eq_u32 s{sWAVE}, {cfg.ampw}
            s_cbranch_scc0 {Ls}
            {f's_cmp_eq_u32 s{sG}, {cfg.ampg}; s_cbranch_scc0 {Ls}'.replace('; ', chr(10)) if cfg.ampg >= 0 else ''}
            s_sub_u32 s60, s{STAMP0+2*cfg.ampk}, s{STAMP0}
            s_min_u32 s60, s60, 20000
            s_mul_i32 s60, s60, 10
            s_memrealtime s[62:63]
            s_waitcnt lgkmcnt(0)
            {L}:
            s_memrealtime s[68:69]
            s_waitcnt lgkmcnt(0)
            s_sub_u32 s61, s68, s62
            s_cmp_lt_u32 s61, s60
            s_cbranch_scc1 {L}
            {Ls}:
            """)
        return
    if cfg.dbg:
        sel = cfg_dbgsel[n] if n in cfg_dbgsel else []
        e("s_waitcnt lgkmcnt(0)\ns_mov_b64 exec, 1\nv_mov_b32 v1, 0")
        if n == 8: e(f"s_cmp_eq_u32 s{sWAVE}, 2\ns_cbranch_scc0 L_dbgskip{len(out)}"); lab = f"L_dbgskip{len(out)-2}"
        for (k, slot, mn) in sel:
            e(f"v_mov_b32 v4, s{STAMP0+2*k}")
            if mn: e("v_not_b32 v4, v4")
            e(f"global_atomic_umax v1, v4, s[26:27] offset:{4*slot}\ns_nop 1")
        if n == 8: e(f"{lab}:")
        e("s_waitcnt vmcnt(0)")
        return
    L = lbl("L_dly")
    e(f"""
    s_waitcnt lgkmcnt(0)
    s_add_u32 s61, s{STAMP0}, 1600
    {L}:
    s_sleep 8
    s_memrealtime s[68:69]
    s_waitcnt lgkmcnt(0)
    s_cmp_lt_u32 s68, s61
    s_cbranch_scc1 {L}
    s_lshl_b32 s60, s2, 4
    s_add_u32 s60, s60, s{sWAVE}
    s_lshl_b32 s60, s60, 6
    s_add_u32 s68, s28, s60
    s_addc_u32 s69, s29, 0
    s_add_u32 s68, s68, 0x10000000
    s_addc_u32 s69, s69, 0
    s_mov_b64 exec, 1
    v_mov_b32 v1, 0
    """)
    for k in range(8):
        if k < n:
            e(f"v_mov_b32 v4, s{STAMP0+2*k}\nv_mov_b32 v5, s{STAMP0+2*k+1}")
        else:
            e(f"v_mov_b32 v4, s{STAMP0}\nv_mov_b32 v5, s{STAMP0+1}")
        e(f"global_store_dwordx2 v1, v[4:5], s[68:69] offset:{8*k}\ns_nop 1")
    e("s_waitcnt vmcnt(0)")

lblc = [0]
def lbl(p="L"):
    lblc[0] += 1
    return f"{p}_{lblc[0]}"

def flag_set(vfl, off, vval):
    e(f"s_mov_b64 exec, 1\nds_write_b32 v{vfl}, v{vval} offset:{off}\ns_mov_b64 exec, -1")
def flag_add(vfl, off, vone):
    e(f"s_mov_b64 exec, 1\nds_add_u32 v{vfl}, v{vone} offset:{off}\ns_mov_b64 exec, -1")
def spin_ge(vfl, off, target, vtmp, extra="", slp=0):
    L = lbl("L_sp")
    e(f"""{L}:
    {f's_sleep {slp}' if slp else ''}
    ds_read_b32 v{vtmp}, v{vfl} offset:{off}
    {extra}
    s_waitcnt lgkmcnt(0)
    v_cmp_le_u32 vcc, {target}, v{vtmp}
    s_cbranch_vccz {L}""")

def spin_land(sreg, vtmp, extra="", slp=0):
    L = lbl("L_sl")
    e(f"""{L}:
    {f's_sleep {slp}' if slp else ''}
    ds_read_b128 v[160:163], v1 offset:{O_LAND}
    {extra}
    s_waitcnt lgkmcnt(0)
    v_min3_i32 v160, v160, v161, v162
    v_min_i32 v160, v160, v163
    v_cmp_le_i32 vcc, s{sreg}, v160
    s_cbranch_vccz {L}""")

def get_loc(vtmp, slp=None):
    spin_ge(1, F_Q, 1, vtmp, slp=cfg.slp if slp is None else slp)
    e(f"v_readfirstlane_b32 s{sOFF}, v{vtmp}\ns_nop 3\ns_and_b32 s{sOFF}, s{sOFF}, -2")

def tag_check(regs, acc, first):
    T = [sT0, sT1, sT2, sT3]
    for k in range(4):
        if first and k == 0:
            e(f"v_xor_b32 v{acc}, s{T[0]}, v{regs}")
        else:
            e(f"v_bitop3_b32 v{acc}, v{regs+k}, s{T[k]}, v{acc} bitop3:0xbe")
def tag_branch(acc, Lretry, toggle=False, masked=False, slp=0):
    Ld = lbl("L_ok")
    e(f"""
    v_and_b32 v{acc}, v4, v{acc}
    v_cmp_ne_u32 vcc, 0, v{acc}
    s_cbranch_vccz {Ld}""")
    if masked: e("s_mov_b64 exec, vcc")
    if slp: e(f"s_sleep {slp}")
    if toggle:
        e(f"""
        s_and_b32 s{sOFF}, s{sCAP}, 3
        s_cselect_b32 s{sOFF}, 0, s{sBOFF}""")
    e(f"""
    s_sub_u32 s{sCAP}, s{sCAP}, 1
    s_cbranch_scc0 {Lretry}
    s_mov_b32 s{sCAP}, 0
    {Ld}:""")
    if masked: e("s_mov_b64 exec, -1")
def tag_insert(regs, vff):
    T = [sT0, sT1, sT2, sT3]
    for k in range(4):
        e(f"v_bfi_b32 v{regs+k}, v{vff}, s{T[k]}, v{regs+k}")

def nonce_from_epoch():
    e(f"""
    s_add_u32 s34, s34, 0x01401801
    s_addc_u32 s35, s35, 14
    s_lshr_b32 s33, s34, 11
    s_lshr_b64 s[46:47], s[34:35], 22
    s_mov_b32 s40, s46
    s_lshr_b32 s79, s35, 1
    """)

def srd(r, lo, hi, nbytes):
    pass

def reduce4_rows(x, t):
    e(f"""
    s_nop 1
    v_permlane32_swap_b32 v{x}, v{x+1}
    v_permlane32_swap_b32 v{x+2}, v{x+3}
    s_nop 0
    v_add_f32 v{x}, v{x}, v{x+1}
    v_add_f32 v{x+2}, v{x+2}, v{x+3}
    s_nop 1
    v_permlane16_swap_b32 v{x}, v{x+2}
    s_nop 0
    v_add_f32 v{x}, v{x}, v{x+2}
    """)
def dpp_add(x, rots):
    for r in rots:
        e(f"s_nop 1\nv_add_f32_dpp v{x}, v{x}, v{x} row_ror:{r} row_mask:0xf bank_mask:0xf")
def dpp_max(x, rots):
    for r in rots:
        e(f"s_nop 1\nv_max_f32_dpp v{x}, v{x}, v{x} row_ror:{r} row_mask:0xf bank_mask:0xf")
def rnd_bf16(x):
    e(f"v_cvt_pk_bf16_f32 v{x}, v{x}, v{x}\nv_and_b32 v{x}, 0xffff0000, v{x}")

def build():
    out.clear()
    stamp(0)
    nt = cfg.ntK
    W = cfg.lw; W2 = cfg.lw2
    e(f"""
    s_load_dwordx16 s[4:19], s[0:1], 0
    s_load_dwordx8 s[20:27], s[0:1], 64
    s_load_dwordx2 s[28:29], s[0:1], 96
    v_readfirstlane_b32 s{sWAVE}, v0
    s_cmpk_ge_u32 s2, 0x100
    s_cbranch_scc1 L_end
    v_and_b32 v0, 63, v0
    s_and_b32 s{sG}, s2, 7
    s_lshr_b32 s{sI}, s2, 3
    s_cmpk_ge_u32 s{sWAVE}, 0x100
    s_cbranch_scc1 L_notloader
    v_lshrrev_b32 v12, 3, v0
    v_and_b32 v13, 7, v0
    v_and_b32 v14, 2, v12
    v_xor_b32 v13, v13, v14
    v_lshlrev_b32 v13, 4, v13
    s_and_b32 s63, s{sWAVE}, 64
    v_xor_b32 v13, s63, v13
    v_lshl_add_u32 v10, v12, 13, v13
    s_lshr_b32 s45, s2, 6
    s_lshl_b32 s45, s45, 20
    s_and_b32 s46, s{sI}, 7
    s_lshl3_add_u32 s46, s{sG}, s46
    s_lshl_b32 s46, s46, 7
    s_add_u32 s45, s45, s46
    s_mov_b32 s58, {127*8192+128}
    s_mov_b32 s59, 0x20000
    s_lshl4_add_u32 m0, s{sWAVE}, {L_WO}
    s_lshl_b32 s47, s{sWAVE}, 10
    s_waitcnt lgkmcnt(0)
    s_add_u32 s56, s10, s45
    s_addc_u32 s57, s11, 0
    L_ldA:
    buffer_load_dwordx4 v10, s[56:59], s47 offen {cfg.ntW} lds
    s_addk_i32 m0, 0x1000
    s_add_u32 s47, s47, 0x40000
    s_bitcmp0_b32 s47, 20
    s_cbranch_scc1 L_ldA
    s_mul_i32 s44, s2, {cfg.rotmul}
    s_bfe_u32 s{sRS}, s44, 0x20002
    v_and_b32 v2, 15, v0
    v_lshrrev_b32 v3, 4, v0
    s_lshl_b32 s64, s{sWAVE}, 4
    s_add_u32 s62, s{sRS}, 3
    s_and_b32 s62, s62, 3
    s_add_u32 s62, s62, 4
    s_lshl_b32 s62, s62, 14
    s_branch L_ld2
    .p2align 8
    """)
    e(f"""L_notloader:
    v_mov_b32 v1, {L_FL}
    v_mov_b32 v5, 0
    v_lshl_add_u32 v6, v0, 2, v1
    ds_write_b32 v6, v5
    s_lshr_b32 s{sWAVE}, s{sWAVE}, 6
    """)
    if cfg.pf:
        e(f"""
        s_cmp_eq_u32 s{sWAVE}, 9
        s_cbranch_scc0 L_nopf
        s_getpc_b64 s[46:47]
        L_pc:
        s_mul_i32 s45, s{sI}, 3
        v_min_u32 v5, 2, v0
        v_add_u32 v5, s45, v5
        v_lshlrev_b32 v5, 7, v5
        v_min_u32 v5, L_codeend-L_pc-4, v5
        global_load_dword v166, v5, s[46:47]
        L_nopf:""")
    e(f"""
    v_lshlrev_b32 v5, 5, v0
    s_cmp_ge_u32 s{sWAVE}, 6
    s_waitcnt lgkmcnt(0)
    s_load_dwordx2 s[34:35], s[28:29], 0
    s_cbranch_scc1 L_nox
    global_load_dwordx4 v[8:11], v5, s[4:5]
    global_load_dwordx4 v[12:15], v5, s[4:5] offset:16
    L_nox:
    s_barrier
    s_branch L_nl2
    """)
    def flagw():
        e("ds_write_b32 v16, v15\nv_add_u32 v15, 1, v15")
    e(f"""L_ld2:
    v_mov_b32 v1, {L_FL}
    s_lshr_b32 s45, s{sWAVE}, 4
    s_add_u32 s45, s45, {L_LAND}
    v_lshl_add_u32 v16, v0, 2, v1
    v_add_u32 v16, {O_LAND+16}, v16
    v_writelane_b32 v16, s45, 0
    v_mov_b32 v15, {5-W}
    s_barrier
    """)
    estamp(1)
    stamp(1)
    e(f"""
    s_cmp_lt_u32 s{sG}, 7
    s_cbranch_scc0 L_ld_noB
    s_add_u32 m0, s62, s64
    s_and_b32 s65, s{sI}, 15
    s_lshl4_add_u32 s65, s{sG}, s65
    s_cmp_lt_u32 s{sI}, 16
    s_cbranch_scc0 L_ld_w2
    s_and_b32 s45, s65, 3
    s_mul_i32 s45, s45, {128*3584}
    s_lshr_b32 s46, s65, 2
    s_lshl_b32 s46, s46, 7
    s_add_u32 s45, s45, s46
    s_add_u32 s56, s16, s45
    s_addc_u32 s57, s17, 0
    v_mul_u32_u24 v10, 3584, v12
    v_add_u32 v10, v10, v13
    s_mul_i32 s47, s64, 28
    s_mov_b32 s46, {32*3584}
    s_branch L_ld_B
    L_ld_w2:
    s_lshr_b32 s45, s65, 3
    s_lshl_b32 s45, s45, 17
    s_and_b32 s46, s65, 7
    s_lshl_b32 s46, s46, 7
    s_add_u32 s45, s45, s46
    s_add_u32 s56, s20, s45
    s_addc_u32 s57, s21, 0
    v_lshl_add_u32 v10, v12, 10, v13
    s_lshl_b32 s47, s64, 3
    s_mov_b32 s46, 0x8000
    L_ld_B:
    s_sub_u32 s58, {512*1792*2}, s45
    s_mov_b32 s60, 0
    L_ldB:
    s_waitcnt vmcnt({W-1})
    buffer_load_dwordx4 v10, s[56:59], s47 offen {cfg.ntW} lds
    s_addk_i32 m0, 0x1000
    s_add_u32 s47, s47, s46""")
    flagw()
    e(f"""
    s_add_u32 s60, s60, 1
    s_cmp_lt_u32 s60, 4
    s_cbranch_scc1 L_ldB
    L_ld_noB:
    v_lshlrev_b32 v14, 8, v3
    v_xor_b32 v17, v3, v2
    v_lshl_add_u32 v4, v17, 4, v14
    v_xor_b32 v4, s{sWAVE}, v4
    s_lshr_b32 s45, s{sI}, 4
    s_lshl_b32 s45, s45, 26
    s_lshl_b32 s46, s{sG}, 23
    s_add_u32 s45, s45, s46
    s_and_b32 s46, s{sI}, 15
    s_lshl_b32 s46, s46, 16
    s_add_u32 s45, s45, s46
    s_add_u32 s45, s45, {28672*256}
    s_mov_b32 s50, 0x10000
    s_mov_b32 s51, 0x20000
    s_add_u32 s48, s6, s45
    s_addc_u32 s49, s7, 0
    s_and_b32 s44, s44, 15
    s_lshl_b32 s47, s44, 12
    s_add_u32 s47, s47, s64
    s_mov_b32 s60, 0
    L_ldK:
    s_mov_b32 m0, s47
    s_add_u32 s60, s60, 1
    s_waitcnt vmcnt({W-1})
    buffer_load_dwordx4 v4, s[48:51], s47 offen {nt} lds""")
    flagw()
    e(f"""
    s_addk_i32 s47, 0x1000
    s_and_b32 s47, s47, 0xffff
    s_cmp_lt_u32 s60, 16
    s_cbranch_scc1 L_ldK
    """)
    stamp(2)
    e(f"""
    v_lshlrev_b32 v17, 1, v3
    v_xor_b32 v17, v17, v2
    v_lshl_add_u32 v8, v17, 4, v14
    s_lshl_b32 s63, s63, 1
    v_xor_b32 v8, s63, v8
    v_lshlrev_b32 v14, 10, v3
    v_lshl_add_u32 v10, v17, 4, v14
    s_and_b32 s63, s{sWAVE}, 0x80
    v_xor_b32 v10, s63, v10
    s_add_u32 s52, s8, s45
    s_addc_u32 s53, s9, 0
    s_mov_b32 s54, 0x10000
    s_mov_b32 s55, 0x20000
    s_mov_b32 s60, 0
    s_and_b32 s61, s44, 3
    """)
    def vloop(name, end, win, noflag=False):
        e(f"""{name}:
        s_lshr_b32 s47, s60, 2
        s_add_u32 s47, s47, s{sRS}
        s_and_b32 s47, s47, 3
        s_add_u32 s62, s61, s60
        s_and_b32 s62, s62, 3
        s_lshl2_add_u32 s47, s47, s62
        s_lshl_b32 s47, s47, 12
        s_add_u32 s47, s47, s64
        s_add_u32 m0, s47, {L_V}
        s_add_u32 s60, s60, 1
        s_waitcnt vmcnt({win-1})
        buffer_load_dwordx4 v8, s[52:55], s47 offen {nt} lds""")
        if not noflag: flagw()
        e(f"""
        s_cmp_lt_u32 s60, {end}
        s_cbranch_scc1 {name}
        """)
    def woloop(name, g0, g1):
        if g0 == g1: return
        e(f"""
        s_add_u32 m0, s64, {L_WO + 4096*g0}
        s_lshl_b32 s47, s64, 2
        s_add_u32 s47, s47, {16384*g0}
        {name}:
        s_waitcnt vmcnt({W2-1})
        buffer_load_dwordx4 v10, s[56:59], s47 offen {cfg.ntW} lds
        s_addk_i32 m0, 0x1000
        s_addk_i32 s47, 0x4000""")
        flagw()
        e(f"""
        s_cmp_lt_u32 s47, {16384*g1}
        s_cbranch_scc1 {name}""")
    if W2 > W:
        assert cfg.w2at + (W2 - W) <= 12
        if cfg.w2at > 0: vloop("L_ldV0", cfg.w2at, W)
        vloop("L_ldV0b", cfg.w2at + W2 - W, W2, noflag=True)
        if cfg.w2at + W2 - W < 12: vloop("L_ldV1", 12, W2)
    else:
        assert W2 == W
        vloop("L_ldV1", 12, W)
    e(f"""
    s_lshl_b32 s45, s{sG}, 19
    s_lshr_b32 s46, s{sI}, 2
    s_lshl_b32 s46, s46, 16
    s_add_u32 s45, s45, s46
    s_and_b32 s46, s{sI}, 3
    s_lshl_b32 s46, s46, 8
    s_add_u32 s45, s45, s46
    s_add_u32 s56, s12, s45
    s_addc_u32 s57, s13, 0
    s_mov_b32 s58, {63*1024+256}
    """)
    spin_ge(1, F_T, 2, 17)
    woloop("L_ldWO1", 0, cfg.woe)
    vloop("L_ldV2", 16, W2)
    woloop("L_ldWO2", cfg.woe, 4)
    stamp(3)
    for k in range(W2-1, -1, -1):
        e(f"s_waitcnt vmcnt({k})")
        flagw()
        if k == 4 - cfg.woe: stamp(4)
    stamp(5)
    if cfg.diag: e(f"s_lshr_b32 s{sWAVE}, s{sWAVE}, 6")
    stamps_out(6)
    e("s_endpgm")

    e(f"""L_nl2:
    {f"s_mov_b64 exec, 1; v_mov_b32 v5, 2; ds_write_b32 v1, v5 offset:{F_T}; s_waitcnt vmcnt(0) lgkmcnt(0); s_endpgm".replace("; ", chr(10)) if cfg.only == 1 else ""}
    s_setprio 1
    v_and_b32 v2, 15, v0
    v_lshrrev_b32 v3, 4, v0
    s_mul_i32 s44, s2, {cfg.rotmul}
    s_bfe_u32 s{sRS}, s44, 0x20002
    s_lshl_b32 s{sSLOT}, s{sG}, 5
    s_add_u32 s{sSLOT}, s{sSLOT}, s{sI}
    s_mov_b32 s{sCAP}, {SPIN_CAP}
    s_cmp_lt_u32 s{sG}, 7
    s_cselect_b32 s{sVB}, 24, 20
    v_mov_b32 v4, {TMASK}
    s_mov_b32 s{SRD_WS}, s28
    s_mov_b32 s{SRD_WS+1}, s29
    s_mov_b32 s{SRD_WS+2}, {WS_BYTES}
    s_mov_b32 s{SRD_WS+3}, 0x20000
    s_mov_b32 s{sOFF}, 0
    s_mov_b32 s{sBOFF}, {B_OFF}
    s_cmp_ge_u32 s{sWAVE}, 6
    s_cbranch_scc1 L_compute
    """)
    e(f"""
    s_cmp_eq_u32 s{sWAVE}, 4
    s_cbranch_scc0 L_roleB
    s_mov_b32 s44, 0
    s_lshr_b32 s53, s{sI}, 3
    s_lshl_b32 s52, s{sSLOT}, 9
    s_add_u32 s52, s52, {W_QP}
    s_mov_b32 s54, {L_WO}
    s_mov_b32 s55, {L_ACTA}
    s_mov_b32 s45, 4
    s_branch L_tilecommon
    L_roleB:
    s_add_u32 s54, s{sRS}, 3
    s_and_b32 s54, s54, 3
    s_add_u32 s54, s54, 4
    s_lshl_b32 s54, s54, 14
    s_mov_b32 s55, {L_ACTB}
    s_mov_b32 s45, 8
    s_and_b32 s52, s{sI}, 15
    s_lshl4_add_u32 s52, s{sG}, s52
    s_lshr_b32 s44, s{sI}, 4
    s_and_b32 s53, s52, 3
    s_lshr_b32 s46, s52, 3
    s_lshl_b32 s52, s52, 9
    s_cmp_eq_u32 s44, 0
    s_cselect_b32 s53, s53, s46
    s_mov_b32 s46, {W_FP}
    s_cselect_b32 s46, {W_HP}, s46
    s_add_u32 s52, s52, s46
    s_cmp_eq_u32 s{sG}, 7
    s_cselect_b32 s44, 2, s44
    L_tilecommon:
    """)
    estamp(2)
    stamp(1)
    e(f"""
    v_lshrrev_b32 v5, 2, v2
    v_lshl_add_u32 v5, v3, 3, v5
    v_lshlrev_b32 v5, 7, v5
    v_and_b32 v6, 3, v2
    v_lshl_add_u32 v5, v6, 3, v5
    v_add_u32 v5, s54, v5
    v_lshrrev_b32 v6, 3, v2
    v_and_b32 v7, 1, v3
    v_lshl_or_b32 v6, v7, 1, v6
    """)
    for u in range(4):
        e(f"v_xor_b32 v7, {u}, v6\nv_lshl_add_u32 v{16+u}, v7, 5, v5")
    e(f"""
    v_and_b32 v5, 1, v0
    v_mul_u32_u24 v5, 288, v5
    v_lshl_add_u32 v5, v3, 4, v5
    v_add_u32 v20, s55, v5
    v_mov_b32 v21, 1
    v_mov_b32 v60, 0
    s_waitcnt lgkmcnt(0)
    """)
    nonce_from_epoch()
    e(f"""
    s_cmp_eq_u32 s44, 0
    s_waitcnt vmcnt(0)
    s_cbranch_scc0 L_noLN
    """)
    estamp(4)
    for k in range(8):
        e(f"v_lshlrev_b32 v{24+2*k}, 16, v{8+k}\nv_and_b32 v{25+2*k}, 0xffff0000, v{8+k}")
    e("v_pk_add_f32 v[40:41], v[24:25], v[26:27]")
    for k in range(2, 8):
        e(f"v_pk_add_f32 v[40:41], v[40:41], v[{24+2*k}:{25+2*k}]")
    e("v_add_f32 v40, v40, v41")
    dpp_add(40, (8, 4, 2, 1))
    e("v_mov_b32 v41, v40\ns_nop 1\nv_permlane16_swap_b32 v40, v41\ns_nop 0\nv_add_f32 v40, v40, v41")
    e("v_mul_f32 v40, 0xbb000000, v40\nv_mov_b32 v41, v40")
    e("v_pk_add_f32 v[42:43], v[24:25], v[40:41]\nv_pk_mul_f32 v[44:45], v[42:43], v[42:43]")
    for k in range(1, 8):
        e(f"v_pk_add_f32 v[42:43], v[{24+2*k}:{25+2*k}], v[40:41]\nv_pk_fma_f32 v[44:45], v[42:43], v[42:43], v[44:45]")
    e("v_add_f32 v44, v44, v45")
    dpp_add(44, (8, 4, 2, 1))
    e("v_mov_b32 v45, v44\ns_nop 1\nv_permlane16_swap_b32 v44, v45\ns_nop 0\nv_add_f32 v44, v44, v45")
    e("v_mul_f32 v44, 0x3b000000, v44")
    rnd_bf16(44)
    e("v_add_f32 v44, 0x3727c5ac, v44")
    rnd_bf16(44)
    e("v_sqrt_f32 v44, v44\ns_nop 0")
    rnd_bf16(44)
    e("v_rcp_f32 v44, v44")
    rnd_bf16(40)
    e("v_mov_b32 v41, v40\nv_mov_b32 v45, v44")
    for k in range(8):
        e(f"v_pk_add_f32 v[42:43], v[{24+2*k}:{25+2*k}], v[40:41]")
        e(f"v_cvt_pk_bf16_f32 v42, v42, v43\nv_and_b32 v43, 0xffff0000, v42\nv_lshlrev_b32 v42, 16, v42")
        e(f"v_pk_mul_f32 v[42:43], v[42:43], v[44:45]\nv_cvt_pk_bf16_f32 v{8+k}, v42, v43")
    e(f"""
    v_bfe_u32 v5, v0, 3, 2
    v_lshrrev_b32 v6, 5, v0
    v_mul_u32_u24 v6, 288, v6
    v_and_b32 v7, 7, v0
    v_lshl_add_u32 v6, v7, 5, v6
    v_add_u32 v6, s55, v6
    v_cmp_eq_u32 vcc, s53, v5
    s_and_saveexec_b64 s[56:57], vcc
    ds_write_b128 v6, v[8:11]
    ds_write_b128 v6, v[12:15] offset:16
    s_mov_b64 exec, -1
    L_noLN:
    """)
    stamp(2)
    e(f"""
    s_cmp_eq_u32 s44, 2
    s_cbranch_scc1 L_notile
    """)
    spin_land(45, 5, slp=cfg.slp)
    estamp(5)
    for u in range(4):
        for t in range(4):
            r = 64 + 16*u + 4*t
            e(f"ds_read_b64_tr_b16 v[{r}:{r+1}], v{16+u} offset:{t*4096}")
            e(f"ds_read_b64_tr_b16 v[{r+2}:{r+3}], v{16+u} offset:{t*4096+512}")
    e(f"""
    s_waitcnt lgkmcnt(0)
    L_notile:
    """)
    flag_add(1, F_T, 21)
    stamp(3)
    e(f"""
    s_cmp_eq_u32 s44, 1
    s_cbranch_scc0 L_noH
    """)
    e(f"""
    v_bfe_u32 v5, v0, 4, 1
    v_lshlrev_b32 v5, 11, v5
    v_lshrrev_b32 v6, 5, v0
    v_lshl_add_u32 v5, v6, 8, v5
    v_lshl_add_u32 v5, v2, 4, v5
    s_lshl_b32 s56, s53, 12
    s_add_u32 s56, s56, {W_HP}
    v_add_u32 v5, s56, v5
    v_and_b32 v7, 31, v0
    v_lshlrev_b32 v7, 3, v7
    s_lshl_b32 s56, s53, 8
    v_add_u32 v22, s56, v7
    global_load_dwordx2 v[22:23], v22, s[18:19]
    v_mul_u32_u24 v6, 288, v6
    v_add3_u32 v6, v6, v7, s55
    """)
    e(f"s_mov_b32 s45, {cfg.hgate}")
    spin_land(45, 7, slp=cfg.slp)
    e("L_hretry:")
    for k in range(4):
        e(f"buffer_load_dwordx4 v[{24+4*k}:{27+4*k}], v5, s[{SRD_WS}:{SRD_WS+3}], s{sOFF} offen offset:{512*k} sc1")
    e("s_waitcnt vmcnt(0)")
    for k in range(4): tag_check(24+4*k, 7, k == 0)
    e(f"""
    v_and_b32 v7, v4, v7
    v_cmp_ne_u32 vcc, 0, v7
    s_cbranch_vccz L_hok""")
    get_loc(7)
    e(f"""
    s_sub_u32 s{sCAP}, s{sCAP}, 1
    s_cbranch_scc0 L_hretry
    s_mov_b32 s{sCAP}, 0
    L_hok:""")
    for k in range(16): e(f"v_and_b32 v{24+k}, 0xfffff800, v{24+k}")
    e("""
    v_pk_add_f32 v[24:25], v[24:25], v[28:29]
    v_pk_add_f32 v[26:27], v[26:27], v[30:31]
    v_pk_add_f32 v[32:33], v[32:33], v[36:37]
    v_pk_add_f32 v[34:35], v[34:35], v[38:39]
    v_pk_add_f32 v[24:25], v[24:25], v[32:33]
    v_pk_add_f32 v[26:27], v[26:27], v[34:35]
    v_cvt_pk_bf16_f32 v24, v24, v25
    v_cvt_pk_bf16_f32 v26, v26, v27
    v_and_b32 v25, 0xffff0000, v24
    v_lshlrev_b32 v24, 16, v24
    v_and_b32 v27, 0xffff0000, v26
    v_lshlrev_b32 v26, 16, v26
    v_lshlrev_b32 v28, 16, v22
    v_and_b32 v29, 0xffff0000, v22
    v_lshlrev_b32 v30, 16, v23
    v_and_b32 v31, 0xffff0000, v23
    v_pk_add_f32 v[24:25], v[24:25], v[28:29]
    v_pk_add_f32 v[26:27], v[26:27], v[30:31]
    v_cvt_pk_bf16_f32 v24, v24, v25
    v_cvt_pk_bf16_f32 v26, v26, v27
    v_and_b32 v25, 0xffff0000, v24
    v_lshlrev_b32 v24, 16, v24
    v_and_b32 v27, 0xffff0000, v26
    v_lshlrev_b32 v26, 16, v26
    v_max_f32 v24, 0, v24
    v_max_f32 v25, 0, v25
    v_max_f32 v26, 0, v26
    v_max_f32 v27, 0, v27
    v_pk_mul_f32 v[24:25], v[24:25], v[24:25]
    v_pk_mul_f32 v[26:27], v[26:27], v[26:27]
    v_cvt_pk_bf16_f32 v24, v24, v25
    v_cvt_pk_bf16_f32 v25, v26, v27
    ds_write_b64 v6, v[24:25]
    L_noH:
    s_cmp_eq_u32 s44, 2
    s_cbranch_scc1 L_nopub
    """)
    e("s_waitcnt lgkmcnt(0)")
    for t in range(4):
        e(f"ds_read_b128 v[{24+4*t}:{27+4*t}], v20 offset:{64*t}")
    e(f"""
    s_cmp_eq_u32 s44, 0
    s_cselect_b32 s56, 8, 4
    s_cselect_b32 s57, 6, 5
    s_cselect_b32 s58, 4, 7
    v_and_b32 v5, 1, v0
    v_lshlrev_b32 v5, s56, v5
    v_bfe_u32 v6, v0, 1, 2
    v_lshl_add_u32 v5, v6, s57, v5
    v_lshl_add_u32 v5, v3, s58, v5
    v_add_u32 v60, s52, v5
    v_and_b32 v6, 2, v0
    v_cmp_ne_u32 s[56:57], 0, v6
    v_and_b32 v6, 4, v0
    v_cmp_ne_u32 s[58:59], 0, v6
    s_waitcnt lgkmcnt(0)
    """)
    for t in range(4):
        for u in range(4):
            r = 64 + 16*u + 4*t
            c = f"v[{40+4*u}:{43+4*u}]"
            e(f"v_mfma_f32_16x16x32_bf16 {c}, v[{r}:{r+3}], v[{24+4*t}:{27+4*t}], {c if t else 0}")
    e("s_nop 7")
    for k in range(4):
        e(f"v_cndmask_b32 v{40+k}, v{40+k}, v{44+k}, s[56:57]")
    for k in range(4):
        e(f"v_cndmask_b32 v{48+k}, v{48+k}, v{52+k}, s[56:57]")
    for k in range(4):
        e(f"v_cndmask_b32 v{56+k}, v{40+k}, v{48+k}, s[58:59]")
    for k in range(4): e(f"v_add_u32 v{56+k}, 0x400, v{56+k}")
    tag_insert(56, 4)
    e(f"""
    s_mov_b32 s74, 0x00ff00ff
    s_mov_b32 s75, 0x00ff00ff
    s_mov_b64 exec, s[74:75]
    s_cmp_eq_u32 s44, 0
    s_cbranch_scc0 L_pubB
    buffer_store_dwordx4 v[56:59], v60, s[{SRD_WS}:{SRD_WS+3}], 0 offen
    s_branch L_pubE
    L_pubB:
    buffer_store_dwordx4 v[56:59], v60, s[{SRD_WS}:{SRD_WS+3}], 0 offen sc1
    L_pubE:
    s_mov_b64 exec, -1
    L_nopub:
    """)
    stamp(4)
    e(f"""
    s_cmp_eq_u32 s{sWAVE}, 4
    s_cbranch_scc0 L_final
    """)
    e(f"""
    v_lshlrev_b32 v10, 9, v3
    v_lshl_add_u32 v10, v2, 4, v10
    s_lshl_b32 s56, s{sG}, 14
    s_lshr_b32 s57, s{sI}, 4
    s_lshl_b32 s57, s57, 8
    s_add_u32 s56, s56, s57
    s_add_u32 s56, s56, {W_QP}
    v_add_u32 v10, s56, v10
    v_add_u32 v11, 0x1000, v10
    v_add_u32 v12, 0x2000, v10
    v_add_u32 v13, 0x3000, v10
    v_lshrrev_b32 v8, 5, v0
    v_lshlrev_b32 v8, 5, v8
    v_lshl_add_u32 v8, v0, 3, v8
    v_add_u32 v8, {L_QS}, v8
    s_sub_u32 s45, s{sKEND}, {cfg.qlead}
    s_getreg_b32 s76, hwreg(HW_REG_XCC_ID, 0, 4)
    s_lshl_b32 s56, s76, 16
    v_mov_b32 v64, s56
    v_mov_b32 v65, 0
    v_mov_b32 v66, 0
    v_mov_b32 v67, 0
    s_lshl_b32 s56, s{sSLOT}, 7
    s_add_u32 s56, s56, {W_ST+64}
    v_mov_b32 v61, s56
    v_and_b32 v62, 31, v0
    v_lshlrev_b32 v62, 7, v62
    s_lshl_b32 s56, s{sG}, 12
    s_add_u32 s56, s56, {W_ST+64}
    v_add_u32 v62, s56, v62
    s_mov_b32 s77, 0
    s_mov_b32 s78, 0
    """)
    tag_insert(64, 4)
    e(f"""
    s_mov_b64 exec, 1
    buffer_store_dwordx4 v[64:67], v61, s[{SRD_WS}:{SRD_WS+3}], 0 offen
    s_mov_b64 exec, -1
    """)
    def pubB_q():
        L = lbl("L_pb")
        e(f"""
        s_cmp_eq_u32 s77, 0
        s_cbranch_scc0 {L}
        s_mov_b32 s77, 1
        s_mov_b64 exec, s[74:75]
        buffer_store_dwordx4 v[56:59], v60, s[{SRD_WS}:{SRD_WS+3}], s{sBOFF} offen sc1
        s_mov_b64 exec, 1
        buffer_store_dwordx4 v[64:67], v61, s[{SRD_WS}:{SRD_WS+3}], s{sBOFF} offen sc1
        s_mov_b64 exec, -1
        {L}:""")
    spin_land(45, 7, slp=cfg.slp)
    e("L_qretry:")
    for v in range(2):
        for k in range(4):
            r = 24 + 16*v + 4*k
            e(f"buffer_load_dwordx4 v[{r}:{r+3}], v{10+k}, s[{SRD_WS}:{SRD_WS+3}], s{sOFF} offen offset:{2048*v} {cfg.ldA}")
    e(f"buffer_load_dwordx4 v[68:71], v62, s[{SRD_WS}:{SRD_WS+3}], s{sOFF} offen {cfg.ldA}")
    e("s_waitcnt vmcnt(0)")
    for k in range(8): tag_check(24+4*k, 7, k == 0)
    tag_check(68, 7, False)
    e(f"""
    v_and_b32 v7, v4, v7
    v_cmp_ne_u32 vcc, 0, v7
    s_cbranch_vccz L_qok
    s_add_u32 s78, s78, 1
    s_cmp_lt_u32 s78, {cfg.ntmo}
    s_cbranch_scc1 L_qretry
    s_xor_b32 s{sOFF}, s{sOFF}, s{sBOFF}
    """)
    pubB_q()
    e(f"""
    s_sub_u32 s{sCAP}, s{sCAP}, 1
    s_cbranch_scc0 L_qretry
    s_mov_b32 s{sCAP}, 0
    L_qok:
    v_lshrrev_b32 v68, 16, v68
    v_cmp_ne_u32 vcc, s76, v68
    s_mov_b32 s{sOFF}, 0
    s_cbranch_vccz L_qloc
    s_mov_b32 s{sOFF}, s{sBOFF}
    """)
    pubB_q()
    e(f"""L_qloc:
    s_add_u32 s56, s{sOFF}, 1
    v_mov_b32 v9, s56
    """)
    for k in range(32): e(f"v_and_b32 v{24+k}, 0xfffff800, v{24+k}")
    for v in range(2):
        r = 24 + 16*v
        e(f"""
        v_pk_add_f32 v[{r}:{r+1}], v[{r}:{r+1}], v[{r+4}:{r+5}]
        v_pk_add_f32 v[{r+2}:{r+3}], v[{r+2}:{r+3}], v[{r+6}:{r+7}]
        v_pk_add_f32 v[{r+8}:{r+9}], v[{r+8}:{r+9}], v[{r+12}:{r+13}]
        v_pk_add_f32 v[{r+10}:{r+11}], v[{r+10}:{r+11}], v[{r+14}:{r+15}]
        v_pk_add_f32 v[{r}:{r+1}], v[{r}:{r+1}], v[{r+8}:{r+9}]
        v_pk_add_f32 v[{r+2}:{r+3}], v[{r+2}:{r+3}], v[{r+10}:{r+11}]
        v_cvt_pk_bf16_f32 v{r}, v{r}, v{r+1}
        v_cvt_pk_bf16_f32 v{r+1}, v{r+2}, v{r+3}
        ds_write_b64 v8, v[{r}:{r+1}] offset:{576*v}
        """)
    flag_set(1, F_Q, 9)
    stamp(5)
    e(f"""
    v_and_b32 v5, 31, v0
    v_lshlrev_b32 v9, 2, v5
    v_add_u32 v9, {L_WT}, v9
    v_lshlrev_b32 v5, 7, v5
    s_lshl_b32 s56, s{sG}, 12
    s_lshr_b32 s57, s{sI}, 3
    s_lshl_b32 s57, s57, 4
    s_add_u32 s56, s56, s57
    s_add_u32 s56, s56, {W_ST}
    v_add_u32 v5, s56, v5
    """)
    spin_ge(1, F_P, 4, 7, slp=cfg.slp)
    e(f"""L_sretry:
    buffer_load_dwordx4 v[24:27], v5, s[{SRD_WS}:{SRD_WS+3}], s{sOFF} offen {cfg.ldA}
    s_waitcnt vmcnt(0)
    """)
    tag_check(24, 7, True)
    tag_branch(7, "L_sretry", masked=True)
    e(f"""
    v_and_b32 v24, 0xfffff800, v24
    v_and_b32 v25, 0xfffff800, v25
    v_mov_b32 v28, v24
    """)
    dpp_max(28, (8, 4, 2, 1))
    e(f"""
    v_sub_f32 v24, v24, v28
    v_mul_f32 v24, {LOG2E}, v24
    v_exp_f32 v24, v24
    s_nop 0
    v_mul_f32 v25, v24, v25
    """)
    dpp_add(25, (8, 4, 2, 1))
    e(f"""
    v_rcp_f32 v25, v25
    s_nop 0
    v_mul_f32 v24, v24, v25
    ds_write_b32 v9, v24
    """)
    flag_set(1, F_W, 21)
    if cfg.dirty:
        e(f"s_mov_b32 s{SRD_WS+2}, 0x2000000\ns_mul_i32 s56, s2, {1024*cfg.dirty}\ns_add_u32 s56, s56, 0x400000\nv_lshlrev_b32 v5, 4, v0")
        for k in range(cfg.dirty):
            e(f"buffer_store_dwordx4 v[24:27], v5, s[{SRD_WS}:{SRD_WS+3}], s56 offen\ns_add_u32 s56, s56, 1024")
    stamp(6)
    if cfg.diag: e(f"s_waitcnt lgkmcnt(0)\ns_sub_u32 s94, {SPIN_CAP}, s{sCAP}\ns_lshl_b32 s94, s94, 8\ns_add_u32 s94, s94, s78\ns_mov_b32 s95, 0")
    stamps_out(8)
    e("s_endpgm")

    e(f"""L_final:
    s_cmp_eq_u32 s44, 0
    s_cbranch_scc0 L_fin0
    """)
    get_loc(7)
    e(f"""
    s_cmp_eq_u32 s{sOFF}, 0
    s_cbranch_scc1 L_fin0
    s_mov_b64 exec, s[74:75]
    buffer_store_dwordx4 v[56:59], v60, s[{SRD_WS}:{SRD_WS+3}], s{sBOFF} offen sc1
    s_mov_b64 exec, -1
    L_fin0:
    s_lshr_b32 s56, s{sI}, 3          ; ctile
    s_and_b32 s57, s{sI}, 1           ; b
    s_bfe_u32 s58, s{sI}, 0x10001     ; e
    s_bfe_u32 s59, s{sI}, 0x10002
    s_and_b32 s60, s{sG}, 1
    s_lshl1_add_u32 s59, s60, s59     ; G
    s_lshr_b32 s60, s{sG}, 1          ; w
    s_lshl2_add_u32 s61, s56, s60     ; 4*ctile + w
    s_lshl1_add_u32 s62, s61, s58
    s_lshl2_add_u32 s62, s62, s59     ; nq = n0/4
    v_and_b32 v5, 1, v3
    v_lshlrev_b32 v5, 1, v5
    v_lshrrev_b32 v6, 1, v3
    v_or_b32 v5, v5, v6              ; e(R)
    v_lshlrev_b32 v5, 1, v5
    s_lshl_b32 s63, s62, 3
    v_add_u32 v6, s63, v5
    global_load_ushort v10, v6, s[22:23]
    s_lshl_b32 s63, s57, 10
    v_add_u32 v8, s63, v6
    global_load_ushort v11, v8, s[4:5]
    s_lshr_b32 s63, s62, 4           ; ctile8
    s_lshl2_add_u32 s63, s63, s59
    s_lshl_b32 s63, s63, 2
    s_bfe_u32 s61, s62, 0x20002      ; u
    s_add_u32 s63, s63, s61
    s_lshl1_add_u32 s63, s63, s57
    s_lshl4_add_u32 s63, s63, {W_FP}
    v_min_u32 v5, 13, v0
    v_lshlrev_b32 v5, 12, v5
    v_add_u32 v5, s63, v5
    s_lshl3_add_u32 s63, s56, s{sG}
    s_and_b32 s61, s{sI}, 7
    s_lshl3_add_u32 s63, s63, s61
    s_lshl4_add_u32 s63, s63, {W_SP}
    v_lshlrev_b32 v6, 12, v0
    v_add_u32 v6, s63, v6
    v_cmp_gt_u32 s[60:61], 14, v0
    s_mov_b32 s64, s24
    s_mov_b32 s65, s25
    s_mov_b32 s66, 2048
    s_mov_b32 s67, 0x20000
    s_add_u32 s45, s{sVB}, {cfg.flead}
    """)
    spin_land(45, 7, slp=cfg.slp)
    e(f"""L_fretry:
    buffer_load_dwordx4 v[24:27], v5, s[{SRD_WS}:{SRD_WS+3}], 0 offen sc1
    s_waitcnt vmcnt(0)
    """)
    tag_check(24, 7, True)
    tag_branch(7, "L_fretry", masked=True)
    for k in range(4):
        e(f"v_and_b32 v{24+k}, 0xfffff800, v{24+k}")
    for k in range(4):
        e(f"v_cndmask_b32 v{24+k}, 0, v{24+k}, s[60:61]")
    reduce4_rows(24, 28)
    dpp_add(24, (8, 4, 2, 1))
    rnd_bf16(24)
    e("v_lshlrev_b32 v10, 16, v10\nv_add_f32 v24, v24, v10")
    rnd_bf16(24)
    e(f"""
    v_mul_f32 v25, 0xbfb8aa3b, v24
    v_exp_f32 v25, v25
    s_nop 0
    v_add_f32 v25, 1.0, v25
    v_rcp_f32 v25, v25
    s_nop 0
    v_mul_f32 v12, v24, v25
    """)
    rnd_bf16(12)
    e("v_lshlrev_b32 v11, 16, v11")
    stamp(5)
    if cfg.h3gate == 0: spin_ge(1, F_O, 4, 7, slp=cfg.slp)
    else: spin_ge(1, F_K, 4, 7, slp=cfg.slp)
    if cfg.h3slp: e(f"s_sleep {cfg.h3slp}")
    e(f"""L_3retry:
    buffer_load_dwordx4 v[24:27], v6, s[{SRD_WS}:{SRD_WS+3}], 0 offen sc1
    s_waitcnt vmcnt(0)
    """)
    tag_check(24, 7, True)
    tag_branch(7, "L_3retry", masked=True, slp=cfg.h3loop)
    stamp(6)
    for k in range(4):
        e(f"v_and_b32 v{24+k}, 0xfffff800, v{24+k}")
    reduce4_rows(24, 28)
    dpp_add(24, (8, 4, 2, 1))
    rnd_bf16(24)
    e("v_mul_f32 v24, v24, v12")
    rnd_bf16(24)
    e(f"""
    v_add_f32 v24, v24, v11
    v_cvt_pk_bf16_f32 v24, v24, v24
    s_mov_b32 s56, 0x00010001
    s_mov_b32 s57, 0x00010001
    s_mov_b64 exec, s[56:57]
    buffer_store_short v24, v8, s[64:67], 0 offen
    s_cmp_eq_u32 s2, 0
    s_cbranch_scc0 L_fin2
    s_mov_b64 exec, 1
    v_mov_b32 v26, s34
    v_mov_b32 v27, s35
    v_mov_b32 v28, 0
    buffer_store_dwordx2 v[26:27], v28, s[{SRD_WS}:{SRD_WS+3}], 0 offen sc1
    L_fin2:
    """)
    stamp(7)
    stamps_out(8)
    e("s_endpgm")

    sW = 44
    e(f"""L_compute:
    s_sub_u32 s{sW}, s{sWAVE}, 6
    """)
    for r in range(64, 128): e(f"v_mov_b32 v{r}, 0")
    e(f"""
    s_lshl_b32 s45, s{sW}, 14
    v_lshlrev_b32 v5, 8, v2
    v_add_u32 v5, s45, v5
    v_xor_b32 v6, v3, v2
    """)
    for t in range(4):
        e(f"v_xor_b32 v7, {4*t}, v6\nv_lshl_add_u32 v{8+t}, v7, 4, v5")
    e(f"""
    v_and_b32 v13, 3, v2
    v_mul_u32_u24 v12, 288, v13
    v_lshl_add_u32 v12, v3, 4, v12
    v_add_u32 v12, {L_QS}, v12
    """)
    e(f"""
    v_lshl_add_u32 v15, v3, 2, v13
    v_lshlrev_b32 v15, 4, v15
    v_add_u32 v15, {L_PB}, v15
    v_lshrrev_b32 v5, 3, v2
    v_lshl_add_u32 v14, v5, 8, v15
    v_bfe_u32 v5, v2, 2, 1
    v_lshl_add_u32 v14, v5, 3, v14
    s_lshl_b32 s45, s{sW}, 9
    v_add_u32 v14, s45, v14
    v_lshlrev_b32 v17, 3, v13
    v_add_u32 v17, {L_SB}, v17
    s_lshl_b32 s45, s{sW}, 5
    v_add_u32 v16, s45, v17
    """)
    e(f"""
    v_lshrrev_b32 v5, 2, v2
    v_and_b32 v6, 1, v3
    v_lshl_add_u32 v6, v6, 2, v5
    s_lshl_b32 s45, s{sW}, 1
    v_xor_b32 v6, s45, v6
    v_lshlrev_b32 v7, 3, v13
    v_lshl_add_u32 v22, v6, 5, v7
    v_xor_b32 v23, 32, v22
    v_lshl_add_u32 v6, v3, 2, v5
    v_lshlrev_b32 v6, 8, v6
    v_add_u32 v6, {L_V}, v6
    v_add_u32 v18, v6, v22
    v_add_u32 v19, v6, v23
    v_lshl_add_u32 v6, v3, 3, v5
    v_lshlrev_b32 v6, 8, v6
    v_add_u32 v6, {L_WO}, v6
    v_add_u32 v20, v6, v22
    v_add_u32 v21, v6, v23
    """)
    e(f"""
    s_lshl_b32 s45, s{sW}, 7
    v_lshl_add_u32 v5, v3, 4, s45
    s_lshl_b32 s46, s{sSLOT}, 11
    s_add_u32 s46, s46, {W_OP}
    v_lshl_add_u32 v22, v13, 9, v5
    v_bfe_u32 v6, v2, 2, 1
    v_lshl_add_u32 v22, v6, 6, v22
    v_add_u32 v22, s46, v22
    s_lshl_b32 s46, s{sSLOT}, 10
    s_add_u32 s46, s46, {W_SP}
    s_lshl1_add_u32 s46, s45, s46
    v_lshlrev_b32 v23, 4, v13
    v_lshl_add_u32 v23, v3, 6, v23
    v_add_u32 v23, s46, v23
    v_and_b32 v6, 1, v2
    v_lshlrev_b32 v28, 7, v6
    v_lshl_add_u32 v28, v3, 4, v28
    v_add_u32 v28, {L_OB}, v28
    s_lshr_b32 s45, s{sW}, 1          ; b'
    s_and_b32 s46, s{sW}, 1           ; dsub
    s_lshl_b32 s47, s{sG}, 16
    s_lshl_b32 s48, s45, 15
    s_add_u32 s47, s47, s48
    s_lshr_b32 s48, s{sI}, 2
    s_lshl_b32 s48, s48, 8
    s_add_u32 s47, s47, s48
    s_lshl_b32 s48, s46, 7
    s_add_u32 s47, s47, s48
    s_add_u32 s47, s47, {W_OP}
    v_lshrrev_b32 v5, 3, v0
    v_and_b32 v6, 7, v0
    v_lshlrev_b32 v24, 11, v5
    v_lshl_add_u32 v24, v6, 4, v24
    v_add_u32 v24, s47, v24
    v_add_u32 v25, 16384, v24
    s_lshl_b32 s47, s45, 6
    s_add_u32 s47, s47, {L_WT}
    v_lshl_add_u32 v26, v5, 2, s47
    v_and_b32 v5, 1, v3
    v_lshlrev_b32 v5, 1, v5
    v_lshrrev_b32 v7, 1, v3
    v_or_b32 v5, v5, v7
    v_lshl_add_u32 v5, v6, 2, v5
    s_lshl_b32 s47, s45, 7
    s_lshl_b32 s48, s46, 6
    s_add_u32 s47, s47, s48
    s_add_u32 s47, s47, {L_OB}
    v_lshl_add_u32 v27, v5, 1, s47
    s_lshl_b32 s47, s{sSLOT}, 7
    s_add_u32 s47, s47, {W_ST}
    v_lshl_add_u32 v29, v13, 4, s47
    v_and_b32 v5, 4, v0
    v_cmp_ne_u32 s[50:51], 0, v5
    v_and_b32 v5, 2, v0
    v_cmp_ne_u32 s[52:53], 0, v5
    v_mov_b32 v30, 1
    s_waitcnt lgkmcnt(0)
    """)
    nonce_from_epoch()
    stamp(1)
    get_loc(6)
    for tau in range(4):
        m = 0x000f000f << (4*tau)
        e(f"s_mov_b32 s54, {m:#x}\ns_mov_b32 s55, {m:#x}\ns_mov_b64 exec, s[54:55]")
        for t in range(4):
            r = 64 + 16*tau + 4*t
            e(f"ds_read_b128 v[{r}:{r+3}], v12 offset:{64*t}")
    e("s_mov_b64 exec, -1")
    spin_land(sKEND, 6, slp=cfg.slp)
    stamp(2)
    def kread(tau, t):
        r = 128 + 16*(tau & 1) + 4*t
        e(f"ds_read_b128 v[{r}:{r+3}], v{8+t} offset:{4096*tau}")
    for tau in range(2):
        for t in range(4): kread(tau, t)
    for tau in range(4):
        for t in range(4):
            n = 4*tau + t
            r = 128 + 16*(tau & 1) + 4*t; q = 64 + 16*tau + 4*t
            e(f"s_waitcnt lgkmcnt({7 if n < 8 else 15-n})")
            e(f"v_mfma_f32_16x16x32_bf16 v[32:35], v[{r}:{r+3}], v[{q}:{q+3}], {'v[32:35]' if n else 0}")
            if tau < 2: kread(tau+2, t)
    e(f"""
    s_mov_b32 s54, {SCALE:#x}
    s_mov_b32 s55, {LOG2E:#x}
    s_nop 5
    v_cvt_pk_bf16_f32 v32, v32, v33
    v_cvt_pk_bf16_f32 v34, v34, v35
    v_and_b32 v33, 0xffff0000, v32
    v_lshlrev_b32 v32, 16, v32
    v_and_b32 v35, 0xffff0000, v34
    v_lshlrev_b32 v34, 16, v34
    v_mul_f32 v32, s54, v32
    v_mul_f32 v33, s54, v33
    v_mul_f32 v34, s54, v34
    v_mul_f32 v35, s54, v35
    v_cvt_pk_bf16_f32 v32, v32, v33
    v_cvt_pk_bf16_f32 v34, v34, v35
    v_and_b32 v33, 0xffff0000, v32
    v_lshlrev_b32 v32, 16, v32
    v_and_b32 v35, 0xffff0000, v34
    v_lshlrev_b32 v34, 16, v34
    v_max_f32 v36, v32, v33
    v_max3_f32 v36, v34, v35, v36
    """)
    dpp_max(36, (8, 4))
    e("""
    v_mov_b32 v37, v36
    s_nop 1
    v_permlane16_swap_b32 v36, v37
    s_nop 0
    v_max_f32 v36, v36, v37
    v_mov_b32 v37, v36
    s_nop 1
    v_permlane32_swap_b32 v36, v37
    s_nop 0
    v_max_f32 v36, v36, v37
    v_sub_f32 v32, v32, v36
    v_sub_f32 v33, v33, v36
    v_sub_f32 v34, v34, v36
    v_sub_f32 v35, v35, v36
    v_mul_f32 v32, s55, v32
    v_mul_f32 v33, s55, v33
    v_mul_f32 v34, s55, v34
    v_mul_f32 v35, s55, v35
    v_exp_f32 v32, v32
    v_exp_f32 v33, v33
    v_exp_f32 v34, v34
    v_exp_f32 v35, v35
    v_add_f32 v37, v32, v33
    v_cvt_pk_bf16_f32 v32, v32, v33
    v_add_f32 v38, v34, v35
    v_cvt_pk_bf16_f32 v33, v34, v35
    v_add_f32 v37, v37, v38
    ds_write_b64 v14, v[32:33]
    """)
    dpp_add(37, (8, 4))
    e("""
    v_mov_b32 v38, v37
    s_nop 1
    v_permlane16_swap_b32 v37, v38
    s_nop 0
    v_add_f32 v37, v37, v38
    v_mov_b32 v38, v37
    s_nop 1
    v_permlane32_swap_b32 v37, v38
    s_nop 0
    v_add_f32 v37, v37, v38
    s_mov_b64 exec, 15
    ds_write_b64 v16, v[36:37]
    s_mov_b64 exec, -1
    """)
    flag_add(1, F_P, 30)
    for sp in range(4):
        e(f"""
        s_add_u32 s56, s{sRS}, {sp}
        s_and_b32 s56, s56, 3
        s_lshl_b32 s57, s56, 9
        v_add_u32 v{40+sp}, s57, v15
        s_lshl_b32 s57, s56, 5
        v_add_u32 v{44+sp}, s57, v17
        s_lshl_b32 s57, s56, 14
        v_add_u32 v{48+2*sp}, s57, v18
        v_add_u32 v{49+2*sp}, s57, v19
        """)
    spin_ge(1, F_P, 4, 6)
    for sp in range(4):
        e(f"ds_read_b64 v[{56+2*sp}:{57+2*sp}], v{44+sp}")
    for sp in range(4):
        for sg in range(2):
            r = 64 + 8*sp + 4*sg
            e(f"ds_read_b128 v[{r}:{r+3}], v{40+sp} offset:{256*sg}")
    e("""
    s_waitcnt lgkmcnt(8)
    v_max_f32 v32, v56, v58
    v_max3_f32 v32, v60, v62, v32
    v_sub_f32 v56, v56, v32
    v_sub_f32 v58, v58, v32
    v_sub_f32 v60, v60, v32
    v_sub_f32 v62, v62, v32
    v_mul_f32 v56, s55, v56
    v_mul_f32 v58, s55, v58
    v_mul_f32 v60, s55, v60
    v_mul_f32 v62, s55, v62
    v_exp_f32 v56, v56
    v_exp_f32 v58, v58
    v_exp_f32 v60, v60
    v_exp_f32 v62, v62
    v_mul_f32 v33, v56, v57
    v_fmac_f32 v33, v58, v59
    v_fmac_f32 v33, v60, v61
    v_fmac_f32 v33, v62, v63
    v_mov_b32 v34, 0
    v_mov_b32 v35, 0
    """)
    e(f"s_cmp_eq_u32 s{sW}, 0\ns_cbranch_scc0 L_nostat")
    tag_insert(32, 4)
    e(f"""
    s_mov_b64 exec, 15
    buffer_store_dwordx4 v[32:35], v29, s[{SRD_WS}:{SRD_WS+3}], 0 offen
    s_cmp_eq_u32 s{sOFF}, 0
    s_cbranch_scc1 L_nostatB
    buffer_store_dwordx4 v[32:35], v29, s[{SRD_WS}:{SRD_WS+3}], s{sBOFF} offen sc1
    L_nostatB:
    s_mov_b64 exec, -1
    L_nostat:
    """)
    stamp(3)
    def fold(sp):
        for k in range(8):
            a = 96 + 8*sp + k
            if sp == 0: e(f"v_mul_f32 v{144+k}, v{56+2*sp}, v{a}")
            else: e(f"v_fmac_f32 v{144+k}, v{56+2*sp}, v{a}")
    for sp in range(4):
        e(f"s_add_u32 s58, s{sVB}, {4*(sp+1) + (cfg.woe if sp == 3 else 0)}")
        spin_land(58, 6, slp=(cfg.slp if sp < 3 else 0))
        if sp == 3: stamp(4)
        for sg in range(2):
            for ee in range(2):
                r = 128 + 8*sg + 4*ee
                e(f"ds_read_b64_tr_b16 v[{r}:{r+1}], v{48+2*sp+ee} offset:{8192*sg}")
                e(f"ds_read_b64_tr_b16 v[{r+2}:{r+3}], v{48+2*sp+ee} offset:{8192*sg+4096}")
        if sp > 0: fold(sp-1)
        for sg in range(2):
            for ee in range(2):
                r = 128 + 8*sg + 4*ee
                a = 96 + 8*sp + 4*ee
                p = 64 + 8*sp + 4*sg
                e(f"s_waitcnt lgkmcnt({6 - 2*(2*sg+ee)})" if not cfg.diag else "s_waitcnt lgkmcnt(0)")
                e(f"v_mfma_f32_16x16x32_bf16 v[{a}:{a+3}], v[{r}:{r+3}], v[{p}:{p+3}], {f'v[{a}:{a+3}]' if sg else 0}")
        if sp < 3: e("s_nop 2")
    e(f"s_mov_b32 s56, 0x00ff00ff\ns_mov_b32 s57, 0x00ff00ff\ns_cmp_eq_u32 s{sOFF}, 0\ns_nop 3")
    fold(3)
    for k in range(4):
        e(f"v_cndmask_b32 v{144+k}, v{144+k}, v{148+k}, s[50:51]")
    tag_insert(144, 4)
    e(f"""
    s_mov_b64 exec, s[56:57]
    buffer_store_dwordx4 v[144:147], v22, s[{SRD_WS}:{SRD_WS+3}], 0 offen
    s_cbranch_scc1 L_oloc
    buffer_store_dwordx4 v[144:147], v22, s[{SRD_WS}:{SRD_WS+3}], s{sBOFF} offen sc1
    L_oloc:
    s_mov_b64 exec, -1
    buffer_load_dwordx4 v[32:35], v24, s[{SRD_WS}:{SRD_WS+3}], s{sOFF} offen {cfg.ldA}
    buffer_load_dwordx4 v[36:39], v25, s[{SRD_WS}:{SRD_WS+3}], s{sOFF} offen {cfg.ldA}
    s_add_u32 s58, s{sVB}, 20
    """)
    stamp(5)
    spin_land(58, 6)
    for ee in range(2):
        for t in range(2):
            r = 64 + 8*ee + 4*t
            e(f"ds_read_b64_tr_b16 v[{r}:{r+1}], v{20+ee} offset:{8192*t}")
            e(f"ds_read_b64_tr_b16 v[{r+2}:{r+3}], v{20+ee} offset:{8192*t+1024}")
    spin_ge(1, F_W, 1, 6, extra="ds_read_b32 v40, v26\nds_read_b32 v41, v26 offset:32")
    e(f"""
    s_branch L_ochk
    L_oretry:
    buffer_load_dwordx4 v[32:35], v24, s[{SRD_WS}:{SRD_WS+3}], s{sOFF} offen {cfg.ldA}
    buffer_load_dwordx4 v[36:39], v25, s[{SRD_WS}:{SRD_WS+3}], s{sOFF} offen {cfg.ldA}
    L_ochk:
    s_waitcnt vmcnt(0)
    """)
    tag_check(32, 7, True); tag_check(36, 7, False)
    tag_branch(7, "L_oretry", masked=True, slp=cfg.o2loop)
    stamp(6)
    for k in range(8): e(f"v_and_b32 v{32+k}, 0xfffff800, v{32+k}")
    for k in range(4): e(f"v_mul_f32 v{32+k}, v40, v{32+k}")
    for k in range(4): e(f"v_fmac_f32 v{32+k}, v41, v{36+k}")
    reduce4_rows(32, 36)
    dpp_add(32, (8,))
    e("""
    v_cvt_pk_bf16_f32 v32, v32, v32
    ds_write_b16 v27, v32
    """)
    flag_add(1, F_O, 30)
    spin_ge(1, F_O, 4, 6, extra="ds_read_b128 v[40:43], v28\nds_read_b128 v[44:47], v28 offset:64")
    for t in range(2):
        for ee in range(2):
            r = 64 + 8*ee + 4*t
            a = 32 + 4*ee
            e(f"v_mfma_f32_16x16x32_bf16 v[{a}:{a+3}], v[{r}:{r+3}], v[{40+4*t}:{43+4*t}], {f'v[{a}:{a+3}]' if t else 0}")
    e(f"""
    s_mov_b32 s56, 0x000f000f
    s_mov_b32 s57, 0x000f000f
    s_nop 5
    """)
    for k in range(4):
        e(f"v_cndmask_b32 v{32+k}, v{32+k}, v{36+k}, s[52:53]")
    tag_insert(32, 4)
    e(f"""
    s_mov_b64 exec, s[56:57]
    buffer_store_dwordx4 v[32:35], v23, s[{SRD_WS}:{SRD_WS+3}], 0 offen sc1
    """)
    if cfg.h3gate == 2: e("s_waitcnt vmcnt(0)")
    if cfg.h3gate: e(f"s_mov_b64 exec, 1\nds_add_u32 v1, v30 offset:{F_K}")
    stamp(7)
    stamps_out(8)
    e("L_end:\ns_endpgm\nL_codeend:")
    if cfg.skip:
        res = []; sect = None
        for ln in out:
            t = ln.strip()
            if t.endswith(":"): sect = t[:-1]
            drop = False
            isg = t.startswith("buffer_load_dwordx4 v[") and "s[36:39]" in t
            if isg and sect in ("L_qretry",) and 'q' in cfg.skip: drop = True
            if isg and sect in ("L_hretry",) and 'h' in cfg.skip: drop = True
            if isg and sect in ("L_sretry",) and 's' in cfg.skip: drop = True
            if isg and sect in ("L_fretry",) and 'f' in cfg.skip: drop = True
            if t.startswith("s_cbranch_scc0 L_qretry") and 'q' in cfg.skip: drop = True
            if t.startswith("s_cbranch_scc0 L_hretry") and 'h' in cfg.skip: drop = True
            if t.startswith("s_cbranch_scc0 L_sretry") and 's' in cfg.skip: drop = True
            if t.startswith("s_cbranch_scc0 L_fretry") and 'f' in cfg.skip: drop = True
            if 'b' in cfg.skip and t.startswith("buffer_store_dwordx4") and "sc1" in t and ("v[56:59]" in t and sect == "L_pubB"): drop = True
            if 'a' in cfg.skip and t.startswith("buffer_store_dwordx4") and "sc1" not in t and ("v[56:59]" in t or "v[64:67]" in t or "v29" in t): drop = True
            if 'q' in cfg.skip and t.startswith("s_cbranch_vccz L_q"): ln = ln.replace("s_cbranch_vccz", "s_branch")
            if 'k' in cfg.skip and t.startswith("ds_read_b128 v[1") and "v1 offset" not in t: drop = True
            if 'v' in cfg.skip and t.startswith("ds_read_b64_tr_b16 v[1"): drop = True
            if not drop: res.append(ln)
        out[:] = res
    if cfg.mark:
        res = []; k = 0
        for ln in out:
            res.append(ln)
            if ln.strip() == f"s_mov_b32 s{sCAP}, 0":
                k += 1
                res += [f"    v_mov_b32 v164, {4*k}", "    v_mov_b32 v165, 1", "    global_atomic_add v164, v165, s[26:27]"]
        out[:] = res
    body = "\n".join(out)
    hdr = open("recurrent_scan__sliding_block_cached__dense_activation_squared_relu__decode.s.ref").read().split("; Override launch")[0]
    return f"""{hdr}; Single fused launch: 256 workgroups (one per CU) x 10 waves.
; @launch grid=(256,1,1) block=(640,1,1) lds={LDS_TOTAL}
.amdgcn_target "amdgcn-amd-amdhsa--gfx950"
.text
.globl {KNAME}
.p2align 8
.type {KNAME},@function
{KNAME}:
{body}
.section .rodata,"a"
.p2align 6
.amdhsa_kernel {KNAME}
  .amdhsa_next_free_vgpr 168
  .amdhsa_next_free_sgpr 102
  .amdhsa_accum_offset 168
  .amdhsa_group_segment_fixed_size 0
  .amdhsa_kernarg_size 104
  .amdhsa_user_sgpr_count 2
  .amdhsa_user_sgpr_kernarg_segment_ptr 1
  .amdhsa_system_sgpr_workgroup_id_x 1
.end_amdhsa_kernel
"""

if __name__ == "__main__":
    path = sys.argv[1]
    for a in sys.argv[2:]:
        k, v = a.split("=")
        cur = getattr(cfg, k)
        setattr(cfg, k, type(cur)(int(v)) if isinstance(cur, (bool, int)) else v.replace("+", " "))
    open(path, "w").write(build())
```

```python
import sys
KNAME = "recurrent_scan__sliding_block_cached__dense_activation_squared_relu__decode_kernel"

cfg_dbgsel = {6: [(0,0,1),(0,1,0),(1,2,1),(1,3,0),(2,4,0),(4,5,1),(4,6,0),(5,7,0)], 7: [(4,8,0),(5,9,0),(6,10,0)], 8: [(5,11,0),(6,12,1),(6,13,0),(7,14,0)]}
class Cfg:
    early = False
    ampw = -1
    ampk = 0
    ampg = -1
    dbg = False
    diag = False
    lw = 5
    lw2 = 5
    win = 20
    qlead = 7
    woe = 0
    lprio = 3
    clean = 0
    epst = ''
    outst = ''
    nprio = 1
    late_wo = 1
    pp2 = 1
    pp3 = 1
    gap3 = 2
    epf = 1
    dirty = 0
    h3gate = 2
    h3slp = 0
    h3loop = 0
    o2loop = 0
    mark = 0
    ntmo = 4
    skip = ''
    only = 0
    pfi = 28
    slp = 0
    win2 = 20
    w2at = 4
    slead = 0
    flead = 11
    hgate = 13
    ldA = 'sc1'
    pf = 1
    first = 'sc1'
    ntK = "nt"; ntW = "nt"
    rotmul = 5
cfg = Cfg()

L_K, L_V, L_WO = 0, 65536, 131072
SCR = 147456
L_QS = SCR
L_PB = SCR + 1152
L_SB = L_PB + 2048
L_WT = L_SB + 128
L_OB = L_WT + 128
L_ACTA = L_OB + 256
L_ACTB = L_ACTA + 576
L_FL = L_ACTB + 576
L_LAND = L_FL + 64
LDS_TOTAL = L_LAND + 16 + 256
F_Q, F_K, F_P, F_V, F_T, F_WO, F_W, F_O = [4*k for k in range(8)]
W_ST, W_QP, W_HP, W_OP, B_OFF, W_SP, W_FP = 0x8000, 0x10000, 0x30000, 0x40000, 0xC0000, 0x180000, 0x1C0000
WS_BYTES = 0x200000
SPIN_CAP = 1000002
LOG2E = 0x3fb8aa3b
SCALE = 0x3db504f3

sWAVE, sG, sI, sNON = 30, 31, 32, 33
sT0, sT1, sT2, sT3 = 34, 33, 40, 79
TMASK, VMASK, TB = 0x7ff, 0xfffff800, 11
SRD_WS = 36
sSLOT = 41
sRS = 42
sCAP = 43
sVB, sOFF, sBOFF = 71, 72, 73
sKEND = sVB
O_LAND = 64
STAMP0 = 80

out = []
def e(s):
    for ln in s.strip("\n").split("\n"):
        out.append("    " + ln.strip() if not ln.strip().endswith(":") else ln.strip())

def estamp(k):
    if cfg.diag and cfg.early:
        e(f"s_memrealtime s[{STAMP0+2*k}:{STAMP0+2*k+1}]")
def stamp(k):
    if cfg.diag and (not cfg.early or k == 0 or k >= 6):
        e(f"s_memrealtime s[{STAMP0+2*k}:{STAMP0+2*k+1}]")

def stamps_out(n):
    if not cfg.diag: return
    if cfg.ampw >= 0:
        L = lbl("L_amp"); Ls = lbl("L_amps")
        if cfg.ampk < n:
            e(f"""
            s_waitcnt lgkmcnt(0)
            s_cmp_eq_u32 s{sWAVE}, {cfg.ampw}
            s_cbranch_scc0 {Ls}
            {f's_cmp_eq_u32 s{sG}, {cfg.ampg}; s_cbranch_scc0 {Ls}'.replace('; ', chr(10)) if cfg.ampg >= 0 else ''}
            s_sub_u32 s60, s{STAMP0+2*cfg.ampk}, s{STAMP0}
            s_min_u32 s60, s60, 20000
            s_mul_i32 s60, s60, 10
            s_memrealtime s[62:63]
            s_waitcnt lgkmcnt(0)
            {L}:
            s_memrealtime s[68:69]
            s_waitcnt lgkmcnt(0)
            s_sub_u32 s61, s68, s62
            s_cmp_lt_u32 s61, s60
            s_cbranch_scc1 {L}
            {Ls}:
            """)
        return
    if cfg.dbg:
        sel = cfg_dbgsel[n] if n in cfg_dbgsel else []
        e("s_waitcnt lgkmcnt(0)\ns_mov_b64 exec, 1\nv_mov_b32 v1, 0")
        if n == 8: e(f"s_cmp_eq_u32 s{sWAVE}, 2\ns_cbranch_scc0 L_dbgskip{len(out)}"); lab = f"L_dbgskip{len(out)-2}"
        for (k, slot, mn) in sel:
            e(f"v_mov_b32 v4, s{STAMP0+2*k}")
            if mn: e("v_not_b32 v4, v4")
            e(f"global_atomic_umax v1, v4, s[26:27] offset:{4*slot}\ns_nop 1")
        if n == 8: e(f"{lab}:")
        e("s_waitcnt vmcnt(0)")
        return
    L = lbl("L_dly")
    e(f"""
    s_waitcnt lgkmcnt(0)
    s_add_u32 s61, s{STAMP0}, 1600
    {L}:
    s_sleep 8
    s_memrealtime s[68:69]
    s_waitcnt lgkmcnt(0)
    s_cmp_lt_u32 s68, s61
    s_cbranch_scc1 {L}
    s_lshl_b32 s60, s2, 4
    s_add_u32 s60, s60, s{sWAVE}
    s_lshl_b32 s60, s60, 6
    s_add_u32 s68, s28, s60
    s_addc_u32 s69, s29, 0
    s_add_u32 s68, s68, 0x10000000
    s_addc_u32 s69, s69, 0
    s_mov_b64 exec, 1
    v_mov_b32 v1, 0
    """)
    for k in range(8):
        if k < n:
            e(f"v_mov_b32 v4, s{STAMP0+2*k}\nv_mov_b32 v5, s{STAMP0+2*k+1}")
        else:
            e(f"v_mov_b32 v4, s{STAMP0}\nv_mov_b32 v5, s{STAMP0+1}")
        e(f"global_store_dwordx2 v1, v[4:5], s[68:69] offset:{8*k}\ns_nop 1")
    e("s_waitcnt vmcnt(0)")

lblc = [0]
def lbl(p="L"):
    lblc[0] += 1
    return f"{p}_{lblc[0]}"

def flag_set(vfl, off, vval):
    e(f"s_mov_b64 exec, 1\nds_write_b32 v{vfl}, v{vval} offset:{off}\ns_mov_b64 exec, -1")
def flag_add(vfl, off, vone):
    e(f"s_mov_b64 exec, 1\nds_add_u32 v{vfl}, v{vone} offset:{off}\ns_mov_b64 exec, -1")
def spin_ge(vfl, off, target, vtmp, extra="", slp=0):
    L = lbl("L_sp")
    e(f"""{L}:
    {f's_sleep {slp}' if slp else ''}
    ds_read_b32 v{vtmp}, v{vfl} offset:{off}
    {extra}
    s_waitcnt lgkmcnt(0)
    v_cmp_le_u32 vcc, {target}, v{vtmp}
    s_cbranch_vccz {L}""")

def spin_land(sreg, vtmp, extra="", slp=0):
    L = lbl("L_sl")
    e(f"""{L}:
    {f's_sleep {slp}' if slp else ''}
    ds_read_b128 v[160:163], v1 offset:{O_LAND}
    {extra}
    s_waitcnt lgkmcnt(0)
    v_min3_i32 v160, v160, v161, v162
    v_min_i32 v160, v160, v163
    v_cmp_le_i32 vcc, s{sreg}, v160
    s_cbranch_vccz {L}""")

def get_loc(vtmp, slp=None):
    spin_ge(1, F_Q, 1, vtmp, slp=cfg.slp if slp is None else slp)
    e(f"v_readfirstlane_b32 s{sOFF}, v{vtmp}\ns_nop 3\ns_and_b32 s{sOFF}, s{sOFF}, -2")

def tag_check(regs, acc, first):
    T = [sT0, sT1, sT2, sT3]
    for k in range(4):
        if first and k == 0:
            e(f"v_xor_b32 v{acc}, s{T[0]}, v{regs}")
        else:
            e(f"v_bitop3_b32 v{acc}, v{regs+k}, s{T[k]}, v{acc} bitop3:0xbe")
def tag_branch(acc, Lretry, toggle=False, masked=False, slp=0):
    Ld = lbl("L_ok")
    e(f"""
    v_and_b32 v{acc}, v4, v{acc}
    v_cmp_ne_u32 vcc, 0, v{acc}
    s_cbranch_vccz {Ld}""")
    if masked: e("s_mov_b64 exec, vcc")
    if slp: e(f"s_sleep {slp}")
    if toggle:
        e(f"""
        s_and_b32 s{sOFF}, s{sCAP}, 3
        s_cselect_b32 s{sOFF}, 0, s{sBOFF}""")
    e(f"""
    s_sub_u32 s{sCAP}, s{sCAP}, 1
    s_cbranch_scc0 {Lretry}
    s_mov_b32 s{sCAP}, 0
    {Ld}:""")
    if masked: e("s_mov_b64 exec, -1")
def tag_insert(regs, vff):
    T = [sT0, sT1, sT2, sT3]
    for k in range(4):
        e(f"v_bfi_b32 v{regs+k}, v{vff}, s{T[k]}, v{regs+k}")

def nonce_from_epoch():
    e(f"""
    s_add_u32 s34, s34, 0x01401801
    s_addc_u32 s35, s35, 14
    s_lshr_b32 s33, s34, 11
    s_lshr_b64 s[46:47], s[34:35], 22
    s_mov_b32 s40, s46
    s_lshr_b32 s79, s35, 1
    """)

def srd(r, lo, hi, nbytes):
    pass

def reduce4_rows(x, t):
    e(f"""
    s_nop 1
    v_permlane32_swap_b32 v{x}, v{x+1}
    v_permlane32_swap_b32 v{x+2}, v{x+3}
    s_nop 0
    v_add_f32 v{x}, v{x}, v{x+1}
    v_add_f32 v{x+2}, v{x+2}, v{x+3}
    s_nop 1
    v_permlane16_swap_b32 v{x}, v{x+2}
    s_nop 0
    v_add_f32 v{x}, v{x}, v{x+2}
    """)
def dpp_add(x, rots):
    for r in rots:
        e(f"s_nop 1\nv_add_f32_dpp v{x}, v{x}, v{x} row_ror:{r} row_mask:0xf bank_mask:0xf")
def dpp_max(x, rots):
    for r in rots:
        e(f"s_nop 1\nv_max_f32_dpp v{x}, v{x}, v{x} row_ror:{r} row_mask:0xf bank_mask:0xf")
def rnd_bf16(x):
    e(f"v_cvt_pk_bf16_f32 v{x}, v{x}, v{x}\nv_and_b32 v{x}, 0xffff0000, v{x}")

def build():
    out.clear()
    stamp(0)
    nt = cfg.ntK
    W = cfg.lw; W2 = cfg.lw2
    e(f"""
    s_load_dwordx16 s[4:19], s[0:1], 0
    s_load_dwordx8 s[20:27], s[0:1], 64
    s_load_dwordx2 s[28:29], s[0:1], 96
    v_readfirstlane_b32 s{sWAVE}, v0
    s_cmpk_ge_u32 s2, 0x100
    s_cbranch_scc1 L_end
    v_and_b32 v0, 63, v0
    s_and_b32 s{sG}, s2, 7
    s_lshr_b32 s{sI}, s2, 3
    s_cmpk_ge_u32 s{sWAVE}, 0x100
    s_cbranch_scc1 L_notloader
    v_lshrrev_b32 v12, 3, v0
    s_lshl_b32 s64, s{sWAVE}, 4
    {"s_getpc_b64 s[48:49]; v_lshl_add_u32 v13, v12, 7, s64; global_load_dword v166, v13, s[48:49]".replace("; ", chr(10)) if cfg.epf else ""}
    v_and_b32 v13, 7, v0
    v_and_b32 v14, 2, v12
    v_xor_b32 v13, v13, v14
    v_lshlrev_b32 v13, 4, v13
    s_and_b32 s63, s{sWAVE}, 64
    v_xor_b32 v13, s63, v13
    v_lshl_add_u32 v10, v12, 13, v13
    s_lshr_b32 s45, s2, 6
    s_lshl_b32 s45, s45, 20
    s_and_b32 s46, s{sI}, 7
    s_lshl3_add_u32 s46, s{sG}, s46
    s_lshl_b32 s46, s46, 7
    s_add_u32 s45, s45, s46
    s_mov_b32 s58, {127*8192+128}
    s_mov_b32 s59, 0x20000
    s_lshl4_add_u32 m0, s{sWAVE}, {L_WO}
    s_lshl_b32 s47, s{sWAVE}, 10
    s_waitcnt lgkmcnt(0)
    s_add_u32 s56, s10, s45
    s_addc_u32 s57, s11, 0
    {'s_memrealtime s[82:83]' if cfg.early else ''}
    L_ldA:
    buffer_load_dwordx4 v10, s[56:59], s47 offen {cfg.ntW} lds
    s_addk_i32 m0, 0x1000
    s_add_u32 s47, s47, 0x40000
    s_bitcmp0_b32 s47, 20
    s_cbranch_scc1 L_ldA
    {'s_memrealtime s[84:85]' if cfg.early else ''}
    s_branch L_ld2
    .p2align 8
    """)
    e(f"""L_notloader:
    v_mov_b32 v1, {L_FL}
    v_mov_b32 v5, 0
    v_lshl_add_u32 v6, v0, 2, v1
    ds_write_b32 v6, v5
    s_lshr_b32 s{sWAVE}, s{sWAVE}, 6
    """)
    if cfg.pf:
        e(f"""
        s_cmp_eq_u32 s{sWAVE}, 9
        s_cbranch_scc0 L_nopf
        s_getpc_b64 s[46:47]
        L_pc:
        s_mul_i32 s45, s{sI}, {2 if cfg.epf else 3}
        {'s_add_u32 s45, s45, 30' if cfg.epf else ''}
        v_min_u32 v5, {1 if cfg.epf else 2}, v0
        v_add_u32 v5, s45, v5
        v_lshlrev_b32 v5, 7, v5
        v_min_u32 v5, L_codeend-L_pc-4, v5
        global_load_dword v166, v5, s[46:47]
        L_nopf:""")
    e(f"""
    v_lshlrev_b32 v5, 5, v0
    s_cmp_ge_u32 s{sWAVE}, 6
    s_waitcnt lgkmcnt(0)
    s_load_dwordx2 s[34:35], s[28:29], 0
    s_cbranch_scc1 L_nox
    global_load_dwordx4 v[8:11], v5, s[4:5]
    global_load_dwordx4 v[12:15], v5, s[4:5] offset:16
    L_nox:
    s_barrier
    s_branch L_nl2
    """)
    def flagw():
        e("ds_write_b32 v16, v15\nv_add_u32 v15, 1, v15")
    e(f"""L_ld2:
    s_mul_i32 s44, s2, {cfg.rotmul}
    s_bfe_u32 s{sRS}, s44, 0x20002
    v_and_b32 v2, 15, v0
    v_lshrrev_b32 v3, 4, v0
    s_add_u32 s62, s{sRS}, 3
    s_and_b32 s62, s62, 3
    s_add_u32 s62, s62, 4
    s_lshl_b32 s62, s62, 14
    v_mov_b32 v1, {L_FL}
    s_lshr_b32 s45, s{sWAVE}, 4
    s_add_u32 s45, s45, {L_LAND}
    v_lshl_add_u32 v16, v0, 2, v1
    v_add_u32 v16, {O_LAND+16}, v16
    v_writelane_b32 v16, s45, 0
    v_mov_b32 v15, {5-W}
    s_setprio {cfg.lprio}
    s_barrier
    """)
    estamp(3)
    if cfg.early:
        e("s_waitcnt vmcnt(3)"); estamp(4); e("s_waitcnt vmcnt(0)"); estamp(5)
    stamp(1)
    e(f"""
    s_cmp_lt_u32 s{sG}, 7
    s_cbranch_scc0 L_ld_noB
    s_add_u32 m0, s62, s64
    s_and_b32 s65, s{sI}, 15
    s_lshl4_add_u32 s65, s{sG}, s65
    s_cmp_lt_u32 s{sI}, 16
    s_cbranch_scc0 L_ld_w2
    s_and_b32 s45, s65, 3
    s_mul_i32 s45, s45, {128*3584}
    s_lshr_b32 s46, s65, 2
    s_lshl_b32 s46, s46, 7
    s_add_u32 s45, s45, s46
    s_add_u32 s56, s16, s45
    s_addc_u32 s57, s17, 0
    v_mul_u32_u24 v10, 3584, v12
    v_add_u32 v10, v10, v13
    s_mul_i32 s47, s64, 28
    s_mov_b32 s46, {32*3584}
    s_branch L_ld_B
    L_ld_w2:
    s_lshr_b32 s45, s65, 3
    s_lshl_b32 s45, s45, 17
    s_and_b32 s46, s65, 7
    s_lshl_b32 s46, s46, 7
    s_add_u32 s45, s45, s46
    s_add_u32 s56, s20, s45
    s_addc_u32 s57, s21, 0
    v_lshl_add_u32 v10, v12, 10, v13
    s_lshl_b32 s47, s64, 3
    s_mov_b32 s46, 0x8000
    L_ld_B:
    s_sub_u32 s58, {512*1792*2}, s45
    s_mov_b32 s60, 0
    L_ldB:
    s_waitcnt vmcnt({W-1})
    buffer_load_dwordx4 v10, s[56:59], s47 offen {cfg.ntW} lds
    s_addk_i32 m0, 0x1000
    s_add_u32 s47, s47, s46""")
    flagw()
    e(f"""
    s_add_u32 s60, s60, 1
    s_cmp_lt_u32 s60, 4
    s_cbranch_scc1 L_ldB
    L_ld_noB:
    v_lshlrev_b32 v14, 8, v3
    v_xor_b32 v17, v3, v2
    v_lshl_add_u32 v4, v17, 4, v14
    v_xor_b32 v4, s{sWAVE}, v4
    s_lshr_b32 s45, s{sI}, 4
    s_lshl_b32 s45, s45, 26
    s_lshl_b32 s46, s{sG}, 23
    s_add_u32 s45, s45, s46
    s_and_b32 s46, s{sI}, 15
    s_lshl_b32 s46, s46, 16
    s_add_u32 s45, s45, s46
    s_add_u32 s45, s45, {28672*256}
    s_mov_b32 s50, 0x10000
    s_mov_b32 s51, 0x20000
    s_add_u32 s48, s6, s45
    s_addc_u32 s49, s7, 0
    s_and_b32 s44, s44, 15
    s_lshl_b32 s47, s44, 12
    s_add_u32 s47, s47, s64
    s_mov_b32 s60, 0
    L_ldK:
    s_mov_b32 m0, s47
    s_add_u32 s60, s60, 1
    s_waitcnt vmcnt({W-1})
    buffer_load_dwordx4 v4, s[48:51], s47 offen {nt} lds""")
    flagw()
    e(f"""
    s_addk_i32 s47, 0x1000
    s_and_b32 s47, s47, 0xffff
    s_cmp_lt_u32 s60, 16
    s_cbranch_scc1 L_ldK
    """)
    stamp(2)
    e(f"""
    v_lshlrev_b32 v17, 1, v3
    v_xor_b32 v17, v17, v2
    v_lshl_add_u32 v8, v17, 4, v14
    s_lshl_b32 s63, s63, 1
    v_xor_b32 v8, s63, v8
    v_lshlrev_b32 v14, 10, v3
    v_lshl_add_u32 v10, v17, 4, v14
    s_and_b32 s63, s{sWAVE}, 0x80
    v_xor_b32 v10, s63, v10
    s_add_u32 s52, s8, s45
    s_addc_u32 s53, s9, 0
    s_mov_b32 s54, 0x10000
    s_mov_b32 s55, 0x20000
    s_mov_b32 s60, 0
    s_and_b32 s61, s44, 3
    """)
    def vloop(name, end, win, noflag=False):
        e(f"""{name}:
        s_lshr_b32 s47, s60, 2
        s_add_u32 s47, s47, s{sRS}
        s_and_b32 s47, s47, 3
        s_add_u32 s62, s61, s60
        s_and_b32 s62, s62, 3
        s_lshl2_add_u32 s47, s47, s62
        s_lshl_b32 s47, s47, 12
        s_add_u32 s47, s47, s64
        s_add_u32 m0, s47, {L_V}
        s_add_u32 s60, s60, 1
        s_waitcnt vmcnt({win-1})
        buffer_load_dwordx4 v8, s[52:55], s47 offen {nt} lds""")
        if not noflag: flagw()
        e(f"""
        s_cmp_lt_u32 s60, {end}
        s_cbranch_scc1 {name}
        """)
    def woloop(name, g0, g1):
        if g0 == g1: return
        e(f"""
        s_add_u32 m0, s64, {L_WO + 4096*g0}
        s_lshl_b32 s47, s64, 2
        s_add_u32 s47, s47, {16384*g0}
        {name}:
        s_waitcnt vmcnt({W2-1})
        buffer_load_dwordx4 v10, s[56:59], s47 offen {cfg.ntW} lds
        s_addk_i32 m0, 0x1000
        s_addk_i32 s47, 0x4000""")
        flagw()
        e(f"""
        s_cmp_lt_u32 s47, {16384*g1}
        s_cbranch_scc1 {name}""")
    if W2 > W:
        assert cfg.w2at + (W2 - W) <= 12
        if cfg.w2at > 0: vloop("L_ldV0", cfg.w2at, W)
        vloop("L_ldV0b", cfg.w2at + W2 - W, W2, noflag=True)
        if cfg.w2at + W2 - W < 12: vloop("L_ldV1", 12, W2)
    elif W2 < W:
        vloop("L_ldV0", cfg.w2at, W)
        for k in range(W - W2):
            e(f"s_waitcnt vmcnt({W-1-k})")
            flagw()
        if cfg.w2at < 12: vloop("L_ldV1", 12, W2)
    else:
        vloop("L_ldV1", 12, W)
    e(f"""
    s_lshl_b32 s45, s{sG}, 19
    s_lshr_b32 s46, s{sI}, 2
    s_lshl_b32 s46, s46, 16
    s_add_u32 s45, s45, s46
    s_and_b32 s46, s{sI}, 3
    s_lshl_b32 s46, s46, 8
    s_add_u32 s45, s45, s46
    s_add_u32 s56, s12, s45
    s_addc_u32 s57, s13, 0
    s_mov_b32 s58, {63*1024+256}
    """)
    spin_ge(1, F_T, 2, 17)
    woloop("L_ldWO1", 0, cfg.woe)
    vloop("L_ldV2", 16, W2)
    woloop("L_ldWO2", cfg.woe, 4)
    stamp(3)
    for k in range(W2-1, -1, -1):
        e(f"s_waitcnt vmcnt({k})")
        flagw()
        if k == 4 - cfg.woe: stamp(4)
    stamp(5)
    if cfg.diag: e(f"s_lshr_b32 s{sWAVE}, s{sWAVE}, 6")
    stamps_out(6)
    e("s_endpgm")

    e(f"""L_nl2:
    {f"s_mov_b64 exec, 1; v_mov_b32 v5, 2; ds_write_b32 v1, v5 offset:{F_T}; s_waitcnt vmcnt(0) lgkmcnt(0); s_endpgm".replace("; ", chr(10)) if cfg.only == 1 else ""}
    s_setprio {cfg.nprio}
    v_and_b32 v2, 15, v0
    v_lshrrev_b32 v3, 4, v0
    s_mul_i32 s44, s2, {cfg.rotmul}
    s_bfe_u32 s{sRS}, s44, 0x20002
    s_lshl_b32 s{sSLOT}, s{sG}, 5
    s_add_u32 s{sSLOT}, s{sSLOT}, s{sI}
    s_mov_b32 s{sCAP}, {SPIN_CAP}
    s_cmp_lt_u32 s{sG}, 7
    s_cselect_b32 s{sVB}, 24, 20
    v_mov_b32 v4, {TMASK}
    s_mov_b32 s{SRD_WS}, s28
    s_mov_b32 s{SRD_WS+1}, s29
    s_mov_b32 s{SRD_WS+2}, {WS_BYTES}
    s_mov_b32 s{SRD_WS+3}, 0x20000
    s_mov_b32 s{sOFF}, 0
    s_mov_b32 s{sBOFF}, {B_OFF}
    s_cmp_ge_u32 s{sWAVE}, 6
    s_cbranch_scc1 L_compute
    """)
    e(f"""
    s_cmp_eq_u32 s{sWAVE}, 4
    s_cbranch_scc0 L_roleB
    s_mov_b32 s44, 0
    s_lshr_b32 s53, s{sI}, 3
    s_lshl_b32 s52, s{sSLOT}, 9
    s_add_u32 s52, s52, {W_QP}
    s_mov_b32 s54, {L_WO}
    s_mov_b32 s55, {L_ACTA}
    s_mov_b32 s45, 4
    s_branch L_tilecommon
    L_roleB:
    s_add_u32 s54, s{sRS}, 3
    s_and_b32 s54, s54, 3
    s_add_u32 s54, s54, 4
    s_lshl_b32 s54, s54, 14
    s_mov_b32 s55, {L_ACTB}
    s_mov_b32 s45, 8
    s_and_b32 s52, s{sI}, 15
    s_lshl4_add_u32 s52, s{sG}, s52
    s_lshr_b32 s44, s{sI}, 4
    s_and_b32 s53, s52, 3
    s_lshr_b32 s46, s52, 3
    s_lshl_b32 s52, s52, 9
    s_cmp_eq_u32 s44, 0
    s_cselect_b32 s53, s53, s46
    s_mov_b32 s46, {W_FP}
    s_cselect_b32 s46, {W_HP}, s46
    s_add_u32 s52, s52, s46
    s_cmp_eq_u32 s{sG}, 7
    s_cselect_b32 s44, 2, s44
    L_tilecommon:
    """)
    estamp(2)
    stamp(1)
    e(f"""
    v_lshrrev_b32 v5, 2, v2
    v_lshl_add_u32 v5, v3, 3, v5
    v_lshlrev_b32 v5, 7, v5
    v_and_b32 v6, 3, v2
    v_lshl_add_u32 v5, v6, 3, v5
    v_add_u32 v5, s54, v5
    v_lshrrev_b32 v6, 3, v2
    v_and_b32 v7, 1, v3
    v_lshl_or_b32 v6, v7, 1, v6
    """)
    for u in range(4):
        e(f"v_xor_b32 v7, {u}, v6\nv_lshl_add_u32 v{16+u}, v7, 5, v5")
    e(f"""
    v_and_b32 v5, 1, v0
    v_mul_u32_u24 v5, 288, v5
    v_lshl_add_u32 v5, v3, 4, v5
    v_add_u32 v20, s55, v5
    v_mov_b32 v21, 1
    v_mov_b32 v60, 0
    s_waitcnt lgkmcnt(0)
    """)
    nonce_from_epoch()
    e(f"""
    s_cmp_eq_u32 s44, 0
    s_waitcnt vmcnt(0)
    s_cbranch_scc0 L_noLN
    """)
    estamp(4)
    for k in range(8):
        e(f"v_lshlrev_b32 v{24+2*k}, 16, v{8+k}\nv_and_b32 v{25+2*k}, 0xffff0000, v{8+k}")
    e("v_pk_add_f32 v[40:41], v[24:25], v[26:27]")
    for k in range(2, 8):
        e(f"v_pk_add_f32 v[40:41], v[40:41], v[{24+2*k}:{25+2*k}]")
    e("v_add_f32 v40, v40, v41")
    dpp_add(40, (8, 4, 2, 1))
    e("v_mov_b32 v41, v40\ns_nop 1\nv_permlane16_swap_b32 v40, v41\ns_nop 0\nv_add_f32 v40, v40, v41")
    e("v_mul_f32 v40, 0xbb000000, v40\nv_mov_b32 v41, v40")
    e("v_pk_add_f32 v[42:43], v[24:25], v[40:41]\nv_pk_mul_f32 v[44:45], v[42:43], v[42:43]")
    for k in range(1, 8):
        e(f"v_pk_add_f32 v[42:43], v[{24+2*k}:{25+2*k}], v[40:41]\nv_pk_fma_f32 v[44:45], v[42:43], v[42:43], v[44:45]")
    e("v_add_f32 v44, v44, v45")
    dpp_add(44, (8, 4, 2, 1))
    e("v_mov_b32 v45, v44\ns_nop 1\nv_permlane16_swap_b32 v44, v45\ns_nop 0\nv_add_f32 v44, v44, v45")
    e("v_mul_f32 v44, 0x3b000000, v44")
    rnd_bf16(44)
    e("v_add_f32 v44, 0x3727c5ac, v44")
    rnd_bf16(44)
    e("v_sqrt_f32 v44, v44\ns_nop 0")
    rnd_bf16(44)
    e("v_rcp_f32 v44, v44")
    rnd_bf16(40)
    e("v_mov_b32 v41, v40\nv_mov_b32 v45, v44")
    for k in range(8):
        e(f"v_pk_add_f32 v[42:43], v[{24+2*k}:{25+2*k}], v[40:41]")
        e(f"v_cvt_pk_bf16_f32 v42, v42, v43\nv_and_b32 v43, 0xffff0000, v42\nv_lshlrev_b32 v42, 16, v42")
        e(f"v_pk_mul_f32 v[42:43], v[42:43], v[44:45]\nv_cvt_pk_bf16_f32 v{8+k}, v42, v43")
    e(f"""
    v_bfe_u32 v5, v0, 3, 2
    v_lshrrev_b32 v6, 5, v0
    v_mul_u32_u24 v6, 288, v6
    v_and_b32 v7, 7, v0
    v_lshl_add_u32 v6, v7, 5, v6
    v_add_u32 v6, s55, v6
    v_cmp_eq_u32 vcc, s53, v5
    s_and_saveexec_b64 s[56:57], vcc
    ds_write_b128 v6, v[8:11]
    ds_write_b128 v6, v[12:15] offset:16
    s_mov_b64 exec, -1
    L_noLN:
    """)
    stamp(2)
    e(f"""
    s_cmp_eq_u32 s44, 2
    s_cbranch_scc1 L_notile
    """)
    spin_land(45, 5, slp=cfg.slp)
    estamp(5)
    for u in range(4):
        for t in range(4):
            r = 64 + 16*u + 4*t
            e(f"ds_read_b64_tr_b16 v[{r}:{r+1}], v{16+u} offset:{t*4096}")
            e(f"ds_read_b64_tr_b16 v[{r+2}:{r+3}], v{16+u} offset:{t*4096+512}")
    e(f"""
    s_waitcnt lgkmcnt(0)
    L_notile:
    """)
    flag_add(1, F_T, 21)
    stamp(3)
    e(f"""
    s_cmp_eq_u32 s44, 1
    s_cbranch_scc0 L_noH
    """)
    e(f"""
    v_bfe_u32 v5, v0, 4, 1
    v_lshlrev_b32 v5, 11, v5
    v_lshrrev_b32 v6, 5, v0
    v_lshl_add_u32 v5, v6, 8, v5
    v_lshl_add_u32 v5, v2, 4, v5
    s_lshl_b32 s56, s53, 12
    s_add_u32 s56, s56, {W_HP}
    v_add_u32 v5, s56, v5
    v_and_b32 v7, 31, v0
    v_lshlrev_b32 v7, 3, v7
    s_lshl_b32 s56, s53, 8
    v_add_u32 v22, s56, v7
    global_load_dwordx2 v[22:23], v22, s[18:19]
    v_mul_u32_u24 v6, 288, v6
    v_add3_u32 v6, v6, v7, s55
    """)
    e(f"s_mov_b32 s45, {cfg.hgate}")
    spin_land(45, 7, slp=cfg.slp)
    e("L_hretry:")
    for k in range(4):
        e(f"buffer_load_dwordx4 v[{24+4*k}:{27+4*k}], v5, s[{SRD_WS}:{SRD_WS+3}], s{sOFF} offen offset:{512*k} sc1")
    e("s_waitcnt vmcnt(0)")
    for k in range(4): tag_check(24+4*k, 7, k == 0)
    e(f"""
    v_and_b32 v7, v4, v7
    v_cmp_ne_u32 vcc, 0, v7
    s_cbranch_vccz L_hok""")
    get_loc(7)
    e(f"""
    s_sub_u32 s{sCAP}, s{sCAP}, 1
    s_cbranch_scc0 L_hretry
    s_mov_b32 s{sCAP}, 0
    L_hok:""")
    for k in range(16): e(f"v_and_b32 v{24+k}, 0xfffff800, v{24+k}")
    e("""
    v_pk_add_f32 v[24:25], v[24:25], v[28:29]
    v_pk_add_f32 v[26:27], v[26:27], v[30:31]
    v_pk_add_f32 v[32:33], v[32:33], v[36:37]
    v_pk_add_f32 v[34:35], v[34:35], v[38:39]
    v_pk_add_f32 v[24:25], v[24:25], v[32:33]
    v_pk_add_f32 v[26:27], v[26:27], v[34:35]
    v_cvt_pk_bf16_f32 v24, v24, v25
    v_cvt_pk_bf16_f32 v26, v26, v27
    v_and_b32 v25, 0xffff0000, v24
    v_lshlrev_b32 v24, 16, v24
    v_and_b32 v27, 0xffff0000, v26
    v_lshlrev_b32 v26, 16, v26
    v_lshlrev_b32 v28, 16, v22
    v_and_b32 v29, 0xffff0000, v22
    v_lshlrev_b32 v30, 16, v23
    v_and_b32 v31, 0xffff0000, v23
    v_pk_add_f32 v[24:25], v[24:25], v[28:29]
    v_pk_add_f32 v[26:27], v[26:27], v[30:31]
    v_cvt_pk_bf16_f32 v24, v24, v25
    v_cvt_pk_bf16_f32 v26, v26, v27
    v_and_b32 v25, 0xffff0000, v24
    v_lshlrev_b32 v24, 16, v24
    v_and_b32 v27, 0xffff0000, v26
    v_lshlrev_b32 v26, 16, v26
    v_max_f32 v24, 0, v24
    v_max_f32 v25, 0, v25
    v_max_f32 v26, 0, v26
    v_max_f32 v27, 0, v27
    v_pk_mul_f32 v[24:25], v[24:25], v[24:25]
    v_pk_mul_f32 v[26:27], v[26:27], v[26:27]
    v_cvt_pk_bf16_f32 v24, v24, v25
    v_cvt_pk_bf16_f32 v25, v26, v27
    ds_write_b64 v6, v[24:25]
    L_noH:
    s_cmp_eq_u32 s44, 2
    s_cbranch_scc1 L_nopub
    """)
    e("s_waitcnt lgkmcnt(0)")
    for t in range(4):
        e(f"ds_read_b128 v[{24+4*t}:{27+4*t}], v20 offset:{64*t}")
    e(f"""
    s_cmp_eq_u32 s44, 0
    s_cselect_b32 s56, 8, 4
    s_cselect_b32 s57, 6, 5
    s_cselect_b32 s58, 4, 7
    v_and_b32 v5, 1, v0
    v_lshlrev_b32 v5, s56, v5
    v_bfe_u32 v6, v0, 1, 2
    v_lshl_add_u32 v5, v6, s57, v5
    v_lshl_add_u32 v5, v3, s58, v5
    v_add_u32 v60, s52, v5
    v_and_b32 v6, 2, v0
    v_cmp_ne_u32 s[56:57], 0, v6
    v_and_b32 v6, 4, v0
    v_cmp_ne_u32 s[58:59], 0, v6
    s_waitcnt lgkmcnt(0)
    """)
    for t in range(4):
        for u in range(4):
            r = 64 + 16*u + 4*t
            c = f"v[{40+4*u}:{43+4*u}]"
            e(f"v_mfma_f32_16x16x32_bf16 {c}, v[{r}:{r+3}], v[{24+4*t}:{27+4*t}], {c if t else 0}")
    e("s_nop 7")
    for k in range(4):
        e(f"v_cndmask_b32 v{40+k}, v{40+k}, v{44+k}, s[56:57]")
    for k in range(4):
        e(f"v_cndmask_b32 v{48+k}, v{48+k}, v{52+k}, s[56:57]")
    for k in range(4):
        e(f"v_cndmask_b32 v{56+k}, v{40+k}, v{48+k}, s[58:59]")
    for k in range(4): e(f"v_add_u32 v{56+k}, 0x400, v{56+k}")
    tag_insert(56, 4)
    e(f"""
    s_mov_b32 s74, 0x00ff00ff
    s_mov_b32 s75, 0x00ff00ff
    s_mov_b64 exec, s[74:75]
    s_cmp_eq_u32 s44, 0
    s_cbranch_scc0 L_pubB
    buffer_store_dwordx4 v[56:59], v60, s[{SRD_WS}:{SRD_WS+3}], 0 offen
    s_branch L_pubE
    L_pubB:
    buffer_store_dwordx4 v[56:59], v60, s[{SRD_WS}:{SRD_WS+3}], 0 offen sc1
    L_pubE:
    s_mov_b64 exec, -1
    L_nopub:
    """)
    stamp(4)
    e(f"""
    s_cmp_eq_u32 s{sWAVE}, 4
    s_cbranch_scc0 L_final
    """)
    e(f"""
    v_lshlrev_b32 v10, 9, v3
    v_lshl_add_u32 v10, v2, 4, v10
    s_lshl_b32 s56, s{sG}, 14
    s_lshr_b32 s57, s{sI}, 4
    s_lshl_b32 s57, s57, 8
    s_add_u32 s56, s56, s57
    s_add_u32 s56, s56, {W_QP}
    v_add_u32 v10, s56, v10
    v_add_u32 v11, 0x1000, v10
    v_add_u32 v12, 0x2000, v10
    v_add_u32 v13, 0x3000, v10
    v_lshrrev_b32 v8, 5, v0
    v_lshlrev_b32 v8, 5, v8
    v_lshl_add_u32 v8, v0, 3, v8
    v_add_u32 v8, {L_QS}, v8
    s_sub_u32 s45, s{sKEND}, {cfg.qlead}
    s_getreg_b32 s76, hwreg(HW_REG_XCC_ID, 0, 4)
    s_lshl_b32 s56, s76, 16
    v_mov_b32 v64, s56
    v_mov_b32 v65, 0
    v_mov_b32 v66, 0
    v_mov_b32 v67, 0
    s_lshl_b32 s56, s{sSLOT}, 7
    s_add_u32 s56, s56, {W_ST+64}
    v_mov_b32 v61, s56
    v_and_b32 v62, 31, v0
    v_lshlrev_b32 v62, 7, v62
    s_lshl_b32 s56, s{sG}, 12
    s_add_u32 s56, s56, {W_ST+64}
    v_add_u32 v62, s56, v62
    s_mov_b32 s77, 0
    s_mov_b32 s78, 0
    """)
    tag_insert(64, 4)
    e(f"""
    s_mov_b64 exec, 1
    buffer_store_dwordx4 v[64:67], v61, s[{SRD_WS}:{SRD_WS+3}], 0 offen
    s_mov_b64 exec, -1
    """)
    def pubB_q():
        L = lbl("L_pb")
        e(f"""
        s_cmp_eq_u32 s77, 0
        s_cbranch_scc0 {L}
        s_mov_b32 s77, 1
        s_mov_b64 exec, s[74:75]
        buffer_store_dwordx4 v[56:59], v60, s[{SRD_WS}:{SRD_WS+3}], s{sBOFF} offen sc1
        s_mov_b64 exec, 1
        buffer_store_dwordx4 v[64:67], v61, s[{SRD_WS}:{SRD_WS+3}], s{sBOFF} offen sc1
        s_mov_b64 exec, -1
        {L}:""")
    spin_land(45, 7, slp=cfg.slp)
    e("L_qretry:")
    for v in range(2):
        for k in range(4):
            r = 24 + 16*v + 4*k
            e(f"buffer_load_dwordx4 v[{r}:{r+3}], v{10+k}, s[{SRD_WS}:{SRD_WS+3}], s{sOFF} offen offset:{2048*v} {cfg.ldA}")
    e(f"buffer_load_dwordx4 v[68:71], v62, s[{SRD_WS}:{SRD_WS+3}], s{sOFF} offen {cfg.ldA}")
    e("s_waitcnt vmcnt(0)")
    for k in range(8): tag_check(24+4*k, 7, k == 0)
    tag_check(68, 7, False)
    e(f"""
    v_and_b32 v7, v4, v7
    v_cmp_ne_u32 vcc, 0, v7
    s_cbranch_vccz L_qok
    s_add_u32 s78, s78, 1
    s_cmp_lt_u32 s78, {cfg.ntmo}
    s_cbranch_scc1 L_qretry
    s_xor_b32 s{sOFF}, s{sOFF}, s{sBOFF}
    """)
    pubB_q()
    e(f"""
    s_sub_u32 s{sCAP}, s{sCAP}, 1
    s_cbranch_scc0 L_qretry
    s_mov_b32 s{sCAP}, 0
    L_qok:
    v_lshrrev_b32 v68, 16, v68
    v_cmp_ne_u32 vcc, s76, v68
    s_mov_b32 s{sOFF}, 0
    s_cbranch_vccz L_qloc
    s_mov_b32 s{sOFF}, s{sBOFF}
    """)
    pubB_q()
    e(f"""L_qloc:
    s_add_u32 s56, s{sOFF}, 1
    v_mov_b32 v9, s56
    """)
    for k in range(32): e(f"v_and_b32 v{24+k}, 0xfffff800, v{24+k}")
    for v in range(2):
        r = 24 + 16*v
        e(f"""
        v_pk_add_f32 v[{r}:{r+1}], v[{r}:{r+1}], v[{r+4}:{r+5}]
        v_pk_add_f32 v[{r+2}:{r+3}], v[{r+2}:{r+3}], v[{r+6}:{r+7}]
        v_pk_add_f32 v[{r+8}:{r+9}], v[{r+8}:{r+9}], v[{r+12}:{r+13}]
        v_pk_add_f32 v[{r+10}:{r+11}], v[{r+10}:{r+11}], v[{r+14}:{r+15}]
        v_pk_add_f32 v[{r}:{r+1}], v[{r}:{r+1}], v[{r+8}:{r+9}]
        v_pk_add_f32 v[{r+2}:{r+3}], v[{r+2}:{r+3}], v[{r+10}:{r+11}]
        v_cvt_pk_bf16_f32 v{r}, v{r}, v{r+1}
        v_cvt_pk_bf16_f32 v{r+1}, v{r+2}, v{r+3}
        ds_write_b64 v8, v[{r}:{r+1}] offset:{576*v}
        """)
    flag_set(1, F_Q, 9)
    stamp(5)
    e(f"""
    v_and_b32 v5, 31, v0
    v_lshlrev_b32 v9, 2, v5
    v_add_u32 v9, {L_WT}, v9
    v_lshlrev_b32 v5, 7, v5
    s_lshl_b32 s56, s{sG}, 12
    s_lshr_b32 s57, s{sI}, 3
    s_lshl_b32 s57, s57, 4
    s_add_u32 s56, s56, s57
    s_add_u32 s56, s56, {W_ST}
    v_add_u32 v5, s56, v5
    """)
    if cfg.slead > 0:
        e(f"s_add_u32 s45, s{sVB}, {cfg.slead}")
        spin_land(45, 7, slp=cfg.slp)
    spin_ge(1, F_P, 4, 7, slp=cfg.slp)
    e(f"""L_sretry:
    buffer_load_dwordx4 v[24:27], v5, s[{SRD_WS}:{SRD_WS+3}], s{sOFF} offen {cfg.ldA}
    s_waitcnt vmcnt(0)
    """)
    tag_check(24, 7, True)
    tag_branch(7, "L_sretry", masked=True)
    e(f"""
    v_and_b32 v24, 0xfffff800, v24
    v_and_b32 v25, 0xfffff800, v25
    v_mov_b32 v28, v24
    """)
    dpp_max(28, (8, 4, 2, 1))
    e(f"""
    v_sub_f32 v24, v24, v28
    v_mul_f32 v24, {LOG2E}, v24
    v_exp_f32 v24, v24
    s_nop 0
    v_mul_f32 v25, v24, v25
    """)
    dpp_add(25, (8, 4, 2, 1))
    e(f"""
    v_rcp_f32 v25, v25
    s_nop 0
    v_mul_f32 v24, v24, v25
    ds_write_b32 v9, v24
    """)
    flag_set(1, F_W, 21)
    if cfg.dirty:
        e(f"s_mov_b32 s{SRD_WS+2}, 0x2000000\ns_mul_i32 s56, s2, {1024*cfg.dirty}\ns_add_u32 s56, s56, 0x400000\nv_lshlrev_b32 v5, 4, v0")
        for k in range(cfg.dirty):
            e(f"buffer_store_dwordx4 v[24:27], v5, s[{SRD_WS}:{SRD_WS+3}], s56 offen\ns_add_u32 s56, s56, 1024")
    stamp(6)
    if cfg.diag: e(f"s_waitcnt lgkmcnt(0)\ns_sub_u32 s94, {SPIN_CAP}, s{sCAP}\ns_lshl_b32 s94, s94, 8\ns_add_u32 s94, s94, s78\ns_mov_b32 s95, 0")
    stamps_out(8)
    e("s_endpgm")

    e(f"""L_final:
    s_cmp_eq_u32 s44, 0
    s_cbranch_scc0 L_fin0
    """)
    get_loc(7)
    e(f"""
    s_cmp_eq_u32 s{sOFF}, 0
    s_cbranch_scc1 L_fin0
    s_mov_b64 exec, s[74:75]
    buffer_store_dwordx4 v[56:59], v60, s[{SRD_WS}:{SRD_WS+3}], s{sBOFF} offen sc1
    s_mov_b64 exec, -1
    L_fin0:
    s_lshr_b32 s56, s{sI}, 3          ; ctile
    s_and_b32 s57, s{sI}, 1           ; b
    s_bfe_u32 s58, s{sI}, 0x10001     ; e
    s_bfe_u32 s59, s{sI}, 0x10002
    s_and_b32 s60, s{sG}, 1
    s_lshl1_add_u32 s59, s60, s59     ; G
    s_lshr_b32 s60, s{sG}, 1          ; w
    s_lshl2_add_u32 s61, s56, s60     ; 4*ctile + w
    s_lshl1_add_u32 s62, s61, s58
    s_lshl2_add_u32 s62, s62, s59     ; nq = n0/4
    v_and_b32 v5, 1, v3
    v_lshlrev_b32 v5, 1, v5
    v_lshrrev_b32 v6, 1, v3
    v_or_b32 v5, v5, v6              ; e(R)
    v_lshlrev_b32 v5, 1, v5
    s_lshl_b32 s63, s62, 3
    v_add_u32 v6, s63, v5
    global_load_ushort v10, v6, s[22:23]
    s_lshl_b32 s63, s57, 10
    v_add_u32 v8, s63, v6
    global_load_ushort v11, v8, s[4:5]
    s_lshr_b32 s63, s62, 4           ; ctile8
    s_lshl2_add_u32 s63, s63, s59
    s_lshl_b32 s63, s63, 2
    s_bfe_u32 s61, s62, 0x20002      ; u
    s_add_u32 s63, s63, s61
    s_lshl1_add_u32 s63, s63, s57
    s_lshl4_add_u32 s63, s63, {W_FP}
    v_min_u32 v5, 13, v0
    v_lshlrev_b32 v5, 12, v5
    v_add_u32 v5, s63, v5
    s_lshl3_add_u32 s63, s56, s{sG}
    s_and_b32 s61, s{sI}, 7
    s_lshl3_add_u32 s63, s63, s61
    s_lshl4_add_u32 s63, s63, {W_SP}
    v_lshlrev_b32 v6, 12, v0
    v_add_u32 v6, s63, v6
    v_cmp_gt_u32 s[60:61], 14, v0
    s_mov_b32 s64, s24
    s_mov_b32 s65, s25
    s_mov_b32 s66, 2048
    s_mov_b32 s67, 0x20000
    s_add_u32 s45, s{sVB}, {cfg.flead}
    """)
    spin_land(45, 7, slp=cfg.slp)
    e(f"""L_fretry:
    buffer_load_dwordx4 v[24:27], v5, s[{SRD_WS}:{SRD_WS+3}], 0 offen sc1
    s_waitcnt vmcnt(0)
    """)
    tag_check(24, 7, True)
    tag_branch(7, "L_fretry", masked=True)
    for k in range(4):
        e(f"v_and_b32 v{24+k}, 0xfffff800, v{24+k}")
    for k in range(4):
        e(f"v_cndmask_b32 v{24+k}, 0, v{24+k}, s[60:61]")
    reduce4_rows(24, 28)
    dpp_add(24, (8, 4, 2, 1))
    rnd_bf16(24)
    e("v_lshlrev_b32 v10, 16, v10\nv_add_f32 v24, v24, v10")
    rnd_bf16(24)
    e(f"""
    v_mul_f32 v25, 0xbfb8aa3b, v24
    v_exp_f32 v25, v25
    s_nop 0
    v_add_f32 v25, 1.0, v25
    v_rcp_f32 v25, v25
    s_nop 0
    v_mul_f32 v12, v24, v25
    """)
    rnd_bf16(12)
    e("v_lshlrev_b32 v11, 16, v11")
    stamp(5)
    if cfg.h3gate == 0: spin_ge(1, F_O, 4, 7, slp=cfg.slp)
    else: spin_ge(1, F_K, 4, 7, slp=cfg.slp)
    if cfg.h3slp: e(f"s_sleep {cfg.h3slp}")
    def ld3(r): e(f"buffer_load_dwordx4 v[{r}:{r+3}], v6, s[{SRD_WS}:{SRD_WS+3}], 0 offen sc1")
    def chk3(r, L):
        tag_check(r, 7, True)
        e(f"v_and_b32 v7, v4, v7\nv_cmp_ne_u32 vcc, 0, v7\ns_cbranch_vccz {L}")
    if cfg.pp3:
        ld3(32)
        e(f"s_sleep {cfg.gap3}")
        ld3(36)
        e("s_mov_b64 s[62:63], -1\nL_3p:\ns_waitcnt vmcnt(1)")
        chk3(32, "L_3X")
        e("s_mov_b64 s[60:61], vcc\ns_mov_b64 exec, vcc")
        ld3(32)
        e("s_mov_b64 exec, s[62:63]\ns_waitcnt vmcnt(1)")
        chk3(36, "L_3Y")
        e("s_mov_b64 s[62:63], vcc\ns_mov_b64 exec, vcc")
        ld3(36)
        e(f"""
        s_mov_b64 exec, s[60:61]
        s_sub_u32 s{sCAP}, s{sCAP}, 1
        s_cbranch_scc0 L_3p
        s_mov_b32 s{sCAP}, 0
        s_waitcnt vmcnt(0)
        L_3Y:
        s_mov_b64 exec, -1""")
        for k in range(4): e(f"v_and_b32 v{24+k}, 0xfffff800, v{36+k}")
        e("s_branch L_3j\nL_3X:\ns_mov_b64 exec, -1")
        for k in range(4): e(f"v_and_b32 v{24+k}, 0xfffff800, v{32+k}")
        e("L_3j:")
    else:
        e("L_3retry:")
        ld3(24)
        e("s_waitcnt vmcnt(0)")
        tag_check(24, 7, True)
        tag_branch(7, "L_3retry", masked=True, slp=cfg.h3loop)
        for k in range(4): e(f"v_and_b32 v{24+k}, 0xfffff800, v{24+k}")
    stamp(6)
    reduce4_rows(24, 28)
    dpp_add(24, (8, 4, 2, 1))
    rnd_bf16(24)
    e("v_mul_f32 v24, v24, v12")
    rnd_bf16(24)
    e(f"""
    v_add_f32 v24, v24, v11
    v_cvt_pk_bf16_f32 v24, v24, v24
    s_mov_b32 s56, 0x00010001
    s_mov_b32 s57, 0x00010001
    s_mov_b64 exec, s[56:57]
    buffer_store_short v24, v8, s[64:67], 0 offen {cfg.outst}
    s_cmp_eq_u32 s2, 0
    s_cbranch_scc0 L_fin2
    s_mov_b64 exec, 1
    v_mov_b32 v26, s34
    v_mov_b32 v27, s35
    v_mov_b32 v28, 0
    buffer_store_dwordx2 v[26:27], v28, s[{SRD_WS}:{SRD_WS+3}], 0 offen {cfg.epst}
    L_fin2:
    """)
    stamp(7)
    stamps_out(8)
    e("s_endpgm")

    sW = 44
    e(f"""L_compute:
    s_sub_u32 s{sW}, s{sWAVE}, 6
    """)
    for r in range(64, 128): e(f"v_mov_b32 v{r}, 0")
    e(f"""
    s_lshl_b32 s45, s{sW}, 14
    v_lshlrev_b32 v5, 8, v2
    v_add_u32 v5, s45, v5
    v_xor_b32 v6, v3, v2
    """)
    for t in range(4):
        e(f"v_xor_b32 v7, {4*t}, v6\nv_lshl_add_u32 v{8+t}, v7, 4, v5")
    e(f"""
    v_and_b32 v13, 3, v2
    v_mul_u32_u24 v12, 288, v13
    v_lshl_add_u32 v12, v3, 4, v12
    v_add_u32 v12, {L_QS}, v12
    """)
    e(f"""
    v_lshl_add_u32 v15, v3, 2, v13
    v_lshlrev_b32 v15, 4, v15
    v_add_u32 v15, {L_PB}, v15
    v_lshrrev_b32 v5, 3, v2
    v_lshl_add_u32 v14, v5, 8, v15
    v_bfe_u32 v5, v2, 2, 1
    v_lshl_add_u32 v14, v5, 3, v14
    s_lshl_b32 s45, s{sW}, 9
    v_add_u32 v14, s45, v14
    v_lshlrev_b32 v17, 3, v13
    v_add_u32 v17, {L_SB}, v17
    s_lshl_b32 s45, s{sW}, 5
    v_add_u32 v16, s45, v17
    """)
    e(f"""
    v_lshrrev_b32 v5, 2, v2
    v_and_b32 v6, 1, v3
    v_lshl_add_u32 v6, v6, 2, v5
    s_lshl_b32 s45, s{sW}, 1
    v_xor_b32 v6, s45, v6
    v_lshlrev_b32 v7, 3, v13
    v_lshl_add_u32 v22, v6, 5, v7
    v_xor_b32 v23, 32, v22
    v_lshl_add_u32 v6, v3, 2, v5
    v_lshlrev_b32 v6, 8, v6
    v_add_u32 v6, {L_V}, v6
    v_add_u32 v18, v6, v22
    v_add_u32 v19, v6, v23
    v_lshl_add_u32 v6, v3, 3, v5
    v_lshlrev_b32 v6, 8, v6
    v_add_u32 v6, {L_WO}, v6
    v_add_u32 v20, v6, v22
    v_add_u32 v21, v6, v23
    """)
    e(f"""
    s_lshl_b32 s45, s{sW}, 7
    v_lshl_add_u32 v5, v3, 4, s45
    s_lshl_b32 s46, s{sSLOT}, 11
    s_add_u32 s46, s46, {W_OP}
    v_lshl_add_u32 v22, v13, 9, v5
    v_bfe_u32 v6, v2, 2, 1
    v_lshl_add_u32 v22, v6, 6, v22
    v_add_u32 v22, s46, v22
    s_lshl_b32 s46, s{sSLOT}, 10
    s_add_u32 s46, s46, {W_SP}
    s_lshl1_add_u32 s46, s45, s46
    v_lshlrev_b32 v23, 4, v13
    v_lshl_add_u32 v23, v3, 6, v23
    v_add_u32 v23, s46, v23
    v_and_b32 v6, 1, v2
    v_lshlrev_b32 v28, 7, v6
    v_lshl_add_u32 v28, v3, 4, v28
    v_add_u32 v28, {L_OB}, v28
    s_lshr_b32 s45, s{sW}, 1          ; b'
    s_and_b32 s46, s{sW}, 1           ; dsub
    s_lshl_b32 s47, s{sG}, 16
    s_lshl_b32 s48, s45, 15
    s_add_u32 s47, s47, s48
    s_lshr_b32 s48, s{sI}, 2
    s_lshl_b32 s48, s48, 8
    s_add_u32 s47, s47, s48
    s_lshl_b32 s48, s46, 7
    s_add_u32 s47, s47, s48
    s_add_u32 s47, s47, {W_OP}
    v_lshrrev_b32 v5, 3, v0
    v_and_b32 v6, 7, v0
    v_lshlrev_b32 v24, 11, v5
    v_lshl_add_u32 v24, v6, 4, v24
    v_add_u32 v24, s47, v24
    v_add_u32 v25, 16384, v24
    s_lshl_b32 s47, s45, 6
    s_add_u32 s47, s47, {L_WT}
    v_lshl_add_u32 v26, v5, 2, s47
    v_and_b32 v5, 1, v3
    v_lshlrev_b32 v5, 1, v5
    v_lshrrev_b32 v7, 1, v3
    v_or_b32 v5, v5, v7
    v_lshl_add_u32 v5, v6, 2, v5
    s_lshl_b32 s47, s45, 7
    s_lshl_b32 s48, s46, 6
    s_add_u32 s47, s47, s48
    s_add_u32 s47, s47, {L_OB}
    v_lshl_add_u32 v27, v5, 1, s47
    s_lshl_b32 s47, s{sSLOT}, 7
    s_add_u32 s47, s47, {W_ST}
    v_lshl_add_u32 v29, v13, 4, s47
    v_and_b32 v5, 4, v0
    v_cmp_ne_u32 s[50:51], 0, v5
    v_and_b32 v5, 2, v0
    v_cmp_ne_u32 s[52:53], 0, v5
    v_mov_b32 v30, 1
    s_waitcnt lgkmcnt(0)
    """)
    nonce_from_epoch()
    stamp(1)
    get_loc(6)
    for tau in range(4):
        m = 0x000f000f << (4*tau)
        e(f"s_mov_b32 s54, {m:#x}\ns_mov_b32 s55, {m:#x}\ns_mov_b64 exec, s[54:55]")
        for t in range(4):
            r = 64 + 16*tau + 4*t
            e(f"ds_read_b128 v[{r}:{r+3}], v12 offset:{64*t}")
    e("s_mov_b64 exec, -1")
    spin_land(sKEND, 6, slp=cfg.slp)
    stamp(2)
    def kread(tau, t):
        r = 128 + 16*(tau & 1) + 4*t
        e(f"ds_read_b128 v[{r}:{r+3}], v{8+t} offset:{4096*tau}")
    for tau in range(2):
        for t in range(4): kread(tau, t)
    for tau in range(4):
        for t in range(4):
            n = 4*tau + t
            r = 128 + 16*(tau & 1) + 4*t; q = 64 + 16*tau + 4*t
            e(f"s_waitcnt lgkmcnt({7 if n < 8 else 15-n})")
            e(f"v_mfma_f32_16x16x32_bf16 v[32:35], v[{r}:{r+3}], v[{q}:{q+3}], {'v[32:35]' if n else 0}")
            if tau < 2: kread(tau+2, t)
    e(f"""
    s_mov_b32 s54, {SCALE:#x}
    s_mov_b32 s55, {LOG2E:#x}
    s_nop 5
    v_cvt_pk_bf16_f32 v32, v32, v33
    v_cvt_pk_bf16_f32 v34, v34, v35
    v_and_b32 v33, 0xffff0000, v32
    v_lshlrev_b32 v32, 16, v32
    v_and_b32 v35, 0xffff0000, v34
    v_lshlrev_b32 v34, 16, v34
    v_mul_f32 v32, s54, v32
    v_mul_f32 v33, s54, v33
    v_mul_f32 v34, s54, v34
    v_mul_f32 v35, s54, v35
    v_cvt_pk_bf16_f32 v32, v32, v33
    v_cvt_pk_bf16_f32 v34, v34, v35
    v_and_b32 v33, 0xffff0000, v32
    v_lshlrev_b32 v32, 16, v32
    v_and_b32 v35, 0xffff0000, v34
    v_lshlrev_b32 v34, 16, v34
    v_max_f32 v36, v32, v33
    v_max3_f32 v36, v34, v35, v36
    """)
    dpp_max(36, (8, 4))
    e("""
    v_mov_b32 v37, v36
    s_nop 1
    v_permlane16_swap_b32 v36, v37
    s_nop 0
    v_max_f32 v36, v36, v37
    v_mov_b32 v37, v36
    s_nop 1
    v_permlane32_swap_b32 v36, v37
    s_nop 0
    v_max_f32 v36, v36, v37
    s_mov_b64 exec, 15
    ds_write_b32 v16, v36
    s_mov_b64 exec, 1
    ds_add_u32 v1, v30 offset:{F_V}
    s_mov_b64 exec, -1
    """.replace("{F_V}", str(F_V)))
    for r in range(96, 128): e(f"v_mov_b32 v{r}, 0")
    spin_ge(1, F_V, 4, 6, extra="ds_read_b32 v56, v17\nds_read_b32 v57, v17 offset:32\nds_read_b32 v58, v17 offset:64\nds_read_b32 v59, v17 offset:96")
    e("""
    v_max_f32 v36, v56, v57
    v_max3_f32 v36, v58, v59, v36
    v_sub_f32 v32, v32, v36
    v_sub_f32 v33, v33, v36
    v_sub_f32 v34, v34, v36
    v_sub_f32 v35, v35, v36
    v_mul_f32 v32, s55, v32
    v_mul_f32 v33, s55, v33
    v_mul_f32 v34, s55, v34
    v_mul_f32 v35, s55, v35
    v_exp_f32 v32, v32
    v_exp_f32 v33, v33
    v_exp_f32 v34, v34
    v_exp_f32 v35, v35
    v_add_f32 v37, v32, v33
    v_cvt_pk_bf16_f32 v32, v32, v33
    v_add_f32 v38, v34, v35
    v_cvt_pk_bf16_f32 v33, v34, v35
    v_add_f32 v37, v37, v38
    ds_write_b64 v14, v[32:33]
    """)
    dpp_add(37, (8, 4))
    e("""
    v_mov_b32 v38, v37
    s_nop 1
    v_permlane16_swap_b32 v37, v38
    s_nop 0
    v_add_f32 v37, v37, v38
    v_mov_b32 v38, v37
    s_nop 1
    v_permlane32_swap_b32 v37, v38
    s_nop 0
    v_add_f32 v37, v37, v38
    s_mov_b64 exec, 15
    ds_write_b32 v16, v37 offset:4
    s_mov_b64 exec, -1
    """)
    flag_add(1, F_P, 30)
    for sp in range(4):
        e(f"""
        s_add_u32 s56, s{sRS}, {sp}
        s_and_b32 s56, s56, 3
        s_lshl_b32 s57, s56, 9
        v_add_u32 v{40+sp}, s57, v15
        s_lshl_b32 s57, s56, 14
        v_add_u32 v{48+2*sp}, s57, v18
        v_add_u32 v{49+2*sp}, s57, v19
        """)
    spin_ge(1, F_P, 4, 6)
    def preg(ee, sp, sg): return (64 if sp < 2 else 96) + 16*ee + 8*(sp & 1) + 4*sg
    for k in range(4):
        e(f"ds_read_b32 v{56+k}, v17 offset:{32*k+4}")
    for ee in range(2):
        m = 0x000f000f << (4*ee)
        e(f"s_mov_b32 s56, {m:#x}\ns_mov_b32 s57, {m:#x}\ns_mov_b64 exec, s[56:57]")
        for sp in range(4):
            for sg in range(2):
                r = preg(ee, sp, sg)
                e(f"ds_read_b128 v[{r}:{r+3}], v{40+sp} offset:{256*sg}")
    e("""
    s_mov_b64 exec, -1
    s_waitcnt lgkmcnt(15)
    s_waitcnt lgkmcnt(0)
    v_mov_b32 v32, v36
    v_add_f32 v33, v56, v57
    v_add_f32 v34, v58, v59
    v_add_f32 v33, v33, v34
    v_mov_b32 v34, 0
    v_mov_b32 v35, 0
    """)
    e(f"s_cmp_eq_u32 s{sW}, 0\ns_cbranch_scc0 L_nostat")
    tag_insert(32, 4)
    e(f"""
    s_mov_b64 exec, 15
    buffer_store_dwordx4 v[32:35], v29, s[{SRD_WS}:{SRD_WS+3}], 0 offen
    s_cmp_eq_u32 s{sOFF}, 0
    s_cbranch_scc1 L_nostatB
    buffer_store_dwordx4 v[32:35], v29, s[{SRD_WS}:{SRD_WS+3}], s{sBOFF} offen sc1
    L_nostatB:
    s_mov_b64 exec, -1
    L_nostat:
    """)
    stamp(3)
    for sp in range(4):
        e(f"s_add_u32 s58, s{sVB}, {4*(sp+1) + (cfg.woe if sp == 3 else 0)}")
        if sp == 3: e(f"s_mov_b32 s56, 0x00ff00ff\ns_mov_b32 s57, 0x00ff00ff")
        spin_land(58, 6, slp=(cfg.slp if sp < 3 else 0))
        if sp == 3: stamp(4)
        for sg in range(2):
            for ee in range(2):
                r = 128 + 8*sg + 4*ee
                e(f"ds_read_b64_tr_b16 v[{r}:{r+1}], v{48+2*sp+ee} offset:{8192*sg}")
                e(f"ds_read_b64_tr_b16 v[{r+2}:{r+3}], v{48+2*sp+ee} offset:{8192*sg+4096}")
        for sg in range(2):
            for ee in range(2):
                r = 128 + 8*sg + 4*ee
                p = preg(ee, sp, sg)
                e(f"s_waitcnt lgkmcnt({6 - 2*(2*sg+ee)})")
                e(f"v_mfma_f32_16x16x32_bf16 v[144:147], v[{r}:{r+3}], v[{p}:{p+3}], {'v[144:147]' if (sp or sg or ee) else 0}")
    e(f"s_cmp_eq_u32 s{sOFF}, 0\ns_mov_b64 exec, s[56:57]\ns_nop 5")
    tag_insert(144, 4)
    e(f"""
    buffer_store_dwordx4 v[144:147], v22, s[{SRD_WS}:{SRD_WS+3}], 0 offen
    s_cbranch_scc1 L_oloc
    buffer_store_dwordx4 v[144:147], v22, s[{SRD_WS}:{SRD_WS+3}], s{sBOFF} offen sc1
    L_oloc:
    s_mov_b64 exec, -1
    {"v_mov_b32 v156, v144; v_mov_b32 v157, v145; v_mov_b32 v158, v146; v_mov_b32 v159, v147".replace("; ", chr(10)) if 0 else ""}
    buffer_load_dwordx4 v[32:35], v24, s[{SRD_WS}:{SRD_WS+3}], s{sOFF} offen {cfg.ldA}
    buffer_load_dwordx4 v[36:39], v25, s[{SRD_WS}:{SRD_WS+3}], s{sOFF} offen {cfg.ldA}
    s_add_u32 s58, s{sVB}, 20
    """)
    stamp(5)
    def wofr():
        for ee in range(2):
            for t in range(2):
                r = 64 + 8*ee + 4*t
                e(f"ds_read_b64_tr_b16 v[{r}:{r+1}], v{20+ee} offset:{8192*t}")
                e(f"ds_read_b64_tr_b16 v[{r+2}:{r+3}], v{20+ee} offset:{8192*t+1024}")
    if not cfg.late_wo:
        spin_land(58, 6)
        wofr()
    if cfg.clean:
        for k in range(4): e(f"v_mov_b32 v{156+k}, v{144+k}")
    spin_ge(1, F_W, 1, 6, extra="ds_read_b32 v40, v26\nds_read_b32 v41, v26 offset:32")
    def ld2(r):
        e(f"""
        buffer_load_dwordx4 v[{r}:{r+3}], v24, s[{SRD_WS}:{SRD_WS+3}], s{sOFF} offen {cfg.ldA}
        buffer_load_dwordx4 v[{r+4}:{r+7}], v25, s[{SRD_WS}:{SRD_WS+3}], s{sOFF} offen {cfg.ldA}""")
    def chk2(r, L):
        tag_check(r, 7, True); tag_check(r+4, 7, False)
        e(f"v_and_b32 v7, v4, v7\nv_cmp_ne_u32 vcc, 0, v7\ns_cbranch_vccz {L}")
    if cfg.pp2:
        ld2(48)
        e("s_mov_b64 s[62:63], -1\nL_op:\ns_waitcnt vmcnt(2)")
        chk2(32, "L_okX")
        e("s_mov_b64 s[60:61], vcc\ns_mov_b64 exec, vcc")
        ld2(32)
        e("s_mov_b64 exec, s[62:63]\ns_waitcnt vmcnt(2)")
        chk2(48, "L_okY")
        e("s_mov_b64 s[62:63], vcc\ns_mov_b64 exec, vcc")
        ld2(48)
        e(f"""
        s_mov_b64 exec, s[60:61]
        s_sub_u32 s{sCAP}, s{sCAP}, 1
        s_cbranch_scc0 L_op
        s_mov_b32 s{sCAP}, 0
        s_waitcnt vmcnt(0)
        L_okY:
        s_mov_b64 exec, -1""")
        for k in range(8): e(f"v_and_b32 v{56+k}, 0xfffff800, v{48+k}")
        e("s_branch L_oj\nL_okX:\ns_mov_b64 exec, -1")
        for k in range(8): e(f"v_and_b32 v{56+k}, 0xfffff800, v{32+k}")
        e("L_oj:")
    else:
        e("s_branch L_ochk\nL_oretry:")
        ld2(32)
        e("L_ochk:\ns_waitcnt vmcnt(0)")
        tag_check(32, 7, True); tag_check(36, 7, False)
        tag_branch(7, "L_oretry", masked=True, slp=cfg.o2loop)
        for k in range(8): e(f"v_and_b32 v{56+k}, 0xfffff800, v{32+k}")
    stamp(6)
    R = []
    if cfg.late_wo:
        R.append(f"ds_read_b128 v[152:155], v1 offset:{O_LAND}")
        for ee in range(2):
            for t in range(2):
                r = 64 + 8*ee + 4*t
                R.append(f"ds_read_b64_tr_b16 v[{r}:{r+1}], v{20+ee} offset:{8192*t}")
                R.append(f"ds_read_b64_tr_b16 v[{r+2}:{r+3}], v{20+ee} offset:{8192*t+1024}")
    else:
        R = ["s_nop 0"] * 9
    e(f"""
    v_pk_mul_f32 v[56:57], v[56:57], v[40:41] op_sel_hi:[1,0]
    v_pk_mul_f32 v[58:59], v[58:59], v[40:41] op_sel_hi:[1,0]
    v_pk_fma_f32 v[56:57], v[60:61], v[40:41], v[56:57] op_sel:[0,1,0] op_sel_hi:[1,1,1]
    v_pk_fma_f32 v[58:59], v[62:63], v[40:41], v[58:59] op_sel:[0,1,0] op_sel_hi:[1,1,1]
    {R[0]}
    {R[1]}
    v_permlane32_swap_b32 v56, v57
    v_permlane32_swap_b32 v58, v59
    {R[2]}
    v_add_f32 v56, v56, v57
    v_add_f32 v58, v58, v59
    {R[3]}
    {R[4]}
    v_permlane16_swap_b32 v56, v58
    {R[5]}
    v_add_f32 v56, v56, v58
    {R[6]}
    {R[7]}
    v_add_f32_dpp v56, v56, v56 row_ror:8 row_mask:0xf bank_mask:0xf
    {R[8]}
    """)
    e(f"""
    v_cvt_pk_bf16_f32 v56, v56, v56
    ds_write_b16 v27, v56
    s_mov_b64 exec, 1
    ds_add_u32 v1, v30 offset:{F_O}
    s_mov_b64 exec, -1
    s_mov_b32 s56, 0x000f000f
    s_mov_b32 s57, 0x000f000f
    """)
    spin_ge(1, F_O, 4, 6, extra="ds_read_b128 v[40:43], v28\nds_read_b128 v[44:47], v28 offset:64")
    if cfg.late_wo:
        e("""
        v_min3_i32 v152, v152, v153, v154
        v_min_i32 v152, v152, v155
        v_cmp_le_i32 vcc, s58, v152
        s_cbranch_vccz L_wolate
        L_wook:""")
    for t in range(2):
        for ee in range(2):
            r = 64 + 8*ee + 4*t
            a = 144 + 4*ee
            e(f"v_mfma_f32_16x16x32_bf16 v[{a}:{a+3}], v[{r}:{r+3}], v[{40+4*t}:{43+4*t}], {f'v[{a}:{a+3}]' if t else 0}")
    e(f"""
    s_mov_b64 exec, s[56:57]
    s_nop 6
    """)
    for k in range(4):
        e(f"v_cndmask_b32 v{144+k}, v{144+k}, v{148+k}, s[52:53]")
    tag_insert(144, 4)
    e(f"""
    buffer_store_dwordx4 v[144:147], v23, s[{SRD_WS}:{SRD_WS+3}], 0 offen sc1
    """)
    if cfg.clean == 1:
        e(f"s_mov_b32 s56, 0x00ff00ff\ns_mov_b32 s57, 0x00ff00ff\ns_mov_b64 exec, s[56:57]\nbuffer_store_dwordx4 v[156:159], v22, s[{SRD_WS}:{SRD_WS+3}], 0 offen sc1\ns_waitcnt vmcnt(1)")
    elif cfg.h3gate == 2: e("s_waitcnt vmcnt(0)")
    if cfg.clean == 2:
        e(f"s_mov_b32 s56, 0x00ff00ff\ns_mov_b32 s57, 0x00ff00ff\ns_mov_b64 exec, s[56:57]\nbuffer_store_dwordx4 v[156:159], v22, s[{SRD_WS}:{SRD_WS+3}], 0 offen sc1")
    if cfg.h3gate: e(f"s_mov_b64 exec, 1\nds_add_u32 v1, v30 offset:{F_K}")
    stamp(7)
    stamps_out(8)
    e("L_end:\ns_endpgm")
    if cfg.late_wo:
        e("L_wolate:")
        spin_land(58, 6)
        wofr()
        e("s_waitcnt lgkmcnt(0)\ns_branch L_wook")
    e("L_codeend:")
    if cfg.skip:
        res = []; sect = None
        for ln in out:
            t = ln.strip()
            if t.endswith(":"): sect = t[:-1]
            drop = False
            isg = t.startswith("buffer_load_dwordx4 v[") and "s[36:39]" in t
            if isg and sect in ("L_qretry",) and 'q' in cfg.skip: drop = True
            if isg and sect in ("L_hretry",) and 'h' in cfg.skip: drop = True
            if isg and sect in ("L_sretry",) and 's' in cfg.skip: drop = True
            if isg and sect in ("L_fretry",) and 'f' in cfg.skip: drop = True
            if t.startswith("s_cbranch_scc0 L_qretry") and 'q' in cfg.skip: drop = True
            if t.startswith("s_cbranch_scc0 L_hretry") and 'h' in cfg.skip: drop = True
            if t.startswith("s_cbranch_scc0 L_sretry") and 's' in cfg.skip: drop = True
            if t.startswith("s_cbranch_scc0 L_fretry") and 'f' in cfg.skip: drop = True
            if 'b' in cfg.skip and t.startswith("buffer_store_dwordx4") and "sc1" in t and ("v[56:59]" in t and sect == "L_pubB"): drop = True
            if 'a' in cfg.skip and t.startswith("buffer_store_dwordx4") and "sc1" not in t and ("v[56:59]" in t or "v[64:67]" in t or "v29" in t): drop = True
            if 'q' in cfg.skip and t.startswith("s_cbranch_vccz L_q"): ln = ln.replace("s_cbranch_vccz", "s_branch")
            if 'k' in cfg.skip and t.startswith("ds_read_b128 v[1") and "v1 offset" not in t: drop = True
            if 'v' in cfg.skip and t.startswith("ds_read_b64_tr_b16 v[1"): drop = True
            if not drop: res.append(ln)
        out[:] = res
    if cfg.mark:
        res = []; k = 0
        for ln in out:
            res.append(ln)
            if ln.strip() == f"s_mov_b32 s{sCAP}, 0":
                k += 1
                res += [f"    v_mov_b32 v164, {4*k}", "    v_mov_b32 v165, 1", "    global_atomic_add v164, v165, s[26:27]"]
        out[:] = res
    body = "\n".join(out)
    hdr = open("recurrent_scan__sliding_block_cached__dense_activation_squared_relu__decode.s.ref").read().split("; Override launch")[0]
    return f"""{hdr}; Single fused launch: 256 workgroups (one per CU) x 10 waves.
; @launch grid=(256,1,1) block=(640,1,1) lds={LDS_TOTAL}
.amdgcn_target "amdgcn-amd-amdhsa--gfx950"
.text
.globl {KNAME}
.p2align 8
.type {KNAME},@function
{KNAME}:
{body}
.section .rodata,"a"
.p2align 6
.amdhsa_kernel {KNAME}
  .amdhsa_next_free_vgpr 168
  .amdhsa_next_free_sgpr 102
  .amdhsa_accum_offset 168
  .amdhsa_group_segment_fixed_size 0
  .amdhsa_kernarg_size 104
  .amdhsa_user_sgpr_count 2
  .amdhsa_user_sgpr_kernarg_segment_ptr 1
  .amdhsa_system_sgpr_workgroup_id_x 1
.end_amdhsa_kernel
"""

if __name__ == "__main__":
    path = sys.argv[1]
    for a in sys.argv[2:]:
        k, v = a.split("=")
        cur = getattr(cfg, k)
        setattr(cfg, k, type(cur)(int(v)) if isinstance(cur, (bool, int)) else v.replace("+", " "))
    open(path, "w").write(build())
```

```python
import sys
KNAME = "recurrent_scan__sliding_block_cached__dense_activation_squared_relu__decode_kernel"

cfg_dbgsel = {6: [(0,0,1),(0,1,0),(1,2,1),(1,3,0),(2,4,0),(4,5,1),(4,6,0),(5,7,0)], 7: [(4,8,0),(5,9,0),(6,10,0)], 8: [(5,11,0),(6,12,1),(6,13,0),(7,14,0)]}
class Cfg:
    early = False
    ampw = -1
    ampk = 0
    ampg = -1
    dbg = False
    diag = False
    lw = 5
    lw2 = 5
    win = 20
    qlead = 7
    woe = 0
    lprio = 3
    bpos = 0
    pps = 0
    trace = 0
    hack4 = 0
    slpc = 0
    vlf = 0
    cprio = 1
    touch = ''
    clean = 0
    epst = ''
    outst = ''
    nprio = 1
    late_wo = 1
    pp2 = 1
    pp3 = 1
    gap3 = 0
    epf = 1
    dirty = 0
    h3gate = 2
    h3slp = 0
    h3loop = 0
    o2loop = 0
    mark = 0
    ntmo = 4
    skip = ''
    only = 0
    pfi = 28
    slp = 0
    win2 = 20
    w2at = 4
    slead = 8
    flead = 10
    hgate = 15
    ldA = 'sc1'
    pf = 1
    first = 'sc1'
    ntK = "nt"; ntW = "nt"
    rotmul = 5
cfg = Cfg()

L_K, L_V, L_WO = 0, 65536, 131072
SCR = 147456
L_QS = SCR
L_PB = SCR + 1152
L_SB = L_PB + 2048
L_WT = L_SB + 128
L_OB = L_WT + 512
L_ACTA = L_OB + 256
L_ACTB = L_ACTA + 576
L_FL = L_ACTB + 576
L_LAND = L_FL + 64
LDS_TOTAL = L_LAND + 16 + 256
F_Q, F_K, F_P, F_V, F_T, F_WO, F_W, F_O = [4*k for k in range(8)]
W_ST, W_QP, W_HP, W_OP, B_OFF, W_SP, W_FP = 0x8000, 0x10000, 0x30000, 0x40000, 0xC0000, 0x180000, 0x1C0000
WS_BYTES = 0x200000
SPIN_CAP = 1000002
LOG2E = 0x3fb8aa3b
SCALE = 0x3db504f3

sWAVE, sG, sI, sNON = 30, 31, 32, 33
sT0, sT1, sT2, sT3 = 34, 33, 40, 79
TMASK, VMASK, TB = 0x7ff, 0xfffff800, 11
SRD_WS = 36
sSLOT = 41
sRS = 42
sCAP = 43
sVB, sOFF, sBOFF = 71, 72, 73
sKEND = 70
O_LAND = 64
STAMP0 = 80

out = []
def e(s):
    for ln in s.strip("\n").split("\n"):
        out.append("    " + ln.strip() if not ln.strip().endswith(":") else ln.strip())

def estamp(k):
    if cfg.diag and cfg.early:
        e(f"s_memrealtime s[{STAMP0+2*k}:{STAMP0+2*k+1}]")
def stamp(k):
    if cfg.diag and (not cfg.early or k == 0 or k >= 6):
        e(f"s_memrealtime s[{STAMP0+2*k}:{STAMP0+2*k+1}]")

def stamps_out(n):
    if not cfg.diag: return
    if cfg.ampw >= 0:
        L = lbl("L_amp"); Ls = lbl("L_amps")
        if cfg.ampk < n:
            e(f"""
            s_waitcnt lgkmcnt(0)
            s_cmp_eq_u32 s{sWAVE}, {cfg.ampw}
            s_cbranch_scc0 {Ls}
            {f's_cmp_eq_u32 s{sG}, {cfg.ampg}; s_cbranch_scc0 {Ls}'.replace('; ', chr(10)) if cfg.ampg >= 0 else ''}
            s_sub_u32 s60, s{STAMP0+2*cfg.ampk}, s{STAMP0}
            s_min_u32 s60, s60, 20000
            s_mul_i32 s60, s60, 10
            s_memrealtime s[62:63]
            s_waitcnt lgkmcnt(0)
            {L}:
            s_memrealtime s[68:69]
            s_waitcnt lgkmcnt(0)
            s_sub_u32 s61, s68, s62
            s_cmp_lt_u32 s61, s60
            s_cbranch_scc1 {L}
            {Ls}:
            """)
        return
    if cfg.dbg:
        sel = cfg_dbgsel[n] if n in cfg_dbgsel else []
        e("s_waitcnt lgkmcnt(0)\ns_mov_b64 exec, 1\nv_mov_b32 v1, 0")
        if n == 8: e(f"s_cmp_eq_u32 s{sWAVE}, 2\ns_cbranch_scc0 L_dbgskip{len(out)}"); lab = f"L_dbgskip{len(out)-2}"
        for (k, slot, mn) in sel:
            e(f"v_mov_b32 v4, s{STAMP0+2*k}")
            if mn: e("v_not_b32 v4, v4")
            e(f"global_atomic_umax v1, v4, s[26:27] offset:{4*slot}\ns_nop 1")
        if n == 8: e(f"{lab}:")
        e("s_waitcnt vmcnt(0)")
        return
    L = lbl("L_dly")
    e(f"""
    s_waitcnt lgkmcnt(0)
    s_add_u32 s61, s{STAMP0}, 1600
    {L}:
    s_sleep 8
    s_memrealtime s[68:69]
    s_waitcnt lgkmcnt(0)
    s_cmp_lt_u32 s68, s61
    s_cbranch_scc1 {L}
    s_lshl_b32 s60, s2, 4
    s_add_u32 s60, s60, s{sWAVE}
    s_lshl_b32 s60, s60, 6
    s_add_u32 s68, s28, s60
    s_addc_u32 s69, s29, 0
    s_add_u32 s68, s68, 0x10000000
    s_addc_u32 s69, s69, 0
    s_mov_b64 exec, 1
    v_mov_b32 v1, 0
    """)
    for k in range(8):
        if k < n:
            e(f"v_mov_b32 v4, s{STAMP0+2*k}\nv_mov_b32 v5, s{STAMP0+2*k+1}")
        else:
            e(f"v_mov_b32 v4, s{STAMP0}\nv_mov_b32 v5, s{STAMP0+1}")
        e(f"global_store_dwordx2 v1, v[4:5], s[68:69] offset:{8*k}\ns_nop 1")
    e("s_waitcnt vmcnt(0)")

lblc = [0]
def lbl(p="L"):
    lblc[0] += 1
    return f"{p}_{lblc[0]}"

def flag_set(vfl, off, vval):
    e(f"s_mov_b64 exec, 1\nds_write_b32 v{vfl}, v{vval} offset:{off}\ns_mov_b64 exec, -1")
def flag_add(vfl, off, vone):
    e(f"s_mov_b64 exec, 1\nds_add_u32 v{vfl}, v{vone} offset:{off}\ns_mov_b64 exec, -1")
def spin_ge(vfl, off, target, vtmp, extra="", slp=0):
    L = lbl("L_sp")
    e(f"""{L}:
    {f's_sleep {slp}' if slp else ''}
    ds_read_b32 v{vtmp}, v{vfl} offset:{off}
    {extra}
    s_waitcnt lgkmcnt(0)
    v_cmp_le_u32 vcc, {target}, v{vtmp}
    s_cbranch_vccz {L}""")

def spin_land(sreg, vtmp, extra="", slp=0):
    L = lbl("L_sl")
    e(f"""{L}:
    {f's_sleep {slp}' if slp else ''}
    ds_read_b128 v[160:163], v1 offset:{O_LAND}
    {extra}
    s_waitcnt lgkmcnt(0)
    v_min3_i32 v160, v160, v161, v162
    v_min_i32 v160, v160, v163
    v_cmp_le_i32 vcc, s{sreg}, v160
    s_cbranch_vccz {L}""")

def get_loc(vtmp, slp=None):
    spin_ge(1, F_Q, 1, vtmp, slp=cfg.slp if slp is None else slp)
    e(f"v_readfirstlane_b32 s{sOFF}, v{vtmp}\ns_nop 3\ns_and_b32 s{sOFF}, s{sOFF}, -2")

def tag_check(regs, acc, first):
    T = [sT0, sT1, sT2, sT3]
    for k in range(4):
        if first and k == 0:
            e(f"v_xor_b32 v{acc}, s{T[0]}, v{regs}")
        else:
            e(f"v_bitop3_b32 v{acc}, v{regs+k}, s{T[k]}, v{acc} bitop3:0xbe")
def tag_branch(acc, Lretry, toggle=False, masked=False, slp=0):
    Ld = lbl("L_ok")
    e(f"""
    v_and_b32 v{acc}, v4, v{acc}
    v_cmp_ne_u32 vcc, 0, v{acc}
    s_cbranch_vccz {Ld}""")
    if masked: e("s_mov_b64 exec, vcc")
    if slp: e(f"s_sleep {slp}")
    if toggle:
        e(f"""
        s_and_b32 s{sOFF}, s{sCAP}, 3
        s_cselect_b32 s{sOFF}, 0, s{sBOFF}""")
    e(f"""
    s_sub_u32 s{sCAP}, s{sCAP}, 1
    s_cbranch_scc0 {Lretry}
    s_mov_b32 s{sCAP}, 0
    {Ld}:""")
    if masked: e("s_mov_b64 exec, -1")
def tag_insert(regs, vff):
    T = [sT0, sT1, sT2, sT3]
    for k in range(4):
        e(f"v_bfi_b32 v{regs+k}, v{vff}, s{T[k]}, v{regs+k}")

def nonce_from_epoch():
    e(f"""
    s_add_u32 s34, s34, 0x01401801
    s_addc_u32 s35, s35, 14
    s_lshr_b32 s33, s34, 11
    s_lshr_b64 s[46:47], s[34:35], 22
    s_mov_b32 s40, s46
    s_lshr_b32 s79, s35, 1
    """)

def srd(r, lo, hi, nbytes):
    pass

def reduce4_rows(x, t):
    e(f"""
    s_nop 1
    v_permlane32_swap_b32 v{x}, v{x+1}
    v_permlane32_swap_b32 v{x+2}, v{x+3}
    s_nop 0
    v_add_f32 v{x}, v{x}, v{x+1}
    v_add_f32 v{x+2}, v{x+2}, v{x+3}
    s_nop 1
    v_permlane16_swap_b32 v{x}, v{x+2}
    s_nop 0
    v_add_f32 v{x}, v{x}, v{x+2}
    """)
def dpp_add(x, rots):
    for r in rots:
        e(f"s_nop 1\nv_add_f32_dpp v{x}, v{x}, v{x} row_ror:{r} row_mask:0xf bank_mask:0xf")
def dpp_max(x, rots):
    for r in rots:
        e(f"s_nop 1\nv_max_f32_dpp v{x}, v{x}, v{x} row_ror:{r} row_mask:0xf bank_mask:0xf")
def rnd_bf16(x):
    e(f"v_cvt_pk_bf16_f32 v{x}, v{x}, v{x}\nv_and_b32 v{x}, 0xffff0000, v{x}")

def build():
    out.clear()
    stamp(0)
    nt = cfg.ntK
    W = cfg.lw; W2 = cfg.lw2
    e(f"""
    s_load_dwordx16 s[4:19], s[0:1], 0
    s_load_dwordx8 s[20:27], s[0:1], 64
    s_load_dwordx2 s[28:29], s[0:1], 96
    v_readfirstlane_b32 s{sWAVE}, v0
    s_cmpk_ge_u32 s2, 0x100
    s_cbranch_scc1 L_end
    v_and_b32 v0, 63, v0
    s_and_b32 s{sG}, s2, 7
    s_lshr_b32 s{sI}, s2, 3
    s_cmpk_ge_u32 s{sWAVE}, 0x100
    s_cbranch_scc1 L_notloader
    v_lshrrev_b32 v12, 3, v0
    s_lshl_b32 s64, s{sWAVE}, 4
    {"s_getpc_b64 s[48:49]; v_lshl_add_u32 v13, v12, 7, s64; global_load_dword v166, v13, s[48:49]".replace("; ", chr(10)) if cfg.epf else ""}
    v_and_b32 v13, 7, v0
    v_and_b32 v14, 2, v12
    v_xor_b32 v13, v13, v14
    v_lshlrev_b32 v13, 4, v13
    s_and_b32 s63, s{sWAVE}, 64
    v_xor_b32 v13, s63, v13
    v_lshl_add_u32 v10, v12, 13, v13
    s_lshr_b32 s45, s2, 6
    s_lshl_b32 s45, s45, 20
    s_and_b32 s46, s{sI}, 7
    s_lshl3_add_u32 s46, s{sG}, s46
    s_lshl_b32 s46, s46, 7
    s_add_u32 s45, s45, s46
    s_mov_b32 s58, {127*8192+128}
    s_mov_b32 s59, 0x20000
    s_lshl4_add_u32 m0, s{sWAVE}, {L_WO}
    s_lshl_b32 s47, s{sWAVE}, 10
    s_waitcnt lgkmcnt(0)
    s_add_u32 s56, s10, s45
    s_addc_u32 s57, s11, 0
    {'s_memrealtime s[82:83]' if cfg.early else ''}
    L_ldA:
    buffer_load_dwordx4 v10, s[56:59], s47 offen {cfg.ntW} lds
    s_addk_i32 m0, 0x1000
    s_add_u32 s47, s47, 0x40000
    s_bitcmp0_b32 s47, 20
    s_cbranch_scc1 L_ldA
    {'s_memrealtime s[84:85]' if cfg.early else ''}
    s_branch L_ld2
    .p2align 8
    """)
    e(f"""L_notloader:
    v_mov_b32 v1, {L_FL}
    v_mov_b32 v5, 0
    v_lshl_add_u32 v6, v0, 2, v1
    ds_write_b32 v6, v5
    s_lshr_b32 s{sWAVE}, s{sWAVE}, 6
    """)
    if cfg.pf:
        e(f"""
        s_cmp_eq_u32 s{sWAVE}, 9
        s_cbranch_scc0 L_nopf
        s_getpc_b64 s[46:47]
        L_pc:
        s_mul_i32 s45, s{sI}, {2 if cfg.epf else 3}
        {'s_add_u32 s45, s45, 30' if cfg.epf else ''}
        v_min_u32 v5, {1 if cfg.epf else 2}, v0
        v_add_u32 v5, s45, v5
        v_lshlrev_b32 v5, 7, v5
        v_min_u32 v5, L_codeend-L_pc-4, v5
        global_load_dword v166, v5, s[46:47]
        L_nopf:""")
    e(f"""
    v_lshlrev_b32 v5, 5, v0
    s_cmp_ge_u32 s{sWAVE}, 6
    s_waitcnt lgkmcnt(0)
    s_load_dwordx2 s[34:35], s[28:29], 0
    s_cbranch_scc1 L_nox
    global_load_dwordx4 v[8:11], v5, s[4:5]
    global_load_dwordx4 v[12:15], v5, s[4:5] offset:16
    L_nox:
    s_barrier
    s_branch L_nl2
    """)
    def flagw():
        e("ds_write_b32 v16, v15\nv_add_u32 v15, 1, v15")
        if cfg.trace:
            e("s_memrealtime s[66:67]\ns_waitcnt lgkmcnt(0)\ns_mov_b64 s[68:69], exec\ns_lshl_b64 exec, 1, s70\nv_mov_b32 v20, s66\ns_mov_b64 exec, s[68:69]\ns_add_u32 s70, s70, 1")
    e(f"""L_ld2:
    s_mul_i32 s44, s2, {cfg.rotmul}
    s_bfe_u32 s{sRS}, s44, 0x20002
    v_and_b32 v2, 15, v0
    v_lshrrev_b32 v3, 4, v0
    s_add_u32 s62, s{sRS}, 3
    s_and_b32 s62, s62, 3
    s_add_u32 s62, s62, 4
    s_lshl_b32 s62, s62, 14
    v_mov_b32 v1, {L_FL}
    s_lshr_b32 s45, s{sWAVE}, 4
    s_add_u32 s45, s45, {L_LAND}
    v_lshl_add_u32 v16, v0, 2, v1
    v_add_u32 v16, {O_LAND+16}, v16
    v_writelane_b32 v16, s45, 0
    v_mov_b32 v15, {5-W}
    {"s_mov_b32 s70, 0; v_mov_b32 v20, 0".replace("; ", chr(10)) if cfg.trace else ""}
    s_setprio {cfg.lprio}
    s_barrier
    """)
    estamp(3)
    if cfg.early:
        e("s_waitcnt vmcnt(3)"); estamp(4); e("s_waitcnt vmcnt(0)"); estamp(5)
    stamp(1)
    def Bblock():
        e(f"""
        s_cmp_lt_u32 s{sG}, 7
        s_cbranch_scc0 L_ld_noB
        s_add_u32 m0, s62, s64
        s_and_b32 s65, s{sI}, 15
        s_lshl4_add_u32 s65, s{sG}, s65
        s_cmp_lt_u32 s{sI}, 16
        s_cbranch_scc0 L_ld_w2
        s_and_b32 s45, s65, 3
        s_mul_i32 s45, s45, {128*3584}
        s_lshr_b32 s46, s65, 2
        s_lshl_b32 s46, s46, 7
        s_add_u32 s45, s45, s46
        s_add_u32 s56, s16, s45
        s_addc_u32 s57, s17, 0
        v_mul_u32_u24 v10, 3584, v12
        v_add_u32 v10, v10, v13
        s_mul_i32 s47, s64, 28
        s_mov_b32 s46, {32*3584}
        s_branch L_ld_B
        L_ld_w2:
        s_lshr_b32 s45, s65, 3
        s_lshl_b32 s45, s45, 17
        s_and_b32 s46, s65, 7
        s_lshl_b32 s46, s46, 7
        s_add_u32 s45, s45, s46
        s_add_u32 s56, s20, s45
        s_addc_u32 s57, s21, 0
        v_lshl_add_u32 v10, v12, 10, v13
        s_lshl_b32 s47, s64, 3
        s_mov_b32 s46, 0x8000
        L_ld_B:
        s_sub_u32 s58, {512*1792*2}, s45
        s_mov_b32 s60, 0
        L_ldB:
        s_waitcnt vmcnt({W-1})
        buffer_load_dwordx4 v10, s[56:59], s47 offen {cfg.ntW} lds
        s_addk_i32 m0, 0x1000
        s_add_u32 s47, s47, s46""")
        flagw()
        e(f"""
        s_add_u32 s60, s60, 1
        s_cmp_lt_u32 s60, 4
        s_cbranch_scc1 L_ldB
        L_ld_noB:
        """)
    def Kblock():
        e(f"""
        v_lshlrev_b32 v14, 8, v3
        v_xor_b32 v17, v3, v2
        v_lshl_add_u32 v4, v17, 4, v14
        v_xor_b32 v4, s{sWAVE}, v4
        s_lshr_b32 s45, s{sI}, 4
        s_lshl_b32 s45, s45, 26
        s_lshl_b32 s46, s{sG}, 23
        s_add_u32 s45, s45, s46
        s_and_b32 s46, s{sI}, 15
        s_lshl_b32 s46, s46, 16
        s_add_u32 s45, s45, s46
        s_add_u32 s45, s45, {28672*256}
        s_mov_b32 s50, 0x10000
        s_mov_b32 s51, 0x20000
        s_add_u32 s48, s6, s45
        s_addc_u32 s49, s7, 0
        s_and_b32 s44, s44, 15
        s_lshl_b32 s47, s44, 12
        s_add_u32 s47, s47, s64
        s_mov_b32 s60, 0
        L_ldK:
        s_mov_b32 m0, s47
        s_add_u32 s60, s60, 1
        s_waitcnt vmcnt({W-1})
        buffer_load_dwordx4 v4, s[48:51], s47 offen {nt} lds""")
        flagw()
        e(f"""
        s_addk_i32 s47, 0x1000
        s_and_b32 s47, s47, 0xffff
        s_cmp_lt_u32 s60, 16
        s_cbranch_scc1 L_ldK
        """)
    if cfg.bpos:
        Kblock(); e("s_mov_b32 s66, s45"); Bblock(); e("s_mov_b32 s45, s66")
    else:
        Bblock(); Kblock()
    stamp(2)
    e(f"""
    v_lshlrev_b32 v17, 1, v3
    v_xor_b32 v17, v17, v2
    v_lshl_add_u32 v8, v17, 4, v14
    s_lshl_b32 s63, s63, 1
    v_xor_b32 v8, s63, v8
    v_lshlrev_b32 v14, 10, v3
    v_lshl_add_u32 v10, v17, 4, v14
    s_and_b32 s63, s{sWAVE}, 0x80
    v_xor_b32 v10, s63, v10
    s_add_u32 s52, s8, s45
    s_addc_u32 s53, s9, 0
    s_mov_b32 s54, 0x10000
    s_mov_b32 s55, 0x20000
    s_mov_b32 s60, 0
    s_and_b32 s61, s44, 3
    """)
    def vloop(name, end, win, noflag=False):
        e(f"""{name}:
        s_lshr_b32 s47, s60, 2
        s_add_u32 s47, s47, s{sRS}
        s_and_b32 s47, s47, 3
        s_add_u32 s62, s61, s60
        s_and_b32 s62, s62, 3
        s_lshl2_add_u32 s47, s47, s62
        s_lshl_b32 s47, s47, 12
        s_add_u32 s47, s47, s64
        s_add_u32 m0, s47, {L_V}
        s_add_u32 s60, s60, 1
        s_waitcnt vmcnt({win-1})
        buffer_load_dwordx4 v8, s[52:55], s47 offen {nt} lds""")
        if not noflag: flagw()
        e(f"""
        s_cmp_lt_u32 s60, {end}
        s_cbranch_scc1 {name}
        """)
    def woloop(name, g0, g1):
        if g0 == g1: return
        e(f"""
        s_add_u32 m0, s64, {L_WO + 4096*g0}
        s_lshl_b32 s47, s64, 2
        s_add_u32 s47, s47, {0x20000*g0}
        {name}:
        s_waitcnt vmcnt({W2-1})
        buffer_load_dwordx4 v10, s[56:59], s47 offen {cfg.ntW} lds
        s_addk_i32 m0, 0x1000
        s_add_u32 s47, s47, 0x20000""")
        flagw()
        e(f"""
        s_cmp_lt_u32 s47, {0x20000*g1}
        s_cbranch_scc1 {name}""")
    if W2 > W:
        assert cfg.w2at + (W2 - W) <= 12
        if cfg.w2at > 0: vloop("L_ldV0", cfg.w2at, W)
        vloop("L_ldV0b", cfg.w2at + W2 - W, W2, noflag=True)
        if cfg.w2at + W2 - W < 12: vloop("L_ldV1", 12, W2)
    elif W2 < W:
        vloop("L_ldV0", cfg.w2at, W)
        for k in range(W - W2):
            e(f"s_waitcnt vmcnt({W-1-k})")
            flagw()
        if cfg.w2at < 12: vloop("L_ldV1", 12, W2)
    else:
        vloop("L_ldV1", 12, W)
    e(f"""
    s_lshl_b32 s45, s{sG}, 19
    s_lshr_b32 s46, s{sI}, 2
    s_lshl_b32 s46, s46, 14
    s_add_u32 s45, s45, s46
    s_and_b32 s46, s{sI}, 3
    s_lshl_b32 s46, s46, 8
    s_add_u32 s45, s45, s46
    s_add_u32 s56, s12, s45
    s_addc_u32 s57, s13, 0
    s_mov_b32 s58, {(3*128+15)*1024+256}
    """)
    spin_ge(1, F_T, 2, 17)
    woloop("L_ldWO1", 0, cfg.woe)
    vloop("L_ldV2", 16, W2)
    woloop("L_ldWO2", cfg.woe, 4)
    stamp(3)
    if cfg.vlf:
        assert W2 - 1 >= 4 - cfg.woe
        e("v_mov_b32 v18, 1\ns_mov_b64 exec, 1")
    for k in range(W2-1, -1, -1):
        e(f"s_waitcnt vmcnt({k})")
        if k == 4 - cfg.woe and cfg.vlf: e(f"ds_add_u32 v1, v18 offset:{F_WO}")
        flagw()
        if k == 4 - cfg.woe: stamp(4)
    stamp(5)
    if cfg.trace:
        e(f"""s_mov_b64 exec, -1
        s_lshl_b32 s60, s2, 10
        s_lshl_b32 s61, s{sWAVE}, 2
        s_add_u32 s60, s60, s61
        s_add_u32 s68, s28, s60
        s_addc_u32 s69, s29, 0
        s_add_u32 s68, s68, 0x18000000
        s_addc_u32 s69, s69, 0
        v_lshlrev_b32 v21, 2, v0
        global_store_dword v21, v20, s[68:69]""")
    if cfg.diag: e(f"s_lshr_b32 s{sWAVE}, s{sWAVE}, 6")
    stamps_out(6)
    e("s_endpgm")

    e(f"""L_nl2:
    {f"s_mov_b64 exec, 1; v_mov_b32 v5, 2; ds_write_b32 v1, v5 offset:{F_T}; s_waitcnt vmcnt(0) lgkmcnt(0); s_endpgm".replace("; ", chr(10)) if cfg.only == 1 else ""}
    s_setprio {cfg.nprio}
    v_and_b32 v2, 15, v0
    v_lshrrev_b32 v3, 4, v0
    s_mul_i32 s44, s2, {cfg.rotmul}
    s_bfe_u32 s{sRS}, s44, 0x20002
    s_lshl_b32 s{sSLOT}, s{sG}, 5
    s_add_u32 s{sSLOT}, s{sSLOT}, s{sI}
    s_mov_b32 s{sCAP}, {SPIN_CAP}
    s_cmp_lt_u32 s{sG}, 7
    s_cselect_b32 s{sVB}, 24, 20
    s_mov_b32 s{sKEND}, {'20' if cfg.bpos else f's{sVB}'}
    v_mov_b32 v4, {TMASK}
    s_mov_b32 s{SRD_WS}, s28
    s_mov_b32 s{SRD_WS+1}, s29
    s_mov_b32 s{SRD_WS+2}, {WS_BYTES}
    s_mov_b32 s{SRD_WS+3}, 0x20000
    s_mov_b32 s{sOFF}, 0
    s_mov_b32 s{sBOFF}, {B_OFF}
    s_cmp_ge_u32 s{sWAVE}, 6
    s_cbranch_scc1 L_compute
    """)
    e(f"""
    s_cmp_eq_u32 s{sWAVE}, 4
    s_cbranch_scc0 L_roleB
    s_mov_b32 s44, 0
    s_lshr_b32 s53, s{sI}, 3
    s_lshl_b32 s52, s{sSLOT}, 9
    s_add_u32 s52, s52, {W_QP}
    s_mov_b32 s54, {L_WO}
    s_mov_b32 s55, {L_ACTA}
    s_mov_b32 s45, 4
    s_branch L_tilecommon
    L_roleB:
    s_add_u32 s54, s{sRS}, 3
    s_and_b32 s54, s54, 3
    s_add_u32 s54, s54, 4
    s_lshl_b32 s54, s54, 14
    s_mov_b32 s55, {L_ACTB}
    s_mov_b32 s45, {24 if cfg.bpos else 8}
    s_and_b32 s52, s{sI}, 15
    s_lshl4_add_u32 s52, s{sG}, s52
    s_lshr_b32 s44, s{sI}, 4
    s_and_b32 s53, s52, 3
    s_lshr_b32 s46, s52, 3
    s_lshl_b32 s52, s52, 9
    s_cmp_eq_u32 s44, 0
    s_cselect_b32 s53, s53, s46
    s_mov_b32 s46, {W_FP}
    s_cselect_b32 s46, {W_HP}, s46
    s_add_u32 s52, s52, s46
    s_cmp_eq_u32 s{sG}, 7
    s_cselect_b32 s44, 2, s44
    L_tilecommon:
    """)
    estamp(2)
    stamp(1)
    e(f"""
    v_lshrrev_b32 v5, 2, v2
    v_lshl_add_u32 v5, v3, 3, v5
    v_lshlrev_b32 v5, 7, v5
    v_and_b32 v6, 3, v2
    v_lshl_add_u32 v5, v6, 3, v5
    v_add_u32 v5, s54, v5
    v_lshrrev_b32 v6, 3, v2
    v_and_b32 v7, 1, v3
    v_lshl_or_b32 v6, v7, 1, v6
    """)
    for u in range(4):
        e(f"v_xor_b32 v7, {u}, v6\nv_lshl_add_u32 v{16+u}, v7, 5, v5")
    e(f"""
    v_and_b32 v5, 1, v0
    v_mul_u32_u24 v5, 288, v5
    v_lshl_add_u32 v5, v3, 4, v5
    v_add_u32 v20, s55, v5
    v_mov_b32 v21, 1
    v_mov_b32 v60, 0
    s_waitcnt lgkmcnt(0)
    """)
    nonce_from_epoch()
    e(f"""
    s_cmp_eq_u32 s44, 0
    s_waitcnt vmcnt(0)
    s_cbranch_scc0 L_noLN
    """)
    estamp(4)
    for k in range(8):
        e(f"v_lshlrev_b32 v{24+2*k}, 16, v{8+k}\nv_and_b32 v{25+2*k}, 0xffff0000, v{8+k}")
    e("v_pk_add_f32 v[40:41], v[24:25], v[26:27]")
    for k in range(2, 8):
        e(f"v_pk_add_f32 v[40:41], v[40:41], v[{24+2*k}:{25+2*k}]")
    e("v_add_f32 v40, v40, v41")
    dpp_add(40, (8, 4, 2, 1))
    e("v_mov_b32 v41, v40\ns_nop 1\nv_permlane16_swap_b32 v40, v41\ns_nop 0\nv_add_f32 v40, v40, v41")
    e("v_mul_f32 v40, 0xbb000000, v40\nv_mov_b32 v41, v40")
    e("v_pk_add_f32 v[42:43], v[24:25], v[40:41]\nv_pk_mul_f32 v[44:45], v[42:43], v[42:43]")
    for k in range(1, 8):
        e(f"v_pk_add_f32 v[42:43], v[{24+2*k}:{25+2*k}], v[40:41]\nv_pk_fma_f32 v[44:45], v[42:43], v[42:43], v[44:45]")
    e("v_add_f32 v44, v44, v45")
    dpp_add(44, (8, 4, 2, 1))
    e("v_mov_b32 v45, v44\ns_nop 1\nv_permlane16_swap_b32 v44, v45\ns_nop 0\nv_add_f32 v44, v44, v45")
    e("v_mul_f32 v44, 0x3b000000, v44")
    rnd_bf16(44)
    e("v_add_f32 v44, 0x3727c5ac, v44")
    rnd_bf16(44)
    e("v_sqrt_f32 v44, v44\ns_nop 0")
    rnd_bf16(44)
    e("v_rcp_f32 v44, v44")
    rnd_bf16(40)
    e("v_mov_b32 v41, v40\nv_mov_b32 v45, v44")
    for k in range(8):
        e(f"v_pk_add_f32 v[42:43], v[{24+2*k}:{25+2*k}], v[40:41]")
        e(f"v_cvt_pk_bf16_f32 v42, v42, v43\nv_and_b32 v43, 0xffff0000, v42\nv_lshlrev_b32 v42, 16, v42")
        e(f"v_pk_mul_f32 v[42:43], v[42:43], v[44:45]\nv_cvt_pk_bf16_f32 v{8+k}, v42, v43")
    e(f"""
    v_bfe_u32 v5, v0, 3, 2
    v_lshrrev_b32 v6, 5, v0
    v_mul_u32_u24 v6, 288, v6
    v_and_b32 v7, 7, v0
    v_lshl_add_u32 v6, v7, 5, v6
    v_add_u32 v6, s55, v6
    v_cmp_eq_u32 vcc, s53, v5
    s_and_saveexec_b64 s[56:57], vcc
    ds_write_b128 v6, v[8:11]
    ds_write_b128 v6, v[12:15] offset:16
    s_mov_b64 exec, -1
    L_noLN:
    """)
    stamp(2)
    e(f"""
    s_cmp_eq_u32 s44, 2
    s_cbranch_scc1 L_notile
    """)
    spin_land(45, 5, slp=cfg.slp)
    estamp(5)
    for u in range(4):
        for t in range(4):
            r = 64 + 16*u + 4*t
            e(f"ds_read_b64_tr_b16 v[{r}:{r+1}], v{16+u} offset:{t*4096}")
            e(f"ds_read_b64_tr_b16 v[{r+2}:{r+3}], v{16+u} offset:{t*4096+512}")
    e(f"""
    s_waitcnt lgkmcnt(0)
    L_notile:
    """)
    flag_add(1, F_T, 21)
    stamp(3)
    e(f"""
    s_cmp_eq_u32 s44, 1
    s_cbranch_scc0 L_noH
    """)
    e(f"""
    v_bfe_u32 v5, v0, 4, 1
    v_lshlrev_b32 v5, 11, v5
    v_lshrrev_b32 v6, 5, v0
    v_lshl_add_u32 v5, v6, 8, v5
    v_lshl_add_u32 v5, v2, 4, v5
    s_lshl_b32 s56, s53, 12
    s_add_u32 s56, s56, {W_HP}
    v_add_u32 v5, s56, v5
    v_and_b32 v7, 31, v0
    v_lshlrev_b32 v7, 3, v7
    s_lshl_b32 s56, s53, 8
    v_add_u32 v22, s56, v7
    global_load_dwordx2 v[22:23], v22, s[18:19]
    v_mul_u32_u24 v6, 288, v6
    v_add3_u32 v6, v6, v7, s55
    """)
    e(f"s_mov_b32 s45, {cfg.hgate}")
    spin_land(45, 7, slp=cfg.slp)
    e("L_hretry:")
    for k in range(4):
        e(f"buffer_load_dwordx4 v[{24+4*k}:{27+4*k}], v5, s[{SRD_WS}:{SRD_WS+3}], s{sOFF} offen offset:{512*k} sc1")
    e("s_waitcnt vmcnt(0)")
    for k in range(4): tag_check(24+4*k, 7, k == 0)
    e(f"""
    v_and_b32 v7, v4, v7
    v_cmp_ne_u32 vcc, 0, v7
    s_cbranch_vccz L_hok""")
    get_loc(7)
    e(f"""
    s_sub_u32 s{sCAP}, s{sCAP}, 1
    s_cbranch_scc0 L_hretry
    s_mov_b32 s{sCAP}, 0
    L_hok:""")
    for k in range(16): e(f"v_and_b32 v{24+k}, 0xfffff800, v{24+k}")
    e("""
    v_pk_add_f32 v[24:25], v[24:25], v[28:29]
    v_pk_add_f32 v[26:27], v[26:27], v[30:31]
    v_pk_add_f32 v[32:33], v[32:33], v[36:37]
    v_pk_add_f32 v[34:35], v[34:35], v[38:39]
    v_pk_add_f32 v[24:25], v[24:25], v[32:33]
    v_pk_add_f32 v[26:27], v[26:27], v[34:35]
    v_cvt_pk_bf16_f32 v24, v24, v25
    v_cvt_pk_bf16_f32 v26, v26, v27
    v_and_b32 v25, 0xffff0000, v24
    v_lshlrev_b32 v24, 16, v24
    v_and_b32 v27, 0xffff0000, v26
    v_lshlrev_b32 v26, 16, v26
    v_lshlrev_b32 v28, 16, v22
    v_and_b32 v29, 0xffff0000, v22
    v_lshlrev_b32 v30, 16, v23
    v_and_b32 v31, 0xffff0000, v23
    v_pk_add_f32 v[24:25], v[24:25], v[28:29]
    v_pk_add_f32 v[26:27], v[26:27], v[30:31]
    v_cvt_pk_bf16_f32 v24, v24, v25
    v_cvt_pk_bf16_f32 v26, v26, v27
    v_and_b32 v25, 0xffff0000, v24
    v_lshlrev_b32 v24, 16, v24
    v_and_b32 v27, 0xffff0000, v26
    v_lshlrev_b32 v26, 16, v26
    v_max_f32 v24, 0, v24
    v_max_f32 v25, 0, v25
    v_max_f32 v26, 0, v26
    v_max_f32 v27, 0, v27
    v_pk_mul_f32 v[24:25], v[24:25], v[24:25]
    v_pk_mul_f32 v[26:27], v[26:27], v[26:27]
    v_cvt_pk_bf16_f32 v24, v24, v25
    v_cvt_pk_bf16_f32 v25, v26, v27
    ds_write_b64 v6, v[24:25]
    L_noH:
    s_cmp_eq_u32 s44, 2
    s_cbranch_scc1 L_nopub
    """)
    e("s_waitcnt lgkmcnt(0)")
    for t in range(4):
        e(f"ds_read_b128 v[{24+4*t}:{27+4*t}], v20 offset:{64*t}")
    e(f"""
    s_cmp_eq_u32 s44, 0
    s_cselect_b32 s56, 8, 4
    s_cselect_b32 s57, 6, 5
    s_cselect_b32 s58, 4, 7
    v_and_b32 v5, 1, v0
    v_lshlrev_b32 v5, s56, v5
    v_bfe_u32 v6, v0, 1, 2
    v_lshl_add_u32 v5, v6, s57, v5
    v_lshl_add_u32 v5, v3, s58, v5
    v_add_u32 v60, s52, v5
    v_and_b32 v6, 2, v0
    v_cmp_ne_u32 s[56:57], 0, v6
    v_and_b32 v6, 4, v0
    v_cmp_ne_u32 s[58:59], 0, v6
    s_waitcnt lgkmcnt(0)
    """)
    for t in range(4):
        for u in range(4):
            r = 64 + 16*u + 4*t
            c = f"v[{40+4*u}:{43+4*u}]"
            e(f"v_mfma_f32_16x16x32_bf16 {c}, v[{r}:{r+3}], v[{24+4*t}:{27+4*t}], {c if t else 0}")
    e("s_nop 7")
    for k in range(4):
        e(f"v_cndmask_b32 v{40+k}, v{40+k}, v{44+k}, s[56:57]")
    for k in range(4):
        e(f"v_cndmask_b32 v{48+k}, v{48+k}, v{52+k}, s[56:57]")
    for k in range(4):
        e(f"v_cndmask_b32 v{56+k}, v{40+k}, v{48+k}, s[58:59]")
    for k in range(4): e(f"v_add_u32 v{56+k}, 0x400, v{56+k}")
    tag_insert(56, 4)
    e(f"""
    s_mov_b32 s74, 0x00ff00ff
    s_mov_b32 s75, 0x00ff00ff
    s_mov_b64 exec, s[74:75]
    s_cmp_eq_u32 s44, 0
    s_cbranch_scc0 L_pubB
    buffer_store_dwordx4 v[56:59], v60, s[{SRD_WS}:{SRD_WS+3}], 0 offen
    s_branch L_pubE
    L_pubB:
    buffer_store_dwordx4 v[56:59], v60, s[{SRD_WS}:{SRD_WS+3}], 0 offen sc1
    L_pubE:
    s_mov_b64 exec, -1
    L_nopub:
    """)
    stamp(4)
    e(f"""
    s_cmp_eq_u32 s{sWAVE}, 4
    s_cbranch_scc0 L_final
    """)
    e(f"""
    v_lshlrev_b32 v10, 9, v3
    v_lshl_add_u32 v10, v2, 4, v10
    s_lshl_b32 s56, s{sG}, 14
    s_lshr_b32 s57, s{sI}, 4
    s_lshl_b32 s57, s57, 8
    s_add_u32 s56, s56, s57
    s_add_u32 s56, s56, {W_QP}
    v_add_u32 v10, s56, v10
    v_add_u32 v11, 0x1000, v10
    v_add_u32 v12, 0x2000, v10
    v_add_u32 v13, 0x3000, v10
    v_lshrrev_b32 v8, 5, v0
    v_lshlrev_b32 v8, 5, v8
    v_lshl_add_u32 v8, v0, 3, v8
    v_add_u32 v8, {L_QS}, v8
    s_sub_u32 s45, s{sKEND}, {cfg.qlead}
    s_getreg_b32 s76, hwreg(HW_REG_XCC_ID, 0, 4)
    s_lshl_b32 s56, s76, 16
    v_mov_b32 v64, s56
    v_mov_b32 v65, 0
    v_mov_b32 v66, 0
    v_mov_b32 v67, 0
    s_lshl_b32 s56, s{sSLOT}, 7
    s_add_u32 s56, s56, {W_ST+64}
    v_mov_b32 v61, s56
    v_and_b32 v62, 31, v0
    v_lshlrev_b32 v62, 7, v62
    s_lshl_b32 s56, s{sG}, 12
    s_add_u32 s56, s56, {W_ST+64}
    v_add_u32 v62, s56, v62
    s_mov_b32 s77, 0
    s_mov_b32 s78, 0
    """)
    tag_insert(64, 4)
    e(f"""
    s_mov_b64 exec, 1
    buffer_store_dwordx4 v[64:67], v61, s[{SRD_WS}:{SRD_WS+3}], 0 offen
    s_mov_b64 exec, -1
    """)
    def pubB_q():
        L = lbl("L_pb")
        e(f"""
        s_cmp_eq_u32 s77, 0
        s_cbranch_scc0 {L}
        s_mov_b32 s77, 1
        s_mov_b64 exec, s[74:75]
        buffer_store_dwordx4 v[56:59], v60, s[{SRD_WS}:{SRD_WS+3}], s{sBOFF} offen sc1
        s_mov_b64 exec, 1
        buffer_store_dwordx4 v[64:67], v61, s[{SRD_WS}:{SRD_WS+3}], s{sBOFF} offen sc1
        s_mov_b64 exec, -1
        {L}:""")
    spin_land(45, 7, slp=cfg.slp)
    e("L_qretry:")
    for v in range(2):
        for k in range(4):
            r = 24 + 16*v + 4*k
            e(f"buffer_load_dwordx4 v[{r}:{r+3}], v{10+k}, s[{SRD_WS}:{SRD_WS+3}], s{sOFF} offen offset:{2048*v} {cfg.ldA}")
    e(f"buffer_load_dwordx4 v[68:71], v62, s[{SRD_WS}:{SRD_WS+3}], s{sOFF} offen {cfg.ldA}")
    e("s_waitcnt vmcnt(0)")
    for k in range(8): tag_check(24+4*k, 7, k == 0)
    tag_check(68, 7, False)
    e(f"""
    v_and_b32 v7, v4, v7
    v_cmp_ne_u32 vcc, 0, v7
    s_cbranch_vccz L_qok
    s_add_u32 s78, s78, 1
    s_cmp_lt_u32 s78, {cfg.ntmo}
    s_cbranch_scc1 L_qretry
    s_xor_b32 s{sOFF}, s{sOFF}, s{sBOFF}
    """)
    pubB_q()
    e(f"""
    s_sub_u32 s{sCAP}, s{sCAP}, 1
    s_cbranch_scc0 L_qretry
    s_mov_b32 s{sCAP}, 0
    L_qok:
    v_lshrrev_b32 v68, 16, v68
    v_cmp_ne_u32 vcc, s76, v68
    s_mov_b32 s{sOFF}, 0
    s_cbranch_vccz L_qloc
    s_mov_b32 s{sOFF}, s{sBOFF}
    """)
    pubB_q()
    e(f"""L_qloc:
    s_add_u32 s56, s{sOFF}, 1
    v_mov_b32 v9, s56
    """)
    for k in range(32): e(f"v_and_b32 v{24+k}, 0xfffff800, v{24+k}")
    for v in range(2):
        r = 24 + 16*v
        e(f"""
        v_pk_add_f32 v[{r}:{r+1}], v[{r}:{r+1}], v[{r+4}:{r+5}]
        v_pk_add_f32 v[{r+2}:{r+3}], v[{r+2}:{r+3}], v[{r+6}:{r+7}]
        v_pk_add_f32 v[{r+8}:{r+9}], v[{r+8}:{r+9}], v[{r+12}:{r+13}]
        v_pk_add_f32 v[{r+10}:{r+11}], v[{r+10}:{r+11}], v[{r+14}:{r+15}]
        v_pk_add_f32 v[{r}:{r+1}], v[{r}:{r+1}], v[{r+8}:{r+9}]
        v_pk_add_f32 v[{r+2}:{r+3}], v[{r+2}:{r+3}], v[{r+10}:{r+11}]
        v_cvt_pk_bf16_f32 v{r}, v{r}, v{r+1}
        v_cvt_pk_bf16_f32 v{r+1}, v{r+2}, v{r+3}
        ds_write_b64 v8, v[{r}:{r+1}] offset:{576*v}
        """)
    flag_set(1, F_Q, 9)
    stamp(5)
    e(f"""
    v_and_b32 v5, 31, v0
    v_lshrrev_b32 v6, 5, v0
    v_lshlrev_b32 v9, 4, v5
    v_lshl_add_u32 v9, v6, 2, v9
    v_add_u32 v9, {L_WT}, v9
    v_lshlrev_b32 v5, 7, v5
    v_lshl_add_u32 v5, v6, 4, v5
    s_lshl_b32 s56, s{sG}, 12
    s_add_u32 s56, s56, {W_ST}
    v_add_u32 v5, s56, v5
    """)
    if cfg.slead > 0:
        e(f"s_add_u32 s45, s{sVB}, {cfg.slead}")
        spin_land(45, 7, slp=cfg.slp)
    spin_ge(1, F_P, 4, 7, slp=cfg.slp)
    def lds_(r):
        e(f"""
        buffer_load_dwordx4 v[{r}:{r+3}], v5, s[{SRD_WS}:{SRD_WS+3}], s{sOFF} offen {cfg.ldA}
        buffer_load_dwordx4 v[{r+4}:{r+7}], v5, s[{SRD_WS}:{SRD_WS+3}], s{sOFF} offen offset:32 {cfg.ldA}""")
    if cfg.pps:
        def chks(r, L):
            tag_check(r, 7, True); tag_check(r+4, 7, False)
            e(f"v_and_b32 v7, v4, v7\nv_cmp_ne_u32 vcc, 0, v7\ns_cbranch_vccz {L}")
        lds_(32)
        e(f"s_add_u32 s45, s45, {cfg.pps}")
        spin_land(45, 7, slp=cfg.slp)
        lds_(40)
        e("s_mov_b64 s[62:63], -1\nL_sp2:\ns_waitcnt vmcnt(2)")
        chks(32, "L_sX")
        e("s_mov_b64 s[60:61], vcc\ns_mov_b64 exec, vcc")
        lds_(32)
        e("s_mov_b64 exec, s[62:63]\ns_waitcnt vmcnt(2)")
        chks(40, "L_sY")
        e("s_mov_b64 s[62:63], vcc\ns_mov_b64 exec, vcc")
        lds_(40)
        e(f"""
        s_mov_b64 exec, s[60:61]
        s_sub_u32 s{sCAP}, s{sCAP}, 1
        s_cbranch_scc0 L_sp2
        s_mov_b32 s{sCAP}, 0
        s_waitcnt vmcnt(0)
        L_sY:
        s_mov_b64 exec, -1""")
        for k in (0, 1, 4, 5): e(f"v_mov_b32 v{24+k}, v{40+k}")
        e("s_branch L_sj\nL_sX:\ns_mov_b64 exec, -1")
        for k in (0, 1, 4, 5): e(f"v_mov_b32 v{24+k}, v{32+k}")
        e("L_sj:")
    else:
        e("L_sretry:")
        lds_(24)
        e("s_waitcnt vmcnt(0)")
        tag_check(24, 7, True); tag_check(28, 7, False)
        tag_branch(7, "L_sretry", masked=True)
    for r in (24, 28):
        e(f"""
        v_and_b32 v{r}, 0xfffff800, v{r}
        v_and_b32 v{r+1}, 0xfffff800, v{r+1}
        v_mov_b32 v{r+2}, v{r}
        """)
        dpp_max(r+2, (8, 4, 2, 1))
        e(f"""
        v_sub_f32 v{r}, v{r}, v{r+2}
        v_mul_f32 v{r}, {LOG2E}, v{r}
        v_exp_f32 v{r}, v{r}
        s_nop 0
        v_mul_f32 v{r+1}, v{r}, v{r+1}
        """)
        dpp_add(r+1, (8, 4, 2, 1))
        e(f"""
        v_rcp_f32 v{r+1}, v{r+1}
        s_nop 0
        v_mul_f32 v{r}, v{r}, v{r+1}
        ds_write_b32 v9, v{r} offset:{2*(r-24)}
        """)
    flag_set(1, F_W, 21)
    if cfg.dirty:
        e(f"s_mov_b32 s{SRD_WS+2}, 0x2000000\ns_mul_i32 s56, s2, {1024*cfg.dirty}\ns_add_u32 s56, s56, 0x400000\nv_lshlrev_b32 v5, 4, v0")
        for k in range(cfg.dirty):
            e(f"buffer_store_dwordx4 v[24:27], v5, s[{SRD_WS}:{SRD_WS+3}], s56 offen\ns_add_u32 s56, s56, 1024")
    stamp(6)
    if cfg.diag: e(f"s_waitcnt lgkmcnt(0)\ns_sub_u32 s94, {SPIN_CAP}, s{sCAP}\ns_lshl_b32 s94, s94, 8\ns_add_u32 s94, s94, s78\ns_mov_b32 s95, 0")
    stamps_out(8)
    e("s_endpgm")

    e(f"""L_final:
    s_cmp_eq_u32 s44, 0
    s_cbranch_scc0 L_fin0
    """)
    get_loc(7)
    e(f"""
    s_cmp_eq_u32 s{sOFF}, 0
    s_cbranch_scc1 L_fin0
    s_mov_b64 exec, s[74:75]
    buffer_store_dwordx4 v[56:59], v60, s[{SRD_WS}:{SRD_WS+3}], s{sBOFF} offen sc1
    s_mov_b64 exec, -1
    L_fin0:
    s_lshr_b32 s56, s{sI}, 3          ; ctile
    s_and_b32 s57, s{sI}, 1           ; b
    s_bfe_u32 s58, s{sI}, 0x10001     ; e
    s_bfe_u32 s59, s{sI}, 0x10002
    s_and_b32 s60, s{sG}, 1
    s_lshl1_add_u32 s59, s60, s59     ; G
    s_lshr_b32 s60, s{sG}, 1          ; w
    s_lshl2_add_u32 s61, s56, s60     ; 4*ctile + w
    s_lshl1_add_u32 s62, s61, s58
    s_lshl2_add_u32 s62, s62, s59     ; nq = n0/4
    v_and_b32 v5, 1, v3
    v_lshlrev_b32 v5, 1, v5
    v_lshrrev_b32 v6, 1, v3
    v_or_b32 v5, v5, v6              ; e(R)
    v_lshlrev_b32 v5, 1, v5
    s_lshl_b32 s63, s62, 3
    v_add_u32 v6, s63, v5
    global_load_ushort v10, v6, s[22:23]
    s_lshl_b32 s63, s57, 10
    v_add_u32 v8, s63, v6
    global_load_ushort v11, v8, s[4:5]
    s_lshr_b32 s63, s62, 4           ; ctile8
    s_lshl2_add_u32 s63, s63, s59
    s_lshl_b32 s63, s63, 2
    s_bfe_u32 s61, s62, 0x20002      ; u
    s_add_u32 s63, s63, s61
    s_lshl1_add_u32 s63, s63, s57
    s_lshl4_add_u32 s63, s63, {W_FP}
    v_min_u32 v5, 13, v0
    v_lshlrev_b32 v5, 12, v5
    v_add_u32 v5, s63, v5
    s_lshl3_add_u32 s63, s56, s{sG}
    s_and_b32 s61, s{sI}, 7
    s_lshl3_add_u32 s63, s63, s61
    s_lshl4_add_u32 s63, s63, {W_SP}
    v_lshlrev_b32 v6, 12, v0
    v_add_u32 v6, s63, v6
    v_cmp_gt_u32 s[60:61], 14, v0
    s_mov_b32 s64, s24
    s_mov_b32 s65, s25
    s_mov_b32 s66, 2048
    s_mov_b32 s67, 0x20000
    s_add_u32 s45, s{sVB}, {cfg.flead}
    """)
    spin_land(45, 7, slp=cfg.slp)
    e(f"""L_fretry:
    buffer_load_dwordx4 v[24:27], v5, s[{SRD_WS}:{SRD_WS+3}], 0 offen sc1
    s_waitcnt vmcnt(0)
    """)
    tag_check(24, 7, True)
    tag_branch(7, "L_fretry", masked=True)
    def gate_math():
        for k in range(4):
            e(f"v_and_b32 v{24+k}, 0xfffff800, v{24+k}")
        for k in range(4):
            e(f"v_cndmask_b32 v{24+k}, 0, v{24+k}, s[60:61]")
        reduce4_rows(24, 28)
        dpp_add(24, (8, 4, 2, 1))
        rnd_bf16(24)
        e("v_lshlrev_b32 v10, 16, v10\nv_add_f32 v24, v24, v10")
        rnd_bf16(24)
        e(f"""
        v_mul_f32 v25, 0xbfb8aa3b, v24
        v_exp_f32 v25, v25
        s_nop 0
        v_add_f32 v25, 1.0, v25
        v_rcp_f32 v25, v25
        s_nop 0
        v_mul_f32 v12, v24, v25
        """)
        rnd_bf16(12)
        e("v_lshlrev_b32 v11, 16, v11")
    if not (cfg.pp3 and cfg.gap3 == 0): gate_math()
    stamp(5)
    if cfg.h3gate == 0: spin_ge(1, F_O, 4, 7, slp=cfg.slp)
    else: spin_ge(1, F_K, 4, 7, slp=cfg.slp)
    if cfg.h3slp: e(f"s_sleep {cfg.h3slp}")
    def ld3(r): e(f"buffer_load_dwordx4 v[{r}:{r+3}], v6, s[{SRD_WS}:{SRD_WS+3}], 0 offen sc1")
    def chk3(r, L):
        tag_check(r, 7, True)
        e(f"v_and_b32 v7, v4, v7\nv_cmp_ne_u32 vcc, 0, v7\ns_cbranch_vccz {L}")
    if cfg.hack4: e("v_and_b32 v6, 0xffffefff, v6\nv_or_b32 v6, 0, v6")
    if cfg.pp3:
        ld3(32)
        if cfg.gap3: e(f"s_sleep {cfg.gap3}")
        else: gate_math()
        ld3(36)
        e("s_mov_b64 s[62:63], -1\nL_3p:\ns_waitcnt vmcnt(1)")
        chk3(32, "L_3X")
        e("s_mov_b64 s[60:61], vcc\ns_mov_b64 exec, vcc")
        ld3(32)
        e("s_mov_b64 exec, s[62:63]\ns_waitcnt vmcnt(1)")
        chk3(36, "L_3Y")
        e("s_mov_b64 s[62:63], vcc\ns_mov_b64 exec, vcc")
        ld3(36)
        e(f"""
        s_mov_b64 exec, s[60:61]
        s_sub_u32 s{sCAP}, s{sCAP}, 1
        s_cbranch_scc0 L_3p
        s_mov_b32 s{sCAP}, 0
        s_waitcnt vmcnt(0)
        L_3Y:
        s_mov_b64 exec, -1""")
        for k in range(4): e(f"v_and_b32 v{24+k}, 0xfffff800, v{36+k}")
        e("s_branch L_3j\nL_3X:\ns_mov_b64 exec, -1")
        for k in range(4): e(f"v_and_b32 v{24+k}, 0xfffff800, v{32+k}")
        e("L_3j:")
    else:
        e("L_3retry:")
        ld3(24)
        e("s_waitcnt vmcnt(0)")
        tag_check(24, 7, True)
        tag_branch(7, "L_3retry", masked=True, slp=cfg.h3loop)
        for k in range(4): e(f"v_and_b32 v{24+k}, 0xfffff800, v{24+k}")
    stamp(6)
    reduce4_rows(24, 28)
    dpp_add(24, (8, 4, 2, 1))
    rnd_bf16(24)
    e("v_mul_f32 v24, v24, v12")
    rnd_bf16(24)
    e(f"""
    v_add_f32 v24, v24, v11
    v_cvt_pk_bf16_f32 v24, v24, v24
    s_mov_b32 s56, 0x00010001
    s_mov_b32 s57, 0x00010001
    s_mov_b64 exec, s[56:57]
    buffer_store_short v24, v8, s[64:67], 0 offen {cfg.outst}
    s_cmp_eq_u32 s2, 0
    s_cbranch_scc0 L_fin2
    s_mov_b64 exec, 1
    v_mov_b32 v26, s34
    v_mov_b32 v27, s35
    v_mov_b32 v28, 0
    buffer_store_dwordx2 v[26:27], v28, s[{SRD_WS}:{SRD_WS+3}], 0 offen {cfg.epst}
    L_fin2:
    """)
    stamp(7)
    stamps_out(8)
    e("s_endpgm")

    sW = 44
    e(f"""L_compute:
    s_setprio {cfg.cprio}
    s_sub_u32 s{sW}, s{sWAVE}, 6
    """)
    if cfg.touch:
        e(f"""
        s_cmp_eq_u32 s{sW}, 2
        s_cbranch_scc0 L_notouch
        s_lshr_b32 s45, s{sI}, 4
        s_lshl_b32 s45, s45, 26
        s_lshl_b32 s46, s{sG}, 23
        s_add_u32 s45, s45, s46
        s_and_b32 s46, s{sI}, 15
        s_lshl_b32 s46, s46, 16
        s_add_u32 s45, s45, s46
        s_add_u32 s45, s45, {28672*256}
        v_mov_b32 v5, s45
        s_lshl_b32 s45, s{sG}, 19
        s_lshr_b32 s46, s{sI}, 2
        s_lshl_b32 s46, s46, 16
        s_add_u32 s45, s45, s46
        v_mov_b32 v6, s45
        v_mov_b32 v7, 0
        s_mov_b64 exec, 1""")
        if 'k' in cfg.touch: e("global_load_dword v164, v5, s[6:7] nt")
        if 'v' in cfg.touch: e("global_load_dword v164, v5, s[8:9] nt")
        if 'o' in cfg.touch: e("global_load_dword v164, v6, s[12:13] nt")
        if 'w' in cfg.touch: e("global_load_dword v164, v7, s[28:29]")
        if 'u' in cfg.touch: e("global_load_dword v164, v7, s[24:25]")
        e("s_mov_b64 exec, -1\nL_notouch:")
    for r in range(64, 128): e(f"v_mov_b32 v{r}, 0")
    e(f"""
    s_lshl_b32 s45, s{sW}, 14
    v_lshlrev_b32 v5, 8, v2
    v_add_u32 v5, s45, v5
    v_xor_b32 v6, v3, v2
    """)
    for t in range(4):
        e(f"v_xor_b32 v7, {4*t}, v6\nv_lshl_add_u32 v{8+t}, v7, 4, v5")
    e(f"""
    v_and_b32 v13, 3, v2
    v_mul_u32_u24 v12, 288, v13
    v_lshl_add_u32 v12, v3, 4, v12
    v_add_u32 v12, {L_QS}, v12
    """)
    e(f"""
    v_lshl_add_u32 v15, v3, 2, v13
    v_lshlrev_b32 v15, 4, v15
    v_add_u32 v15, {L_PB}, v15
    v_lshrrev_b32 v5, 3, v2
    v_lshl_add_u32 v14, v5, 8, v15
    v_bfe_u32 v5, v2, 2, 1
    v_lshl_add_u32 v14, v5, 3, v14
    s_lshl_b32 s45, s{sW}, 9
    v_add_u32 v14, s45, v14
    v_lshlrev_b32 v17, 3, v13
    v_add_u32 v17, {L_SB}, v17
    s_lshl_b32 s45, s{sW}, 5
    v_add_u32 v16, s45, v17
    """)
    e(f"""
    v_lshrrev_b32 v5, 2, v2
    v_and_b32 v6, 1, v3
    v_lshl_add_u32 v6, v6, 2, v5
    s_lshl_b32 s45, s{sW}, 1
    v_xor_b32 v6, s45, v6
    v_lshlrev_b32 v7, 3, v13
    v_lshl_add_u32 v22, v6, 5, v7
    v_xor_b32 v23, 32, v22
    v_lshl_add_u32 v6, v3, 2, v5
    v_lshlrev_b32 v6, 8, v6
    v_add_u32 v6, {L_V}, v6
    v_add_u32 v18, v6, v22
    v_add_u32 v19, v6, v23
    v_lshl_add_u32 v6, v3, 3, v5
    v_lshlrev_b32 v6, 8, v6
    v_add_u32 v6, {L_WO}, v6
    v_add_u32 v20, v6, v22
    v_add_u32 v21, v6, v23
    """)
    e(f"""
    s_lshl_b32 s45, s{sW}, 7
    v_lshl_add_u32 v5, v3, 4, s45
    s_lshl_b32 s46, s{sSLOT}, 11
    s_add_u32 s46, s46, {W_OP}
    s_lshl2_add_u32 s46, s45, s46
    v_lshl_add_u32 v22, v0, 4, s46
    s_lshl_b32 s46, s{sSLOT}, 10
    s_add_u32 s46, s46, {W_SP}
    s_lshl1_add_u32 s46, s45, s46
    v_lshlrev_b32 v23, 4, v13
    v_lshl_add_u32 v23, v3, 6, v23
    v_add_u32 v23, s46, v23
    v_and_b32 v6, 1, v2
    v_lshlrev_b32 v28, 7, v6
    v_lshl_add_u32 v28, v3, 4, v28
    v_add_u32 v28, {L_OB}, v28
    s_lshr_b32 s45, s{sW}, 1          ; b'
    s_and_b32 s46, s{sW}, 1           ; dsub
    s_lshl_b32 s47, s{sG}, 16
    s_lshl_b32 s48, s45, 15
    s_add_u32 s47, s47, s48
    s_lshr_b32 s48, s{sI}, 2
    s_lshl_b32 s48, s48, 8
    s_add_u32 s47, s47, s48
    s_lshl_b32 s48, s46, 7
    s_add_u32 s47, s47, s48
    s_add_u32 s47, s47, {W_OP}
    v_lshrrev_b32 v5, 3, v0
    v_and_b32 v6, 7, v0
    v_lshlrev_b32 v24, 11, v5
    v_lshl_add_u32 v24, v6, 4, v24
    v_add_u32 v24, s47, v24
    v_add_u32 v25, 16384, v24
    s_lshl_b32 s47, s45, 8
    s_add_u32 s47, s47, {L_WT}
    v_lshl_add_u32 v26, v5, 4, s47
    v_and_b32 v5, 1, v3
    v_lshlrev_b32 v5, 1, v5
    v_lshrrev_b32 v7, 1, v3
    v_or_b32 v5, v5, v7
    v_lshl_add_u32 v5, v5, 4, v6
    s_lshl_b32 s47, s45, 7
    s_lshl_b32 s48, s46, 4
    s_add_u32 s47, s47, s48
    s_add_u32 s47, s47, {L_OB}
    v_lshl_add_u32 v27, v5, 1, s47
    s_lshl_b32 s47, s{sSLOT}, 7
    s_add_u32 s47, s47, {W_ST}
    v_lshl_add_u32 v29, v13, 4, s47
    v_and_b32 v5, 4, v0
    v_cmp_ne_u32 s[50:51], 0, v5
    v_and_b32 v5, 2, v0
    v_cmp_ne_u32 s[52:53], 0, v5
    v_mov_b32 v30, 1
    s_waitcnt lgkmcnt(0)
    """)
    nonce_from_epoch()
    for sp in range(4):
        e(f"""
        s_add_u32 s56, s{sRS}, {sp}
        s_and_b32 s56, s56, 3
        s_lshl_b32 s57, s56, 9
        v_add_u32 v{40+sp}, s57, v15
        s_lshl_b32 s57, s56, 14
        v_add_u32 v{48+2*sp}, s57, v18
        v_add_u32 v{49+2*sp}, s57, v19
        """)
    stamp(1)
    get_loc(6, slp=cfg.slpc)
    for tau in range(4):
        m = 0x000f000f << (4*tau)
        e(f"s_mov_b32 s54, {m:#x}\ns_mov_b32 s55, {m:#x}\ns_mov_b64 exec, s[54:55]")
        for t in range(4):
            r = 64 + 16*tau + 4*t
            e(f"ds_read_b128 v[{r}:{r+3}], v12 offset:{64*t}")
    e("s_mov_b64 exec, -1")
    spin_land(sKEND, 6, slp=cfg.slpc)
    stamp(2)
    def kread(tau, t):
        r = 128 + 16*(tau & 1) + 4*t
        e(f"ds_read_b128 v[{r}:{r+3}], v{8+t} offset:{4096*tau}")
    for tau in range(2):
        for t in range(4): kread(tau, t)
    for tau in range(4):
        for t in range(4):
            n = 4*tau + t
            r = 128 + 16*(tau & 1) + 4*t; q = 64 + 16*tau + 4*t
            e(f"s_waitcnt lgkmcnt({7 if n < 8 else 15-n})")
            e(f"v_mfma_f32_16x16x32_bf16 v[32:35], v[{r}:{r+3}], v[{q}:{q+3}], {'v[32:35]' if n else 0}")
            if tau < 2: kread(tau+2, t)
    e(f"""
    s_mov_b32 s54, {SCALE:#x}
    s_mov_b32 s55, {LOG2E:#x}
    s_nop 5
    v_cvt_pk_bf16_f32 v32, v32, v33
    v_cvt_pk_bf16_f32 v34, v34, v35
    v_and_b32 v33, 0xffff0000, v32
    v_lshlrev_b32 v32, 16, v32
    v_and_b32 v35, 0xffff0000, v34
    v_lshlrev_b32 v34, 16, v34
    v_mul_f32 v32, s54, v32
    v_mul_f32 v33, s54, v33
    v_mul_f32 v34, s54, v34
    v_mul_f32 v35, s54, v35
    v_cvt_pk_bf16_f32 v32, v32, v33
    v_cvt_pk_bf16_f32 v34, v34, v35
    v_and_b32 v33, 0xffff0000, v32
    v_lshlrev_b32 v32, 16, v32
    v_and_b32 v35, 0xffff0000, v34
    v_lshlrev_b32 v34, 16, v34
    v_max_f32 v36, v32, v33
    v_max3_f32 v36, v34, v35, v36
    """)
    dpp_max(36, (8, 4))
    e("""
    v_mov_b32 v37, v36
    s_nop 1
    v_permlane16_swap_b32 v36, v37
    s_nop 0
    v_max_f32 v36, v36, v37
    v_mov_b32 v37, v36
    s_nop 1
    v_permlane32_swap_b32 v36, v37
    s_nop 0
    v_max_f32 v36, v36, v37
    s_mov_b64 exec, 15
    ds_write_b32 v16, v36
    s_mov_b64 exec, 1
    ds_add_u32 v1, v30 offset:{F_V}
    s_mov_b64 exec, -1
    """.replace("{F_V}", str(F_V)))
    spin_ge(1, F_V, 4, 6, extra="ds_read_b32 v56, v17\nds_read_b32 v57, v17 offset:32\nds_read_b32 v58, v17 offset:64\nds_read_b32 v59, v17 offset:96")
    e("""
    v_max_f32 v36, v56, v57
    v_max3_f32 v36, v58, v59, v36
    v_sub_f32 v32, v32, v36
    v_sub_f32 v33, v33, v36
    v_sub_f32 v34, v34, v36
    v_sub_f32 v35, v35, v36
    v_mul_f32 v32, s55, v32
    v_mul_f32 v33, s55, v33
    v_mul_f32 v34, s55, v34
    v_mul_f32 v35, s55, v35
    v_exp_f32 v32, v32
    v_exp_f32 v33, v33
    v_exp_f32 v34, v34
    v_exp_f32 v35, v35
    v_add_f32 v37, v32, v33
    v_cvt_pk_bf16_f32 v32, v32, v33
    v_add_f32 v38, v34, v35
    v_cvt_pk_bf16_f32 v33, v34, v35
    v_add_f32 v37, v37, v38
    ds_write_b64 v14, v[32:33]
    """)
    dpp_add(37, (8, 4))
    e("""
    v_mov_b32 v38, v37
    s_nop 1
    v_permlane16_swap_b32 v37, v38
    s_nop 0
    v_add_f32 v37, v37, v38
    v_mov_b32 v38, v37
    s_nop 1
    v_permlane32_swap_b32 v37, v38
    s_nop 0
    v_add_f32 v37, v37, v38
    s_mov_b64 exec, 15
    ds_write_b32 v16, v37 offset:4
    s_mov_b64 exec, -1
    """)
    flag_add(1, F_P, 30)
    spin_ge(1, F_P, 4, 6, extra="\n".join(f"ds_read_b32 v{56+k}, v17 offset:{32*k+4}" for k in range(4)))
    def preg(ee, sp, sg): return (64 if sp < 2 else 96) + 16*ee + 8*(sp & 1) + 4*sg
    e("""
    v_mov_b32 v32, v36
    v_add_f32 v33, v56, v57
    v_add_f32 v34, v58, v59
    v_add_f32 v33, v33, v34
    v_mov_b32 v34, 0
    v_mov_b32 v35, 0
    """)
    e(f"s_cmp_eq_u32 s{sW}, 0\ns_cbranch_scc0 L_nostat")
    tag_insert(32, 4)
    e(f"""
    s_mov_b64 exec, 15
    buffer_store_dwordx4 v[32:35], v29, s[{SRD_WS}:{SRD_WS+3}], 0 offen
    s_cmp_eq_u32 s{sOFF}, 0
    s_cbranch_scc1 L_nostatB
    buffer_store_dwordx4 v[32:35], v29, s[{SRD_WS}:{SRD_WS+3}], s{sBOFF} offen sc1
    L_nostatB:
    s_mov_b64 exec, -1
    L_nostat:
    """)
    stamp(3)
    for r in range(96, 128): e(f"v_mov_b32 v{r}, 0")
    for ee in range(2):
        m = 0x000f000f << (4*ee)
        e(f"s_mov_b32 s56, {m:#x}\ns_mov_b32 s57, {m:#x}\ns_mov_b64 exec, s[56:57]")
        for sp in range(4):
            for sg in range(2):
                r = preg(ee, sp, sg)
                e(f"ds_read_b128 v[{r}:{r+3}], v{40+sp} offset:{256*sg}")
    e("s_mov_b64 exec, -1")
    for sp in range(4):
        e(f"s_add_u32 s58, s{sVB}, {4*(sp+1) + (cfg.woe if sp == 3 else 0)}")
        if sp == 3 and cfg.vlf: spin_ge(1, F_WO, 4, 6)
        else: spin_land(58, 6, slp=(cfg.slpc if sp < 3 else 0))
        if sp == 3: stamp(4)
        for sg in range(2):
            for ee in range(2):
                r = 128 + 8*sg + 4*ee
                e(f"ds_read_b64_tr_b16 v[{r}:{r+1}], v{48+2*sp+ee} offset:{8192*sg}")
                e(f"ds_read_b64_tr_b16 v[{r+2}:{r+3}], v{48+2*sp+ee} offset:{8192*sg+4096}")
        for sg in range(2):
            for ee in range(2):
                r = 128 + 8*sg + 4*ee
                p = preg(ee, sp, sg)
                e(f"s_waitcnt lgkmcnt({6 - 2*(2*sg+ee)})")
                e(f"v_mfma_f32_16x16x32_bf16 v[144:147], v[{p}:{p+3}], v[{r}:{r+3}], {'v[144:147]' if (sp or sg or ee) else 0}")
    e(f"s_cmp_eq_u32 s{sOFF}, 0\ns_mov_b32 exec_hi, 0\ns_nop 5")
    tag_insert(144, 4)
    e(f"""
    buffer_store_dwordx4 v[144:147], v22, s[{SRD_WS}:{SRD_WS+3}], 0 offen
    s_cbranch_scc1 L_oloc
    buffer_store_dwordx4 v[144:147], v22, s[{SRD_WS}:{SRD_WS+3}], s{sBOFF} offen sc1
    L_oloc:
    s_mov_b64 exec, -1
    {"v_mov_b32 v156, v144; v_mov_b32 v157, v145; v_mov_b32 v158, v146; v_mov_b32 v159, v147".replace("; ", chr(10)) if 0 else ""}
    buffer_load_dwordx4 v[32:35], v24, s[{SRD_WS}:{SRD_WS+3}], s{sOFF} offen {cfg.ldA}
    buffer_load_dwordx4 v[36:39], v25, s[{SRD_WS}:{SRD_WS+3}], s{sOFF} offen {cfg.ldA}
    s_add_u32 s58, s{sVB}, 20
    """)
    stamp(5)
    def wofr():
        for ee in range(2):
            for t in range(2):
                r = 64 + 8*ee + 4*t
                e(f"ds_read_b64_tr_b16 v[{r}:{r+1}], v{20+ee} offset:{8192*t}")
                e(f"ds_read_b64_tr_b16 v[{r+2}:{r+3}], v{20+ee} offset:{8192*t+1024}")
    if not cfg.late_wo:
        spin_land(58, 6)
        wofr()
    if cfg.clean:
        for k in range(4): e(f"v_mov_b32 v{156+k}, v{144+k}")
    spin_ge(1, F_W, 1, 6, extra="ds_read_b128 v[40:43], v26\nds_read_b128 v[44:47], v26 offset:128")
    def ld2(r):
        e(f"""
        buffer_load_dwordx4 v[{r}:{r+3}], v24, s[{SRD_WS}:{SRD_WS+3}], s{sOFF} offen {cfg.ldA}
        buffer_load_dwordx4 v[{r+4}:{r+7}], v25, s[{SRD_WS}:{SRD_WS+3}], s{sOFF} offen {cfg.ldA}""")
    def chk2(r, L):
        tag_check(r, 7, True); tag_check(r+4, 7, False)
        e(f"v_and_b32 v7, v4, v7\nv_cmp_ne_u32 vcc, 0, v7\ns_cbranch_vccz {L}")
    if cfg.pp2:
        ld2(48)
        e("s_mov_b64 s[62:63], -1\nL_op:\ns_waitcnt vmcnt(2)")
        chk2(32, "L_okX")
        e("s_mov_b64 s[60:61], vcc\ns_mov_b64 exec, vcc")
        ld2(32)
        e("s_mov_b64 exec, s[62:63]\ns_waitcnt vmcnt(2)")
        chk2(48, "L_okY")
        e("s_mov_b64 s[62:63], vcc\ns_mov_b64 exec, vcc")
        ld2(48)
        e(f"""
        s_mov_b64 exec, s[60:61]
        s_sub_u32 s{sCAP}, s{sCAP}, 1
        s_cbranch_scc0 L_op
        s_mov_b32 s{sCAP}, 0
        s_waitcnt vmcnt(0)
        L_okY:
        s_mov_b64 exec, -1""")
        for k in range(8): e(f"v_and_b32 v{56+k}, 0xfffff800, v{48+k}")
        e("s_branch L_oj\nL_okX:\ns_mov_b64 exec, -1")
        for k in range(8): e(f"v_and_b32 v{56+k}, 0xfffff800, v{32+k}")
        e("L_oj:")
    else:
        e("s_branch L_ochk\nL_oretry:")
        ld2(32)
        e("L_ochk:\ns_waitcnt vmcnt(0)")
        tag_check(32, 7, True); tag_check(36, 7, False)
        tag_branch(7, "L_oretry", masked=True, slp=cfg.o2loop)
        for k in range(8): e(f"v_and_b32 v{56+k}, 0xfffff800, v{32+k}")
    stamp(6)
    R = []
    if cfg.late_wo:
        R.append(f"ds_read_b128 v[152:155], v1 offset:{O_LAND}")
        for ee in range(2):
            for t in range(2):
                r = 64 + 8*ee + 4*t
                R.append(f"ds_read_b64_tr_b16 v[{r}:{r+1}], v{20+ee} offset:{8192*t}")
                R.append(f"ds_read_b64_tr_b16 v[{r+2}:{r+3}], v{20+ee} offset:{8192*t+1024}")
    else:
        R = ["s_nop 0"] * 9
    e(f"""
    v_pk_mul_f32 v[56:57], v[56:57], v[40:41]
    v_pk_mul_f32 v[58:59], v[58:59], v[42:43]
    v_pk_fma_f32 v[56:57], v[60:61], v[44:45], v[56:57]
    v_pk_fma_f32 v[58:59], v[62:63], v[46:47], v[58:59]
    {R[0]}
    {R[1]}
    v_permlane32_swap_b32 v56, v57
    v_permlane32_swap_b32 v58, v59
    {R[2]}
    v_add_f32 v56, v56, v57
    v_add_f32 v58, v58, v59
    {R[3]}
    {R[4]}
    v_permlane16_swap_b32 v56, v58
    {R[5]}
    v_add_f32 v56, v56, v58
    {R[6]}
    {R[7]}
    v_add_f32_dpp v56, v56, v56 row_ror:8 row_mask:0xf bank_mask:0xf
    {R[8]}
    """)
    e(f"""
    v_cvt_pk_bf16_f32 v56, v56, v56
    ds_write_b16 v27, v56
    s_mov_b64 exec, 1
    ds_add_u32 v1, v30 offset:{F_O}
    s_mov_b64 exec, -1
    s_mov_b32 s56, 0x000f000f
    s_mov_b32 s57, 0x000f000f
    """)
    spin_ge(1, F_O, 4, 6, extra="ds_read_b128 v[40:43], v28\nds_read_b128 v[44:47], v28 offset:64")
    if cfg.late_wo:
        e("""
        v_min3_i32 v152, v152, v153, v154
        v_min_i32 v152, v152, v155
        v_cmp_le_i32 vcc, s58, v152
        s_cbranch_vccz L_wolate
        L_wook:""")
    for t in range(2):
        for ee in range(2):
            r = 64 + 8*ee + 4*t
            a = 144 + 4*ee
            e(f"v_mfma_f32_16x16x32_bf16 v[{a}:{a+3}], v[{r}:{r+3}], v[{40+4*t}:{43+4*t}], {f'v[{a}:{a+3}]' if t else 0}")
    e(f"""
    s_mov_b64 exec, s[56:57]
    s_nop 6
    """)
    for k in range(4):
        e(f"v_cndmask_b32 v{144+k}, v{144+k}, v{148+k}, s[52:53]")
    tag_insert(144, 4)
    e(f"""
    {"s_bitcmp1_b32 s32, 2; s_cbranch_scc1 L_end".replace("; ", chr(10)) if cfg.hack4 == 9 else ""}
    {"s_bitcmp1_b32 s32, 2; s_cselect_b64 exec, 0, exec".replace("; ", chr(10)) if cfg.hack4 else ""}
    buffer_store_dwordx4 v[144:147], v23, s[{SRD_WS}:{SRD_WS+3}], 0 offen sc1
    """)
    if cfg.clean == 1:
        e(f"s_mov_b32 s56, 0x00ff00ff\ns_mov_b32 s57, 0x00ff00ff\ns_mov_b64 exec, s[56:57]\nbuffer_store_dwordx4 v[156:159], v22, s[{SRD_WS}:{SRD_WS+3}], 0 offen sc1\ns_waitcnt vmcnt(1)")
    elif cfg.h3gate == 2: e("s_waitcnt vmcnt(0)")
    if cfg.clean == 2:
        e(f"s_mov_b32 s56, 0x00ff00ff\ns_mov_b32 s57, 0x00ff00ff\ns_mov_b64 exec, s[56:57]\nbuffer_store_dwordx4 v[156:159], v22, s[{SRD_WS}:{SRD_WS+3}], 0 offen sc1")
    if cfg.h3gate: e(f"s_mov_b64 exec, 1\nds_add_u32 v1, v30 offset:{F_K}")
    stamp(7)
    stamps_out(8)
    e("L_end:\ns_endpgm")
    if cfg.late_wo:
        e("L_wolate:")
        spin_land(58, 6)
        wofr()
        e("s_waitcnt lgkmcnt(0)\ns_branch L_wook")
    e("L_codeend:")
    if cfg.skip:
        res = []; sect = None
        for ln in out:
            t = ln.strip()
            if t.endswith(":"): sect = t[:-1]
            drop = False
            isg = t.startswith("buffer_load_dwordx4 v[") and "s[36:39]" in t
            if isg and sect in ("L_qretry",) and 'q' in cfg.skip: drop = True
            if isg and sect in ("L_hretry",) and 'h' in cfg.skip: drop = True
            if isg and sect in ("L_sretry",) and 's' in cfg.skip: drop = True
            if isg and sect in ("L_fretry",) and 'f' in cfg.skip: drop = True
            if t.startswith("s_cbranch_scc0 L_qretry") and 'q' in cfg.skip: drop = True
            if t.startswith("s_cbranch_scc0 L_hretry") and 'h' in cfg.skip: drop = True
            if t.startswith("s_cbranch_scc0 L_sretry") and 's' in cfg.skip: drop = True
            if t.startswith("s_cbranch_scc0 L_fretry") and 'f' in cfg.skip: drop = True
            if 'b' in cfg.skip and t.startswith("buffer_store_dwordx4") and "sc1" in t and ("v[56:59]" in t and sect == "L_pubB"): drop = True
            if 'a' in cfg.skip and t.startswith("buffer_store_dwordx4") and "sc1" not in t and ("v[56:59]" in t or "v[64:67]" in t or "v29" in t): drop = True
            if 'q' in cfg.skip and t.startswith("s_cbranch_vccz L_q"): ln = ln.replace("s_cbranch_vccz", "s_branch")
            if 'k' in cfg.skip and t.startswith("ds_read_b128 v[1") and "v1 offset" not in t: drop = True
            if 'v' in cfg.skip and t.startswith("ds_read_b64_tr_b16 v[1"): drop = True
            if not drop: res.append(ln)
        out[:] = res
    if cfg.mark:
        res = []; k = 0
        for ln in out:
            res.append(ln)
            if ln.strip() == f"s_mov_b32 s{sCAP}, 0":
                k += 1
                res += [f"    v_mov_b32 v164, {4*k}", "    v_mov_b32 v165, 1", "    global_atomic_add v164, v165, s[26:27]"]
        out[:] = res
    body = "\n".join(out)
    hdr = open("recurrent_scan__sliding_block_cached__dense_activation_squared_relu__decode.s.ref").read().split("; Override launch")[0]
    return f"""{hdr}; Single fused launch: 256 workgroups (one per CU) x 10 waves.
; @launch grid=(256,1,1) block=(640,1,1) lds={LDS_TOTAL}
.amdgcn_target "amdgcn-amd-amdhsa--gfx950"
.text
.globl {KNAME}
.p2align 8
.type {KNAME},@function
{KNAME}:
{body}
.section .rodata,"a"
.p2align 6
.amdhsa_kernel {KNAME}
  .amdhsa_next_free_vgpr 168
  .amdhsa_next_free_sgpr 102
  .amdhsa_accum_offset 168
  .amdhsa_group_segment_fixed_size 0
  .amdhsa_kernarg_size 104
  .amdhsa_user_sgpr_count 2
  .amdhsa_user_sgpr_kernarg_segment_ptr 1
  .amdhsa_system_sgpr_workgroup_id_x 1
.end_amdhsa_kernel
"""

if __name__ == "__main__":
    path = sys.argv[1]
    for a in sys.argv[2:]:
        k, v = a.split("=")
        cur = getattr(cfg, k)
        setattr(cfg, k, type(cur)(int(v)) if isinstance(cur, (bool, int)) else v.replace("+", " "))
    open(path, "w").write(build())
```

```python
import sys
KNAME = "recurrent_scan__sliding_block_cached__dense_activation_squared_relu__decode_kernel"

cfg_dbgsel = {6: [(0,0,1),(0,1,0),(1,2,1),(1,3,0),(2,4,0),(4,5,1),(4,6,0),(5,7,0)], 7: [(4,8,0),(5,9,0),(6,10,0)], 8: [(5,11,0),(6,12,1),(6,13,0),(7,14,0)]}
class Cfg:
    early = False
    ampw = -1
    ampk = 0
    ampg = -1
    dbg = False
    diag = False
    lw = 5
    lw2 = 5
    win = 20
    qlead = 7
    woe = 0
    lprio = 3
    skew = 0
    bpos = 0
    pps = 0
    trace = 0
    hack4 = 0
    slpc = 0
    vlf = 0
    cprio = 1
    touch = ''
    clean = 0
    epst = ''
    outst = ''
    nprio = 1
    late_wo = 1
    pp2 = 1
    pp3 = 1
    gap3 = 0
    epf = 1
    dirty = 0
    h3gate = 2
    h3slp = 0
    h3loop = 0
    o2loop = 0
    mark = 0
    ntmo = 4
    skip = ''
    only = 0
    pfi = 28
    slp = 0
    win2 = 20
    w2at = 4
    slead = 8
    flead = 10
    hgate = 15
    ldA = 'sc1'
    pf = 1
    first = 'sc1'
    ntK = "nt"; ntW = "nt"
    rotmul = 5
cfg = Cfg()

L_K, L_V, L_WO = 0, 65536, 131072
SCR = 147456
L_QS = SCR
L_PB = SCR + 1152
L_SB = L_PB + 2048
L_WT = L_SB + 128
L_OB = L_WT + 512
L_ACTA = L_OB + 256
L_ACTB = L_ACTA + 576
L_FL = L_ACTB + 576
L_LAND = L_FL + 64
LDS_TOTAL = L_LAND + 16 + 256
F_Q, F_K, F_P, F_V, F_T, F_WO, F_W, F_O = [4*k for k in range(8)]
W_ST, W_QP, W_HP, W_OP, B_OFF, W_SP, W_FP = 0x8000, 0x10000, 0x30000, 0x40000, 0xC0000, 0x180000, 0x1C0000
WS_BYTES = 0x200000
SPIN_CAP = 1000002
LOG2E = 0x3fb8aa3b
SCALE = 0x3db504f3

sWAVE, sG, sI, sNON = 30, 31, 32, 33
sT0, sT1, sT2, sT3 = 34, 33, 40, 79
TMASK, VMASK, TB = 0x7ff, 0xfffff800, 11
SRD_WS = 36
sSLOT = 41
sRS = 42
sCAP = 43
sVB, sOFF, sBOFF = 71, 72, 73
sKEND = 70
O_LAND = 64
STAMP0 = 80

out = []
def e(s):
    for ln in s.strip("\n").split("\n"):
        out.append("    " + ln.strip() if not ln.strip().endswith(":") else ln.strip())

def estamp(k):
    if cfg.diag and cfg.early:
        e(f"s_memrealtime s[{STAMP0+2*k}:{STAMP0+2*k+1}]")
def stamp(k):
    if cfg.diag and (not cfg.early or k == 0 or k >= 6):
        e(f"s_memrealtime s[{STAMP0+2*k}:{STAMP0+2*k+1}]")

def stamps_out(n):
    if not cfg.diag: return
    if cfg.ampw >= 0:
        L = lbl("L_amp"); Ls = lbl("L_amps")
        if cfg.ampk < n:
            e(f"""
            s_waitcnt lgkmcnt(0)
            s_cmp_eq_u32 s{sWAVE}, {cfg.ampw}
            s_cbranch_scc0 {Ls}
            {f's_cmp_eq_u32 s{sG}, {cfg.ampg}; s_cbranch_scc0 {Ls}'.replace('; ', chr(10)) if cfg.ampg >= 0 else ''}
            s_sub_u32 s60, s{STAMP0+2*cfg.ampk}, s{STAMP0}
            s_min_u32 s60, s60, 20000
            s_mul_i32 s60, s60, 10
            s_memrealtime s[62:63]
            s_waitcnt lgkmcnt(0)
            {L}:
            s_memrealtime s[68:69]
            s_waitcnt lgkmcnt(0)
            s_sub_u32 s61, s68, s62
            s_cmp_lt_u32 s61, s60
            s_cbranch_scc1 {L}
            {Ls}:
            """)
        return
    if cfg.dbg:
        sel = cfg_dbgsel[n] if n in cfg_dbgsel else []
        e("s_waitcnt lgkmcnt(0)\ns_mov_b64 exec, 1\nv_mov_b32 v1, 0")
        if n == 8: e(f"s_cmp_eq_u32 s{sWAVE}, 2\ns_cbranch_scc0 L_dbgskip{len(out)}"); lab = f"L_dbgskip{len(out)-2}"
        for (k, slot, mn) in sel:
            e(f"v_mov_b32 v4, s{STAMP0+2*k}")
            if mn: e("v_not_b32 v4, v4")
            e(f"global_atomic_umax v1, v4, s[26:27] offset:{4*slot}\ns_nop 1")
        if n == 8: e(f"{lab}:")
        e("s_waitcnt vmcnt(0)")
        return
    L = lbl("L_dly")
    e(f"""
    s_waitcnt lgkmcnt(0)
    s_add_u32 s61, s{STAMP0}, 1600
    {L}:
    s_sleep 8
    s_memrealtime s[68:69]
    s_waitcnt lgkmcnt(0)
    s_cmp_lt_u32 s68, s61
    s_cbranch_scc1 {L}
    s_lshl_b32 s60, s2, 4
    s_add_u32 s60, s60, s{sWAVE}
    s_lshl_b32 s60, s60, 6
    s_add_u32 s68, s28, s60
    s_addc_u32 s69, s29, 0
    s_add_u32 s68, s68, 0x10000000
    s_addc_u32 s69, s69, 0
    s_mov_b64 exec, 1
    v_mov_b32 v1, 0
    """)
    for k in range(8):
        if k < n:
            e(f"v_mov_b32 v4, s{STAMP0+2*k}\nv_mov_b32 v5, s{STAMP0+2*k+1}")
        else:
            e(f"v_mov_b32 v4, s{STAMP0}\nv_mov_b32 v5, s{STAMP0+1}")
        e(f"global_store_dwordx2 v1, v[4:5], s[68:69] offset:{8*k}\ns_nop 1")
    e("s_waitcnt vmcnt(0)")

lblc = [0]
def lbl(p="L"):
    lblc[0] += 1
    return f"{p}_{lblc[0]}"

def flag_set(vfl, off, vval):
    e(f"s_mov_b64 exec, 1\nds_write_b32 v{vfl}, v{vval} offset:{off}\ns_mov_b64 exec, -1")
def flag_add(vfl, off, vone):
    e(f"s_mov_b64 exec, 1\nds_add_u32 v{vfl}, v{vone} offset:{off}\ns_mov_b64 exec, -1")
def spin_ge(vfl, off, target, vtmp, extra="", slp=0):
    L = lbl("L_sp")
    e(f"""{L}:
    {f's_sleep {slp}' if slp else ''}
    ds_read_b32 v{vtmp}, v{vfl} offset:{off}
    {extra}
    s_waitcnt lgkmcnt(0)
    v_cmp_le_u32 vcc, {target}, v{vtmp}
    s_cbranch_vccz {L}""")

def spin_land(sreg, vtmp, extra="", slp=0):
    L = lbl("L_sl")
    e(f"""{L}:
    {f's_sleep {slp}' if slp else ''}
    ds_read_b128 v[160:163], v1 offset:{O_LAND}
    {extra}
    s_waitcnt lgkmcnt(0)
    v_min3_i32 v160, v160, v161, v162
    v_min_i32 v160, v160, v163
    v_cmp_le_i32 vcc, s{sreg}, v160
    s_cbranch_vccz {L}""")

def get_loc(vtmp, slp=None):
    spin_ge(1, F_Q, 1, vtmp, slp=cfg.slp if slp is None else slp)
    e(f"v_readfirstlane_b32 s{sOFF}, v{vtmp}\ns_nop 3\ns_and_b32 s{sOFF}, s{sOFF}, -2")

def tag_check(regs, acc, first):
    T = [sT0, sT1, sT2, sT3]
    for k in range(4):
        if first and k == 0:
            e(f"v_xor_b32 v{acc}, s{T[0]}, v{regs}")
        else:
            e(f"v_bitop3_b32 v{acc}, v{regs+k}, s{T[k]}, v{acc} bitop3:0xbe")
def tag_branch(acc, Lretry, toggle=False, masked=False, slp=0):
    Ld = lbl("L_ok")
    e(f"""
    v_and_b32 v{acc}, v4, v{acc}
    v_cmp_ne_u32 vcc, 0, v{acc}
    s_cbranch_vccz {Ld}""")
    if masked: e("s_mov_b64 exec, vcc")
    if slp: e(f"s_sleep {slp}")
    if toggle:
        e(f"""
        s_and_b32 s{sOFF}, s{sCAP}, 3
        s_cselect_b32 s{sOFF}, 0, s{sBOFF}""")
    e(f"""
    s_sub_u32 s{sCAP}, s{sCAP}, 1
    s_cbranch_scc0 {Lretry}
    s_mov_b32 s{sCAP}, 0
    {Ld}:""")
    if masked: e("s_mov_b64 exec, -1")
def tag_insert(regs, vff):
    T = [sT0, sT1, sT2, sT3]
    for k in range(4):
        e(f"v_bfi_b32 v{regs+k}, v{vff}, s{T[k]}, v{regs+k}")

def nonce_from_epoch():
    e(f"""
    s_add_u32 s34, s34, 0x01401801
    s_addc_u32 s35, s35, 14
    s_lshr_b32 s33, s34, 11
    s_lshr_b64 s[46:47], s[34:35], 22
    s_mov_b32 s40, s46
    s_lshr_b32 s79, s35, 1
    """)

def srd(r, lo, hi, nbytes):
    pass

def reduce4_rows(x, t):
    e(f"""
    s_nop 1
    v_permlane32_swap_b32 v{x}, v{x+1}
    v_permlane32_swap_b32 v{x+2}, v{x+3}
    s_nop 0
    v_add_f32 v{x}, v{x}, v{x+1}
    v_add_f32 v{x+2}, v{x+2}, v{x+3}
    s_nop 1
    v_permlane16_swap_b32 v{x}, v{x+2}
    s_nop 0
    v_add_f32 v{x}, v{x}, v{x+2}
    """)
def dpp_add(x, rots):
    for r in rots:
        e(f"s_nop 1\nv_add_f32_dpp v{x}, v{x}, v{x} row_ror:{r} row_mask:0xf bank_mask:0xf")
def dpp_max(x, rots):
    for r in rots:
        e(f"s_nop 1\nv_max_f32_dpp v{x}, v{x}, v{x} row_ror:{r} row_mask:0xf bank_mask:0xf")
def rnd_bf16(x):
    e(f"v_cvt_pk_bf16_f32 v{x}, v{x}, v{x}\nv_and_b32 v{x}, 0xffff0000, v{x}")

def build():
    out.clear()
    stamp(0)
    nt = cfg.ntK
    W = cfg.lw; W2 = cfg.lw2
    e(f"""
    s_load_dwordx16 s[4:19], s[0:1], 0
    s_load_dwordx8 s[20:27], s[0:1], 64
    s_load_dwordx2 s[28:29], s[0:1], 96
    v_readfirstlane_b32 s{sWAVE}, v0
    s_cmpk_ge_u32 s2, 0x100
    s_cbranch_scc1 L_end
    v_and_b32 v0, 63, v0
    s_and_b32 s{sG}, s2, 7
    s_lshr_b32 s{sI}, s2, 3
    s_cmpk_ge_u32 s{sWAVE}, 0x100
    s_cbranch_scc1 L_notloader
    v_lshrrev_b32 v12, 3, v0
    s_lshl_b32 s64, s{sWAVE}, 4
    {"s_getpc_b64 s[48:49]; v_lshl_add_u32 v13, v12, 7, s64; global_load_dword v166, v13, s[48:49]".replace("; ", chr(10)) if cfg.epf else ""}
    v_and_b32 v13, 7, v0
    v_and_b32 v14, 2, v12
    v_xor_b32 v13, v13, v14
    v_lshlrev_b32 v13, 4, v13
    s_and_b32 s63, s{sWAVE}, 64
    v_xor_b32 v13, s63, v13
    v_lshl_add_u32 v10, v12, 13, v13
    s_lshr_b32 s45, s2, 6
    s_lshl_b32 s45, s45, 20
    s_and_b32 s46, s{sI}, 7
    s_lshl3_add_u32 s46, s{sG}, s46
    s_lshl_b32 s46, s46, 7
    s_add_u32 s45, s45, s46
    s_mov_b32 s58, {127*8192+128}
    s_mov_b32 s59, 0x20000
    s_lshl4_add_u32 m0, s{sWAVE}, {L_WO}
    s_lshl_b32 s47, s{sWAVE}, 10
    s_waitcnt lgkmcnt(0)
    s_add_u32 s56, s10, s45
    s_addc_u32 s57, s11, 0
    {'s_memrealtime s[82:83]' if cfg.early else ''}
    L_ldA:
    buffer_load_dwordx4 v10, s[56:59], s47 offen {cfg.ntW} lds
    s_addk_i32 m0, 0x1000
    s_add_u32 s47, s47, 0x40000
    s_bitcmp0_b32 s47, 20
    s_cbranch_scc1 L_ldA
    {'s_memrealtime s[84:85]' if cfg.early else ''}
    s_branch L_ld2
    .p2align 8
    """)
    e(f"""L_notloader:
    v_mov_b32 v1, {L_FL}
    v_mov_b32 v5, 0
    v_lshl_add_u32 v6, v0, 2, v1
    ds_write_b32 v6, v5
    s_lshr_b32 s{sWAVE}, s{sWAVE}, 6
    """)
    if cfg.pf:
        e(f"""
        s_cmp_eq_u32 s{sWAVE}, 9
        s_cbranch_scc0 L_nopf
        s_getpc_b64 s[46:47]
        L_pc:
        s_mul_i32 s45, s{sI}, {2 if cfg.epf else 3}
        {'s_add_u32 s45, s45, 30' if cfg.epf else ''}
        v_min_u32 v5, {1 if cfg.epf else 2}, v0
        v_add_u32 v5, s45, v5
        v_lshlrev_b32 v5, 7, v5
        v_min_u32 v5, L_codeend-L_pc-4, v5
        global_load_dword v166, v5, s[46:47]
        L_nopf:""")
    e(f"""
    v_lshlrev_b32 v5, 5, v0
    s_cmp_ge_u32 s{sWAVE}, 6
    s_waitcnt lgkmcnt(0)
    s_load_dwordx2 s[34:35], s[28:29], 0
    s_cbranch_scc1 L_nox
    global_load_dwordx4 v[8:11], v5, s[4:5]
    global_load_dwordx4 v[12:15], v5, s[4:5] offset:16
    L_nox:
    s_barrier
    s_branch L_nl2
    """)
    def flagw():
        e("ds_write_b32 v16, v15\nv_add_u32 v15, 1, v15")
        if cfg.trace:
            e("s_memrealtime s[66:67]\ns_waitcnt lgkmcnt(0)\ns_mov_b64 s[68:69], exec\ns_lshl_b64 exec, 1, s70\nv_mov_b32 v20, s66\ns_mov_b64 exec, s[68:69]\ns_add_u32 s70, s70, 1")
    e(f"""L_ld2:
    s_mul_i32 s44, s2, {cfg.rotmul}
    s_bfe_u32 s{sRS}, s44, 0x20002
    v_and_b32 v2, 15, v0
    v_lshrrev_b32 v3, 4, v0
    s_add_u32 s62, s{sRS}, 3
    s_and_b32 s62, s62, 3
    s_add_u32 s62, s62, 4
    s_lshl_b32 s62, s62, 14
    v_mov_b32 v1, {L_FL}
    s_lshr_b32 s45, s{sWAVE}, 4
    s_add_u32 s45, s45, {L_LAND}
    v_lshl_add_u32 v16, v0, 2, v1
    v_add_u32 v16, {O_LAND+16}, v16
    v_writelane_b32 v16, s45, 0
    v_mov_b32 v15, {5-W}
    {"s_mov_b32 s70, 0; v_mov_b32 v20, 0".replace("; ", chr(10)) if cfg.trace else ""}
    s_setprio {cfg.lprio}
    s_barrier
    """)
    estamp(3)
    if cfg.early:
        e("s_waitcnt vmcnt(3)"); estamp(4); e("s_waitcnt vmcnt(0)"); estamp(5)
    stamp(1)
    def Bblock():
        e(f"""
        s_cmp_lt_u32 s{sG}, 7
        s_cbranch_scc0 L_ld_noB
        s_add_u32 m0, s62, s64
        s_and_b32 s65, s{sI}, 15
        s_lshl4_add_u32 s65, s{sG}, s65
        s_cmp_lt_u32 s{sI}, 16
        s_cbranch_scc0 L_ld_w2
        s_and_b32 s45, s65, 3
        s_mul_i32 s45, s45, {128*3584}
        s_lshr_b32 s46, s65, 2
        s_lshl_b32 s46, s46, 7
        s_add_u32 s45, s45, s46
        s_add_u32 s56, s16, s45
        s_addc_u32 s57, s17, 0
        v_mul_u32_u24 v10, 3584, v12
        v_add_u32 v10, v10, v13
        s_mul_i32 s47, s64, 28
        s_mov_b32 s46, {32*3584}
        s_branch L_ld_B
        L_ld_w2:
        s_lshr_b32 s45, s65, 3
        s_lshl_b32 s45, s45, 17
        s_and_b32 s46, s65, 7
        s_lshl_b32 s46, s46, 7
        s_add_u32 s45, s45, s46
        s_add_u32 s56, s20, s45
        s_addc_u32 s57, s21, 0
        v_lshl_add_u32 v10, v12, 10, v13
        s_lshl_b32 s47, s64, 3
        s_mov_b32 s46, 0x8000
        L_ld_B:
        s_sub_u32 s58, {512*1792*2}, s45
        s_mov_b32 s60, 0
        L_ldB:
        s_waitcnt vmcnt({W-1})
        buffer_load_dwordx4 v10, s[56:59], s47 offen {cfg.ntW} lds
        s_addk_i32 m0, 0x1000
        s_add_u32 s47, s47, s46""")
        flagw()
        e(f"""
        s_add_u32 s60, s60, 1
        s_cmp_lt_u32 s60, 4
        s_cbranch_scc1 L_ldB
        L_ld_noB:
        """)
    def Kblock():
        e(f"""
        v_lshlrev_b32 v14, 8, v3
        v_xor_b32 v17, v3, v2
        v_lshl_add_u32 v4, v17, 4, v14
        v_xor_b32 v4, s{sWAVE}, v4
        s_lshr_b32 s45, s{sI}, 4
        s_lshl_b32 s45, s45, 26
        s_lshl_b32 s46, s{sG}, 23
        s_add_u32 s45, s45, s46
        s_and_b32 s46, s{sI}, 15
        s_lshl_b32 s46, s46, 16
        s_add_u32 s45, s45, s46
        s_add_u32 s45, s45, {28672*256}
        s_mov_b32 s50, 0x10000
        s_mov_b32 s51, 0x20000
        s_add_u32 s48, s6, s45
        s_addc_u32 s49, s7, 0
        s_and_b32 s44, s44, 15
        s_lshl_b32 s47, s44, 12
        s_add_u32 s47, s47, s64
        s_mov_b32 s60, 0
        L_ldK:
        s_mov_b32 m0, s47
        s_add_u32 s60, s60, 1
        s_waitcnt vmcnt({W-1})
        buffer_load_dwordx4 v4, s[48:51], s47 offen {nt} lds""")
        flagw()
        e(f"""
        s_addk_i32 s47, 0x1000
        s_and_b32 s47, s47, 0xffff
        s_cmp_lt_u32 s60, 16
        s_cbranch_scc1 L_ldK
        """)
    if cfg.bpos:
        Kblock(); e("s_mov_b32 s66, s45"); Bblock(); e("s_mov_b32 s45, s66")
    else:
        Bblock(); Kblock()
    stamp(2)
    e(f"""
    v_lshlrev_b32 v17, 1, v3
    v_xor_b32 v17, v17, v2
    v_lshl_add_u32 v8, v17, 4, v14
    s_lshl_b32 s63, s63, 1
    v_xor_b32 v8, s63, v8
    v_lshlrev_b32 v14, 10, v3
    v_lshl_add_u32 v10, v17, 4, v14
    s_and_b32 s63, s{sWAVE}, 0x80
    v_xor_b32 v10, s63, v10
    s_add_u32 s52, s8, s45
    s_addc_u32 s53, s9, 0
    s_mov_b32 s54, 0x10000
    s_mov_b32 s55, 0x20000
    s_mov_b32 s60, 0
    s_and_b32 s61, s44, 3
    """)
    def vloop(name, end, win, noflag=False):
        e(f"""{name}:
        s_lshr_b32 s47, s60, 2
        s_add_u32 s47, s47, s{sRS}
        s_and_b32 s47, s47, 3
        s_add_u32 s62, s61, s60
        s_and_b32 s62, s62, 3
        s_lshl2_add_u32 s47, s47, s62
        s_lshl_b32 s47, s47, 12
        s_add_u32 s47, s47, s64
        s_add_u32 m0, s47, {L_V}
        s_add_u32 s60, s60, 1
        s_waitcnt vmcnt({win-1})
        buffer_load_dwordx4 v8, s[52:55], s47 offen {nt} lds""")
        if not noflag: flagw()
        e(f"""
        s_cmp_lt_u32 s60, {end}
        s_cbranch_scc1 {name}
        """)
    def woloop(name, g0, g1):
        if g0 == g1: return
        e(f"""
        s_add_u32 m0, s64, {L_WO + 4096*g0}
        s_lshl_b32 s47, s64, 2
        s_add_u32 s47, s47, {0x20000*g0}
        {name}:
        s_waitcnt vmcnt({W2-1})
        buffer_load_dwordx4 v10, s[56:59], s47 offen {cfg.ntW} lds
        s_addk_i32 m0, 0x1000
        s_add_u32 s47, s47, 0x20000""")
        flagw()
        e(f"""
        s_cmp_lt_u32 s47, {0x20000*g1}
        s_cbranch_scc1 {name}""")
    if W2 > W:
        assert cfg.w2at + (W2 - W) <= 12
        if cfg.w2at > 0: vloop("L_ldV0", cfg.w2at, W)
        vloop("L_ldV0b", cfg.w2at + W2 - W, W2, noflag=True)
        if cfg.w2at + W2 - W < 12: vloop("L_ldV1", 12, W2)
    elif W2 < W:
        vloop("L_ldV0", cfg.w2at, W)
        for k in range(W - W2):
            e(f"s_waitcnt vmcnt({W-1-k})")
            flagw()
        if cfg.w2at < 12: vloop("L_ldV1", 12, W2)
    else:
        vloop("L_ldV1", 12, W)
    e(f"""
    s_lshl_b32 s45, s{sG}, 19
    s_lshr_b32 s46, s{sI}, 2
    s_lshl_b32 s46, s46, 14
    s_add_u32 s45, s45, s46
    s_and_b32 s46, s{sI}, 3
    s_lshl_b32 s46, s46, 8
    s_add_u32 s45, s45, s46
    s_add_u32 s56, s12, s45
    s_addc_u32 s57, s13, 0
    s_mov_b32 s58, {(3*128+15)*1024+256}
    """)
    spin_ge(1, F_T, 2, 17)
    woloop("L_ldWO1", 0, cfg.woe)
    vloop("L_ldV2", 16, W2)
    woloop("L_ldWO2", cfg.woe, 4)
    stamp(3)
    if cfg.vlf:
        assert W2 - 1 >= 4 - cfg.woe
        e("v_mov_b32 v18, 1\ns_mov_b64 exec, 1")
    for k in range(W2-1, -1, -1):
        e(f"s_waitcnt vmcnt({k})")
        if k == 4 - cfg.woe and cfg.vlf: e(f"ds_add_u32 v1, v18 offset:{F_WO}")
        flagw()
        if k == 4 - cfg.woe: stamp(4)
    stamp(5)
    if cfg.trace:
        e(f"""s_mov_b64 exec, -1
        s_lshl_b32 s60, s2, 10
        s_lshl_b32 s61, s{sWAVE}, 2
        s_add_u32 s60, s60, s61
        s_add_u32 s68, s28, s60
        s_addc_u32 s69, s29, 0
        s_add_u32 s68, s68, 0x18000000
        s_addc_u32 s69, s69, 0
        v_lshlrev_b32 v21, 2, v0
        global_store_dword v21, v20, s[68:69]""")
    if cfg.diag: e(f"s_lshr_b32 s{sWAVE}, s{sWAVE}, 6")
    stamps_out(6)
    e("s_endpgm")

    e(f"""L_nl2:
    {f"s_mov_b64 exec, 1; v_mov_b32 v5, 2; ds_write_b32 v1, v5 offset:{F_T}; s_waitcnt vmcnt(0) lgkmcnt(0); s_endpgm".replace("; ", chr(10)) if cfg.only == 1 else ""}
    s_setprio {cfg.nprio}
    v_and_b32 v2, 15, v0
    v_lshrrev_b32 v3, 4, v0
    s_mul_i32 s44, s2, {cfg.rotmul}
    s_bfe_u32 s{sRS}, s44, 0x20002
    s_lshl_b32 s{sSLOT}, s{sG}, 5
    s_add_u32 s{sSLOT}, s{sSLOT}, s{sI}
    s_mov_b32 s{sCAP}, {SPIN_CAP}
    s_cmp_lt_u32 s{sG}, 7
    s_cselect_b32 s{sVB}, 24, 20
    s_mov_b32 s{sKEND}, {'20' if cfg.bpos else f's{sVB}'}
    v_mov_b32 v4, {TMASK}
    s_mov_b32 s{SRD_WS}, s28
    s_mov_b32 s{SRD_WS+1}, s29
    s_mov_b32 s{SRD_WS+2}, {WS_BYTES}
    s_mov_b32 s{SRD_WS+3}, 0x20000
    s_mov_b32 s{sOFF}, 0
    s_mov_b32 s{sBOFF}, {B_OFF}
    s_cmp_ge_u32 s{sWAVE}, 6
    s_cbranch_scc1 L_compute
    """)
    e(f"""
    s_cmp_eq_u32 s{sWAVE}, 4
    s_cbranch_scc0 L_roleB
    s_mov_b32 s44, 0
    s_lshr_b32 s53, s{sI}, 3
    s_lshl_b32 s52, s{sSLOT}, 9
    s_add_u32 s52, s52, {W_QP}
    s_mov_b32 s54, {L_WO}
    s_mov_b32 s55, {L_ACTA}
    s_mov_b32 s45, 4
    s_branch L_tilecommon
    L_roleB:
    s_add_u32 s54, s{sRS}, 3
    s_and_b32 s54, s54, 3
    s_add_u32 s54, s54, 4
    s_lshl_b32 s54, s54, 14
    s_mov_b32 s55, {L_ACTB}
    s_mov_b32 s45, {24 if cfg.bpos else 8}
    s_and_b32 s52, s{sI}, 15
    s_lshl4_add_u32 s52, s{sG}, s52
    s_lshr_b32 s44, s{sI}, 4
    s_and_b32 s53, s52, 3
    s_lshr_b32 s46, s52, 3
    s_lshl_b32 s52, s52, 9
    s_cmp_eq_u32 s44, 0
    s_cselect_b32 s53, s53, s46
    s_mov_b32 s46, {W_FP}
    s_cselect_b32 s46, {W_HP}, s46
    s_add_u32 s52, s52, s46
    s_cmp_eq_u32 s{sG}, 7
    s_cselect_b32 s44, 2, s44
    L_tilecommon:
    """)
    estamp(2)
    stamp(1)
    e(f"""
    v_lshrrev_b32 v5, 2, v2
    v_lshl_add_u32 v5, v3, 3, v5
    v_lshlrev_b32 v5, 7, v5
    v_and_b32 v6, 3, v2
    v_lshl_add_u32 v5, v6, 3, v5
    v_add_u32 v5, s54, v5
    v_lshrrev_b32 v6, 3, v2
    v_and_b32 v7, 1, v3
    v_lshl_or_b32 v6, v7, 1, v6
    """)
    for u in range(4):
        e(f"v_xor_b32 v7, {u}, v6\nv_lshl_add_u32 v{16+u}, v7, 5, v5")
    e(f"""
    v_and_b32 v5, 1, v0
    v_mul_u32_u24 v5, 288, v5
    v_lshl_add_u32 v5, v3, 4, v5
    v_add_u32 v20, s55, v5
    v_mov_b32 v21, 1
    v_mov_b32 v60, 0
    s_waitcnt lgkmcnt(0)
    """)
    nonce_from_epoch()
    e(f"""
    s_cmp_eq_u32 s44, 0
    s_waitcnt vmcnt(0)
    s_cbranch_scc0 L_noLN
    """)
    estamp(4)
    for k in range(8):
        e(f"v_lshlrev_b32 v{24+2*k}, 16, v{8+k}\nv_and_b32 v{25+2*k}, 0xffff0000, v{8+k}")
    e("v_pk_add_f32 v[40:41], v[24:25], v[26:27]")
    for k in range(2, 8):
        e(f"v_pk_add_f32 v[40:41], v[40:41], v[{24+2*k}:{25+2*k}]")
    e("v_add_f32 v40, v40, v41")
    dpp_add(40, (8, 4, 2, 1))
    e("v_mov_b32 v41, v40\ns_nop 1\nv_permlane16_swap_b32 v40, v41\ns_nop 0\nv_add_f32 v40, v40, v41")
    e("v_mul_f32 v40, 0xbb000000, v40\nv_mov_b32 v41, v40")
    e("v_pk_add_f32 v[42:43], v[24:25], v[40:41]\nv_pk_mul_f32 v[44:45], v[42:43], v[42:43]")
    for k in range(1, 8):
        e(f"v_pk_add_f32 v[42:43], v[{24+2*k}:{25+2*k}], v[40:41]\nv_pk_fma_f32 v[44:45], v[42:43], v[42:43], v[44:45]")
    e("v_add_f32 v44, v44, v45")
    dpp_add(44, (8, 4, 2, 1))
    e("v_mov_b32 v45, v44\ns_nop 1\nv_permlane16_swap_b32 v44, v45\ns_nop 0\nv_add_f32 v44, v44, v45")
    e("v_mul_f32 v44, 0x3b000000, v44")
    rnd_bf16(44)
    e("v_add_f32 v44, 0x3727c5ac, v44")
    rnd_bf16(44)
    e("v_sqrt_f32 v44, v44\ns_nop 0")
    rnd_bf16(44)
    e("v_rcp_f32 v44, v44")
    rnd_bf16(40)
    e("v_mov_b32 v41, v40\nv_mov_b32 v45, v44")
    for k in range(8):
        e(f"v_pk_add_f32 v[42:43], v[{24+2*k}:{25+2*k}], v[40:41]")
        e(f"v_cvt_pk_bf16_f32 v42, v42, v43\nv_and_b32 v43, 0xffff0000, v42\nv_lshlrev_b32 v42, 16, v42")
        e(f"v_pk_mul_f32 v[42:43], v[42:43], v[44:45]\nv_cvt_pk_bf16_f32 v{8+k}, v42, v43")
    e(f"""
    v_bfe_u32 v5, v0, 3, 2
    v_lshrrev_b32 v6, 5, v0
    v_mul_u32_u24 v6, 288, v6
    v_and_b32 v7, 7, v0
    v_lshl_add_u32 v6, v7, 5, v6
    v_add_u32 v6, s55, v6
    v_cmp_eq_u32 vcc, s53, v5
    s_and_saveexec_b64 s[56:57], vcc
    ds_write_b128 v6, v[8:11]
    ds_write_b128 v6, v[12:15] offset:16
    s_mov_b64 exec, -1
    L_noLN:
    """)
    stamp(2)
    e(f"""
    s_cmp_eq_u32 s44, 2
    s_cbranch_scc1 L_notile
    """)
    spin_land(45, 5, slp=cfg.slp)
    estamp(5)
    for u in range(4):
        for t in range(4):
            r = 64 + 16*u + 4*t
            e(f"ds_read_b64_tr_b16 v[{r}:{r+1}], v{16+u} offset:{t*4096}")
            e(f"ds_read_b64_tr_b16 v[{r+2}:{r+3}], v{16+u} offset:{t*4096+512}")
    e(f"""
    s_waitcnt lgkmcnt(0)
    L_notile:
    """)
    flag_add(1, F_T, 21)
    stamp(3)
    e(f"""
    s_cmp_eq_u32 s44, 1
    s_cbranch_scc0 L_noH
    """)
    e(f"""
    v_bfe_u32 v5, v0, 4, 1
    v_lshlrev_b32 v5, 11, v5
    v_lshrrev_b32 v6, 5, v0
    v_lshl_add_u32 v5, v6, 8, v5
    v_lshl_add_u32 v5, v2, 4, v5
    s_lshl_b32 s56, s53, 12
    s_add_u32 s56, s56, {W_HP}
    v_add_u32 v5, s56, v5
    v_and_b32 v7, 31, v0
    v_lshlrev_b32 v7, 3, v7
    s_lshl_b32 s56, s53, 8
    v_add_u32 v22, s56, v7
    global_load_dwordx2 v[22:23], v22, s[18:19]
    v_mul_u32_u24 v6, 288, v6
    v_add3_u32 v6, v6, v7, s55
    """)
    e(f"s_mov_b32 s45, {cfg.hgate}")
    spin_land(45, 7, slp=cfg.slp)
    e("L_hretry:")
    for k in range(4):
        e(f"buffer_load_dwordx4 v[{24+4*k}:{27+4*k}], v5, s[{SRD_WS}:{SRD_WS+3}], s{sOFF} offen offset:{512*k} sc1")
    e("s_waitcnt vmcnt(0)")
    for k in range(4): tag_check(24+4*k, 7, k == 0)
    e(f"""
    v_and_b32 v7, v4, v7
    v_cmp_ne_u32 vcc, 0, v7
    s_cbranch_vccz L_hok""")
    get_loc(7)
    e(f"""
    s_sub_u32 s{sCAP}, s{sCAP}, 1
    s_cbranch_scc0 L_hretry
    s_mov_b32 s{sCAP}, 0
    L_hok:""")
    for k in range(16): e(f"v_and_b32 v{24+k}, 0xfffff800, v{24+k}")
    e("""
    v_pk_add_f32 v[24:25], v[24:25], v[28:29]
    v_pk_add_f32 v[26:27], v[26:27], v[30:31]
    v_pk_add_f32 v[32:33], v[32:33], v[36:37]
    v_pk_add_f32 v[34:35], v[34:35], v[38:39]
    v_pk_add_f32 v[24:25], v[24:25], v[32:33]
    v_pk_add_f32 v[26:27], v[26:27], v[34:35]
    v_cvt_pk_bf16_f32 v24, v24, v25
    v_cvt_pk_bf16_f32 v26, v26, v27
    v_and_b32 v25, 0xffff0000, v24
    v_lshlrev_b32 v24, 16, v24
    v_and_b32 v27, 0xffff0000, v26
    v_lshlrev_b32 v26, 16, v26
    v_lshlrev_b32 v28, 16, v22
    v_and_b32 v29, 0xffff0000, v22
    v_lshlrev_b32 v30, 16, v23
    v_and_b32 v31, 0xffff0000, v23
    v_pk_add_f32 v[24:25], v[24:25], v[28:29]
    v_pk_add_f32 v[26:27], v[26:27], v[30:31]
    v_cvt_pk_bf16_f32 v24, v24, v25
    v_cvt_pk_bf16_f32 v26, v26, v27
    v_and_b32 v25, 0xffff0000, v24
    v_lshlrev_b32 v24, 16, v24
    v_and_b32 v27, 0xffff0000, v26
    v_lshlrev_b32 v26, 16, v26
    v_max_f32 v24, 0, v24
    v_max_f32 v25, 0, v25
    v_max_f32 v26, 0, v26
    v_max_f32 v27, 0, v27
    v_pk_mul_f32 v[24:25], v[24:25], v[24:25]
    v_pk_mul_f32 v[26:27], v[26:27], v[26:27]
    v_cvt_pk_bf16_f32 v24, v24, v25
    v_cvt_pk_bf16_f32 v25, v26, v27
    ds_write_b64 v6, v[24:25]
    L_noH:
    s_cmp_eq_u32 s44, 2
    s_cbranch_scc1 L_nopub
    """)
    e("s_waitcnt lgkmcnt(0)")
    for t in range(4):
        e(f"ds_read_b128 v[{24+4*t}:{27+4*t}], v20 offset:{64*t}")
    e(f"""
    s_cmp_eq_u32 s44, 0
    s_cselect_b32 s56, 8, 4
    s_cselect_b32 s57, 6, 5
    s_cselect_b32 s58, 4, 7
    v_and_b32 v5, 1, v0
    v_lshlrev_b32 v5, s56, v5
    v_bfe_u32 v6, v0, 1, 2
    v_lshl_add_u32 v5, v6, s57, v5
    v_lshl_add_u32 v5, v3, s58, v5
    v_add_u32 v60, s52, v5
    v_and_b32 v6, 2, v0
    v_cmp_ne_u32 s[56:57], 0, v6
    v_and_b32 v6, 4, v0
    v_cmp_ne_u32 s[58:59], 0, v6
    s_waitcnt lgkmcnt(0)
    """)
    for t in range(4):
        for u in range(4):
            r = 64 + 16*u + 4*t
            c = f"v[{40+4*u}:{43+4*u}]"
            e(f"v_mfma_f32_16x16x32_bf16 {c}, v[{r}:{r+3}], v[{24+4*t}:{27+4*t}], {c if t else 0}")
    e("s_nop 7")
    for k in range(4):
        e(f"v_cndmask_b32 v{40+k}, v{40+k}, v{44+k}, s[56:57]")
    for k in range(4):
        e(f"v_cndmask_b32 v{48+k}, v{48+k}, v{52+k}, s[56:57]")
    for k in range(4):
        e(f"v_cndmask_b32 v{56+k}, v{40+k}, v{48+k}, s[58:59]")
    for k in range(4): e(f"v_add_u32 v{56+k}, 0x400, v{56+k}")
    tag_insert(56, 4)
    e(f"""
    s_mov_b32 s74, 0x00ff00ff
    s_mov_b32 s75, 0x00ff00ff
    s_mov_b64 exec, s[74:75]
    s_cmp_eq_u32 s44, 0
    s_cbranch_scc0 L_pubB
    buffer_store_dwordx4 v[56:59], v60, s[{SRD_WS}:{SRD_WS+3}], 0 offen
    s_branch L_pubE
    L_pubB:
    buffer_store_dwordx4 v[56:59], v60, s[{SRD_WS}:{SRD_WS+3}], 0 offen sc1
    L_pubE:
    s_mov_b64 exec, -1
    L_nopub:
    """)
    stamp(4)
    e(f"""
    s_cmp_eq_u32 s{sWAVE}, 4
    s_cbranch_scc0 L_final
    """)
    e(f"""
    v_lshlrev_b32 v10, 9, v3
    v_lshl_add_u32 v10, v2, 4, v10
    s_lshl_b32 s56, s{sG}, 14
    s_lshr_b32 s57, s{sI}, 4
    s_lshl_b32 s57, s57, 8
    s_add_u32 s56, s56, s57
    s_add_u32 s56, s56, {W_QP}
    v_add_u32 v10, s56, v10
    v_add_u32 v11, 0x1000, v10
    v_add_u32 v12, 0x2000, v10
    v_add_u32 v13, 0x3000, v10
    v_lshrrev_b32 v8, 5, v0
    v_lshlrev_b32 v8, 5, v8
    v_lshl_add_u32 v8, v0, 3, v8
    v_add_u32 v8, {L_QS}, v8
    s_sub_u32 s45, s{sKEND}, {cfg.qlead}
    s_getreg_b32 s76, hwreg(HW_REG_XCC_ID, 0, 4)
    s_lshl_b32 s56, s76, 16
    v_mov_b32 v64, s56
    v_mov_b32 v65, 0
    v_mov_b32 v66, 0
    v_mov_b32 v67, 0
    s_lshl_b32 s56, s{sSLOT}, 7
    s_add_u32 s56, s56, {W_ST+64}
    v_mov_b32 v61, s56
    v_and_b32 v62, 31, v0
    v_lshlrev_b32 v62, 7, v62
    s_lshl_b32 s56, s{sG}, 12
    s_add_u32 s56, s56, {W_ST+64}
    v_add_u32 v62, s56, v62
    s_mov_b32 s77, 0
    s_mov_b32 s78, 0
    """)
    tag_insert(64, 4)
    e(f"""
    s_mov_b64 exec, 1
    buffer_store_dwordx4 v[64:67], v61, s[{SRD_WS}:{SRD_WS+3}], 0 offen
    s_mov_b64 exec, -1
    """)
    def pubB_q():
        L = lbl("L_pb")
        e(f"""
        s_cmp_eq_u32 s77, 0
        s_cbranch_scc0 {L}
        s_mov_b32 s77, 1
        s_mov_b64 exec, s[74:75]
        buffer_store_dwordx4 v[56:59], v60, s[{SRD_WS}:{SRD_WS+3}], s{sBOFF} offen sc1
        s_mov_b64 exec, 1
        buffer_store_dwordx4 v[64:67], v61, s[{SRD_WS}:{SRD_WS+3}], s{sBOFF} offen sc1
        s_mov_b64 exec, -1
        {L}:""")
    spin_land(45, 7, slp=cfg.slp)
    e("L_qretry:")
    for v in range(2):
        for k in range(4):
            r = 24 + 16*v + 4*k
            e(f"buffer_load_dwordx4 v[{r}:{r+3}], v{10+k}, s[{SRD_WS}:{SRD_WS+3}], s{sOFF} offen offset:{2048*v} {cfg.ldA}")
    e(f"buffer_load_dwordx4 v[68:71], v62, s[{SRD_WS}:{SRD_WS+3}], s{sOFF} offen {cfg.ldA}")
    e("s_waitcnt vmcnt(0)")
    for k in range(8): tag_check(24+4*k, 7, k == 0)
    tag_check(68, 7, False)
    e(f"""
    v_and_b32 v7, v4, v7
    v_cmp_ne_u32 vcc, 0, v7
    s_cbranch_vccz L_qok
    s_add_u32 s78, s78, 1
    s_cmp_lt_u32 s78, {cfg.ntmo}
    s_cbranch_scc1 L_qretry
    s_xor_b32 s{sOFF}, s{sOFF}, s{sBOFF}
    """)
    pubB_q()
    e(f"""
    s_sub_u32 s{sCAP}, s{sCAP}, 1
    s_cbranch_scc0 L_qretry
    s_mov_b32 s{sCAP}, 0
    L_qok:
    v_lshrrev_b32 v68, 16, v68
    v_cmp_ne_u32 vcc, s76, v68
    s_mov_b32 s{sOFF}, 0
    s_cbranch_vccz L_qloc
    s_mov_b32 s{sOFF}, s{sBOFF}
    """)
    pubB_q()
    e(f"""L_qloc:
    s_add_u32 s56, s{sOFF}, 1
    v_mov_b32 v9, s56
    """)
    for k in range(32): e(f"v_and_b32 v{24+k}, 0xfffff800, v{24+k}")
    for v in range(2):
        r = 24 + 16*v
        e(f"""
        v_pk_add_f32 v[{r}:{r+1}], v[{r}:{r+1}], v[{r+4}:{r+5}]
        v_pk_add_f32 v[{r+2}:{r+3}], v[{r+2}:{r+3}], v[{r+6}:{r+7}]
        v_pk_add_f32 v[{r+8}:{r+9}], v[{r+8}:{r+9}], v[{r+12}:{r+13}]
        v_pk_add_f32 v[{r+10}:{r+11}], v[{r+10}:{r+11}], v[{r+14}:{r+15}]
        v_pk_add_f32 v[{r}:{r+1}], v[{r}:{r+1}], v[{r+8}:{r+9}]
        v_pk_add_f32 v[{r+2}:{r+3}], v[{r+2}:{r+3}], v[{r+10}:{r+11}]
        v_cvt_pk_bf16_f32 v{r}, v{r}, v{r+1}
        v_cvt_pk_bf16_f32 v{r+1}, v{r+2}, v{r+3}
        ds_write_b64 v8, v[{r}:{r+1}] offset:{576*v}
        """)
    flag_set(1, F_Q, 9)
    stamp(5)
    e(f"""
    v_and_b32 v5, 31, v0
    v_lshrrev_b32 v6, 5, v0
    v_lshlrev_b32 v9, 4, v5
    v_lshl_add_u32 v9, v6, 2, v9
    v_add_u32 v9, {L_WT}, v9
    v_lshlrev_b32 v5, 7, v5
    v_lshl_add_u32 v5, v6, 4, v5
    s_lshl_b32 s56, s{sG}, 12
    s_add_u32 s56, s56, {W_ST}
    v_add_u32 v5, s56, v5
    """)
    if cfg.slead > 0:
        e(f"s_add_u32 s45, s{sVB}, {cfg.slead}")
        spin_land(45, 7, slp=cfg.slp)
    spin_ge(1, F_P, 4, 7, slp=cfg.slp)
    def lds_(r):
        e(f"""
        buffer_load_dwordx4 v[{r}:{r+3}], v5, s[{SRD_WS}:{SRD_WS+3}], s{sOFF} offen {cfg.ldA}
        buffer_load_dwordx4 v[{r+4}:{r+7}], v5, s[{SRD_WS}:{SRD_WS+3}], s{sOFF} offen offset:32 {cfg.ldA}""")
    if cfg.pps:
        def chks(r, L):
            tag_check(r, 7, True); tag_check(r+4, 7, False)
            e(f"v_and_b32 v7, v4, v7\nv_cmp_ne_u32 vcc, 0, v7\ns_cbranch_vccz {L}")
        lds_(32)
        e(f"s_add_u32 s45, s45, {cfg.pps}")
        spin_land(45, 7, slp=cfg.slp)
        lds_(40)
        e("s_mov_b64 s[62:63], -1\nL_sp2:\ns_waitcnt vmcnt(2)")
        chks(32, "L_sX")
        e("s_mov_b64 s[60:61], vcc\ns_mov_b64 exec, vcc")
        lds_(32)
        e("s_mov_b64 exec, s[62:63]\ns_waitcnt vmcnt(2)")
        chks(40, "L_sY")
        e("s_mov_b64 s[62:63], vcc\ns_mov_b64 exec, vcc")
        lds_(40)
        e(f"""
        s_mov_b64 exec, s[60:61]
        s_sub_u32 s{sCAP}, s{sCAP}, 1
        s_cbranch_scc0 L_sp2
        s_mov_b32 s{sCAP}, 0
        s_waitcnt vmcnt(0)
        L_sY:
        s_mov_b64 exec, -1""")
        for k in (0, 1, 4, 5): e(f"v_mov_b32 v{24+k}, v{40+k}")
        e("s_branch L_sj\nL_sX:\ns_mov_b64 exec, -1")
        for k in (0, 1, 4, 5): e(f"v_mov_b32 v{24+k}, v{32+k}")
        e("L_sj:")
    else:
        e("L_sretry:")
        lds_(24)
        e("s_waitcnt vmcnt(0)")
        tag_check(24, 7, True); tag_check(28, 7, False)
        tag_branch(7, "L_sretry", masked=True)
    for r in (24, 28):
        e(f"""
        v_and_b32 v{r}, 0xfffff800, v{r}
        v_and_b32 v{r+1}, 0xfffff800, v{r+1}
        v_mov_b32 v{r+2}, v{r}
        """)
        dpp_max(r+2, (8, 4, 2, 1))
        e(f"""
        v_sub_f32 v{r}, v{r}, v{r+2}
        v_mul_f32 v{r}, {LOG2E}, v{r}
        v_exp_f32 v{r}, v{r}
        s_nop 0
        v_mul_f32 v{r+1}, v{r}, v{r+1}
        """)
        dpp_add(r+1, (8, 4, 2, 1))
        e(f"""
        v_rcp_f32 v{r+1}, v{r+1}
        s_nop 0
        v_mul_f32 v{r}, v{r}, v{r+1}
        ds_write_b32 v9, v{r} offset:{2*(r-24)}
        """)
    flag_set(1, F_W, 21)
    if cfg.dirty:
        e(f"s_mov_b32 s{SRD_WS+2}, 0x2000000\ns_mul_i32 s56, s2, {1024*cfg.dirty}\ns_add_u32 s56, s56, 0x400000\nv_lshlrev_b32 v5, 4, v0")
        for k in range(cfg.dirty):
            e(f"buffer_store_dwordx4 v[24:27], v5, s[{SRD_WS}:{SRD_WS+3}], s56 offen\ns_add_u32 s56, s56, 1024")
    stamp(6)
    if cfg.diag: e(f"s_waitcnt lgkmcnt(0)\ns_sub_u32 s94, {SPIN_CAP}, s{sCAP}\ns_lshl_b32 s94, s94, 8\ns_add_u32 s94, s94, s78\ns_mov_b32 s95, 0")
    stamps_out(8)
    e("s_endpgm")

    e(f"""L_final:
    {"s_waitcnt lgkmcnt(0); s_lshl_b32 s56, s2, 2; s_add_u32 s56, s56, 0x1E0000; v_mov_b32 v5, s56; v_mov_b32 v6, s80; s_mov_b64 exec, 1; buffer_store_dword v6, v5, s[36:39], 0 offen sc1; s_mov_b64 exec, -1".replace("; ", chr(10)) if cfg.skew else ""}
    s_cmp_eq_u32 s44, 0
    s_cbranch_scc0 L_fin0
    """)
    get_loc(7)
    e(f"""
    s_cmp_eq_u32 s{sOFF}, 0
    s_cbranch_scc1 L_fin0
    s_mov_b64 exec, s[74:75]
    buffer_store_dwordx4 v[56:59], v60, s[{SRD_WS}:{SRD_WS+3}], s{sBOFF} offen sc1
    s_mov_b64 exec, -1
    L_fin0:
    s_lshr_b32 s56, s{sI}, 3          ; ctile
    s_and_b32 s57, s{sI}, 1           ; b
    s_bfe_u32 s58, s{sI}, 0x10001     ; e
    s_bfe_u32 s59, s{sI}, 0x10002
    s_and_b32 s60, s{sG}, 1
    s_lshl1_add_u32 s59, s60, s59     ; G
    s_lshr_b32 s60, s{sG}, 1          ; w
    s_lshl2_add_u32 s61, s56, s60     ; 4*ctile + w
    s_lshl1_add_u32 s62, s61, s58
    s_lshl2_add_u32 s62, s62, s59     ; nq = n0/4
    v_and_b32 v5, 1, v3
    v_lshlrev_b32 v5, 1, v5
    v_lshrrev_b32 v6, 1, v3
    v_or_b32 v5, v5, v6              ; e(R)
    v_lshlrev_b32 v5, 1, v5
    s_lshl_b32 s63, s62, 3
    v_add_u32 v6, s63, v5
    global_load_ushort v10, v6, s[22:23]
    s_lshl_b32 s63, s57, 10
    v_add_u32 v8, s63, v6
    global_load_ushort v11, v8, s[4:5]
    s_lshr_b32 s63, s62, 4           ; ctile8
    s_lshl2_add_u32 s63, s63, s59
    s_lshl_b32 s63, s63, 2
    s_bfe_u32 s61, s62, 0x20002      ; u
    s_add_u32 s63, s63, s61
    s_lshl1_add_u32 s63, s63, s57
    s_lshl4_add_u32 s63, s63, {W_FP}
    v_min_u32 v5, 13, v0
    v_lshlrev_b32 v5, 12, v5
    v_add_u32 v5, s63, v5
    s_lshl3_add_u32 s63, s56, s{sG}
    s_and_b32 s61, s{sI}, 7
    s_lshl3_add_u32 s63, s63, s61
    s_lshl4_add_u32 s63, s63, {W_SP}
    v_lshlrev_b32 v6, 12, v0
    v_add_u32 v6, s63, v6
    v_cmp_gt_u32 s[60:61], 14, v0
    s_mov_b32 s64, s24
    s_mov_b32 s65, s25
    s_mov_b32 s66, 2048
    s_mov_b32 s67, 0x20000
    s_add_u32 s45, s{sVB}, {cfg.flead}
    """)
    spin_land(45, 7, slp=cfg.slp)
    e(f"""L_fretry:
    buffer_load_dwordx4 v[24:27], v5, s[{SRD_WS}:{SRD_WS+3}], 0 offen sc1
    s_waitcnt vmcnt(0)
    """)
    tag_check(24, 7, True)
    tag_branch(7, "L_fretry", masked=True)
    def gate_math():
        for k in range(4):
            e(f"v_and_b32 v{24+k}, 0xfffff800, v{24+k}")
        for k in range(4):
            e(f"v_cndmask_b32 v{24+k}, 0, v{24+k}, s[60:61]")
        reduce4_rows(24, 28)
        dpp_add(24, (8, 4, 2, 1))
        rnd_bf16(24)
        e("v_lshlrev_b32 v10, 16, v10\nv_add_f32 v24, v24, v10")
        rnd_bf16(24)
        e(f"""
        v_mul_f32 v25, 0xbfb8aa3b, v24
        v_exp_f32 v25, v25
        s_nop 0
        v_add_f32 v25, 1.0, v25
        v_rcp_f32 v25, v25
        s_nop 0
        v_mul_f32 v12, v24, v25
        """)
        rnd_bf16(12)
        e("v_lshlrev_b32 v11, 16, v11")
    if not (cfg.pp3 and cfg.gap3 == 0): gate_math()
    stamp(5)
    if cfg.h3gate == 0: spin_ge(1, F_O, 4, 7, slp=cfg.slp)
    else: spin_ge(1, F_K, 4, 7, slp=cfg.slp)
    if cfg.h3slp: e(f"s_sleep {cfg.h3slp}")
    def ld3(r): e(f"buffer_load_dwordx4 v[{r}:{r+3}], v6, s[{SRD_WS}:{SRD_WS+3}], 0 offen sc1")
    def chk3(r, L):
        tag_check(r, 7, True)
        e(f"v_and_b32 v7, v4, v7\nv_cmp_ne_u32 vcc, 0, v7\ns_cbranch_vccz {L}")
    if cfg.hack4: e("v_and_b32 v6, 0xffffefff, v6\nv_or_b32 v6, 0, v6")
    if cfg.pp3:
        ld3(32)
        if cfg.gap3: e(f"s_sleep {cfg.gap3}")
        else: gate_math()
        ld3(36)
        e("s_mov_b64 s[62:63], -1\nL_3p:\ns_waitcnt vmcnt(1)")
        chk3(32, "L_3X")
        e("s_mov_b64 s[60:61], vcc\ns_mov_b64 exec, vcc")
        ld3(32)
        e("s_mov_b64 exec, s[62:63]\ns_waitcnt vmcnt(1)")
        chk3(36, "L_3Y")
        e("s_mov_b64 s[62:63], vcc\ns_mov_b64 exec, vcc")
        ld3(36)
        e(f"""
        s_mov_b64 exec, s[60:61]
        s_sub_u32 s{sCAP}, s{sCAP}, 1
        s_cbranch_scc0 L_3p
        s_mov_b32 s{sCAP}, 0
        s_waitcnt vmcnt(0)
        L_3Y:
        s_mov_b64 exec, -1""")
        for k in range(4): e(f"v_and_b32 v{24+k}, 0xfffff800, v{36+k}")
        e("s_branch L_3j\nL_3X:\ns_mov_b64 exec, -1")
        for k in range(4): e(f"v_and_b32 v{24+k}, 0xfffff800, v{32+k}")
        e("L_3j:")
    else:
        e("L_3retry:")
        ld3(24)
        e("s_waitcnt vmcnt(0)")
        tag_check(24, 7, True)
        tag_branch(7, "L_3retry", masked=True, slp=cfg.h3loop)
        for k in range(4): e(f"v_and_b32 v{24+k}, 0xfffff800, v{24+k}")
    stamp(6)
    reduce4_rows(24, 28)
    dpp_add(24, (8, 4, 2, 1))
    rnd_bf16(24)
    e("v_mul_f32 v24, v24, v12")
    rnd_bf16(24)
    e(f"""
    v_add_f32 v24, v24, v11
    v_cvt_pk_bf16_f32 v24, v24, v24
    s_mov_b32 s56, 0x00010001
    s_mov_b32 s57, 0x00010001
    s_mov_b64 exec, s[56:57]
    buffer_store_short v24, v8, s[64:67], 0 offen {cfg.outst}
    s_cmp_eq_u32 s2, 0
    s_cbranch_scc0 L_fin2
    s_mov_b64 exec, 1
    v_mov_b32 v26, s34
    v_mov_b32 v27, s35
    v_mov_b32 v28, 0
    buffer_store_dwordx2 v[26:27], v28, s[{SRD_WS}:{SRD_WS+3}], 0 offen {cfg.epst}
    L_fin2:
    """)
    if cfg.skew:
        e(f"""
        s_cmp_eq_u32 s2, 0
        s_cbranch_scc0 L_skend
        s_mov_b64 exec, -1
        v_lshlrev_b32 v5, 4, v0
        v_add_u32 v5, 0x1E0000, v5
        buffer_load_dwordx4 v[40:43], v5, s[{SRD_WS}:{SRD_WS+3}], 0 offen sc1
        s_waitcnt vmcnt(0) lgkmcnt(0)
        v_subrev_u32 v40, s80, v40
        v_subrev_u32 v41, s80, v41
        v_subrev_u32 v42, s80, v42
        v_subrev_u32 v43, s80, v43
        v_max3_i32 v44, v40, v41, v42
        v_max_i32 v44, v44, v43
        v_min3_i32 v45, v40, v41, v42
        v_min_i32 v45, v45, v43
        s_mov_b32 s60, 0x80000000
        s_mov_b32 s61, 0x7fffffff
        """)
        for l in range(64):
            e(f"v_readlane_b32 s62, v44, {l}\nv_readlane_b32 s63, v45, {l}\ns_nop 1\ns_max_i32 s60, s60, s62\ns_min_i32 s61, s61, s63")
        e(f"""
        s_sub_u32 s60, s60, s61
        s_min_u32 s60, s60, 2000
        s_mul_i32 s60, s60, 20
        s_memrealtime s[62:63]
        s_waitcnt lgkmcnt(0)
        L_sksp:
        s_memrealtime s[68:69]
        s_waitcnt lgkmcnt(0)
        s_sub_u32 s61, s68, s62
        s_cmp_lt_u32 s61, s60
        s_cbranch_scc1 L_sksp
        L_skend:""")
    stamp(7)
    stamps_out(8)
    e("s_endpgm")

    sW = 44
    e(f"""L_compute:
    s_setprio {cfg.cprio}
    s_sub_u32 s{sW}, s{sWAVE}, 6
    """)
    if cfg.touch:
        e(f"""
        s_cmp_eq_u32 s{sW}, 2
        s_cbranch_scc0 L_notouch
        s_lshr_b32 s45, s{sI}, 4
        s_lshl_b32 s45, s45, 26
        s_lshl_b32 s46, s{sG}, 23
        s_add_u32 s45, s45, s46
        s_and_b32 s46, s{sI}, 15
        s_lshl_b32 s46, s46, 16
        s_add_u32 s45, s45, s46
        s_add_u32 s45, s45, {28672*256}
        v_mov_b32 v5, s45
        s_lshl_b32 s45, s{sG}, 19
        s_lshr_b32 s46, s{sI}, 2
        s_lshl_b32 s46, s46, 16
        s_add_u32 s45, s45, s46
        v_mov_b32 v6, s45
        v_mov_b32 v7, 0
        s_mov_b64 exec, 1""")
        if 'k' in cfg.touch: e("global_load_dword v164, v5, s[6:7] nt")
        if 'v' in cfg.touch: e("global_load_dword v164, v5, s[8:9] nt")
        if 'o' in cfg.touch: e("global_load_dword v164, v6, s[12:13] nt")
        if 'w' in cfg.touch: e("global_load_dword v164, v7, s[28:29]")
        if 'u' in cfg.touch: e("global_load_dword v164, v7, s[24:25]")
        e("s_mov_b64 exec, -1\nL_notouch:")
    for r in range(64, 128): e(f"v_mov_b32 v{r}, 0")
    e(f"""
    s_lshl_b32 s45, s{sW}, 14
    v_lshlrev_b32 v5, 8, v2
    v_add_u32 v5, s45, v5
    v_xor_b32 v6, v3, v2
    """)
    for t in range(4):
        e(f"v_xor_b32 v7, {4*t}, v6\nv_lshl_add_u32 v{8+t}, v7, 4, v5")
    e(f"""
    v_and_b32 v13, 3, v2
    v_mul_u32_u24 v12, 288, v13
    v_lshl_add_u32 v12, v3, 4, v12
    v_add_u32 v12, {L_QS}, v12
    """)
    e(f"""
    v_lshl_add_u32 v15, v3, 2, v13
    v_lshlrev_b32 v15, 4, v15
    v_add_u32 v15, {L_PB}, v15
    v_lshrrev_b32 v5, 3, v2
    v_lshl_add_u32 v14, v5, 8, v15
    v_bfe_u32 v5, v2, 2, 1
    v_lshl_add_u32 v14, v5, 3, v14
    s_lshl_b32 s45, s{sW}, 9
    v_add_u32 v14, s45, v14
    v_lshlrev_b32 v17, 3, v13
    v_add_u32 v17, {L_SB}, v17
    s_lshl_b32 s45, s{sW}, 5
    v_add_u32 v16, s45, v17
    """)
    e(f"""
    v_lshrrev_b32 v5, 2, v2
    v_and_b32 v6, 1, v3
    v_lshl_add_u32 v6, v6, 2, v5
    s_lshl_b32 s45, s{sW}, 1
    v_xor_b32 v6, s45, v6
    v_lshlrev_b32 v7, 3, v13
    v_lshl_add_u32 v22, v6, 5, v7
    v_xor_b32 v23, 32, v22
    v_lshl_add_u32 v6, v3, 2, v5
    v_lshlrev_b32 v6, 8, v6
    v_add_u32 v6, {L_V}, v6
    v_add_u32 v18, v6, v22
    v_add_u32 v19, v6, v23
    v_lshl_add_u32 v6, v3, 3, v5
    v_lshlrev_b32 v6, 8, v6
    v_add_u32 v6, {L_WO}, v6
    v_add_u32 v20, v6, v22
    v_add_u32 v21, v6, v23
    """)
    e(f"""
    s_lshl_b32 s45, s{sW}, 7
    v_lshl_add_u32 v5, v3, 4, s45
    s_lshl_b32 s46, s{sSLOT}, 11
    s_add_u32 s46, s46, {W_OP}
    s_lshl2_add_u32 s46, s45, s46
    v_lshl_add_u32 v22, v0, 4, s46
    s_lshl_b32 s46, s{sSLOT}, 10
    s_add_u32 s46, s46, {W_SP}
    s_lshl1_add_u32 s46, s45, s46
    v_lshlrev_b32 v23, 4, v13
    v_lshl_add_u32 v23, v3, 6, v23
    v_add_u32 v23, s46, v23
    v_and_b32 v6, 1, v2
    v_lshlrev_b32 v28, 7, v6
    v_lshl_add_u32 v28, v3, 4, v28
    v_add_u32 v28, {L_OB}, v28
    s_lshr_b32 s45, s{sW}, 1          ; b'
    s_and_b32 s46, s{sW}, 1           ; dsub
    s_lshl_b32 s47, s{sG}, 16
    s_lshl_b32 s48, s45, 15
    s_add_u32 s47, s47, s48
    s_lshr_b32 s48, s{sI}, 2
    s_lshl_b32 s48, s48, 8
    s_add_u32 s47, s47, s48
    s_lshl_b32 s48, s46, 7
    s_add_u32 s47, s47, s48
    s_add_u32 s47, s47, {W_OP}
    v_lshrrev_b32 v5, 3, v0
    v_and_b32 v6, 7, v0
    v_lshlrev_b32 v24, 11, v5
    v_lshl_add_u32 v24, v6, 4, v24
    v_add_u32 v24, s47, v24
    v_add_u32 v25, 16384, v24
    s_lshl_b32 s47, s45, 8
    s_add_u32 s47, s47, {L_WT}
    v_lshl_add_u32 v26, v5, 4, s47
    v_and_b32 v5, 1, v3
    v_lshlrev_b32 v5, 1, v5
    v_lshrrev_b32 v7, 1, v3
    v_or_b32 v5, v5, v7
    v_lshl_add_u32 v5, v5, 4, v6
    s_lshl_b32 s47, s45, 7
    s_lshl_b32 s48, s46, 4
    s_add_u32 s47, s47, s48
    s_add_u32 s47, s47, {L_OB}
    v_lshl_add_u32 v27, v5, 1, s47
    s_lshl_b32 s47, s{sSLOT}, 7
    s_add_u32 s47, s47, {W_ST}
    v_lshl_add_u32 v29, v13, 4, s47
    v_and_b32 v5, 4, v0
    v_cmp_ne_u32 s[50:51], 0, v5
    v_and_b32 v5, 2, v0
    v_cmp_ne_u32 s[52:53], 0, v5
    v_mov_b32 v30, 1
    s_waitcnt lgkmcnt(0)
    """)
    nonce_from_epoch()
    for sp in range(4):
        e(f"""
        s_add_u32 s56, s{sRS}, {sp}
        s_and_b32 s56, s56, 3
        s_lshl_b32 s57, s56, 9
        v_add_u32 v{40+sp}, s57, v15
        s_lshl_b32 s57, s56, 14
        v_add_u32 v{48+2*sp}, s57, v18
        v_add_u32 v{49+2*sp}, s57, v19
        """)
    stamp(1)
    get_loc(6, slp=cfg.slpc)
    for tau in range(4):
        m = 0x000f000f << (4*tau)
        e(f"s_mov_b32 s54, {m:#x}\ns_mov_b32 s55, {m:#x}\ns_mov_b64 exec, s[54:55]")
        for t in range(4):
            r = 64 + 16*tau + 4*t
            e(f"ds_read_b128 v[{r}:{r+3}], v12 offset:{64*t}")
    e("s_mov_b64 exec, -1")
    spin_land(sKEND, 6, slp=cfg.slpc)
    stamp(2)
    def kread(tau, t):
        r = 128 + 16*(tau & 1) + 4*t
        e(f"ds_read_b128 v[{r}:{r+3}], v{8+t} offset:{4096*tau}")
    for tau in range(2):
        for t in range(4): kread(tau, t)
    for tau in range(4):
        for t in range(4):
            n = 4*tau + t
            r = 128 + 16*(tau & 1) + 4*t; q = 64 + 16*tau + 4*t
            e(f"s_waitcnt lgkmcnt({7 if n < 8 else 15-n})")
            e(f"v_mfma_f32_16x16x32_bf16 v[32:35], v[{r}:{r+3}], v[{q}:{q+3}], {'v[32:35]' if n else 0}")
            if tau < 2: kread(tau+2, t)
    e(f"""
    s_mov_b32 s54, {SCALE:#x}
    s_mov_b32 s55, {LOG2E:#x}
    s_nop 5
    v_cvt_pk_bf16_f32 v32, v32, v33
    v_cvt_pk_bf16_f32 v34, v34, v35
    v_and_b32 v33, 0xffff0000, v32
    v_lshlrev_b32 v32, 16, v32
    v_and_b32 v35, 0xffff0000, v34
    v_lshlrev_b32 v34, 16, v34
    v_mul_f32 v32, s54, v32
    v_mul_f32 v33, s54, v33
    v_mul_f32 v34, s54, v34
    v_mul_f32 v35, s54, v35
    v_cvt_pk_bf16_f32 v32, v32, v33
    v_cvt_pk_bf16_f32 v34, v34, v35
    v_and_b32 v33, 0xffff0000, v32
    v_lshlrev_b32 v32, 16, v32
    v_and_b32 v35, 0xffff0000, v34
    v_lshlrev_b32 v34, 16, v34
    v_max_f32 v36, v32, v33
    v_max3_f32 v36, v34, v35, v36
    """)
    dpp_max(36, (8, 4))
    e("""
    v_mov_b32 v37, v36
    s_nop 1
    v_permlane16_swap_b32 v36, v37
    s_nop 0
    v_max_f32 v36, v36, v37
    v_mov_b32 v37, v36
    s_nop 1
    v_permlane32_swap_b32 v36, v37
    s_nop 0
    v_max_f32 v36, v36, v37
    s_mov_b64 exec, 15
    ds_write_b32 v16, v36
    s_mov_b64 exec, 1
    ds_add_u32 v1, v30 offset:{F_V}
    s_mov_b64 exec, -1
    """.replace("{F_V}", str(F_V)))
    spin_ge(1, F_V, 4, 6, extra="ds_read_b32 v56, v17\nds_read_b32 v57, v17 offset:32\nds_read_b32 v58, v17 offset:64\nds_read_b32 v59, v17 offset:96")
    e("""
    v_max_f32 v36, v56, v57
    v_max3_f32 v36, v58, v59, v36
    v_sub_f32 v32, v32, v36
    v_sub_f32 v33, v33, v36
    v_sub_f32 v34, v34, v36
    v_sub_f32 v35, v35, v36
    v_mul_f32 v32, s55, v32
    v_mul_f32 v33, s55, v33
    v_mul_f32 v34, s55, v34
    v_mul_f32 v35, s55, v35
    v_exp_f32 v32, v32
    v_exp_f32 v33, v33
    v_exp_f32 v34, v34
    v_exp_f32 v35, v35
    v_add_f32 v37, v32, v33
    v_cvt_pk_bf16_f32 v32, v32, v33
    v_add_f32 v38, v34, v35
    v_cvt_pk_bf16_f32 v33, v34, v35
    v_add_f32 v37, v37, v38
    ds_write_b64 v14, v[32:33]
    """)
    dpp_add(37, (8, 4))
    e("""
    v_mov_b32 v38, v37
    s_nop 1
    v_permlane16_swap_b32 v37, v38
    s_nop 0
    v_add_f32 v37, v37, v38
    v_mov_b32 v38, v37
    s_nop 1
    v_permlane32_swap_b32 v37, v38
    s_nop 0
    v_add_f32 v37, v37, v38
    s_mov_b64 exec, 15
    ds_write_b32 v16, v37 offset:4
    s_mov_b64 exec, -1
    """)
    flag_add(1, F_P, 30)
    spin_ge(1, F_P, 4, 6, extra="\n".join(f"ds_read_b32 v{56+k}, v17 offset:{32*k+4}" for k in range(4)))
    def preg(ee, sp, sg): return (64 if sp < 2 else 96) + 16*ee + 8*(sp & 1) + 4*sg
    e("""
    v_mov_b32 v32, v36
    v_add_f32 v33, v56, v57
    v_add_f32 v34, v58, v59
    v_add_f32 v33, v33, v34
    v_mov_b32 v34, 0
    v_mov_b32 v35, 0
    """)
    e(f"s_cmp_eq_u32 s{sW}, 0\ns_cbranch_scc0 L_nostat")
    tag_insert(32, 4)
    e(f"""
    s_mov_b64 exec, 15
    buffer_store_dwordx4 v[32:35], v29, s[{SRD_WS}:{SRD_WS+3}], 0 offen
    s_cmp_eq_u32 s{sOFF}, 0
    s_cbranch_scc1 L_nostatB
    buffer_store_dwordx4 v[32:35], v29, s[{SRD_WS}:{SRD_WS+3}], s{sBOFF} offen sc1
    L_nostatB:
    s_mov_b64 exec, -1
    L_nostat:
    """)
    stamp(3)
    for r in range(96, 128): e(f"v_mov_b32 v{r}, 0")
    for ee in range(2):
        m = 0x000f000f << (4*ee)
        e(f"s_mov_b32 s56, {m:#x}\ns_mov_b32 s57, {m:#x}\ns_mov_b64 exec, s[56:57]")
        for sp in range(4):
            for sg in range(2):
                r = preg(ee, sp, sg)
                e(f"ds_read_b128 v[{r}:{r+3}], v{40+sp} offset:{256*sg}")
    e("s_mov_b64 exec, -1")
    for sp in range(4):
        e(f"s_add_u32 s58, s{sVB}, {4*(sp+1) + (cfg.woe if sp == 3 else 0)}")
        if sp == 3 and cfg.vlf: spin_ge(1, F_WO, 4, 6)
        else: spin_land(58, 6, slp=(cfg.slpc if sp < 3 else 0))
        if sp == 3: stamp(4)
        for sg in range(2):
            for ee in range(2):
                r = 128 + 8*sg + 4*ee
                e(f"ds_read_b64_tr_b16 v[{r}:{r+1}], v{48+2*sp+ee} offset:{8192*sg}")
                e(f"ds_read_b64_tr_b16 v[{r+2}:{r+3}], v{48+2*sp+ee} offset:{8192*sg+4096}")
        for sg in range(2):
            for ee in range(2):
                r = 128 + 8*sg + 4*ee
                p = preg(ee, sp, sg)
                e(f"s_waitcnt lgkmcnt({6 - 2*(2*sg+ee)})")
                e(f"v_mfma_f32_16x16x32_bf16 v[144:147], v[{p}:{p+3}], v[{r}:{r+3}], {'v[144:147]' if (sp or sg or ee) else 0}")
    e(f"s_cmp_eq_u32 s{sOFF}, 0\ns_mov_b32 exec_hi, 0\ns_nop 5")
    tag_insert(144, 4)
    e(f"""
    buffer_store_dwordx4 v[144:147], v22, s[{SRD_WS}:{SRD_WS+3}], 0 offen
    s_cbranch_scc1 L_oloc
    buffer_store_dwordx4 v[144:147], v22, s[{SRD_WS}:{SRD_WS+3}], s{sBOFF} offen sc1
    L_oloc:
    s_mov_b64 exec, -1
    {"v_mov_b32 v156, v144; v_mov_b32 v157, v145; v_mov_b32 v158, v146; v_mov_b32 v159, v147".replace("; ", chr(10)) if 0 else ""}
    buffer_load_dwordx4 v[32:35], v24, s[{SRD_WS}:{SRD_WS+3}], s{sOFF} offen {cfg.ldA}
    buffer_load_dwordx4 v[36:39], v25, s[{SRD_WS}:{SRD_WS+3}], s{sOFF} offen {cfg.ldA}
    s_add_u32 s58, s{sVB}, 20
    """)
    stamp(5)
    def wofr():
        for ee in range(2):
            for t in range(2):
                r = 64 + 8*ee + 4*t
                e(f"ds_read_b64_tr_b16 v[{r}:{r+1}], v{20+ee} offset:{8192*t}")
                e(f"ds_read_b64_tr_b16 v[{r+2}:{r+3}], v{20+ee} offset:{8192*t+1024}")
    if not cfg.late_wo:
        spin_land(58, 6)
        wofr()
    if cfg.clean:
        for k in range(4): e(f"v_mov_b32 v{156+k}, v{144+k}")
    spin_ge(1, F_W, 1, 6, extra="ds_read_b128 v[40:43], v26\nds_read_b128 v[44:47], v26 offset:128")
    def ld2(r):
        e(f"""
        buffer_load_dwordx4 v[{r}:{r+3}], v24, s[{SRD_WS}:{SRD_WS+3}], s{sOFF} offen {cfg.ldA}
        buffer_load_dwordx4 v[{r+4}:{r+7}], v25, s[{SRD_WS}:{SRD_WS+3}], s{sOFF} offen {cfg.ldA}""")
    def chk2(r, L):
        tag_check(r, 7, True); tag_check(r+4, 7, False)
        e(f"v_and_b32 v7, v4, v7\nv_cmp_ne_u32 vcc, 0, v7\ns_cbranch_vccz {L}")
    if cfg.pp2:
        ld2(48)
        e("s_mov_b64 s[62:63], -1\nL_op:\ns_waitcnt vmcnt(2)")
        chk2(32, "L_okX")
        e("s_mov_b64 s[60:61], vcc\ns_mov_b64 exec, vcc")
        ld2(32)
        e("s_mov_b64 exec, s[62:63]\ns_waitcnt vmcnt(2)")
        chk2(48, "L_okY")
        e("s_mov_b64 s[62:63], vcc\ns_mov_b64 exec, vcc")
        ld2(48)
        e(f"""
        s_mov_b64 exec, s[60:61]
        s_sub_u32 s{sCAP}, s{sCAP}, 1
        s_cbranch_scc0 L_op
        s_mov_b32 s{sCAP}, 0
        s_waitcnt vmcnt(0)
        L_okY:
        s_mov_b64 exec, -1""")
        for k in range(8): e(f"v_and_b32 v{56+k}, 0xfffff800, v{48+k}")
        e("s_branch L_oj\nL_okX:\ns_mov_b64 exec, -1")
        for k in range(8): e(f"v_and_b32 v{56+k}, 0xfffff800, v{32+k}")
        e("L_oj:")
    else:
        e("s_branch L_ochk\nL_oretry:")
        ld2(32)
        e("L_ochk:\ns_waitcnt vmcnt(0)")
        tag_check(32, 7, True); tag_check(36, 7, False)
        tag_branch(7, "L_oretry", masked=True, slp=cfg.o2loop)
        for k in range(8): e(f"v_and_b32 v{56+k}, 0xfffff800, v{32+k}")
    stamp(6)
    R = []
    if cfg.late_wo:
        R.append(f"ds_read_b128 v[152:155], v1 offset:{O_LAND}")
        for ee in range(2):
            for t in range(2):
                r = 64 + 8*ee + 4*t
                R.append(f"ds_read_b64_tr_b16 v[{r}:{r+1}], v{20+ee} offset:{8192*t}")
                R.append(f"ds_read_b64_tr_b16 v[{r+2}:{r+3}], v{20+ee} offset:{8192*t+1024}")
    else:
        R = ["s_nop 0"] * 9
    e(f"""
    v_pk_mul_f32 v[56:57], v[56:57], v[40:41]
    v_pk_mul_f32 v[58:59], v[58:59], v[42:43]
    v_pk_fma_f32 v[56:57], v[60:61], v[44:45], v[56:57]
    v_pk_fma_f32 v[58:59], v[62:63], v[46:47], v[58:59]
    {R[0]}
    {R[1]}
    v_permlane32_swap_b32 v56, v57
    v_permlane32_swap_b32 v58, v59
    {R[2]}
    v_add_f32 v56, v56, v57
    v_add_f32 v58, v58, v59
    {R[3]}
    {R[4]}
    v_permlane16_swap_b32 v56, v58
    {R[5]}
    v_add_f32 v56, v56, v58
    {R[6]}
    {R[7]}
    v_add_f32_dpp v56, v56, v56 row_ror:8 row_mask:0xf bank_mask:0xf
    {R[8]}
    """)
    e(f"""
    v_cvt_pk_bf16_f32 v56, v56, v56
    ds_write_b16 v27, v56
    s_mov_b64 exec, 1
    ds_add_u32 v1, v30 offset:{F_O}
    s_mov_b64 exec, -1
    s_mov_b32 s56, 0x000f000f
    s_mov_b32 s57, 0x000f000f
    """)
    spin_ge(1, F_O, 4, 6, extra="ds_read_b128 v[40:43], v28\nds_read_b128 v[44:47], v28 offset:64")
    if cfg.late_wo:
        e("""
        v_min3_i32 v152, v152, v153, v154
        v_min_i32 v152, v152, v155
        v_cmp_le_i32 vcc, s58, v152
        s_cbranch_vccz L_wolate
        L_wook:""")
    for t in range(2):
        for ee in range(2):
            r = 64 + 8*ee + 4*t
            a = 144 + 4*ee
            e(f"v_mfma_f32_16x16x32_bf16 v[{a}:{a+3}], v[{r}:{r+3}], v[{40+4*t}:{43+4*t}], {f'v[{a}:{a+3}]' if t else 0}")
    e(f"""
    s_mov_b64 exec, s[56:57]
    s_nop 6
    """)
    for k in range(4):
        e(f"v_cndmask_b32 v{144+k}, v{144+k}, v{148+k}, s[52:53]")
    tag_insert(144, 4)
    e(f"""
    {"s_bitcmp1_b32 s32, 2; s_cbranch_scc1 L_end".replace("; ", chr(10)) if cfg.hack4 == 9 else ""}
    {"s_bitcmp1_b32 s32, 2; s_cselect_b64 exec, 0, exec".replace("; ", chr(10)) if cfg.hack4 else ""}
    buffer_store_dwordx4 v[144:147], v23, s[{SRD_WS}:{SRD_WS+3}], 0 offen sc1
    """)
    if cfg.clean == 1:
        e(f"s_mov_b32 s56, 0x00ff00ff\ns_mov_b32 s57, 0x00ff00ff\ns_mov_b64 exec, s[56:57]\nbuffer_store_dwordx4 v[156:159], v22, s[{SRD_WS}:{SRD_WS+3}], 0 offen sc1\ns_waitcnt vmcnt(1)")
    elif cfg.h3gate == 2: e("s_waitcnt vmcnt(0)")
    if cfg.clean == 2:
        e(f"s_mov_b32 s56, 0x00ff00ff\ns_mov_b32 s57, 0x00ff00ff\ns_mov_b64 exec, s[56:57]\nbuffer_store_dwordx4 v[156:159], v22, s[{SRD_WS}:{SRD_WS+3}], 0 offen sc1")
    if cfg.h3gate: e(f"s_mov_b64 exec, 1\nds_add_u32 v1, v30 offset:{F_K}")
    stamp(7)
    stamps_out(8)
    e("L_end:\ns_endpgm")
    if cfg.late_wo:
        e("L_wolate:")
        spin_land(58, 6)
        wofr()
        e("s_waitcnt lgkmcnt(0)\ns_branch L_wook")
    e("L_codeend:")
    if cfg.skip:
        res = []; sect = None
        for ln in out:
            t = ln.strip()
            if t.endswith(":"): sect = t[:-1]
            drop = False
            isg = t.startswith("buffer_load_dwordx4 v[") and "s[36:39]" in t
            if isg and sect in ("L_qretry",) and 'q' in cfg.skip: drop = True
            if isg and sect in ("L_hretry",) and 'h' in cfg.skip: drop = True
            if isg and sect in ("L_sretry",) and 's' in cfg.skip: drop = True
            if isg and sect in ("L_fretry",) and 'f' in cfg.skip: drop = True
            if t.startswith("s_cbranch_scc0 L_qretry") and 'q' in cfg.skip: drop = True
            if t.startswith("s_cbranch_scc0 L_hretry") and 'h' in cfg.skip: drop = True
            if t.startswith("s_cbranch_scc0 L_sretry") and 's' in cfg.skip: drop = True
            if t.startswith("s_cbranch_scc0 L_fretry") and 'f' in cfg.skip: drop = True
            if 'b' in cfg.skip and t.startswith("buffer_store_dwordx4") and "sc1" in t and ("v[56:59]" in t and sect == "L_pubB"): drop = True
            if 'a' in cfg.skip and t.startswith("buffer_store_dwordx4") and "sc1" not in t and ("v[56:59]" in t or "v[64:67]" in t or "v29" in t): drop = True
            if 'q' in cfg.skip and t.startswith("s_cbranch_vccz L_q"): ln = ln.replace("s_cbranch_vccz", "s_branch")
            if 'k' in cfg.skip and t.startswith("ds_read_b128 v[1") and "v1 offset" not in t: drop = True
            if 'v' in cfg.skip and t.startswith("ds_read_b64_tr_b16 v[1"): drop = True
            if not drop: res.append(ln)
        out[:] = res
    if cfg.mark:
        res = []; k = 0
        for ln in out:
            res.append(ln)
            if ln.strip() == f"s_mov_b32 s{sCAP}, 0":
                k += 1
                res += [f"    v_mov_b32 v164, {4*k}", "    v_mov_b32 v165, 1", "    global_atomic_add v164, v165, s[26:27]"]
        out[:] = res
    body = "\n".join(out)
    hdr = open("recurrent_scan__sliding_block_cached__dense_activation_squared_relu__decode.s.ref").read().split("; Override launch")[0]
    return f"""{hdr}; Single fused launch: 256 workgroups (one per CU) x 10 waves.
; @launch grid=(256,1,1) block=(640,1,1) lds={LDS_TOTAL}
.amdgcn_target "amdgcn-amd-amdhsa--gfx950"
.text
.globl {KNAME}
.p2align 8
.type {KNAME},@function
{KNAME}:
{body}
.section .rodata,"a"
.p2align 6
.amdhsa_kernel {KNAME}
  .amdhsa_next_free_vgpr 168
  .amdhsa_next_free_sgpr 102
  .amdhsa_accum_offset 168
  .amdhsa_group_segment_fixed_size 0
  .amdhsa_kernarg_size 104
  .amdhsa_user_sgpr_count 2
  .amdhsa_user_sgpr_kernarg_segment_ptr 1
  .amdhsa_system_sgpr_workgroup_id_x 1
.end_amdhsa_kernel
"""

if __name__ == "__main__":
    path = sys.argv[1]
    for a in sys.argv[2:]:
        k, v = a.split("=")
        cur = getattr(cfg, k)
        setattr(cfg, k, type(cur)(int(v)) if isinstance(cur, (bool, int)) else v.replace("+", " "))
    open(path, "w").write(build())
```

```python
import sys
KNAME = "recurrent_scan__sliding_block_cached__dense_activation_squared_relu__decode_kernel"

cfg_dbgsel = {6: [(0,0,1),(0,1,0),(1,2,1),(1,3,0),(2,4,0),(4,5,1),(4,6,0),(5,7,0)], 7: [(4,8,0),(5,9,0),(6,10,0)], 8: [(5,11,0),(6,12,1),(6,13,0),(7,14,0)]}
class Cfg:
    early = False
    ampw = -1
    ampk = 0
    ampg = -1
    dbg = False
    diag = False
    lw = 5
    lw2 = 5
    win = 20
    qlead = 7
    woe = 0
    lprio = 3
    skew = 0
    skewg = -1
    bpos = 0
    pps = 0
    trace = 0
    hack4 = 0
    slpc = 0
    vlf = 0
    cprio = 1
    touch = ''
    clean = 0
    epst = ''
    outst = ''
    nprio = 1
    late_wo = 1
    pp2 = 1
    pp3 = 1
    gap3 = 0
    epf = 1
    dirty = 0
    h3gate = 2
    h3slp = 0
    h3loop = 0
    o2loop = 0
    mark = 0
    ntmo = 4
    skip = ''
    only = 0
    pfi = 28
    slp = 0
    win2 = 20
    w2at = 4
    slead = 8
    flead = 10
    hgate = 15
    ldA = 'sc1'
    pf = 1
    first = 'sc1'
    ntK = "nt"; ntW = "nt"
    rotmul = 5
cfg = Cfg()

L_K, L_V, L_WO = 0, 65536, 131072
SCR = 147456
L_QS = SCR
L_PB = SCR + 1152
L_SB = L_PB + 2048
L_WT = L_SB + 128
L_OB = L_WT + 512
L_ACTA = L_OB + 256
L_ACTB = L_ACTA + 576
L_FL = L_ACTB + 576
L_LAND = L_FL + 64
LDS_TOTAL = L_LAND + 16 + 256
F_Q, F_K, F_P, F_V, F_T, F_WO, F_W, F_O = [4*k for k in range(8)]
W_ST, W_QP, W_HP, W_OP, B_OFF, W_SP, W_FP = 0x8000, 0x10000, 0x30000, 0x40000, 0xC0000, 0x180000, 0x1C0000
WS_BYTES = 0x200000
SPIN_CAP = 1000002
LOG2E = 0x3fb8aa3b
SCALE = 0x3db504f3

sWAVE, sG, sI, sNON = 30, 31, 32, 33
sT0, sT1, sT2, sT3 = 34, 33, 40, 79
TMASK, VMASK, TB = 0x7ff, 0xfffff800, 11
SRD_WS = 36
sSLOT = 41
sRS = 42
sCAP = 43
sVB, sOFF, sBOFF = 71, 72, 73
sKEND = 70
O_LAND = 64
STAMP0 = 80

out = []
def e(s):
    for ln in s.strip("\n").split("\n"):
        out.append("    " + ln.strip() if not ln.strip().endswith(":") else ln.strip())

def estamp(k):
    if cfg.diag and cfg.early:
        e(f"s_memrealtime s[{STAMP0+2*k}:{STAMP0+2*k+1}]")
def stamp(k):
    if cfg.diag and (not cfg.early or k == 0 or k >= 6):
        e(f"s_memrealtime s[{STAMP0+2*k}:{STAMP0+2*k+1}]")

def stamps_out(n):
    if not cfg.diag: return
    if cfg.ampw >= 0:
        L = lbl("L_amp"); Ls = lbl("L_amps")
        if cfg.ampk < n:
            e(f"""
            s_waitcnt lgkmcnt(0)
            s_cmp_eq_u32 s{sWAVE}, {cfg.ampw}
            s_cbranch_scc0 {Ls}
            {f's_cmp_eq_u32 s{sG}, {cfg.ampg}; s_cbranch_scc0 {Ls}'.replace('; ', chr(10)) if cfg.ampg >= 0 else ''}
            s_sub_u32 s60, s{STAMP0+2*cfg.ampk}, s{STAMP0}
            s_min_u32 s60, s60, 20000
            s_mul_i32 s60, s60, 10
            s_memrealtime s[62:63]
            s_waitcnt lgkmcnt(0)
            {L}:
            s_memrealtime s[68:69]
            s_waitcnt lgkmcnt(0)
            s_sub_u32 s61, s68, s62
            s_cmp_lt_u32 s61, s60
            s_cbranch_scc1 {L}
            {Ls}:
            """)
        return
    if cfg.dbg:
        sel = cfg_dbgsel[n] if n in cfg_dbgsel else []
        e("s_waitcnt lgkmcnt(0)\ns_mov_b64 exec, 1\nv_mov_b32 v1, 0")
        if n == 8: e(f"s_cmp_eq_u32 s{sWAVE}, 2\ns_cbranch_scc0 L_dbgskip{len(out)}"); lab = f"L_dbgskip{len(out)-2}"
        for (k, slot, mn) in sel:
            e(f"v_mov_b32 v4, s{STAMP0+2*k}")
            if mn: e("v_not_b32 v4, v4")
            e(f"global_atomic_umax v1, v4, s[26:27] offset:{4*slot}\ns_nop 1")
        if n == 8: e(f"{lab}:")
        e("s_waitcnt vmcnt(0)")
        return
    L = lbl("L_dly")
    e(f"""
    s_waitcnt lgkmcnt(0)
    s_add_u32 s61, s{STAMP0}, 1600
    {L}:
    s_sleep 8
    s_memrealtime s[68:69]
    s_waitcnt lgkmcnt(0)
    s_cmp_lt_u32 s68, s61
    s_cbranch_scc1 {L}
    s_lshl_b32 s60, s2, 4
    s_add_u32 s60, s60, s{sWAVE}
    s_lshl_b32 s60, s60, 6
    s_add_u32 s68, s28, s60
    s_addc_u32 s69, s29, 0
    s_add_u32 s68, s68, 0x10000000
    s_addc_u32 s69, s69, 0
    s_mov_b64 exec, 1
    v_mov_b32 v1, 0
    """)
    for k in range(8):
        if k < n:
            e(f"v_mov_b32 v4, s{STAMP0+2*k}\nv_mov_b32 v5, s{STAMP0+2*k+1}")
        else:
            e(f"v_mov_b32 v4, s{STAMP0}\nv_mov_b32 v5, s{STAMP0+1}")
        e(f"global_store_dwordx2 v1, v[4:5], s[68:69] offset:{8*k}\ns_nop 1")
    e("s_waitcnt vmcnt(0)")

lblc = [0]
def lbl(p="L"):
    lblc[0] += 1
    return f"{p}_{lblc[0]}"

def flag_set(vfl, off, vval):
    e(f"s_mov_b64 exec, 1\nds_write_b32 v{vfl}, v{vval} offset:{off}\ns_mov_b64 exec, -1")
def flag_add(vfl, off, vone):
    e(f"s_mov_b64 exec, 1\nds_add_u32 v{vfl}, v{vone} offset:{off}\ns_mov_b64 exec, -1")
def spin_ge(vfl, off, target, vtmp, extra="", slp=0):
    L = lbl("L_sp")
    e(f"""{L}:
    {f's_sleep {slp}' if slp else ''}
    ds_read_b32 v{vtmp}, v{vfl} offset:{off}
    {extra}
    s_waitcnt lgkmcnt(0)
    v_cmp_le_u32 vcc, {target}, v{vtmp}
    s_cbranch_vccz {L}""")

def spin_land(sreg, vtmp, extra="", slp=0):
    L = lbl("L_sl")
    e(f"""{L}:
    {f's_sleep {slp}' if slp else ''}
    ds_read_b128 v[160:163], v1 offset:{O_LAND}
    {extra}
    s_waitcnt lgkmcnt(0)
    v_min3_i32 v160, v160, v161, v162
    v_min_i32 v160, v160, v163
    v_cmp_le_i32 vcc, s{sreg}, v160
    s_cbranch_vccz {L}""")

def get_loc(vtmp, slp=None):
    spin_ge(1, F_Q, 1, vtmp, slp=cfg.slp if slp is None else slp)
    e(f"v_readfirstlane_b32 s{sOFF}, v{vtmp}\ns_nop 3\ns_and_b32 s{sOFF}, s{sOFF}, -2")

def tag_check(regs, acc, first):
    T = [sT0, sT1, sT2, sT3]
    for k in range(4):
        if first and k == 0:
            e(f"v_xor_b32 v{acc}, s{T[0]}, v{regs}")
        else:
            e(f"v_bitop3_b32 v{acc}, v{regs+k}, s{T[k]}, v{acc} bitop3:0xbe")
def tag_branch(acc, Lretry, toggle=False, masked=False, slp=0):
    Ld = lbl("L_ok")
    e(f"""
    v_and_b32 v{acc}, v4, v{acc}
    v_cmp_ne_u32 vcc, 0, v{acc}
    s_cbranch_vccz {Ld}""")
    if masked: e("s_mov_b64 exec, vcc")
    if slp: e(f"s_sleep {slp}")
    if toggle:
        e(f"""
        s_and_b32 s{sOFF}, s{sCAP}, 3
        s_cselect_b32 s{sOFF}, 0, s{sBOFF}""")
    e(f"""
    s_sub_u32 s{sCAP}, s{sCAP}, 1
    s_cbranch_scc0 {Lretry}
    s_mov_b32 s{sCAP}, 0
    {Ld}:""")
    if masked: e("s_mov_b64 exec, -1")
def tag_insert(regs, vff):
    T = [sT0, sT1, sT2, sT3]
    for k in range(4):
        e(f"v_bfi_b32 v{regs+k}, v{vff}, s{T[k]}, v{regs+k}")

def nonce_from_epoch():
    e(f"""
    s_add_u32 s34, s34, 0x01401801
    s_addc_u32 s35, s35, 14
    s_lshr_b32 s33, s34, 11
    s_lshr_b64 s[46:47], s[34:35], 22
    s_mov_b32 s40, s46
    s_lshr_b32 s79, s35, 1
    """)

def srd(r, lo, hi, nbytes):
    pass

def reduce4_rows(x, t):
    e(f"""
    s_nop 1
    v_permlane32_swap_b32 v{x}, v{x+1}
    v_permlane32_swap_b32 v{x+2}, v{x+3}
    s_nop 0
    v_add_f32 v{x}, v{x}, v{x+1}
    v_add_f32 v{x+2}, v{x+2}, v{x+3}
    s_nop 1
    v_permlane16_swap_b32 v{x}, v{x+2}
    s_nop 0
    v_add_f32 v{x}, v{x}, v{x+2}
    """)
def dpp_add(x, rots):
    for r in rots:
        e(f"s_nop 1\nv_add_f32_dpp v{x}, v{x}, v{x} row_ror:{r} row_mask:0xf bank_mask:0xf")
def dpp_max(x, rots):
    for r in rots:
        e(f"s_nop 1\nv_max_f32_dpp v{x}, v{x}, v{x} row_ror:{r} row_mask:0xf bank_mask:0xf")
def rnd_bf16(x):
    e(f"v_cvt_pk_bf16_f32 v{x}, v{x}, v{x}\nv_and_b32 v{x}, 0xffff0000, v{x}")

def build():
    out.clear()
    stamp(0)
    nt = cfg.ntK
    W = cfg.lw; W2 = cfg.lw2
    e(f"""
    s_load_dwordx16 s[4:19], s[0:1], 0
    s_load_dwordx8 s[20:27], s[0:1], 64
    s_load_dwordx2 s[28:29], s[0:1], 96
    v_readfirstlane_b32 s{sWAVE}, v0
    s_cmpk_ge_u32 s2, 0x100
    s_cbranch_scc1 L_end
    v_and_b32 v0, 63, v0
    s_and_b32 s{sG}, s2, 7
    s_lshr_b32 s{sI}, s2, 3
    s_cmpk_ge_u32 s{sWAVE}, 0x100
    s_cbranch_scc1 L_notloader
    v_lshrrev_b32 v12, 3, v0
    s_lshl_b32 s64, s{sWAVE}, 4
    {"s_getpc_b64 s[48:49]; v_lshl_add_u32 v13, v12, 7, s64; global_load_dword v166, v13, s[48:49]".replace("; ", chr(10)) if cfg.epf else ""}
    v_and_b32 v13, 7, v0
    v_and_b32 v14, 2, v12
    v_xor_b32 v13, v13, v14
    v_lshlrev_b32 v13, 4, v13
    s_and_b32 s63, s{sWAVE}, 64
    v_xor_b32 v13, s63, v13
    v_lshl_add_u32 v10, v12, 13, v13
    s_lshr_b32 s45, s2, 6
    s_lshl_b32 s45, s45, 20
    s_and_b32 s46, s{sI}, 7
    s_lshl3_add_u32 s46, s{sG}, s46
    s_lshl_b32 s46, s46, 7
    s_add_u32 s45, s45, s46
    s_mov_b32 s58, {127*8192+128}
    s_mov_b32 s59, 0x20000
    s_lshl4_add_u32 m0, s{sWAVE}, {L_WO}
    s_lshl_b32 s47, s{sWAVE}, 10
    s_waitcnt lgkmcnt(0)
    s_add_u32 s56, s10, s45
    s_addc_u32 s57, s11, 0
    {'s_memrealtime s[82:83]' if cfg.early else ''}
    L_ldA:
    buffer_load_dwordx4 v10, s[56:59], s47 offen {cfg.ntW} lds
    s_addk_i32 m0, 0x1000
    s_add_u32 s47, s47, 0x40000
    s_bitcmp0_b32 s47, 20
    s_cbranch_scc1 L_ldA
    {'s_memrealtime s[84:85]' if cfg.early else ''}
    s_branch L_ld2
    .p2align 8
    """)
    e(f"""L_notloader:
    v_mov_b32 v1, {L_FL}
    v_mov_b32 v5, 0
    v_lshl_add_u32 v6, v0, 2, v1
    ds_write_b32 v6, v5
    s_lshr_b32 s{sWAVE}, s{sWAVE}, 6
    """)
    if cfg.pf:
        e(f"""
        s_cmp_eq_u32 s{sWAVE}, 9
        s_cbranch_scc0 L_nopf
        s_getpc_b64 s[46:47]
        L_pc:
        s_mul_i32 s45, s{sI}, {2 if cfg.epf else 3}
        {'s_add_u32 s45, s45, 30' if cfg.epf else ''}
        v_min_u32 v5, {1 if cfg.epf else 2}, v0
        v_add_u32 v5, s45, v5
        v_lshlrev_b32 v5, 7, v5
        v_min_u32 v5, L_codeend-L_pc-4, v5
        global_load_dword v166, v5, s[46:47]
        L_nopf:""")
    e(f"""
    v_lshlrev_b32 v5, 5, v0
    s_cmp_ge_u32 s{sWAVE}, 6
    s_waitcnt lgkmcnt(0)
    s_load_dwordx2 s[34:35], s[28:29], 0
    s_cbranch_scc1 L_nox
    global_load_dwordx4 v[8:11], v5, s[4:5]
    global_load_dwordx4 v[12:15], v5, s[4:5] offset:16
    L_nox:
    s_barrier
    s_branch L_nl2
    """)
    def flagw():
        e("ds_write_b32 v16, v15\nv_add_u32 v15, 1, v15")
        if cfg.trace:
            e("s_memrealtime s[66:67]\ns_waitcnt lgkmcnt(0)\ns_mov_b64 s[68:69], exec\ns_lshl_b64 exec, 1, s70\nv_mov_b32 v20, s66\ns_mov_b64 exec, s[68:69]\ns_add_u32 s70, s70, 1")
    e(f"""L_ld2:
    s_mul_i32 s44, s2, {cfg.rotmul}
    s_bfe_u32 s{sRS}, s44, 0x20002
    v_and_b32 v2, 15, v0
    v_lshrrev_b32 v3, 4, v0
    s_add_u32 s62, s{sRS}, 3
    s_and_b32 s62, s62, 3
    s_add_u32 s62, s62, 4
    s_lshl_b32 s62, s62, 14
    v_mov_b32 v1, {L_FL}
    s_lshr_b32 s45, s{sWAVE}, 4
    s_add_u32 s45, s45, {L_LAND}
    v_lshl_add_u32 v16, v0, 2, v1
    v_add_u32 v16, {O_LAND+16}, v16
    v_writelane_b32 v16, s45, 0
    v_mov_b32 v15, {5-W}
    {"s_mov_b32 s70, 0; v_mov_b32 v20, 0".replace("; ", chr(10)) if cfg.trace else ""}
    s_setprio {cfg.lprio}
    s_barrier
    """)
    estamp(3)
    if cfg.early:
        e("s_waitcnt vmcnt(3)"); estamp(4); e("s_waitcnt vmcnt(0)"); estamp(5)
    stamp(1)
    def Bblock():
        e(f"""
        s_cmp_lt_u32 s{sG}, 7
        s_cbranch_scc0 L_ld_noB
        s_add_u32 m0, s62, s64
        s_and_b32 s65, s{sI}, 15
        s_lshl4_add_u32 s65, s{sG}, s65
        s_cmp_lt_u32 s{sI}, 16
        s_cbranch_scc0 L_ld_w2
        s_and_b32 s45, s65, 3
        s_mul_i32 s45, s45, {128*3584}
        s_lshr_b32 s46, s65, 2
        s_lshl_b32 s46, s46, 7
        s_add_u32 s45, s45, s46
        s_add_u32 s56, s16, s45
        s_addc_u32 s57, s17, 0
        v_mul_u32_u24 v10, 3584, v12
        v_add_u32 v10, v10, v13
        s_mul_i32 s47, s64, 28
        s_mov_b32 s46, {32*3584}
        s_branch L_ld_B
        L_ld_w2:
        s_lshr_b32 s45, s65, 3
        s_lshl_b32 s45, s45, 17
        s_and_b32 s46, s65, 7
        s_lshl_b32 s46, s46, 7
        s_add_u32 s45, s45, s46
        s_add_u32 s56, s20, s45
        s_addc_u32 s57, s21, 0
        v_lshl_add_u32 v10, v12, 10, v13
        s_lshl_b32 s47, s64, 3
        s_mov_b32 s46, 0x8000
        L_ld_B:
        s_sub_u32 s58, {512*1792*2}, s45
        s_mov_b32 s60, 0
        L_ldB:
        s_waitcnt vmcnt({W-1})
        buffer_load_dwordx4 v10, s[56:59], s47 offen {cfg.ntW} lds
        s_addk_i32 m0, 0x1000
        s_add_u32 s47, s47, s46""")
        flagw()
        e(f"""
        s_add_u32 s60, s60, 1
        s_cmp_lt_u32 s60, 4
        s_cbranch_scc1 L_ldB
        L_ld_noB:
        """)
    def Kblock():
        e(f"""
        v_lshlrev_b32 v14, 8, v3
        v_xor_b32 v17, v3, v2
        v_lshl_add_u32 v4, v17, 4, v14
        v_xor_b32 v4, s{sWAVE}, v4
        s_lshr_b32 s45, s{sI}, 4
        s_lshl_b32 s45, s45, 26
        s_lshl_b32 s46, s{sG}, 23
        s_add_u32 s45, s45, s46
        s_and_b32 s46, s{sI}, 15
        s_lshl_b32 s46, s46, 16
        s_add_u32 s45, s45, s46
        s_add_u32 s45, s45, {28672*256}
        s_mov_b32 s50, 0x10000
        s_mov_b32 s51, 0x20000
        s_add_u32 s48, s6, s45
        s_addc_u32 s49, s7, 0
        s_and_b32 s44, s44, 15
        s_lshl_b32 s47, s44, 12
        s_add_u32 s47, s47, s64
        s_mov_b32 s60, 0
        L_ldK:
        s_mov_b32 m0, s47
        s_add_u32 s60, s60, 1
        s_waitcnt vmcnt({W-1})
        buffer_load_dwordx4 v4, s[48:51], s47 offen {nt} lds""")
        flagw()
        e(f"""
        s_addk_i32 s47, 0x1000
        s_and_b32 s47, s47, 0xffff
        s_cmp_lt_u32 s60, 16
        s_cbranch_scc1 L_ldK
        """)
    if cfg.bpos:
        Kblock(); e("s_mov_b32 s66, s45"); Bblock(); e("s_mov_b32 s45, s66")
    else:
        Bblock(); Kblock()
    stamp(2)
    e(f"""
    v_lshlrev_b32 v17, 1, v3
    v_xor_b32 v17, v17, v2
    v_lshl_add_u32 v8, v17, 4, v14
    s_lshl_b32 s63, s63, 1
    v_xor_b32 v8, s63, v8
    v_lshlrev_b32 v14, 10, v3
    v_lshl_add_u32 v10, v17, 4, v14
    s_and_b32 s63, s{sWAVE}, 0x80
    v_xor_b32 v10, s63, v10
    s_add_u32 s52, s8, s45
    s_addc_u32 s53, s9, 0
    s_mov_b32 s54, 0x10000
    s_mov_b32 s55, 0x20000
    s_mov_b32 s60, 0
    s_and_b32 s61, s44, 3
    """)
    def vloop(name, end, win, noflag=False):
        e(f"""{name}:
        s_lshr_b32 s47, s60, 2
        s_add_u32 s47, s47, s{sRS}
        s_and_b32 s47, s47, 3
        s_add_u32 s62, s61, s60
        s_and_b32 s62, s62, 3
        s_lshl2_add_u32 s47, s47, s62
        s_lshl_b32 s47, s47, 12
        s_add_u32 s47, s47, s64
        s_add_u32 m0, s47, {L_V}
        s_add_u32 s60, s60, 1
        s_waitcnt vmcnt({win-1})
        buffer_load_dwordx4 v8, s[52:55], s47 offen {nt} lds""")
        if not noflag: flagw()
        e(f"""
        s_cmp_lt_u32 s60, {end}
        s_cbranch_scc1 {name}
        """)
    def woloop(name, g0, g1):
        if g0 == g1: return
        e(f"""
        s_add_u32 m0, s64, {L_WO + 4096*g0}
        s_lshl_b32 s47, s64, 2
        s_add_u32 s47, s47, {0x20000*g0}
        {name}:
        s_waitcnt vmcnt({W2-1})
        buffer_load_dwordx4 v10, s[56:59], s47 offen {cfg.ntW} lds
        s_addk_i32 m0, 0x1000
        s_add_u32 s47, s47, 0x20000""")
        flagw()
        e(f"""
        s_cmp_lt_u32 s47, {0x20000*g1}
        s_cbranch_scc1 {name}""")
    if W2 > W:
        assert cfg.w2at + (W2 - W) <= 12
        if cfg.w2at > 0: vloop("L_ldV0", cfg.w2at, W)
        vloop("L_ldV0b", cfg.w2at + W2 - W, W2, noflag=True)
        if cfg.w2at + W2 - W < 12: vloop("L_ldV1", 12, W2)
    elif W2 < W:
        vloop("L_ldV0", cfg.w2at, W)
        for k in range(W - W2):
            e(f"s_waitcnt vmcnt({W-1-k})")
            flagw()
        if cfg.w2at < 12: vloop("L_ldV1", 12, W2)
    else:
        vloop("L_ldV1", 12, W)
    e(f"""
    s_lshl_b32 s45, s{sG}, 19
    s_lshr_b32 s46, s{sI}, 2
    s_lshl_b32 s46, s46, 14
    s_add_u32 s45, s45, s46
    s_and_b32 s46, s{sI}, 3
    s_lshl_b32 s46, s46, 8
    s_add_u32 s45, s45, s46
    s_add_u32 s56, s12, s45
    s_addc_u32 s57, s13, 0
    s_mov_b32 s58, {(3*128+15)*1024+256}
    """)
    spin_ge(1, F_T, 2, 17)
    woloop("L_ldWO1", 0, cfg.woe)
    vloop("L_ldV2", 16, W2)
    woloop("L_ldWO2", cfg.woe, 4)
    stamp(3)
    if cfg.vlf:
        assert W2 - 1 >= 4 - cfg.woe
        e("v_mov_b32 v18, 1\ns_mov_b64 exec, 1")
    for k in range(W2-1, -1, -1):
        e(f"s_waitcnt vmcnt({k})")
        if k == 4 - cfg.woe and cfg.vlf: e(f"ds_add_u32 v1, v18 offset:{F_WO}")
        flagw()
        if k == 4 - cfg.woe: stamp(4)
    stamp(5)
    if cfg.trace:
        e(f"""s_mov_b64 exec, -1
        s_lshl_b32 s60, s2, 10
        s_lshl_b32 s61, s{sWAVE}, 2
        s_add_u32 s60, s60, s61
        s_add_u32 s68, s28, s60
        s_addc_u32 s69, s29, 0
        s_add_u32 s68, s68, 0x18000000
        s_addc_u32 s69, s69, 0
        v_lshlrev_b32 v21, 2, v0
        global_store_dword v21, v20, s[68:69]""")
    if cfg.diag: e(f"s_lshr_b32 s{sWAVE}, s{sWAVE}, 6")
    stamps_out(6)
    e("s_endpgm")

    e(f"""L_nl2:
    {f"s_mov_b64 exec, 1; v_mov_b32 v5, 2; ds_write_b32 v1, v5 offset:{F_T}; s_waitcnt vmcnt(0) lgkmcnt(0); s_endpgm".replace("; ", chr(10)) if cfg.only == 1 else ""}
    s_setprio {cfg.nprio}
    v_and_b32 v2, 15, v0
    v_lshrrev_b32 v3, 4, v0
    s_mul_i32 s44, s2, {cfg.rotmul}
    s_bfe_u32 s{sRS}, s44, 0x20002
    s_lshl_b32 s{sSLOT}, s{sG}, 5
    s_add_u32 s{sSLOT}, s{sSLOT}, s{sI}
    s_mov_b32 s{sCAP}, {SPIN_CAP}
    s_cmp_lt_u32 s{sG}, 7
    s_cselect_b32 s{sVB}, 24, 20
    s_mov_b32 s{sKEND}, {'20' if cfg.bpos else f's{sVB}'}
    v_mov_b32 v4, {TMASK}
    s_mov_b32 s{SRD_WS}, s28
    s_mov_b32 s{SRD_WS+1}, s29
    s_mov_b32 s{SRD_WS+2}, {WS_BYTES}
    s_mov_b32 s{SRD_WS+3}, 0x20000
    s_mov_b32 s{sOFF}, 0
    s_mov_b32 s{sBOFF}, {B_OFF}
    s_cmp_ge_u32 s{sWAVE}, 6
    s_cbranch_scc1 L_compute
    """)
    e(f"""
    s_cmp_eq_u32 s{sWAVE}, 4
    s_cbranch_scc0 L_roleB
    s_mov_b32 s44, 0
    s_lshr_b32 s53, s{sI}, 3
    s_lshl_b32 s52, s{sSLOT}, 9
    s_add_u32 s52, s52, {W_QP}
    s_mov_b32 s54, {L_WO}
    s_mov_b32 s55, {L_ACTA}
    s_mov_b32 s45, 4
    s_branch L_tilecommon
    L_roleB:
    s_add_u32 s54, s{sRS}, 3
    s_and_b32 s54, s54, 3
    s_add_u32 s54, s54, 4
    s_lshl_b32 s54, s54, 14
    s_mov_b32 s55, {L_ACTB}
    s_mov_b32 s45, {24 if cfg.bpos else 8}
    s_and_b32 s52, s{sI}, 15
    s_lshl4_add_u32 s52, s{sG}, s52
    s_lshr_b32 s44, s{sI}, 4
    s_and_b32 s53, s52, 3
    s_lshr_b32 s46, s52, 3
    s_lshl_b32 s52, s52, 9
    s_cmp_eq_u32 s44, 0
    s_cselect_b32 s53, s53, s46
    s_mov_b32 s46, {W_FP}
    s_cselect_b32 s46, {W_HP}, s46
    s_add_u32 s52, s52, s46
    s_cmp_eq_u32 s{sG}, 7
    s_cselect_b32 s44, 2, s44
    L_tilecommon:
    """)
    estamp(2)
    stamp(1)
    e(f"""
    v_lshrrev_b32 v5, 2, v2
    v_lshl_add_u32 v5, v3, 3, v5
    v_lshlrev_b32 v5, 7, v5
    v_and_b32 v6, 3, v2
    v_lshl_add_u32 v5, v6, 3, v5
    v_add_u32 v5, s54, v5
    v_lshrrev_b32 v6, 3, v2
    v_and_b32 v7, 1, v3
    v_lshl_or_b32 v6, v7, 1, v6
    """)
    for u in range(4):
        e(f"v_xor_b32 v7, {u}, v6\nv_lshl_add_u32 v{16+u}, v7, 5, v5")
    e(f"""
    v_and_b32 v5, 1, v0
    v_mul_u32_u24 v5, 288, v5
    v_lshl_add_u32 v5, v3, 4, v5
    v_add_u32 v20, s55, v5
    v_mov_b32 v21, 1
    v_mov_b32 v60, 0
    s_waitcnt lgkmcnt(0)
    """)
    nonce_from_epoch()
    e(f"""
    s_cmp_eq_u32 s44, 0
    s_waitcnt vmcnt(0)
    s_cbranch_scc0 L_noLN
    """)
    estamp(4)
    for k in range(8):
        e(f"v_lshlrev_b32 v{24+2*k}, 16, v{8+k}\nv_and_b32 v{25+2*k}, 0xffff0000, v{8+k}")
    e("v_pk_add_f32 v[40:41], v[24:25], v[26:27]")
    for k in range(2, 8):
        e(f"v_pk_add_f32 v[40:41], v[40:41], v[{24+2*k}:{25+2*k}]")
    e("v_add_f32 v40, v40, v41")
    dpp_add(40, (8, 4, 2, 1))
    e("v_mov_b32 v41, v40\ns_nop 1\nv_permlane16_swap_b32 v40, v41\ns_nop 0\nv_add_f32 v40, v40, v41")
    e("v_mul_f32 v40, 0xbb000000, v40\nv_mov_b32 v41, v40")
    e("v_pk_add_f32 v[42:43], v[24:25], v[40:41]\nv_pk_mul_f32 v[44:45], v[42:43], v[42:43]")
    for k in range(1, 8):
        e(f"v_pk_add_f32 v[42:43], v[{24+2*k}:{25+2*k}], v[40:41]\nv_pk_fma_f32 v[44:45], v[42:43], v[42:43], v[44:45]")
    e("v_add_f32 v44, v44, v45")
    dpp_add(44, (8, 4, 2, 1))
    e("v_mov_b32 v45, v44\ns_nop 1\nv_permlane16_swap_b32 v44, v45\ns_nop 0\nv_add_f32 v44, v44, v45")
    e("v_mul_f32 v44, 0x3b000000, v44")
    rnd_bf16(44)
    e("v_add_f32 v44, 0x3727c5ac, v44")
    rnd_bf16(44)
    e("v_sqrt_f32 v44, v44\ns_nop 0")
    rnd_bf16(44)
    e("v_rcp_f32 v44, v44")
    rnd_bf16(40)
    e("v_mov_b32 v41, v40\nv_mov_b32 v45, v44")
    for k in range(8):
        e(f"v_pk_add_f32 v[42:43], v[{24+2*k}:{25+2*k}], v[40:41]")
        e(f"v_cvt_pk_bf16_f32 v42, v42, v43\nv_and_b32 v43, 0xffff0000, v42\nv_lshlrev_b32 v42, 16, v42")
        e(f"v_pk_mul_f32 v[42:43], v[42:43], v[44:45]\nv_cvt_pk_bf16_f32 v{8+k}, v42, v43")
    e(f"""
    v_bfe_u32 v5, v0, 3, 2
    v_lshrrev_b32 v6, 5, v0
    v_mul_u32_u24 v6, 288, v6
    v_and_b32 v7, 7, v0
    v_lshl_add_u32 v6, v7, 5, v6
    v_add_u32 v6, s55, v6
    v_cmp_eq_u32 vcc, s53, v5
    s_and_saveexec_b64 s[56:57], vcc
    ds_write_b128 v6, v[8:11]
    ds_write_b128 v6, v[12:15] offset:16
    s_mov_b64 exec, -1
    L_noLN:
    """)
    stamp(2)
    e(f"""
    s_cmp_eq_u32 s44, 2
    s_cbranch_scc1 L_notile
    """)
    spin_land(45, 5, slp=cfg.slp)
    estamp(5)
    for u in range(4):
        for t in range(4):
            r = 64 + 16*u + 4*t
            e(f"ds_read_b64_tr_b16 v[{r}:{r+1}], v{16+u} offset:{t*4096}")
            e(f"ds_read_b64_tr_b16 v[{r+2}:{r+3}], v{16+u} offset:{t*4096+512}")
    e(f"""
    s_waitcnt lgkmcnt(0)
    L_notile:
    """)
    flag_add(1, F_T, 21)
    stamp(3)
    e(f"""
    s_cmp_eq_u32 s44, 1
    s_cbranch_scc0 L_noH
    """)
    e(f"""
    v_bfe_u32 v5, v0, 4, 1
    v_lshlrev_b32 v5, 11, v5
    v_lshrrev_b32 v6, 5, v0
    v_lshl_add_u32 v5, v6, 8, v5
    v_lshl_add_u32 v5, v2, 4, v5
    s_lshl_b32 s56, s53, 12
    s_add_u32 s56, s56, {W_HP}
    v_add_u32 v5, s56, v5
    v_and_b32 v7, 31, v0
    v_lshlrev_b32 v7, 3, v7
    s_lshl_b32 s56, s53, 8
    v_add_u32 v22, s56, v7
    global_load_dwordx2 v[22:23], v22, s[18:19]
    v_mul_u32_u24 v6, 288, v6
    v_add3_u32 v6, v6, v7, s55
    """)
    e(f"s_mov_b32 s45, {cfg.hgate}")
    spin_land(45, 7, slp=cfg.slp)
    e("L_hretry:")
    for k in range(4):
        e(f"buffer_load_dwordx4 v[{24+4*k}:{27+4*k}], v5, s[{SRD_WS}:{SRD_WS+3}], s{sOFF} offen offset:{512*k} sc1")
    e("s_waitcnt vmcnt(0)")
    for k in range(4): tag_check(24+4*k, 7, k == 0)
    e(f"""
    v_and_b32 v7, v4, v7
    v_cmp_ne_u32 vcc, 0, v7
    s_cbranch_vccz L_hok""")
    get_loc(7)
    e(f"""
    s_sub_u32 s{sCAP}, s{sCAP}, 1
    s_cbranch_scc0 L_hretry
    s_mov_b32 s{sCAP}, 0
    L_hok:""")
    for k in range(16): e(f"v_and_b32 v{24+k}, 0xfffff800, v{24+k}")
    e("""
    v_pk_add_f32 v[24:25], v[24:25], v[28:29]
    v_pk_add_f32 v[26:27], v[26:27], v[30:31]
    v_pk_add_f32 v[32:33], v[32:33], v[36:37]
    v_pk_add_f32 v[34:35], v[34:35], v[38:39]
    v_pk_add_f32 v[24:25], v[24:25], v[32:33]
    v_pk_add_f32 v[26:27], v[26:27], v[34:35]
    v_cvt_pk_bf16_f32 v24, v24, v25
    v_cvt_pk_bf16_f32 v26, v26, v27
    v_and_b32 v25, 0xffff0000, v24
    v_lshlrev_b32 v24, 16, v24
    v_and_b32 v27, 0xffff0000, v26
    v_lshlrev_b32 v26, 16, v26
    v_lshlrev_b32 v28, 16, v22
    v_and_b32 v29, 0xffff0000, v22
    v_lshlrev_b32 v30, 16, v23
    v_and_b32 v31, 0xffff0000, v23
    v_pk_add_f32 v[24:25], v[24:25], v[28:29]
    v_pk_add_f32 v[26:27], v[26:27], v[30:31]
    v_cvt_pk_bf16_f32 v24, v24, v25
    v_cvt_pk_bf16_f32 v26, v26, v27
    v_and_b32 v25, 0xffff0000, v24
    v_lshlrev_b32 v24, 16, v24
    v_and_b32 v27, 0xffff0000, v26
    v_lshlrev_b32 v26, 16, v26
    v_max_f32 v24, 0, v24
    v_max_f32 v25, 0, v25
    v_max_f32 v26, 0, v26
    v_max_f32 v27, 0, v27
    v_pk_mul_f32 v[24:25], v[24:25], v[24:25]
    v_pk_mul_f32 v[26:27], v[26:27], v[26:27]
    v_cvt_pk_bf16_f32 v24, v24, v25
    v_cvt_pk_bf16_f32 v25, v26, v27
    ds_write_b64 v6, v[24:25]
    L_noH:
    s_cmp_eq_u32 s44, 2
    s_cbranch_scc1 L_nopub
    """)
    e("s_waitcnt lgkmcnt(0)")
    for t in range(4):
        e(f"ds_read_b128 v[{24+4*t}:{27+4*t}], v20 offset:{64*t}")
    e(f"""
    s_cmp_eq_u32 s44, 0
    s_cselect_b32 s56, 8, 4
    s_cselect_b32 s57, 6, 5
    s_cselect_b32 s58, 4, 7
    v_and_b32 v5, 1, v0
    v_lshlrev_b32 v5, s56, v5
    v_bfe_u32 v6, v0, 1, 2
    v_lshl_add_u32 v5, v6, s57, v5
    v_lshl_add_u32 v5, v3, s58, v5
    v_add_u32 v60, s52, v5
    v_and_b32 v6, 2, v0
    v_cmp_ne_u32 s[56:57], 0, v6
    v_and_b32 v6, 4, v0
    v_cmp_ne_u32 s[58:59], 0, v6
    s_waitcnt lgkmcnt(0)
    """)
    for t in range(4):
        for u in range(4):
            r = 64 + 16*u + 4*t
            c = f"v[{40+4*u}:{43+4*u}]"
            e(f"v_mfma_f32_16x16x32_bf16 {c}, v[{r}:{r+3}], v[{24+4*t}:{27+4*t}], {c if t else 0}")
    e("s_nop 7")
    for k in range(4):
        e(f"v_cndmask_b32 v{40+k}, v{40+k}, v{44+k}, s[56:57]")
    for k in range(4):
        e(f"v_cndmask_b32 v{48+k}, v{48+k}, v{52+k}, s[56:57]")
    for k in range(4):
        e(f"v_cndmask_b32 v{56+k}, v{40+k}, v{48+k}, s[58:59]")
    for k in range(4): e(f"v_add_u32 v{56+k}, 0x400, v{56+k}")
    tag_insert(56, 4)
    e(f"""
    s_mov_b32 s74, 0x00ff00ff
    s_mov_b32 s75, 0x00ff00ff
    s_mov_b64 exec, s[74:75]
    s_cmp_eq_u32 s44, 0
    s_cbranch_scc0 L_pubB
    buffer_store_dwordx4 v[56:59], v60, s[{SRD_WS}:{SRD_WS+3}], 0 offen
    s_branch L_pubE
    L_pubB:
    buffer_store_dwordx4 v[56:59], v60, s[{SRD_WS}:{SRD_WS+3}], 0 offen sc1
    L_pubE:
    s_mov_b64 exec, -1
    L_nopub:
    """)
    stamp(4)
    e(f"""
    s_cmp_eq_u32 s{sWAVE}, 4
    s_cbranch_scc0 L_final
    """)
    e(f"""
    v_lshlrev_b32 v10, 9, v3
    v_lshl_add_u32 v10, v2, 4, v10
    s_lshl_b32 s56, s{sG}, 14
    s_lshr_b32 s57, s{sI}, 4
    s_lshl_b32 s57, s57, 8
    s_add_u32 s56, s56, s57
    s_add_u32 s56, s56, {W_QP}
    v_add_u32 v10, s56, v10
    v_add_u32 v11, 0x1000, v10
    v_add_u32 v12, 0x2000, v10
    v_add_u32 v13, 0x3000, v10
    v_lshrrev_b32 v8, 5, v0
    v_lshlrev_b32 v8, 5, v8
    v_lshl_add_u32 v8, v0, 3, v8
    v_add_u32 v8, {L_QS}, v8
    s_sub_u32 s45, s{sKEND}, {cfg.qlead}
    s_getreg_b32 s76, hwreg(HW_REG_XCC_ID, 0, 4)
    s_lshl_b32 s56, s76, 16
    v_mov_b32 v64, s56
    v_mov_b32 v65, 0
    v_mov_b32 v66, 0
    v_mov_b32 v67, 0
    s_lshl_b32 s56, s{sSLOT}, 7
    s_add_u32 s56, s56, {W_ST+64}
    v_mov_b32 v61, s56
    v_and_b32 v62, 31, v0
    v_lshlrev_b32 v62, 7, v62
    s_lshl_b32 s56, s{sG}, 12
    s_add_u32 s56, s56, {W_ST+64}
    v_add_u32 v62, s56, v62
    s_mov_b32 s77, 0
    s_mov_b32 s78, 0
    """)
    tag_insert(64, 4)
    e(f"""
    s_mov_b64 exec, 1
    buffer_store_dwordx4 v[64:67], v61, s[{SRD_WS}:{SRD_WS+3}], 0 offen
    s_mov_b64 exec, -1
    """)
    def pubB_q():
        L = lbl("L_pb")
        e(f"""
        s_cmp_eq_u32 s77, 0
        s_cbranch_scc0 {L}
        s_mov_b32 s77, 1
        s_mov_b64 exec, s[74:75]
        buffer_store_dwordx4 v[56:59], v60, s[{SRD_WS}:{SRD_WS+3}], s{sBOFF} offen sc1
        s_mov_b64 exec, 1
        buffer_store_dwordx4 v[64:67], v61, s[{SRD_WS}:{SRD_WS+3}], s{sBOFF} offen sc1
        s_mov_b64 exec, -1
        {L}:""")
    spin_land(45, 7, slp=cfg.slp)
    e("L_qretry:")
    for v in range(2):
        for k in range(4):
            r = 24 + 16*v + 4*k
            e(f"buffer_load_dwordx4 v[{r}:{r+3}], v{10+k}, s[{SRD_WS}:{SRD_WS+3}], s{sOFF} offen offset:{2048*v} {cfg.ldA}")
    e(f"buffer_load_dwordx4 v[68:71], v62, s[{SRD_WS}:{SRD_WS+3}], s{sOFF} offen {cfg.ldA}")
    e("s_waitcnt vmcnt(0)")
    for k in range(8): tag_check(24+4*k, 7, k == 0)
    tag_check(68, 7, False)
    e(f"""
    v_and_b32 v7, v4, v7
    v_cmp_ne_u32 vcc, 0, v7
    s_cbranch_vccz L_qok
    s_add_u32 s78, s78, 1
    s_cmp_lt_u32 s78, {cfg.ntmo}
    s_cbranch_scc1 L_qretry
    s_xor_b32 s{sOFF}, s{sOFF}, s{sBOFF}
    """)
    pubB_q()
    e(f"""
    s_sub_u32 s{sCAP}, s{sCAP}, 1
    s_cbranch_scc0 L_qretry
    s_mov_b32 s{sCAP}, 0
    L_qok:
    v_lshrrev_b32 v68, 16, v68
    v_cmp_ne_u32 vcc, s76, v68
    s_mov_b32 s{sOFF}, 0
    s_cbranch_vccz L_qloc
    s_mov_b32 s{sOFF}, s{sBOFF}
    """)
    pubB_q()
    e(f"""L_qloc:
    s_add_u32 s56, s{sOFF}, 1
    v_mov_b32 v9, s56
    """)
    for k in range(32): e(f"v_and_b32 v{24+k}, 0xfffff800, v{24+k}")
    for v in range(2):
        r = 24 + 16*v
        e(f"""
        v_pk_add_f32 v[{r}:{r+1}], v[{r}:{r+1}], v[{r+4}:{r+5}]
        v_pk_add_f32 v[{r+2}:{r+3}], v[{r+2}:{r+3}], v[{r+6}:{r+7}]
        v_pk_add_f32 v[{r+8}:{r+9}], v[{r+8}:{r+9}], v[{r+12}:{r+13}]
        v_pk_add_f32 v[{r+10}:{r+11}], v[{r+10}:{r+11}], v[{r+14}:{r+15}]
        v_pk_add_f32 v[{r}:{r+1}], v[{r}:{r+1}], v[{r+8}:{r+9}]
        v_pk_add_f32 v[{r+2}:{r+3}], v[{r+2}:{r+3}], v[{r+10}:{r+11}]
        v_cvt_pk_bf16_f32 v{r}, v{r}, v{r+1}
        v_cvt_pk_bf16_f32 v{r+1}, v{r+2}, v{r+3}
        ds_write_b64 v8, v[{r}:{r+1}] offset:{576*v}
        """)
    flag_set(1, F_Q, 9)
    stamp(5)
    e(f"""
    v_and_b32 v5, 31, v0
    v_lshrrev_b32 v6, 5, v0
    v_lshlrev_b32 v9, 4, v5
    v_lshl_add_u32 v9, v6, 2, v9
    v_add_u32 v9, {L_WT}, v9
    v_lshlrev_b32 v5, 7, v5
    v_lshl_add_u32 v5, v6, 4, v5
    s_lshl_b32 s56, s{sG}, 12
    s_add_u32 s56, s56, {W_ST}
    v_add_u32 v5, s56, v5
    """)
    if cfg.slead > 0:
        e(f"s_add_u32 s45, s{sVB}, {cfg.slead}")
        spin_land(45, 7, slp=cfg.slp)
    spin_ge(1, F_P, 4, 7, slp=cfg.slp)
    def lds_(r):
        e(f"""
        buffer_load_dwordx4 v[{r}:{r+3}], v5, s[{SRD_WS}:{SRD_WS+3}], s{sOFF} offen {cfg.ldA}
        buffer_load_dwordx4 v[{r+4}:{r+7}], v5, s[{SRD_WS}:{SRD_WS+3}], s{sOFF} offen offset:32 {cfg.ldA}""")
    if cfg.pps:
        def chks(r, L):
            tag_check(r, 7, True); tag_check(r+4, 7, False)
            e(f"v_and_b32 v7, v4, v7\nv_cmp_ne_u32 vcc, 0, v7\ns_cbranch_vccz {L}")
        lds_(32)
        e(f"s_add_u32 s45, s45, {cfg.pps}")
        spin_land(45, 7, slp=cfg.slp)
        lds_(40)
        e("s_mov_b64 s[62:63], -1\nL_sp2:\ns_waitcnt vmcnt(2)")
        chks(32, "L_sX")
        e("s_mov_b64 s[60:61], vcc\ns_mov_b64 exec, vcc")
        lds_(32)
        e("s_mov_b64 exec, s[62:63]\ns_waitcnt vmcnt(2)")
        chks(40, "L_sY")
        e("s_mov_b64 s[62:63], vcc\ns_mov_b64 exec, vcc")
        lds_(40)
        e(f"""
        s_mov_b64 exec, s[60:61]
        s_sub_u32 s{sCAP}, s{sCAP}, 1
        s_cbranch_scc0 L_sp2
        s_mov_b32 s{sCAP}, 0
        s_waitcnt vmcnt(0)
        L_sY:
        s_mov_b64 exec, -1""")
        for k in (0, 1, 4, 5): e(f"v_mov_b32 v{24+k}, v{40+k}")
        e("s_branch L_sj\nL_sX:\ns_mov_b64 exec, -1")
        for k in (0, 1, 4, 5): e(f"v_mov_b32 v{24+k}, v{32+k}")
        e("L_sj:")
    else:
        e("L_sretry:")
        lds_(24)
        e("s_waitcnt vmcnt(0)")
        tag_check(24, 7, True); tag_check(28, 7, False)
        tag_branch(7, "L_sretry", masked=True)
    for r in (24, 28):
        e(f"""
        v_and_b32 v{r}, 0xfffff800, v{r}
        v_and_b32 v{r+1}, 0xfffff800, v{r+1}
        v_mov_b32 v{r+2}, v{r}
        """)
        dpp_max(r+2, (8, 4, 2, 1))
        e(f"""
        v_sub_f32 v{r}, v{r}, v{r+2}
        v_mul_f32 v{r}, {LOG2E}, v{r}
        v_exp_f32 v{r}, v{r}
        s_nop 0
        v_mul_f32 v{r+1}, v{r}, v{r+1}
        """)
        dpp_add(r+1, (8, 4, 2, 1))
        e(f"""
        v_rcp_f32 v{r+1}, v{r+1}
        s_nop 0
        v_mul_f32 v{r}, v{r}, v{r+1}
        ds_write_b32 v9, v{r} offset:{2*(r-24)}
        """)
    flag_set(1, F_W, 21)
    if cfg.dirty:
        e(f"s_mov_b32 s{SRD_WS+2}, 0x2000000\ns_mul_i32 s56, s2, {1024*cfg.dirty}\ns_add_u32 s56, s56, 0x400000\nv_lshlrev_b32 v5, 4, v0")
        for k in range(cfg.dirty):
            e(f"buffer_store_dwordx4 v[24:27], v5, s[{SRD_WS}:{SRD_WS+3}], s56 offen\ns_add_u32 s56, s56, 1024")
    stamp(6)
    if cfg.diag: e(f"s_waitcnt lgkmcnt(0)\ns_sub_u32 s94, {SPIN_CAP}, s{sCAP}\ns_lshl_b32 s94, s94, 8\ns_add_u32 s94, s94, s78\ns_mov_b32 s95, 0")
    stamps_out(8)
    e("s_endpgm")

    e(f"""L_final:
    {"s_waitcnt lgkmcnt(0); s_lshl_b32 s56, s2, 2; s_add_u32 s56, s56, 0x1E0000; v_mov_b32 v5, s56; v_mov_b32 v6, s80; s_mov_b64 exec, 1; buffer_store_dword v6, v5, s[36:39], 0 offen sc1; s_mov_b64 exec, -1".replace("; ", chr(10)) if cfg.skew else ""}
    s_cmp_eq_u32 s44, 0
    s_cbranch_scc0 L_fin0
    """)
    get_loc(7)
    e(f"""
    s_cmp_eq_u32 s{sOFF}, 0
    s_cbranch_scc1 L_fin0
    s_mov_b64 exec, s[74:75]
    buffer_store_dwordx4 v[56:59], v60, s[{SRD_WS}:{SRD_WS+3}], s{sBOFF} offen sc1
    s_mov_b64 exec, -1
    L_fin0:
    s_lshr_b32 s56, s{sI}, 3          ; ctile
    s_and_b32 s57, s{sI}, 1           ; b
    s_bfe_u32 s58, s{sI}, 0x10001     ; e
    s_bfe_u32 s59, s{sI}, 0x10002
    s_and_b32 s60, s{sG}, 1
    s_lshl1_add_u32 s59, s60, s59     ; G
    s_lshr_b32 s60, s{sG}, 1          ; w
    s_lshl2_add_u32 s61, s56, s60     ; 4*ctile + w
    s_lshl1_add_u32 s62, s61, s58
    s_lshl2_add_u32 s62, s62, s59     ; nq = n0/4
    v_and_b32 v5, 1, v3
    v_lshlrev_b32 v5, 1, v5
    v_lshrrev_b32 v6, 1, v3
    v_or_b32 v5, v5, v6              ; e(R)
    v_lshlrev_b32 v5, 1, v5
    s_lshl_b32 s63, s62, 3
    v_add_u32 v6, s63, v5
    global_load_ushort v10, v6, s[22:23]
    s_lshl_b32 s63, s57, 10
    v_add_u32 v8, s63, v6
    global_load_ushort v11, v8, s[4:5]
    s_lshr_b32 s63, s62, 4           ; ctile8
    s_lshl2_add_u32 s63, s63, s59
    s_lshl_b32 s63, s63, 2
    s_bfe_u32 s61, s62, 0x20002      ; u
    s_add_u32 s63, s63, s61
    s_lshl1_add_u32 s63, s63, s57
    s_lshl4_add_u32 s63, s63, {W_FP}
    v_min_u32 v5, 13, v0
    v_lshlrev_b32 v5, 12, v5
    v_add_u32 v5, s63, v5
    s_lshl3_add_u32 s63, s56, s{sG}
    s_and_b32 s61, s{sI}, 7
    s_lshl3_add_u32 s63, s63, s61
    s_lshl4_add_u32 s63, s63, {W_SP}
    v_lshlrev_b32 v6, 12, v0
    v_add_u32 v6, s63, v6
    v_cmp_gt_u32 s[60:61], 14, v0
    s_mov_b32 s64, s24
    s_mov_b32 s65, s25
    s_mov_b32 s66, 2048
    s_mov_b32 s67, 0x20000
    s_add_u32 s45, s{sVB}, {cfg.flead}
    """)
    spin_land(45, 7, slp=cfg.slp)
    e(f"""L_fretry:
    buffer_load_dwordx4 v[24:27], v5, s[{SRD_WS}:{SRD_WS+3}], 0 offen sc1
    s_waitcnt vmcnt(0)
    """)
    tag_check(24, 7, True)
    tag_branch(7, "L_fretry", masked=True)
    def gate_math():
        for k in range(4):
            e(f"v_and_b32 v{24+k}, 0xfffff800, v{24+k}")
        for k in range(4):
            e(f"v_cndmask_b32 v{24+k}, 0, v{24+k}, s[60:61]")
        reduce4_rows(24, 28)
        dpp_add(24, (8, 4, 2, 1))
        rnd_bf16(24)
        e("v_lshlrev_b32 v10, 16, v10\nv_add_f32 v24, v24, v10")
        rnd_bf16(24)
        e(f"""
        v_mul_f32 v25, 0xbfb8aa3b, v24
        v_exp_f32 v25, v25
        s_nop 0
        v_add_f32 v25, 1.0, v25
        v_rcp_f32 v25, v25
        s_nop 0
        v_mul_f32 v12, v24, v25
        """)
        rnd_bf16(12)
        e("v_lshlrev_b32 v11, 16, v11")
    if not (cfg.pp3 and cfg.gap3 == 0): gate_math()
    stamp(5)
    if cfg.h3gate == 0: spin_ge(1, F_O, 4, 7, slp=cfg.slp)
    else: spin_ge(1, F_K, 4, 7, slp=cfg.slp)
    if cfg.h3slp: e(f"s_sleep {cfg.h3slp}")
    def ld3(r): e(f"buffer_load_dwordx4 v[{r}:{r+3}], v6, s[{SRD_WS}:{SRD_WS+3}], 0 offen sc1")
    def chk3(r, L):
        tag_check(r, 7, True)
        e(f"v_and_b32 v7, v4, v7\nv_cmp_ne_u32 vcc, 0, v7\ns_cbranch_vccz {L}")
    if cfg.hack4: e("v_and_b32 v6, 0xffffefff, v6\nv_or_b32 v6, 0, v6")
    if cfg.pp3:
        ld3(32)
        if cfg.gap3: e(f"s_sleep {cfg.gap3}")
        else: gate_math()
        ld3(36)
        e("s_mov_b64 s[62:63], -1\nL_3p:\ns_waitcnt vmcnt(1)")
        chk3(32, "L_3X")
        e("s_mov_b64 s[60:61], vcc\ns_mov_b64 exec, vcc")
        ld3(32)
        e("s_mov_b64 exec, s[62:63]\ns_waitcnt vmcnt(1)")
        chk3(36, "L_3Y")
        e("s_mov_b64 s[62:63], vcc\ns_mov_b64 exec, vcc")
        ld3(36)
        e(f"""
        s_mov_b64 exec, s[60:61]
        s_sub_u32 s{sCAP}, s{sCAP}, 1
        s_cbranch_scc0 L_3p
        s_mov_b32 s{sCAP}, 0
        s_waitcnt vmcnt(0)
        L_3Y:
        s_mov_b64 exec, -1""")
        for k in range(4): e(f"v_and_b32 v{24+k}, 0xfffff800, v{36+k}")
        e("s_branch L_3j\nL_3X:\ns_mov_b64 exec, -1")
        for k in range(4): e(f"v_and_b32 v{24+k}, 0xfffff800, v{32+k}")
        e("L_3j:")
    else:
        e("L_3retry:")
        ld3(24)
        e("s_waitcnt vmcnt(0)")
        tag_check(24, 7, True)
        tag_branch(7, "L_3retry", masked=True, slp=cfg.h3loop)
        for k in range(4): e(f"v_and_b32 v{24+k}, 0xfffff800, v{24+k}")
    stamp(6)
    reduce4_rows(24, 28)
    dpp_add(24, (8, 4, 2, 1))
    rnd_bf16(24)
    e("v_mul_f32 v24, v24, v12")
    rnd_bf16(24)
    e(f"""
    v_add_f32 v24, v24, v11
    v_cvt_pk_bf16_f32 v24, v24, v24
    s_mov_b32 s56, 0x00010001
    s_mov_b32 s57, 0x00010001
    s_mov_b64 exec, s[56:57]
    buffer_store_short v24, v8, s[64:67], 0 offen {cfg.outst}
    s_cmp_eq_u32 s2, 0
    s_cbranch_scc0 L_fin2
    s_mov_b64 exec, 1
    v_mov_b32 v26, s34
    v_mov_b32 v27, s35
    v_mov_b32 v28, 0
    buffer_store_dwordx2 v[26:27], v28, s[{SRD_WS}:{SRD_WS+3}], 0 offen {cfg.epst}
    L_fin2:
    """)
    if cfg.skew:
        e(f"""
        s_cmp_eq_u32 s2, 0
        s_cbranch_scc0 L_skend
        s_mov_b64 exec, -1
        v_lshlrev_b32 v5, 4, v0
        v_add_u32 v5, 0x1E0000, v5
        buffer_load_dwordx4 v[40:43], v5, s[{SRD_WS}:{SRD_WS+3}], 0 offen sc1
        s_waitcnt vmcnt(0) lgkmcnt(0)
        v_subrev_u32 v40, s80, v40
        v_subrev_u32 v41, s80, v41
        v_subrev_u32 v42, s80, v42
        v_subrev_u32 v43, s80, v43
        v_max3_i32 v44, v40, v41, v42
        v_max_i32 v44, v44, v43
        v_min3_i32 v45, v40, v41, v42
        v_min_i32 v45, v45, v43
        s_mov_b32 s60, 0x80000000
        s_mov_b32 s61, 0x7fffffff
        """)
        if cfg.skewg >= 0: e(f"v_mov_b32 v44, v{40 + (cfg.skewg & 3)}\ns_nop 1")
        for l in range(64):
            if cfg.skewg >= 0 and (l & 1) != (cfg.skewg >> 2):
                e(f"v_readlane_b32 s62, v45, {l}\nv_readlane_b32 s63, v45, {l}\ns_nop 1\ns_min_i32 s61, s61, s62\ns_min_i32 s61, s61, s63"); continue
            e(f"v_readlane_b32 s62, v44, {l}\nv_readlane_b32 s63, v45, {l}\ns_nop 1\ns_max_i32 s60, s60, s62\ns_min_i32 s61, s61, s63")
        e(f"""
        s_sub_u32 s60, s60, s61
        s_min_u32 s60, s60, 2000
        s_mul_i32 s60, s60, 20
        s_memrealtime s[62:63]
        s_waitcnt lgkmcnt(0)
        L_sksp:
        s_memrealtime s[68:69]
        s_waitcnt lgkmcnt(0)
        s_sub_u32 s61, s68, s62
        s_cmp_lt_u32 s61, s60
        s_cbranch_scc1 L_sksp
        L_skend:""")
    stamp(7)
    stamps_out(8)
    e("s_endpgm")

    sW = 44
    e(f"""L_compute:
    s_setprio {cfg.cprio}
    s_sub_u32 s{sW}, s{sWAVE}, 6
    """)
    if cfg.touch:
        e(f"""
        s_cmp_eq_u32 s{sW}, 2
        s_cbranch_scc0 L_notouch
        s_lshr_b32 s45, s{sI}, 4
        s_lshl_b32 s45, s45, 26
        s_lshl_b32 s46, s{sG}, 23
        s_add_u32 s45, s45, s46
        s_and_b32 s46, s{sI}, 15
        s_lshl_b32 s46, s46, 16
        s_add_u32 s45, s45, s46
        s_add_u32 s45, s45, {28672*256}
        v_mov_b32 v5, s45
        s_lshl_b32 s45, s{sG}, 19
        s_lshr_b32 s46, s{sI}, 2
        s_lshl_b32 s46, s46, 16
        s_add_u32 s45, s45, s46
        v_mov_b32 v6, s45
        v_mov_b32 v7, 0
        s_mov_b64 exec, 1""")
        if 'k' in cfg.touch: e("global_load_dword v164, v5, s[6:7] nt")
        if 'v' in cfg.touch: e("global_load_dword v164, v5, s[8:9] nt")
        if 'o' in cfg.touch: e("global_load_dword v164, v6, s[12:13] nt")
        if 'w' in cfg.touch: e("global_load_dword v164, v7, s[28:29]")
        if 'u' in cfg.touch: e("global_load_dword v164, v7, s[24:25]")
        e("s_mov_b64 exec, -1\nL_notouch:")
    for r in range(64, 128): e(f"v_mov_b32 v{r}, 0")
    e(f"""
    s_lshl_b32 s45, s{sW}, 14
    v_lshlrev_b32 v5, 8, v2
    v_add_u32 v5, s45, v5
    v_xor_b32 v6, v3, v2
    """)
    for t in range(4):
        e(f"v_xor_b32 v7, {4*t}, v6\nv_lshl_add_u32 v{8+t}, v7, 4, v5")
    e(f"""
    v_and_b32 v13, 3, v2
    v_mul_u32_u24 v12, 288, v13
    v_lshl_add_u32 v12, v3, 4, v12
    v_add_u32 v12, {L_QS}, v12
    """)
    e(f"""
    v_lshl_add_u32 v15, v3, 2, v13
    v_lshlrev_b32 v15, 4, v15
    v_add_u32 v15, {L_PB}, v15
    v_lshrrev_b32 v5, 3, v2
    v_lshl_add_u32 v14, v5, 8, v15
    v_bfe_u32 v5, v2, 2, 1
    v_lshl_add_u32 v14, v5, 3, v14
    s_lshl_b32 s45, s{sW}, 9
    v_add_u32 v14, s45, v14
    v_lshlrev_b32 v17, 3, v13
    v_add_u32 v17, {L_SB}, v17
    s_lshl_b32 s45, s{sW}, 5
    v_add_u32 v16, s45, v17
    """)
    e(f"""
    v_lshrrev_b32 v5, 2, v2
    v_and_b32 v6, 1, v3
    v_lshl_add_u32 v6, v6, 2, v5
    s_lshl_b32 s45, s{sW}, 1
    v_xor_b32 v6, s45, v6
    v_lshlrev_b32 v7, 3, v13
    v_lshl_add_u32 v22, v6, 5, v7
    v_xor_b32 v23, 32, v22
    v_lshl_add_u32 v6, v3, 2, v5
    v_lshlrev_b32 v6, 8, v6
    v_add_u32 v6, {L_V}, v6
    v_add_u32 v18, v6, v22
    v_add_u32 v19, v6, v23
    v_lshl_add_u32 v6, v3, 3, v5
    v_lshlrev_b32 v6, 8, v6
    v_add_u32 v6, {L_WO}, v6
    v_add_u32 v20, v6, v22
    v_add_u32 v21, v6, v23
    """)
    e(f"""
    s_lshl_b32 s45, s{sW}, 7
    v_lshl_add_u32 v5, v3, 4, s45
    s_lshl_b32 s46, s{sSLOT}, 11
    s_add_u32 s46, s46, {W_OP}
    s_lshl2_add_u32 s46, s45, s46
    v_lshl_add_u32 v22, v0, 4, s46
    s_lshl_b32 s46, s{sSLOT}, 10
    s_add_u32 s46, s46, {W_SP}
    s_lshl1_add_u32 s46, s45, s46
    v_lshlrev_b32 v23, 4, v13
    v_lshl_add_u32 v23, v3, 6, v23
    v_add_u32 v23, s46, v23
    v_and_b32 v6, 1, v2
    v_lshlrev_b32 v28, 7, v6
    v_lshl_add_u32 v28, v3, 4, v28
    v_add_u32 v28, {L_OB}, v28
    s_lshr_b32 s45, s{sW}, 1          ; b'
    s_and_b32 s46, s{sW}, 1           ; dsub
    s_lshl_b32 s47, s{sG}, 16
    s_lshl_b32 s48, s45, 15
    s_add_u32 s47, s47, s48
    s_lshr_b32 s48, s{sI}, 2
    s_lshl_b32 s48, s48, 8
    s_add_u32 s47, s47, s48
    s_lshl_b32 s48, s46, 7
    s_add_u32 s47, s47, s48
    s_add_u32 s47, s47, {W_OP}
    v_lshrrev_b32 v5, 3, v0
    v_and_b32 v6, 7, v0
    v_lshlrev_b32 v24, 11, v5
    v_lshl_add_u32 v24, v6, 4, v24
    v_add_u32 v24, s47, v24
    v_add_u32 v25, 16384, v24
    s_lshl_b32 s47, s45, 8
    s_add_u32 s47, s47, {L_WT}
    v_lshl_add_u32 v26, v5, 4, s47
    v_and_b32 v5, 1, v3
    v_lshlrev_b32 v5, 1, v5
    v_lshrrev_b32 v7, 1, v3
    v_or_b32 v5, v5, v7
    v_lshl_add_u32 v5, v5, 4, v6
    s_lshl_b32 s47, s45, 7
    s_lshl_b32 s48, s46, 4
    s_add_u32 s47, s47, s48
    s_add_u32 s47, s47, {L_OB}
    v_lshl_add_u32 v27, v5, 1, s47
    s_lshl_b32 s47, s{sSLOT}, 7
    s_add_u32 s47, s47, {W_ST}
    v_lshl_add_u32 v29, v13, 4, s47
    v_and_b32 v5, 4, v0
    v_cmp_ne_u32 s[50:51], 0, v5
    v_and_b32 v5, 2, v0
    v_cmp_ne_u32 s[52:53], 0, v5
    v_mov_b32 v30, 1
    s_waitcnt lgkmcnt(0)
    """)
    nonce_from_epoch()
    for sp in range(4):
        e(f"""
        s_add_u32 s56, s{sRS}, {sp}
        s_and_b32 s56, s56, 3
        s_lshl_b32 s57, s56, 9
        v_add_u32 v{40+sp}, s57, v15
        s_lshl_b32 s57, s56, 14
        v_add_u32 v{48+2*sp}, s57, v18
        v_add_u32 v{49+2*sp}, s57, v19
        """)
    stamp(1)
    get_loc(6, slp=cfg.slpc)
    for tau in range(4):
        m = 0x000f000f << (4*tau)
        e(f"s_mov_b32 s54, {m:#x}\ns_mov_b32 s55, {m:#x}\ns_mov_b64 exec, s[54:55]")
        for t in range(4):
            r = 64 + 16*tau + 4*t
            e(f"ds_read_b128 v[{r}:{r+3}], v12 offset:{64*t}")
    e("s_mov_b64 exec, -1")
    spin_land(sKEND, 6, slp=cfg.slpc)
    stamp(2)
    def kread(tau, t):
        r = 128 + 16*(tau & 1) + 4*t
        e(f"ds_read_b128 v[{r}:{r+3}], v{8+t} offset:{4096*tau}")
    for tau in range(2):
        for t in range(4): kread(tau, t)
    for tau in range(4):
        for t in range(4):
            n = 4*tau + t
            r = 128 + 16*(tau & 1) + 4*t; q = 64 + 16*tau + 4*t
            e(f"s_waitcnt lgkmcnt({7 if n < 8 else 15-n})")
            e(f"v_mfma_f32_16x16x32_bf16 v[32:35], v[{r}:{r+3}], v[{q}:{q+3}], {'v[32:35]' if n else 0}")
            if tau < 2: kread(tau+2, t)
    e(f"""
    s_mov_b32 s54, {SCALE:#x}
    s_mov_b32 s55, {LOG2E:#x}
    s_nop 5
    v_cvt_pk_bf16_f32 v32, v32, v33
    v_cvt_pk_bf16_f32 v34, v34, v35
    v_and_b32 v33, 0xffff0000, v32
    v_lshlrev_b32 v32, 16, v32
    v_and_b32 v35, 0xffff0000, v34
    v_lshlrev_b32 v34, 16, v34
    v_mul_f32 v32, s54, v32
    v_mul_f32 v33, s54, v33
    v_mul_f32 v34, s54, v34
    v_mul_f32 v35, s54, v35
    v_cvt_pk_bf16_f32 v32, v32, v33
    v_cvt_pk_bf16_f32 v34, v34, v35
    v_and_b32 v33, 0xffff0000, v32
    v_lshlrev_b32 v32, 16, v32
    v_and_b32 v35, 0xffff0000, v34
    v_lshlrev_b32 v34, 16, v34
    v_max_f32 v36, v32, v33
    v_max3_f32 v36, v34, v35, v36
    """)
    dpp_max(36, (8, 4))
    e("""
    v_mov_b32 v37, v36
    s_nop 1
    v_permlane16_swap_b32 v36, v37
    s_nop 0
    v_max_f32 v36, v36, v37
    v_mov_b32 v37, v36
    s_nop 1
    v_permlane32_swap_b32 v36, v37
    s_nop 0
    v_max_f32 v36, v36, v37
    s_mov_b64 exec, 15
    ds_write_b32 v16, v36
    s_mov_b64 exec, 1
    ds_add_u32 v1, v30 offset:{F_V}
    s_mov_b64 exec, -1
    """.replace("{F_V}", str(F_V)))
    spin_ge(1, F_V, 4, 6, extra="ds_read_b32 v56, v17\nds_read_b32 v57, v17 offset:32\nds_read_b32 v58, v17 offset:64\nds_read_b32 v59, v17 offset:96")
    e("""
    v_max_f32 v36, v56, v57
    v_max3_f32 v36, v58, v59, v36
    v_sub_f32 v32, v32, v36
    v_sub_f32 v33, v33, v36
    v_sub_f32 v34, v34, v36
    v_sub_f32 v35, v35, v36
    v_mul_f32 v32, s55, v32
    v_mul_f32 v33, s55, v33
    v_mul_f32 v34, s55, v34
    v_mul_f32 v35, s55, v35
    v_exp_f32 v32, v32
    v_exp_f32 v33, v33
    v_exp_f32 v34, v34
    v_exp_f32 v35, v35
    v_add_f32 v37, v32, v33
    v_cvt_pk_bf16_f32 v32, v32, v33
    v_add_f32 v38, v34, v35
    v_cvt_pk_bf16_f32 v33, v34, v35
    v_add_f32 v37, v37, v38
    ds_write_b64 v14, v[32:33]
    """)
    dpp_add(37, (8, 4))
    e("""
    v_mov_b32 v38, v37
    s_nop 1
    v_permlane16_swap_b32 v37, v38
    s_nop 0
    v_add_f32 v37, v37, v38
    v_mov_b32 v38, v37
    s_nop 1
    v_permlane32_swap_b32 v37, v38
    s_nop 0
    v_add_f32 v37, v37, v38
    s_mov_b64 exec, 15
    ds_write_b32 v16, v37 offset:4
    s_mov_b64 exec, -1
    """)
    flag_add(1, F_P, 30)
    spin_ge(1, F_P, 4, 6, extra="\n".join(f"ds_read_b32 v{56+k}, v17 offset:{32*k+4}" for k in range(4)))
    def preg(ee, sp, sg): return (64 if sp < 2 else 96) + 16*ee + 8*(sp & 1) + 4*sg
    e("""
    v_mov_b32 v32, v36
    v_add_f32 v33, v56, v57
    v_add_f32 v34, v58, v59
    v_add_f32 v33, v33, v34
    v_mov_b32 v34, 0
    v_mov_b32 v35, 0
    """)
    e(f"s_cmp_eq_u32 s{sW}, 0\ns_cbranch_scc0 L_nostat")
    tag_insert(32, 4)
    e(f"""
    s_mov_b64 exec, 15
    buffer_store_dwordx4 v[32:35], v29, s[{SRD_WS}:{SRD_WS+3}], 0 offen
    s_cmp_eq_u32 s{sOFF}, 0
    s_cbranch_scc1 L_nostatB
    buffer_store_dwordx4 v[32:35], v29, s[{SRD_WS}:{SRD_WS+3}], s{sBOFF} offen sc1
    L_nostatB:
    s_mov_b64 exec, -1
    L_nostat:
    """)
    stamp(3)
    for r in range(96, 128): e(f"v_mov_b32 v{r}, 0")
    for ee in range(2):
        m = 0x000f000f << (4*ee)
        e(f"s_mov_b32 s56, {m:#x}\ns_mov_b32 s57, {m:#x}\ns_mov_b64 exec, s[56:57]")
        for sp in range(4):
            for sg in range(2):
                r = preg(ee, sp, sg)
                e(f"ds_read_b128 v[{r}:{r+3}], v{40+sp} offset:{256*sg}")
    e("s_mov_b64 exec, -1")
    for sp in range(4):
        e(f"s_add_u32 s58, s{sVB}, {4*(sp+1) + (cfg.woe if sp == 3 else 0)}")
        if sp == 3 and cfg.vlf: spin_ge(1, F_WO, 4, 6)
        else: spin_land(58, 6, slp=(cfg.slpc if sp < 3 else 0))
        if sp == 3: stamp(4)
        for sg in range(2):
            for ee in range(2):
                r = 128 + 8*sg + 4*ee
                e(f"ds_read_b64_tr_b16 v[{r}:{r+1}], v{48+2*sp+ee} offset:{8192*sg}")
                e(f"ds_read_b64_tr_b16 v[{r+2}:{r+3}], v{48+2*sp+ee} offset:{8192*sg+4096}")
        for sg in range(2):
            for ee in range(2):
                r = 128 + 8*sg + 4*ee
                p = preg(ee, sp, sg)
                e(f"s_waitcnt lgkmcnt({6 - 2*(2*sg+ee)})")
                e(f"v_mfma_f32_16x16x32_bf16 v[144:147], v[{p}:{p+3}], v[{r}:{r+3}], {'v[144:147]' if (sp or sg or ee) else 0}")
    e(f"s_cmp_eq_u32 s{sOFF}, 0\ns_mov_b32 exec_hi, 0\ns_nop 5")
    tag_insert(144, 4)
    e(f"""
    buffer_store_dwordx4 v[144:147], v22, s[{SRD_WS}:{SRD_WS+3}], 0 offen
    s_cbranch_scc1 L_oloc
    buffer_store_dwordx4 v[144:147], v22, s[{SRD_WS}:{SRD_WS+3}], s{sBOFF} offen sc1
    L_oloc:
    s_mov_b64 exec, -1
    {"v_mov_b32 v156, v144; v_mov_b32 v157, v145; v_mov_b32 v158, v146; v_mov_b32 v159, v147".replace("; ", chr(10)) if 0 else ""}
    buffer_load_dwordx4 v[32:35], v24, s[{SRD_WS}:{SRD_WS+3}], s{sOFF} offen {cfg.ldA}
    buffer_load_dwordx4 v[36:39], v25, s[{SRD_WS}:{SRD_WS+3}], s{sOFF} offen {cfg.ldA}
    s_add_u32 s58, s{sVB}, 20
    """)
    stamp(5)
    def wofr():
        for ee in range(2):
            for t in range(2):
                r = 64 + 8*ee + 4*t
                e(f"ds_read_b64_tr_b16 v[{r}:{r+1}], v{20+ee} offset:{8192*t}")
                e(f"ds_read_b64_tr_b16 v[{r+2}:{r+3}], v{20+ee} offset:{8192*t+1024}")
    if not cfg.late_wo:
        spin_land(58, 6)
        wofr()
    if cfg.clean:
        for k in range(4): e(f"v_mov_b32 v{156+k}, v{144+k}")
    spin_ge(1, F_W, 1, 6, extra="ds_read_b128 v[40:43], v26\nds_read_b128 v[44:47], v26 offset:128")
    def ld2(r):
        e(f"""
        buffer_load_dwordx4 v[{r}:{r+3}], v24, s[{SRD_WS}:{SRD_WS+3}], s{sOFF} offen {cfg.ldA}
        buffer_load_dwordx4 v[{r+4}:{r+7}], v25, s[{SRD_WS}:{SRD_WS+3}], s{sOFF} offen {cfg.ldA}""")
    def chk2(r, L):
        tag_check(r, 7, True); tag_check(r+4, 7, False)
        e(f"v_and_b32 v7, v4, v7\nv_cmp_ne_u32 vcc, 0, v7\ns_cbranch_vccz {L}")
    if cfg.pp2:
        ld2(48)
        e("s_mov_b64 s[62:63], -1\nL_op:\ns_waitcnt vmcnt(2)")
        chk2(32, "L_okX")
        e("s_mov_b64 s[60:61], vcc\ns_mov_b64 exec, vcc")
        ld2(32)
        e("s_mov_b64 exec, s[62:63]\ns_waitcnt vmcnt(2)")
        chk2(48, "L_okY")
        e("s_mov_b64 s[62:63], vcc\ns_mov_b64 exec, vcc")
        ld2(48)
        e(f"""
        s_mov_b64 exec, s[60:61]
        s_sub_u32 s{sCAP}, s{sCAP}, 1
        s_cbranch_scc0 L_op
        s_mov_b32 s{sCAP}, 0
        s_waitcnt vmcnt(0)
        L_okY:
        s_mov_b64 exec, -1""")
        for k in range(8): e(f"v_and_b32 v{56+k}, 0xfffff800, v{48+k}")
        e("s_branch L_oj\nL_okX:\ns_mov_b64 exec, -1")
        for k in range(8): e(f"v_and_b32 v{56+k}, 0xfffff800, v{32+k}")
        e("L_oj:")
    else:
        e("s_branch L_ochk\nL_oretry:")
        ld2(32)
        e("L_ochk:\ns_waitcnt vmcnt(0)")
        tag_check(32, 7, True); tag_check(36, 7, False)
        tag_branch(7, "L_oretry", masked=True, slp=cfg.o2loop)
        for k in range(8): e(f"v_and_b32 v{56+k}, 0xfffff800, v{32+k}")
    stamp(6)
    R = []
    if cfg.late_wo:
        R.append(f"ds_read_b128 v[152:155], v1 offset:{O_LAND}")
        for ee in range(2):
            for t in range(2):
                r = 64 + 8*ee + 4*t
                R.append(f"ds_read_b64_tr_b16 v[{r}:{r+1}], v{20+ee} offset:{8192*t}")
                R.append(f"ds_read_b64_tr_b16 v[{r+2}:{r+3}], v{20+ee} offset:{8192*t+1024}")
    else:
        R = ["s_nop 0"] * 9
    e(f"""
    v_pk_mul_f32 v[56:57], v[56:57], v[40:41]
    v_pk_mul_f32 v[58:59], v[58:59], v[42:43]
    v_pk_fma_f32 v[56:57], v[60:61], v[44:45], v[56:57]
    v_pk_fma_f32 v[58:59], v[62:63], v[46:47], v[58:59]
    {R[0]}
    {R[1]}
    v_permlane32_swap_b32 v56, v57
    v_permlane32_swap_b32 v58, v59
    {R[2]}
    v_add_f32 v56, v56, v57
    v_add_f32 v58, v58, v59
    {R[3]}
    {R[4]}
    v_permlane16_swap_b32 v56, v58
    {R[5]}
    v_add_f32 v56, v56, v58
    {R[6]}
    {R[7]}
    v_add_f32_dpp v56, v56, v56 row_ror:8 row_mask:0xf bank_mask:0xf
    {R[8]}
    """)
    e(f"""
    v_cvt_pk_bf16_f32 v56, v56, v56
    ds_write_b16 v27, v56
    s_mov_b64 exec, 1
    ds_add_u32 v1, v30 offset:{F_O}
    s_mov_b64 exec, -1
    s_mov_b32 s56, 0x000f000f
    s_mov_b32 s57, 0x000f000f
    """)
    spin_ge(1, F_O, 4, 6, extra="ds_read_b128 v[40:43], v28\nds_read_b128 v[44:47], v28 offset:64")
    if cfg.late_wo:
        e("""
        v_min3_i32 v152, v152, v153, v154
        v_min_i32 v152, v152, v155
        v_cmp_le_i32 vcc, s58, v152
        s_cbranch_vccz L_wolate
        L_wook:""")
    for t in range(2):
        for ee in range(2):
            r = 64 + 8*ee + 4*t
            a = 144 + 4*ee
            e(f"v_mfma_f32_16x16x32_bf16 v[{a}:{a+3}], v[{r}:{r+3}], v[{40+4*t}:{43+4*t}], {f'v[{a}:{a+3}]' if t else 0}")
    e(f"""
    s_mov_b64 exec, s[56:57]
    s_nop 6
    """)
    for k in range(4):
        e(f"v_cndmask_b32 v{144+k}, v{144+k}, v{148+k}, s[52:53]")
    tag_insert(144, 4)
    e(f"""
    {"s_bitcmp1_b32 s32, 2; s_cbranch_scc1 L_end".replace("; ", chr(10)) if cfg.hack4 == 9 else ""}
    {"s_bitcmp1_b32 s32, 2; s_cselect_b64 exec, 0, exec".replace("; ", chr(10)) if cfg.hack4 else ""}
    buffer_store_dwordx4 v[144:147], v23, s[{SRD_WS}:{SRD_WS+3}], 0 offen sc1
    """)
    if cfg.clean == 1:
        e(f"s_mov_b32 s56, 0x00ff00ff\ns_mov_b32 s57, 0x00ff00ff\ns_mov_b64 exec, s[56:57]\nbuffer_store_dwordx4 v[156:159], v22, s[{SRD_WS}:{SRD_WS+3}], 0 offen sc1\ns_waitcnt vmcnt(1)")
    elif cfg.h3gate == 2: e("s_waitcnt vmcnt(0)")
    if cfg.clean == 2:
        e(f"s_mov_b32 s56, 0x00ff00ff\ns_mov_b32 s57, 0x00ff00ff\ns_mov_b64 exec, s[56:57]\nbuffer_store_dwordx4 v[156:159], v22, s[{SRD_WS}:{SRD_WS+3}], 0 offen sc1")
    if cfg.h3gate: e(f"s_mov_b64 exec, 1\nds_add_u32 v1, v30 offset:{F_K}")
    stamp(7)
    stamps_out(8)
    e("L_end:\ns_endpgm")
    if cfg.late_wo:
        e("L_wolate:")
        spin_land(58, 6)
        wofr()
        e("s_waitcnt lgkmcnt(0)\ns_branch L_wook")
    e("L_codeend:")
    if cfg.skip:
        res = []; sect = None
        for ln in out:
            t = ln.strip()
            if t.endswith(":"): sect = t[:-1]
            drop = False
            isg = t.startswith("buffer_load_dwordx4 v[") and "s[36:39]" in t
            if isg and sect in ("L_qretry",) and 'q' in cfg.skip: drop = True
            if isg and sect in ("L_hretry",) and 'h' in cfg.skip: drop = True
            if isg and sect in ("L_sretry",) and 's' in cfg.skip: drop = True
            if isg and sect in ("L_fretry",) and 'f' in cfg.skip: drop = True
            if t.startswith("s_cbranch_scc0 L_qretry") and 'q' in cfg.skip: drop = True
            if t.startswith("s_cbranch_scc0 L_hretry") and 'h' in cfg.skip: drop = True
            if t.startswith("s_cbranch_scc0 L_sretry") and 's' in cfg.skip: drop = True
            if t.startswith("s_cbranch_scc0 L_fretry") and 'f' in cfg.skip: drop = True
            if 'b' in cfg.skip and t.startswith("buffer_store_dwordx4") and "sc1" in t and ("v[56:59]" in t and sect == "L_pubB"): drop = True
            if 'a' in cfg.skip and t.startswith("buffer_store_dwordx4") and "sc1" not in t and ("v[56:59]" in t or "v[64:67]" in t or "v29" in t): drop = True
            if 'q' in cfg.skip and t.startswith("s_cbranch_vccz L_q"): ln = ln.replace("s_cbranch_vccz", "s_branch")
            if 'k' in cfg.skip and t.startswith("ds_read_b128 v[1") and "v1 offset" not in t: drop = True
            if 'v' in cfg.skip and t.startswith("ds_read_b64_tr_b16 v[1"): drop = True
            if not drop: res.append(ln)
        out[:] = res
    if cfg.mark:
        res = []; k = 0
        for ln in out:
            res.append(ln)
            if ln.strip() == f"s_mov_b32 s{sCAP}, 0":
                k += 1
                res += [f"    v_mov_b32 v164, {4*k}", "    v_mov_b32 v165, 1", "    global_atomic_add v164, v165, s[26:27]"]
        out[:] = res
    body = "\n".join(out)
    hdr = open("recurrent_scan__sliding_block_cached__dense_activation_squared_relu__decode.s.ref").read().split("; Override launch")[0]
    return f"""{hdr}; Single fused launch: 256 workgroups (one per CU) x 10 waves.
; @launch grid=(256,1,1) block=(640,1,1) lds={LDS_TOTAL}
.amdgcn_target "amdgcn-amd-amdhsa--gfx950"
.text
.globl {KNAME}
.p2align 8
.type {KNAME},@function
{KNAME}:
{body}
.section .rodata,"a"
.p2align 6
.amdhsa_kernel {KNAME}
  .amdhsa_next_free_vgpr 168
  .amdhsa_next_free_sgpr 102
  .amdhsa_accum_offset 168
  .amdhsa_group_segment_fixed_size 0
  .amdhsa_kernarg_size 104
  .amdhsa_user_sgpr_count 2
  .amdhsa_user_sgpr_kernarg_segment_ptr 1
  .amdhsa_system_sgpr_workgroup_id_x 1
.end_amdhsa_kernel
"""

if __name__ == "__main__":
    path = sys.argv[1]
    for a in sys.argv[2:]:
        k, v = a.split("=")
        cur = getattr(cfg, k)
        setattr(cfg, k, type(cur)(int(v)) if isinstance(cur, (bool, int)) else v.replace("+", " "))
    open(path, "w").write(build())
```

```python
import sys
KNAME = "recurrent_scan__sliding_block_cached__dense_activation_squared_relu__decode_kernel"

cfg_dbgsel = {6: [(0,0,1),(0,1,0),(1,2,1),(1,3,0),(2,4,0),(4,5,1),(4,6,0),(5,7,0)], 7: [(4,8,0),(5,9,0),(6,10,0)], 8: [(5,11,0),(6,12,1),(6,13,0),(7,14,0)]}
class Cfg:
    early = False
    ampw = -1
    ampk = 0
    ampg = -1
    dbg = False
    diag = False
    lw = 5
    lw2 = 5
    win = 20
    qlead = 7
    woe = 0
    lprio = 3
    lightg = 0
    skew = 0
    skewg = -1
    bpos = 0
    pps = 0
    trace = 0
    hack4 = 0
    slpc = 0
    vlf = 0
    cprio = 1
    touch = ''
    clean = 0
    epst = ''
    outst = ''
    nprio = 1
    late_wo = 1
    pp2 = 1
    pp3 = 1
    gap3 = 0
    epf = 1
    dirty = 0
    h3gate = 2
    h3slp = 0
    h3loop = 0
    o2loop = 0
    mark = 0
    ntmo = 4
    skip = ''
    only = 0
    pfi = 28
    slp = 0
    win2 = 20
    w2at = 4
    slead = 8
    flead = 10
    hgate = 15
    ldA = 'sc1'
    pf = 1
    first = 'sc1'
    ntK = "nt"; ntW = "nt"
    rotmul = 5
cfg = Cfg()

L_K, L_V, L_WO = 0, 65536, 131072
SCR = 147456
L_QS = SCR
L_PB = SCR + 1152
L_SB = L_PB + 2048
L_WT = L_SB + 128
L_OB = L_WT + 512
L_ACTA = L_OB + 256
L_ACTB = L_ACTA + 576
L_FL = L_ACTB + 576
L_LAND = L_FL + 64
LDS_TOTAL = L_LAND + 16 + 256
F_Q, F_K, F_P, F_V, F_T, F_WO, F_W, F_O = [4*k for k in range(8)]
W_ST, W_QP, W_HP, W_OP, B_OFF, W_SP, W_FP = 0x8000, 0x10000, 0x30000, 0x40000, 0xC0000, 0x180000, 0x1C0000
WS_BYTES = 0x200000
SPIN_CAP = 1000002
LOG2E = 0x3fb8aa3b
SCALE = 0x3db504f3

sWAVE, sG, sI, sNON = 30, 31, 32, 33
sT0, sT1, sT2, sT3 = 34, 33, 40, 79
TMASK, VMASK, TB = 0x7ff, 0xfffff800, 11
SRD_WS = 36
sSLOT = 41
sRS = 42
sCAP = 43
sVB, sOFF, sBOFF = 71, 72, 73
sKEND = 70
O_LAND = 64
STAMP0 = 80

out = []
def e(s):
    for ln in s.strip("\n").split("\n"):
        out.append("    " + ln.strip() if not ln.strip().endswith(":") else ln.strip())

def estamp(k):
    if cfg.diag and cfg.early:
        e(f"s_memrealtime s[{STAMP0+2*k}:{STAMP0+2*k+1}]")
def stamp(k):
    if cfg.diag and (not cfg.early or k == 0 or k >= 6):
        e(f"s_memrealtime s[{STAMP0+2*k}:{STAMP0+2*k+1}]")

def stamps_out(n):
    if not cfg.diag: return
    if cfg.ampw >= 0:
        L = lbl("L_amp"); Ls = lbl("L_amps")
        if cfg.ampk < n:
            e(f"""
            s_waitcnt lgkmcnt(0)
            s_cmp_eq_u32 s{sWAVE}, {cfg.ampw}
            s_cbranch_scc0 {Ls}
            {f's_cmp_eq_u32 s{sG}, {cfg.ampg}; s_cbranch_scc0 {Ls}'.replace('; ', chr(10)) if cfg.ampg >= 0 else ''}
            s_sub_u32 s60, s{STAMP0+2*cfg.ampk}, s{STAMP0}
            s_min_u32 s60, s60, 20000
            s_mul_i32 s60, s60, 10
            s_memrealtime s[62:63]
            s_waitcnt lgkmcnt(0)
            {L}:
            s_memrealtime s[68:69]
            s_waitcnt lgkmcnt(0)
            s_sub_u32 s61, s68, s62
            s_cmp_lt_u32 s61, s60
            s_cbranch_scc1 {L}
            {Ls}:
            """)
        return
    if cfg.dbg:
        sel = cfg_dbgsel[n] if n in cfg_dbgsel else []
        e("s_waitcnt lgkmcnt(0)\ns_mov_b64 exec, 1\nv_mov_b32 v1, 0")
        if n == 8: e(f"s_cmp_eq_u32 s{sWAVE}, 2\ns_cbranch_scc0 L_dbgskip{len(out)}"); lab = f"L_dbgskip{len(out)-2}"
        for (k, slot, mn) in sel:
            e(f"v_mov_b32 v4, s{STAMP0+2*k}")
            if mn: e("v_not_b32 v4, v4")
            e(f"global_atomic_umax v1, v4, s[26:27] offset:{4*slot}\ns_nop 1")
        if n == 8: e(f"{lab}:")
        e("s_waitcnt vmcnt(0)")
        return
    L = lbl("L_dly")
    e(f"""
    s_waitcnt lgkmcnt(0)
    s_add_u32 s61, s{STAMP0}, 1600
    {L}:
    s_sleep 8
    s_memrealtime s[68:69]
    s_waitcnt lgkmcnt(0)
    s_cmp_lt_u32 s68, s61
    s_cbranch_scc1 {L}
    s_lshl_b32 s60, s2, 4
    s_add_u32 s60, s60, s{sWAVE}
    s_lshl_b32 s60, s60, 6
    s_add_u32 s68, s28, s60
    s_addc_u32 s69, s29, 0
    s_add_u32 s68, s68, 0x10000000
    s_addc_u32 s69, s69, 0
    s_mov_b64 exec, 1
    v_mov_b32 v1, 0
    """)
    for k in range(8):
        if k < n:
            e(f"v_mov_b32 v4, s{STAMP0+2*k}\nv_mov_b32 v5, s{STAMP0+2*k+1}")
        else:
            e(f"v_mov_b32 v4, s{STAMP0}\nv_mov_b32 v5, s{STAMP0+1}")
        e(f"global_store_dwordx2 v1, v[4:5], s[68:69] offset:{8*k}\ns_nop 1")
    e("s_waitcnt vmcnt(0)")

lblc = [0]
def lbl(p="L"):
    lblc[0] += 1
    return f"{p}_{lblc[0]}"

def flag_set(vfl, off, vval):
    e(f"s_mov_b64 exec, 1\nds_write_b32 v{vfl}, v{vval} offset:{off}\ns_mov_b64 exec, -1")
def flag_add(vfl, off, vone):
    e(f"s_mov_b64 exec, 1\nds_add_u32 v{vfl}, v{vone} offset:{off}\ns_mov_b64 exec, -1")
def spin_ge(vfl, off, target, vtmp, extra="", slp=0):
    L = lbl("L_sp")
    e(f"""{L}:
    {f's_sleep {slp}' if slp else ''}
    ds_read_b32 v{vtmp}, v{vfl} offset:{off}
    {extra}
    s_waitcnt lgkmcnt(0)
    v_cmp_le_u32 vcc, {target}, v{vtmp}
    s_cbranch_vccz {L}""")

def spin_land(sreg, vtmp, extra="", slp=0):
    L = lbl("L_sl")
    e(f"""{L}:
    {f's_sleep {slp}' if slp else ''}
    ds_read_b128 v[160:163], v1 offset:{O_LAND}
    {extra}
    s_waitcnt lgkmcnt(0)
    v_min3_i32 v160, v160, v161, v162
    v_min_i32 v160, v160, v163
    v_cmp_le_i32 vcc, s{sreg}, v160
    s_cbranch_vccz {L}""")

def get_loc(vtmp, slp=None):
    spin_ge(1, F_Q, 1, vtmp, slp=cfg.slp if slp is None else slp)
    e(f"v_readfirstlane_b32 s{sOFF}, v{vtmp}\ns_nop 3\ns_and_b32 s{sOFF}, s{sOFF}, -2")

def tag_check(regs, acc, first):
    T = [sT0, sT1, sT2, sT3]
    for k in range(4):
        if first and k == 0:
            e(f"v_xor_b32 v{acc}, s{T[0]}, v{regs}")
        else:
            e(f"v_bitop3_b32 v{acc}, v{regs+k}, s{T[k]}, v{acc} bitop3:0xbe")
def tag_branch(acc, Lretry, toggle=False, masked=False, slp=0):
    Ld = lbl("L_ok")
    e(f"""
    v_and_b32 v{acc}, v4, v{acc}
    v_cmp_ne_u32 vcc, 0, v{acc}
    s_cbranch_vccz {Ld}""")
    if masked: e("s_mov_b64 exec, vcc")
    if slp: e(f"s_sleep {slp}")
    if toggle:
        e(f"""
        s_and_b32 s{sOFF}, s{sCAP}, 3
        s_cselect_b32 s{sOFF}, 0, s{sBOFF}""")
    e(f"""
    s_sub_u32 s{sCAP}, s{sCAP}, 1
    s_cbranch_scc0 {Lretry}
    s_mov_b32 s{sCAP}, 0
    {Ld}:""")
    if masked: e("s_mov_b64 exec, -1")
def tag_insert(regs, vff):
    T = [sT0, sT1, sT2, sT3]
    for k in range(4):
        e(f"v_bfi_b32 v{regs+k}, v{vff}, s{T[k]}, v{regs+k}")

def nonce_from_epoch():
    e(f"""
    s_add_u32 s34, s34, 0x01401801
    s_addc_u32 s35, s35, 14
    s_lshr_b32 s33, s34, 11
    s_lshr_b64 s[46:47], s[34:35], 22
    s_mov_b32 s40, s46
    s_lshr_b32 s79, s35, 1
    """)

def srd(r, lo, hi, nbytes):
    pass

def reduce4_rows(x, t):
    e(f"""
    s_nop 1
    v_permlane32_swap_b32 v{x}, v{x+1}
    v_permlane32_swap_b32 v{x+2}, v{x+3}
    s_nop 0
    v_add_f32 v{x}, v{x}, v{x+1}
    v_add_f32 v{x+2}, v{x+2}, v{x+3}
    s_nop 1
    v_permlane16_swap_b32 v{x}, v{x+2}
    s_nop 0
    v_add_f32 v{x}, v{x}, v{x+2}
    """)
def dpp_add(x, rots):
    for r in rots:
        e(f"s_nop 1\nv_add_f32_dpp v{x}, v{x}, v{x} row_ror:{r} row_mask:0xf bank_mask:0xf")
def dpp_max(x, rots):
    for r in rots:
        e(f"s_nop 1\nv_max_f32_dpp v{x}, v{x}, v{x} row_ror:{r} row_mask:0xf bank_mask:0xf")
def rnd_bf16(x):
    e(f"v_cvt_pk_bf16_f32 v{x}, v{x}, v{x}\nv_and_b32 v{x}, 0xffff0000, v{x}")

def build():
    out.clear()
    stamp(0)
    nt = cfg.ntK
    W = cfg.lw; W2 = cfg.lw2
    e(f"""
    s_load_dwordx16 s[4:19], s[0:1], 0
    s_load_dwordx8 s[20:27], s[0:1], 64
    s_load_dwordx2 s[28:29], s[0:1], 96
    v_readfirstlane_b32 s{sWAVE}, v0
    s_cmpk_ge_u32 s2, 0x100
    s_cbranch_scc1 L_end
    v_and_b32 v0, 63, v0
    s_and_b32 s{sG}, s2, 7
    s_lshr_b32 s{sI}, s2, 3
    s_cmpk_ge_u32 s{sWAVE}, 0x100
    s_cbranch_scc1 L_notloader
    v_lshrrev_b32 v12, 3, v0
    s_lshl_b32 s64, s{sWAVE}, 4
    {"s_getpc_b64 s[48:49]; v_lshl_add_u32 v13, v12, 7, s64; global_load_dword v166, v13, s[48:49]".replace("; ", chr(10)) if cfg.epf else ""}
    v_and_b32 v13, 7, v0
    v_and_b32 v14, 2, v12
    v_xor_b32 v13, v13, v14
    v_lshlrev_b32 v13, 4, v13
    s_and_b32 s63, s{sWAVE}, 64
    v_xor_b32 v13, s63, v13
    v_lshl_add_u32 v10, v12, 13, v13
    s_lshr_b32 s45, s2, 6
    s_lshl_b32 s45, s45, 20
    s_and_b32 s46, s{sI}, 7
    s_lshl3_add_u32 s46, s{sG}, s46
    s_lshl_b32 s46, s46, 7
    s_add_u32 s45, s45, s46
    s_mov_b32 s58, {127*8192+128}
    s_mov_b32 s59, 0x20000
    s_lshl4_add_u32 m0, s{sWAVE}, {L_WO}
    s_lshl_b32 s47, s{sWAVE}, 10
    s_waitcnt lgkmcnt(0)
    s_add_u32 s56, s10, s45
    s_addc_u32 s57, s11, 0
    {'s_memrealtime s[82:83]' if cfg.early else ''}
    L_ldA:
    buffer_load_dwordx4 v10, s[56:59], s47 offen {cfg.ntW} lds
    s_addk_i32 m0, 0x1000
    s_add_u32 s47, s47, 0x40000
    s_bitcmp0_b32 s47, 20
    s_cbranch_scc1 L_ldA
    {'s_memrealtime s[84:85]' if cfg.early else ''}
    s_branch L_ld2
    .p2align 8
    """)
    e(f"""L_notloader:
    v_mov_b32 v1, {L_FL}
    v_mov_b32 v5, 0
    v_lshl_add_u32 v6, v0, 2, v1
    ds_write_b32 v6, v5
    s_lshr_b32 s{sWAVE}, s{sWAVE}, 6
    """)
    if cfg.pf:
        e(f"""
        s_cmp_eq_u32 s{sWAVE}, 9
        s_cbranch_scc0 L_nopf
        s_getpc_b64 s[46:47]
        L_pc:
        s_mul_i32 s45, s{sI}, {2 if cfg.epf else 3}
        {'s_add_u32 s45, s45, 30' if cfg.epf else ''}
        v_min_u32 v5, {1 if cfg.epf else 2}, v0
        v_add_u32 v5, s45, v5
        v_lshlrev_b32 v5, 7, v5
        v_min_u32 v5, L_codeend-L_pc-4, v5
        global_load_dword v166, v5, s[46:47]
        L_nopf:""")
    e(f"""
    v_lshlrev_b32 v5, 5, v0
    s_cmp_ge_u32 s{sWAVE}, 6
    s_waitcnt lgkmcnt(0)
    s_load_dwordx2 s[34:35], s[28:29], 0
    s_cbranch_scc1 L_nox
    global_load_dwordx4 v[8:11], v5, s[4:5]
    global_load_dwordx4 v[12:15], v5, s[4:5] offset:16
    L_nox:
    s_barrier
    s_branch L_nl2
    """)
    def flagw():
        e("ds_write_b32 v16, v15\nv_add_u32 v15, 1, v15")
        if cfg.trace:
            e("s_memrealtime s[66:67]\ns_waitcnt lgkmcnt(0)\ns_mov_b64 s[68:69], exec\ns_lshl_b64 exec, 1, s70\nv_mov_b32 v20, s66\ns_mov_b64 exec, s[68:69]\ns_add_u32 s70, s70, 1")
    e(f"""L_ld2:
    s_mul_i32 s44, s2, {cfg.rotmul}
    s_bfe_u32 s{sRS}, s44, 0x20002
    v_and_b32 v2, 15, v0
    v_lshrrev_b32 v3, 4, v0
    s_add_u32 s62, s{sRS}, 3
    s_and_b32 s62, s62, 3
    s_add_u32 s62, s62, 4
    s_lshl_b32 s62, s62, 14
    v_mov_b32 v1, {L_FL}
    s_lshr_b32 s45, s{sWAVE}, 4
    s_add_u32 s45, s45, {L_LAND}
    v_lshl_add_u32 v16, v0, 2, v1
    v_add_u32 v16, {O_LAND+16}, v16
    v_writelane_b32 v16, s45, 0
    v_mov_b32 v15, {5-W}
    {"s_mov_b32 s70, 0; v_mov_b32 v20, 0".replace("; ", chr(10)) if cfg.trace else ""}
    s_setprio {cfg.lprio}
    s_barrier
    """)
    estamp(3)
    if cfg.early:
        e("s_waitcnt vmcnt(3)"); estamp(4); e("s_waitcnt vmcnt(0)"); estamp(5)
    stamp(1)
    def Bblock():
        e(f"""
        s_add_u32 s67, s{sG}, {7 - cfg.lightg}
        s_and_b32 s67, s67, 7
        s_cmp_lt_u32 s67, 7
        s_cbranch_scc0 L_ld_noB
        s_add_u32 m0, s62, s64
        s_and_b32 s65, s{sI}, 15
        s_lshl4_add_u32 s65, s67, s65
        s_cmp_lt_u32 s{sI}, 16
        s_cbranch_scc0 L_ld_w2
        s_and_b32 s45, s65, 3
        s_mul_i32 s45, s45, {128*3584}
        s_lshr_b32 s46, s65, 2
        s_lshl_b32 s46, s46, 7
        s_add_u32 s45, s45, s46
        s_add_u32 s56, s16, s45
        s_addc_u32 s57, s17, 0
        v_mul_u32_u24 v10, 3584, v12
        v_add_u32 v10, v10, v13
        s_mul_i32 s47, s64, 28
        s_mov_b32 s46, {32*3584}
        s_branch L_ld_B
        L_ld_w2:
        s_lshr_b32 s45, s65, 3
        s_lshl_b32 s45, s45, 17
        s_and_b32 s46, s65, 7
        s_lshl_b32 s46, s46, 7
        s_add_u32 s45, s45, s46
        s_add_u32 s56, s20, s45
        s_addc_u32 s57, s21, 0
        v_lshl_add_u32 v10, v12, 10, v13
        s_lshl_b32 s47, s64, 3
        s_mov_b32 s46, 0x8000
        L_ld_B:
        s_sub_u32 s58, {512*1792*2}, s45
        s_mov_b32 s60, 0
        L_ldB:
        s_waitcnt vmcnt({W-1})
        buffer_load_dwordx4 v10, s[56:59], s47 offen {cfg.ntW} lds
        s_addk_i32 m0, 0x1000
        s_add_u32 s47, s47, s46""")
        flagw()
        e(f"""
        s_add_u32 s60, s60, 1
        s_cmp_lt_u32 s60, 4
        s_cbranch_scc1 L_ldB
        L_ld_noB:
        """)
    def Kblock():
        e(f"""
        v_lshlrev_b32 v14, 8, v3
        v_xor_b32 v17, v3, v2
        v_lshl_add_u32 v4, v17, 4, v14
        v_xor_b32 v4, s{sWAVE}, v4
        s_lshr_b32 s45, s{sI}, 4
        s_lshl_b32 s45, s45, 26
        s_lshl_b32 s46, s{sG}, 23
        s_add_u32 s45, s45, s46
        s_and_b32 s46, s{sI}, 15
        s_lshl_b32 s46, s46, 16
        s_add_u32 s45, s45, s46
        s_add_u32 s45, s45, {28672*256}
        s_mov_b32 s50, 0x10000
        s_mov_b32 s51, 0x20000
        s_add_u32 s48, s6, s45
        s_addc_u32 s49, s7, 0
        s_and_b32 s44, s44, 15
        s_lshl_b32 s47, s44, 12
        s_add_u32 s47, s47, s64
        s_mov_b32 s60, 0
        L_ldK:
        s_mov_b32 m0, s47
        s_add_u32 s60, s60, 1
        s_waitcnt vmcnt({W-1})
        buffer_load_dwordx4 v4, s[48:51], s47 offen {nt} lds""")
        flagw()
        e(f"""
        s_addk_i32 s47, 0x1000
        s_and_b32 s47, s47, 0xffff
        s_cmp_lt_u32 s60, 16
        s_cbranch_scc1 L_ldK
        """)
    if cfg.bpos:
        Kblock(); e("s_mov_b32 s66, s45"); Bblock(); e("s_mov_b32 s45, s66")
    else:
        Bblock(); Kblock()
    stamp(2)
    e(f"""
    v_lshlrev_b32 v17, 1, v3
    v_xor_b32 v17, v17, v2
    v_lshl_add_u32 v8, v17, 4, v14
    s_lshl_b32 s63, s63, 1
    v_xor_b32 v8, s63, v8
    v_lshlrev_b32 v14, 10, v3
    v_lshl_add_u32 v10, v17, 4, v14
    s_and_b32 s63, s{sWAVE}, 0x80
    v_xor_b32 v10, s63, v10
    s_add_u32 s52, s8, s45
    s_addc_u32 s53, s9, 0
    s_mov_b32 s54, 0x10000
    s_mov_b32 s55, 0x20000
    s_mov_b32 s60, 0
    s_and_b32 s61, s44, 3
    """)
    def vloop(name, end, win, noflag=False):
        e(f"""{name}:
        s_lshr_b32 s47, s60, 2
        s_add_u32 s47, s47, s{sRS}
        s_and_b32 s47, s47, 3
        s_add_u32 s62, s61, s60
        s_and_b32 s62, s62, 3
        s_lshl2_add_u32 s47, s47, s62
        s_lshl_b32 s47, s47, 12
        s_add_u32 s47, s47, s64
        s_add_u32 m0, s47, {L_V}
        s_add_u32 s60, s60, 1
        s_waitcnt vmcnt({win-1})
        buffer_load_dwordx4 v8, s[52:55], s47 offen {nt} lds""")
        if not noflag: flagw()
        e(f"""
        s_cmp_lt_u32 s60, {end}
        s_cbranch_scc1 {name}
        """)
    def woloop(name, g0, g1):
        if g0 == g1: return
        e(f"""
        s_add_u32 m0, s64, {L_WO + 4096*g0}
        s_lshl_b32 s47, s64, 2
        s_add_u32 s47, s47, {0x20000*g0}
        {name}:
        s_waitcnt vmcnt({W2-1})
        buffer_load_dwordx4 v10, s[56:59], s47 offen {cfg.ntW} lds
        s_addk_i32 m0, 0x1000
        s_add_u32 s47, s47, 0x20000""")
        flagw()
        e(f"""
        s_cmp_lt_u32 s47, {0x20000*g1}
        s_cbranch_scc1 {name}""")
    if W2 > W:
        assert cfg.w2at + (W2 - W) <= 12
        if cfg.w2at > 0: vloop("L_ldV0", cfg.w2at, W)
        vloop("L_ldV0b", cfg.w2at + W2 - W, W2, noflag=True)
        if cfg.w2at + W2 - W < 12: vloop("L_ldV1", 12, W2)
    elif W2 < W:
        vloop("L_ldV0", cfg.w2at, W)
        for k in range(W - W2):
            e(f"s_waitcnt vmcnt({W-1-k})")
            flagw()
        if cfg.w2at < 12: vloop("L_ldV1", 12, W2)
    else:
        vloop("L_ldV1", 12, W)
    e(f"""
    s_lshl_b32 s45, s{sG}, 19
    s_lshr_b32 s46, s{sI}, 2
    s_lshl_b32 s46, s46, 14
    s_add_u32 s45, s45, s46
    s_and_b32 s46, s{sI}, 3
    s_lshl_b32 s46, s46, 8
    s_add_u32 s45, s45, s46
    s_add_u32 s56, s12, s45
    s_addc_u32 s57, s13, 0
    s_mov_b32 s58, {(3*128+15)*1024+256}
    """)
    spin_ge(1, F_T, 2, 17)
    woloop("L_ldWO1", 0, cfg.woe)
    vloop("L_ldV2", 16, W2)
    woloop("L_ldWO2", cfg.woe, 4)
    stamp(3)
    if cfg.vlf:
        assert W2 - 1 >= 4 - cfg.woe
        e("v_mov_b32 v18, 1\ns_mov_b64 exec, 1")
    for k in range(W2-1, -1, -1):
        e(f"s_waitcnt vmcnt({k})")
        if k == 4 - cfg.woe and cfg.vlf: e(f"ds_add_u32 v1, v18 offset:{F_WO}")
        flagw()
        if k == 4 - cfg.woe: stamp(4)
    stamp(5)
    if cfg.trace:
        e(f"""s_mov_b64 exec, -1
        s_lshl_b32 s60, s2, 10
        s_lshl_b32 s61, s{sWAVE}, 2
        s_add_u32 s60, s60, s61
        s_add_u32 s68, s28, s60
        s_addc_u32 s69, s29, 0
        s_add_u32 s68, s68, 0x18000000
        s_addc_u32 s69, s69, 0
        v_lshlrev_b32 v21, 2, v0
        global_store_dword v21, v20, s[68:69]""")
    if cfg.diag: e(f"s_lshr_b32 s{sWAVE}, s{sWAVE}, 6")
    stamps_out(6)
    e("s_endpgm")

    e(f"""L_nl2:
    {f"s_mov_b64 exec, 1; v_mov_b32 v5, 2; ds_write_b32 v1, v5 offset:{F_T}; s_waitcnt vmcnt(0) lgkmcnt(0); s_endpgm".replace("; ", chr(10)) if cfg.only == 1 else ""}
    s_setprio {cfg.nprio}
    v_and_b32 v2, 15, v0
    v_lshrrev_b32 v3, 4, v0
    s_mul_i32 s44, s2, {cfg.rotmul}
    s_bfe_u32 s{sRS}, s44, 0x20002
    s_lshl_b32 s{sSLOT}, s{sG}, 5
    s_add_u32 s{sSLOT}, s{sSLOT}, s{sI}
    s_mov_b32 s{sCAP}, {SPIN_CAP}
    s_add_u32 s68, s{sG}, {7 - cfg.lightg}
    s_and_b32 s68, s68, 7
    s_cmp_lt_u32 s68, 7
    s_cselect_b32 s{sVB}, 24, 20
    s_mov_b32 s{sKEND}, {'20' if cfg.bpos else f's{sVB}'}
    v_mov_b32 v4, {TMASK}
    s_mov_b32 s{SRD_WS}, s28
    s_mov_b32 s{SRD_WS+1}, s29
    s_mov_b32 s{SRD_WS+2}, {WS_BYTES}
    s_mov_b32 s{SRD_WS+3}, 0x20000
    s_mov_b32 s{sOFF}, 0
    s_mov_b32 s{sBOFF}, {B_OFF}
    s_cmp_ge_u32 s{sWAVE}, 6
    s_cbranch_scc1 L_compute
    """)
    e(f"""
    s_cmp_eq_u32 s{sWAVE}, 4
    s_cbranch_scc0 L_roleB
    s_mov_b32 s44, 0
    s_lshr_b32 s53, s{sI}, 3
    s_lshl_b32 s52, s{sSLOT}, 9
    s_add_u32 s52, s52, {W_QP}
    s_mov_b32 s54, {L_WO}
    s_mov_b32 s55, {L_ACTA}
    s_mov_b32 s45, 4
    s_branch L_tilecommon
    L_roleB:
    s_add_u32 s54, s{sRS}, 3
    s_and_b32 s54, s54, 3
    s_add_u32 s54, s54, 4
    s_lshl_b32 s54, s54, 14
    s_mov_b32 s55, {L_ACTB}
    s_mov_b32 s45, {24 if cfg.bpos else 8}
    s_and_b32 s52, s{sI}, 15
    s_lshl4_add_u32 s52, s68, s52
    s_lshr_b32 s44, s{sI}, 4
    s_and_b32 s53, s52, 3
    s_lshr_b32 s46, s52, 3
    s_lshl_b32 s52, s52, 9
    s_cmp_eq_u32 s44, 0
    s_cselect_b32 s53, s53, s46
    s_mov_b32 s46, {W_FP}
    s_cselect_b32 s46, {W_HP}, s46
    s_add_u32 s52, s52, s46
    s_cmp_eq_u32 s68, 7
    s_cselect_b32 s44, 2, s44
    L_tilecommon:
    """)
    estamp(2)
    stamp(1)
    e(f"""
    v_lshrrev_b32 v5, 2, v2
    v_lshl_add_u32 v5, v3, 3, v5
    v_lshlrev_b32 v5, 7, v5
    v_and_b32 v6, 3, v2
    v_lshl_add_u32 v5, v6, 3, v5
    v_add_u32 v5, s54, v5
    v_lshrrev_b32 v6, 3, v2
    v_and_b32 v7, 1, v3
    v_lshl_or_b32 v6, v7, 1, v6
    """)
    for u in range(4):
        e(f"v_xor_b32 v7, {u}, v6\nv_lshl_add_u32 v{16+u}, v7, 5, v5")
    e(f"""
    v_and_b32 v5, 1, v0
    v_mul_u32_u24 v5, 288, v5
    v_lshl_add_u32 v5, v3, 4, v5
    v_add_u32 v20, s55, v5
    v_mov_b32 v21, 1
    v_mov_b32 v60, 0
    s_waitcnt lgkmcnt(0)
    """)
    nonce_from_epoch()
    e(f"""
    s_cmp_eq_u32 s44, 0
    s_waitcnt vmcnt(0)
    s_cbranch_scc0 L_noLN
    """)
    estamp(4)
    for k in range(8):
        e(f"v_lshlrev_b32 v{24+2*k}, 16, v{8+k}\nv_and_b32 v{25+2*k}, 0xffff0000, v{8+k}")
    e("v_pk_add_f32 v[40:41], v[24:25], v[26:27]")
    for k in range(2, 8):
        e(f"v_pk_add_f32 v[40:41], v[40:41], v[{24+2*k}:{25+2*k}]")
    e("v_add_f32 v40, v40, v41")
    dpp_add(40, (8, 4, 2, 1))
    e("v_mov_b32 v41, v40\ns_nop 1\nv_permlane16_swap_b32 v40, v41\ns_nop 0\nv_add_f32 v40, v40, v41")
    e("v_mul_f32 v40, 0xbb000000, v40\nv_mov_b32 v41, v40")
    e("v_pk_add_f32 v[42:43], v[24:25], v[40:41]\nv_pk_mul_f32 v[44:45], v[42:43], v[42:43]")
    for k in range(1, 8):
        e(f"v_pk_add_f32 v[42:43], v[{24+2*k}:{25+2*k}], v[40:41]\nv_pk_fma_f32 v[44:45], v[42:43], v[42:43], v[44:45]")
    e("v_add_f32 v44, v44, v45")
    dpp_add(44, (8, 4, 2, 1))
    e("v_mov_b32 v45, v44\ns_nop 1\nv_permlane16_swap_b32 v44, v45\ns_nop 0\nv_add_f32 v44, v44, v45")
    e("v_mul_f32 v44, 0x3b000000, v44")
    rnd_bf16(44)
    e("v_add_f32 v44, 0x3727c5ac, v44")
    rnd_bf16(44)
    e("v_sqrt_f32 v44, v44\ns_nop 0")
    rnd_bf16(44)
    e("v_rcp_f32 v44, v44")
    rnd_bf16(40)
    e("v_mov_b32 v41, v40\nv_mov_b32 v45, v44")
    for k in range(8):
        e(f"v_pk_add_f32 v[42:43], v[{24+2*k}:{25+2*k}], v[40:41]")
        e(f"v_cvt_pk_bf16_f32 v42, v42, v43\nv_and_b32 v43, 0xffff0000, v42\nv_lshlrev_b32 v42, 16, v42")
        e(f"v_pk_mul_f32 v[42:43], v[42:43], v[44:45]\nv_cvt_pk_bf16_f32 v{8+k}, v42, v43")
    e(f"""
    v_bfe_u32 v5, v0, 3, 2
    v_lshrrev_b32 v6, 5, v0
    v_mul_u32_u24 v6, 288, v6
    v_and_b32 v7, 7, v0
    v_lshl_add_u32 v6, v7, 5, v6
    v_add_u32 v6, s55, v6
    v_cmp_eq_u32 vcc, s53, v5
    s_and_saveexec_b64 s[56:57], vcc
    ds_write_b128 v6, v[8:11]
    ds_write_b128 v6, v[12:15] offset:16
    s_mov_b64 exec, -1
    L_noLN:
    """)
    stamp(2)
    e(f"""
    s_cmp_eq_u32 s44, 2
    s_cbranch_scc1 L_notile
    """)
    spin_land(45, 5, slp=cfg.slp)
    estamp(5)
    for u in range(4):
        for t in range(4):
            r = 64 + 16*u + 4*t
            e(f"ds_read_b64_tr_b16 v[{r}:{r+1}], v{16+u} offset:{t*4096}")
            e(f"ds_read_b64_tr_b16 v[{r+2}:{r+3}], v{16+u} offset:{t*4096+512}")
    e(f"""
    s_waitcnt lgkmcnt(0)
    L_notile:
    """)
    flag_add(1, F_T, 21)
    stamp(3)
    e(f"""
    s_cmp_eq_u32 s44, 1
    s_cbranch_scc0 L_noH
    """)
    e(f"""
    v_bfe_u32 v5, v0, 4, 1
    v_lshlrev_b32 v5, 11, v5
    v_lshrrev_b32 v6, 5, v0
    v_lshl_add_u32 v5, v6, 8, v5
    v_lshl_add_u32 v5, v2, 4, v5
    s_lshl_b32 s56, s53, 12
    s_add_u32 s56, s56, {W_HP}
    v_add_u32 v5, s56, v5
    v_and_b32 v7, 31, v0
    v_lshlrev_b32 v7, 3, v7
    s_lshl_b32 s56, s53, 8
    v_add_u32 v22, s56, v7
    global_load_dwordx2 v[22:23], v22, s[18:19]
    v_mul_u32_u24 v6, 288, v6
    v_add3_u32 v6, v6, v7, s55
    """)
    e(f"s_mov_b32 s45, {cfg.hgate}")
    spin_land(45, 7, slp=cfg.slp)
    e("L_hretry:")
    for k in range(4):
        e(f"buffer_load_dwordx4 v[{24+4*k}:{27+4*k}], v5, s[{SRD_WS}:{SRD_WS+3}], s{sOFF} offen offset:{512*k} sc1")
    e("s_waitcnt vmcnt(0)")
    for k in range(4): tag_check(24+4*k, 7, k == 0)
    e(f"""
    v_and_b32 v7, v4, v7
    v_cmp_ne_u32 vcc, 0, v7
    s_cbranch_vccz L_hok""")
    get_loc(7)
    e(f"""
    s_sub_u32 s{sCAP}, s{sCAP}, 1
    s_cbranch_scc0 L_hretry
    s_mov_b32 s{sCAP}, 0
    L_hok:""")
    for k in range(16): e(f"v_and_b32 v{24+k}, 0xfffff800, v{24+k}")
    e("""
    v_pk_add_f32 v[24:25], v[24:25], v[28:29]
    v_pk_add_f32 v[26:27], v[26:27], v[30:31]
    v_pk_add_f32 v[32:33], v[32:33], v[36:37]
    v_pk_add_f32 v[34:35], v[34:35], v[38:39]
    v_pk_add_f32 v[24:25], v[24:25], v[32:33]
    v_pk_add_f32 v[26:27], v[26:27], v[34:35]
    v_cvt_pk_bf16_f32 v24, v24, v25
    v_cvt_pk_bf16_f32 v26, v26, v27
    v_and_b32 v25, 0xffff0000, v24
    v_lshlrev_b32 v24, 16, v24
    v_and_b32 v27, 0xffff0000, v26
    v_lshlrev_b32 v26, 16, v26
    v_lshlrev_b32 v28, 16, v22
    v_and_b32 v29, 0xffff0000, v22
    v_lshlrev_b32 v30, 16, v23
    v_and_b32 v31, 0xffff0000, v23
    v_pk_add_f32 v[24:25], v[24:25], v[28:29]
    v_pk_add_f32 v[26:27], v[26:27], v[30:31]
    v_cvt_pk_bf16_f32 v24, v24, v25
    v_cvt_pk_bf16_f32 v26, v26, v27
    v_and_b32 v25, 0xffff0000, v24
    v_lshlrev_b32 v24, 16, v24
    v_and_b32 v27, 0xffff0000, v26
    v_lshlrev_b32 v26, 16, v26
    v_max_f32 v24, 0, v24
    v_max_f32 v25, 0, v25
    v_max_f32 v26, 0, v26
    v_max_f32 v27, 0, v27
    v_pk_mul_f32 v[24:25], v[24:25], v[24:25]
    v_pk_mul_f32 v[26:27], v[26:27], v[26:27]
    v_cvt_pk_bf16_f32 v24, v24, v25
    v_cvt_pk_bf16_f32 v25, v26, v27
    ds_write_b64 v6, v[24:25]
    L_noH:
    s_cmp_eq_u32 s44, 2
    s_cbranch_scc1 L_nopub
    """)
    e("s_waitcnt lgkmcnt(0)")
    for t in range(4):
        e(f"ds_read_b128 v[{24+4*t}:{27+4*t}], v20 offset:{64*t}")
    e(f"""
    s_cmp_eq_u32 s44, 0
    s_cselect_b32 s56, 8, 4
    s_cselect_b32 s57, 6, 5
    s_cselect_b32 s58, 4, 7
    v_and_b32 v5, 1, v0
    v_lshlrev_b32 v5, s56, v5
    v_bfe_u32 v6, v0, 1, 2
    v_lshl_add_u32 v5, v6, s57, v5
    v_lshl_add_u32 v5, v3, s58, v5
    v_add_u32 v60, s52, v5
    v_and_b32 v6, 2, v0
    v_cmp_ne_u32 s[56:57], 0, v6
    v_and_b32 v6, 4, v0
    v_cmp_ne_u32 s[58:59], 0, v6
    s_waitcnt lgkmcnt(0)
    """)
    for t in range(4):
        for u in range(4):
            r = 64 + 16*u + 4*t
            c = f"v[{40+4*u}:{43+4*u}]"
            e(f"v_mfma_f32_16x16x32_bf16 {c}, v[{r}:{r+3}], v[{24+4*t}:{27+4*t}], {c if t else 0}")
    e("s_nop 7")
    for k in range(4):
        e(f"v_cndmask_b32 v{40+k}, v{40+k}, v{44+k}, s[56:57]")
    for k in range(4):
        e(f"v_cndmask_b32 v{48+k}, v{48+k}, v{52+k}, s[56:57]")
    for k in range(4):
        e(f"v_cndmask_b32 v{56+k}, v{40+k}, v{48+k}, s[58:59]")
    for k in range(4): e(f"v_add_u32 v{56+k}, 0x400, v{56+k}")
    tag_insert(56, 4)
    e(f"""
    s_mov_b32 s74, 0x00ff00ff
    s_mov_b32 s75, 0x00ff00ff
    s_mov_b64 exec, s[74:75]
    s_cmp_eq_u32 s44, 0
    s_cbranch_scc0 L_pubB
    buffer_store_dwordx4 v[56:59], v60, s[{SRD_WS}:{SRD_WS+3}], 0 offen
    s_branch L_pubE
    L_pubB:
    buffer_store_dwordx4 v[56:59], v60, s[{SRD_WS}:{SRD_WS+3}], 0 offen sc1
    L_pubE:
    s_mov_b64 exec, -1
    L_nopub:
    """)
    stamp(4)
    e(f"""
    s_cmp_eq_u32 s{sWAVE}, 4
    s_cbranch_scc0 L_final
    """)
    e(f"""
    v_lshlrev_b32 v10, 9, v3
    v_lshl_add_u32 v10, v2, 4, v10
    s_lshl_b32 s56, s{sG}, 14
    s_lshr_b32 s57, s{sI}, 4
    s_lshl_b32 s57, s57, 8
    s_add_u32 s56, s56, s57
    s_add_u32 s56, s56, {W_QP}
    v_add_u32 v10, s56, v10
    v_add_u32 v11, 0x1000, v10
    v_add_u32 v12, 0x2000, v10
    v_add_u32 v13, 0x3000, v10
    v_lshrrev_b32 v8, 5, v0
    v_lshlrev_b32 v8, 5, v8
    v_lshl_add_u32 v8, v0, 3, v8
    v_add_u32 v8, {L_QS}, v8
    s_sub_u32 s45, s{sKEND}, {cfg.qlead}
    s_getreg_b32 s76, hwreg(HW_REG_XCC_ID, 0, 4)
    s_lshl_b32 s56, s76, 16
    v_mov_b32 v64, s56
    v_mov_b32 v65, 0
    v_mov_b32 v66, 0
    v_mov_b32 v67, 0
    s_lshl_b32 s56, s{sSLOT}, 7
    s_add_u32 s56, s56, {W_ST+64}
    v_mov_b32 v61, s56
    v_and_b32 v62, 31, v0
    v_lshlrev_b32 v62, 7, v62
    s_lshl_b32 s56, s{sG}, 12
    s_add_u32 s56, s56, {W_ST+64}
    v_add_u32 v62, s56, v62
    s_mov_b32 s77, 0
    s_mov_b32 s78, 0
    """)
    tag_insert(64, 4)
    e(f"""
    s_mov_b64 exec, 1
    buffer_store_dwordx4 v[64:67], v61, s[{SRD_WS}:{SRD_WS+3}], 0 offen
    s_mov_b64 exec, -1
    """)
    def pubB_q():
        L = lbl("L_pb")
        e(f"""
        s_cmp_eq_u32 s77, 0
        s_cbranch_scc0 {L}
        s_mov_b32 s77, 1
        s_mov_b64 exec, s[74:75]
        buffer_store_dwordx4 v[56:59], v60, s[{SRD_WS}:{SRD_WS+3}], s{sBOFF} offen sc1
        s_mov_b64 exec, 1
        buffer_store_dwordx4 v[64:67], v61, s[{SRD_WS}:{SRD_WS+3}], s{sBOFF} offen sc1
        s_mov_b64 exec, -1
        {L}:""")
    spin_land(45, 7, slp=cfg.slp)
    e("L_qretry:")
    for v in range(2):
        for k in range(4):
            r = 24 + 16*v + 4*k
            e(f"buffer_load_dwordx4 v[{r}:{r+3}], v{10+k}, s[{SRD_WS}:{SRD_WS+3}], s{sOFF} offen offset:{2048*v} {cfg.ldA}")
    e(f"buffer_load_dwordx4 v[68:71], v62, s[{SRD_WS}:{SRD_WS+3}], s{sOFF} offen {cfg.ldA}")
    e("s_waitcnt vmcnt(0)")
    for k in range(8): tag_check(24+4*k, 7, k == 0)
    tag_check(68, 7, False)
    e(f"""
    v_and_b32 v7, v4, v7
    v_cmp_ne_u32 vcc, 0, v7
    s_cbranch_vccz L_qok
    s_add_u32 s78, s78, 1
    s_cmp_lt_u32 s78, {cfg.ntmo}
    s_cbranch_scc1 L_qretry
    s_xor_b32 s{sOFF}, s{sOFF}, s{sBOFF}
    """)
    pubB_q()
    e(f"""
    s_sub_u32 s{sCAP}, s{sCAP}, 1
    s_cbranch_scc0 L_qretry
    s_mov_b32 s{sCAP}, 0
    L_qok:
    v_lshrrev_b32 v68, 16, v68
    v_cmp_ne_u32 vcc, s76, v68
    s_mov_b32 s{sOFF}, 0
    s_cbranch_vccz L_qloc
    s_mov_b32 s{sOFF}, s{sBOFF}
    """)
    pubB_q()
    e(f"""L_qloc:
    s_add_u32 s56, s{sOFF}, 1
    v_mov_b32 v9, s56
    """)
    for k in range(32): e(f"v_and_b32 v{24+k}, 0xfffff800, v{24+k}")
    for v in range(2):
        r = 24 + 16*v
        e(f"""
        v_pk_add_f32 v[{r}:{r+1}], v[{r}:{r+1}], v[{r+4}:{r+5}]
        v_pk_add_f32 v[{r+2}:{r+3}], v[{r+2}:{r+3}], v[{r+6}:{r+7}]
        v_pk_add_f32 v[{r+8}:{r+9}], v[{r+8}:{r+9}], v[{r+12}:{r+13}]
        v_pk_add_f32 v[{r+10}:{r+11}], v[{r+10}:{r+11}], v[{r+14}:{r+15}]
        v_pk_add_f32 v[{r}:{r+1}], v[{r}:{r+1}], v[{r+8}:{r+9}]
        v_pk_add_f32 v[{r+2}:{r+3}], v[{r+2}:{r+3}], v[{r+10}:{r+11}]
        v_cvt_pk_bf16_f32 v{r}, v{r}, v{r+1}
        v_cvt_pk_bf16_f32 v{r+1}, v{r+2}, v{r+3}
        ds_write_b64 v8, v[{r}:{r+1}] offset:{576*v}
        """)
    flag_set(1, F_Q, 9)
    stamp(5)
    e(f"""
    v_and_b32 v5, 31, v0
    v_lshrrev_b32 v6, 5, v0
    v_lshlrev_b32 v9, 4, v5
    v_lshl_add_u32 v9, v6, 2, v9
    v_add_u32 v9, {L_WT}, v9
    v_lshlrev_b32 v5, 7, v5
    v_lshl_add_u32 v5, v6, 4, v5
    s_lshl_b32 s56, s{sG}, 12
    s_add_u32 s56, s56, {W_ST}
    v_add_u32 v5, s56, v5
    """)
    if cfg.slead > 0:
        e(f"s_add_u32 s45, s{sVB}, {cfg.slead}")
        spin_land(45, 7, slp=cfg.slp)
    spin_ge(1, F_P, 4, 7, slp=cfg.slp)
    def lds_(r):
        e(f"""
        buffer_load_dwordx4 v[{r}:{r+3}], v5, s[{SRD_WS}:{SRD_WS+3}], s{sOFF} offen {cfg.ldA}
        buffer_load_dwordx4 v[{r+4}:{r+7}], v5, s[{SRD_WS}:{SRD_WS+3}], s{sOFF} offen offset:32 {cfg.ldA}""")
    if cfg.pps:
        def chks(r, L):
            tag_check(r, 7, True); tag_check(r+4, 7, False)
            e(f"v_and_b32 v7, v4, v7\nv_cmp_ne_u32 vcc, 0, v7\ns_cbranch_vccz {L}")
        lds_(32)
        e(f"s_add_u32 s45, s45, {cfg.pps}")
        spin_land(45, 7, slp=cfg.slp)
        lds_(40)
        e("s_mov_b64 s[62:63], -1\nL_sp2:\ns_waitcnt vmcnt(2)")
        chks(32, "L_sX")
        e("s_mov_b64 s[60:61], vcc\ns_mov_b64 exec, vcc")
        lds_(32)
        e("s_mov_b64 exec, s[62:63]\ns_waitcnt vmcnt(2)")
        chks(40, "L_sY")
        e("s_mov_b64 s[62:63], vcc\ns_mov_b64 exec, vcc")
        lds_(40)
        e(f"""
        s_mov_b64 exec, s[60:61]
        s_sub_u32 s{sCAP}, s{sCAP}, 1
        s_cbranch_scc0 L_sp2
        s_mov_b32 s{sCAP}, 0
        s_waitcnt vmcnt(0)
        L_sY:
        s_mov_b64 exec, -1""")
        for k in (0, 1, 4, 5): e(f"v_mov_b32 v{24+k}, v{40+k}")
        e("s_branch L_sj\nL_sX:\ns_mov_b64 exec, -1")
        for k in (0, 1, 4, 5): e(f"v_mov_b32 v{24+k}, v{32+k}")
        e("L_sj:")
    else:
        e("L_sretry:")
        lds_(24)
        e("s_waitcnt vmcnt(0)")
        tag_check(24, 7, True); tag_check(28, 7, False)
        tag_branch(7, "L_sretry", masked=True)
    for r in (24, 28):
        e(f"""
        v_and_b32 v{r}, 0xfffff800, v{r}
        v_and_b32 v{r+1}, 0xfffff800, v{r+1}
        v_mov_b32 v{r+2}, v{r}
        """)
        dpp_max(r+2, (8, 4, 2, 1))
        e(f"""
        v_sub_f32 v{r}, v{r}, v{r+2}
        v_mul_f32 v{r}, {LOG2E}, v{r}
        v_exp_f32 v{r}, v{r}
        s_nop 0
        v_mul_f32 v{r+1}, v{r}, v{r+1}
        """)
        dpp_add(r+1, (8, 4, 2, 1))
        e(f"""
        v_rcp_f32 v{r+1}, v{r+1}
        s_nop 0
        v_mul_f32 v{r}, v{r}, v{r+1}
        ds_write_b32 v9, v{r} offset:{2*(r-24)}
        """)
    flag_set(1, F_W, 21)
    if cfg.dirty:
        e(f"s_mov_b32 s{SRD_WS+2}, 0x2000000\ns_mul_i32 s56, s2, {1024*cfg.dirty}\ns_add_u32 s56, s56, 0x400000\nv_lshlrev_b32 v5, 4, v0")
        for k in range(cfg.dirty):
            e(f"buffer_store_dwordx4 v[24:27], v5, s[{SRD_WS}:{SRD_WS+3}], s56 offen\ns_add_u32 s56, s56, 1024")
    stamp(6)
    if cfg.diag: e(f"s_waitcnt lgkmcnt(0)\ns_sub_u32 s94, {SPIN_CAP}, s{sCAP}\ns_lshl_b32 s94, s94, 8\ns_add_u32 s94, s94, s78\ns_mov_b32 s95, 0")
    stamps_out(8)
    e("s_endpgm")

    e(f"""L_final:
    {"s_waitcnt lgkmcnt(0); s_lshl_b32 s56, s2, 2; s_add_u32 s56, s56, 0x1E0000; v_mov_b32 v5, s56; v_mov_b32 v6, s80; s_mov_b64 exec, 1; buffer_store_dword v6, v5, s[36:39], 0 offen sc1; s_mov_b64 exec, -1".replace("; ", chr(10)) if cfg.skew else ""}
    s_cmp_eq_u32 s44, 0
    s_cbranch_scc0 L_fin0
    """)
    get_loc(7)
    e(f"""
    s_cmp_eq_u32 s{sOFF}, 0
    s_cbranch_scc1 L_fin0
    s_mov_b64 exec, s[74:75]
    buffer_store_dwordx4 v[56:59], v60, s[{SRD_WS}:{SRD_WS+3}], s{sBOFF} offen sc1
    s_mov_b64 exec, -1
    L_fin0:
    s_lshr_b32 s56, s{sI}, 3          ; ctile
    s_and_b32 s57, s{sI}, 1           ; b
    s_bfe_u32 s58, s{sI}, 0x10001     ; e
    s_bfe_u32 s59, s{sI}, 0x10002
    s_and_b32 s60, s{sG}, 1
    s_lshl1_add_u32 s59, s60, s59     ; G
    s_lshr_b32 s60, s{sG}, 1          ; w
    s_lshl2_add_u32 s61, s56, s60     ; 4*ctile + w
    s_lshl1_add_u32 s62, s61, s58
    s_lshl2_add_u32 s62, s62, s59     ; nq = n0/4
    v_and_b32 v5, 1, v3
    v_lshlrev_b32 v5, 1, v5
    v_lshrrev_b32 v6, 1, v3
    v_or_b32 v5, v5, v6              ; e(R)
    v_lshlrev_b32 v5, 1, v5
    s_lshl_b32 s63, s62, 3
    v_add_u32 v6, s63, v5
    global_load_ushort v10, v6, s[22:23]
    s_lshl_b32 s63, s57, 10
    v_add_u32 v8, s63, v6
    global_load_ushort v11, v8, s[4:5]
    s_lshr_b32 s63, s62, 4           ; ctile8
    s_lshl2_add_u32 s63, s63, s59
    s_lshl_b32 s63, s63, 2
    s_bfe_u32 s61, s62, 0x20002      ; u
    s_add_u32 s63, s63, s61
    s_lshl1_add_u32 s63, s63, s57
    s_lshl4_add_u32 s63, s63, {W_FP}
    v_min_u32 v5, 13, v0
    v_lshlrev_b32 v5, 12, v5
    v_add_u32 v5, s63, v5
    s_lshl3_add_u32 s63, s56, s{sG}
    s_and_b32 s61, s{sI}, 7
    s_lshl3_add_u32 s63, s63, s61
    s_lshl4_add_u32 s63, s63, {W_SP}
    v_lshlrev_b32 v6, 12, v0
    v_add_u32 v6, s63, v6
    v_cmp_gt_u32 s[60:61], 14, v0
    s_mov_b32 s64, s24
    s_mov_b32 s65, s25
    s_mov_b32 s66, 2048
    s_mov_b32 s67, 0x20000
    s_add_u32 s45, s{sVB}, {cfg.flead}
    """)
    spin_land(45, 7, slp=cfg.slp)
    e(f"""L_fretry:
    buffer_load_dwordx4 v[24:27], v5, s[{SRD_WS}:{SRD_WS+3}], 0 offen sc1
    s_waitcnt vmcnt(0)
    """)
    tag_check(24, 7, True)
    tag_branch(7, "L_fretry", masked=True)
    def gate_math():
        for k in range(4):
            e(f"v_and_b32 v{24+k}, 0xfffff800, v{24+k}")
        for k in range(4):
            e(f"v_cndmask_b32 v{24+k}, 0, v{24+k}, s[60:61]")
        reduce4_rows(24, 28)
        dpp_add(24, (8, 4, 2, 1))
        rnd_bf16(24)
        e("v_lshlrev_b32 v10, 16, v10\nv_add_f32 v24, v24, v10")
        rnd_bf16(24)
        e(f"""
        v_mul_f32 v25, 0xbfb8aa3b, v24
        v_exp_f32 v25, v25
        s_nop 0
        v_add_f32 v25, 1.0, v25
        v_rcp_f32 v25, v25
        s_nop 0
        v_mul_f32 v12, v24, v25
        """)
        rnd_bf16(12)
        e("v_lshlrev_b32 v11, 16, v11")
    if not (cfg.pp3 and cfg.gap3 == 0): gate_math()
    stamp(5)
    if cfg.h3gate == 0: spin_ge(1, F_O, 4, 7, slp=cfg.slp)
    else: spin_ge(1, F_K, 4, 7, slp=cfg.slp)
    if cfg.h3slp: e(f"s_sleep {cfg.h3slp}")
    def ld3(r): e(f"buffer_load_dwordx4 v[{r}:{r+3}], v6, s[{SRD_WS}:{SRD_WS+3}], 0 offen sc1")
    def chk3(r, L):
        tag_check(r, 7, True)
        e(f"v_and_b32 v7, v4, v7\nv_cmp_ne_u32 vcc, 0, v7\ns_cbranch_vccz {L}")
    if cfg.hack4: e("v_and_b32 v6, 0xffffefff, v6\nv_or_b32 v6, 0, v6")
    if cfg.pp3:
        ld3(32)
        if cfg.gap3: e(f"s_sleep {cfg.gap3}")
        else: gate_math()
        ld3(36)
        e("s_mov_b64 s[62:63], -1\nL_3p:\ns_waitcnt vmcnt(1)")
        chk3(32, "L_3X")
        e("s_mov_b64 s[60:61], vcc\ns_mov_b64 exec, vcc")
        ld3(32)
        e("s_mov_b64 exec, s[62:63]\ns_waitcnt vmcnt(1)")
        chk3(36, "L_3Y")
        e("s_mov_b64 s[62:63], vcc\ns_mov_b64 exec, vcc")
        ld3(36)
        e(f"""
        s_mov_b64 exec, s[60:61]
        s_sub_u32 s{sCAP}, s{sCAP}, 1
        s_cbranch_scc0 L_3p
        s_mov_b32 s{sCAP}, 0
        s_waitcnt vmcnt(0)
        L_3Y:
        s_mov_b64 exec, -1""")
        for k in range(4): e(f"v_and_b32 v{24+k}, 0xfffff800, v{36+k}")
        e("s_branch L_3j\nL_3X:\ns_mov_b64 exec, -1")
        for k in range(4): e(f"v_and_b32 v{24+k}, 0xfffff800, v{32+k}")
        e("L_3j:")
    else:
        e("L_3retry:")
        ld3(24)
        e("s_waitcnt vmcnt(0)")
        tag_check(24, 7, True)
        tag_branch(7, "L_3retry", masked=True, slp=cfg.h3loop)
        for k in range(4): e(f"v_and_b32 v{24+k}, 0xfffff800, v{24+k}")
    stamp(6)
    reduce4_rows(24, 28)
    dpp_add(24, (8, 4, 2, 1))
    rnd_bf16(24)
    e("v_mul_f32 v24, v24, v12")
    rnd_bf16(24)
    e(f"""
    v_add_f32 v24, v24, v11
    v_cvt_pk_bf16_f32 v24, v24, v24
    s_mov_b32 s56, 0x00010001
    s_mov_b32 s57, 0x00010001
    s_mov_b64 exec, s[56:57]
    buffer_store_short v24, v8, s[64:67], 0 offen {cfg.outst}
    s_cmp_eq_u32 s2, 0
    s_cbranch_scc0 L_fin2
    s_mov_b64 exec, 1
    v_mov_b32 v26, s34
    v_mov_b32 v27, s35
    v_mov_b32 v28, 0
    buffer_store_dwordx2 v[26:27], v28, s[{SRD_WS}:{SRD_WS+3}], 0 offen {cfg.epst}
    L_fin2:
    """)
    if cfg.skew:
        e(f"""
        s_cmp_eq_u32 s2, 0
        s_cbranch_scc0 L_skend
        s_mov_b64 exec, -1
        v_lshlrev_b32 v5, 4, v0
        v_add_u32 v5, 0x1E0000, v5
        buffer_load_dwordx4 v[40:43], v5, s[{SRD_WS}:{SRD_WS+3}], 0 offen sc1
        s_waitcnt vmcnt(0) lgkmcnt(0)
        v_subrev_u32 v40, s80, v40
        v_subrev_u32 v41, s80, v41
        v_subrev_u32 v42, s80, v42
        v_subrev_u32 v43, s80, v43
        v_max3_i32 v44, v40, v41, v42
        v_max_i32 v44, v44, v43
        v_min3_i32 v45, v40, v41, v42
        v_min_i32 v45, v45, v43
        s_mov_b32 s60, 0x80000000
        s_mov_b32 s61, 0x7fffffff
        """)
        if cfg.skewg >= 0: e(f"v_mov_b32 v44, v{40 + (cfg.skewg & 3)}\ns_nop 1")
        for l in range(64):
            if cfg.skewg >= 0 and (l & 1) != (cfg.skewg >> 2):
                e(f"v_readlane_b32 s62, v45, {l}\nv_readlane_b32 s63, v45, {l}\ns_nop 1\ns_min_i32 s61, s61, s62\ns_min_i32 s61, s61, s63"); continue
            e(f"v_readlane_b32 s62, v44, {l}\nv_readlane_b32 s63, v45, {l}\ns_nop 1\ns_max_i32 s60, s60, s62\ns_min_i32 s61, s61, s63")
        e(f"""
        s_sub_u32 s60, s60, s61
        s_min_u32 s60, s60, 2000
        s_mul_i32 s60, s60, 20
        s_memrealtime s[62:63]
        s_waitcnt lgkmcnt(0)
        L_sksp:
        s_memrealtime s[68:69]
        s_waitcnt lgkmcnt(0)
        s_sub_u32 s61, s68, s62
        s_cmp_lt_u32 s61, s60
        s_cbranch_scc1 L_sksp
        L_skend:""")
    stamp(7)
    stamps_out(8)
    e("s_endpgm")

    sW = 44
    e(f"""L_compute:
    s_setprio {cfg.cprio}
    s_sub_u32 s{sW}, s{sWAVE}, 6
    """)
    if cfg.touch:
        e(f"""
        s_cmp_eq_u32 s{sW}, 2
        s_cbranch_scc0 L_notouch
        s_lshr_b32 s45, s{sI}, 4
        s_lshl_b32 s45, s45, 26
        s_lshl_b32 s46, s{sG}, 23
        s_add_u32 s45, s45, s46
        s_and_b32 s46, s{sI}, 15
        s_lshl_b32 s46, s46, 16
        s_add_u32 s45, s45, s46
        s_add_u32 s45, s45, {28672*256}
        v_mov_b32 v5, s45
        s_lshl_b32 s45, s{sG}, 19
        s_lshr_b32 s46, s{sI}, 2
        s_lshl_b32 s46, s46, 16
        s_add_u32 s45, s45, s46
        v_mov_b32 v6, s45
        v_mov_b32 v7, 0
        s_mov_b64 exec, 1""")
        if 'k' in cfg.touch: e("global_load_dword v164, v5, s[6:7] nt")
        if 'v' in cfg.touch: e("global_load_dword v164, v5, s[8:9] nt")
        if 'o' in cfg.touch: e("global_load_dword v164, v6, s[12:13] nt")
        if 'w' in cfg.touch: e("global_load_dword v164, v7, s[28:29]")
        if 'u' in cfg.touch: e("global_load_dword v164, v7, s[24:25]")
        e("s_mov_b64 exec, -1\nL_notouch:")
    for r in range(64, 128): e(f"v_mov_b32 v{r}, 0")
    e(f"""
    s_lshl_b32 s45, s{sW}, 14
    v_lshlrev_b32 v5, 8, v2
    v_add_u32 v5, s45, v5
    v_xor_b32 v6, v3, v2
    """)
    for t in range(4):
        e(f"v_xor_b32 v7, {4*t}, v6\nv_lshl_add_u32 v{8+t}, v7, 4, v5")
    e(f"""
    v_and_b32 v13, 3, v2
    v_mul_u32_u24 v12, 288, v13
    v_lshl_add_u32 v12, v3, 4, v12
    v_add_u32 v12, {L_QS}, v12
    """)
    e(f"""
    v_lshl_add_u32 v15, v3, 2, v13
    v_lshlrev_b32 v15, 4, v15
    v_add_u32 v15, {L_PB}, v15
    v_lshrrev_b32 v5, 3, v2
    v_lshl_add_u32 v14, v5, 8, v15
    v_bfe_u32 v5, v2, 2, 1
    v_lshl_add_u32 v14, v5, 3, v14
    s_lshl_b32 s45, s{sW}, 9
    v_add_u32 v14, s45, v14
    v_lshlrev_b32 v17, 3, v13
    v_add_u32 v17, {L_SB}, v17
    s_lshl_b32 s45, s{sW}, 5
    v_add_u32 v16, s45, v17
    """)
    e(f"""
    v_lshrrev_b32 v5, 2, v2
    v_and_b32 v6, 1, v3
    v_lshl_add_u32 v6, v6, 2, v5
    s_lshl_b32 s45, s{sW}, 1
    v_xor_b32 v6, s45, v6
    v_lshlrev_b32 v7, 3, v13
    v_lshl_add_u32 v22, v6, 5, v7
    v_xor_b32 v23, 32, v22
    v_lshl_add_u32 v6, v3, 2, v5
    v_lshlrev_b32 v6, 8, v6
    v_add_u32 v6, {L_V}, v6
    v_add_u32 v18, v6, v22
    v_add_u32 v19, v6, v23
    v_lshl_add_u32 v6, v3, 3, v5
    v_lshlrev_b32 v6, 8, v6
    v_add_u32 v6, {L_WO}, v6
    v_add_u32 v20, v6, v22
    v_add_u32 v21, v6, v23
    """)
    e(f"""
    s_lshl_b32 s45, s{sW}, 7
    v_lshl_add_u32 v5, v3, 4, s45
    s_lshl_b32 s46, s{sSLOT}, 11
    s_add_u32 s46, s46, {W_OP}
    s_lshl2_add_u32 s46, s45, s46
    v_lshl_add_u32 v22, v0, 4, s46
    s_lshl_b32 s46, s{sSLOT}, 10
    s_add_u32 s46, s46, {W_SP}
    s_lshl1_add_u32 s46, s45, s46
    v_lshlrev_b32 v23, 4, v13
    v_lshl_add_u32 v23, v3, 6, v23
    v_add_u32 v23, s46, v23
    v_and_b32 v6, 1, v2
    v_lshlrev_b32 v28, 7, v6
    v_lshl_add_u32 v28, v3, 4, v28
    v_add_u32 v28, {L_OB}, v28
    s_lshr_b32 s45, s{sW}, 1          ; b'
    s_and_b32 s46, s{sW}, 1           ; dsub
    s_lshl_b32 s47, s{sG}, 16
    s_lshl_b32 s48, s45, 15
    s_add_u32 s47, s47, s48
    s_lshr_b32 s48, s{sI}, 2
    s_lshl_b32 s48, s48, 8
    s_add_u32 s47, s47, s48
    s_lshl_b32 s48, s46, 7
    s_add_u32 s47, s47, s48
    s_add_u32 s47, s47, {W_OP}
    v_lshrrev_b32 v5, 3, v0
    v_and_b32 v6, 7, v0
    v_lshlrev_b32 v24, 11, v5
    v_lshl_add_u32 v24, v6, 4, v24
    v_add_u32 v24, s47, v24
    v_add_u32 v25, 16384, v24
    s_lshl_b32 s47, s45, 8
    s_add_u32 s47, s47, {L_WT}
    v_lshl_add_u32 v26, v5, 4, s47
    v_and_b32 v5, 1, v3
    v_lshlrev_b32 v5, 1, v5
    v_lshrrev_b32 v7, 1, v3
    v_or_b32 v5, v5, v7
    v_lshl_add_u32 v5, v5, 4, v6
    s_lshl_b32 s47, s45, 7
    s_lshl_b32 s48, s46, 4
    s_add_u32 s47, s47, s48
    s_add_u32 s47, s47, {L_OB}
    v_lshl_add_u32 v27, v5, 1, s47
    s_lshl_b32 s47, s{sSLOT}, 7
    s_add_u32 s47, s47, {W_ST}
    v_lshl_add_u32 v29, v13, 4, s47
    v_and_b32 v5, 4, v0
    v_cmp_ne_u32 s[50:51], 0, v5
    v_and_b32 v5, 2, v0
    v_cmp_ne_u32 s[52:53], 0, v5
    v_mov_b32 v30, 1
    s_waitcnt lgkmcnt(0)
    """)
    nonce_from_epoch()
    for sp in range(4):
        e(f"""
        s_add_u32 s56, s{sRS}, {sp}
        s_and_b32 s56, s56, 3
        s_lshl_b32 s57, s56, 9
        v_add_u32 v{40+sp}, s57, v15
        s_lshl_b32 s57, s56, 14
        v_add_u32 v{48+2*sp}, s57, v18
        v_add_u32 v{49+2*sp}, s57, v19
        """)
    stamp(1)
    get_loc(6, slp=cfg.slpc)
    for tau in range(4):
        m = 0x000f000f << (4*tau)
        e(f"s_mov_b32 s54, {m:#x}\ns_mov_b32 s55, {m:#x}\ns_mov_b64 exec, s[54:55]")
        for t in range(4):
            r = 64 + 16*tau + 4*t
            e(f"ds_read_b128 v[{r}:{r+3}], v12 offset:{64*t}")
    e("s_mov_b64 exec, -1")
    spin_land(sKEND, 6, slp=cfg.slpc)
    stamp(2)
    def kread(tau, t):
        r = 128 + 16*(tau & 1) + 4*t
        e(f"ds_read_b128 v[{r}:{r+3}], v{8+t} offset:{4096*tau}")
    for tau in range(2):
        for t in range(4): kread(tau, t)
    for tau in range(4):
        for t in range(4):
            n = 4*tau + t
            r = 128 + 16*(tau & 1) + 4*t; q = 64 + 16*tau + 4*t
            e(f"s_waitcnt lgkmcnt({7 if n < 8 else 15-n})")
            e(f"v_mfma_f32_16x16x32_bf16 v[32:35], v[{r}:{r+3}], v[{q}:{q+3}], {'v[32:35]' if n else 0}")
            if tau < 2: kread(tau+2, t)
    e(f"""
    s_mov_b32 s54, {SCALE:#x}
    s_mov_b32 s55, {LOG2E:#x}
    s_nop 5
    v_cvt_pk_bf16_f32 v32, v32, v33
    v_cvt_pk_bf16_f32 v34, v34, v35
    v_and_b32 v33, 0xffff0000, v32
    v_lshlrev_b32 v32, 16, v32
    v_and_b32 v35, 0xffff0000, v34
    v_lshlrev_b32 v34, 16, v34
    v_mul_f32 v32, s54, v32
    v_mul_f32 v33, s54, v33
    v_mul_f32 v34, s54, v34
    v_mul_f32 v35, s54, v35
    v_cvt_pk_bf16_f32 v32, v32, v33
    v_cvt_pk_bf16_f32 v34, v34, v35
    v_and_b32 v33, 0xffff0000, v32
    v_lshlrev_b32 v32, 16, v32
    v_and_b32 v35, 0xffff0000, v34
    v_lshlrev_b32 v34, 16, v34
    v_max_f32 v36, v32, v33
    v_max3_f32 v36, v34, v35, v36
    """)
    dpp_max(36, (8, 4))
    e("""
    v_mov_b32 v37, v36
    s_nop 1
    v_permlane16_swap_b32 v36, v37
    s_nop 0
    v_max_f32 v36, v36, v37
    v_mov_b32 v37, v36
    s_nop 1
    v_permlane32_swap_b32 v36, v37
    s_nop 0
    v_max_f32 v36, v36, v37
    s_mov_b64 exec, 15
    ds_write_b32 v16, v36
    s_mov_b64 exec, 1
    ds_add_u32 v1, v30 offset:{F_V}
    s_mov_b64 exec, -1
    """.replace("{F_V}", str(F_V)))
    spin_ge(1, F_V, 4, 6, extra="ds_read_b32 v56, v17\nds_read_b32 v57, v17 offset:32\nds_read_b32 v58, v17 offset:64\nds_read_b32 v59, v17 offset:96")
    e("""
    v_max_f32 v36, v56, v57
    v_max3_f32 v36, v58, v59, v36
    v_sub_f32 v32, v32, v36
    v_sub_f32 v33, v33, v36
    v_sub_f32 v34, v34, v36
    v_sub_f32 v35, v35, v36
    v_mul_f32 v32, s55, v32
    v_mul_f32 v33, s55, v33
    v_mul_f32 v34, s55, v34
    v_mul_f32 v35, s55, v35
    v_exp_f32 v32, v32
    v_exp_f32 v33, v33
    v_exp_f32 v34, v34
    v_exp_f32 v35, v35
    v_add_f32 v37, v32, v33
    v_cvt_pk_bf16_f32 v32, v32, v33
    v_add_f32 v38, v34, v35
    v_cvt_pk_bf16_f32 v33, v34, v35
    v_add_f32 v37, v37, v38
    ds_write_b64 v14, v[32:33]
    """)
    dpp_add(37, (8, 4))
    e("""
    v_mov_b32 v38, v37
    s_nop 1
    v_permlane16_swap_b32 v37, v38
    s_nop 0
    v_add_f32 v37, v37, v38
    v_mov_b32 v38, v37
    s_nop 1
    v_permlane32_swap_b32 v37, v38
    s_nop 0
    v_add_f32 v37, v37, v38
    s_mov_b64 exec, 15
    ds_write_b32 v16, v37 offset:4
    s_mov_b64 exec, -1
    """)
    flag_add(1, F_P, 30)
    spin_ge(1, F_P, 4, 6, extra="\n".join(f"ds_read_b32 v{56+k}, v17 offset:{32*k+4}" for k in range(4)))
    def preg(ee, sp, sg): return (64 if sp < 2 else 96) + 16*ee + 8*(sp & 1) + 4*sg
    e("""
    v_mov_b32 v32, v36
    v_add_f32 v33, v56, v57
    v_add_f32 v34, v58, v59
    v_add_f32 v33, v33, v34
    v_mov_b32 v34, 0
    v_mov_b32 v35, 0
    """)
    e(f"s_cmp_eq_u32 s{sW}, 0\ns_cbranch_scc0 L_nostat")
    tag_insert(32, 4)
    e(f"""
    s_mov_b64 exec, 15
    buffer_store_dwordx4 v[32:35], v29, s[{SRD_WS}:{SRD_WS+3}], 0 offen
    s_cmp_eq_u32 s{sOFF}, 0
    s_cbranch_scc1 L_nostatB
    buffer_store_dwordx4 v[32:35], v29, s[{SRD_WS}:{SRD_WS+3}], s{sBOFF} offen sc1
    L_nostatB:
    s_mov_b64 exec, -1
    L_nostat:
    """)
    stamp(3)
    for r in range(96, 128): e(f"v_mov_b32 v{r}, 0")
    for ee in range(2):
        m = 0x000f000f << (4*ee)
        e(f"s_mov_b32 s56, {m:#x}\ns_mov_b32 s57, {m:#x}\ns_mov_b64 exec, s[56:57]")
        for sp in range(4):
            for sg in range(2):
                r = preg(ee, sp, sg)
                e(f"ds_read_b128 v[{r}:{r+3}], v{40+sp} offset:{256*sg}")
    e("s_mov_b64 exec, -1")
    for sp in range(4):
        e(f"s_add_u32 s58, s{sVB}, {4*(sp+1) + (cfg.woe if sp == 3 else 0)}")
        if sp == 3 and cfg.vlf: spin_ge(1, F_WO, 4, 6)
        else: spin_land(58, 6, slp=(cfg.slpc if sp < 3 else 0))
        if sp == 3: stamp(4)
        for sg in range(2):
            for ee in range(2):
                r = 128 + 8*sg + 4*ee
                e(f"ds_read_b64_tr_b16 v[{r}:{r+1}], v{48+2*sp+ee} offset:{8192*sg}")
                e(f"ds_read_b64_tr_b16 v[{r+2}:{r+3}], v{48+2*sp+ee} offset:{8192*sg+4096}")
        for sg in range(2):
            for ee in range(2):
                r = 128 + 8*sg + 4*ee
                p = preg(ee, sp, sg)
                e(f"s_waitcnt lgkmcnt({6 - 2*(2*sg+ee)})")
                e(f"v_mfma_f32_16x16x32_bf16 v[144:147], v[{p}:{p+3}], v[{r}:{r+3}], {'v[144:147]' if (sp or sg or ee) else 0}")
    e(f"s_cmp_eq_u32 s{sOFF}, 0\ns_mov_b32 exec_hi, 0\ns_nop 5")
    tag_insert(144, 4)
    e(f"""
    buffer_store_dwordx4 v[144:147], v22, s[{SRD_WS}:{SRD_WS+3}], 0 offen
    s_cbranch_scc1 L_oloc
    buffer_store_dwordx4 v[144:147], v22, s[{SRD_WS}:{SRD_WS+3}], s{sBOFF} offen sc1
    L_oloc:
    s_mov_b64 exec, -1
    {"v_mov_b32 v156, v144; v_mov_b32 v157, v145; v_mov_b32 v158, v146; v_mov_b32 v159, v147".replace("; ", chr(10)) if 0 else ""}
    buffer_load_dwordx4 v[32:35], v24, s[{SRD_WS}:{SRD_WS+3}], s{sOFF} offen {cfg.ldA}
    buffer_load_dwordx4 v[36:39], v25, s[{SRD_WS}:{SRD_WS+3}], s{sOFF} offen {cfg.ldA}
    s_add_u32 s58, s{sVB}, 20
    """)
    stamp(5)
    def wofr():
        for ee in range(2):
            for t in range(2):
                r = 64 + 8*ee + 4*t
                e(f"ds_read_b64_tr_b16 v[{r}:{r+1}], v{20+ee} offset:{8192*t}")
                e(f"ds_read_b64_tr_b16 v[{r+2}:{r+3}], v{20+ee} offset:{8192*t+1024}")
    if not cfg.late_wo:
        spin_land(58, 6)
        wofr()
    if cfg.clean:
        for k in range(4): e(f"v_mov_b32 v{156+k}, v{144+k}")
    spin_ge(1, F_W, 1, 6, extra="ds_read_b128 v[40:43], v26\nds_read_b128 v[44:47], v26 offset:128")
    def ld2(r):
        e(f"""
        buffer_load_dwordx4 v[{r}:{r+3}], v24, s[{SRD_WS}:{SRD_WS+3}], s{sOFF} offen {cfg.ldA}
        buffer_load_dwordx4 v[{r+4}:{r+7}], v25, s[{SRD_WS}:{SRD_WS+3}], s{sOFF} offen {cfg.ldA}""")
    def chk2(r, L):
        tag_check(r, 7, True); tag_check(r+4, 7, False)
        e(f"v_and_b32 v7, v4, v7\nv_cmp_ne_u32 vcc, 0, v7\ns_cbranch_vccz {L}")
    if cfg.pp2:
        ld2(48)
        e("s_mov_b64 s[62:63], -1\nL_op:\ns_waitcnt vmcnt(2)")
        chk2(32, "L_okX")
        e("s_mov_b64 s[60:61], vcc\ns_mov_b64 exec, vcc")
        ld2(32)
        e("s_mov_b64 exec, s[62:63]\ns_waitcnt vmcnt(2)")
        chk2(48, "L_okY")
        e("s_mov_b64 s[62:63], vcc\ns_mov_b64 exec, vcc")
        ld2(48)
        e(f"""
        s_mov_b64 exec, s[60:61]
        s_sub_u32 s{sCAP}, s{sCAP}, 1
        s_cbranch_scc0 L_op
        s_mov_b32 s{sCAP}, 0
        s_waitcnt vmcnt(0)
        L_okY:
        s_mov_b64 exec, -1""")
        for k in range(8): e(f"v_and_b32 v{56+k}, 0xfffff800, v{48+k}")
        e("s_branch L_oj\nL_okX:\ns_mov_b64 exec, -1")
        for k in range(8): e(f"v_and_b32 v{56+k}, 0xfffff800, v{32+k}")
        e("L_oj:")
    else:
        e("s_branch L_ochk\nL_oretry:")
        ld2(32)
        e("L_ochk:\ns_waitcnt vmcnt(0)")
        tag_check(32, 7, True); tag_check(36, 7, False)
        tag_branch(7, "L_oretry", masked=True, slp=cfg.o2loop)
        for k in range(8): e(f"v_and_b32 v{56+k}, 0xfffff800, v{32+k}")
    stamp(6)
    R = []
    if cfg.late_wo:
        R.append(f"ds_read_b128 v[152:155], v1 offset:{O_LAND}")
        for ee in range(2):
            for t in range(2):
                r = 64 + 8*ee + 4*t
                R.append(f"ds_read_b64_tr_b16 v[{r}:{r+1}], v{20+ee} offset:{8192*t}")
                R.append(f"ds_read_b64_tr_b16 v[{r+2}:{r+3}], v{20+ee} offset:{8192*t+1024}")
    else:
        R = ["s_nop 0"] * 9
    e(f"""
    v_pk_mul_f32 v[56:57], v[56:57], v[40:41]
    v_pk_mul_f32 v[58:59], v[58:59], v[42:43]
    v_pk_fma_f32 v[56:57], v[60:61], v[44:45], v[56:57]
    v_pk_fma_f32 v[58:59], v[62:63], v[46:47], v[58:59]
    {R[0]}
    {R[1]}
    v_permlane32_swap_b32 v56, v57
    v_permlane32_swap_b32 v58, v59
    {R[2]}
    v_add_f32 v56, v56, v57
    v_add_f32 v58, v58, v59
    {R[3]}
    {R[4]}
    v_permlane16_swap_b32 v56, v58
    {R[5]}
    v_add_f32 v56, v56, v58
    {R[6]}
    {R[7]}
    v_add_f32_dpp v56, v56, v56 row_ror:8 row_mask:0xf bank_mask:0xf
    {R[8]}
    """)
    e(f"""
    v_cvt_pk_bf16_f32 v56, v56, v56
    ds_write_b16 v27, v56
    s_mov_b64 exec, 1
    ds_add_u32 v1, v30 offset:{F_O}
    s_mov_b64 exec, -1
    s_mov_b32 s56, 0x000f000f
    s_mov_b32 s57, 0x000f000f
    """)
    spin_ge(1, F_O, 4, 6, extra="ds_read_b128 v[40:43], v28\nds_read_b128 v[44:47], v28 offset:64")
    if cfg.late_wo:
        e("""
        v_min3_i32 v152, v152, v153, v154
        v_min_i32 v152, v152, v155
        v_cmp_le_i32 vcc, s58, v152
        s_cbranch_vccz L_wolate
        L_wook:""")
    for t in range(2):
        for ee in range(2):
            r = 64 + 8*ee + 4*t
            a = 144 + 4*ee
            e(f"v_mfma_f32_16x16x32_bf16 v[{a}:{a+3}], v[{r}:{r+3}], v[{40+4*t}:{43+4*t}], {f'v[{a}:{a+3}]' if t else 0}")
    e(f"""
    s_mov_b64 exec, s[56:57]
    s_nop 6
    """)
    for k in range(4):
        e(f"v_cndmask_b32 v{144+k}, v{144+k}, v{148+k}, s[52:53]")
    tag_insert(144, 4)
    e(f"""
    {"s_bitcmp1_b32 s32, 2; s_cbranch_scc1 L_end".replace("; ", chr(10)) if cfg.hack4 == 9 else ""}
    {"s_bitcmp1_b32 s32, 2; s_cselect_b64 exec, 0, exec".replace("; ", chr(10)) if cfg.hack4 else ""}
    buffer_store_dwordx4 v[144:147], v23, s[{SRD_WS}:{SRD_WS+3}], 0 offen sc1
    """)
    if cfg.clean == 1:
        e(f"s_mov_b32 s56, 0x00ff00ff\ns_mov_b32 s57, 0x00ff00ff\ns_mov_b64 exec, s[56:57]\nbuffer_store_dwordx4 v[156:159], v22, s[{SRD_WS}:{SRD_WS+3}], 0 offen sc1\ns_waitcnt vmcnt(1)")
    elif cfg.h3gate == 2: e("s_waitcnt vmcnt(0)")
    if cfg.clean == 2:
        e(f"s_mov_b32 s56, 0x00ff00ff\ns_mov_b32 s57, 0x00ff00ff\ns_mov_b64 exec, s[56:57]\nbuffer_store_dwordx4 v[156:159], v22, s[{SRD_WS}:{SRD_WS+3}], 0 offen sc1")
    if cfg.h3gate: e(f"s_mov_b64 exec, 1\nds_add_u32 v1, v30 offset:{F_K}")
    stamp(7)
    stamps_out(8)
    e("L_end:\ns_endpgm")
    if cfg.late_wo:
        e("L_wolate:")
        spin_land(58, 6)
        wofr()
        e("s_waitcnt lgkmcnt(0)\ns_branch L_wook")
    e("L_codeend:")
    if cfg.skip:
        res = []; sect = None
        for ln in out:
            t = ln.strip()
            if t.endswith(":"): sect = t[:-1]
            drop = False
            isg = t.startswith("buffer_load_dwordx4 v[") and "s[36:39]" in t
            if isg and sect in ("L_qretry",) and 'q' in cfg.skip: drop = True
            if isg and sect in ("L_hretry",) and 'h' in cfg.skip: drop = True
            if isg and sect in ("L_sretry",) and 's' in cfg.skip: drop = True
            if isg and sect in ("L_fretry",) and 'f' in cfg.skip: drop = True
            if t.startswith("s_cbranch_scc0 L_qretry") and 'q' in cfg.skip: drop = True
            if t.startswith("s_cbranch_scc0 L_hretry") and 'h' in cfg.skip: drop = True
            if t.startswith("s_cbranch_scc0 L_sretry") and 's' in cfg.skip: drop = True
            if t.startswith("s_cbranch_scc0 L_fretry") and 'f' in cfg.skip: drop = True
            if 'b' in cfg.skip and t.startswith("buffer_store_dwordx4") and "sc1" in t and ("v[56:59]" in t and sect == "L_pubB"): drop = True
            if 'a' in cfg.skip and t.startswith("buffer_store_dwordx4") and "sc1" not in t and ("v[56:59]" in t or "v[64:67]" in t or "v29" in t): drop = True
            if 'q' in cfg.skip and t.startswith("s_cbranch_vccz L_q"): ln = ln.replace("s_cbranch_vccz", "s_branch")
            if 'k' in cfg.skip and t.startswith("ds_read_b128 v[1") and "v1 offset" not in t: drop = True
            if 'v' in cfg.skip and t.startswith("ds_read_b64_tr_b16 v[1"): drop = True
            if not drop: res.append(ln)
        out[:] = res
    if cfg.mark:
        res = []; k = 0
        for ln in out:
            res.append(ln)
            if ln.strip() == f"s_mov_b32 s{sCAP}, 0":
                k += 1
                res += [f"    v_mov_b32 v164, {4*k}", "    v_mov_b32 v165, 1", "    global_atomic_add v164, v165, s[26:27]"]
        out[:] = res
    body = "\n".join(out)
    hdr = open("recurrent_scan__sliding_block_cached__dense_activation_squared_relu__decode.s.ref").read().split("; Override launch")[0]
    return f"""{hdr}; Single fused launch: 256 workgroups (one per CU) x 10 waves.
; @launch grid=(256,1,1) block=(640,1,1) lds={LDS_TOTAL}
.amdgcn_target "amdgcn-amd-amdhsa--gfx950"
.text
.globl {KNAME}
.p2align 8
.type {KNAME},@function
{KNAME}:
{body}
.section .rodata,"a"
.p2align 6
.amdhsa_kernel {KNAME}
  .amdhsa_next_free_vgpr 168
  .amdhsa_next_free_sgpr 102
  .amdhsa_accum_offset 168
  .amdhsa_group_segment_fixed_size 0
  .amdhsa_kernarg_size 104
  .amdhsa_user_sgpr_count 2
  .amdhsa_user_sgpr_kernarg_segment_ptr 1
  .amdhsa_system_sgpr_workgroup_id_x 1
.end_amdhsa_kernel
"""

if __name__ == "__main__":
    path = sys.argv[1]
    for a in sys.argv[2:]:
        k, v = a.split("=")
        cur = getattr(cfg, k)
        setattr(cfg, k, type(cur)(int(v)) if isinstance(cur, (bool, int)) else v.replace("+", " "))
    open(path, "w").write(build())
```

```python
import sys
KNAME = "recurrent_scan__sliding_block_cached__dense_activation_squared_relu__decode_kernel"

cfg_dbgsel = {6: [(0,0,1),(0,1,0),(1,2,1),(1,3,0),(2,4,0),(4,5,1),(4,6,0),(5,7,0)], 7: [(4,8,0),(5,9,0),(6,10,0)], 8: [(5,11,0),(6,12,1),(6,13,0),(7,14,0)]}
class Cfg:
    early = False
    ampw = -1
    ampk = 0
    ampg = -1
    dbg = False
    diag = False
    lw = 5
    lw2 = 5
    win = 20
    qlead = 7
    woe = 0
    lprio = 3
    dual3 = 0
    lightg = 0
    skew = 0
    skewg = -1
    bpos = 0
    pps = 0
    trace = 0
    hack4 = 0
    slpc = 0
    vlf = 0
    cprio = 1
    touch = ''
    clean = 0
    epst = ''
    outst = ''
    nprio = 1
    late_wo = 1
    pp2 = 1
    pp3 = 1
    gap3 = 0
    epf = 1
    dirty = 0
    h3gate = 2
    h3slp = 0
    h3loop = 0
    o2loop = 0
    mark = 0
    ntmo = 4
    skip = ''
    only = 0
    pfi = 28
    slp = 0
    win2 = 20
    w2at = 4
    slead = 8
    flead = 10
    hgate = 15
    ldA = 'sc1'
    pf = 1
    first = 'sc1'
    ntK = "nt"; ntW = "nt"
    rotmul = 5
cfg = Cfg()

L_K, L_V, L_WO = 0, 65536, 131072
SCR = 147456
L_QS = SCR
L_PB = SCR + 1152
L_SB = L_PB + 2048
L_WT = L_SB + 128
L_OB = L_WT + 512
L_ACTA = L_OB + 256
L_ACTB = L_ACTA + 576
L_FL = L_ACTB + 576
L_LAND = L_FL + 64
LDS_TOTAL = L_LAND + 16 + 256
F_Q, F_K, F_P, F_V, F_T, F_WO, F_W, F_O = [4*k for k in range(8)]
W_ST, W_QP, W_HP, W_OP, B_OFF, W_SP, W_FP = 0x8000, 0x10000, 0x30000, 0x40000, 0xC0000, 0x180000, 0x1C0000
def fp_off(): return 0x200000 if cfg.dual3 else W_FP
def ws_bytes(): return 0x210000 if cfg.dual3 else WS_BYTES
WS_BYTES = 0x200000
SPIN_CAP = 1000002
LOG2E = 0x3fb8aa3b
SCALE = 0x3db504f3

sWAVE, sG, sI, sNON = 30, 31, 32, 33
sT0, sT1, sT2, sT3 = 34, 33, 40, 79
TMASK, VMASK, TB = 0x7ff, 0xfffff800, 11
SRD_WS = 36
sSLOT = 41
sRS = 42
sCAP = 43
sVB, sOFF, sBOFF = 71, 72, 73
sKEND = 70
O_LAND = 64
STAMP0 = 80

out = []
def e(s):
    for ln in s.strip("\n").split("\n"):
        out.append("    " + ln.strip() if not ln.strip().endswith(":") else ln.strip())

def estamp(k):
    if cfg.diag and cfg.early:
        e(f"s_memrealtime s[{STAMP0+2*k}:{STAMP0+2*k+1}]")
def stamp(k):
    if cfg.diag and (not cfg.early or k == 0 or k >= 6):
        e(f"s_memrealtime s[{STAMP0+2*k}:{STAMP0+2*k+1}]")

def stamps_out(n):
    if not cfg.diag: return
    if cfg.ampw >= 0:
        L = lbl("L_amp"); Ls = lbl("L_amps")
        if cfg.ampk < n:
            e(f"""
            s_waitcnt lgkmcnt(0)
            s_cmp_eq_u32 s{sWAVE}, {cfg.ampw}
            s_cbranch_scc0 {Ls}
            {f's_cmp_eq_u32 s{sG}, {cfg.ampg}; s_cbranch_scc0 {Ls}'.replace('; ', chr(10)) if cfg.ampg >= 0 else ''}
            s_sub_u32 s60, s{STAMP0+2*cfg.ampk}, s{STAMP0}
            s_min_u32 s60, s60, 20000
            s_mul_i32 s60, s60, 10
            s_memrealtime s[62:63]
            s_waitcnt lgkmcnt(0)
            {L}:
            s_memrealtime s[68:69]
            s_waitcnt lgkmcnt(0)
            s_sub_u32 s61, s68, s62
            s_cmp_lt_u32 s61, s60
            s_cbranch_scc1 {L}
            {Ls}:
            """)
        return
    if cfg.dbg:
        sel = cfg_dbgsel[n] if n in cfg_dbgsel else []
        e("s_waitcnt lgkmcnt(0)\ns_mov_b64 exec, 1\nv_mov_b32 v1, 0")
        if n == 8: e(f"s_cmp_eq_u32 s{sWAVE}, 2\ns_cbranch_scc0 L_dbgskip{len(out)}"); lab = f"L_dbgskip{len(out)-2}"
        for (k, slot, mn) in sel:
            e(f"v_mov_b32 v4, s{STAMP0+2*k}")
            if mn: e("v_not_b32 v4, v4")
            e(f"global_atomic_umax v1, v4, s[26:27] offset:{4*slot}\ns_nop 1")
        if n == 8: e(f"{lab}:")
        e("s_waitcnt vmcnt(0)")
        return
    L = lbl("L_dly")
    e(f"""
    s_waitcnt lgkmcnt(0)
    s_add_u32 s61, s{STAMP0}, 1600
    {L}:
    s_sleep 8
    s_memrealtime s[68:69]
    s_waitcnt lgkmcnt(0)
    s_cmp_lt_u32 s68, s61
    s_cbranch_scc1 {L}
    s_lshl_b32 s60, s2, 4
    s_add_u32 s60, s60, s{sWAVE}
    s_lshl_b32 s60, s60, 6
    s_add_u32 s68, s28, s60
    s_addc_u32 s69, s29, 0
    s_add_u32 s68, s68, 0x10000000
    s_addc_u32 s69, s69, 0
    s_mov_b64 exec, 1
    v_mov_b32 v1, 0
    """)
    for k in range(8):
        if k < n:
            e(f"v_mov_b32 v4, s{STAMP0+2*k}\nv_mov_b32 v5, s{STAMP0+2*k+1}")
        else:
            e(f"v_mov_b32 v4, s{STAMP0}\nv_mov_b32 v5, s{STAMP0+1}")
        e(f"global_store_dwordx2 v1, v[4:5], s[68:69] offset:{8*k}\ns_nop 1")
    e("s_waitcnt vmcnt(0)")

lblc = [0]
def lbl(p="L"):
    lblc[0] += 1
    return f"{p}_{lblc[0]}"

def flag_set(vfl, off, vval):
    e(f"s_mov_b64 exec, 1\nds_write_b32 v{vfl}, v{vval} offset:{off}\ns_mov_b64 exec, -1")
def flag_add(vfl, off, vone):
    e(f"s_mov_b64 exec, 1\nds_add_u32 v{vfl}, v{vone} offset:{off}\ns_mov_b64 exec, -1")
def spin_ge(vfl, off, target, vtmp, extra="", slp=0):
    L = lbl("L_sp")
    e(f"""{L}:
    {f's_sleep {slp}' if slp else ''}
    ds_read_b32 v{vtmp}, v{vfl} offset:{off}
    {extra}
    s_waitcnt lgkmcnt(0)
    v_cmp_le_u32 vcc, {target}, v{vtmp}
    s_cbranch_vccz {L}""")

def spin_land(sreg, vtmp, extra="", slp=0):
    L = lbl("L_sl")
    e(f"""{L}:
    {f's_sleep {slp}' if slp else ''}
    ds_read_b128 v[160:163], v1 offset:{O_LAND}
    {extra}
    s_waitcnt lgkmcnt(0)
    v_min3_i32 v160, v160, v161, v162
    v_min_i32 v160, v160, v163
    v_cmp_le_i32 vcc, s{sreg}, v160
    s_cbranch_vccz {L}""")

def get_loc(vtmp, slp=None):
    spin_ge(1, F_Q, 1, vtmp, slp=cfg.slp if slp is None else slp)
    e(f"v_readfirstlane_b32 s{sOFF}, v{vtmp}\ns_nop 3\ns_and_b32 s{sOFF}, s{sOFF}, -2")

def tag_check(regs, acc, first):
    T = [sT0, sT1, sT2, sT3]
    for k in range(4):
        if first and k == 0:
            e(f"v_xor_b32 v{acc}, s{T[0]}, v{regs}")
        else:
            e(f"v_bitop3_b32 v{acc}, v{regs+k}, s{T[k]}, v{acc} bitop3:0xbe")
def tag_branch(acc, Lretry, toggle=False, masked=False, slp=0):
    Ld = lbl("L_ok")
    e(f"""
    v_and_b32 v{acc}, v4, v{acc}
    v_cmp_ne_u32 vcc, 0, v{acc}
    s_cbranch_vccz {Ld}""")
    if masked: e("s_mov_b64 exec, vcc")
    if slp: e(f"s_sleep {slp}")
    if toggle:
        e(f"""
        s_and_b32 s{sOFF}, s{sCAP}, 3
        s_cselect_b32 s{sOFF}, 0, s{sBOFF}""")
    e(f"""
    s_sub_u32 s{sCAP}, s{sCAP}, 1
    s_cbranch_scc0 {Lretry}
    s_mov_b32 s{sCAP}, 0
    {Ld}:""")
    if masked: e("s_mov_b64 exec, -1")
def tag_insert(regs, vff):
    T = [sT0, sT1, sT2, sT3]
    for k in range(4):
        e(f"v_bfi_b32 v{regs+k}, v{vff}, s{T[k]}, v{regs+k}")

def nonce_from_epoch():
    e(f"""
    s_add_u32 s34, s34, 0x01401801
    s_addc_u32 s35, s35, 14
    s_lshr_b32 s33, s34, 11
    s_lshr_b64 s[46:47], s[34:35], 22
    s_mov_b32 s40, s46
    s_lshr_b32 s79, s35, 1
    """)

def srd(r, lo, hi, nbytes):
    pass

def reduce4_rows(x, t):
    e(f"""
    s_nop 1
    v_permlane32_swap_b32 v{x}, v{x+1}
    v_permlane32_swap_b32 v{x+2}, v{x+3}
    s_nop 0
    v_add_f32 v{x}, v{x}, v{x+1}
    v_add_f32 v{x+2}, v{x+2}, v{x+3}
    s_nop 1
    v_permlane16_swap_b32 v{x}, v{x+2}
    s_nop 0
    v_add_f32 v{x}, v{x}, v{x+2}
    """)
def dpp_add(x, rots):
    for r in rots:
        e(f"s_nop 1\nv_add_f32_dpp v{x}, v{x}, v{x} row_ror:{r} row_mask:0xf bank_mask:0xf")
def dpp_max(x, rots):
    for r in rots:
        e(f"s_nop 1\nv_max_f32_dpp v{x}, v{x}, v{x} row_ror:{r} row_mask:0xf bank_mask:0xf")
def rnd_bf16(x):
    e(f"v_cvt_pk_bf16_f32 v{x}, v{x}, v{x}\nv_and_b32 v{x}, 0xffff0000, v{x}")

def build():
    out.clear()
    stamp(0)
    nt = cfg.ntK
    W = cfg.lw; W2 = cfg.lw2
    e(f"""
    s_load_dwordx16 s[4:19], s[0:1], 0
    s_load_dwordx8 s[20:27], s[0:1], 64
    s_load_dwordx2 s[28:29], s[0:1], 96
    v_readfirstlane_b32 s{sWAVE}, v0
    s_cmpk_ge_u32 s2, 0x100
    s_cbranch_scc1 L_end
    v_and_b32 v0, 63, v0
    s_and_b32 s{sG}, s2, 7
    s_lshr_b32 s{sI}, s2, 3
    s_cmpk_ge_u32 s{sWAVE}, 0x100
    s_cbranch_scc1 L_notloader
    v_lshrrev_b32 v12, 3, v0
    s_lshl_b32 s64, s{sWAVE}, 4
    {"s_getpc_b64 s[48:49]; v_lshl_add_u32 v13, v12, 7, s64; global_load_dword v166, v13, s[48:49]".replace("; ", chr(10)) if cfg.epf else ""}
    v_and_b32 v13, 7, v0
    v_and_b32 v14, 2, v12
    v_xor_b32 v13, v13, v14
    v_lshlrev_b32 v13, 4, v13
    s_and_b32 s63, s{sWAVE}, 64
    v_xor_b32 v13, s63, v13
    v_lshl_add_u32 v10, v12, 13, v13
    s_lshr_b32 s45, s2, 6
    s_lshl_b32 s45, s45, 20
    s_and_b32 s46, s{sI}, 7
    s_lshl3_add_u32 s46, s{sG}, s46
    s_lshl_b32 s46, s46, 7
    s_add_u32 s45, s45, s46
    s_mov_b32 s58, {127*8192+128}
    s_mov_b32 s59, 0x20000
    s_lshl4_add_u32 m0, s{sWAVE}, {L_WO}
    s_lshl_b32 s47, s{sWAVE}, 10
    s_waitcnt lgkmcnt(0)
    s_add_u32 s56, s10, s45
    s_addc_u32 s57, s11, 0
    {'s_memrealtime s[82:83]' if cfg.early else ''}
    L_ldA:
    buffer_load_dwordx4 v10, s[56:59], s47 offen {cfg.ntW} lds
    s_addk_i32 m0, 0x1000
    s_add_u32 s47, s47, 0x40000
    s_bitcmp0_b32 s47, 20
    s_cbranch_scc1 L_ldA
    {'s_memrealtime s[84:85]' if cfg.early else ''}
    s_branch L_ld2
    .p2align 8
    """)
    e(f"""L_notloader:
    v_mov_b32 v1, {L_FL}
    v_mov_b32 v5, 0
    v_lshl_add_u32 v6, v0, 2, v1
    ds_write_b32 v6, v5
    s_lshr_b32 s{sWAVE}, s{sWAVE}, 6
    """)
    if cfg.pf:
        e(f"""
        s_cmp_eq_u32 s{sWAVE}, 9
        s_cbranch_scc0 L_nopf
        s_getpc_b64 s[46:47]
        L_pc:
        s_mul_i32 s45, s{sI}, {2 if cfg.epf else 3}
        {'s_add_u32 s45, s45, 30' if cfg.epf else ''}
        v_min_u32 v5, {1 if cfg.epf else 2}, v0
        v_add_u32 v5, s45, v5
        v_lshlrev_b32 v5, 7, v5
        v_min_u32 v5, L_codeend-L_pc-4, v5
        global_load_dword v166, v5, s[46:47]
        L_nopf:""")
    e(f"""
    v_lshlrev_b32 v5, 5, v0
    s_cmp_ge_u32 s{sWAVE}, 6
    s_waitcnt lgkmcnt(0)
    s_load_dwordx2 s[34:35], s[28:29], 0
    s_cbranch_scc1 L_nox
    global_load_dwordx4 v[8:11], v5, s[4:5]
    global_load_dwordx4 v[12:15], v5, s[4:5] offset:16
    L_nox:
    s_barrier
    s_branch L_nl2
    """)
    def flagw():
        e("ds_write_b32 v16, v15\nv_add_u32 v15, 1, v15")
        if cfg.trace:
            e("s_memrealtime s[66:67]\ns_waitcnt lgkmcnt(0)\ns_mov_b64 s[68:69], exec\ns_lshl_b64 exec, 1, s70\nv_mov_b32 v20, s66\ns_mov_b64 exec, s[68:69]\ns_add_u32 s70, s70, 1")
    e(f"""L_ld2:
    s_mul_i32 s44, s2, {cfg.rotmul}
    s_bfe_u32 s{sRS}, s44, 0x20002
    v_and_b32 v2, 15, v0
    v_lshrrev_b32 v3, 4, v0
    s_add_u32 s62, s{sRS}, 3
    s_and_b32 s62, s62, 3
    s_add_u32 s62, s62, 4
    s_lshl_b32 s62, s62, 14
    v_mov_b32 v1, {L_FL}
    s_lshr_b32 s45, s{sWAVE}, 4
    s_add_u32 s45, s45, {L_LAND}
    v_lshl_add_u32 v16, v0, 2, v1
    v_add_u32 v16, {O_LAND+16}, v16
    v_writelane_b32 v16, s45, 0
    v_mov_b32 v15, {5-W}
    {"s_mov_b32 s70, 0; v_mov_b32 v20, 0".replace("; ", chr(10)) if cfg.trace else ""}
    s_setprio {cfg.lprio}
    s_barrier
    """)
    estamp(3)
    if cfg.early:
        e("s_waitcnt vmcnt(3)"); estamp(4); e("s_waitcnt vmcnt(0)"); estamp(5)
    stamp(1)
    def Bblock():
        e(f"""
        s_add_u32 s67, s{sG}, {7 - cfg.lightg}
        s_and_b32 s67, s67, 7
        s_cmp_lt_u32 s67, 7
        s_cbranch_scc0 L_ld_noB
        s_add_u32 m0, s62, s64
        s_and_b32 s65, s{sI}, 15
        s_lshl4_add_u32 s65, s67, s65
        s_cmp_lt_u32 s{sI}, 16
        s_cbranch_scc0 L_ld_w2
        s_and_b32 s45, s65, 3
        s_mul_i32 s45, s45, {128*3584}
        s_lshr_b32 s46, s65, 2
        s_lshl_b32 s46, s46, 7
        s_add_u32 s45, s45, s46
        s_add_u32 s56, s16, s45
        s_addc_u32 s57, s17, 0
        v_mul_u32_u24 v10, 3584, v12
        v_add_u32 v10, v10, v13
        s_mul_i32 s47, s64, 28
        s_mov_b32 s46, {32*3584}
        s_branch L_ld_B
        L_ld_w2:
        s_lshr_b32 s45, s65, 3
        s_lshl_b32 s45, s45, 17
        s_and_b32 s46, s65, 7
        s_lshl_b32 s46, s46, 7
        s_add_u32 s45, s45, s46
        s_add_u32 s56, s20, s45
        s_addc_u32 s57, s21, 0
        v_lshl_add_u32 v10, v12, 10, v13
        s_lshl_b32 s47, s64, 3
        s_mov_b32 s46, 0x8000
        L_ld_B:
        s_sub_u32 s58, {512*1792*2}, s45
        s_mov_b32 s60, 0
        L_ldB:
        s_waitcnt vmcnt({W-1})
        buffer_load_dwordx4 v10, s[56:59], s47 offen {cfg.ntW} lds
        s_addk_i32 m0, 0x1000
        s_add_u32 s47, s47, s46""")
        flagw()
        e(f"""
        s_add_u32 s60, s60, 1
        s_cmp_lt_u32 s60, 4
        s_cbranch_scc1 L_ldB
        L_ld_noB:
        """)
    def Kblock():
        e(f"""
        v_lshlrev_b32 v14, 8, v3
        v_xor_b32 v17, v3, v2
        v_lshl_add_u32 v4, v17, 4, v14
        v_xor_b32 v4, s{sWAVE}, v4
        s_lshr_b32 s45, s{sI}, 4
        s_lshl_b32 s45, s45, 26
        s_lshl_b32 s46, s{sG}, 23
        s_add_u32 s45, s45, s46
        s_and_b32 s46, s{sI}, 15
        s_lshl_b32 s46, s46, 16
        s_add_u32 s45, s45, s46
        s_add_u32 s45, s45, {28672*256}
        s_mov_b32 s50, 0x10000
        s_mov_b32 s51, 0x20000
        s_add_u32 s48, s6, s45
        s_addc_u32 s49, s7, 0
        s_and_b32 s44, s44, 15
        s_lshl_b32 s47, s44, 12
        s_add_u32 s47, s47, s64
        s_mov_b32 s60, 0
        L_ldK:
        s_mov_b32 m0, s47
        s_add_u32 s60, s60, 1
        s_waitcnt vmcnt({W-1})
        buffer_load_dwordx4 v4, s[48:51], s47 offen {nt} lds""")
        flagw()
        e(f"""
        s_addk_i32 s47, 0x1000
        s_and_b32 s47, s47, 0xffff
        s_cmp_lt_u32 s60, 16
        s_cbranch_scc1 L_ldK
        """)
    if cfg.bpos:
        Kblock(); e("s_mov_b32 s66, s45"); Bblock(); e("s_mov_b32 s45, s66")
    else:
        Bblock(); Kblock()
    stamp(2)
    e(f"""
    v_lshlrev_b32 v17, 1, v3
    v_xor_b32 v17, v17, v2
    v_lshl_add_u32 v8, v17, 4, v14
    s_lshl_b32 s63, s63, 1
    v_xor_b32 v8, s63, v8
    v_lshlrev_b32 v14, 10, v3
    v_lshl_add_u32 v10, v17, 4, v14
    s_and_b32 s63, s{sWAVE}, 0x80
    v_xor_b32 v10, s63, v10
    s_add_u32 s52, s8, s45
    s_addc_u32 s53, s9, 0
    s_mov_b32 s54, 0x10000
    s_mov_b32 s55, 0x20000
    s_mov_b32 s60, 0
    s_and_b32 s61, s44, 3
    """)
    def vloop(name, end, win, noflag=False):
        e(f"""{name}:
        s_lshr_b32 s47, s60, 2
        s_add_u32 s47, s47, s{sRS}
        s_and_b32 s47, s47, 3
        s_add_u32 s62, s61, s60
        s_and_b32 s62, s62, 3
        s_lshl2_add_u32 s47, s47, s62
        s_lshl_b32 s47, s47, 12
        s_add_u32 s47, s47, s64
        s_add_u32 m0, s47, {L_V}
        s_add_u32 s60, s60, 1
        s_waitcnt vmcnt({win-1})
        buffer_load_dwordx4 v8, s[52:55], s47 offen {nt} lds""")
        if not noflag: flagw()
        e(f"""
        s_cmp_lt_u32 s60, {end}
        s_cbranch_scc1 {name}
        """)
    def woloop(name, g0, g1):
        if g0 == g1: return
        e(f"""
        s_add_u32 m0, s64, {L_WO + 4096*g0}
        s_lshl_b32 s47, s64, 2
        s_add_u32 s47, s47, {0x20000*g0}
        {name}:
        s_waitcnt vmcnt({W2-1})
        buffer_load_dwordx4 v10, s[56:59], s47 offen {cfg.ntW} lds
        s_addk_i32 m0, 0x1000
        s_add_u32 s47, s47, 0x20000""")
        flagw()
        e(f"""
        s_cmp_lt_u32 s47, {0x20000*g1}
        s_cbranch_scc1 {name}""")
    if W2 > W:
        assert cfg.w2at + (W2 - W) <= 12
        if cfg.w2at > 0: vloop("L_ldV0", cfg.w2at, W)
        vloop("L_ldV0b", cfg.w2at + W2 - W, W2, noflag=True)
        if cfg.w2at + W2 - W < 12: vloop("L_ldV1", 12, W2)
    elif W2 < W:
        vloop("L_ldV0", cfg.w2at, W)
        for k in range(W - W2):
            e(f"s_waitcnt vmcnt({W-1-k})")
            flagw()
        if cfg.w2at < 12: vloop("L_ldV1", 12, W2)
    else:
        vloop("L_ldV1", 12, W)
    e(f"""
    s_lshl_b32 s45, s{sG}, 19
    s_lshr_b32 s46, s{sI}, 2
    s_lshl_b32 s46, s46, 14
    s_add_u32 s45, s45, s46
    s_and_b32 s46, s{sI}, 3
    s_lshl_b32 s46, s46, 8
    s_add_u32 s45, s45, s46
    s_add_u32 s56, s12, s45
    s_addc_u32 s57, s13, 0
    s_mov_b32 s58, {(3*128+15)*1024+256}
    """)
    spin_ge(1, F_T, 2, 17)
    woloop("L_ldWO1", 0, cfg.woe)
    vloop("L_ldV2", 16, W2)
    woloop("L_ldWO2", cfg.woe, 4)
    stamp(3)
    if cfg.vlf:
        assert W2 - 1 >= 4 - cfg.woe
        e("v_mov_b32 v18, 1\ns_mov_b64 exec, 1")
    for k in range(W2-1, -1, -1):
        e(f"s_waitcnt vmcnt({k})")
        if k == 4 - cfg.woe and cfg.vlf: e(f"ds_add_u32 v1, v18 offset:{F_WO}")
        flagw()
        if k == 4 - cfg.woe: stamp(4)
    stamp(5)
    if cfg.trace:
        e(f"""s_mov_b64 exec, -1
        s_lshl_b32 s60, s2, 10
        s_lshl_b32 s61, s{sWAVE}, 2
        s_add_u32 s60, s60, s61
        s_add_u32 s68, s28, s60
        s_addc_u32 s69, s29, 0
        s_add_u32 s68, s68, 0x18000000
        s_addc_u32 s69, s69, 0
        v_lshlrev_b32 v21, 2, v0
        global_store_dword v21, v20, s[68:69]""")
    if cfg.diag: e(f"s_lshr_b32 s{sWAVE}, s{sWAVE}, 6")
    stamps_out(6)
    e("s_endpgm")

    e(f"""L_nl2:
    {f"s_mov_b64 exec, 1; v_mov_b32 v5, 2; ds_write_b32 v1, v5 offset:{F_T}; s_waitcnt vmcnt(0) lgkmcnt(0); s_endpgm".replace("; ", chr(10)) if cfg.only == 1 else ""}
    s_setprio {cfg.nprio}
    v_and_b32 v2, 15, v0
    v_lshrrev_b32 v3, 4, v0
    s_mul_i32 s44, s2, {cfg.rotmul}
    s_bfe_u32 s{sRS}, s44, 0x20002
    s_lshl_b32 s{sSLOT}, s{sG}, 5
    s_add_u32 s{sSLOT}, s{sSLOT}, s{sI}
    s_mov_b32 s{sCAP}, {SPIN_CAP}
    s_add_u32 s68, s{sG}, {7 - cfg.lightg}
    s_and_b32 s68, s68, 7
    s_cmp_lt_u32 s68, 7
    s_cselect_b32 s{sVB}, 24, 20
    s_mov_b32 s{sKEND}, {'20' if cfg.bpos else f's{sVB}'}
    v_mov_b32 v4, {TMASK}
    s_mov_b32 s{SRD_WS}, s28
    s_mov_b32 s{SRD_WS+1}, s29
    s_mov_b32 s{SRD_WS+2}, {ws_bytes()}
    s_mov_b32 s{SRD_WS+3}, 0x20000
    s_mov_b32 s{sOFF}, 0
    s_mov_b32 s{sBOFF}, {B_OFF}
    s_cmp_ge_u32 s{sWAVE}, 6
    s_cbranch_scc1 L_compute
    """)
    e(f"""
    s_cmp_eq_u32 s{sWAVE}, 4
    s_cbranch_scc0 L_roleB
    s_mov_b32 s44, 0
    s_lshr_b32 s53, s{sI}, 3
    s_lshl_b32 s52, s{sSLOT}, 9
    s_add_u32 s52, s52, {W_QP}
    s_mov_b32 s54, {L_WO}
    s_mov_b32 s55, {L_ACTA}
    s_mov_b32 s45, 4
    s_branch L_tilecommon
    L_roleB:
    s_add_u32 s54, s{sRS}, 3
    s_and_b32 s54, s54, 3
    s_add_u32 s54, s54, 4
    s_lshl_b32 s54, s54, 14
    s_mov_b32 s55, {L_ACTB}
    s_mov_b32 s45, {24 if cfg.bpos else 8}
    s_and_b32 s52, s{sI}, 15
    s_lshl4_add_u32 s52, s68, s52
    s_lshr_b32 s44, s{sI}, 4
    s_and_b32 s53, s52, 3
    s_lshr_b32 s46, s52, 3
    s_lshl_b32 s52, s52, 9
    s_cmp_eq_u32 s44, 0
    s_cselect_b32 s53, s53, s46
    s_mov_b32 s46, {fp_off()}
    s_cselect_b32 s46, {W_HP}, s46
    s_add_u32 s52, s52, s46
    s_cmp_eq_u32 s68, 7
    s_cselect_b32 s44, 2, s44
    L_tilecommon:
    """)
    estamp(2)
    stamp(1)
    e(f"""
    v_lshrrev_b32 v5, 2, v2
    v_lshl_add_u32 v5, v3, 3, v5
    v_lshlrev_b32 v5, 7, v5
    v_and_b32 v6, 3, v2
    v_lshl_add_u32 v5, v6, 3, v5
    v_add_u32 v5, s54, v5
    v_lshrrev_b32 v6, 3, v2
    v_and_b32 v7, 1, v3
    v_lshl_or_b32 v6, v7, 1, v6
    """)
    for u in range(4):
        e(f"v_xor_b32 v7, {u}, v6\nv_lshl_add_u32 v{16+u}, v7, 5, v5")
    e(f"""
    v_and_b32 v5, 1, v0
    v_mul_u32_u24 v5, 288, v5
    v_lshl_add_u32 v5, v3, 4, v5
    v_add_u32 v20, s55, v5
    v_mov_b32 v21, 1
    v_mov_b32 v60, 0
    s_waitcnt lgkmcnt(0)
    """)
    nonce_from_epoch()
    e(f"""
    s_cmp_eq_u32 s44, 0
    s_waitcnt vmcnt(0)
    s_cbranch_scc0 L_noLN
    """)
    estamp(4)
    for k in range(8):
        e(f"v_lshlrev_b32 v{24+2*k}, 16, v{8+k}\nv_and_b32 v{25+2*k}, 0xffff0000, v{8+k}")
    e("v_pk_add_f32 v[40:41], v[24:25], v[26:27]")
    for k in range(2, 8):
        e(f"v_pk_add_f32 v[40:41], v[40:41], v[{24+2*k}:{25+2*k}]")
    e("v_add_f32 v40, v40, v41")
    dpp_add(40, (8, 4, 2, 1))
    e("v_mov_b32 v41, v40\ns_nop 1\nv_permlane16_swap_b32 v40, v41\ns_nop 0\nv_add_f32 v40, v40, v41")
    e("v_mul_f32 v40, 0xbb000000, v40\nv_mov_b32 v41, v40")
    e("v_pk_add_f32 v[42:43], v[24:25], v[40:41]\nv_pk_mul_f32 v[44:45], v[42:43], v[42:43]")
    for k in range(1, 8):
        e(f"v_pk_add_f32 v[42:43], v[{24+2*k}:{25+2*k}], v[40:41]\nv_pk_fma_f32 v[44:45], v[42:43], v[42:43], v[44:45]")
    e("v_add_f32 v44, v44, v45")
    dpp_add(44, (8, 4, 2, 1))
    e("v_mov_b32 v45, v44\ns_nop 1\nv_permlane16_swap_b32 v44, v45\ns_nop 0\nv_add_f32 v44, v44, v45")
    e("v_mul_f32 v44, 0x3b000000, v44")
    rnd_bf16(44)
    e("v_add_f32 v44, 0x3727c5ac, v44")
    rnd_bf16(44)
    e("v_sqrt_f32 v44, v44\ns_nop 0")
    rnd_bf16(44)
    e("v_rcp_f32 v44, v44")
    rnd_bf16(40)
    e("v_mov_b32 v41, v40\nv_mov_b32 v45, v44")
    for k in range(8):
        e(f"v_pk_add_f32 v[42:43], v[{24+2*k}:{25+2*k}], v[40:41]")
        e(f"v_cvt_pk_bf16_f32 v42, v42, v43\nv_and_b32 v43, 0xffff0000, v42\nv_lshlrev_b32 v42, 16, v42")
        e(f"v_pk_mul_f32 v[42:43], v[42:43], v[44:45]\nv_cvt_pk_bf16_f32 v{8+k}, v42, v43")
    e(f"""
    v_bfe_u32 v5, v0, 3, 2
    v_lshrrev_b32 v6, 5, v0
    v_mul_u32_u24 v6, 288, v6
    v_and_b32 v7, 7, v0
    v_lshl_add_u32 v6, v7, 5, v6
    v_add_u32 v6, s55, v6
    v_cmp_eq_u32 vcc, s53, v5
    s_and_saveexec_b64 s[56:57], vcc
    ds_write_b128 v6, v[8:11]
    ds_write_b128 v6, v[12:15] offset:16
    s_mov_b64 exec, -1
    L_noLN:
    """)
    stamp(2)
    e(f"""
    s_cmp_eq_u32 s44, 2
    s_cbranch_scc1 L_notile
    """)
    spin_land(45, 5, slp=cfg.slp)
    estamp(5)
    for u in range(4):
        for t in range(4):
            r = 64 + 16*u + 4*t
            e(f"ds_read_b64_tr_b16 v[{r}:{r+1}], v{16+u} offset:{t*4096}")
            e(f"ds_read_b64_tr_b16 v[{r+2}:{r+3}], v{16+u} offset:{t*4096+512}")
    e(f"""
    s_waitcnt lgkmcnt(0)
    L_notile:
    """)
    flag_add(1, F_T, 21)
    stamp(3)
    e(f"""
    s_cmp_eq_u32 s44, 1
    s_cbranch_scc0 L_noH
    """)
    e(f"""
    v_bfe_u32 v5, v0, 4, 1
    v_lshlrev_b32 v5, 11, v5
    v_lshrrev_b32 v6, 5, v0
    v_lshl_add_u32 v5, v6, 8, v5
    v_lshl_add_u32 v5, v2, 4, v5
    s_lshl_b32 s56, s53, 12
    s_add_u32 s56, s56, {W_HP}
    v_add_u32 v5, s56, v5
    v_and_b32 v7, 31, v0
    v_lshlrev_b32 v7, 3, v7
    s_lshl_b32 s56, s53, 8
    v_add_u32 v22, s56, v7
    global_load_dwordx2 v[22:23], v22, s[18:19]
    v_mul_u32_u24 v6, 288, v6
    v_add3_u32 v6, v6, v7, s55
    """)
    e(f"s_mov_b32 s45, {cfg.hgate}")
    spin_land(45, 7, slp=cfg.slp)
    e("L_hretry:")
    for k in range(4):
        e(f"buffer_load_dwordx4 v[{24+4*k}:{27+4*k}], v5, s[{SRD_WS}:{SRD_WS+3}], s{sOFF} offen offset:{512*k} sc1")
    e("s_waitcnt vmcnt(0)")
    for k in range(4): tag_check(24+4*k, 7, k == 0)
    e(f"""
    v_and_b32 v7, v4, v7
    v_cmp_ne_u32 vcc, 0, v7
    s_cbranch_vccz L_hok""")
    get_loc(7)
    e(f"""
    s_sub_u32 s{sCAP}, s{sCAP}, 1
    s_cbranch_scc0 L_hretry
    s_mov_b32 s{sCAP}, 0
    L_hok:""")
    for k in range(16): e(f"v_and_b32 v{24+k}, 0xfffff800, v{24+k}")
    e("""
    v_pk_add_f32 v[24:25], v[24:25], v[28:29]
    v_pk_add_f32 v[26:27], v[26:27], v[30:31]
    v_pk_add_f32 v[32:33], v[32:33], v[36:37]
    v_pk_add_f32 v[34:35], v[34:35], v[38:39]
    v_pk_add_f32 v[24:25], v[24:25], v[32:33]
    v_pk_add_f32 v[26:27], v[26:27], v[34:35]
    v_cvt_pk_bf16_f32 v24, v24, v25
    v_cvt_pk_bf16_f32 v26, v26, v27
    v_and_b32 v25, 0xffff0000, v24
    v_lshlrev_b32 v24, 16, v24
    v_and_b32 v27, 0xffff0000, v26
    v_lshlrev_b32 v26, 16, v26
    v_lshlrev_b32 v28, 16, v22
    v_and_b32 v29, 0xffff0000, v22
    v_lshlrev_b32 v30, 16, v23
    v_and_b32 v31, 0xffff0000, v23
    v_pk_add_f32 v[24:25], v[24:25], v[28:29]
    v_pk_add_f32 v[26:27], v[26:27], v[30:31]
    v_cvt_pk_bf16_f32 v24, v24, v25
    v_cvt_pk_bf16_f32 v26, v26, v27
    v_and_b32 v25, 0xffff0000, v24
    v_lshlrev_b32 v24, 16, v24
    v_and_b32 v27, 0xffff0000, v26
    v_lshlrev_b32 v26, 16, v26
    v_max_f32 v24, 0, v24
    v_max_f32 v25, 0, v25
    v_max_f32 v26, 0, v26
    v_max_f32 v27, 0, v27
    v_pk_mul_f32 v[24:25], v[24:25], v[24:25]
    v_pk_mul_f32 v[26:27], v[26:27], v[26:27]
    v_cvt_pk_bf16_f32 v24, v24, v25
    v_cvt_pk_bf16_f32 v25, v26, v27
    ds_write_b64 v6, v[24:25]
    L_noH:
    s_cmp_eq_u32 s44, 2
    s_cbranch_scc1 L_nopub
    """)
    e("s_waitcnt lgkmcnt(0)")
    for t in range(4):
        e(f"ds_read_b128 v[{24+4*t}:{27+4*t}], v20 offset:{64*t}")
    e(f"""
    s_cmp_eq_u32 s44, 0
    s_cselect_b32 s56, 8, 4
    s_cselect_b32 s57, 6, 5
    s_cselect_b32 s58, 4, 7
    v_and_b32 v5, 1, v0
    v_lshlrev_b32 v5, s56, v5
    v_bfe_u32 v6, v0, 1, 2
    v_lshl_add_u32 v5, v6, s57, v5
    v_lshl_add_u32 v5, v3, s58, v5
    v_add_u32 v60, s52, v5
    v_and_b32 v6, 2, v0
    v_cmp_ne_u32 s[56:57], 0, v6
    v_and_b32 v6, 4, v0
    v_cmp_ne_u32 s[58:59], 0, v6
    s_waitcnt lgkmcnt(0)
    """)
    for t in range(4):
        for u in range(4):
            r = 64 + 16*u + 4*t
            c = f"v[{40+4*u}:{43+4*u}]"
            e(f"v_mfma_f32_16x16x32_bf16 {c}, v[{r}:{r+3}], v[{24+4*t}:{27+4*t}], {c if t else 0}")
    e("s_nop 7")
    for k in range(4):
        e(f"v_cndmask_b32 v{40+k}, v{40+k}, v{44+k}, s[56:57]")
    for k in range(4):
        e(f"v_cndmask_b32 v{48+k}, v{48+k}, v{52+k}, s[56:57]")
    for k in range(4):
        e(f"v_cndmask_b32 v{56+k}, v{40+k}, v{48+k}, s[58:59]")
    for k in range(4): e(f"v_add_u32 v{56+k}, 0x400, v{56+k}")
    tag_insert(56, 4)
    e(f"""
    s_mov_b32 s74, 0x00ff00ff
    s_mov_b32 s75, 0x00ff00ff
    s_mov_b64 exec, s[74:75]
    s_cmp_eq_u32 s44, 0
    s_cbranch_scc0 L_pubB
    buffer_store_dwordx4 v[56:59], v60, s[{SRD_WS}:{SRD_WS+3}], 0 offen
    s_branch L_pubE
    L_pubB:
    buffer_store_dwordx4 v[56:59], v60, s[{SRD_WS}:{SRD_WS+3}], 0 offen sc1
    L_pubE:
    s_mov_b64 exec, -1
    L_nopub:
    """)
    stamp(4)
    e(f"""
    s_cmp_eq_u32 s{sWAVE}, 4
    s_cbranch_scc0 L_final
    """)
    e(f"""
    v_lshlrev_b32 v10, 9, v3
    v_lshl_add_u32 v10, v2, 4, v10
    s_lshl_b32 s56, s{sG}, 14
    s_lshr_b32 s57, s{sI}, 4
    s_lshl_b32 s57, s57, 8
    s_add_u32 s56, s56, s57
    s_add_u32 s56, s56, {W_QP}
    v_add_u32 v10, s56, v10
    v_add_u32 v11, 0x1000, v10
    v_add_u32 v12, 0x2000, v10
    v_add_u32 v13, 0x3000, v10
    v_lshrrev_b32 v8, 5, v0
    v_lshlrev_b32 v8, 5, v8
    v_lshl_add_u32 v8, v0, 3, v8
    v_add_u32 v8, {L_QS}, v8
    s_sub_u32 s45, s{sKEND}, {cfg.qlead}
    s_getreg_b32 s76, hwreg(HW_REG_XCC_ID, 0, 4)
    s_lshl_b32 s56, s76, 16
    v_mov_b32 v64, s56
    v_mov_b32 v65, 0
    v_mov_b32 v66, 0
    v_mov_b32 v67, 0
    s_lshl_b32 s56, s{sSLOT}, 7
    s_add_u32 s56, s56, {W_ST+64}
    v_mov_b32 v61, s56
    v_and_b32 v62, 31, v0
    v_lshlrev_b32 v62, 7, v62
    s_lshl_b32 s56, s{sG}, 12
    s_add_u32 s56, s56, {W_ST+64}
    v_add_u32 v62, s56, v62
    s_mov_b32 s77, 0
    s_mov_b32 s78, 0
    """)
    tag_insert(64, 4)
    e(f"""
    s_mov_b64 exec, 1
    buffer_store_dwordx4 v[64:67], v61, s[{SRD_WS}:{SRD_WS+3}], 0 offen
    s_mov_b64 exec, -1
    """)
    def pubB_q():
        L = lbl("L_pb")
        e(f"""
        s_cmp_eq_u32 s77, 0
        s_cbranch_scc0 {L}
        s_mov_b32 s77, 1
        s_mov_b64 exec, s[74:75]
        buffer_store_dwordx4 v[56:59], v60, s[{SRD_WS}:{SRD_WS+3}], s{sBOFF} offen sc1
        s_mov_b64 exec, 1
        buffer_store_dwordx4 v[64:67], v61, s[{SRD_WS}:{SRD_WS+3}], s{sBOFF} offen sc1
        s_mov_b64 exec, -1
        {L}:""")
    spin_land(45, 7, slp=cfg.slp)
    e("L_qretry:")
    for v in range(2):
        for k in range(4):
            r = 24 + 16*v + 4*k
            e(f"buffer_load_dwordx4 v[{r}:{r+3}], v{10+k}, s[{SRD_WS}:{SRD_WS+3}], s{sOFF} offen offset:{2048*v} {cfg.ldA}")
    e(f"buffer_load_dwordx4 v[68:71], v62, s[{SRD_WS}:{SRD_WS+3}], s{sOFF} offen {cfg.ldA}")
    e("s_waitcnt vmcnt(0)")
    for k in range(8): tag_check(24+4*k, 7, k == 0)
    tag_check(68, 7, False)
    e(f"""
    v_and_b32 v7, v4, v7
    v_cmp_ne_u32 vcc, 0, v7
    s_cbranch_vccz L_qok
    s_add_u32 s78, s78, 1
    s_cmp_lt_u32 s78, {cfg.ntmo}
    s_cbranch_scc1 L_qretry
    s_xor_b32 s{sOFF}, s{sOFF}, s{sBOFF}
    """)
    pubB_q()
    e(f"""
    s_sub_u32 s{sCAP}, s{sCAP}, 1
    s_cbranch_scc0 L_qretry
    s_mov_b32 s{sCAP}, 0
    L_qok:
    v_lshrrev_b32 v68, 16, v68
    v_cmp_ne_u32 vcc, s76, v68
    s_mov_b32 s{sOFF}, 0
    s_cbranch_vccz L_qloc
    s_mov_b32 s{sOFF}, s{sBOFF}
    """)
    pubB_q()
    e(f"""L_qloc:
    s_add_u32 s56, s{sOFF}, 1
    v_mov_b32 v9, s56
    """)
    for k in range(32): e(f"v_and_b32 v{24+k}, 0xfffff800, v{24+k}")
    for v in range(2):
        r = 24 + 16*v
        e(f"""
        v_pk_add_f32 v[{r}:{r+1}], v[{r}:{r+1}], v[{r+4}:{r+5}]
        v_pk_add_f32 v[{r+2}:{r+3}], v[{r+2}:{r+3}], v[{r+6}:{r+7}]
        v_pk_add_f32 v[{r+8}:{r+9}], v[{r+8}:{r+9}], v[{r+12}:{r+13}]
        v_pk_add_f32 v[{r+10}:{r+11}], v[{r+10}:{r+11}], v[{r+14}:{r+15}]
        v_pk_add_f32 v[{r}:{r+1}], v[{r}:{r+1}], v[{r+8}:{r+9}]
        v_pk_add_f32 v[{r+2}:{r+3}], v[{r+2}:{r+3}], v[{r+10}:{r+11}]
        v_cvt_pk_bf16_f32 v{r}, v{r}, v{r+1}
        v_cvt_pk_bf16_f32 v{r+1}, v{r+2}, v{r+3}
        ds_write_b64 v8, v[{r}:{r+1}] offset:{576*v}
        """)
    flag_set(1, F_Q, 9)
    stamp(5)
    e(f"""
    v_and_b32 v5, 31, v0
    v_lshrrev_b32 v6, 5, v0
    v_lshlrev_b32 v9, 4, v5
    v_lshl_add_u32 v9, v6, 2, v9
    v_add_u32 v9, {L_WT}, v9
    v_lshlrev_b32 v5, 7, v5
    v_lshl_add_u32 v5, v6, 4, v5
    s_lshl_b32 s56, s{sG}, 12
    s_add_u32 s56, s56, {W_ST}
    v_add_u32 v5, s56, v5
    """)
    if cfg.slead > 0:
        e(f"s_add_u32 s45, s{sVB}, {cfg.slead}")
        spin_land(45, 7, slp=cfg.slp)
    spin_ge(1, F_P, 4, 7, slp=cfg.slp)
    def lds_(r):
        e(f"""
        buffer_load_dwordx4 v[{r}:{r+3}], v5, s[{SRD_WS}:{SRD_WS+3}], s{sOFF} offen {cfg.ldA}
        buffer_load_dwordx4 v[{r+4}:{r+7}], v5, s[{SRD_WS}:{SRD_WS+3}], s{sOFF} offen offset:32 {cfg.ldA}""")
    if cfg.pps:
        def chks(r, L):
            tag_check(r, 7, True); tag_check(r+4, 7, False)
            e(f"v_and_b32 v7, v4, v7\nv_cmp_ne_u32 vcc, 0, v7\ns_cbranch_vccz {L}")
        lds_(32)
        e(f"s_add_u32 s45, s45, {cfg.pps}")
        spin_land(45, 7, slp=cfg.slp)
        lds_(40)
        e("s_mov_b64 s[62:63], -1\nL_sp2:\ns_waitcnt vmcnt(2)")
        chks(32, "L_sX")
        e("s_mov_b64 s[60:61], vcc\ns_mov_b64 exec, vcc")
        lds_(32)
        e("s_mov_b64 exec, s[62:63]\ns_waitcnt vmcnt(2)")
        chks(40, "L_sY")
        e("s_mov_b64 s[62:63], vcc\ns_mov_b64 exec, vcc")
        lds_(40)
        e(f"""
        s_mov_b64 exec, s[60:61]
        s_sub_u32 s{sCAP}, s{sCAP}, 1
        s_cbranch_scc0 L_sp2
        s_mov_b32 s{sCAP}, 0
        s_waitcnt vmcnt(0)
        L_sY:
        s_mov_b64 exec, -1""")
        for k in (0, 1, 4, 5): e(f"v_mov_b32 v{24+k}, v{40+k}")
        e("s_branch L_sj\nL_sX:\ns_mov_b64 exec, -1")
        for k in (0, 1, 4, 5): e(f"v_mov_b32 v{24+k}, v{32+k}")
        e("L_sj:")
    else:
        e("L_sretry:")
        lds_(24)
        e("s_waitcnt vmcnt(0)")
        tag_check(24, 7, True); tag_check(28, 7, False)
        tag_branch(7, "L_sretry", masked=True)
    for r in (24, 28):
        e(f"""
        v_and_b32 v{r}, 0xfffff800, v{r}
        v_and_b32 v{r+1}, 0xfffff800, v{r+1}
        v_mov_b32 v{r+2}, v{r}
        """)
        dpp_max(r+2, (8, 4, 2, 1))
        e(f"""
        v_sub_f32 v{r}, v{r}, v{r+2}
        v_mul_f32 v{r}, {LOG2E}, v{r}
        v_exp_f32 v{r}, v{r}
        s_nop 0
        v_mul_f32 v{r+1}, v{r}, v{r+1}
        """)
        dpp_add(r+1, (8, 4, 2, 1))
        e(f"""
        v_rcp_f32 v{r+1}, v{r+1}
        s_nop 0
        v_mul_f32 v{r}, v{r}, v{r+1}
        ds_write_b32 v9, v{r} offset:{2*(r-24)}
        """)
    flag_set(1, F_W, 21)
    if cfg.dirty:
        e(f"s_mov_b32 s{SRD_WS+2}, 0x2000000\ns_mul_i32 s56, s2, {1024*cfg.dirty}\ns_add_u32 s56, s56, 0x400000\nv_lshlrev_b32 v5, 4, v0")
        for k in range(cfg.dirty):
            e(f"buffer_store_dwordx4 v[24:27], v5, s[{SRD_WS}:{SRD_WS+3}], s56 offen\ns_add_u32 s56, s56, 1024")
    stamp(6)
    if cfg.diag: e(f"s_waitcnt lgkmcnt(0)\ns_sub_u32 s94, {SPIN_CAP}, s{sCAP}\ns_lshl_b32 s94, s94, 8\ns_add_u32 s94, s94, s78\ns_mov_b32 s95, 0")
    stamps_out(8)
    e("s_endpgm")

    e(f"""L_final:
    {"s_waitcnt lgkmcnt(0); s_lshl_b32 s56, s2, 2; s_add_u32 s56, s56, 0x1E0000; v_mov_b32 v5, s56; v_mov_b32 v6, s80; s_mov_b64 exec, 1; buffer_store_dword v6, v5, s[36:39], 0 offen sc1; s_mov_b64 exec, -1".replace("; ", chr(10)) if cfg.skew else ""}
    s_cmp_eq_u32 s44, 0
    s_cbranch_scc0 L_fin0
    """)
    get_loc(7)
    e(f"""
    s_cmp_eq_u32 s{sOFF}, 0
    s_cbranch_scc1 L_fin0
    s_mov_b64 exec, s[74:75]
    buffer_store_dwordx4 v[56:59], v60, s[{SRD_WS}:{SRD_WS+3}], s{sBOFF} offen sc1
    s_mov_b64 exec, -1
    L_fin0:
    s_lshr_b32 s56, s{sI}, 3          ; ctile
    s_and_b32 s57, s{sI}, 1           ; b
    s_bfe_u32 s58, s{sI}, 0x10001     ; e
    s_bfe_u32 s59, s{sI}, 0x10002
    s_and_b32 s60, s{sG}, 1
    s_lshl1_add_u32 s59, s60, s59     ; G
    s_lshr_b32 s60, s{sG}, 1          ; w
    s_lshl2_add_u32 s61, s56, s60     ; 4*ctile + w
    s_lshl1_add_u32 s62, s61, s58
    s_lshl2_add_u32 s62, s62, s59     ; nq = n0/4
    v_and_b32 v5, 1, v3
    v_lshlrev_b32 v5, 1, v5
    v_lshrrev_b32 v6, 1, v3
    v_or_b32 v5, v5, v6              ; e(R)
    v_lshlrev_b32 v5, 1, v5
    s_lshl_b32 s63, s62, 3
    v_add_u32 v6, s63, v5
    global_load_ushort v10, v6, s[22:23]
    s_lshl_b32 s63, s57, 10
    v_add_u32 v8, s63, v6
    global_load_ushort v11, v8, s[4:5]
    s_lshr_b32 s63, s62, 4           ; ctile8
    s_lshl2_add_u32 s63, s63, s59
    s_lshl_b32 s63, s63, 2
    s_bfe_u32 s61, s62, 0x20002      ; u
    s_add_u32 s63, s63, s61
    s_lshl1_add_u32 s63, s63, s57
    s_lshl4_add_u32 s63, s63, {fp_off()}
    v_min_u32 v5, 13, v0
    v_lshlrev_b32 v5, 12, v5
    v_add_u32 v5, s63, v5
    s_lshl3_add_u32 s63, s56, s{sG}
    s_and_b32 s61, s{sI}, 7
    s_lshl3_add_u32 s63, s63, s61
    s_lshl4_add_u32 s63, s63, {W_SP}
    v_lshlrev_b32 v6, 12, v0
    {"v_lshrrev_b32 v7, 1, v0; v_lshl_add_u32 v6, v7, 13, v6".replace("; ", chr(10)) if cfg.dual3 else ""}
    v_add_u32 v6, s63, v6
    s_mov_b32 s59, {0x2000 if cfg.dual3 == 1 else 0}
    v_cmp_gt_u32 s[60:61], 14, v0
    s_mov_b32 s64, s24
    s_mov_b32 s65, s25
    s_mov_b32 s66, 2048
    s_mov_b32 s67, 0x20000
    s_add_u32 s45, s{sVB}, {cfg.flead}
    """)
    spin_land(45, 7, slp=cfg.slp)
    e(f"""L_fretry:
    buffer_load_dwordx4 v[24:27], v5, s[{SRD_WS}:{SRD_WS+3}], 0 offen sc1
    s_waitcnt vmcnt(0)
    """)
    tag_check(24, 7, True)
    tag_branch(7, "L_fretry", masked=True)
    def gate_math():
        for k in range(4):
            e(f"v_and_b32 v{24+k}, 0xfffff800, v{24+k}")
        for k in range(4):
            e(f"v_cndmask_b32 v{24+k}, 0, v{24+k}, s[60:61]")
        reduce4_rows(24, 28)
        dpp_add(24, (8, 4, 2, 1))
        rnd_bf16(24)
        e("v_lshlrev_b32 v10, 16, v10\nv_add_f32 v24, v24, v10")
        rnd_bf16(24)
        e(f"""
        v_mul_f32 v25, 0xbfb8aa3b, v24
        v_exp_f32 v25, v25
        s_nop 0
        v_add_f32 v25, 1.0, v25
        v_rcp_f32 v25, v25
        s_nop 0
        v_mul_f32 v12, v24, v25
        """)
        rnd_bf16(12)
        e("v_lshlrev_b32 v11, 16, v11")
    if not (cfg.pp3 and cfg.gap3 == 0): gate_math()
    stamp(5)
    if cfg.h3gate == 0: spin_ge(1, F_O, 4, 7, slp=cfg.slp)
    else: spin_ge(1, F_K, 4, 7, slp=cfg.slp)
    if cfg.h3slp: e(f"s_sleep {cfg.h3slp}")
    def ld3(r): e(f"buffer_load_dwordx4 v[{r}:{r+3}], v6, s[{SRD_WS}:{SRD_WS+3}], {'s59' if r == 36 else 0} offen sc1")
    def chk3(r, L):
        tag_check(r, 7, True)
        e(f"v_and_b32 v7, v4, v7\nv_cmp_ne_u32 vcc, 0, v7\ns_cbranch_vccz {L}")
    if cfg.hack4: e("v_and_b32 v6, 0xffffefff, v6\nv_or_b32 v6, 0, v6")
    if cfg.pp3:
        ld3(32)
        if cfg.gap3: e(f"s_sleep {cfg.gap3}")
        else: gate_math()
        ld3(36)
        e("s_mov_b64 s[62:63], -1\nL_3p:\ns_waitcnt vmcnt(1)")
        chk3(32, "L_3X")
        e("s_mov_b64 s[60:61], vcc\ns_mov_b64 exec, vcc")
        ld3(32)
        e("s_mov_b64 exec, s[62:63]\ns_waitcnt vmcnt(1)")
        chk3(36, "L_3Y")
        e("s_mov_b64 s[62:63], vcc\ns_mov_b64 exec, vcc")
        ld3(36)
        e(f"""
        s_mov_b64 exec, s[60:61]
        s_sub_u32 s{sCAP}, s{sCAP}, 1
        s_cbranch_scc0 L_3p
        s_mov_b32 s{sCAP}, 0
        s_waitcnt vmcnt(0)
        L_3Y:
        s_mov_b64 exec, -1""")
        for k in range(4): e(f"v_and_b32 v{24+k}, 0xfffff800, v{36+k}")
        e("s_branch L_3j\nL_3X:\ns_mov_b64 exec, -1")
        for k in range(4): e(f"v_and_b32 v{24+k}, 0xfffff800, v{32+k}")
        e("L_3j:")
    else:
        e("L_3retry:")
        ld3(24)
        e("s_waitcnt vmcnt(0)")
        tag_check(24, 7, True)
        tag_branch(7, "L_3retry", masked=True, slp=cfg.h3loop)
        for k in range(4): e(f"v_and_b32 v{24+k}, 0xfffff800, v{24+k}")
    stamp(6)
    reduce4_rows(24, 28)
    dpp_add(24, (8, 4, 2, 1))
    rnd_bf16(24)
    e("v_mul_f32 v24, v24, v12")
    rnd_bf16(24)
    e(f"""
    v_add_f32 v24, v24, v11
    v_cvt_pk_bf16_f32 v24, v24, v24
    s_mov_b32 s56, 0x00010001
    s_mov_b32 s57, 0x00010001
    s_mov_b64 exec, s[56:57]
    buffer_store_short v24, v8, s[64:67], 0 offen {cfg.outst}
    s_cmp_eq_u32 s2, 0
    s_cbranch_scc0 L_fin2
    s_mov_b64 exec, 1
    v_mov_b32 v26, s34
    v_mov_b32 v27, s35
    v_mov_b32 v28, 0
    buffer_store_dwordx2 v[26:27], v28, s[{SRD_WS}:{SRD_WS+3}], 0 offen {cfg.epst}
    L_fin2:
    """)
    if cfg.skew:
        e(f"""
        s_cmp_eq_u32 s2, 0
        s_cbranch_scc0 L_skend
        s_mov_b64 exec, -1
        v_lshlrev_b32 v5, 4, v0
        v_add_u32 v5, 0x1E0000, v5
        buffer_load_dwordx4 v[40:43], v5, s[{SRD_WS}:{SRD_WS+3}], 0 offen sc1
        s_waitcnt vmcnt(0) lgkmcnt(0)
        v_subrev_u32 v40, s80, v40
        v_subrev_u32 v41, s80, v41
        v_subrev_u32 v42, s80, v42
        v_subrev_u32 v43, s80, v43
        v_max3_i32 v44, v40, v41, v42
        v_max_i32 v44, v44, v43
        v_min3_i32 v45, v40, v41, v42
        v_min_i32 v45, v45, v43
        s_mov_b32 s60, 0x80000000
        s_mov_b32 s61, 0x7fffffff
        """)
        if cfg.skewg >= 0: e(f"v_mov_b32 v44, v{40 + (cfg.skewg & 3)}\ns_nop 1")
        for l in range(64):
            if cfg.skewg >= 0 and (l & 1) != (cfg.skewg >> 2):
                e(f"v_readlane_b32 s62, v45, {l}\nv_readlane_b32 s63, v45, {l}\ns_nop 1\ns_min_i32 s61, s61, s62\ns_min_i32 s61, s61, s63"); continue
            e(f"v_readlane_b32 s62, v44, {l}\nv_readlane_b32 s63, v45, {l}\ns_nop 1\ns_max_i32 s60, s60, s62\ns_min_i32 s61, s61, s63")
        e(f"""
        s_sub_u32 s60, s60, s61
        s_min_u32 s60, s60, 2000
        s_mul_i32 s60, s60, 20
        s_memrealtime s[62:63]
        s_waitcnt lgkmcnt(0)
        L_sksp:
        s_memrealtime s[68:69]
        s_waitcnt lgkmcnt(0)
        s_sub_u32 s61, s68, s62
        s_cmp_lt_u32 s61, s60
        s_cbranch_scc1 L_sksp
        L_skend:""")
    stamp(7)
    stamps_out(8)
    e("s_endpgm")

    sW = 44
    e(f"""L_compute:
    s_setprio {cfg.cprio}
    s_sub_u32 s{sW}, s{sWAVE}, 6
    """)
    if cfg.touch:
        e(f"""
        s_cmp_eq_u32 s{sW}, 2
        s_cbranch_scc0 L_notouch
        s_lshr_b32 s45, s{sI}, 4
        s_lshl_b32 s45, s45, 26
        s_lshl_b32 s46, s{sG}, 23
        s_add_u32 s45, s45, s46
        s_and_b32 s46, s{sI}, 15
        s_lshl_b32 s46, s46, 16
        s_add_u32 s45, s45, s46
        s_add_u32 s45, s45, {28672*256}
        v_mov_b32 v5, s45
        s_lshl_b32 s45, s{sG}, 19
        s_lshr_b32 s46, s{sI}, 2
        s_lshl_b32 s46, s46, 16
        s_add_u32 s45, s45, s46
        v_mov_b32 v6, s45
        v_mov_b32 v7, 0
        s_mov_b64 exec, 1""")
        if 'k' in cfg.touch: e("global_load_dword v164, v5, s[6:7] nt")
        if 'v' in cfg.touch: e("global_load_dword v164, v5, s[8:9] nt")
        if 'o' in cfg.touch: e("global_load_dword v164, v6, s[12:13] nt")
        if 'w' in cfg.touch: e("global_load_dword v164, v7, s[28:29]")
        if 'u' in cfg.touch: e("global_load_dword v164, v7, s[24:25]")
        e("s_mov_b64 exec, -1\nL_notouch:")
    for r in range(64, 128): e(f"v_mov_b32 v{r}, 0")
    e(f"""
    s_lshl_b32 s45, s{sW}, 14
    v_lshlrev_b32 v5, 8, v2
    v_add_u32 v5, s45, v5
    v_xor_b32 v6, v3, v2
    """)
    for t in range(4):
        e(f"v_xor_b32 v7, {4*t}, v6\nv_lshl_add_u32 v{8+t}, v7, 4, v5")
    e(f"""
    v_and_b32 v13, 3, v2
    v_mul_u32_u24 v12, 288, v13
    v_lshl_add_u32 v12, v3, 4, v12
    v_add_u32 v12, {L_QS}, v12
    """)
    e(f"""
    v_lshl_add_u32 v15, v3, 2, v13
    v_lshlrev_b32 v15, 4, v15
    v_add_u32 v15, {L_PB}, v15
    v_lshrrev_b32 v5, 3, v2
    v_lshl_add_u32 v14, v5, 8, v15
    v_bfe_u32 v5, v2, 2, 1
    v_lshl_add_u32 v14, v5, 3, v14
    s_lshl_b32 s45, s{sW}, 9
    v_add_u32 v14, s45, v14
    v_lshlrev_b32 v17, 3, v13
    v_add_u32 v17, {L_SB}, v17
    s_lshl_b32 s45, s{sW}, 5
    v_add_u32 v16, s45, v17
    """)
    e(f"""
    v_lshrrev_b32 v5, 2, v2
    v_and_b32 v6, 1, v3
    v_lshl_add_u32 v6, v6, 2, v5
    s_lshl_b32 s45, s{sW}, 1
    v_xor_b32 v6, s45, v6
    v_lshlrev_b32 v7, 3, v13
    v_lshl_add_u32 v22, v6, 5, v7
    v_xor_b32 v23, 32, v22
    v_lshl_add_u32 v6, v3, 2, v5
    v_lshlrev_b32 v6, 8, v6
    v_add_u32 v6, {L_V}, v6
    v_add_u32 v18, v6, v22
    v_add_u32 v19, v6, v23
    v_lshl_add_u32 v6, v3, 3, v5
    v_lshlrev_b32 v6, 8, v6
    v_add_u32 v6, {L_WO}, v6
    v_add_u32 v20, v6, v22
    v_add_u32 v21, v6, v23
    """)
    e(f"""
    s_lshl_b32 s45, s{sW}, 7
    v_lshl_add_u32 v5, v3, 4, s45
    s_lshl_b32 s46, s{sSLOT}, 11
    s_add_u32 s46, s46, {W_OP}
    s_lshl2_add_u32 s46, s45, s46
    v_lshl_add_u32 v22, v0, 4, s46
    s_lshl_b32 s46, s{sSLOT}, 10
    {f"s_lshr_b32 s47, s{sSLOT}, 3; s_lshl_b32 s47, s47, 13; s_add_u32 s46, s46, s47".replace("; ", chr(10)) if cfg.dual3 else ""}
    s_add_u32 s46, s46, {W_SP}
    s_lshl1_add_u32 s46, s45, s46
    v_lshlrev_b32 v23, 4, v13
    v_lshl_add_u32 v23, v3, 6, v23
    v_add_u32 v23, s46, v23
    v_and_b32 v6, 1, v2
    v_lshlrev_b32 v28, 7, v6
    v_lshl_add_u32 v28, v3, 4, v28
    v_add_u32 v28, {L_OB}, v28
    s_lshr_b32 s45, s{sW}, 1          ; b'
    s_and_b32 s46, s{sW}, 1           ; dsub
    s_lshl_b32 s47, s{sG}, 16
    s_lshl_b32 s48, s45, 15
    s_add_u32 s47, s47, s48
    s_lshr_b32 s48, s{sI}, 2
    s_lshl_b32 s48, s48, 8
    s_add_u32 s47, s47, s48
    s_lshl_b32 s48, s46, 7
    s_add_u32 s47, s47, s48
    s_add_u32 s47, s47, {W_OP}
    v_lshrrev_b32 v5, 3, v0
    v_and_b32 v6, 7, v0
    v_lshlrev_b32 v24, 11, v5
    v_lshl_add_u32 v24, v6, 4, v24
    v_add_u32 v24, s47, v24
    v_add_u32 v25, 16384, v24
    s_lshl_b32 s47, s45, 8
    s_add_u32 s47, s47, {L_WT}
    v_lshl_add_u32 v26, v5, 4, s47
    v_and_b32 v5, 1, v3
    v_lshlrev_b32 v5, 1, v5
    v_lshrrev_b32 v7, 1, v3
    v_or_b32 v5, v5, v7
    v_lshl_add_u32 v5, v5, 4, v6
    s_lshl_b32 s47, s45, 7
    s_lshl_b32 s48, s46, 4
    s_add_u32 s47, s47, s48
    s_add_u32 s47, s47, {L_OB}
    v_lshl_add_u32 v27, v5, 1, s47
    s_lshl_b32 s47, s{sSLOT}, 7
    s_add_u32 s47, s47, {W_ST}
    v_lshl_add_u32 v29, v13, 4, s47
    v_and_b32 v5, 4, v0
    v_cmp_ne_u32 s[50:51], 0, v5
    v_and_b32 v5, 2, v0
    v_cmp_ne_u32 s[52:53], 0, v5
    v_mov_b32 v30, 1
    s_waitcnt lgkmcnt(0)
    """)
    nonce_from_epoch()
    for sp in range(4):
        e(f"""
        s_add_u32 s56, s{sRS}, {sp}
        s_and_b32 s56, s56, 3
        s_lshl_b32 s57, s56, 9
        v_add_u32 v{40+sp}, s57, v15
        s_lshl_b32 s57, s56, 14
        v_add_u32 v{48+2*sp}, s57, v18
        v_add_u32 v{49+2*sp}, s57, v19
        """)
    stamp(1)
    get_loc(6, slp=cfg.slpc)
    for tau in range(4):
        m = 0x000f000f << (4*tau)
        e(f"s_mov_b32 s54, {m:#x}\ns_mov_b32 s55, {m:#x}\ns_mov_b64 exec, s[54:55]")
        for t in range(4):
            r = 64 + 16*tau + 4*t
            e(f"ds_read_b128 v[{r}:{r+3}], v12 offset:{64*t}")
    e("s_mov_b64 exec, -1")
    spin_land(sKEND, 6, slp=cfg.slpc)
    stamp(2)
    def kread(tau, t):
        r = 128 + 16*(tau & 1) + 4*t
        e(f"ds_read_b128 v[{r}:{r+3}], v{8+t} offset:{4096*tau}")
    for tau in range(2):
        for t in range(4): kread(tau, t)
    for tau in range(4):
        for t in range(4):
            n = 4*tau + t
            r = 128 + 16*(tau & 1) + 4*t; q = 64 + 16*tau + 4*t
            e(f"s_waitcnt lgkmcnt({7 if n < 8 else 15-n})")
            e(f"v_mfma_f32_16x16x32_bf16 v[32:35], v[{r}:{r+3}], v[{q}:{q+3}], {'v[32:35]' if n else 0}")
            if tau < 2: kread(tau+2, t)
    e(f"""
    s_mov_b32 s54, {SCALE:#x}
    s_mov_b32 s55, {LOG2E:#x}
    s_nop 5
    v_cvt_pk_bf16_f32 v32, v32, v33
    v_cvt_pk_bf16_f32 v34, v34, v35
    v_and_b32 v33, 0xffff0000, v32
    v_lshlrev_b32 v32, 16, v32
    v_and_b32 v35, 0xffff0000, v34
    v_lshlrev_b32 v34, 16, v34
    v_mul_f32 v32, s54, v32
    v_mul_f32 v33, s54, v33
    v_mul_f32 v34, s54, v34
    v_mul_f32 v35, s54, v35
    v_cvt_pk_bf16_f32 v32, v32, v33
    v_cvt_pk_bf16_f32 v34, v34, v35
    v_and_b32 v33, 0xffff0000, v32
    v_lshlrev_b32 v32, 16, v32
    v_and_b32 v35, 0xffff0000, v34
    v_lshlrev_b32 v34, 16, v34
    v_max_f32 v36, v32, v33
    v_max3_f32 v36, v34, v35, v36
    """)
    dpp_max(36, (8, 4))
    e("""
    v_mov_b32 v37, v36
    s_nop 1
    v_permlane16_swap_b32 v36, v37
    s_nop 0
    v_max_f32 v36, v36, v37
    v_mov_b32 v37, v36
    s_nop 1
    v_permlane32_swap_b32 v36, v37
    s_nop 0
    v_max_f32 v36, v36, v37
    s_mov_b64 exec, 15
    ds_write_b32 v16, v36
    s_mov_b64 exec, 1
    ds_add_u32 v1, v30 offset:{F_V}
    s_mov_b64 exec, -1
    """.replace("{F_V}", str(F_V)))
    spin_ge(1, F_V, 4, 6, extra="ds_read_b32 v56, v17\nds_read_b32 v57, v17 offset:32\nds_read_b32 v58, v17 offset:64\nds_read_b32 v59, v17 offset:96")
    e("""
    v_max_f32 v36, v56, v57
    v_max3_f32 v36, v58, v59, v36
    v_sub_f32 v32, v32, v36
    v_sub_f32 v33, v33, v36
    v_sub_f32 v34, v34, v36
    v_sub_f32 v35, v35, v36
    v_mul_f32 v32, s55, v32
    v_mul_f32 v33, s55, v33
    v_mul_f32 v34, s55, v34
    v_mul_f32 v35, s55, v35
    v_exp_f32 v32, v32
    v_exp_f32 v33, v33
    v_exp_f32 v34, v34
    v_exp_f32 v35, v35
    v_add_f32 v37, v32, v33
    v_cvt_pk_bf16_f32 v32, v32, v33
    v_add_f32 v38, v34, v35
    v_cvt_pk_bf16_f32 v33, v34, v35
    v_add_f32 v37, v37, v38
    ds_write_b64 v14, v[32:33]
    """)
    dpp_add(37, (8, 4))
    e("""
    v_mov_b32 v38, v37
    s_nop 1
    v_permlane16_swap_b32 v37, v38
    s_nop 0
    v_add_f32 v37, v37, v38
    v_mov_b32 v38, v37
    s_nop 1
    v_permlane32_swap_b32 v37, v38
    s_nop 0
    v_add_f32 v37, v37, v38
    s_mov_b64 exec, 15
    ds_write_b32 v16, v37 offset:4
    s_mov_b64 exec, -1
    """)
    flag_add(1, F_P, 30)
    spin_ge(1, F_P, 4, 6, extra="\n".join(f"ds_read_b32 v{56+k}, v17 offset:{32*k+4}" for k in range(4)))
    def preg(ee, sp, sg): return (64 if sp < 2 else 96) + 16*ee + 8*(sp & 1) + 4*sg
    e("""
    v_mov_b32 v32, v36
    v_add_f32 v33, v56, v57
    v_add_f32 v34, v58, v59
    v_add_f32 v33, v33, v34
    v_mov_b32 v34, 0
    v_mov_b32 v35, 0
    """)
    e(f"s_cmp_eq_u32 s{sW}, 0\ns_cbranch_scc0 L_nostat")
    tag_insert(32, 4)
    e(f"""
    s_mov_b64 exec, 15
    buffer_store_dwordx4 v[32:35], v29, s[{SRD_WS}:{SRD_WS+3}], 0 offen
    s_cmp_eq_u32 s{sOFF}, 0
    s_cbranch_scc1 L_nostatB
    buffer_store_dwordx4 v[32:35], v29, s[{SRD_WS}:{SRD_WS+3}], s{sBOFF} offen sc1
    L_nostatB:
    s_mov_b64 exec, -1
    L_nostat:
    """)
    stamp(3)
    for r in range(96, 128): e(f"v_mov_b32 v{r}, 0")
    for ee in range(2):
        m = 0x000f000f << (4*ee)
        e(f"s_mov_b32 s56, {m:#x}\ns_mov_b32 s57, {m:#x}\ns_mov_b64 exec, s[56:57]")
        for sp in range(4):
            for sg in range(2):
                r = preg(ee, sp, sg)
                e(f"ds_read_b128 v[{r}:{r+3}], v{40+sp} offset:{256*sg}")
    e("s_mov_b64 exec, -1")
    for sp in range(4):
        e(f"s_add_u32 s58, s{sVB}, {4*(sp+1) + (cfg.woe if sp == 3 else 0)}")
        if sp == 3 and cfg.vlf: spin_ge(1, F_WO, 4, 6)
        else: spin_land(58, 6, slp=(cfg.slpc if sp < 3 else 0))
        if sp == 3: stamp(4)
        for sg in range(2):
            for ee in range(2):
                r = 128 + 8*sg + 4*ee
                e(f"ds_read_b64_tr_b16 v[{r}:{r+1}], v{48+2*sp+ee} offset:{8192*sg}")
                e(f"ds_read_b64_tr_b16 v[{r+2}:{r+3}], v{48+2*sp+ee} offset:{8192*sg+4096}")
        for sg in range(2):
            for ee in range(2):
                r = 128 + 8*sg + 4*ee
                p = preg(ee, sp, sg)
                e(f"s_waitcnt lgkmcnt({6 - 2*(2*sg+ee)})")
                e(f"v_mfma_f32_16x16x32_bf16 v[144:147], v[{p}:{p+3}], v[{r}:{r+3}], {'v[144:147]' if (sp or sg or ee) else 0}")
    e(f"s_cmp_eq_u32 s{sOFF}, 0\ns_mov_b32 exec_hi, 0\ns_nop 5")
    tag_insert(144, 4)
    e(f"""
    buffer_store_dwordx4 v[144:147], v22, s[{SRD_WS}:{SRD_WS+3}], 0 offen
    s_cbranch_scc1 L_oloc
    buffer_store_dwordx4 v[144:147], v22, s[{SRD_WS}:{SRD_WS+3}], s{sBOFF} offen sc1
    L_oloc:
    s_mov_b64 exec, -1
    {"v_mov_b32 v156, v144; v_mov_b32 v157, v145; v_mov_b32 v158, v146; v_mov_b32 v159, v147".replace("; ", chr(10)) if 0 else ""}
    buffer_load_dwordx4 v[32:35], v24, s[{SRD_WS}:{SRD_WS+3}], s{sOFF} offen {cfg.ldA}
    buffer_load_dwordx4 v[36:39], v25, s[{SRD_WS}:{SRD_WS+3}], s{sOFF} offen {cfg.ldA}
    s_add_u32 s58, s{sVB}, 20
    """)
    stamp(5)
    def wofr():
        for ee in range(2):
            for t in range(2):
                r = 64 + 8*ee + 4*t
                e(f"ds_read_b64_tr_b16 v[{r}:{r+1}], v{20+ee} offset:{8192*t}")
                e(f"ds_read_b64_tr_b16 v[{r+2}:{r+3}], v{20+ee} offset:{8192*t+1024}")
    if not cfg.late_wo:
        spin_land(58, 6)
        wofr()
    if cfg.clean:
        for k in range(4): e(f"v_mov_b32 v{156+k}, v{144+k}")
    spin_ge(1, F_W, 1, 6, extra="ds_read_b128 v[40:43], v26\nds_read_b128 v[44:47], v26 offset:128")
    def ld2(r):
        e(f"""
        buffer_load_dwordx4 v[{r}:{r+3}], v24, s[{SRD_WS}:{SRD_WS+3}], s{sOFF} offen {cfg.ldA}
        buffer_load_dwordx4 v[{r+4}:{r+7}], v25, s[{SRD_WS}:{SRD_WS+3}], s{sOFF} offen {cfg.ldA}""")
    def chk2(r, L):
        tag_check(r, 7, True); tag_check(r+4, 7, False)
        e(f"v_and_b32 v7, v4, v7\nv_cmp_ne_u32 vcc, 0, v7\ns_cbranch_vccz {L}")
    if cfg.pp2:
        ld2(48)
        e("s_mov_b64 s[62:63], -1\nL_op:\ns_waitcnt vmcnt(2)")
        chk2(32, "L_okX")
        e("s_mov_b64 s[60:61], vcc\ns_mov_b64 exec, vcc")
        ld2(32)
        e("s_mov_b64 exec, s[62:63]\ns_waitcnt vmcnt(2)")
        chk2(48, "L_okY")
        e("s_mov_b64 s[62:63], vcc\ns_mov_b64 exec, vcc")
        ld2(48)
        e(f"""
        s_mov_b64 exec, s[60:61]
        s_sub_u32 s{sCAP}, s{sCAP}, 1
        s_cbranch_scc0 L_op
        s_mov_b32 s{sCAP}, 0
        s_waitcnt vmcnt(0)
        L_okY:
        s_mov_b64 exec, -1""")
        for k in range(8): e(f"v_and_b32 v{56+k}, 0xfffff800, v{48+k}")
        e("s_branch L_oj\nL_okX:\ns_mov_b64 exec, -1")
        for k in range(8): e(f"v_and_b32 v{56+k}, 0xfffff800, v{32+k}")
        e("L_oj:")
    else:
        e("s_branch L_ochk\nL_oretry:")
        ld2(32)
        e("L_ochk:\ns_waitcnt vmcnt(0)")
        tag_check(32, 7, True); tag_check(36, 7, False)
        tag_branch(7, "L_oretry", masked=True, slp=cfg.o2loop)
        for k in range(8): e(f"v_and_b32 v{56+k}, 0xfffff800, v{32+k}")
    stamp(6)
    R = []
    if cfg.late_wo:
        R.append(f"ds_read_b128 v[152:155], v1 offset:{O_LAND}")
        for ee in range(2):
            for t in range(2):
                r = 64 + 8*ee + 4*t
                R.append(f"ds_read_b64_tr_b16 v[{r}:{r+1}], v{20+ee} offset:{8192*t}")
                R.append(f"ds_read_b64_tr_b16 v[{r+2}:{r+3}], v{20+ee} offset:{8192*t+1024}")
    else:
        R = ["s_nop 0"] * 9
    e(f"""
    v_pk_mul_f32 v[56:57], v[56:57], v[40:41]
    v_pk_mul_f32 v[58:59], v[58:59], v[42:43]
    v_pk_fma_f32 v[56:57], v[60:61], v[44:45], v[56:57]
    v_pk_fma_f32 v[58:59], v[62:63], v[46:47], v[58:59]
    {R[0]}
    {R[1]}
    v_permlane32_swap_b32 v56, v57
    v_permlane32_swap_b32 v58, v59
    {R[2]}
    v_add_f32 v56, v56, v57
    v_add_f32 v58, v58, v59
    {R[3]}
    {R[4]}
    v_permlane16_swap_b32 v56, v58
    {R[5]}
    v_add_f32 v56, v56, v58
    {R[6]}
    {R[7]}
    v_add_f32_dpp v56, v56, v56 row_ror:8 row_mask:0xf bank_mask:0xf
    {R[8]}
    """)
    e(f"""
    v_cvt_pk_bf16_f32 v56, v56, v56
    ds_write_b16 v27, v56
    s_mov_b64 exec, 1
    ds_add_u32 v1, v30 offset:{F_O}
    s_mov_b64 exec, -1
    s_mov_b32 s56, 0x000f000f
    s_mov_b32 s57, 0x000f000f
    s_mov_b32 s59, 0x2000
    """)
    spin_ge(1, F_O, 4, 6, extra="ds_read_b128 v[40:43], v28\nds_read_b128 v[44:47], v28 offset:64")
    if cfg.late_wo:
        e("""
        v_min3_i32 v152, v152, v153, v154
        v_min_i32 v152, v152, v155
        v_cmp_le_i32 vcc, s58, v152
        s_cbranch_vccz L_wolate
        L_wook:""")
    for t in range(2):
        for ee in range(2):
            r = 64 + 8*ee + 4*t
            a = 144 + 4*ee
            e(f"v_mfma_f32_16x16x32_bf16 v[{a}:{a+3}], v[{r}:{r+3}], v[{40+4*t}:{43+4*t}], {f'v[{a}:{a+3}]' if t else 0}")
    e(f"""
    s_mov_b64 exec, s[56:57]
    s_nop 6
    """)
    for k in range(4):
        e(f"v_cndmask_b32 v{144+k}, v{144+k}, v{148+k}, s[52:53]")
    tag_insert(144, 4)
    e(f"""
    {"s_bitcmp1_b32 s32, 2; s_cbranch_scc1 L_end".replace("; ", chr(10)) if cfg.hack4 == 9 else ""}
    {"s_bitcmp1_b32 s32, 2; s_cselect_b64 exec, 0, exec".replace("; ", chr(10)) if cfg.hack4 else ""}
    buffer_store_dwordx4 v[144:147], v23, s[{SRD_WS}:{SRD_WS+3}], 0 offen sc1
    {f"buffer_store_dwordx4 v[144:147], v23, s[{SRD_WS}:{SRD_WS+3}], s59 offen sc1" if cfg.dual3 else ""}
    """)
    if cfg.clean == 1:
        e(f"s_mov_b32 s56, 0x00ff00ff\ns_mov_b32 s57, 0x00ff00ff\ns_mov_b64 exec, s[56:57]\nbuffer_store_dwordx4 v[156:159], v22, s[{SRD_WS}:{SRD_WS+3}], 0 offen sc1\ns_waitcnt vmcnt(1)")
    elif cfg.h3gate == 2: e("s_waitcnt vmcnt(0)")
    if cfg.clean == 2:
        e(f"s_mov_b32 s56, 0x00ff00ff\ns_mov_b32 s57, 0x00ff00ff\ns_mov_b64 exec, s[56:57]\nbuffer_store_dwordx4 v[156:159], v22, s[{SRD_WS}:{SRD_WS+3}], 0 offen sc1")
    if cfg.h3gate: e(f"s_mov_b64 exec, 1\nds_add_u32 v1, v30 offset:{F_K}")
    stamp(7)
    stamps_out(8)
    e("L_end:\ns_endpgm")
    if cfg.late_wo:
        e("L_wolate:")
        spin_land(58, 6)
        wofr()
        e("s_waitcnt lgkmcnt(0)\ns_branch L_wook")
    e("L_codeend:")
    if cfg.skip:
        res = []; sect = None
        for ln in out:
            t = ln.strip()
            if t.endswith(":"): sect = t[:-1]
            drop = False
            isg = t.startswith("buffer_load_dwordx4 v[") and "s[36:39]" in t
            if isg and sect in ("L_qretry",) and 'q' in cfg.skip: drop = True
            if isg and sect in ("L_hretry",) and 'h' in cfg.skip: drop = True
            if isg and sect in ("L_sretry",) and 's' in cfg.skip: drop = True
            if isg and sect in ("L_fretry",) and 'f' in cfg.skip: drop = True
            if t.startswith("s_cbranch_scc0 L_qretry") and 'q' in cfg.skip: drop = True
            if t.startswith("s_cbranch_scc0 L_hretry") and 'h' in cfg.skip: drop = True
            if t.startswith("s_cbranch_scc0 L_sretry") and 's' in cfg.skip: drop = True
            if t.startswith("s_cbranch_scc0 L_fretry") and 'f' in cfg.skip: drop = True
            if 'b' in cfg.skip and t.startswith("buffer_store_dwordx4") and "sc1" in t and ("v[56:59]" in t and sect == "L_pubB"): drop = True
            if 'a' in cfg.skip and t.startswith("buffer_store_dwordx4") and "sc1" not in t and ("v[56:59]" in t or "v[64:67]" in t or "v29" in t): drop = True
            if 'q' in cfg.skip and t.startswith("s_cbranch_vccz L_q"): ln = ln.replace("s_cbranch_vccz", "s_branch")
            if 'k' in cfg.skip and t.startswith("ds_read_b128 v[1") and "v1 offset" not in t: drop = True
            if 'v' in cfg.skip and t.startswith("ds_read_b64_tr_b16 v[1"): drop = True
            if not drop: res.append(ln)
        out[:] = res
    if cfg.mark:
        res = []; k = 0
        for ln in out:
            res.append(ln)
            if ln.strip() == f"s_mov_b32 s{sCAP}, 0":
                k += 1
                res += [f"    v_mov_b32 v164, {4*k}", "    v_mov_b32 v165, 1", "    global_atomic_add v164, v165, s[26:27]"]
        out[:] = res
    body = "\n".join(out)
    hdr = open("recurrent_scan__sliding_block_cached__dense_activation_squared_relu__decode.s.ref").read().split("; Override launch")[0]
    return f"""{hdr}; Single fused launch: 256 workgroups (one per CU) x 10 waves.
; @launch grid=(256,1,1) block=(640,1,1) lds={LDS_TOTAL}
.amdgcn_target "amdgcn-amd-amdhsa--gfx950"
.text
.globl {KNAME}
.p2align 8
.type {KNAME},@function
{KNAME}:
{body}
.section .rodata,"a"
.p2align 6
.amdhsa_kernel {KNAME}
  .amdhsa_next_free_vgpr 168
  .amdhsa_next_free_sgpr 102
  .amdhsa_accum_offset 168
  .amdhsa_group_segment_fixed_size 0
  .amdhsa_kernarg_size 104
  .amdhsa_user_sgpr_count 2
  .amdhsa_user_sgpr_kernarg_segment_ptr 1
  .amdhsa_system_sgpr_workgroup_id_x 1
.end_amdhsa_kernel
"""

if __name__ == "__main__":
    path = sys.argv[1]
    for a in sys.argv[2:]:
        k, v = a.split("=")
        cur = getattr(cfg, k)
        setattr(cfg, k, type(cur)(int(v)) if isinstance(cur, (bool, int)) else v.replace("+", " "))
    open(path, "w").write(build())
```

```python
import sys
KNAME = "recurrent_scan__sliding_block_cached__dense_activation_squared_relu__decode_kernel"

cfg_dbgsel = {6: [(0,0,1),(0,1,0),(1,2,1),(1,3,0),(2,4,0),(4,5,1),(4,6,0),(5,7,0)], 7: [(4,8,0),(5,9,0),(6,10,0)], 8: [(5,11,0),(6,12,1),(6,13,0),(7,14,0)]}
class Cfg:
    early = False
    ampw = -1
    ampk = 0
    ampg = -1
    dbg = False
    diag = False
    lw = 5
    lw2 = 5
    win = 20
    qlead = 7
    woe = 0
    lprio = 3
    cntamp = 0
    dual3 = 0
    lightg = 0
    skew = 0
    skewg = -1
    bpos = 0
    pps = 0
    trace = 0
    hack4 = 0
    slpc = 0
    vlf = 0
    cprio = 1
    touch = ''
    clean = 0
    epst = ''
    outst = ''
    nprio = 1
    late_wo = 1
    pp2 = 1
    pp3 = 1
    gap3 = 0
    epf = 1
    dirty = 0
    h3gate = 2
    h3slp = 0
    h3loop = 0
    o2loop = 0
    mark = 0
    ntmo = 4
    skip = ''
    only = 0
    pfi = 28
    slp = 0
    win2 = 20
    w2at = 4
    slead = 8
    flead = 10
    hgate = 15
    ldA = 'sc1'
    pf = 1
    first = 'sc1'
    ntK = "nt"; ntW = "nt"
    rotmul = 5
cfg = Cfg()

L_K, L_V, L_WO = 0, 65536, 131072
SCR = 147456
L_QS = SCR
L_PB = SCR + 1152
L_SB = L_PB + 2048
L_WT = L_SB + 128
L_OB = L_WT + 512
L_ACTA = L_OB + 256
L_ACTB = L_ACTA + 576
L_FL = L_ACTB + 576
L_LAND = L_FL + 64
LDS_TOTAL = L_LAND + 16 + 256
F_Q, F_K, F_P, F_V, F_T, F_WO, F_W, F_O = [4*k for k in range(8)]
W_ST, W_QP, W_HP, W_OP, B_OFF, W_SP, W_FP = 0x8000, 0x10000, 0x30000, 0x40000, 0xC0000, 0x180000, 0x1C0000
def fp_off(): return 0x200000 if cfg.dual3 else W_FP
def ws_bytes(): return 0x210000 if cfg.dual3 else WS_BYTES
WS_BYTES = 0x200000
SPIN_CAP = 1000002
LOG2E = 0x3fb8aa3b
SCALE = 0x3db504f3

sWAVE, sG, sI, sNON = 30, 31, 32, 33
sT0, sT1, sT2, sT3 = 34, 33, 40, 79
TMASK, VMASK, TB = 0x7ff, 0xfffff800, 11
SRD_WS = 36
sSLOT = 41
sRS = 42
sCAP = 43
sVB, sOFF, sBOFF = 71, 72, 73
sKEND = 70
O_LAND = 64
STAMP0 = 80

out = []
def e(s):
    for ln in s.strip("\n").split("\n"):
        out.append("    " + ln.strip() if not ln.strip().endswith(":") else ln.strip())

def estamp(k):
    if cfg.diag and cfg.early:
        e(f"s_memrealtime s[{STAMP0+2*k}:{STAMP0+2*k+1}]")
def stamp(k):
    if cfg.diag and (not cfg.early or k == 0 or k >= 6):
        e(f"s_memrealtime s[{STAMP0+2*k}:{STAMP0+2*k+1}]")

def stamps_out(n):
    if not cfg.diag: return
    if cfg.ampw >= 0:
        L = lbl("L_amp"); Ls = lbl("L_amps")
        if cfg.ampk < n:
            e(f"""
            s_waitcnt lgkmcnt(0)
            s_cmp_eq_u32 s{sWAVE}, {cfg.ampw}
            s_cbranch_scc0 {Ls}
            {f's_cmp_eq_u32 s{sG}, {cfg.ampg}; s_cbranch_scc0 {Ls}'.replace('; ', chr(10)) if cfg.ampg >= 0 else ''}
            s_sub_u32 s60, s{STAMP0+2*cfg.ampk}, s{STAMP0}
            s_min_u32 s60, s60, 20000
            s_mul_i32 s60, s60, 10
            s_memrealtime s[62:63]
            s_waitcnt lgkmcnt(0)
            {L}:
            s_memrealtime s[68:69]
            s_waitcnt lgkmcnt(0)
            s_sub_u32 s61, s68, s62
            s_cmp_lt_u32 s61, s60
            s_cbranch_scc1 {L}
            {Ls}:
            """)
        return
    if cfg.dbg:
        sel = cfg_dbgsel[n] if n in cfg_dbgsel else []
        e("s_waitcnt lgkmcnt(0)\ns_mov_b64 exec, 1\nv_mov_b32 v1, 0")
        if n == 8: e(f"s_cmp_eq_u32 s{sWAVE}, 2\ns_cbranch_scc0 L_dbgskip{len(out)}"); lab = f"L_dbgskip{len(out)-2}"
        for (k, slot, mn) in sel:
            e(f"v_mov_b32 v4, s{STAMP0+2*k}")
            if mn: e("v_not_b32 v4, v4")
            e(f"global_atomic_umax v1, v4, s[26:27] offset:{4*slot}\ns_nop 1")
        if n == 8: e(f"{lab}:")
        e("s_waitcnt vmcnt(0)")
        return
    L = lbl("L_dly")
    e(f"""
    s_waitcnt lgkmcnt(0)
    s_add_u32 s61, s{STAMP0}, 1600
    {L}:
    s_sleep 8
    s_memrealtime s[68:69]
    s_waitcnt lgkmcnt(0)
    s_cmp_lt_u32 s68, s61
    s_cbranch_scc1 {L}
    s_lshl_b32 s60, s2, 4
    s_add_u32 s60, s60, s{sWAVE}
    s_lshl_b32 s60, s60, 6
    s_add_u32 s68, s28, s60
    s_addc_u32 s69, s29, 0
    s_add_u32 s68, s68, 0x10000000
    s_addc_u32 s69, s69, 0
    s_mov_b64 exec, 1
    v_mov_b32 v1, 0
    """)
    for k in range(8):
        if k < n:
            e(f"v_mov_b32 v4, s{STAMP0+2*k}\nv_mov_b32 v5, s{STAMP0+2*k+1}")
        else:
            e(f"v_mov_b32 v4, s{STAMP0}\nv_mov_b32 v5, s{STAMP0+1}")
        e(f"global_store_dwordx2 v1, v[4:5], s[68:69] offset:{8*k}\ns_nop 1")
    e("s_waitcnt vmcnt(0)")

lblc = [0]
def lbl(p="L"):
    lblc[0] += 1
    return f"{p}_{lblc[0]}"

def flag_set(vfl, off, vval):
    e(f"s_mov_b64 exec, 1\nds_write_b32 v{vfl}, v{vval} offset:{off}\ns_mov_b64 exec, -1")
def flag_add(vfl, off, vone):
    e(f"s_mov_b64 exec, 1\nds_add_u32 v{vfl}, v{vone} offset:{off}\ns_mov_b64 exec, -1")
def spin_ge(vfl, off, target, vtmp, extra="", slp=0):
    L = lbl("L_sp")
    e(f"""{L}:
    {f's_sleep {slp}' if slp else ''}
    ds_read_b32 v{vtmp}, v{vfl} offset:{off}
    {extra}
    s_waitcnt lgkmcnt(0)
    v_cmp_le_u32 vcc, {target}, v{vtmp}
    s_cbranch_vccz {L}""")

def spin_land(sreg, vtmp, extra="", slp=0):
    L = lbl("L_sl")
    e(f"""{L}:
    {f's_sleep {slp}' if slp else ''}
    ds_read_b128 v[160:163], v1 offset:{O_LAND}
    {extra}
    s_waitcnt lgkmcnt(0)
    v_min3_i32 v160, v160, v161, v162
    v_min_i32 v160, v160, v163
    v_cmp_le_i32 vcc, s{sreg}, v160
    s_cbranch_vccz {L}""")

def get_loc(vtmp, slp=None):
    spin_ge(1, F_Q, 1, vtmp, slp=cfg.slp if slp is None else slp)
    e(f"v_readfirstlane_b32 s{sOFF}, v{vtmp}\ns_nop 3\ns_and_b32 s{sOFF}, s{sOFF}, -2")

def tag_check(regs, acc, first):
    T = [sT0, sT1, sT2, sT3]
    for k in range(4):
        if first and k == 0:
            e(f"v_xor_b32 v{acc}, s{T[0]}, v{regs}")
        else:
            e(f"v_bitop3_b32 v{acc}, v{regs+k}, s{T[k]}, v{acc} bitop3:0xbe")
def tag_branch(acc, Lretry, toggle=False, masked=False, slp=0):
    Ld = lbl("L_ok")
    e(f"""
    v_and_b32 v{acc}, v4, v{acc}
    v_cmp_ne_u32 vcc, 0, v{acc}
    s_cbranch_vccz {Ld}""")
    if masked: e("s_mov_b64 exec, vcc")
    if slp: e(f"s_sleep {slp}")
    if toggle:
        e(f"""
        s_and_b32 s{sOFF}, s{sCAP}, 3
        s_cselect_b32 s{sOFF}, 0, s{sBOFF}""")
    e(f"""
    s_sub_u32 s{sCAP}, s{sCAP}, 1
    s_cbranch_scc0 {Lretry}
    s_mov_b32 s{sCAP}, 0
    {Ld}:""")
    if masked: e("s_mov_b64 exec, -1")
def tag_insert(regs, vff):
    T = [sT0, sT1, sT2, sT3]
    for k in range(4):
        e(f"v_bfi_b32 v{regs+k}, v{vff}, s{T[k]}, v{regs+k}")

def nonce_from_epoch():
    e(f"""
    s_add_u32 s34, s34, 0x01401801
    s_addc_u32 s35, s35, 14
    s_lshr_b32 s33, s34, 11
    s_lshr_b64 s[46:47], s[34:35], 22
    s_mov_b32 s40, s46
    s_lshr_b32 s79, s35, 1
    """)

def srd(r, lo, hi, nbytes):
    pass

def reduce4_rows(x, t):
    e(f"""
    s_nop 1
    v_permlane32_swap_b32 v{x}, v{x+1}
    v_permlane32_swap_b32 v{x+2}, v{x+3}
    s_nop 0
    v_add_f32 v{x}, v{x}, v{x+1}
    v_add_f32 v{x+2}, v{x+2}, v{x+3}
    s_nop 1
    v_permlane16_swap_b32 v{x}, v{x+2}
    s_nop 0
    v_add_f32 v{x}, v{x}, v{x+2}
    """)
def dpp_add(x, rots):
    for r in rots:
        e(f"s_nop 1\nv_add_f32_dpp v{x}, v{x}, v{x} row_ror:{r} row_mask:0xf bank_mask:0xf")
def dpp_max(x, rots):
    for r in rots:
        e(f"s_nop 1\nv_max_f32_dpp v{x}, v{x}, v{x} row_ror:{r} row_mask:0xf bank_mask:0xf")
def rnd_bf16(x):
    e(f"v_cvt_pk_bf16_f32 v{x}, v{x}, v{x}\nv_and_b32 v{x}, 0xffff0000, v{x}")

def build():
    out.clear()
    stamp(0)
    nt = cfg.ntK
    W = cfg.lw; W2 = cfg.lw2
    e(f"""
    s_load_dwordx16 s[4:19], s[0:1], 0
    s_load_dwordx8 s[20:27], s[0:1], 64
    s_load_dwordx2 s[28:29], s[0:1], 96
    v_readfirstlane_b32 s{sWAVE}, v0
    s_cmpk_ge_u32 s2, 0x100
    s_cbranch_scc1 L_end
    v_and_b32 v0, 63, v0
    s_and_b32 s{sG}, s2, 7
    s_lshr_b32 s{sI}, s2, 3
    s_cmpk_ge_u32 s{sWAVE}, 0x100
    s_cbranch_scc1 L_notloader
    v_lshrrev_b32 v12, 3, v0
    s_lshl_b32 s64, s{sWAVE}, 4
    {"s_getpc_b64 s[48:49]; v_lshl_add_u32 v13, v12, 7, s64; global_load_dword v166, v13, s[48:49]".replace("; ", chr(10)) if cfg.epf else ""}
    v_and_b32 v13, 7, v0
    v_and_b32 v14, 2, v12
    v_xor_b32 v13, v13, v14
    v_lshlrev_b32 v13, 4, v13
    s_and_b32 s63, s{sWAVE}, 64
    v_xor_b32 v13, s63, v13
    v_lshl_add_u32 v10, v12, 13, v13
    s_lshr_b32 s45, s2, 6
    s_lshl_b32 s45, s45, 20
    s_and_b32 s46, s{sI}, 7
    s_lshl3_add_u32 s46, s{sG}, s46
    s_lshl_b32 s46, s46, 7
    s_add_u32 s45, s45, s46
    s_mov_b32 s58, {127*8192+128}
    s_mov_b32 s59, 0x20000
    s_lshl4_add_u32 m0, s{sWAVE}, {L_WO}
    s_lshl_b32 s47, s{sWAVE}, 10
    s_waitcnt lgkmcnt(0)
    s_add_u32 s56, s10, s45
    s_addc_u32 s57, s11, 0
    {'s_memrealtime s[82:83]' if cfg.early else ''}
    L_ldA:
    buffer_load_dwordx4 v10, s[56:59], s47 offen {cfg.ntW} lds
    s_addk_i32 m0, 0x1000
    s_add_u32 s47, s47, 0x40000
    s_bitcmp0_b32 s47, 20
    s_cbranch_scc1 L_ldA
    {'s_memrealtime s[84:85]' if cfg.early else ''}
    s_branch L_ld2
    .p2align 8
    """)
    e(f"""L_notloader:
    v_mov_b32 v1, {L_FL}
    v_mov_b32 v5, 0
    v_lshl_add_u32 v6, v0, 2, v1
    ds_write_b32 v6, v5
    s_lshr_b32 s{sWAVE}, s{sWAVE}, 6
    """)
    if cfg.pf:
        e(f"""
        s_cmp_eq_u32 s{sWAVE}, 9
        s_cbranch_scc0 L_nopf
        s_getpc_b64 s[46:47]
        L_pc:
        s_mul_i32 s45, s{sI}, {2 if cfg.epf else 3}
        {'s_add_u32 s45, s45, 30' if cfg.epf else ''}
        v_min_u32 v5, {1 if cfg.epf else 2}, v0
        v_add_u32 v5, s45, v5
        v_lshlrev_b32 v5, 7, v5
        v_min_u32 v5, L_codeend-L_pc-4, v5
        global_load_dword v166, v5, s[46:47]
        L_nopf:""")
    e(f"""
    v_lshlrev_b32 v5, 5, v0
    s_cmp_ge_u32 s{sWAVE}, 6
    s_waitcnt lgkmcnt(0)
    s_load_dwordx2 s[34:35], s[28:29], 0
    s_cbranch_scc1 L_nox
    global_load_dwordx4 v[8:11], v5, s[4:5]
    global_load_dwordx4 v[12:15], v5, s[4:5] offset:16
    L_nox:
    s_barrier
    s_branch L_nl2
    """)
    def flagw():
        e("ds_write_b32 v16, v15\nv_add_u32 v15, 1, v15")
        if cfg.trace:
            e("s_memrealtime s[66:67]\ns_waitcnt lgkmcnt(0)\ns_mov_b64 s[68:69], exec\ns_lshl_b64 exec, 1, s70\nv_mov_b32 v20, s66\ns_mov_b64 exec, s[68:69]\ns_add_u32 s70, s70, 1")
    e(f"""L_ld2:
    s_mul_i32 s44, s2, {cfg.rotmul}
    s_bfe_u32 s{sRS}, s44, 0x20002
    v_and_b32 v2, 15, v0
    v_lshrrev_b32 v3, 4, v0
    s_add_u32 s62, s{sRS}, 3
    s_and_b32 s62, s62, 3
    s_add_u32 s62, s62, 4
    s_lshl_b32 s62, s62, 14
    v_mov_b32 v1, {L_FL}
    s_lshr_b32 s45, s{sWAVE}, 4
    s_add_u32 s45, s45, {L_LAND}
    v_lshl_add_u32 v16, v0, 2, v1
    v_add_u32 v16, {O_LAND+16}, v16
    v_writelane_b32 v16, s45, 0
    v_mov_b32 v15, {5-W}
    {"s_mov_b32 s70, 0; v_mov_b32 v20, 0".replace("; ", chr(10)) if cfg.trace else ""}
    s_setprio {cfg.lprio}
    s_barrier
    """)
    estamp(3)
    if cfg.early:
        e("s_waitcnt vmcnt(3)"); estamp(4); e("s_waitcnt vmcnt(0)"); estamp(5)
    stamp(1)
    def Bblock():
        e(f"""
        s_add_u32 s67, s{sG}, {7 - cfg.lightg}
        s_and_b32 s67, s67, 7
        s_cmp_lt_u32 s67, 7
        s_cbranch_scc0 L_ld_noB
        s_add_u32 m0, s62, s64
        s_and_b32 s65, s{sI}, 15
        s_lshl4_add_u32 s65, s67, s65
        s_cmp_lt_u32 s{sI}, 16
        s_cbranch_scc0 L_ld_w2
        s_and_b32 s45, s65, 3
        s_mul_i32 s45, s45, {128*3584}
        s_lshr_b32 s46, s65, 2
        s_lshl_b32 s46, s46, 7
        s_add_u32 s45, s45, s46
        s_add_u32 s56, s16, s45
        s_addc_u32 s57, s17, 0
        v_mul_u32_u24 v10, 3584, v12
        v_add_u32 v10, v10, v13
        s_mul_i32 s47, s64, 28
        s_mov_b32 s46, {32*3584}
        s_branch L_ld_B
        L_ld_w2:
        s_lshr_b32 s45, s65, 3
        s_lshl_b32 s45, s45, 17
        s_and_b32 s46, s65, 7
        s_lshl_b32 s46, s46, 7
        s_add_u32 s45, s45, s46
        s_add_u32 s56, s20, s45
        s_addc_u32 s57, s21, 0
        v_lshl_add_u32 v10, v12, 10, v13
        s_lshl_b32 s47, s64, 3
        s_mov_b32 s46, 0x8000
        L_ld_B:
        s_sub_u32 s58, {512*1792*2}, s45
        s_mov_b32 s60, 0
        L_ldB:
        s_waitcnt vmcnt({W-1})
        buffer_load_dwordx4 v10, s[56:59], s47 offen {cfg.ntW} lds
        s_addk_i32 m0, 0x1000
        s_add_u32 s47, s47, s46""")
        flagw()
        e(f"""
        s_add_u32 s60, s60, 1
        s_cmp_lt_u32 s60, 4
        s_cbranch_scc1 L_ldB
        L_ld_noB:
        """)
    def Kblock():
        e(f"""
        v_lshlrev_b32 v14, 8, v3
        v_xor_b32 v17, v3, v2
        v_lshl_add_u32 v4, v17, 4, v14
        v_xor_b32 v4, s{sWAVE}, v4
        s_lshr_b32 s45, s{sI}, 4
        s_lshl_b32 s45, s45, 26
        s_lshl_b32 s46, s{sG}, 23
        s_add_u32 s45, s45, s46
        s_and_b32 s46, s{sI}, 15
        s_lshl_b32 s46, s46, 16
        s_add_u32 s45, s45, s46
        s_add_u32 s45, s45, {28672*256}
        s_mov_b32 s50, 0x10000
        s_mov_b32 s51, 0x20000
        s_add_u32 s48, s6, s45
        s_addc_u32 s49, s7, 0
        s_mov_b32 s60, 0
        s_and_b32 s61, s44, 3
        L_ldK:
        s_lshr_b32 s47, s60, 2
        s_add_u32 s47, s47, s{sRS}
        s_and_b32 s47, s47, 3
        s_add_u32 s62, s61, s60
        s_and_b32 s62, s62, 3
        s_lshl2_add_u32 s47, s47, s62
        s_lshl_b32 s47, s47, 12
        s_add_u32 s47, s47, s64
        s_mov_b32 m0, s47
        s_add_u32 s60, s60, 1
        s_waitcnt vmcnt({W-1})
        buffer_load_dwordx4 v4, s[48:51], s47 offen {nt} lds""")
        flagw()
        e(f"""
        s_cmp_lt_u32 s60, 16
        s_cbranch_scc1 L_ldK
        """)
    if cfg.bpos:
        Kblock(); e("s_mov_b32 s66, s45"); Bblock(); e("s_mov_b32 s45, s66")
    else:
        Bblock(); Kblock()
    stamp(2)
    e(f"""
    v_lshlrev_b32 v17, 1, v3
    v_xor_b32 v17, v17, v2
    v_lshl_add_u32 v8, v17, 4, v14
    s_lshl_b32 s63, s63, 1
    v_xor_b32 v8, s63, v8
    v_lshlrev_b32 v14, 10, v3
    v_lshl_add_u32 v10, v17, 4, v14
    s_and_b32 s63, s{sWAVE}, 0x80
    v_xor_b32 v10, s63, v10
    s_add_u32 s52, s8, s45
    s_addc_u32 s53, s9, 0
    s_mov_b32 s54, 0x10000
    s_mov_b32 s55, 0x20000
    s_mov_b32 s60, 0
    s_and_b32 s61, s44, 3
    """)
    def vloop(name, end, win, noflag=False):
        e(f"""{name}:
        s_lshr_b32 s47, s60, 2
        s_add_u32 s47, s47, s{sRS}
        s_and_b32 s47, s47, 3
        s_add_u32 s62, s61, s60
        s_and_b32 s62, s62, 3
        s_lshl2_add_u32 s47, s47, s62
        s_lshl_b32 s47, s47, 12
        s_add_u32 s47, s47, s64
        s_add_u32 m0, s47, {L_V}
        s_add_u32 s60, s60, 1
        s_waitcnt vmcnt({win-1})
        buffer_load_dwordx4 v8, s[52:55], s47 offen {nt} lds""")
        if not noflag: flagw()
        e(f"""
        s_cmp_lt_u32 s60, {end}
        s_cbranch_scc1 {name}
        """)
    def woloop(name, g0, g1):
        if g0 == g1: return
        e(f"""
        s_add_u32 m0, s64, {L_WO + 4096*g0}
        s_lshl_b32 s47, s64, 2
        s_add_u32 s47, s47, {0x20000*g0}
        {name}:
        s_waitcnt vmcnt({W2-1})
        buffer_load_dwordx4 v10, s[56:59], s47 offen {cfg.ntW} lds
        s_addk_i32 m0, 0x1000
        s_add_u32 s47, s47, 0x20000""")
        flagw()
        e(f"""
        s_cmp_lt_u32 s47, {0x20000*g1}
        s_cbranch_scc1 {name}""")
    if W2 > W:
        assert cfg.w2at + (W2 - W) <= 12
        if cfg.w2at > 0: vloop("L_ldV0", cfg.w2at, W)
        vloop("L_ldV0b", cfg.w2at + W2 - W, W2, noflag=True)
        if cfg.w2at + W2 - W < 12: vloop("L_ldV1", 12, W2)
    elif W2 < W:
        vloop("L_ldV0", cfg.w2at, W)
        for k in range(W - W2):
            e(f"s_waitcnt vmcnt({W-1-k})")
            flagw()
        if cfg.w2at < 12: vloop("L_ldV1", 12, W2)
    else:
        vloop("L_ldV1", 12, W)
    e(f"""
    s_lshl_b32 s45, s{sG}, 19
    s_lshr_b32 s46, s{sI}, 2
    s_lshl_b32 s46, s46, 14
    s_add_u32 s45, s45, s46
    s_and_b32 s46, s{sI}, 3
    s_lshl_b32 s46, s46, 8
    s_add_u32 s45, s45, s46
    s_add_u32 s56, s12, s45
    s_addc_u32 s57, s13, 0
    s_mov_b32 s58, {(3*128+15)*1024+256}
    """)
    spin_ge(1, F_T, 2, 17)
    woloop("L_ldWO1", 0, cfg.woe)
    vloop("L_ldV2", 16, W2)
    woloop("L_ldWO2", cfg.woe, 4)
    stamp(3)
    if cfg.vlf:
        assert W2 - 1 >= 4 - cfg.woe
        e("v_mov_b32 v18, 1\ns_mov_b64 exec, 1")
    for k in range(W2-1, -1, -1):
        e(f"s_waitcnt vmcnt({k})")
        if k == 4 - cfg.woe and cfg.vlf: e(f"ds_add_u32 v1, v18 offset:{F_WO}")
        flagw()
        if k == 4 - cfg.woe: stamp(4)
    stamp(5)
    if cfg.trace:
        e(f"""s_mov_b64 exec, -1
        s_lshl_b32 s60, s2, 10
        s_lshl_b32 s61, s{sWAVE}, 2
        s_add_u32 s60, s60, s61
        s_add_u32 s68, s28, s60
        s_addc_u32 s69, s29, 0
        s_add_u32 s68, s68, 0x18000000
        s_addc_u32 s69, s69, 0
        v_lshlrev_b32 v21, 2, v0
        global_store_dword v21, v20, s[68:69]""")
    if cfg.diag: e(f"s_lshr_b32 s{sWAVE}, s{sWAVE}, 6")
    stamps_out(6)
    e("s_endpgm")

    e(f"""L_nl2:
    {f"s_mov_b64 exec, 1; v_mov_b32 v5, 2; ds_write_b32 v1, v5 offset:{F_T}; s_waitcnt vmcnt(0) lgkmcnt(0); s_endpgm".replace("; ", chr(10)) if cfg.only == 1 else ""}
    s_setprio {cfg.nprio}
    v_and_b32 v2, 15, v0
    v_lshrrev_b32 v3, 4, v0
    s_mul_i32 s44, s2, {cfg.rotmul}
    s_bfe_u32 s{sRS}, s44, 0x20002
    s_lshl_b32 s{sSLOT}, s{sG}, 5
    s_add_u32 s{sSLOT}, s{sSLOT}, s{sI}
    s_mov_b32 s{sCAP}, {SPIN_CAP}
    s_add_u32 s68, s{sG}, {7 - cfg.lightg}
    s_and_b32 s68, s68, 7
    s_cmp_lt_u32 s68, 7
    s_cselect_b32 s{sVB}, 24, 20
    s_mov_b32 s{sKEND}, {'20' if cfg.bpos else f's{sVB}'}
    v_mov_b32 v4, {TMASK}
    s_mov_b32 s{SRD_WS}, s28
    s_mov_b32 s{SRD_WS+1}, s29
    s_mov_b32 s{SRD_WS+2}, {ws_bytes()}
    s_mov_b32 s{SRD_WS+3}, 0x20000
    s_mov_b32 s{sOFF}, 0
    s_mov_b32 s{sBOFF}, {B_OFF}
    s_cmp_ge_u32 s{sWAVE}, 6
    s_cbranch_scc1 L_compute
    """)
    e(f"""
    s_cmp_eq_u32 s{sWAVE}, 4
    s_cbranch_scc0 L_roleB
    s_mov_b32 s44, 0
    s_lshr_b32 s53, s{sI}, 3
    s_lshl_b32 s52, s{sSLOT}, 9
    s_add_u32 s52, s52, {W_QP}
    s_mov_b32 s54, {L_WO}
    s_mov_b32 s55, {L_ACTA}
    s_mov_b32 s45, 4
    s_branch L_tilecommon
    L_roleB:
    s_add_u32 s54, s{sRS}, 3
    s_and_b32 s54, s54, 3
    s_add_u32 s54, s54, 4
    s_lshl_b32 s54, s54, 14
    s_mov_b32 s55, {L_ACTB}
    s_mov_b32 s45, {24 if cfg.bpos else 8}
    s_and_b32 s52, s{sI}, 15
    s_lshl4_add_u32 s52, s68, s52
    s_lshr_b32 s44, s{sI}, 4
    s_and_b32 s53, s52, 3
    s_lshr_b32 s46, s52, 3
    s_lshl_b32 s52, s52, 9
    s_cmp_eq_u32 s44, 0
    s_cselect_b32 s53, s53, s46
    s_mov_b32 s46, {fp_off()}
    s_cselect_b32 s46, {W_HP}, s46
    s_add_u32 s52, s52, s46
    s_cmp_eq_u32 s68, 7
    s_cselect_b32 s44, 2, s44
    L_tilecommon:
    """)
    estamp(2)
    stamp(1)
    e(f"""
    v_lshrrev_b32 v5, 2, v2
    v_lshl_add_u32 v5, v3, 3, v5
    v_lshlrev_b32 v5, 7, v5
    v_and_b32 v6, 3, v2
    v_lshl_add_u32 v5, v6, 3, v5
    v_add_u32 v5, s54, v5
    v_lshrrev_b32 v6, 3, v2
    v_and_b32 v7, 1, v3
    v_lshl_or_b32 v6, v7, 1, v6
    """)
    for u in range(4):
        e(f"v_xor_b32 v7, {u}, v6\nv_lshl_add_u32 v{16+u}, v7, 5, v5")
    e(f"""
    v_and_b32 v5, 1, v0
    v_mul_u32_u24 v5, 288, v5
    v_lshl_add_u32 v5, v3, 4, v5
    v_add_u32 v20, s55, v5
    v_mov_b32 v21, 1
    v_mov_b32 v60, 0
    s_waitcnt lgkmcnt(0)
    """)
    nonce_from_epoch()
    e(f"""
    s_cmp_eq_u32 s44, 0
    s_waitcnt vmcnt(0)
    s_cbranch_scc0 L_noLN
    """)
    estamp(4)
    for k in range(8):
        e(f"v_lshlrev_b32 v{24+2*k}, 16, v{8+k}\nv_and_b32 v{25+2*k}, 0xffff0000, v{8+k}")
    e("v_pk_add_f32 v[40:41], v[24:25], v[26:27]")
    for k in range(2, 8):
        e(f"v_pk_add_f32 v[40:41], v[40:41], v[{24+2*k}:{25+2*k}]")
    e("v_add_f32 v40, v40, v41")
    dpp_add(40, (8, 4, 2, 1))
    e("v_mov_b32 v41, v40\ns_nop 1\nv_permlane16_swap_b32 v40, v41\ns_nop 0\nv_add_f32 v40, v40, v41")
    e("v_mul_f32 v40, 0xbb000000, v40\nv_mov_b32 v41, v40")
    e("v_pk_add_f32 v[42:43], v[24:25], v[40:41]\nv_pk_mul_f32 v[44:45], v[42:43], v[42:43]")
    for k in range(1, 8):
        e(f"v_pk_add_f32 v[42:43], v[{24+2*k}:{25+2*k}], v[40:41]\nv_pk_fma_f32 v[44:45], v[42:43], v[42:43], v[44:45]")
    e("v_add_f32 v44, v44, v45")
    dpp_add(44, (8, 4, 2, 1))
    e("v_mov_b32 v45, v44\ns_nop 1\nv_permlane16_swap_b32 v44, v45\ns_nop 0\nv_add_f32 v44, v44, v45")
    e("v_mul_f32 v44, 0x3b000000, v44")
    rnd_bf16(44)
    e("v_add_f32 v44, 0x3727c5ac, v44")
    rnd_bf16(44)
    e("v_sqrt_f32 v44, v44\ns_nop 0")
    rnd_bf16(44)
    e("v_rcp_f32 v44, v44")
    rnd_bf16(40)
    e("v_mov_b32 v41, v40\nv_mov_b32 v45, v44")
    for k in range(8):
        e(f"v_pk_add_f32 v[42:43], v[{24+2*k}:{25+2*k}], v[40:41]")
        e(f"v_cvt_pk_bf16_f32 v42, v42, v43\nv_and_b32 v43, 0xffff0000, v42\nv_lshlrev_b32 v42, 16, v42")
        e(f"v_pk_mul_f32 v[42:43], v[42:43], v[44:45]\nv_cvt_pk_bf16_f32 v{8+k}, v42, v43")
    e(f"""
    v_bfe_u32 v5, v0, 3, 2
    v_lshrrev_b32 v6, 5, v0
    v_mul_u32_u24 v6, 288, v6
    v_and_b32 v7, 7, v0
    v_lshl_add_u32 v6, v7, 5, v6
    v_add_u32 v6, s55, v6
    v_cmp_eq_u32 vcc, s53, v5
    s_and_saveexec_b64 s[56:57], vcc
    ds_write_b128 v6, v[8:11]
    ds_write_b128 v6, v[12:15] offset:16
    s_mov_b64 exec, -1
    L_noLN:
    """)
    stamp(2)
    e(f"""
    s_cmp_eq_u32 s44, 2
    s_cbranch_scc1 L_notile
    """)
    spin_land(45, 5, slp=cfg.slp)
    estamp(5)
    for u in range(4):
        for t in range(4):
            r = 64 + 16*u + 4*t
            e(f"ds_read_b64_tr_b16 v[{r}:{r+1}], v{16+u} offset:{t*4096}")
            e(f"ds_read_b64_tr_b16 v[{r+2}:{r+3}], v{16+u} offset:{t*4096+512}")
    e(f"""
    s_waitcnt lgkmcnt(0)
    L_notile:
    """)
    flag_add(1, F_T, 21)
    stamp(3)
    e(f"""
    s_cmp_eq_u32 s44, 1
    s_cbranch_scc0 L_noH
    """)
    e(f"""
    v_bfe_u32 v5, v0, 4, 1
    v_lshlrev_b32 v5, 11, v5
    v_lshrrev_b32 v6, 5, v0
    v_lshl_add_u32 v5, v6, 8, v5
    v_lshl_add_u32 v5, v2, 4, v5
    s_lshl_b32 s56, s53, 12
    s_add_u32 s56, s56, {W_HP}
    v_add_u32 v5, s56, v5
    v_and_b32 v7, 31, v0
    v_lshlrev_b32 v7, 3, v7
    s_lshl_b32 s56, s53, 8
    v_add_u32 v22, s56, v7
    global_load_dwordx2 v[22:23], v22, s[18:19]
    v_mul_u32_u24 v6, 288, v6
    v_add3_u32 v6, v6, v7, s55
    """)
    e(f"s_mov_b32 s45, {cfg.hgate}")
    spin_land(45, 7, slp=cfg.slp)
    e("L_hretry:")
    for k in range(4):
        e(f"buffer_load_dwordx4 v[{24+4*k}:{27+4*k}], v5, s[{SRD_WS}:{SRD_WS+3}], s{sOFF} offen offset:{512*k} sc1")
    e("s_waitcnt vmcnt(0)")
    for k in range(4): tag_check(24+4*k, 7, k == 0)
    e(f"""
    v_and_b32 v7, v4, v7
    v_cmp_ne_u32 vcc, 0, v7
    s_cbranch_vccz L_hok""")
    get_loc(7)
    e(f"""
    s_sub_u32 s{sCAP}, s{sCAP}, 1
    s_cbranch_scc0 L_hretry
    s_mov_b32 s{sCAP}, 0
    L_hok:""")
    for k in range(16): e(f"v_and_b32 v{24+k}, 0xfffff800, v{24+k}")
    e("""
    v_pk_add_f32 v[24:25], v[24:25], v[28:29]
    v_pk_add_f32 v[26:27], v[26:27], v[30:31]
    v_pk_add_f32 v[32:33], v[32:33], v[36:37]
    v_pk_add_f32 v[34:35], v[34:35], v[38:39]
    v_pk_add_f32 v[24:25], v[24:25], v[32:33]
    v_pk_add_f32 v[26:27], v[26:27], v[34:35]
    v_cvt_pk_bf16_f32 v24, v24, v25
    v_cvt_pk_bf16_f32 v26, v26, v27
    v_and_b32 v25, 0xffff0000, v24
    v_lshlrev_b32 v24, 16, v24
    v_and_b32 v27, 0xffff0000, v26
    v_lshlrev_b32 v26, 16, v26
    v_lshlrev_b32 v28, 16, v22
    v_and_b32 v29, 0xffff0000, v22
    v_lshlrev_b32 v30, 16, v23
    v_and_b32 v31, 0xffff0000, v23
    v_pk_add_f32 v[24:25], v[24:25], v[28:29]
    v_pk_add_f32 v[26:27], v[26:27], v[30:31]
    v_cvt_pk_bf16_f32 v24, v24, v25
    v_cvt_pk_bf16_f32 v26, v26, v27
    v_and_b32 v25, 0xffff0000, v24
    v_lshlrev_b32 v24, 16, v24
    v_and_b32 v27, 0xffff0000, v26
    v_lshlrev_b32 v26, 16, v26
    v_max_f32 v24, 0, v24
    v_max_f32 v25, 0, v25
    v_max_f32 v26, 0, v26
    v_max_f32 v27, 0, v27
    v_pk_mul_f32 v[24:25], v[24:25], v[24:25]
    v_pk_mul_f32 v[26:27], v[26:27], v[26:27]
    v_cvt_pk_bf16_f32 v24, v24, v25
    v_cvt_pk_bf16_f32 v25, v26, v27
    ds_write_b64 v6, v[24:25]
    L_noH:
    s_cmp_eq_u32 s44, 2
    s_cbranch_scc1 L_nopub
    """)
    e("s_waitcnt lgkmcnt(0)")
    for t in range(4):
        e(f"ds_read_b128 v[{24+4*t}:{27+4*t}], v20 offset:{64*t}")
    e(f"""
    s_cmp_eq_u32 s44, 0
    s_cselect_b32 s56, 8, 4
    s_cselect_b32 s57, 6, 5
    s_cselect_b32 s58, 4, 7
    v_and_b32 v5, 1, v0
    v_lshlrev_b32 v5, s56, v5
    v_bfe_u32 v6, v0, 1, 2
    v_lshl_add_u32 v5, v6, s57, v5
    v_lshl_add_u32 v5, v3, s58, v5
    v_add_u32 v60, s52, v5
    v_and_b32 v6, 2, v0
    v_cmp_ne_u32 s[56:57], 0, v6
    v_and_b32 v6, 4, v0
    v_cmp_ne_u32 s[58:59], 0, v6
    s_waitcnt lgkmcnt(0)
    """)
    for t in range(4):
        for u in range(4):
            r = 64 + 16*u + 4*t
            c = f"v[{40+4*u}:{43+4*u}]"
            e(f"v_mfma_f32_16x16x32_bf16 {c}, v[{r}:{r+3}], v[{24+4*t}:{27+4*t}], {c if t else 0}")
    e("s_nop 7")
    for k in range(4):
        e(f"v_cndmask_b32 v{40+k}, v{40+k}, v{44+k}, s[56:57]")
    for k in range(4):
        e(f"v_cndmask_b32 v{48+k}, v{48+k}, v{52+k}, s[56:57]")
    for k in range(4):
        e(f"v_cndmask_b32 v{56+k}, v{40+k}, v{48+k}, s[58:59]")
    for k in range(4): e(f"v_add_u32 v{56+k}, 0x400, v{56+k}")
    tag_insert(56, 4)
    e(f"""
    s_mov_b32 s74, 0x00ff00ff
    s_mov_b32 s75, 0x00ff00ff
    s_mov_b64 exec, s[74:75]
    s_cmp_eq_u32 s44, 0
    s_cbranch_scc0 L_pubB
    buffer_store_dwordx4 v[56:59], v60, s[{SRD_WS}:{SRD_WS+3}], 0 offen
    s_branch L_pubE
    L_pubB:
    buffer_store_dwordx4 v[56:59], v60, s[{SRD_WS}:{SRD_WS+3}], 0 offen sc1
    L_pubE:
    s_mov_b64 exec, -1
    L_nopub:
    """)
    stamp(4)
    e(f"""
    s_cmp_eq_u32 s{sWAVE}, 4
    s_cbranch_scc0 L_final
    """)
    e(f"""
    v_lshlrev_b32 v10, 9, v3
    v_lshl_add_u32 v10, v2, 4, v10
    s_lshl_b32 s56, s{sG}, 14
    s_lshr_b32 s57, s{sI}, 4
    s_lshl_b32 s57, s57, 8
    s_add_u32 s56, s56, s57
    s_add_u32 s56, s56, {W_QP}
    v_add_u32 v10, s56, v10
    v_add_u32 v11, 0x1000, v10
    v_add_u32 v12, 0x2000, v10
    v_add_u32 v13, 0x3000, v10
    v_lshrrev_b32 v8, 5, v0
    v_lshlrev_b32 v8, 5, v8
    v_lshl_add_u32 v8, v0, 3, v8
    v_add_u32 v8, {L_QS}, v8
    s_sub_u32 s45, s{sKEND}, {cfg.qlead}
    s_getreg_b32 s76, hwreg(HW_REG_XCC_ID, 0, 4)
    s_lshl_b32 s56, s76, 16
    v_mov_b32 v64, s56
    v_mov_b32 v65, 0
    v_mov_b32 v66, 0
    v_mov_b32 v67, 0
    s_lshl_b32 s56, s{sSLOT}, 7
    s_add_u32 s56, s56, {W_ST+64}
    v_mov_b32 v61, s56
    v_and_b32 v62, 31, v0
    v_lshlrev_b32 v62, 7, v62
    s_lshl_b32 s56, s{sG}, 12
    s_add_u32 s56, s56, {W_ST+64}
    v_add_u32 v62, s56, v62
    s_mov_b32 s77, 0
    s_mov_b32 s78, 0
    """)
    tag_insert(64, 4)
    e(f"""
    s_mov_b64 exec, 1
    buffer_store_dwordx4 v[64:67], v61, s[{SRD_WS}:{SRD_WS+3}], 0 offen
    s_mov_b64 exec, -1
    """)
    def pubB_q():
        L = lbl("L_pb")
        e(f"""
        s_cmp_eq_u32 s77, 0
        s_cbranch_scc0 {L}
        s_mov_b32 s77, 1
        s_mov_b64 exec, s[74:75]
        buffer_store_dwordx4 v[56:59], v60, s[{SRD_WS}:{SRD_WS+3}], s{sBOFF} offen sc1
        s_mov_b64 exec, 1
        buffer_store_dwordx4 v[64:67], v61, s[{SRD_WS}:{SRD_WS+3}], s{sBOFF} offen sc1
        s_mov_b64 exec, -1
        {L}:""")
    spin_land(45, 7, slp=cfg.slp)
    e("L_qretry:")
    for v in range(2):
        for k in range(4):
            r = 24 + 16*v + 4*k
            e(f"buffer_load_dwordx4 v[{r}:{r+3}], v{10+k}, s[{SRD_WS}:{SRD_WS+3}], s{sOFF} offen offset:{2048*v} {cfg.ldA}")
    e(f"buffer_load_dwordx4 v[68:71], v62, s[{SRD_WS}:{SRD_WS+3}], s{sOFF} offen {cfg.ldA}")
    e("s_waitcnt vmcnt(0)")
    for k in range(8): tag_check(24+4*k, 7, k == 0)
    tag_check(68, 7, False)
    e(f"""
    v_and_b32 v7, v4, v7
    v_cmp_ne_u32 vcc, 0, v7
    s_cbranch_vccz L_qok
    s_add_u32 s78, s78, 1
    s_cmp_lt_u32 s78, {cfg.ntmo}
    s_cbranch_scc1 L_qretry
    s_xor_b32 s{sOFF}, s{sOFF}, s{sBOFF}
    """)
    pubB_q()
    e(f"""
    s_sub_u32 s{sCAP}, s{sCAP}, 1
    s_cbranch_scc0 L_qretry
    s_mov_b32 s{sCAP}, 0
    L_qok:
    v_lshrrev_b32 v68, 16, v68
    v_cmp_ne_u32 vcc, s76, v68
    s_mov_b32 s{sOFF}, 0
    s_cbranch_vccz L_qloc
    s_mov_b32 s{sOFF}, s{sBOFF}
    """)
    pubB_q()
    e(f"""L_qloc:
    s_add_u32 s56, s{sOFF}, 1
    v_mov_b32 v9, s56
    """)
    for k in range(32): e(f"v_and_b32 v{24+k}, 0xfffff800, v{24+k}")
    for v in range(2):
        r = 24 + 16*v
        e(f"""
        v_pk_add_f32 v[{r}:{r+1}], v[{r}:{r+1}], v[{r+4}:{r+5}]
        v_pk_add_f32 v[{r+2}:{r+3}], v[{r+2}:{r+3}], v[{r+6}:{r+7}]
        v_pk_add_f32 v[{r+8}:{r+9}], v[{r+8}:{r+9}], v[{r+12}:{r+13}]
        v_pk_add_f32 v[{r+10}:{r+11}], v[{r+10}:{r+11}], v[{r+14}:{r+15}]
        v_pk_add_f32 v[{r}:{r+1}], v[{r}:{r+1}], v[{r+8}:{r+9}]
        v_pk_add_f32 v[{r+2}:{r+3}], v[{r+2}:{r+3}], v[{r+10}:{r+11}]
        v_cvt_pk_bf16_f32 v{r}, v{r}, v{r+1}
        v_cvt_pk_bf16_f32 v{r+1}, v{r+2}, v{r+3}
        ds_write_b64 v8, v[{r}:{r+1}] offset:{576*v}
        """)
    flag_set(1, F_Q, 9)
    stamp(5)
    e(f"""
    v_and_b32 v5, 31, v0
    v_lshrrev_b32 v6, 5, v0
    v_lshlrev_b32 v9, 4, v5
    v_lshl_add_u32 v9, v6, 2, v9
    v_add_u32 v9, {L_WT}, v9
    v_lshlrev_b32 v5, 7, v5
    v_lshl_add_u32 v5, v6, 4, v5
    s_lshl_b32 s56, s{sG}, 12
    s_add_u32 s56, s56, {W_ST}
    v_add_u32 v5, s56, v5
    """)
    if cfg.slead > 0:
        e(f"s_add_u32 s45, s{sVB}, {cfg.slead}")
        spin_land(45, 7, slp=cfg.slp)
    spin_ge(1, F_V, 4, 7, slp=cfg.slp)
    def lds_(r):
        e(f"""
        buffer_load_dwordx4 v[{r}:{r+3}], v5, s[{SRD_WS}:{SRD_WS+3}], s{sOFF} offen {cfg.ldA}
        buffer_load_dwordx4 v[{r+4}:{r+7}], v5, s[{SRD_WS}:{SRD_WS+3}], s{sOFF} offen offset:32 {cfg.ldA}""")
    if cfg.pps:
        def chks(r, L):
            tag_check(r, 7, True); tag_check(r+4, 7, False)
            e(f"v_and_b32 v7, v4, v7\nv_cmp_ne_u32 vcc, 0, v7\ns_cbranch_vccz {L}")
        lds_(32)
        e(f"s_add_u32 s45, s45, {cfg.pps}")
        spin_land(45, 7, slp=cfg.slp)
        lds_(40)
        e("s_mov_b64 s[62:63], -1\nL_sp2:\ns_waitcnt vmcnt(2)")
        chks(32, "L_sX")
        e("s_mov_b64 s[60:61], vcc\ns_mov_b64 exec, vcc")
        lds_(32)
        e("s_mov_b64 exec, s[62:63]\ns_waitcnt vmcnt(2)")
        chks(40, "L_sY")
        e("s_mov_b64 s[62:63], vcc\ns_mov_b64 exec, vcc")
        lds_(40)
        e(f"""
        s_mov_b64 exec, s[60:61]
        s_sub_u32 s{sCAP}, s{sCAP}, 1
        s_cbranch_scc0 L_sp2
        s_mov_b32 s{sCAP}, 0
        s_waitcnt vmcnt(0)
        L_sY:
        s_mov_b64 exec, -1""")
        for k in (0, 1, 4, 5): e(f"v_mov_b32 v{24+k}, v{40+k}")
        e("s_branch L_sj\nL_sX:\ns_mov_b64 exec, -1")
        for k in (0, 1, 4, 5): e(f"v_mov_b32 v{24+k}, v{32+k}")
        e("L_sj:")
    else:
        e("L_sretry:")
        lds_(24)
        e("s_waitcnt vmcnt(0)")
        tag_check(24, 7, True); tag_check(28, 7, False)
        tag_branch(7, "L_sretry", masked=True)
    e("""
    v_and_b32 v24, 0xfffff800, v24
    v_and_b32 v28, 0xfffff800, v28
    v_and_b32 v25, 0xfffff800, v25
    v_and_b32 v29, 0xfffff800, v29
    v_max_f32_dpp v26, v24, v24 row_ror:8 row_mask:0xf bank_mask:0xf
    v_max_f32_dpp v30, v28, v28 row_ror:8 row_mask:0xf bank_mask:0xf""")
    for r in (4, 2, 1):
        e(f"""s_nop 0
        v_max_f32_dpp v26, v26, v26 row_ror:{r} row_mask:0xf bank_mask:0xf
        v_max_f32_dpp v30, v30, v30 row_ror:{r} row_mask:0xf bank_mask:0xf""")
    e(f"""
    v_sub_f32 v24, v24, v26
    v_sub_f32 v28, v28, v30
    v_mul_f32 v24, {LOG2E}, v24
    v_mul_f32 v28, {LOG2E}, v28
    v_exp_f32 v24, v24
    v_exp_f32 v28, v28
    s_nop 0
    v_mul_f32 v25, v24, v25
    v_mul_f32 v29, v28, v29""")
    for r in (8, 4, 2, 1):
        e(f"""s_nop 0
        v_add_f32_dpp v25, v25, v25 row_ror:{r} row_mask:0xf bank_mask:0xf
        v_add_f32_dpp v29, v29, v29 row_ror:{r} row_mask:0xf bank_mask:0xf""")
    e(f"""
    v_rcp_f32 v25, v25
    v_rcp_f32 v29, v29
    s_nop 0
    v_mul_f32 v24, v24, v25
    v_mul_f32 v28, v28, v29
    ds_write2_b32 v9, v24, v28 offset0:0 offset1:2
    """)
    flag_set(1, F_W, 21)
    if cfg.dirty:
        e(f"s_mov_b32 s{SRD_WS+2}, 0x2000000\ns_mul_i32 s56, s2, {1024*cfg.dirty}\ns_add_u32 s56, s56, 0x400000\nv_lshlrev_b32 v5, 4, v0")
        for k in range(cfg.dirty):
            e(f"buffer_store_dwordx4 v[24:27], v5, s[{SRD_WS}:{SRD_WS+3}], s56 offen\ns_add_u32 s56, s56, 1024")
    stamp(6)
    if cfg.diag: e(f"s_waitcnt lgkmcnt(0)\ns_sub_u32 s94, {SPIN_CAP}, s{sCAP}\ns_lshl_b32 s94, s94, 8\ns_add_u32 s94, s94, s78\ns_mov_b32 s95, 0")
    if cfg.cntamp == 1: e("s_lshr_b32 s94, s94, 8\ns_mul_i32 s94, s94, 100\ns_add_u32 s94, s94, s80")
    if cfg.cntamp == 2: e("s_and_b32 s94, s94, 255\ns_mul_i32 s94, s94, 100\ns_add_u32 s94, s94, s80")
    stamps_out(8)
    e("s_endpgm")

    e(f"""L_final:
    {"s_waitcnt lgkmcnt(0); s_lshl_b32 s56, s2, 2; s_add_u32 s56, s56, 0x1E0000; v_mov_b32 v5, s56; v_mov_b32 v6, s80; s_mov_b64 exec, 1; buffer_store_dword v6, v5, s[36:39], 0 offen sc1; s_mov_b64 exec, -1".replace("; ", chr(10)) if cfg.skew else ""}
    s_cmp_eq_u32 s44, 0
    s_cbranch_scc0 L_fin0
    """)
    get_loc(7)
    e(f"""
    s_cmp_eq_u32 s{sOFF}, 0
    s_cbranch_scc1 L_fin0
    s_mov_b64 exec, s[74:75]
    buffer_store_dwordx4 v[56:59], v60, s[{SRD_WS}:{SRD_WS+3}], s{sBOFF} offen sc1
    s_mov_b64 exec, -1
    L_fin0:
    s_lshr_b32 s56, s{sI}, 3          ; ctile
    s_and_b32 s57, s{sI}, 1           ; b
    s_bfe_u32 s58, s{sI}, 0x10001     ; e
    s_bfe_u32 s59, s{sI}, 0x10002
    s_and_b32 s60, s{sG}, 1
    s_lshl1_add_u32 s59, s60, s59     ; G
    s_lshr_b32 s60, s{sG}, 1          ; w
    s_lshl2_add_u32 s61, s56, s60     ; 4*ctile + w
    s_lshl1_add_u32 s62, s61, s58
    s_lshl2_add_u32 s62, s62, s59     ; nq = n0/4
    v_and_b32 v5, 1, v3
    v_lshlrev_b32 v5, 1, v5
    v_lshrrev_b32 v6, 1, v3
    v_or_b32 v5, v5, v6              ; e(R)
    v_lshlrev_b32 v5, 1, v5
    s_lshl_b32 s63, s62, 3
    v_add_u32 v6, s63, v5
    global_load_ushort v10, v6, s[22:23]
    s_lshl_b32 s63, s57, 10
    v_add_u32 v8, s63, v6
    global_load_ushort v11, v8, s[4:5]
    s_lshr_b32 s63, s62, 4           ; ctile8
    s_lshl2_add_u32 s63, s63, s59
    s_lshl_b32 s63, s63, 2
    s_bfe_u32 s61, s62, 0x20002      ; u
    s_add_u32 s63, s63, s61
    s_lshl1_add_u32 s63, s63, s57
    s_lshl4_add_u32 s63, s63, {fp_off()}
    v_min_u32 v5, 13, v0
    v_lshlrev_b32 v5, 12, v5
    v_add_u32 v5, s63, v5
    s_lshl3_add_u32 s63, s56, s{sG}
    s_and_b32 s61, s{sI}, 7
    s_lshl3_add_u32 s63, s63, s61
    s_lshl4_add_u32 s63, s63, {W_SP}
    v_lshlrev_b32 v6, 12, v0
    {"v_lshrrev_b32 v7, 1, v0; v_lshl_add_u32 v6, v7, 13, v6".replace("; ", chr(10)) if cfg.dual3 else ""}
    v_add_u32 v6, s63, v6
    s_mov_b32 s59, {0x2000 if cfg.dual3 == 1 else 0}
    v_cmp_gt_u32 s[60:61], 14, v0
    s_mov_b32 s64, s24
    s_mov_b32 s65, s25
    s_mov_b32 s66, 2048
    s_mov_b32 s67, 0x20000
    s_add_u32 s45, s{sVB}, {cfg.flead}
    """)
    spin_land(45, 7, slp=cfg.slp)
    e(f"""L_fretry:
    buffer_load_dwordx4 v[24:27], v5, s[{SRD_WS}:{SRD_WS+3}], 0 offen sc1
    s_waitcnt vmcnt(0)
    """)
    tag_check(24, 7, True)
    tag_branch(7, "L_fretry", masked=True)
    def gate_math():
        for k in range(4):
            e(f"v_and_b32 v{24+k}, 0xfffff800, v{24+k}")
        for k in range(4):
            e(f"v_cndmask_b32 v{24+k}, 0, v{24+k}, s[60:61]")
        reduce4_rows(24, 28)
        dpp_add(24, (8, 4, 2, 1))
        rnd_bf16(24)
        e("v_lshlrev_b32 v10, 16, v10\nv_add_f32 v24, v24, v10")
        rnd_bf16(24)
        e(f"""
        v_mul_f32 v25, 0xbfb8aa3b, v24
        v_exp_f32 v25, v25
        s_nop 0
        v_add_f32 v25, 1.0, v25
        v_rcp_f32 v25, v25
        s_nop 0
        v_mul_f32 v12, v24, v25
        """)
        rnd_bf16(12)
        e("v_lshlrev_b32 v11, 16, v11")
    if not (cfg.pp3 and cfg.gap3 == 0): gate_math()
    stamp(5)
    if cfg.h3gate == 0: spin_ge(1, F_O, 4, 7, slp=cfg.slp)
    else: spin_ge(1, F_K, 4, 7, slp=cfg.slp)
    if cfg.h3slp: e(f"s_sleep {cfg.h3slp}")
    def ld3(r): e(f"buffer_load_dwordx4 v[{r}:{r+3}], v6, s[{SRD_WS}:{SRD_WS+3}], {'s59' if r == 36 else 0} offen sc1")
    def chk3(r, L):
        tag_check(r, 7, True)
        e(f"v_and_b32 v7, v4, v7\nv_cmp_ne_u32 vcc, 0, v7\ns_cbranch_vccz {L}")
    if cfg.hack4: e("v_and_b32 v6, 0xffffefff, v6\nv_or_b32 v6, 0, v6")
    if cfg.pp3:
        ld3(32)
        if cfg.gap3: e(f"s_sleep {cfg.gap3}")
        else: gate_math()
        ld3(36)
        e("s_mov_b64 s[62:63], -1\nL_3p:\ns_waitcnt vmcnt(1)")
        chk3(32, "L_3X")
        e("s_mov_b64 s[60:61], vcc\ns_mov_b64 exec, vcc")
        ld3(32)
        e("s_mov_b64 exec, s[62:63]\ns_waitcnt vmcnt(1)")
        chk3(36, "L_3Y")
        e("s_mov_b64 s[62:63], vcc\ns_mov_b64 exec, vcc")
        ld3(36)
        e(f"""
        s_mov_b64 exec, s[60:61]
        s_sub_u32 s{sCAP}, s{sCAP}, 1
        s_cbranch_scc0 L_3p
        s_mov_b32 s{sCAP}, 0
        s_waitcnt vmcnt(0)
        L_3Y:
        s_mov_b64 exec, -1""")
        for k in range(4): e(f"v_and_b32 v{24+k}, 0xfffff800, v{36+k}")
        e("s_branch L_3j\nL_3X:\ns_mov_b64 exec, -1")
        for k in range(4): e(f"v_and_b32 v{24+k}, 0xfffff800, v{32+k}")
        e("L_3j:")
    else:
        e("L_3retry:")
        ld3(24)
        e("s_waitcnt vmcnt(0)")
        tag_check(24, 7, True)
        tag_branch(7, "L_3retry", masked=True, slp=cfg.h3loop)
        for k in range(4): e(f"v_and_b32 v{24+k}, 0xfffff800, v{24+k}")
    stamp(6)
    reduce4_rows(24, 28)
    dpp_add(24, (8, 4, 2, 1))
    rnd_bf16(24)
    e("v_mul_f32 v24, v24, v12")
    rnd_bf16(24)
    e(f"""
    v_add_f32 v24, v24, v11
    v_cvt_pk_bf16_f32 v24, v24, v24
    s_mov_b32 s56, 0x00010001
    s_mov_b32 s57, 0x00010001
    s_mov_b64 exec, s[56:57]
    buffer_store_short v24, v8, s[64:67], 0 offen {cfg.outst}
    s_cmp_eq_u32 s2, 0
    s_cbranch_scc0 L_fin2
    s_mov_b64 exec, 1
    v_mov_b32 v26, s34
    v_mov_b32 v27, s35
    v_mov_b32 v28, 0
    buffer_store_dwordx2 v[26:27], v28, s[{SRD_WS}:{SRD_WS+3}], 0 offen {cfg.epst}
    L_fin2:
    """)
    if cfg.skew:
        e(f"""
        s_cmp_eq_u32 s2, 0
        s_cbranch_scc0 L_skend
        s_mov_b64 exec, -1
        v_lshlrev_b32 v5, 4, v0
        v_add_u32 v5, 0x1E0000, v5
        buffer_load_dwordx4 v[40:43], v5, s[{SRD_WS}:{SRD_WS+3}], 0 offen sc1
        s_waitcnt vmcnt(0) lgkmcnt(0)
        v_subrev_u32 v40, s80, v40
        v_subrev_u32 v41, s80, v41
        v_subrev_u32 v42, s80, v42
        v_subrev_u32 v43, s80, v43
        v_max3_i32 v44, v40, v41, v42
        v_max_i32 v44, v44, v43
        v_min3_i32 v45, v40, v41, v42
        v_min_i32 v45, v45, v43
        s_mov_b32 s60, 0x80000000
        s_mov_b32 s61, 0x7fffffff
        """)
        if cfg.skewg >= 0: e(f"v_mov_b32 v44, v{40 + (cfg.skewg & 3)}\ns_nop 1")
        for l in range(64):
            if cfg.skewg >= 0 and (l & 1) != (cfg.skewg >> 2):
                e(f"v_readlane_b32 s62, v45, {l}\nv_readlane_b32 s63, v45, {l}\ns_nop 1\ns_min_i32 s61, s61, s62\ns_min_i32 s61, s61, s63"); continue
            e(f"v_readlane_b32 s62, v44, {l}\nv_readlane_b32 s63, v45, {l}\ns_nop 1\ns_max_i32 s60, s60, s62\ns_min_i32 s61, s61, s63")
        e(f"""
        s_sub_u32 s60, s60, s61
        s_min_u32 s60, s60, 2000
        s_mul_i32 s60, s60, 20
        s_memrealtime s[62:63]
        s_waitcnt lgkmcnt(0)
        L_sksp:
        s_memrealtime s[68:69]
        s_waitcnt lgkmcnt(0)
        s_sub_u32 s61, s68, s62
        s_cmp_lt_u32 s61, s60
        s_cbranch_scc1 L_sksp
        L_skend:""")
    stamp(7)
    stamps_out(8)
    e("s_endpgm")

    sW = 44
    e(f"""L_compute:
    s_setprio {cfg.cprio}
    s_sub_u32 s{sW}, s{sWAVE}, 6
    """)
    if cfg.touch:
        e(f"""
        s_cmp_eq_u32 s{sW}, 2
        s_cbranch_scc0 L_notouch
        s_lshr_b32 s45, s{sI}, 4
        s_lshl_b32 s45, s45, 26
        s_lshl_b32 s46, s{sG}, 23
        s_add_u32 s45, s45, s46
        s_and_b32 s46, s{sI}, 15
        s_lshl_b32 s46, s46, 16
        s_add_u32 s45, s45, s46
        s_add_u32 s45, s45, {28672*256}
        v_mov_b32 v5, s45
        s_lshl_b32 s45, s{sG}, 19
        s_lshr_b32 s46, s{sI}, 2
        s_lshl_b32 s46, s46, 16
        s_add_u32 s45, s45, s46
        v_mov_b32 v6, s45
        v_mov_b32 v7, 0
        s_mov_b64 exec, 1""")
        if 'k' in cfg.touch: e("global_load_dword v164, v5, s[6:7] nt")
        if 'v' in cfg.touch: e("global_load_dword v164, v5, s[8:9] nt")
        if 'o' in cfg.touch: e("global_load_dword v164, v6, s[12:13] nt")
        if 'w' in cfg.touch: e("global_load_dword v164, v7, s[28:29]")
        if 'u' in cfg.touch: e("global_load_dword v164, v7, s[24:25]")
        e("s_mov_b64 exec, -1\nL_notouch:")
    for r in range(64, 128): e(f"v_mov_b32 v{r}, 0")
    e(f"""
    s_lshl_b32 s45, s{sW}, 14
    v_lshlrev_b32 v5, 8, v2
    v_add_u32 v5, s45, v5
    v_xor_b32 v6, v3, v2
    """)
    for t in range(4):
        e(f"v_xor_b32 v7, {4*t}, v6\nv_lshl_add_u32 v{8+t}, v7, 4, v5")
    e(f"""
    v_and_b32 v13, 3, v2
    v_mul_u32_u24 v12, 288, v13
    v_lshl_add_u32 v12, v3, 4, v12
    v_add_u32 v12, {L_QS}, v12
    """)
    e(f"""
    v_lshl_add_u32 v15, v3, 2, v13
    v_lshlrev_b32 v15, 4, v15
    v_add_u32 v15, {L_PB}, v15
    v_lshrrev_b32 v5, 3, v2
    v_lshl_add_u32 v14, v5, 8, v15
    v_bfe_u32 v5, v2, 2, 1
    v_lshl_add_u32 v14, v5, 3, v14
    s_lshl_b32 s45, s{sW}, 9
    v_add_u32 v14, s45, v14
    v_lshlrev_b32 v17, 3, v13
    v_add_u32 v17, {L_SB}, v17
    s_lshl_b32 s45, s{sW}, 5
    v_add_u32 v16, s45, v17
    """)
    e(f"""
    v_lshrrev_b32 v5, 2, v2
    v_and_b32 v6, 1, v3
    v_lshl_add_u32 v6, v6, 2, v5
    s_lshl_b32 s45, s{sW}, 1
    v_xor_b32 v6, s45, v6
    v_lshlrev_b32 v7, 3, v13
    v_lshl_add_u32 v22, v6, 5, v7
    v_xor_b32 v23, 32, v22
    v_lshl_add_u32 v6, v3, 2, v5
    v_lshlrev_b32 v6, 8, v6
    v_add_u32 v6, {L_V}, v6
    v_add_u32 v18, v6, v22
    v_add_u32 v19, v6, v23
    v_lshl_add_u32 v6, v3, 3, v5
    v_lshlrev_b32 v6, 8, v6
    v_add_u32 v6, {L_WO}, v6
    v_add_u32 v20, v6, v22
    v_add_u32 v21, v6, v23
    """)
    e(f"""
    s_lshl_b32 s45, s{sW}, 7
    v_lshl_add_u32 v5, v3, 4, s45
    s_lshl_b32 s46, s{sSLOT}, 11
    s_add_u32 s46, s46, {W_OP}
    s_lshl2_add_u32 s46, s45, s46
    v_lshl_add_u32 v22, v0, 4, s46
    s_lshl_b32 s46, s{sSLOT}, 10
    {f"s_lshr_b32 s47, s{sSLOT}, 3; s_lshl_b32 s47, s47, 13; s_add_u32 s46, s46, s47".replace("; ", chr(10)) if cfg.dual3 else ""}
    s_add_u32 s46, s46, {W_SP}
    s_lshl1_add_u32 s46, s45, s46
    v_lshlrev_b32 v23, 4, v13
    v_lshl_add_u32 v23, v3, 6, v23
    v_add_u32 v23, s46, v23
    v_and_b32 v6, 1, v2
    v_lshlrev_b32 v28, 7, v6
    v_lshl_add_u32 v28, v3, 4, v28
    v_add_u32 v28, {L_OB}, v28
    s_lshr_b32 s45, s{sW}, 1          ; b'
    s_and_b32 s46, s{sW}, 1           ; dsub
    s_lshl_b32 s47, s{sG}, 16
    s_lshl_b32 s48, s45, 15
    s_add_u32 s47, s47, s48
    s_lshr_b32 s48, s{sI}, 2
    s_lshl_b32 s48, s48, 8
    s_add_u32 s47, s47, s48
    s_lshl_b32 s48, s46, 7
    s_add_u32 s47, s47, s48
    s_add_u32 s47, s47, {W_OP}
    v_lshrrev_b32 v5, 3, v0
    v_and_b32 v6, 7, v0
    v_lshlrev_b32 v24, 11, v5
    v_lshl_add_u32 v24, v6, 4, v24
    v_add_u32 v24, s47, v24
    v_add_u32 v25, 16384, v24
    s_lshl_b32 s47, s45, 8
    s_add_u32 s47, s47, {L_WT}
    v_lshl_add_u32 v26, v5, 4, s47
    v_and_b32 v5, 1, v3
    v_lshlrev_b32 v5, 1, v5
    v_lshrrev_b32 v7, 1, v3
    v_or_b32 v5, v5, v7
    v_lshl_add_u32 v5, v5, 4, v6
    s_lshl_b32 s47, s45, 7
    s_lshl_b32 s48, s46, 4
    s_add_u32 s47, s47, s48
    s_add_u32 s47, s47, {L_OB}
    v_lshl_add_u32 v27, v5, 1, s47
    s_lshl_b32 s47, s{sSLOT}, 7
    s_add_u32 s47, s47, {W_ST}
    v_lshl_add_u32 v29, v13, 4, s47
    v_and_b32 v5, 4, v0
    v_cmp_ne_u32 s[50:51], 0, v5
    v_and_b32 v5, 2, v0
    v_cmp_ne_u32 s[52:53], 0, v5
    v_mov_b32 v30, 1
    s_waitcnt lgkmcnt(0)
    """)
    nonce_from_epoch()
    for sp in range(4):
        e(f"""
        s_add_u32 s56, s{sRS}, {sp}
        s_and_b32 s56, s56, 3
        s_lshl_b32 s57, s56, 9
        v_add_u32 v{40+sp}, s57, v15
        s_lshl_b32 s57, s56, 14
        v_add_u32 v{48+2*sp}, s57, v18
        v_add_u32 v{49+2*sp}, s57, v19
        """)
    stamp(1)
    get_loc(6, slp=cfg.slpc)
    for tau in range(4):
        m = 0x000f000f << (4*tau)
        e(f"s_mov_b32 s54, {m:#x}\ns_mov_b32 s55, {m:#x}\ns_mov_b64 exec, s[54:55]")
        for t in range(4):
            r = 64 + 16*tau + 4*t
            e(f"ds_read_b128 v[{r}:{r+3}], v12 offset:{64*t}")
    e("s_mov_b64 exec, -1")
    e(f"""
    s_sub_u32 s58, s{sW}, s{sRS}
    s_and_b32 s58, s58, 3
    s_lshl2_add_u32 s58, s58, s{sKEND}
    s_sub_u32 s58, s58, 12
    """)
    spin_land(58, 6, slp=cfg.slpc)
    stamp(2)
    def kread(tau, t):
        r = 128 + 16*(tau & 1) + 4*t
        e(f"ds_read_b128 v[{r}:{r+3}], v{8+t} offset:{4096*tau}")
    for tau in range(2):
        for t in range(4): kread(tau, t)
    for tau in range(4):
        for t in range(4):
            n = 4*tau + t
            r = 128 + 16*(tau & 1) + 4*t; q = 64 + 16*tau + 4*t
            e(f"s_waitcnt lgkmcnt({7 if n < 8 else 15-n})")
            e(f"v_mfma_f32_16x16x32_bf16 v[32:35], v[{r}:{r+3}], v[{q}:{q+3}], {'v[32:35]' if n else 0}")
            if tau < 2: kread(tau+2, t)
    e(f"""
    s_mov_b32 s54, {SCALE:#x}
    s_mov_b32 s55, {LOG2E:#x}
    s_nop 5
    v_cvt_pk_bf16_f32 v32, v32, v33
    v_cvt_pk_bf16_f32 v34, v34, v35
    v_and_b32 v33, 0xffff0000, v32
    v_lshlrev_b32 v32, 16, v32
    v_and_b32 v35, 0xffff0000, v34
    v_lshlrev_b32 v34, 16, v34
    v_mul_f32 v32, s54, v32
    v_mul_f32 v33, s54, v33
    v_mul_f32 v34, s54, v34
    v_mul_f32 v35, s54, v35
    v_cvt_pk_bf16_f32 v32, v32, v33
    v_cvt_pk_bf16_f32 v34, v34, v35
    v_and_b32 v33, 0xffff0000, v32
    v_lshlrev_b32 v32, 16, v32
    v_and_b32 v35, 0xffff0000, v34
    v_lshlrev_b32 v34, 16, v34
    v_max_f32 v36, v32, v33
    v_max3_f32 v36, v34, v35, v36
    """)
    dpp_max(36, (8, 4))
    e("""
    v_mov_b32 v37, v36
    s_nop 1
    v_permlane16_swap_b32 v36, v37
    s_nop 0
    v_max_f32 v36, v36, v37
    v_mov_b32 v37, v36
    s_nop 1
    v_permlane32_swap_b32 v36, v37
    s_nop 0
    v_max_f32 v36, v36, v37
    v_sub_f32 v32, v32, v36
    v_sub_f32 v33, v33, v36
    v_sub_f32 v34, v34, v36
    v_sub_f32 v35, v35, v36
    v_mul_f32 v32, s55, v32
    v_mul_f32 v33, s55, v33
    v_mul_f32 v34, s55, v34
    v_mul_f32 v35, s55, v35
    v_exp_f32 v128, v32
    v_exp_f32 v129, v33
    v_exp_f32 v130, v34
    v_exp_f32 v131, v35
    v_add_f32 v37, v128, v129
    s_nop 0
    v_add_f32 v38, v130, v131
    v_add_f32 v37, v37, v38
    """)
    dpp_add(37, (8, 4))
    e(f"""
    v_mov_b32 v38, v37
    s_nop 1
    v_permlane16_swap_b32 v37, v38
    s_nop 0
    v_add_f32 v37, v37, v38
    v_mov_b32 v38, v37
    s_nop 1
    v_permlane32_swap_b32 v37, v38
    s_nop 0
    v_add_f32 v37, v37, v38
    s_mov_b64 exec, 15
    ds_write_b64 v16, v[36:37]
    s_mov_b64 exec, 1
    ds_add_u32 v1, v30 offset:{F_V}
    s_mov_b64 exec, -1
    """)
    spin_ge(1, F_V, 4, 6, extra="\n".join(f"ds_read_b64 v[{56+2*k}:{57+2*k}], v17 offset:{32*k}" for k in range(4)))
    def preg(ee, sp, sg): return (64 if sp < 2 else 96) + 16*ee + 8*(sp & 1) + 4*sg
    e("""
    v_max_f32 v32, v56, v58
    v_max3_f32 v32, v60, v62, v32
    v_sub_f32 v56, v56, v32
    v_sub_f32 v58, v58, v32
    v_sub_f32 v60, v60, v32
    v_sub_f32 v62, v62, v32
    v_sub_f32 v36, v36, v32
    v_mul_f32 v56, s55, v56
    v_mul_f32 v58, s55, v58
    v_mul_f32 v60, s55, v60
    v_mul_f32 v62, s55, v62
    v_mul_f32 v36, s55, v36
    v_exp_f32 v56, v56
    v_exp_f32 v58, v58
    v_exp_f32 v60, v60
    v_exp_f32 v62, v62
    v_exp_f32 v36, v36
    v_mul_f32 v33, v56, v57
    v_fmac_f32 v33, v58, v59
    v_fmac_f32 v33, v60, v61
    v_fmac_f32 v33, v62, v63
    v_mov_b32 v34, 0
    v_mov_b32 v35, 0
    """)
    e(f"s_cmp_eq_u32 s{sW}, 0\ns_cbranch_scc0 L_nostat")
    tag_insert(32, 4)
    e(f"""
    s_mov_b64 exec, 15
    buffer_store_dwordx4 v[32:35], v29, s[{SRD_WS}:{SRD_WS+3}], 0 offen
    s_cmp_eq_u32 s{sOFF}, 0
    s_cbranch_scc1 L_nostatB
    buffer_store_dwordx4 v[32:35], v29, s[{SRD_WS}:{SRD_WS+3}], s{sBOFF} offen sc1
    L_nostatB:
    s_mov_b64 exec, -1
    L_nostat:
    """)
    stamp(3)
    e("""
    v_mul_f32 v128, v128, v36
    v_mul_f32 v129, v129, v36
    v_mul_f32 v130, v130, v36
    v_mul_f32 v131, v131, v36
    v_cvt_pk_bf16_f32 v128, v128, v129
    v_cvt_pk_bf16_f32 v129, v130, v131
    ds_write_b64 v14, v[128:129]
    """)
    flag_add(1, F_P, 30)
    for r in range(96, 128): e(f"v_mov_b32 v{r}, 0")
    spin_ge(1, F_P, 4, 6)
    for ee in range(2):
        m = 0x000f000f << (4*ee)
        e(f"s_mov_b32 s56, {m:#x}\ns_mov_b32 s57, {m:#x}\ns_mov_b64 exec, s[56:57]")
        for sp in range(4):
            for sg in range(2):
                r = preg(ee, sp, sg)
                e(f"ds_read_b128 v[{r}:{r+3}], v{40+sp} offset:{256*sg}")
    e("s_mov_b64 exec, -1")
    for sp in range(4):
        e(f"s_add_u32 s58, s{sVB}, {4*(sp+1) + (cfg.woe if sp == 3 else 0)}")
        if sp == 3 and cfg.vlf: spin_ge(1, F_WO, 4, 6)
        else: spin_land(58, 6, slp=(cfg.slpc if sp < 3 else 0))
        if sp == 3: stamp(4)
        for sg in range(2):
            for ee in range(2):
                r = 128 + 8*sg + 4*ee
                e(f"ds_read_b64_tr_b16 v[{r}:{r+1}], v{48+2*sp+ee} offset:{8192*sg}")
                e(f"ds_read_b64_tr_b16 v[{r+2}:{r+3}], v{48+2*sp+ee} offset:{8192*sg+4096}")
        for sg in range(2):
            for ee in range(2):
                r = 128 + 8*sg + 4*ee
                p = preg(ee, sp, sg)
                e(f"s_waitcnt lgkmcnt({6 - 2*(2*sg+ee)})")
                e(f"v_mfma_f32_16x16x32_bf16 v[144:147], v[{p}:{p+3}], v[{r}:{r+3}], {'v[144:147]' if (sp or sg or ee) else 0}")
    e(f"s_cmp_eq_u32 s{sOFF}, 0\ns_mov_b32 exec_hi, 0\ns_nop 5")
    tag_insert(144, 4)
    e(f"""
    buffer_store_dwordx4 v[144:147], v22, s[{SRD_WS}:{SRD_WS+3}], 0 offen
    s_cbranch_scc1 L_oloc
    buffer_store_dwordx4 v[144:147], v22, s[{SRD_WS}:{SRD_WS+3}], s{sBOFF} offen sc1
    L_oloc:
    s_mov_b64 exec, -1
    {"v_mov_b32 v156, v144; v_mov_b32 v157, v145; v_mov_b32 v158, v146; v_mov_b32 v159, v147".replace("; ", chr(10)) if 0 else ""}
    buffer_load_dwordx4 v[32:35], v24, s[{SRD_WS}:{SRD_WS+3}], s{sOFF} offen {cfg.ldA}
    buffer_load_dwordx4 v[36:39], v25, s[{SRD_WS}:{SRD_WS+3}], s{sOFF} offen {cfg.ldA}
    s_add_u32 s58, s{sVB}, 20
    """)
    stamp(5)
    def wofr():
        for ee in range(2):
            for t in range(2):
                r = 64 + 8*ee + 4*t
                e(f"ds_read_b64_tr_b16 v[{r}:{r+1}], v{20+ee} offset:{8192*t}")
                e(f"ds_read_b64_tr_b16 v[{r+2}:{r+3}], v{20+ee} offset:{8192*t+1024}")
    if not cfg.late_wo:
        spin_land(58, 6)
        wofr()
    if cfg.clean:
        for k in range(4): e(f"v_mov_b32 v{156+k}, v{144+k}")
    spin_ge(1, F_W, 1, 6, extra="ds_read_b128 v[40:43], v26\nds_read_b128 v[44:47], v26 offset:128")
    def ld2(r):
        e(f"""
        buffer_load_dwordx4 v[{r}:{r+3}], v24, s[{SRD_WS}:{SRD_WS+3}], s{sOFF} offen {cfg.ldA}
        buffer_load_dwordx4 v[{r+4}:{r+7}], v25, s[{SRD_WS}:{SRD_WS+3}], s{sOFF} offen {cfg.ldA}""")
    def chk2(r, L):
        tag_check(r, 7, True); tag_check(r+4, 7, False)
        e(f"v_and_b32 v7, v4, v7\nv_cmp_ne_u32 vcc, 0, v7\ns_cbranch_vccz {L}")
    if cfg.pp2:
        ld2(48)
        e("s_mov_b64 s[62:63], -1\nL_op:\ns_waitcnt vmcnt(2)")
        chk2(32, "L_okX")
        e("s_mov_b64 s[60:61], vcc\ns_mov_b64 exec, vcc")
        ld2(32)
        e("s_mov_b64 exec, s[62:63]\ns_waitcnt vmcnt(2)")
        chk2(48, "L_okY")
        e("s_mov_b64 s[62:63], vcc\ns_mov_b64 exec, vcc")
        ld2(48)
        e(f"""
        s_mov_b64 exec, s[60:61]
        s_sub_u32 s{sCAP}, s{sCAP}, 1
        s_cbranch_scc0 L_op
        s_mov_b32 s{sCAP}, 0
        s_waitcnt vmcnt(0)
        L_okY:
        s_mov_b64 exec, -1""")
        for k in range(8): e(f"v_and_b32 v{56+k}, 0xfffff800, v{48+k}")
        e("s_branch L_oj\nL_okX:\ns_mov_b64 exec, -1")
        for k in range(8): e(f"v_and_b32 v{56+k}, 0xfffff800, v{32+k}")
        e("L_oj:")
    else:
        e("s_branch L_ochk\nL_oretry:")
        ld2(32)
        e("L_ochk:\ns_waitcnt vmcnt(0)")
        tag_check(32, 7, True); tag_check(36, 7, False)
        tag_branch(7, "L_oretry", masked=True, slp=cfg.o2loop)
        for k in range(8): e(f"v_and_b32 v{56+k}, 0xfffff800, v{32+k}")
    stamp(6)
    R = []
    if cfg.late_wo:
        R.append(f"ds_read_b128 v[152:155], v1 offset:{O_LAND}")
        for ee in range(2):
            for t in range(2):
                r = 64 + 8*ee + 4*t
                R.append(f"ds_read_b64_tr_b16 v[{r}:{r+1}], v{20+ee} offset:{8192*t}")
                R.append(f"ds_read_b64_tr_b16 v[{r+2}:{r+3}], v{20+ee} offset:{8192*t+1024}")
    else:
        R = ["s_nop 0"] * 9
    e(f"""
    v_pk_mul_f32 v[56:57], v[56:57], v[40:41]
    v_pk_mul_f32 v[58:59], v[58:59], v[42:43]
    v_pk_fma_f32 v[56:57], v[60:61], v[44:45], v[56:57]
    v_pk_fma_f32 v[58:59], v[62:63], v[46:47], v[58:59]
    {R[0]}
    {R[1]}
    v_permlane32_swap_b32 v56, v57
    v_permlane32_swap_b32 v58, v59
    {R[2]}
    v_add_f32 v56, v56, v57
    v_add_f32 v58, v58, v59
    {R[3]}
    {R[4]}
    v_permlane16_swap_b32 v56, v58
    {R[5]}
    v_add_f32 v56, v56, v58
    {R[6]}
    {R[7]}
    v_add_f32_dpp v56, v56, v56 row_ror:8 row_mask:0xf bank_mask:0xf
    {R[8]}
    """)
    e(f"""
    v_cvt_pk_bf16_f32 v56, v56, v56
    ds_write_b16 v27, v56
    s_mov_b64 exec, 1
    ds_add_u32 v1, v30 offset:{F_O}
    s_mov_b64 exec, -1
    s_mov_b32 s56, 0x000f000f
    s_mov_b32 s57, 0x000f000f
    s_mov_b32 s59, 0x2000
    """)
    spin_ge(1, F_O, 4, 6, extra="ds_read_b128 v[40:43], v28\nds_read_b128 v[44:47], v28 offset:64")
    if cfg.late_wo:
        e("""
        v_min3_i32 v152, v152, v153, v154
        v_min_i32 v152, v152, v155
        v_cmp_le_i32 vcc, s58, v152
        s_cbranch_vccz L_wolate
        L_wook:""")
    for t in range(2):
        for ee in range(2):
            r = 64 + 8*ee + 4*t
            a = 144 + 4*ee
            e(f"v_mfma_f32_16x16x32_bf16 v[{a}:{a+3}], v[{r}:{r+3}], v[{40+4*t}:{43+4*t}], {f'v[{a}:{a+3}]' if t else 0}")
    e(f"""
    s_mov_b64 exec, s[56:57]
    s_nop 6
    """)
    for k in range(4):
        e(f"v_cndmask_b32 v{144+k}, v{144+k}, v{148+k}, s[52:53]")
    tag_insert(144, 4)
    e(f"""
    {"s_bitcmp1_b32 s32, 2; s_cbranch_scc1 L_end".replace("; ", chr(10)) if cfg.hack4 == 9 else ""}
    {"s_bitcmp1_b32 s32, 2; s_cselect_b64 exec, 0, exec".replace("; ", chr(10)) if cfg.hack4 else ""}
    buffer_store_dwordx4 v[144:147], v23, s[{SRD_WS}:{SRD_WS+3}], 0 offen sc1
    {f"buffer_store_dwordx4 v[144:147], v23, s[{SRD_WS}:{SRD_WS+3}], s59 offen sc1" if cfg.dual3 else ""}
    """)
    if cfg.clean == 1:
        e(f"s_mov_b32 s56, 0x00ff00ff\ns_mov_b32 s57, 0x00ff00ff\ns_mov_b64 exec, s[56:57]\nbuffer_store_dwordx4 v[156:159], v22, s[{SRD_WS}:{SRD_WS+3}], 0 offen sc1\ns_waitcnt vmcnt(1)")
    elif cfg.h3gate == 2: e("s_waitcnt vmcnt(0)")
    if cfg.clean == 2:
        e(f"s_mov_b32 s56, 0x00ff00ff\ns_mov_b32 s57, 0x00ff00ff\ns_mov_b64 exec, s[56:57]\nbuffer_store_dwordx4 v[156:159], v22, s[{SRD_WS}:{SRD_WS+3}], 0 offen sc1")
    if cfg.h3gate: e(f"s_mov_b64 exec, 1\nds_add_u32 v1, v30 offset:{F_K}")
    stamp(7)
    stamps_out(8)
    e("L_end:\ns_endpgm")
    if cfg.late_wo:
        e("L_wolate:")
        spin_land(58, 6)
        wofr()
        e("s_waitcnt lgkmcnt(0)\ns_branch L_wook")
    e("L_codeend:")
    if cfg.skip:
        res = []; sect = None
        for ln in out:
            t = ln.strip()
            if t.endswith(":"): sect = t[:-1]
            drop = False
            isg = t.startswith("buffer_load_dwordx4 v[") and "s[36:39]" in t
            if isg and sect in ("L_qretry",) and 'q' in cfg.skip: drop = True
            if isg and sect in ("L_hretry",) and 'h' in cfg.skip: drop = True
            if isg and sect in ("L_sretry",) and 's' in cfg.skip: drop = True
            if isg and sect in ("L_fretry",) and 'f' in cfg.skip: drop = True
            if t.startswith("s_cbranch_scc0 L_qretry") and 'q' in cfg.skip: drop = True
            if t.startswith("s_cbranch_scc0 L_hretry") and 'h' in cfg.skip: drop = True
            if t.startswith("s_cbranch_scc0 L_sretry") and 's' in cfg.skip: drop = True
            if t.startswith("s_cbranch_scc0 L_fretry") and 'f' in cfg.skip: drop = True
            if 'b' in cfg.skip and t.startswith("buffer_store_dwordx4") and "sc1" in t and ("v[56:59]" in t and sect == "L_pubB"): drop = True
            if 'a' in cfg.skip and t.startswith("buffer_store_dwordx4") and "sc1" not in t and ("v[56:59]" in t or "v[64:67]" in t or "v29" in t): drop = True
            if 'q' in cfg.skip and t.startswith("s_cbranch_vccz L_q"): ln = ln.replace("s_cbranch_vccz", "s_branch")
            if 'k' in cfg.skip and t.startswith("ds_read_b128 v[1") and "v1 offset" not in t: drop = True
            if 'v' in cfg.skip and t.startswith("ds_read_b64_tr_b16 v[1"): drop = True
            if not drop: res.append(ln)
        out[:] = res
    if cfg.mark:
        res = []; k = 0
        for ln in out:
            res.append(ln)
            if ln.strip() == f"s_mov_b32 s{sCAP}, 0":
                k += 1
                res += [f"    v_mov_b32 v164, {4*k}", "    v_mov_b32 v165, 1", "    global_atomic_add v164, v165, s[26:27]"]
        out[:] = res
    body = "\n".join(out)
    hdr = open("recurrent_scan__sliding_block_cached__dense_activation_squared_relu__decode.s.ref").read().split("; Override launch")[0]
    return f"""{hdr}; Single fused launch: 256 workgroups (one per CU) x 10 waves.
; @launch grid=(256,1,1) block=(640,1,1) lds={LDS_TOTAL}
.amdgcn_target "amdgcn-amd-amdhsa--gfx950"
.text
.globl {KNAME}
.p2align 8
.type {KNAME},@function
{KNAME}:
{body}
.section .rodata,"a"
.p2align 6
.amdhsa_kernel {KNAME}
  .amdhsa_next_free_vgpr 168
  .amdhsa_next_free_sgpr 102
  .amdhsa_accum_offset 168
  .amdhsa_group_segment_fixed_size 0
  .amdhsa_kernarg_size 104
  .amdhsa_user_sgpr_count 2
  .amdhsa_user_sgpr_kernarg_segment_ptr 1
  .amdhsa_system_sgpr_workgroup_id_x 1
.end_amdhsa_kernel
"""

if __name__ == "__main__":
    path = sys.argv[1]
    for a in sys.argv[2:]:
        k, v = a.split("=")
        cur = getattr(cfg, k)
        setattr(cfg, k, type(cur)(int(v)) if isinstance(cur, (bool, int)) else v.replace("+", " "))
    open(path, "w").write(build())
```

```python
import sys
KNAME = "recurrent_scan__sliding_block_cached__dense_activation_squared_relu__decode_kernel"

cfg_dbgsel = {6: [(0,0,1),(0,1,0),(1,2,1),(1,3,0),(2,4,0),(4,5,1),(4,6,0),(5,7,0)], 7: [(4,8,0),(5,9,0),(6,10,0)], 8: [(5,11,0),(6,12,1),(6,13,0),(7,14,0)]}
class Cfg:
    early = False
    ampw = -1
    ampk = 0
    ampg = -1
    dbg = False
    diag = False
    lw = 5
    lw2 = 5
    win = 20
    qlead = 7
    woe = 0
    lprio = 3
    forcelate = 0
    cntamp = 0
    dual3 = 0
    lightg = 0
    skew = 0
    skewg = -1
    bpos = 0
    pps = 0
    trace = 0
    hack4 = 0
    slpc = 0
    vlf = 0
    cprio = 1
    touch = ''
    clean = 0
    epst = ''
    outst = ''
    nprio = 1
    late_wo = 1
    pp2 = 1
    pp3 = 1
    gap3 = 0
    epf = 1
    dirty = 0
    h3gate = 2
    h3slp = 0
    h3loop = 0
    o2loop = 0
    mark = 0
    ntmo = 3
    skip = ''
    only = 0
    pfi = 28
    slp = 0
    win2 = 20
    w2at = 4
    slead = 8
    flead = 10
    hgate = 15
    ldA = 'sc1'
    pf = 1
    first = 'sc1'
    ntK = "nt"; ntW = "nt"
    rotmul = 5
cfg = Cfg()

L_K, L_V, L_WO = 0, 65536, 131072
SCR = 147456
L_QS = SCR
L_PB = SCR + 1152
L_SB = L_PB + 2048
L_WT = L_SB + 128
L_OB = L_WT + 512
L_ACTA = L_OB + 256
L_ACTB = L_ACTA + 576
L_FL = L_ACTB + 576
L_LAND = L_FL + 64
LDS_TOTAL = L_LAND + 16 + 256
F_Q, F_K, F_P, F_V, F_T, F_WO, F_W, F_O = [4*k for k in range(8)]
W_ST, W_QP, W_HP, W_OP, B_OFF, W_SP, W_FP = 0x8000, 0x10000, 0x30000, 0x40000, 0xC0000, 0x180000, 0x1C0000
def fp_off(): return 0x200000 if cfg.dual3 else W_FP
def ws_bytes(): return 0x210000 if cfg.dual3 else WS_BYTES
WS_BYTES = 0x200000
SPIN_CAP = 1000002
LOG2E = 0x3fb8aa3b
SCALE = 0x3db504f3

sWAVE, sG, sI, sNON = 30, 31, 32, 33
sT0, sT1, sT2, sT3 = 34, 33, 40, 79
TMASK, VMASK, TB = 0x7ff, 0xfffff800, 11
SRD_WS = 36
sSLOT = 41
sRS = 42
sCAP = 43
sVB, sOFF, sBOFF = 71, 72, 73
sKEND = 70
O_LAND = 64
STAMP0 = 80

out = []
def e(s):
    for ln in s.strip("\n").split("\n"):
        out.append("    " + ln.strip() if not ln.strip().endswith(":") else ln.strip())

def estamp(k):
    if cfg.diag and cfg.early:
        e(f"s_memrealtime s[{STAMP0+2*k}:{STAMP0+2*k+1}]")
def stamp(k):
    if cfg.diag and (not cfg.early or k == 0 or k >= 6):
        e(f"s_memrealtime s[{STAMP0+2*k}:{STAMP0+2*k+1}]")

def stamps_out(n):
    if not cfg.diag: return
    if cfg.ampw >= 0:
        L = lbl("L_amp"); Ls = lbl("L_amps")
        if cfg.ampk < n:
            e(f"""
            s_waitcnt lgkmcnt(0)
            s_cmp_eq_u32 s{sWAVE}, {cfg.ampw}
            s_cbranch_scc0 {Ls}
            {f's_cmp_eq_u32 s{sG}, {cfg.ampg}; s_cbranch_scc0 {Ls}'.replace('; ', chr(10)) if cfg.ampg >= 0 else ''}
            s_sub_u32 s60, s{STAMP0+2*cfg.ampk}, s{STAMP0}
            s_min_u32 s60, s60, 20000
            s_mul_i32 s60, s60, 10
            s_memrealtime s[62:63]
            s_waitcnt lgkmcnt(0)
            {L}:
            s_memrealtime s[68:69]
            s_waitcnt lgkmcnt(0)
            s_sub_u32 s61, s68, s62
            s_cmp_lt_u32 s61, s60
            s_cbranch_scc1 {L}
            {Ls}:
            """)
        return
    if cfg.dbg:
        sel = cfg_dbgsel[n] if n in cfg_dbgsel else []
        e("s_waitcnt lgkmcnt(0)\ns_mov_b64 exec, 1\nv_mov_b32 v1, 0")
        if n == 8: e(f"s_cmp_eq_u32 s{sWAVE}, 2\ns_cbranch_scc0 L_dbgskip{len(out)}"); lab = f"L_dbgskip{len(out)-2}"
        for (k, slot, mn) in sel:
            e(f"v_mov_b32 v4, s{STAMP0+2*k}")
            if mn: e("v_not_b32 v4, v4")
            e(f"global_atomic_umax v1, v4, s[26:27] offset:{4*slot}\ns_nop 1")
        if n == 8: e(f"{lab}:")
        e("s_waitcnt vmcnt(0)")
        return
    L = lbl("L_dly")
    e(f"""
    s_waitcnt lgkmcnt(0)
    s_add_u32 s61, s{STAMP0}, 1600
    {L}:
    s_sleep 8
    s_memrealtime s[68:69]
    s_waitcnt lgkmcnt(0)
    s_cmp_lt_u32 s68, s61
    s_cbranch_scc1 {L}
    s_lshl_b32 s60, s2, 4
    s_add_u32 s60, s60, s{sWAVE}
    s_lshl_b32 s60, s60, 6
    s_add_u32 s68, s28, s60
    s_addc_u32 s69, s29, 0
    s_add_u32 s68, s68, 0x10000000
    s_addc_u32 s69, s69, 0
    s_mov_b64 exec, 1
    v_mov_b32 v1, 0
    """)
    for k in range(8):
        if k < n:
            e(f"v_mov_b32 v4, s{STAMP0+2*k}\nv_mov_b32 v5, s{STAMP0+2*k+1}")
        else:
            e(f"v_mov_b32 v4, s{STAMP0}\nv_mov_b32 v5, s{STAMP0+1}")
        e(f"global_store_dwordx2 v1, v[4:5], s[68:69] offset:{8*k}\ns_nop 1")
    e("s_waitcnt vmcnt(0)")

lblc = [0]
def lbl(p="L"):
    lblc[0] += 1
    return f"{p}_{lblc[0]}"

def flag_set(vfl, off, vval):
    e(f"s_mov_b64 exec, 1\nds_write_b32 v{vfl}, v{vval} offset:{off}\ns_mov_b64 exec, -1")
def flag_add(vfl, off, vone):
    e(f"s_mov_b64 exec, 1\nds_add_u32 v{vfl}, v{vone} offset:{off}\ns_mov_b64 exec, -1")
def spin_ge(vfl, off, target, vtmp, extra="", slp=0):
    L = lbl("L_sp")
    e(f"""{L}:
    {f's_sleep {slp}' if slp else ''}
    ds_read_b32 v{vtmp}, v{vfl} offset:{off}
    {extra}
    s_waitcnt lgkmcnt(0)
    v_cmp_le_u32 vcc, {target}, v{vtmp}
    s_cbranch_vccz {L}""")

def spin_land(sreg, vtmp, extra="", slp=0):
    L = lbl("L_sl")
    e(f"""{L}:
    {f's_sleep {slp}' if slp else ''}
    ds_read_b128 v[160:163], v1 offset:{O_LAND}
    {extra}
    s_waitcnt lgkmcnt(0)
    v_min3_i32 v160, v160, v161, v162
    v_min_i32 v160, v160, v163
    v_cmp_le_i32 vcc, s{sreg}, v160
    s_cbranch_vccz {L}""")

def get_loc(vtmp, slp=None):
    spin_ge(1, F_Q, 1, vtmp, slp=cfg.slp if slp is None else slp)
    e(f"v_readfirstlane_b32 s{sOFF}, v{vtmp}\ns_nop 3\ns_and_b32 s{sOFF}, s{sOFF}, -2")

def tag_check(regs, acc, first):
    T = [sT0, sT1, sT2, sT3]
    for k in range(4):
        if first and k == 0:
            e(f"v_xor_b32 v{acc}, s{T[0]}, v{regs}")
        else:
            e(f"v_bitop3_b32 v{acc}, v{regs+k}, s{T[k]}, v{acc} bitop3:0xbe")
def tag_branch(acc, Lretry, toggle=False, masked=False, slp=0):
    Ld = lbl("L_ok")
    e(f"""
    v_and_b32 v{acc}, v4, v{acc}
    v_cmp_ne_u32 vcc, 0, v{acc}
    s_cbranch_vccz {Ld}""")
    if masked: e("s_mov_b64 exec, vcc")
    if slp: e(f"s_sleep {slp}")
    if toggle:
        e(f"""
        s_and_b32 s{sOFF}, s{sCAP}, 3
        s_cselect_b32 s{sOFF}, 0, s{sBOFF}""")
    e(f"""
    s_sub_u32 s{sCAP}, s{sCAP}, 1
    s_cbranch_scc0 {Lretry}
    s_mov_b32 s{sCAP}, 0
    {Ld}:""")
    if masked: e("s_mov_b64 exec, -1")
def tag_insert(regs, vff):
    T = [sT0, sT1, sT2, sT3]
    for k in range(4):
        e(f"v_bfi_b32 v{regs+k}, v{vff}, s{T[k]}, v{regs+k}")

def nonce_from_epoch():
    e(f"""
    s_add_u32 s34, s34, 0x01401801
    s_addc_u32 s35, s35, 14
    s_lshr_b32 s33, s34, 11
    s_lshr_b64 s[46:47], s[34:35], 22
    s_mov_b32 s40, s46
    s_lshr_b32 s79, s35, 1
    """)

def srd(r, lo, hi, nbytes):
    pass

def reduce4_rows(x, t):
    e(f"""
    s_nop 1
    v_permlane32_swap_b32 v{x}, v{x+1}
    v_permlane32_swap_b32 v{x+2}, v{x+3}
    s_nop 0
    v_add_f32 v{x}, v{x}, v{x+1}
    v_add_f32 v{x+2}, v{x+2}, v{x+3}
    s_nop 1
    v_permlane16_swap_b32 v{x}, v{x+2}
    s_nop 0
    v_add_f32 v{x}, v{x}, v{x+2}
    """)
def dpp_add(x, rots):
    for r in rots:
        e(f"s_nop 1\nv_add_f32_dpp v{x}, v{x}, v{x} row_ror:{r} row_mask:0xf bank_mask:0xf")
def dpp_max(x, rots):
    for r in rots:
        e(f"s_nop 1\nv_max_f32_dpp v{x}, v{x}, v{x} row_ror:{r} row_mask:0xf bank_mask:0xf")
def rnd_bf16(x):
    e(f"v_cvt_pk_bf16_f32 v{x}, v{x}, v{x}\nv_and_b32 v{x}, 0xffff0000, v{x}")

def build():
    out.clear()
    stamp(0)
    nt = cfg.ntK
    W = cfg.lw; W2 = cfg.lw2
    e(f"""
    s_load_dwordx16 s[4:19], s[0:1], 0
    s_load_dwordx8 s[20:27], s[0:1], 64
    s_load_dwordx2 s[28:29], s[0:1], 96
    v_readfirstlane_b32 s{sWAVE}, v0
    s_cmpk_ge_u32 s2, 0x100
    s_cbranch_scc1 L_end
    v_and_b32 v0, 63, v0
    s_and_b32 s{sG}, s2, 7
    s_lshr_b32 s{sI}, s2, 3
    s_cmpk_ge_u32 s{sWAVE}, 0x100
    s_cbranch_scc1 L_notloader
    v_lshrrev_b32 v12, 3, v0
    s_lshl_b32 s64, s{sWAVE}, 4
    {"s_getpc_b64 s[48:49]; v_lshl_add_u32 v13, v12, 7, s64; global_load_dword v166, v13, s[48:49]".replace("; ", chr(10)) if cfg.epf else ""}
    v_and_b32 v13, 7, v0
    v_and_b32 v14, 2, v12
    v_xor_b32 v13, v13, v14
    v_lshlrev_b32 v13, 4, v13
    s_and_b32 s63, s{sWAVE}, 64
    v_xor_b32 v13, s63, v13
    v_lshl_add_u32 v10, v12, 13, v13
    s_lshr_b32 s45, s2, 6
    s_lshl_b32 s45, s45, 20
    s_and_b32 s46, s{sI}, 7
    s_lshl3_add_u32 s46, s{sG}, s46
    s_lshl_b32 s46, s46, 7
    s_add_u32 s45, s45, s46
    s_mov_b32 s58, {127*8192+128}
    s_mov_b32 s59, 0x20000
    s_lshl4_add_u32 m0, s{sWAVE}, {L_WO}
    s_lshl_b32 s47, s{sWAVE}, 10
    s_waitcnt lgkmcnt(0)
    s_add_u32 s56, s10, s45
    s_addc_u32 s57, s11, 0
    {'s_memrealtime s[82:83]' if cfg.early else ''}
    L_ldA:
    buffer_load_dwordx4 v10, s[56:59], s47 offen {cfg.ntW} lds
    s_addk_i32 m0, 0x1000
    s_add_u32 s47, s47, 0x40000
    s_bitcmp0_b32 s47, 20
    s_cbranch_scc1 L_ldA
    {'s_memrealtime s[84:85]' if cfg.early else ''}
    s_branch L_ld2
    .p2align 8
    """)
    e(f"""L_notloader:
    v_mov_b32 v1, {L_FL}
    v_mov_b32 v5, 0
    v_lshl_add_u32 v6, v0, 2, v1
    ds_write_b32 v6, v5
    s_lshr_b32 s{sWAVE}, s{sWAVE}, 6
    """)
    if cfg.pf:
        e(f"""
        s_cmp_eq_u32 s{sWAVE}, 9
        s_cbranch_scc0 L_nopf
        s_getpc_b64 s[46:47]
        L_pc:
        s_mul_i32 s45, s{sI}, {2 if cfg.epf else 3}
        {'s_add_u32 s45, s45, 30' if cfg.epf else ''}
        v_min_u32 v5, {1 if cfg.epf else 2}, v0
        v_add_u32 v5, s45, v5
        v_lshlrev_b32 v5, 7, v5
        v_min_u32 v5, L_codeend-L_pc-4, v5
        global_load_dword v166, v5, s[46:47]
        L_nopf:""")
    e(f"""
    v_lshlrev_b32 v5, 5, v0
    s_cmp_ge_u32 s{sWAVE}, 6
    s_waitcnt lgkmcnt(0)
    s_load_dwordx2 s[34:35], s[28:29], 0
    s_cbranch_scc1 L_nox
    global_load_dwordx4 v[8:11], v5, s[4:5]
    global_load_dwordx4 v[12:15], v5, s[4:5] offset:16
    L_nox:
    s_barrier
    s_branch L_nl2
    """)
    def flagw():
        e("ds_write_b32 v16, v15\nv_add_u32 v15, 1, v15")
        if cfg.trace:
            e("s_memrealtime s[66:67]\ns_waitcnt lgkmcnt(0)\ns_mov_b64 s[68:69], exec\ns_lshl_b64 exec, 1, s70\nv_mov_b32 v20, s66\ns_mov_b64 exec, s[68:69]\ns_add_u32 s70, s70, 1")
    e(f"""L_ld2:
    s_mul_i32 s44, s2, {cfg.rotmul}
    s_bfe_u32 s{sRS}, s44, 0x20002
    v_and_b32 v2, 15, v0
    v_lshrrev_b32 v3, 4, v0
    s_add_u32 s62, s{sRS}, 3
    s_and_b32 s62, s62, 3
    s_add_u32 s62, s62, 4
    s_lshl_b32 s62, s62, 14
    v_mov_b32 v1, {L_FL}
    s_lshr_b32 s45, s{sWAVE}, 4
    s_add_u32 s45, s45, {L_LAND}
    v_lshl_add_u32 v16, v0, 2, v1
    v_add_u32 v16, {O_LAND+16}, v16
    v_writelane_b32 v16, s45, 0
    v_mov_b32 v15, {5-W}
    {"s_mov_b32 s70, 0; v_mov_b32 v20, 0".replace("; ", chr(10)) if cfg.trace else ""}
    s_setprio {cfg.lprio}
    s_barrier
    """)
    estamp(3)
    if cfg.early:
        e("s_waitcnt vmcnt(3)"); estamp(4); e("s_waitcnt vmcnt(0)"); estamp(5)
    stamp(1)
    def Bblock():
        e(f"""
        s_add_u32 s67, s{sG}, {7 - cfg.lightg}
        s_and_b32 s67, s67, 7
        s_cmp_lt_u32 s67, 7
        s_cbranch_scc0 L_ld_noB
        s_add_u32 m0, s62, s64
        s_and_b32 s65, s{sI}, 15
        s_lshl4_add_u32 s65, s67, s65
        s_cmp_lt_u32 s{sI}, 16
        s_cbranch_scc0 L_ld_w2
        s_and_b32 s45, s65, 3
        s_mul_i32 s45, s45, {128*3584}
        s_lshr_b32 s46, s65, 2
        s_lshl_b32 s46, s46, 7
        s_add_u32 s45, s45, s46
        s_add_u32 s56, s16, s45
        s_addc_u32 s57, s17, 0
        v_mul_u32_u24 v10, 3584, v12
        v_add_u32 v10, v10, v13
        s_mul_i32 s47, s64, 28
        s_mov_b32 s46, {32*3584}
        s_branch L_ld_B
        L_ld_w2:
        s_lshr_b32 s45, s65, 3
        s_lshl_b32 s45, s45, 17
        s_and_b32 s46, s65, 7
        s_lshl_b32 s46, s46, 7
        s_add_u32 s45, s45, s46
        s_add_u32 s56, s20, s45
        s_addc_u32 s57, s21, 0
        v_lshl_add_u32 v10, v12, 10, v13
        s_lshl_b32 s47, s64, 3
        s_mov_b32 s46, 0x8000
        L_ld_B:
        s_sub_u32 s58, {512*1792*2}, s45
        s_mov_b32 s60, 0
        L_ldB:
        s_waitcnt vmcnt({W-1})
        buffer_load_dwordx4 v10, s[56:59], s47 offen {cfg.ntW} lds
        s_addk_i32 m0, 0x1000
        s_add_u32 s47, s47, s46""")
        flagw()
        e(f"""
        s_add_u32 s60, s60, 1
        s_cmp_lt_u32 s60, 4
        s_cbranch_scc1 L_ldB
        L_ld_noB:
        """)
    def Kblock():
        e(f"""
        v_lshlrev_b32 v14, 8, v3
        v_xor_b32 v17, v3, v2
        v_lshl_add_u32 v4, v17, 4, v14
        v_xor_b32 v4, s{sWAVE}, v4
        s_lshr_b32 s45, s{sI}, 4
        s_lshl_b32 s45, s45, 26
        s_lshl_b32 s46, s{sG}, 23
        s_add_u32 s45, s45, s46
        s_and_b32 s46, s{sI}, 15
        s_lshl_b32 s46, s46, 16
        s_add_u32 s45, s45, s46
        s_add_u32 s45, s45, {28672*256}
        s_mov_b32 s50, 0x10000
        s_mov_b32 s51, 0x20000
        s_add_u32 s48, s6, s45
        s_addc_u32 s49, s7, 0
        s_mov_b32 s60, 0
        s_and_b32 s61, s44, 3
        L_ldK:
        s_lshr_b32 s47, s60, 2
        s_add_u32 s47, s47, s{sRS}
        s_and_b32 s47, s47, 3
        s_add_u32 s62, s61, s60
        s_and_b32 s62, s62, 3
        s_lshl2_add_u32 s47, s47, s62
        s_lshl_b32 s47, s47, 12
        s_add_u32 s47, s47, s64
        s_mov_b32 m0, s47
        s_add_u32 s60, s60, 1
        s_waitcnt vmcnt({W-1})
        buffer_load_dwordx4 v4, s[48:51], s47 offen {nt} lds""")
        flagw()
        e(f"""
        s_cmp_lt_u32 s60, 16
        s_cbranch_scc1 L_ldK
        """)
    if cfg.bpos:
        Kblock(); e("s_mov_b32 s66, s45"); Bblock(); e("s_mov_b32 s45, s66")
    else:
        Bblock(); Kblock()
    stamp(2)
    e(f"""
    v_lshlrev_b32 v17, 1, v3
    v_xor_b32 v17, v17, v2
    v_lshl_add_u32 v8, v17, 4, v14
    s_lshl_b32 s63, s63, 1
    v_xor_b32 v8, s63, v8
    v_lshlrev_b32 v14, 10, v3
    v_lshl_add_u32 v10, v17, 4, v14
    s_and_b32 s63, s{sWAVE}, 0x80
    v_xor_b32 v10, s63, v10
    s_add_u32 s52, s8, s45
    s_addc_u32 s53, s9, 0
    s_mov_b32 s54, 0x10000
    s_mov_b32 s55, 0x20000
    s_mov_b32 s60, 0
    s_and_b32 s61, s44, 3
    """)
    def vloop(name, end, win, noflag=False):
        e(f"""{name}:
        s_lshr_b32 s47, s60, 2
        s_add_u32 s47, s47, s{sRS}
        s_and_b32 s47, s47, 3
        s_add_u32 s62, s61, s60
        s_and_b32 s62, s62, 3
        s_lshl2_add_u32 s47, s47, s62
        s_lshl_b32 s47, s47, 12
        s_add_u32 s47, s47, s64
        s_add_u32 m0, s47, {L_V}
        s_add_u32 s60, s60, 1
        s_waitcnt vmcnt({win-1})
        buffer_load_dwordx4 v8, s[52:55], s47 offen {nt} lds""")
        if not noflag: flagw()
        e(f"""
        s_cmp_lt_u32 s60, {end}
        s_cbranch_scc1 {name}
        """)
    def woloop(name, g0, g1):
        if g0 == g1: return
        e(f"""
        s_add_u32 m0, s64, {L_WO + 4096*g0}
        s_lshl_b32 s47, s64, 2
        s_add_u32 s47, s47, {0x20000*g0}
        {name}:
        s_waitcnt vmcnt({W2-1})
        buffer_load_dwordx4 v10, s[56:59], s47 offen {cfg.ntW} lds
        s_addk_i32 m0, 0x1000
        s_add_u32 s47, s47, 0x20000""")
        flagw()
        e(f"""
        s_cmp_lt_u32 s47, {0x20000*g1}
        s_cbranch_scc1 {name}""")
    if W2 > W:
        assert cfg.w2at + (W2 - W) <= 12
        if cfg.w2at > 0: vloop("L_ldV0", cfg.w2at, W)
        vloop("L_ldV0b", cfg.w2at + W2 - W, W2, noflag=True)
        if cfg.w2at + W2 - W < 12: vloop("L_ldV1", 12, W2)
    elif W2 < W:
        vloop("L_ldV0", cfg.w2at, W)
        for k in range(W - W2):
            e(f"s_waitcnt vmcnt({W-1-k})")
            flagw()
        if cfg.w2at < 12: vloop("L_ldV1", 12, W2)
    else:
        vloop("L_ldV1", 12, W)
    e(f"""
    s_lshl_b32 s45, s{sG}, 19
    s_lshr_b32 s46, s{sI}, 2
    s_lshl_b32 s46, s46, 14
    s_add_u32 s45, s45, s46
    s_and_b32 s46, s{sI}, 3
    s_lshl_b32 s46, s46, 8
    s_add_u32 s45, s45, s46
    s_add_u32 s56, s12, s45
    s_addc_u32 s57, s13, 0
    s_mov_b32 s58, {(3*128+15)*1024+256}
    """)
    spin_ge(1, F_T, 2, 17)
    woloop("L_ldWO1", 0, cfg.woe)
    vloop("L_ldV2", 16, W2)
    woloop("L_ldWO2", cfg.woe, 4)
    stamp(3)
    if cfg.vlf:
        assert W2 - 1 >= 4 - cfg.woe
        e("v_mov_b32 v18, 1\ns_mov_b64 exec, 1")
    for k in range(W2-1, -1, -1):
        e(f"s_waitcnt vmcnt({k})")
        if k == 4 - cfg.woe and cfg.vlf: e(f"ds_add_u32 v1, v18 offset:{F_WO}")
        flagw()
        if k == 4 - cfg.woe: stamp(4)
    stamp(5)
    if cfg.trace:
        e(f"""s_mov_b64 exec, -1
        s_lshl_b32 s60, s2, 10
        s_lshl_b32 s61, s{sWAVE}, 2
        s_add_u32 s60, s60, s61
        s_add_u32 s68, s28, s60
        s_addc_u32 s69, s29, 0
        s_add_u32 s68, s68, 0x18000000
        s_addc_u32 s69, s69, 0
        v_lshlrev_b32 v21, 2, v0
        global_store_dword v21, v20, s[68:69]""")
    if cfg.diag: e(f"s_lshr_b32 s{sWAVE}, s{sWAVE}, 6")
    stamps_out(6)
    e("s_endpgm")

    e(f"""L_nl2:
    {f"s_mov_b64 exec, 1; v_mov_b32 v5, 2; ds_write_b32 v1, v5 offset:{F_T}; s_waitcnt vmcnt(0) lgkmcnt(0); s_endpgm".replace("; ", chr(10)) if cfg.only == 1 else ""}
    s_setprio {cfg.nprio}
    v_and_b32 v2, 15, v0
    v_lshrrev_b32 v3, 4, v0
    s_mul_i32 s44, s2, {cfg.rotmul}
    s_bfe_u32 s{sRS}, s44, 0x20002
    s_lshl_b32 s{sSLOT}, s{sG}, 5
    s_add_u32 s{sSLOT}, s{sSLOT}, s{sI}
    s_mov_b32 s{sCAP}, {SPIN_CAP}
    s_add_u32 s68, s{sG}, {7 - cfg.lightg}
    s_and_b32 s68, s68, 7
    s_cmp_lt_u32 s68, 7
    s_cselect_b32 s{sVB}, 24, 20
    s_mov_b32 s{sKEND}, {'20' if cfg.bpos else f's{sVB}'}
    v_mov_b32 v4, {TMASK}
    s_mov_b32 s{SRD_WS}, s28
    s_mov_b32 s{SRD_WS+1}, s29
    s_mov_b32 s{SRD_WS+2}, {ws_bytes()}
    s_mov_b32 s{SRD_WS+3}, 0x20000
    s_mov_b32 s{sOFF}, 0
    s_mov_b32 s{sBOFF}, {B_OFF}
    s_cmp_ge_u32 s{sWAVE}, 6
    s_cbranch_scc1 L_compute
    """)
    e(f"""
    s_cmp_eq_u32 s{sWAVE}, 4
    s_cbranch_scc0 L_roleB
    s_mov_b32 s44, 0
    s_lshr_b32 s53, s{sI}, 3
    s_lshl_b32 s52, s{sSLOT}, 9
    s_add_u32 s52, s52, {W_QP}
    s_mov_b32 s54, {L_WO}
    s_mov_b32 s55, {L_ACTA}
    s_mov_b32 s45, 4
    s_branch L_tilecommon
    L_roleB:
    s_add_u32 s54, s{sRS}, 3
    s_and_b32 s54, s54, 3
    s_add_u32 s54, s54, 4
    s_lshl_b32 s54, s54, 14
    s_mov_b32 s55, {L_ACTB}
    s_mov_b32 s45, {24 if cfg.bpos else 8}
    s_and_b32 s52, s{sI}, 15
    s_lshl4_add_u32 s52, s68, s52
    s_lshr_b32 s44, s{sI}, 4
    s_and_b32 s53, s52, 3
    s_lshr_b32 s46, s52, 3
    s_lshl_b32 s52, s52, 9
    s_cmp_eq_u32 s44, 0
    s_cselect_b32 s53, s53, s46
    s_mov_b32 s46, {fp_off()}
    s_cselect_b32 s46, {W_HP}, s46
    s_add_u32 s52, s52, s46
    s_cmp_eq_u32 s68, 7
    s_cselect_b32 s44, 2, s44
    L_tilecommon:
    """)
    estamp(2)
    stamp(1)
    e(f"""
    v_lshrrev_b32 v5, 2, v2
    v_lshl_add_u32 v5, v3, 3, v5
    v_lshlrev_b32 v5, 7, v5
    v_and_b32 v6, 3, v2
    v_lshl_add_u32 v5, v6, 3, v5
    v_add_u32 v5, s54, v5
    v_lshrrev_b32 v6, 3, v2
    v_and_b32 v7, 1, v3
    v_lshl_or_b32 v6, v7, 1, v6
    """)
    for u in range(4):
        e(f"v_xor_b32 v7, {u}, v6\nv_lshl_add_u32 v{16+u}, v7, 5, v5")
    e(f"""
    v_and_b32 v5, 1, v0
    v_mul_u32_u24 v5, 288, v5
    v_lshl_add_u32 v5, v3, 4, v5
    v_add_u32 v20, s55, v5
    v_mov_b32 v21, 1
    v_mov_b32 v60, 0
    s_waitcnt lgkmcnt(0)
    """)
    nonce_from_epoch()
    e(f"""
    s_cmp_eq_u32 s44, 0
    s_waitcnt vmcnt(0)
    s_cbranch_scc0 L_noLN
    """)
    estamp(4)
    for k in range(8):
        e(f"v_lshlrev_b32 v{24+2*k}, 16, v{8+k}\nv_and_b32 v{25+2*k}, 0xffff0000, v{8+k}")
    e("v_pk_add_f32 v[40:41], v[24:25], v[26:27]")
    for k in range(2, 8):
        e(f"v_pk_add_f32 v[40:41], v[40:41], v[{24+2*k}:{25+2*k}]")
    e("v_add_f32 v40, v40, v41")
    dpp_add(40, (8, 4, 2, 1))
    e("v_mov_b32 v41, v40\ns_nop 1\nv_permlane16_swap_b32 v40, v41\ns_nop 0\nv_add_f32 v40, v40, v41")
    e("v_mul_f32 v40, 0xbb000000, v40\nv_mov_b32 v41, v40")
    e("v_pk_add_f32 v[42:43], v[24:25], v[40:41]\nv_pk_mul_f32 v[44:45], v[42:43], v[42:43]")
    for k in range(1, 8):
        e(f"v_pk_add_f32 v[42:43], v[{24+2*k}:{25+2*k}], v[40:41]\nv_pk_fma_f32 v[44:45], v[42:43], v[42:43], v[44:45]")
    e("v_add_f32 v44, v44, v45")
    dpp_add(44, (8, 4, 2, 1))
    e("v_mov_b32 v45, v44\ns_nop 1\nv_permlane16_swap_b32 v44, v45\ns_nop 0\nv_add_f32 v44, v44, v45")
    e("v_mul_f32 v44, 0x3b000000, v44")
    rnd_bf16(44)
    e("v_add_f32 v44, 0x3727c5ac, v44")
    rnd_bf16(44)
    e("v_sqrt_f32 v44, v44\ns_nop 0")
    rnd_bf16(44)
    e("v_rcp_f32 v44, v44")
    rnd_bf16(40)
    e("v_mov_b32 v41, v40\nv_mov_b32 v45, v44")
    for k in range(8):
        e(f"v_pk_add_f32 v[42:43], v[{24+2*k}:{25+2*k}], v[40:41]")
        e(f"v_cvt_pk_bf16_f32 v42, v42, v43\nv_and_b32 v43, 0xffff0000, v42\nv_lshlrev_b32 v42, 16, v42")
        e(f"v_pk_mul_f32 v[42:43], v[42:43], v[44:45]\nv_cvt_pk_bf16_f32 v{8+k}, v42, v43")
    e(f"""
    v_bfe_u32 v5, v0, 3, 2
    v_lshrrev_b32 v6, 5, v0
    v_mul_u32_u24 v6, 288, v6
    v_and_b32 v7, 7, v0
    v_lshl_add_u32 v6, v7, 5, v6
    v_add_u32 v6, s55, v6
    v_cmp_eq_u32 vcc, s53, v5
    s_and_saveexec_b64 s[56:57], vcc
    ds_write_b128 v6, v[8:11]
    ds_write_b128 v6, v[12:15] offset:16
    s_mov_b64 exec, -1
    L_noLN:
    """)
    stamp(2)
    e(f"""
    s_cmp_eq_u32 s44, 2
    s_cbranch_scc1 L_notile
    """)
    spin_land(45, 5, slp=cfg.slp)
    estamp(5)
    for u in range(4):
        for t in range(4):
            r = 64 + 16*u + 4*t
            e(f"ds_read_b64_tr_b16 v[{r}:{r+1}], v{16+u} offset:{t*4096}")
            e(f"ds_read_b64_tr_b16 v[{r+2}:{r+3}], v{16+u} offset:{t*4096+512}")
    e(f"""
    s_waitcnt lgkmcnt(0)
    L_notile:
    """)
    flag_add(1, F_T, 21)
    stamp(3)
    e(f"""
    s_cmp_eq_u32 s44, 1
    s_cbranch_scc0 L_noH
    """)
    e(f"""
    v_bfe_u32 v5, v0, 4, 1
    v_lshlrev_b32 v5, 11, v5
    v_lshrrev_b32 v6, 5, v0
    v_lshl_add_u32 v5, v6, 8, v5
    v_lshl_add_u32 v5, v2, 4, v5
    s_lshl_b32 s56, s53, 12
    s_add_u32 s56, s56, {W_HP}
    v_add_u32 v5, s56, v5
    v_and_b32 v7, 31, v0
    v_lshlrev_b32 v7, 3, v7
    s_lshl_b32 s56, s53, 8
    v_add_u32 v22, s56, v7
    global_load_dwordx2 v[22:23], v22, s[18:19]
    v_mul_u32_u24 v6, 288, v6
    v_add3_u32 v6, v6, v7, s55
    """)
    e(f"s_mov_b32 s45, {cfg.hgate}")
    spin_land(45, 7, slp=cfg.slp)
    e("L_hretry:")
    for k in range(4):
        e(f"buffer_load_dwordx4 v[{24+4*k}:{27+4*k}], v5, s[{SRD_WS}:{SRD_WS+3}], s{sOFF} offen offset:{512*k} sc1")
    e("s_waitcnt vmcnt(0)")
    for k in range(4): tag_check(24+4*k, 7, k == 0)
    e(f"""
    v_and_b32 v7, v4, v7
    v_cmp_ne_u32 vcc, 0, v7
    s_cbranch_vccz L_hok""")
    get_loc(7)
    e(f"""
    s_sub_u32 s{sCAP}, s{sCAP}, 1
    s_cbranch_scc0 L_hretry
    s_mov_b32 s{sCAP}, 0
    L_hok:""")
    for k in range(16): e(f"v_and_b32 v{24+k}, 0xfffff800, v{24+k}")
    e("""
    v_pk_add_f32 v[24:25], v[24:25], v[28:29]
    v_pk_add_f32 v[26:27], v[26:27], v[30:31]
    v_pk_add_f32 v[32:33], v[32:33], v[36:37]
    v_pk_add_f32 v[34:35], v[34:35], v[38:39]
    v_pk_add_f32 v[24:25], v[24:25], v[32:33]
    v_pk_add_f32 v[26:27], v[26:27], v[34:35]
    v_cvt_pk_bf16_f32 v24, v24, v25
    v_cvt_pk_bf16_f32 v26, v26, v27
    v_and_b32 v25, 0xffff0000, v24
    v_lshlrev_b32 v24, 16, v24
    v_and_b32 v27, 0xffff0000, v26
    v_lshlrev_b32 v26, 16, v26
    v_lshlrev_b32 v28, 16, v22
    v_and_b32 v29, 0xffff0000, v22
    v_lshlrev_b32 v30, 16, v23
    v_and_b32 v31, 0xffff0000, v23
    v_pk_add_f32 v[24:25], v[24:25], v[28:29]
    v_pk_add_f32 v[26:27], v[26:27], v[30:31]
    v_cvt_pk_bf16_f32 v24, v24, v25
    v_cvt_pk_bf16_f32 v26, v26, v27
    v_and_b32 v25, 0xffff0000, v24
    v_lshlrev_b32 v24, 16, v24
    v_and_b32 v27, 0xffff0000, v26
    v_lshlrev_b32 v26, 16, v26
    v_max_f32 v24, 0, v24
    v_max_f32 v25, 0, v25
    v_max_f32 v26, 0, v26
    v_max_f32 v27, 0, v27
    v_pk_mul_f32 v[24:25], v[24:25], v[24:25]
    v_pk_mul_f32 v[26:27], v[26:27], v[26:27]
    v_cvt_pk_bf16_f32 v24, v24, v25
    v_cvt_pk_bf16_f32 v25, v26, v27
    ds_write_b64 v6, v[24:25]
    L_noH:
    s_cmp_eq_u32 s44, 2
    s_cbranch_scc1 L_nopub
    """)
    e("s_waitcnt lgkmcnt(0)")
    for t in range(4):
        e(f"ds_read_b128 v[{24+4*t}:{27+4*t}], v20 offset:{64*t}")
    e(f"""
    s_cmp_eq_u32 s44, 0
    s_cselect_b32 s56, 8, 4
    s_cselect_b32 s57, 6, 5
    s_cselect_b32 s58, 4, 7
    v_and_b32 v5, 1, v0
    v_lshlrev_b32 v5, s56, v5
    v_bfe_u32 v6, v0, 1, 2
    v_lshl_add_u32 v5, v6, s57, v5
    v_lshl_add_u32 v5, v3, s58, v5
    v_add_u32 v60, s52, v5
    v_and_b32 v6, 2, v0
    v_cmp_ne_u32 s[56:57], 0, v6
    v_and_b32 v6, 4, v0
    v_cmp_ne_u32 s[58:59], 0, v6
    s_waitcnt lgkmcnt(0)
    """)
    for t in range(4):
        for u in range(4):
            r = 64 + 16*u + 4*t
            c = f"v[{40+4*u}:{43+4*u}]"
            e(f"v_mfma_f32_16x16x32_bf16 {c}, v[{r}:{r+3}], v[{24+4*t}:{27+4*t}], {c if t else 0}")
    e("s_nop 7")
    for k in range(4):
        e(f"v_cndmask_b32 v{40+k}, v{40+k}, v{44+k}, s[56:57]")
    for k in range(4):
        e(f"v_cndmask_b32 v{48+k}, v{48+k}, v{52+k}, s[56:57]")
    for k in range(4):
        e(f"v_cndmask_b32 v{56+k}, v{40+k}, v{48+k}, s[58:59]")
    for k in range(4): e(f"v_add_u32 v{56+k}, 0x400, v{56+k}")
    tag_insert(56, 4)
    e(f"""
    s_mov_b32 s74, 0x00ff00ff
    s_mov_b32 s75, 0x00ff00ff
    s_mov_b64 exec, s[74:75]
    s_cmp_eq_u32 s44, 0
    s_cbranch_scc0 L_pubB
    buffer_store_dwordx4 v[56:59], v60, s[{SRD_WS}:{SRD_WS+3}], 0 offen
    s_branch L_pubE
    L_pubB:
    buffer_store_dwordx4 v[56:59], v60, s[{SRD_WS}:{SRD_WS+3}], 0 offen sc1
    L_pubE:
    s_mov_b64 exec, -1
    L_nopub:
    """)
    stamp(4)
    e(f"""
    s_cmp_eq_u32 s{sWAVE}, 4
    s_cbranch_scc0 L_final
    """)
    e(f"""
    v_lshlrev_b32 v10, 9, v3
    v_lshl_add_u32 v10, v2, 4, v10
    s_lshl_b32 s56, s{sG}, 14
    s_lshr_b32 s57, s{sI}, 4
    s_lshl_b32 s57, s57, 8
    s_add_u32 s56, s56, s57
    s_add_u32 s56, s56, {W_QP}
    v_add_u32 v10, s56, v10
    v_add_u32 v11, 0x1000, v10
    v_add_u32 v12, 0x2000, v10
    v_add_u32 v13, 0x3000, v10
    v_lshrrev_b32 v8, 5, v0
    v_lshlrev_b32 v8, 5, v8
    v_lshl_add_u32 v8, v0, 3, v8
    v_add_u32 v8, {L_QS}, v8
    s_sub_u32 s45, s{sKEND}, {cfg.qlead}
    s_getreg_b32 s76, hwreg(HW_REG_XCC_ID, 0, 4)
    s_lshl_b32 s56, s76, 16
    v_mov_b32 v64, s56
    v_mov_b32 v65, 0
    v_mov_b32 v66, 0
    v_mov_b32 v67, 0
    s_lshl_b32 s56, s{sSLOT}, 7
    s_add_u32 s56, s56, {W_ST+64}
    v_mov_b32 v61, s56
    v_and_b32 v62, 31, v0
    v_lshlrev_b32 v62, 7, v62
    s_lshl_b32 s56, s{sG}, 12
    s_add_u32 s56, s56, {W_ST+64}
    v_add_u32 v62, s56, v62
    s_mov_b32 s77, 0
    s_mov_b32 s78, 0
    """)
    tag_insert(64, 4)
    e(f"""
    s_mov_b64 exec, 1
    buffer_store_dwordx4 v[64:67], v61, s[{SRD_WS}:{SRD_WS+3}], 0 offen
    s_mov_b64 exec, -1
    """)
    def pubB_q():
        L = lbl("L_pb")
        e(f"""
        s_cmp_eq_u32 s77, 0
        s_cbranch_scc0 {L}
        s_mov_b32 s77, 1
        s_mov_b64 exec, s[74:75]
        buffer_store_dwordx4 v[56:59], v60, s[{SRD_WS}:{SRD_WS+3}], s{sBOFF} offen sc1
        s_mov_b64 exec, 1
        buffer_store_dwordx4 v[64:67], v61, s[{SRD_WS}:{SRD_WS+3}], s{sBOFF} offen sc1
        s_mov_b64 exec, -1
        {L}:""")
    spin_land(45, 7, slp=cfg.slp)
    e("L_qretry:")
    for v in range(2):
        for k in range(4):
            r = 24 + 16*v + 4*k
            e(f"buffer_load_dwordx4 v[{r}:{r+3}], v{10+k}, s[{SRD_WS}:{SRD_WS+3}], s{sOFF} offen offset:{2048*v} {cfg.ldA}")
    e(f"buffer_load_dwordx4 v[68:71], v62, s[{SRD_WS}:{SRD_WS+3}], s{sOFF} offen {cfg.ldA}")
    e("s_waitcnt vmcnt(0)")
    for k in range(8): tag_check(24+4*k, 7, k == 0)
    tag_check(68, 7, False)
    e(f"""
    v_and_b32 v7, v4, v7
    v_cmp_ne_u32 vcc, 0, v7
    s_cbranch_vccz L_qok
    s_add_u32 s78, s78, 1
    s_cmp_lt_u32 s78, {cfg.ntmo}
    s_cbranch_scc1 L_qretry
    s_xor_b32 s{sOFF}, s{sOFF}, s{sBOFF}
    """)
    pubB_q()
    e(f"""
    s_sub_u32 s{sCAP}, s{sCAP}, 1
    s_cbranch_scc0 L_qretry
    s_mov_b32 s{sCAP}, 0
    L_qok:
    v_lshrrev_b32 v68, 16, v68
    v_cmp_ne_u32 vcc, s76, v68
    s_mov_b32 s{sOFF}, 0
    s_cbranch_vccz L_qloc
    s_mov_b32 s{sOFF}, s{sBOFF}
    """)
    pubB_q()
    e(f"""L_qloc:
    s_add_u32 s56, s{sOFF}, 1
    v_mov_b32 v9, s56
    """)
    for k in range(32): e(f"v_and_b32 v{24+k}, 0xfffff800, v{24+k}")
    for v in range(2):
        r = 24 + 16*v
        e(f"""
        v_pk_add_f32 v[{r}:{r+1}], v[{r}:{r+1}], v[{r+4}:{r+5}]
        v_pk_add_f32 v[{r+2}:{r+3}], v[{r+2}:{r+3}], v[{r+6}:{r+7}]
        v_pk_add_f32 v[{r+8}:{r+9}], v[{r+8}:{r+9}], v[{r+12}:{r+13}]
        v_pk_add_f32 v[{r+10}:{r+11}], v[{r+10}:{r+11}], v[{r+14}:{r+15}]
        v_pk_add_f32 v[{r}:{r+1}], v[{r}:{r+1}], v[{r+8}:{r+9}]
        v_pk_add_f32 v[{r+2}:{r+3}], v[{r+2}:{r+3}], v[{r+10}:{r+11}]
        v_cvt_pk_bf16_f32 v{r}, v{r}, v{r+1}
        v_cvt_pk_bf16_f32 v{r+1}, v{r+2}, v{r+3}
        ds_write_b64 v8, v[{r}:{r+1}] offset:{576*v}
        """)
    flag_set(1, F_Q, 9)
    stamp(5)
    e(f"""
    v_and_b32 v5, 31, v0
    v_lshrrev_b32 v6, 5, v0
    v_lshlrev_b32 v9, 4, v5
    v_lshl_add_u32 v9, v6, 2, v9
    v_add_u32 v9, {L_WT}, v9
    v_lshlrev_b32 v5, 7, v5
    v_lshl_add_u32 v5, v6, 4, v5
    s_lshl_b32 s56, s{sG}, 12
    s_add_u32 s56, s56, {W_ST}
    v_add_u32 v5, s56, v5
    """)
    if cfg.slead > 0:
        e(f"s_add_u32 s45, s{sVB}, {cfg.slead}")
        spin_land(45, 7, slp=cfg.slp)
    spin_ge(1, F_V, 4, 7, slp=cfg.slp)
    def lds_(r):
        e(f"""
        buffer_load_dwordx4 v[{r}:{r+3}], v5, s[{SRD_WS}:{SRD_WS+3}], s{sOFF} offen {cfg.ldA}
        buffer_load_dwordx4 v[{r+4}:{r+7}], v5, s[{SRD_WS}:{SRD_WS+3}], s{sOFF} offen offset:32 {cfg.ldA}""")
    if cfg.pps:
        def chks(r, L):
            tag_check(r, 7, True); tag_check(r+4, 7, False)
            e(f"v_and_b32 v7, v4, v7\nv_cmp_ne_u32 vcc, 0, v7\ns_cbranch_vccz {L}")
        lds_(32)
        e(f"s_add_u32 s45, s45, {cfg.pps}")
        spin_land(45, 7, slp=cfg.slp)
        lds_(40)
        e("s_mov_b64 s[62:63], -1\nL_sp2:\ns_waitcnt vmcnt(2)")
        chks(32, "L_sX")
        e("s_mov_b64 s[60:61], vcc\ns_mov_b64 exec, vcc")
        lds_(32)
        e("s_mov_b64 exec, s[62:63]\ns_waitcnt vmcnt(2)")
        chks(40, "L_sY")
        e("s_mov_b64 s[62:63], vcc\ns_mov_b64 exec, vcc")
        lds_(40)
        e(f"""
        s_mov_b64 exec, s[60:61]
        s_sub_u32 s{sCAP}, s{sCAP}, 1
        s_cbranch_scc0 L_sp2
        s_mov_b32 s{sCAP}, 0
        s_waitcnt vmcnt(0)
        L_sY:
        s_mov_b64 exec, -1""")
        for k in (0, 1, 4, 5): e(f"v_mov_b32 v{24+k}, v{40+k}")
        e("s_branch L_sj\nL_sX:\ns_mov_b64 exec, -1")
        for k in (0, 1, 4, 5): e(f"v_mov_b32 v{24+k}, v{32+k}")
        e("L_sj:")
    else:
        e("L_sretry:")
        lds_(24)
        e("s_waitcnt vmcnt(0)")
        tag_check(24, 7, True); tag_check(28, 7, False)
        tag_branch(7, "L_sretry", masked=True)
    e("""
    v_and_b32 v24, 0xfffff800, v24
    v_and_b32 v28, 0xfffff800, v28
    v_and_b32 v25, 0xfffff800, v25
    v_and_b32 v29, 0xfffff800, v29
    v_max_f32_dpp v26, v24, v24 row_ror:8 row_mask:0xf bank_mask:0xf
    v_max_f32_dpp v30, v28, v28 row_ror:8 row_mask:0xf bank_mask:0xf""")
    for r in (4, 2, 1):
        e(f"""s_nop 0
        v_max_f32_dpp v26, v26, v26 row_ror:{r} row_mask:0xf bank_mask:0xf
        v_max_f32_dpp v30, v30, v30 row_ror:{r} row_mask:0xf bank_mask:0xf""")
    e(f"""
    v_sub_f32 v24, v24, v26
    v_sub_f32 v28, v28, v30
    v_mul_f32 v24, {LOG2E}, v24
    v_mul_f32 v28, {LOG2E}, v28
    v_exp_f32 v24, v24
    v_exp_f32 v28, v28
    s_nop 0
    v_mul_f32 v25, v24, v25
    v_mul_f32 v29, v28, v29""")
    for r in (8, 4, 2, 1):
        e(f"""s_nop 0
        v_add_f32_dpp v25, v25, v25 row_ror:{r} row_mask:0xf bank_mask:0xf
        v_add_f32_dpp v29, v29, v29 row_ror:{r} row_mask:0xf bank_mask:0xf""")
    e(f"""
    v_rcp_f32 v25, v25
    v_rcp_f32 v29, v29
    s_nop 0
    v_mul_f32 v24, v24, v25
    v_mul_f32 v28, v28, v29
    ds_write2_b32 v9, v24, v28 offset0:0 offset1:2
    """)
    flag_set(1, F_W, 21)
    if cfg.dirty:
        e(f"s_mov_b32 s{SRD_WS+2}, 0x2000000\ns_mul_i32 s56, s2, {1024*cfg.dirty}\ns_add_u32 s56, s56, 0x400000\nv_lshlrev_b32 v5, 4, v0")
        for k in range(cfg.dirty):
            e(f"buffer_store_dwordx4 v[24:27], v5, s[{SRD_WS}:{SRD_WS+3}], s56 offen\ns_add_u32 s56, s56, 1024")
    stamp(6)
    if cfg.diag: e(f"s_waitcnt lgkmcnt(0)\ns_sub_u32 s94, {SPIN_CAP}, s{sCAP}\ns_lshl_b32 s94, s94, 8\ns_add_u32 s94, s94, s78\ns_mov_b32 s95, 0")
    if cfg.cntamp == 1: e("s_lshr_b32 s94, s94, 8\ns_mul_i32 s94, s94, 100\ns_add_u32 s94, s94, s80")
    if cfg.cntamp == 2: e("s_and_b32 s94, s94, 255\ns_mul_i32 s94, s94, 100\ns_add_u32 s94, s94, s80")
    stamps_out(8)
    e("s_endpgm")

    e(f"""L_final:
    {"s_waitcnt lgkmcnt(0); s_lshl_b32 s56, s2, 2; s_add_u32 s56, s56, 0x1E0000; v_mov_b32 v5, s56; v_mov_b32 v6, s80; s_mov_b64 exec, 1; buffer_store_dword v6, v5, s[36:39], 0 offen sc1; s_mov_b64 exec, -1".replace("; ", chr(10)) if cfg.skew else ""}
    s_cmp_eq_u32 s44, 0
    s_cbranch_scc0 L_fin0
    """)
    get_loc(7)
    e(f"""
    s_cmp_eq_u32 s{sOFF}, 0
    s_cbranch_scc1 L_fin0
    s_mov_b64 exec, s[74:75]
    buffer_store_dwordx4 v[56:59], v60, s[{SRD_WS}:{SRD_WS+3}], s{sBOFF} offen sc1
    s_mov_b64 exec, -1
    L_fin0:
    s_lshr_b32 s56, s{sI}, 3          ; ctile
    s_and_b32 s57, s{sI}, 1           ; b
    s_bfe_u32 s58, s{sI}, 0x10001     ; e
    s_bfe_u32 s59, s{sI}, 0x10002
    s_and_b32 s60, s{sG}, 1
    s_lshl1_add_u32 s59, s60, s59     ; G
    s_lshr_b32 s60, s{sG}, 1          ; w
    s_lshl2_add_u32 s61, s56, s60     ; 4*ctile + w
    s_lshl1_add_u32 s62, s61, s58
    s_lshl2_add_u32 s62, s62, s59     ; nq = n0/4
    v_and_b32 v5, 1, v3
    v_lshlrev_b32 v5, 1, v5
    v_lshrrev_b32 v6, 1, v3
    v_or_b32 v5, v5, v6              ; e(R)
    v_lshlrev_b32 v5, 1, v5
    s_lshl_b32 s63, s62, 3
    v_add_u32 v6, s63, v5
    global_load_ushort v10, v6, s[22:23]
    s_lshl_b32 s63, s57, 10
    v_add_u32 v8, s63, v6
    global_load_ushort v11, v8, s[4:5]
    s_lshr_b32 s63, s62, 4           ; ctile8
    s_lshl2_add_u32 s63, s63, s59
    s_lshl_b32 s63, s63, 2
    s_bfe_u32 s61, s62, 0x20002      ; u
    s_add_u32 s63, s63, s61
    s_lshl1_add_u32 s63, s63, s57
    s_lshl4_add_u32 s63, s63, {fp_off()}
    v_min_u32 v5, 13, v0
    v_lshlrev_b32 v5, 12, v5
    v_add_u32 v5, s63, v5
    s_lshl3_add_u32 s63, s56, s{sG}
    s_and_b32 s61, s{sI}, 7
    s_lshl3_add_u32 s63, s63, s61
    s_lshl4_add_u32 s63, s63, {W_SP}
    v_lshlrev_b32 v6, 12, v0
    {"v_lshrrev_b32 v7, 1, v0; v_lshl_add_u32 v6, v7, 13, v6".replace("; ", chr(10)) if cfg.dual3 else ""}
    v_add_u32 v6, s63, v6
    s_mov_b32 s59, {0x2000 if cfg.dual3 == 1 else 0}
    v_cmp_gt_u32 s[60:61], 14, v0
    s_mov_b32 s64, s24
    s_mov_b32 s65, s25
    s_mov_b32 s66, 2048
    s_mov_b32 s67, 0x20000
    s_add_u32 s45, s{sVB}, {cfg.flead}
    """)
    spin_land(45, 7, slp=cfg.slp)
    e(f"""L_fretry:
    buffer_load_dwordx4 v[24:27], v5, s[{SRD_WS}:{SRD_WS+3}], 0 offen sc1
    s_waitcnt vmcnt(0)
    """)
    tag_check(24, 7, True)
    tag_branch(7, "L_fretry", masked=True)
    def gate_math():
        for k in range(4):
            e(f"v_and_b32 v{24+k}, 0xfffff800, v{24+k}")
        for k in range(4):
            e(f"v_cndmask_b32 v{24+k}, 0, v{24+k}, s[60:61]")
        reduce4_rows(24, 28)
        dpp_add(24, (8, 4, 2, 1))
        rnd_bf16(24)
        e("v_lshlrev_b32 v10, 16, v10\nv_add_f32 v24, v24, v10")
        rnd_bf16(24)
        e(f"""
        v_mul_f32 v25, 0xbfb8aa3b, v24
        v_exp_f32 v25, v25
        s_nop 0
        v_add_f32 v25, 1.0, v25
        v_rcp_f32 v25, v25
        s_nop 0
        v_mul_f32 v12, v24, v25
        """)
        rnd_bf16(12)
        e("v_lshlrev_b32 v11, 16, v11")
    if not (cfg.pp3 and cfg.gap3 == 0): gate_math()
    stamp(5)
    if cfg.h3gate == 0: spin_ge(1, F_O, 4, 7, slp=cfg.slp)
    else: spin_ge(1, F_K, 4, 7, slp=cfg.slp)
    if cfg.h3slp: e(f"s_sleep {cfg.h3slp}")
    def ld3(r): e(f"buffer_load_dwordx4 v[{r}:{r+3}], v6, s[{SRD_WS}:{SRD_WS+3}], {'s59' if r == 36 else 0} offen sc1")
    def chk3(r, L):
        tag_check(r, 7, True)
        e(f"v_and_b32 v7, v4, v7\nv_cmp_ne_u32 vcc, 0, v7\ns_cbranch_vccz {L}")
    if cfg.hack4: e("v_and_b32 v6, 0xffffefff, v6\nv_or_b32 v6, 0, v6")
    if cfg.pp3:
        ld3(32)
        if cfg.gap3: e(f"s_sleep {cfg.gap3}")
        else: gate_math()
        ld3(36)
        e("s_mov_b64 s[62:63], -1\nL_3p:\ns_waitcnt vmcnt(1)")
        chk3(32, "L_3X")
        e("s_mov_b64 s[60:61], vcc\ns_mov_b64 exec, vcc")
        ld3(32)
        e("s_mov_b64 exec, s[62:63]\ns_waitcnt vmcnt(1)")
        chk3(36, "L_3Y")
        e("s_mov_b64 s[62:63], vcc\ns_mov_b64 exec, vcc")
        ld3(36)
        e(f"""
        s_mov_b64 exec, s[60:61]
        s_sub_u32 s{sCAP}, s{sCAP}, 1
        s_cbranch_scc0 L_3p
        s_mov_b32 s{sCAP}, 0
        s_waitcnt vmcnt(0)
        L_3Y:
        s_mov_b64 exec, -1""")
        for k in range(4): e(f"v_and_b32 v{24+k}, 0xfffff800, v{36+k}")
        e("s_branch L_3j\nL_3X:\ns_mov_b64 exec, -1")
        for k in range(4): e(f"v_and_b32 v{24+k}, 0xfffff800, v{32+k}")
        e("L_3j:")
    else:
        e("L_3retry:")
        ld3(24)
        e("s_waitcnt vmcnt(0)")
        tag_check(24, 7, True)
        tag_branch(7, "L_3retry", masked=True, slp=cfg.h3loop)
        for k in range(4): e(f"v_and_b32 v{24+k}, 0xfffff800, v{24+k}")
    stamp(6)
    reduce4_rows(24, 28)
    dpp_add(24, (8, 4, 2, 1))
    rnd_bf16(24)
    e("v_mul_f32 v24, v24, v12")
    rnd_bf16(24)
    e(f"""
    v_add_f32 v24, v24, v11
    v_cvt_pk_bf16_f32 v24, v24, v24
    s_mov_b32 s56, 0x00010001
    s_mov_b32 s57, 0x00010001
    s_mov_b64 exec, s[56:57]
    buffer_store_short v24, v8, s[64:67], 0 offen {cfg.outst}
    s_cmp_eq_u32 s2, 0
    s_cbranch_scc0 L_fin2
    s_mov_b64 exec, 1
    v_mov_b32 v26, s34
    v_mov_b32 v27, s35
    v_mov_b32 v28, 0
    buffer_store_dwordx2 v[26:27], v28, s[{SRD_WS}:{SRD_WS+3}], 0 offen {cfg.epst}
    L_fin2:
    """)
    if cfg.skew:
        e(f"""
        s_cmp_eq_u32 s2, 0
        s_cbranch_scc0 L_skend
        s_mov_b64 exec, -1
        v_lshlrev_b32 v5, 4, v0
        v_add_u32 v5, 0x1E0000, v5
        buffer_load_dwordx4 v[40:43], v5, s[{SRD_WS}:{SRD_WS+3}], 0 offen sc1
        s_waitcnt vmcnt(0) lgkmcnt(0)
        v_subrev_u32 v40, s80, v40
        v_subrev_u32 v41, s80, v41
        v_subrev_u32 v42, s80, v42
        v_subrev_u32 v43, s80, v43
        v_max3_i32 v44, v40, v41, v42
        v_max_i32 v44, v44, v43
        v_min3_i32 v45, v40, v41, v42
        v_min_i32 v45, v45, v43
        s_mov_b32 s60, 0x80000000
        s_mov_b32 s61, 0x7fffffff
        """)
        if cfg.skewg >= 0: e(f"v_mov_b32 v44, v{40 + (cfg.skewg & 3)}\ns_nop 1")
        for l in range(64):
            if cfg.skewg >= 0 and (l & 1) != (cfg.skewg >> 2):
                e(f"v_readlane_b32 s62, v45, {l}\nv_readlane_b32 s63, v45, {l}\ns_nop 1\ns_min_i32 s61, s61, s62\ns_min_i32 s61, s61, s63"); continue
            e(f"v_readlane_b32 s62, v44, {l}\nv_readlane_b32 s63, v45, {l}\ns_nop 1\ns_max_i32 s60, s60, s62\ns_min_i32 s61, s61, s63")
        e(f"""
        s_sub_u32 s60, s60, s61
        s_min_u32 s60, s60, 2000
        s_mul_i32 s60, s60, 20
        s_memrealtime s[62:63]
        s_waitcnt lgkmcnt(0)
        L_sksp:
        s_memrealtime s[68:69]
        s_waitcnt lgkmcnt(0)
        s_sub_u32 s61, s68, s62
        s_cmp_lt_u32 s61, s60
        s_cbranch_scc1 L_sksp
        L_skend:""")
    stamp(7)
    stamps_out(8)
    e("s_endpgm")

    sW = 44
    e(f"""L_compute:
    s_setprio {cfg.cprio}
    s_sub_u32 s{sW}, s{sWAVE}, 6
    """)
    if cfg.touch:
        e(f"""
        s_cmp_eq_u32 s{sW}, 2
        s_cbranch_scc0 L_notouch
        s_lshr_b32 s45, s{sI}, 4
        s_lshl_b32 s45, s45, 26
        s_lshl_b32 s46, s{sG}, 23
        s_add_u32 s45, s45, s46
        s_and_b32 s46, s{sI}, 15
        s_lshl_b32 s46, s46, 16
        s_add_u32 s45, s45, s46
        s_add_u32 s45, s45, {28672*256}
        v_mov_b32 v5, s45
        s_lshl_b32 s45, s{sG}, 19
        s_lshr_b32 s46, s{sI}, 2
        s_lshl_b32 s46, s46, 14
        s_add_u32 s45, s45, s46
        v_lshl_add_u32 v6, v0, 17, s45
        v_mov_b32 v7, 0
        s_mov_b64 exec, 1""")
        if 'k' in cfg.touch: e("global_load_dword v164, v5, s[6:7] nt")
        if 'v' in cfg.touch: e("global_load_dword v164, v5, s[8:9] nt")
        if 'o' in cfg.touch: e("s_mov_b64 exec, 15\nglobal_load_dword v164, v6, s[12:13] nt\ns_mov_b64 exec, 1")
        if 'w' in cfg.touch: e("global_load_dword v164, v7, s[28:29]")
        if 'u' in cfg.touch: e("global_load_dword v164, v7, s[24:25]")
        e("s_mov_b64 exec, -1\nL_notouch:")
    for r in range(64, 128): e(f"v_mov_b32 v{r}, 0")
    e(f"""
    s_lshl_b32 s45, s{sW}, 14
    v_lshlrev_b32 v5, 8, v2
    v_add_u32 v5, s45, v5
    v_xor_b32 v6, v3, v2
    """)
    for t in range(4):
        e(f"v_xor_b32 v7, {4*t}, v6\nv_lshl_add_u32 v{8+t}, v7, 4, v5")
    e(f"""
    v_and_b32 v13, 3, v2
    v_mul_u32_u24 v12, 288, v13
    v_lshl_add_u32 v12, v3, 4, v12
    v_add_u32 v12, {L_QS}, v12
    """)
    e(f"""
    v_lshl_add_u32 v15, v3, 2, v13
    v_lshlrev_b32 v15, 4, v15
    v_add_u32 v15, {L_PB}, v15
    v_lshrrev_b32 v5, 3, v2
    v_lshl_add_u32 v14, v5, 8, v15
    v_bfe_u32 v5, v2, 2, 1
    v_lshl_add_u32 v14, v5, 3, v14
    s_lshl_b32 s45, s{sW}, 9
    v_add_u32 v14, s45, v14
    v_lshlrev_b32 v17, 3, v13
    v_add_u32 v17, {L_SB}, v17
    s_lshl_b32 s45, s{sW}, 5
    v_add_u32 v16, s45, v17
    """)
    e(f"""
    v_lshrrev_b32 v5, 2, v2
    v_and_b32 v6, 1, v3
    v_lshl_add_u32 v6, v6, 2, v5
    s_lshl_b32 s45, s{sW}, 1
    v_xor_b32 v6, s45, v6
    v_lshlrev_b32 v7, 3, v13
    v_lshl_add_u32 v22, v6, 5, v7
    v_xor_b32 v23, 32, v22
    v_lshl_add_u32 v6, v3, 2, v5
    v_lshlrev_b32 v6, 8, v6
    v_add_u32 v6, {L_V}, v6
    v_add_u32 v18, v6, v22
    v_add_u32 v19, v6, v23
    v_lshl_add_u32 v6, v3, 3, v5
    v_lshlrev_b32 v6, 8, v6
    v_add_u32 v6, {L_WO}, v6
    v_add_u32 v20, v6, v22
    v_add_u32 v21, v6, v23
    """)
    e(f"""
    s_lshl_b32 s45, s{sW}, 7
    v_lshl_add_u32 v5, v3, 4, s45
    s_lshl_b32 s46, s{sSLOT}, 11
    s_add_u32 s46, s46, {W_OP}
    s_lshl2_add_u32 s46, s45, s46
    v_lshl_add_u32 v22, v0, 4, s46
    s_lshl_b32 s46, s{sSLOT}, 10
    {f"s_lshr_b32 s47, s{sSLOT}, 3; s_lshl_b32 s47, s47, 13; s_add_u32 s46, s46, s47".replace("; ", chr(10)) if cfg.dual3 else ""}
    s_add_u32 s46, s46, {W_SP}
    s_lshl1_add_u32 s46, s45, s46
    v_lshlrev_b32 v23, 4, v13
    v_lshl_add_u32 v23, v3, 6, v23
    v_add_u32 v23, s46, v23
    v_and_b32 v6, 1, v2
    v_lshlrev_b32 v28, 7, v6
    v_lshl_add_u32 v28, v3, 4, v28
    v_add_u32 v28, {L_OB}, v28
    s_lshr_b32 s45, s{sW}, 1          ; b'
    s_and_b32 s46, s{sW}, 1           ; dsub
    s_lshl_b32 s47, s{sG}, 16
    s_lshl_b32 s48, s45, 15
    s_add_u32 s47, s47, s48
    s_lshr_b32 s48, s{sI}, 2
    s_lshl_b32 s48, s48, 8
    s_add_u32 s47, s47, s48
    s_lshl_b32 s48, s46, 7
    s_add_u32 s47, s47, s48
    s_add_u32 s47, s47, {W_OP}
    v_lshrrev_b32 v5, 3, v0
    v_and_b32 v6, 7, v0
    v_lshlrev_b32 v24, 11, v5
    v_lshl_add_u32 v24, v6, 4, v24
    v_add_u32 v24, s47, v24
    v_add_u32 v25, 16384, v24
    s_lshl_b32 s47, s45, 8
    s_add_u32 s47, s47, {L_WT}
    v_lshl_add_u32 v26, v5, 4, s47
    v_and_b32 v5, 1, v3
    v_lshlrev_b32 v5, 1, v5
    v_lshrrev_b32 v7, 1, v3
    v_or_b32 v5, v5, v7
    v_lshl_add_u32 v5, v5, 4, v6
    s_lshl_b32 s47, s45, 7
    s_lshl_b32 s48, s46, 4
    s_add_u32 s47, s47, s48
    s_add_u32 s47, s47, {L_OB}
    v_lshl_add_u32 v27, v5, 1, s47
    s_lshl_b32 s47, s{sSLOT}, 7
    s_add_u32 s47, s47, {W_ST}
    v_lshl_add_u32 v29, v13, 4, s47
    v_and_b32 v5, 4, v0
    v_cmp_ne_u32 s[50:51], 0, v5
    v_and_b32 v5, 2, v0
    v_cmp_ne_u32 s[52:53], 0, v5
    v_mov_b32 v30, 1
    s_waitcnt lgkmcnt(0)
    """)
    nonce_from_epoch()
    for sp in range(4):
        e(f"""
        s_add_u32 s56, s{sRS}, {sp}
        s_and_b32 s56, s56, 3
        s_lshl_b32 s57, s56, 9
        v_add_u32 v{40+sp}, s57, v15
        s_lshl_b32 s57, s56, 14
        v_add_u32 v{48+2*sp}, s57, v18
        v_add_u32 v{49+2*sp}, s57, v19
        """)
    stamp(1)
    get_loc(6, slp=cfg.slpc)
    for tau in range(4):
        m = 0x000f000f << (4*tau)
        e(f"s_mov_b32 s54, {m:#x}\ns_mov_b32 s55, {m:#x}\ns_mov_b64 exec, s[54:55]")
        for t in range(4):
            r = 64 + 16*tau + 4*t
            e(f"ds_read_b128 v[{r}:{r+3}], v12 offset:{64*t}")
    e("s_mov_b64 exec, -1")
    e(f"""
    s_sub_u32 s58, s{sW}, s{sRS}
    s_and_b32 s58, s58, 3
    s_lshl2_add_u32 s58, s58, s{sKEND}
    s_sub_u32 s58, s58, 12
    """)
    spin_land(58, 6, slp=cfg.slpc)
    stamp(2)
    def kread(tau, t):
        r = 128 + 16*(tau & 1) + 4*t
        e(f"ds_read_b128 v[{r}:{r+3}], v{8+t} offset:{4096*tau}")
    for tau in range(2):
        for t in range(4): kread(tau, t)
    for tau in range(4):
        for t in range(4):
            n = 4*tau + t
            r = 128 + 16*(tau & 1) + 4*t; q = 64 + 16*tau + 4*t
            e(f"s_waitcnt lgkmcnt({7 if n < 8 else 15-n})")
            e(f"v_mfma_f32_16x16x32_bf16 v[32:35], v[{r}:{r+3}], v[{q}:{q+3}], {'v[32:35]' if n else 0}")
            if tau < 2: kread(tau+2, t)
    e(f"""
    s_mov_b32 s54, {SCALE:#x}
    s_mov_b32 s55, {LOG2E:#x}
    s_nop 5
    v_cvt_pk_bf16_f32 v32, v32, v33
    v_cvt_pk_bf16_f32 v34, v34, v35
    v_and_b32 v33, 0xffff0000, v32
    v_lshlrev_b32 v32, 16, v32
    v_and_b32 v35, 0xffff0000, v34
    v_lshlrev_b32 v34, 16, v34
    v_mul_f32 v32, s54, v32
    v_mul_f32 v33, s54, v33
    v_mul_f32 v34, s54, v34
    v_mul_f32 v35, s54, v35
    v_cvt_pk_bf16_f32 v32, v32, v33
    v_cvt_pk_bf16_f32 v34, v34, v35
    v_and_b32 v33, 0xffff0000, v32
    v_lshlrev_b32 v32, 16, v32
    v_and_b32 v35, 0xffff0000, v34
    v_lshlrev_b32 v34, 16, v34
    v_max_f32 v36, v32, v33
    v_max3_f32 v36, v34, v35, v36
    """)
    dpp_max(36, (8, 4))
    e("""
    v_mov_b32 v37, v36
    s_nop 1
    v_permlane16_swap_b32 v36, v37
    s_nop 0
    v_max_f32 v36, v36, v37
    v_mov_b32 v37, v36
    s_nop 1
    v_permlane32_swap_b32 v36, v37
    s_nop 0
    v_max_f32 v36, v36, v37
    v_sub_f32 v32, v32, v36
    v_sub_f32 v33, v33, v36
    v_sub_f32 v34, v34, v36
    v_sub_f32 v35, v35, v36
    v_mul_f32 v32, s55, v32
    v_mul_f32 v33, s55, v33
    v_mul_f32 v34, s55, v34
    v_mul_f32 v35, s55, v35
    v_exp_f32 v128, v32
    v_exp_f32 v129, v33
    v_exp_f32 v130, v34
    v_exp_f32 v131, v35
    v_add_f32 v37, v128, v129
    s_nop 0
    v_add_f32 v38, v130, v131
    v_add_f32 v37, v37, v38
    """)
    dpp_add(37, (8, 4))
    e(f"""
    v_mov_b32 v38, v37
    s_nop 1
    v_permlane16_swap_b32 v37, v38
    s_nop 0
    v_add_f32 v37, v37, v38
    v_mov_b32 v38, v37
    s_nop 1
    v_permlane32_swap_b32 v37, v38
    s_nop 0
    v_add_f32 v37, v37, v38
    s_mov_b64 exec, 15
    ds_write_b64 v16, v[36:37]
    s_mov_b64 exec, 1
    ds_add_u32 v1, v30 offset:{F_V}
    s_mov_b64 exec, -1
    """)
    spin_ge(1, F_V, 4, 6, extra="\n".join(f"ds_read_b64 v[{56+2*k}:{57+2*k}], v17 offset:{32*k}" for k in range(4)))
    def preg(ee, sp, sg): return (64 if sp < 2 else 96) + 16*ee + 8*(sp & 1) + 4*sg
    e("""
    v_max_f32 v32, v56, v58
    v_max3_f32 v32, v60, v62, v32
    v_sub_f32 v56, v56, v32
    v_sub_f32 v58, v58, v32
    v_sub_f32 v60, v60, v32
    v_sub_f32 v62, v62, v32
    v_sub_f32 v36, v36, v32
    v_mul_f32 v56, s55, v56
    v_mul_f32 v58, s55, v58
    v_mul_f32 v60, s55, v60
    v_mul_f32 v62, s55, v62
    v_mul_f32 v36, s55, v36
    v_exp_f32 v56, v56
    v_exp_f32 v58, v58
    v_exp_f32 v60, v60
    v_exp_f32 v62, v62
    v_exp_f32 v36, v36
    v_mul_f32 v33, v56, v57
    v_fmac_f32 v33, v58, v59
    v_fmac_f32 v33, v60, v61
    v_fmac_f32 v33, v62, v63
    v_mov_b32 v34, 0
    v_mov_b32 v35, 0
    """)
    e(f"s_cmp_eq_u32 s{sW}, 0\ns_cbranch_scc0 L_nostat")
    tag_insert(32, 4)
    e(f"""
    s_mov_b64 exec, 15
    buffer_store_dwordx4 v[32:35], v29, s[{SRD_WS}:{SRD_WS+3}], 0 offen
    s_cmp_eq_u32 s{sOFF}, 0
    s_cbranch_scc1 L_nostatB
    buffer_store_dwordx4 v[32:35], v29, s[{SRD_WS}:{SRD_WS+3}], s{sBOFF} offen sc1
    L_nostatB:
    s_mov_b64 exec, -1
    L_nostat:
    """)
    stamp(3)
    e("""
    v_mul_f32 v128, v128, v36
    v_mul_f32 v129, v129, v36
    v_mul_f32 v130, v130, v36
    v_mul_f32 v131, v131, v36
    v_cvt_pk_bf16_f32 v128, v128, v129
    v_cvt_pk_bf16_f32 v129, v130, v131
    ds_write_b64 v14, v[128:129]
    """)
    flag_add(1, F_P, 30)
    for r in range(96, 128): e(f"v_mov_b32 v{r}, 0")
    spin_ge(1, F_P, 4, 6)
    for ee in range(2):
        m = 0x000f000f << (4*ee)
        e(f"s_mov_b32 s56, {m:#x}\ns_mov_b32 s57, {m:#x}\ns_mov_b64 exec, s[56:57]")
        for sp in range(4):
            for sg in range(2):
                r = preg(ee, sp, sg)
                e(f"ds_read_b128 v[{r}:{r+3}], v{40+sp} offset:{256*sg}")
    e("s_mov_b64 exec, -1")
    for sp in range(4):
        e(f"s_add_u32 s58, s{sVB}, {4*(sp+1) + (cfg.woe if sp == 3 else 0)}")
        if sp == 3 and cfg.vlf: spin_ge(1, F_WO, 4, 6)
        else: spin_land(58, 6, slp=(cfg.slpc if sp < 3 else 0))
        if sp == 3: stamp(4)
        for sg in range(2):
            for ee in range(2):
                r = 128 + 8*sg + 4*ee
                e(f"ds_read_b64_tr_b16 v[{r}:{r+1}], v{48+2*sp+ee} offset:{8192*sg}")
                e(f"ds_read_b64_tr_b16 v[{r+2}:{r+3}], v{48+2*sp+ee} offset:{8192*sg+4096}")
        for sg in range(2):
            for ee in range(2):
                r = 128 + 8*sg + 4*ee
                p = preg(ee, sp, sg)
                e(f"s_waitcnt lgkmcnt({6 - 2*(2*sg+ee)})")
                e(f"v_mfma_f32_16x16x32_bf16 v[144:147], v[{p}:{p+3}], v[{r}:{r+3}], {'v[144:147]' if (sp or sg or ee) else 0}")
    e(f"s_cmp_eq_u32 s{sOFF}, 0\ns_mov_b32 exec_hi, 0\ns_nop 5")
    tag_insert(144, 4)
    e(f"""
    buffer_store_dwordx4 v[144:147], v22, s[{SRD_WS}:{SRD_WS+3}], 0 offen
    s_cbranch_scc1 L_oloc
    buffer_store_dwordx4 v[144:147], v22, s[{SRD_WS}:{SRD_WS+3}], s{sBOFF} offen sc1
    L_oloc:
    s_mov_b64 exec, -1
    {"v_mov_b32 v156, v144; v_mov_b32 v157, v145; v_mov_b32 v158, v146; v_mov_b32 v159, v147".replace("; ", chr(10)) if 0 else ""}
    buffer_load_dwordx4 v[32:35], v24, s[{SRD_WS}:{SRD_WS+3}], s{sOFF} offen {cfg.ldA}
    buffer_load_dwordx4 v[36:39], v25, s[{SRD_WS}:{SRD_WS+3}], s{sOFF} offen {cfg.ldA}
    s_add_u32 s58, s{sVB}, 20
    """)
    stamp(5)
    def wofr():
        for ee in range(2):
            for t in range(2):
                r = 64 + 8*ee + 4*t
                e(f"ds_read_b64_tr_b16 v[{r}:{r+1}], v{20+ee} offset:{8192*t}")
                e(f"ds_read_b64_tr_b16 v[{r+2}:{r+3}], v{20+ee} offset:{8192*t+1024}")
    if not cfg.late_wo:
        spin_land(58, 6)
        wofr()
    if cfg.clean:
        for k in range(4): e(f"v_mov_b32 v{156+k}, v{144+k}")
    spin_ge(1, F_W, 1, 6, extra="ds_read_b128 v[40:43], v26\nds_read_b128 v[44:47], v26 offset:128")
    def ld2(r):
        e(f"""
        buffer_load_dwordx4 v[{r}:{r+3}], v24, s[{SRD_WS}:{SRD_WS+3}], s{sOFF} offen {cfg.ldA}
        buffer_load_dwordx4 v[{r+4}:{r+7}], v25, s[{SRD_WS}:{SRD_WS+3}], s{sOFF} offen {cfg.ldA}""")
    def chk2(r, L):
        tag_check(r, 7, True); tag_check(r+4, 7, False)
        e(f"v_and_b32 v7, v4, v7\nv_cmp_ne_u32 vcc, 0, v7\ns_cbranch_vccz {L}")
    if cfg.pp2:
        ld2(48)
        e("s_mov_b64 s[62:63], -1\nL_op:\ns_waitcnt vmcnt(2)")
        chk2(32, "L_okX")
        e("s_mov_b64 s[60:61], vcc\ns_mov_b64 exec, vcc")
        ld2(32)
        e("s_mov_b64 exec, s[62:63]\ns_waitcnt vmcnt(2)")
        chk2(48, "L_okY")
        e("s_mov_b64 s[62:63], vcc\ns_mov_b64 exec, vcc")
        ld2(48)
        e(f"""
        s_mov_b64 exec, s[60:61]
        s_sub_u32 s{sCAP}, s{sCAP}, 1
        s_cbranch_scc0 L_op
        s_mov_b32 s{sCAP}, 0
        s_waitcnt vmcnt(0)
        L_okY:
        s_mov_b64 exec, -1""")
        for k in range(8): e(f"v_and_b32 v{56+k}, 0xfffff800, v{48+k}")
        e("s_branch L_oj\nL_okX:\ns_mov_b64 exec, -1")
        for k in range(8): e(f"v_and_b32 v{56+k}, 0xfffff800, v{32+k}")
        e("L_oj:")
    else:
        e("s_branch L_ochk\nL_oretry:")
        ld2(32)
        e("L_ochk:\ns_waitcnt vmcnt(0)")
        tag_check(32, 7, True); tag_check(36, 7, False)
        tag_branch(7, "L_oretry", masked=True, slp=cfg.o2loop)
        for k in range(8): e(f"v_and_b32 v{56+k}, 0xfffff800, v{32+k}")
    stamp(6)
    R = []
    if cfg.late_wo:
        R.append(f"ds_read_b128 v[152:155], v1 offset:{O_LAND}")
        for ee in range(2):
            for t in range(2):
                r = 64 + 8*ee + 4*t
                R.append(f"ds_read_b64_tr_b16 v[{r}:{r+1}], v{20+ee} offset:{8192*t}")
                R.append(f"ds_read_b64_tr_b16 v[{r+2}:{r+3}], v{20+ee} offset:{8192*t+1024}")
    else:
        R = ["s_nop 0"] * 9
    e(f"""
    v_pk_mul_f32 v[56:57], v[56:57], v[40:41]
    v_pk_mul_f32 v[58:59], v[58:59], v[42:43]
    v_pk_fma_f32 v[56:57], v[60:61], v[44:45], v[56:57]
    v_pk_fma_f32 v[58:59], v[62:63], v[46:47], v[58:59]
    {R[0]}
    {R[1]}
    v_permlane32_swap_b32 v56, v57
    v_permlane32_swap_b32 v58, v59
    {R[2]}
    v_add_f32 v56, v56, v57
    v_add_f32 v58, v58, v59
    {R[3]}
    {R[4]}
    v_permlane16_swap_b32 v56, v58
    {R[5]}
    v_add_f32 v56, v56, v58
    {R[6]}
    {R[7]}
    v_add_f32_dpp v56, v56, v56 row_ror:8 row_mask:0xf bank_mask:0xf
    {R[8]}
    """)
    e(f"""
    v_cvt_pk_bf16_f32 v56, v56, v56
    ds_write_b16 v27, v56
    s_mov_b64 exec, 1
    ds_add_u32 v1, v30 offset:{F_O}
    s_mov_b64 exec, -1
    s_mov_b32 s56, 0x000f000f
    s_mov_b32 s57, 0x000f000f
    s_mov_b32 s59, 0x2000
    """)
    spin_ge(1, F_O, 4, 6, extra="ds_read_b128 v[40:43], v28\nds_read_b128 v[44:47], v28 offset:64")
    if cfg.late_wo:
        e("""
        v_min3_i32 v152, v152, v153, v154
        v_min_i32 v152, v152, v155
        v_cmp_le_i32 vcc, s58, v152
        s_cbranch_vccz L_wolate
        L_wook:""".replace('s_cbranch_vccz', 's_branch' if cfg.forcelate else 's_cbranch_vccz'))
    for t in range(2):
        for ee in range(2):
            r = 64 + 8*ee + 4*t
            a = 144 + 4*ee
            e(f"v_mfma_f32_16x16x32_bf16 v[{a}:{a+3}], v[{r}:{r+3}], v[{40+4*t}:{43+4*t}], {f'v[{a}:{a+3}]' if t else 0}")
    e(f"""
    s_mov_b64 exec, s[56:57]
    s_nop 6
    """)
    for k in range(4):
        e(f"v_cndmask_b32 v{144+k}, v{144+k}, v{148+k}, s[52:53]")
    tag_insert(144, 4)
    e(f"""
    {"s_bitcmp1_b32 s32, 2; s_cbranch_scc1 L_end".replace("; ", chr(10)) if cfg.hack4 == 9 else ""}
    {"s_bitcmp1_b32 s32, 2; s_cselect_b64 exec, 0, exec".replace("; ", chr(10)) if cfg.hack4 else ""}
    buffer_store_dwordx4 v[144:147], v23, s[{SRD_WS}:{SRD_WS+3}], 0 offen sc1
    {f"buffer_store_dwordx4 v[144:147], v23, s[{SRD_WS}:{SRD_WS+3}], s59 offen sc1" if cfg.dual3 else ""}
    """)
    if cfg.clean == 1:
        e(f"s_mov_b32 s56, 0x00ff00ff\ns_mov_b32 s57, 0x00ff00ff\ns_mov_b64 exec, s[56:57]\nbuffer_store_dwordx4 v[156:159], v22, s[{SRD_WS}:{SRD_WS+3}], 0 offen sc1\ns_waitcnt vmcnt(1)")
    elif cfg.h3gate == 2: e("s_waitcnt vmcnt(0)")
    if cfg.clean == 2:
        e(f"s_mov_b32 s56, 0x00ff00ff\ns_mov_b32 s57, 0x00ff00ff\ns_mov_b64 exec, s[56:57]\nbuffer_store_dwordx4 v[156:159], v22, s[{SRD_WS}:{SRD_WS+3}], 0 offen sc1")
    if cfg.h3gate: e(f"s_mov_b64 exec, 1\nds_add_u32 v1, v30 offset:{F_K}")
    stamp(7)
    stamps_out(8)
    e("L_end:\ns_endpgm")
    if cfg.late_wo:
        e("L_wolate:")
        spin_land(58, 6)
        wofr()
        e("s_waitcnt lgkmcnt(0)\ns_branch L_wook")
    e("L_codeend:")
    if cfg.skip:
        res = []; sect = None
        for ln in out:
            t = ln.strip()
            if t.endswith(":"): sect = t[:-1]
            drop = False
            isg = t.startswith("buffer_load_dwordx4 v[") and "s[36:39]" in t
            if isg and sect in ("L_qretry",) and 'q' in cfg.skip: drop = True
            if isg and sect in ("L_hretry",) and 'h' in cfg.skip: drop = True
            if isg and sect in ("L_sretry",) and 's' in cfg.skip: drop = True
            if isg and sect in ("L_fretry",) and 'f' in cfg.skip: drop = True
            if t.startswith("s_cbranch_scc0 L_qretry") and 'q' in cfg.skip: drop = True
            if t.startswith("s_cbranch_scc0 L_hretry") and 'h' in cfg.skip: drop = True
            if t.startswith("s_cbranch_scc0 L_sretry") and 's' in cfg.skip: drop = True
            if t.startswith("s_cbranch_scc0 L_fretry") and 'f' in cfg.skip: drop = True
            if 'b' in cfg.skip and t.startswith("buffer_store_dwordx4") and "sc1" in t and ("v[56:59]" in t and sect == "L_pubB"): drop = True
            if 'a' in cfg.skip and t.startswith("buffer_store_dwordx4") and "sc1" not in t and ("v[56:59]" in t or "v[64:67]" in t or "v29" in t): drop = True
            if 'q' in cfg.skip and t.startswith("s_cbranch_vccz L_q"): ln = ln.replace("s_cbranch_vccz", "s_branch")
            if 'k' in cfg.skip and t.startswith("ds_read_b128 v[1") and "v1 offset" not in t: drop = True
            if 'v' in cfg.skip and t.startswith("ds_read_b64_tr_b16 v[1"): drop = True
            if not drop: res.append(ln)
        out[:] = res
    if cfg.mark:
        res = []; k = 0
        for ln in out:
            res.append(ln)
            if ln.strip() == f"s_mov_b32 s{sCAP}, 0":
                k += 1
                res += [f"    v_mov_b32 v164, {4*k}", "    v_mov_b32 v165, 1", "    global_atomic_add v164, v165, s[26:27]"]
        out[:] = res
    body = "\n".join(out)
    hdr = open("recurrent_scan__sliding_block_cached__dense_activation_squared_relu__decode.s.ref").read().split("; Override launch")[0]
    return f"""{hdr}; One fused launch: 256 workgroups (one per CU, all co-resident) x 10 waves.
; @launch grid=(256,1,1) block=(640,1,1) lds={LDS_TOTAL}
.amdgcn_target "amdgcn-amd-amdhsa--gfx950"
.text
.globl {KNAME}
.p2align 8
.type {KNAME},@function
{KNAME}:
{body}
.section .rodata,"a"
.p2align 6
.amdhsa_kernel {KNAME}
  .amdhsa_next_free_vgpr 168
  .amdhsa_next_free_sgpr 102
  .amdhsa_accum_offset 168
  .amdhsa_group_segment_fixed_size 0
  .amdhsa_kernarg_size 104
  .amdhsa_user_sgpr_count 2
  .amdhsa_user_sgpr_kernarg_segment_ptr 1
  .amdhsa_system_sgpr_workgroup_id_x 1
.end_amdhsa_kernel
"""

if __name__ == "__main__":
    path = sys.argv[1]
    for a in sys.argv[2:]:
        k, v = a.split("=")
        cur = getattr(cfg, k)
        setattr(cfg, k, type(cur)(int(v)) if isinstance(cur, (bool, int)) else v.replace("+", " "))
    open(path, "w").write(build())
```

```python
import sys
KNAME = "recurrent_scan__sliding_block_cached__dense_activation_squared_relu__decode_kernel"

cfg_dbgsel = {6: [(0,0,1),(0,1,0),(1,2,1),(1,3,0),(2,4,0),(4,5,1),(4,6,0),(5,7,0)], 7: [(4,8,0),(5,9,0),(6,10,0)], 8: [(5,11,0),(6,12,1),(6,13,0),(7,14,0)]}
class Cfg:
    early = False
    ampw = -1
    ampk = 0
    ampg = -1
    dbg = False
    diag = False
    lw = 5
    lw2 = 5
    win = 20
    qlead = 7
    woe = 0
    lprio = 3
    meta4 = 1
    stA = ''
    stO = ''
    noep = 0
    omap = 1
    splitka = 0
    forcelate = 0
    cntamp = 0
    dual3 = 0
    lightg = 0
    skew = 0
    skewg = -1
    bpos = 0
    pps = 0
    trace = 0
    hack4 = 0
    slpc = 0
    vlf = 0
    cprio = 1
    touch = ''
    clean = 0
    epst = ''
    outst = ''
    nprio = 1
    late_wo = 1
    pp2 = 1
    pp3 = 1
    gap3 = 0
    epf = 1
    dirty = 0
    h3gate = 2
    h3slp = 0
    h3loop = 0
    o2loop = 0
    mark = 0
    ntmo = 3
    skip = ''
    only = 0
    pfi = 28
    slp = 0
    win2 = 20
    w2at = 4
    slead = 8
    flead = 10
    hgate = 15
    ldA = 'sc1'
    pf = 1
    first = 'sc1'
    ntK = "nt"; ntW = "nt"
    rotmul = 5
cfg = Cfg()

L_K, L_V, L_WO = 0, 65536, 131072
SCR = 147456
L_QS = SCR
L_PB = SCR + 1152
L_SB = L_PB + 2048
L_WT = L_SB + 128
L_OB = L_WT + 512
L_ACTA = L_OB + 256
L_ACTB = L_ACTA + 576
L_FL = L_ACTB + 576
L_LAND = L_FL + 64
LDS_TOTAL = L_LAND + 16 + 256
F_Q, F_K, F_P, F_V, F_T, F_WO, F_W, F_O = [4*k for k in range(8)]
W_ST, W_QP, W_HP, W_OP, B_OFF, W_SP, W_FP = 0x8000, 0x10000, 0x30000, 0x40000, 0xC0000, 0x180000, 0x1C0000
def fp_off(): return 0x200000 if cfg.dual3 else W_FP
def ws_bytes(): return 0x210000 if cfg.dual3 else WS_BYTES
WS_BYTES = 0x200000
SPIN_CAP = 1000002
LOG2E = 0x3fb8aa3b
SCALE = 0x3db504f3

sWAVE, sG, sI, sNON = 30, 31, 32, 33
sT0, sT1, sT2, sT3 = 34, 33, 40, 79
TMASK, VMASK, TB = 0x7ff, 0xfffff800, 11
SRD_WS = 36
sSLOT = 41
sRS = 42
sCAP = 43
sVB, sOFF, sBOFF = 71, 72, 73
sKEND = 70
O_LAND = 64
STAMP0 = 80

out = []
def e(s):
    for ln in s.strip("\n").split("\n"):
        out.append("    " + ln.strip() if not ln.strip().endswith(":") else ln.strip())

def estamp(k):
    if cfg.diag and cfg.early:
        e(f"s_memrealtime s[{STAMP0+2*k}:{STAMP0+2*k+1}]")
def stamp(k):
    if cfg.diag and (not cfg.early or k == 0 or k >= 6):
        e(f"s_memrealtime s[{STAMP0+2*k}:{STAMP0+2*k+1}]")

def stamps_out(n):
    if not cfg.diag: return
    if cfg.ampw >= 0:
        L = lbl("L_amp"); Ls = lbl("L_amps")
        if cfg.ampk < n:
            e(f"""
            s_waitcnt lgkmcnt(0)
            s_cmp_eq_u32 s{sWAVE}, {cfg.ampw}
            s_cbranch_scc0 {Ls}
            {f's_cmp_eq_u32 s{sG}, {cfg.ampg}; s_cbranch_scc0 {Ls}'.replace('; ', chr(10)) if cfg.ampg >= 0 else ''}
            s_sub_u32 s60, s{STAMP0+2*cfg.ampk}, s{STAMP0}
            s_min_u32 s60, s60, 20000
            s_mul_i32 s60, s60, 10
            s_memrealtime s[62:63]
            s_waitcnt lgkmcnt(0)
            {L}:
            s_memrealtime s[68:69]
            s_waitcnt lgkmcnt(0)
            s_sub_u32 s61, s68, s62
            s_cmp_lt_u32 s61, s60
            s_cbranch_scc1 {L}
            {Ls}:
            """)
        return
    if cfg.dbg:
        sel = cfg_dbgsel[n] if n in cfg_dbgsel else []
        e("s_waitcnt lgkmcnt(0)\ns_mov_b64 exec, 1\nv_mov_b32 v1, 0")
        if n == 8: e(f"s_cmp_eq_u32 s{sWAVE}, 2\ns_cbranch_scc0 L_dbgskip{len(out)}"); lab = f"L_dbgskip{len(out)-2}"
        for (k, slot, mn) in sel:
            e(f"v_mov_b32 v4, s{STAMP0+2*k}")
            if mn: e("v_not_b32 v4, v4")
            e(f"global_atomic_umax v1, v4, s[26:27] offset:{4*slot}\ns_nop 1")
        if n == 8: e(f"{lab}:")
        e("s_waitcnt vmcnt(0)")
        return
    L = lbl("L_dly")
    e(f"""
    s_waitcnt lgkmcnt(0)
    s_add_u32 s61, s{STAMP0}, 1600
    {L}:
    s_sleep 8
    s_memrealtime s[68:69]
    s_waitcnt lgkmcnt(0)
    s_cmp_lt_u32 s68, s61
    s_cbranch_scc1 {L}
    s_lshl_b32 s60, s2, 4
    s_add_u32 s60, s60, s{sWAVE}
    s_lshl_b32 s60, s60, 6
    s_add_u32 s68, s28, s60
    s_addc_u32 s69, s29, 0
    s_add_u32 s68, s68, 0x10000000
    s_addc_u32 s69, s69, 0
    s_mov_b64 exec, 1
    v_mov_b32 v1, 0
    """)
    for k in range(8):
        if k < n:
            e(f"v_mov_b32 v4, s{STAMP0+2*k}\nv_mov_b32 v5, s{STAMP0+2*k+1}")
        else:
            e(f"v_mov_b32 v4, s{STAMP0}\nv_mov_b32 v5, s{STAMP0+1}")
        e(f"global_store_dwordx2 v1, v[4:5], s[68:69] offset:{8*k}\ns_nop 1")
    e("s_waitcnt vmcnt(0)")

lblc = [0]
def lbl(p="L"):
    lblc[0] += 1
    return f"{p}_{lblc[0]}"

def flag_set(vfl, off, vval):
    e(f"s_mov_b64 exec, 1\nds_write_b32 v{vfl}, v{vval} offset:{off}\ns_mov_b64 exec, -1")
def flag_add(vfl, off, vone):
    e(f"s_mov_b64 exec, 1\nds_add_u32 v{vfl}, v{vone} offset:{off}\ns_mov_b64 exec, -1")
def spin_ge(vfl, off, target, vtmp, extra="", slp=0):
    L = lbl("L_sp")
    e(f"""{L}:
    {f's_sleep {slp}' if slp else ''}
    ds_read_b32 v{vtmp}, v{vfl} offset:{off}
    {extra}
    s_waitcnt lgkmcnt(0)
    v_cmp_le_u32 vcc, {target}, v{vtmp}
    s_cbranch_vccz {L}""")

def spin_land(sreg, vtmp, extra="", slp=0):
    L = lbl("L_sl")
    e(f"""{L}:
    {f's_sleep {slp}' if slp else ''}
    ds_read_b128 v[160:163], v1 offset:{O_LAND}
    {extra}
    s_waitcnt lgkmcnt(0)
    v_min3_i32 v160, v160, v161, v162
    v_min_i32 v160, v160, v163
    v_cmp_le_i32 vcc, s{sreg}, v160
    s_cbranch_vccz {L}""")

def get_loc(vtmp, slp=None):
    spin_ge(1, F_Q, 1, vtmp, slp=cfg.slp if slp is None else slp)
    e(f"v_readfirstlane_b32 s{sOFF}, v{vtmp}\ns_nop 3\ns_and_b32 s{sOFF}, s{sOFF}, -2")

def tag_check(regs, acc, first):
    T = [sT0, sT1, sT2, sT3]
    for k in range(4):
        if first and k == 0:
            e(f"v_xor_b32 v{acc}, s{T[0]}, v{regs}")
        else:
            e(f"v_bitop3_b32 v{acc}, v{regs+k}, s{T[k]}, v{acc} bitop3:0xbe")
def tag_branch(acc, Lretry, toggle=False, masked=False, slp=0):
    Ld = lbl("L_ok")
    e(f"""
    v_and_b32 v{acc}, v4, v{acc}
    v_cmp_ne_u32 vcc, 0, v{acc}
    s_cbranch_vccz {Ld}""")
    if masked: e("s_mov_b64 exec, vcc")
    if slp: e(f"s_sleep {slp}")
    if toggle:
        e(f"""
        s_and_b32 s{sOFF}, s{sCAP}, 3
        s_cselect_b32 s{sOFF}, 0, s{sBOFF}""")
    e(f"""
    s_sub_u32 s{sCAP}, s{sCAP}, 1
    s_cbranch_scc0 {Lretry}
    s_mov_b32 s{sCAP}, 0
    {Ld}:""")
    if masked: e("s_mov_b64 exec, -1")
def tag_insert(regs, vff):
    T = [sT0, sT1, sT2, sT3]
    for k in range(4):
        e(f"v_bfi_b32 v{regs+k}, v{vff}, s{T[k]}, v{regs+k}")

def nonce_from_epoch():
    e(f"""
    s_add_u32 s34, s34, 0x01401801
    s_addc_u32 s35, s35, 14
    s_lshr_b32 s33, s34, 11
    s_lshr_b64 s[46:47], s[34:35], 22
    s_mov_b32 s40, s46
    s_lshr_b32 s79, s35, 1
    """)

def srd(r, lo, hi, nbytes):
    pass

def reduce4_rows(x, t):
    e(f"""
    s_nop 1
    v_permlane32_swap_b32 v{x}, v{x+1}
    v_permlane32_swap_b32 v{x+2}, v{x+3}
    s_nop 0
    v_add_f32 v{x}, v{x}, v{x+1}
    v_add_f32 v{x+2}, v{x+2}, v{x+3}
    s_nop 1
    v_permlane16_swap_b32 v{x}, v{x+2}
    s_nop 0
    v_add_f32 v{x}, v{x}, v{x+2}
    """)
def dpp_add(x, rots):
    for r in rots:
        e(f"s_nop 1\nv_add_f32_dpp v{x}, v{x}, v{x} row_ror:{r} row_mask:0xf bank_mask:0xf")
def dpp_max(x, rots):
    for r in rots:
        e(f"s_nop 1\nv_max_f32_dpp v{x}, v{x}, v{x} row_ror:{r} row_mask:0xf bank_mask:0xf")
def rnd_bf16(x):
    e(f"v_cvt_pk_bf16_f32 v{x}, v{x}, v{x}\nv_and_b32 v{x}, 0xffff0000, v{x}")

def build():
    out.clear()
    stamp(0)
    nt = cfg.ntK
    W = cfg.lw; W2 = cfg.lw2
    KA2 = 's_load_dwordx8 s[20:27], s[0:1], 64' + chr(10) + 's_load_dwordx2 s[28:29], s[0:1], 96'
    e(f"""
    s_load_dwordx16 s[4:19], s[0:1], 0
    {KA2 if not cfg.splitka else ''}
    v_readfirstlane_b32 s{sWAVE}, v0
    s_cmpk_ge_u32 s2, 0x100
    s_cbranch_scc1 L_end
    v_and_b32 v0, 63, v0
    s_and_b32 s{sG}, s2, 7
    s_lshr_b32 s{sI}, s2, 3
    s_cmpk_ge_u32 s{sWAVE}, 0x100
    s_cbranch_scc1 {'L_nl0' if cfg.splitka else 'L_notloader'}
    v_lshrrev_b32 v12, 3, v0
    s_lshl_b32 s64, s{sWAVE}, 4
    {"s_getpc_b64 s[48:49]; v_lshl_add_u32 v13, v12, 7, s64; global_load_dword v166, v13, s[48:49]".replace("; ", chr(10)) if cfg.epf else ""}
    v_and_b32 v13, 7, v0
    v_and_b32 v14, 2, v12
    v_xor_b32 v13, v13, v14
    v_lshlrev_b32 v13, 4, v13
    s_and_b32 s63, s{sWAVE}, 64
    v_xor_b32 v13, s63, v13
    v_lshl_add_u32 v10, v12, 13, v13
    s_lshr_b32 s45, s2, 6
    s_lshl_b32 s45, s45, 20
    s_and_b32 s46, s{sI}, 7
    s_lshl3_add_u32 s46, s{sG}, s46
    s_lshl_b32 s46, s46, 7
    s_add_u32 s45, s45, s46
    s_mov_b32 s58, {127*8192+128}
    s_mov_b32 s59, 0x20000
    s_lshl4_add_u32 m0, s{sWAVE}, {L_WO}
    s_lshl_b32 s47, s{sWAVE}, 10
    s_waitcnt lgkmcnt(0)
    s_add_u32 s56, s10, s45
    s_addc_u32 s57, s11, 0
    {'s_memrealtime s[82:83]' if cfg.early else ''}
    L_ldA:
    buffer_load_dwordx4 v10, s[56:59], s47 offen {cfg.ntW} lds
    s_addk_i32 m0, 0x1000
    s_add_u32 s47, s47, 0x40000
    s_bitcmp0_b32 s47, 20
    s_cbranch_scc1 L_ldA
    {'s_memrealtime s[84:85]' if cfg.early else ''}
    {KA2 if cfg.splitka else ''}
    s_branch L_ld2
    {('L_nl0:' + chr(10) + KA2 + chr(10) + 's_branch L_notloader') if cfg.splitka else ''}
    .p2align 8
    """)
    e(f"""L_notloader:
    v_mov_b32 v1, {L_FL}
    v_mov_b32 v5, 0
    v_lshl_add_u32 v6, v0, 2, v1
    ds_write_b32 v6, v5
    s_lshr_b32 s{sWAVE}, s{sWAVE}, 6
    """)
    if cfg.pf:
        e(f"""
        s_cmp_eq_u32 s{sWAVE}, 9
        s_cbranch_scc0 L_nopf
        s_getpc_b64 s[46:47]
        L_pc:
        s_mul_i32 s45, s{sI}, {2 if cfg.epf else 3}
        {'s_add_u32 s45, s45, 30' if cfg.epf else ''}
        v_min_u32 v5, {1 if cfg.epf else 2}, v0
        v_add_u32 v5, s45, v5
        v_lshlrev_b32 v5, 7, v5
        v_min_u32 v5, L_codeend-L_pc-4, v5
        global_load_dword v166, v5, s[46:47]
        L_nopf:""")
    e(f"""
    v_lshlrev_b32 v5, 5, v0
    s_cmp_ge_u32 s{sWAVE}, 6
    s_waitcnt lgkmcnt(0)
    s_load_dwordx2 s[34:35], s[28:29], 0
    s_cbranch_scc1 L_nox
    global_load_dwordx4 v[8:11], v5, s[4:5]
    global_load_dwordx4 v[12:15], v5, s[4:5] offset:16
    L_nox:
    s_barrier
    s_branch L_nl2
    """)
    def flagw():
        e("ds_write_b32 v16, v15\nv_add_u32 v15, 1, v15")
        if cfg.trace:
            e("s_memrealtime s[66:67]\ns_waitcnt lgkmcnt(0)\ns_mov_b64 s[68:69], exec\ns_lshl_b64 exec, 1, s70\nv_mov_b32 v20, s66\ns_mov_b64 exec, s[68:69]\ns_add_u32 s70, s70, 1")
    e(f"""L_ld2:
    s_mul_i32 s44, s2, {cfg.rotmul}
    s_bfe_u32 s{sRS}, s44, 0x20002
    v_and_b32 v2, 15, v0
    v_lshrrev_b32 v3, 4, v0
    s_add_u32 s62, s{sRS}, 3
    s_and_b32 s62, s62, 3
    s_add_u32 s62, s62, 4
    s_lshl_b32 s62, s62, 14
    v_mov_b32 v1, {L_FL}
    s_lshr_b32 s45, s{sWAVE}, 4
    s_add_u32 s45, s45, {L_LAND}
    v_lshl_add_u32 v16, v0, 2, v1
    v_add_u32 v16, {O_LAND+16}, v16
    v_writelane_b32 v16, s45, 0
    v_mov_b32 v15, {5-W}
    {"s_mov_b32 s70, 0; v_mov_b32 v20, 0".replace("; ", chr(10)) if cfg.trace else ""}
    s_setprio {cfg.lprio}
    {'s_waitcnt lgkmcnt(0)' if cfg.splitka else ''}
    s_barrier
    """)
    estamp(3)
    if cfg.early:
        e("s_waitcnt vmcnt(3)"); estamp(4); e("s_waitcnt vmcnt(0)"); estamp(5)
    stamp(1)
    def Bblock():
        e(f"""
        s_add_u32 s67, s{sG}, {7 - cfg.lightg}
        s_and_b32 s67, s67, 7
        s_cmp_lt_u32 s67, 7
        s_cbranch_scc0 L_ld_noB
        s_add_u32 m0, s62, s64
        s_and_b32 s65, s{sI}, 15
        s_lshl4_add_u32 s65, s67, s65
        s_cmp_lt_u32 s{sI}, 16
        s_cbranch_scc0 L_ld_w2
        s_and_b32 s45, s65, 3
        s_mul_i32 s45, s45, {128*3584}
        s_lshr_b32 s46, s65, 2
        s_lshl_b32 s46, s46, 7
        s_add_u32 s45, s45, s46
        s_add_u32 s56, s16, s45
        s_addc_u32 s57, s17, 0
        v_mul_u32_u24 v10, 3584, v12
        v_add_u32 v10, v10, v13
        s_mul_i32 s47, s64, 28
        s_mov_b32 s46, {32*3584}
        s_branch L_ld_B
        L_ld_w2:
        s_lshr_b32 s45, s65, 3
        s_lshl_b32 s45, s45, 17
        s_and_b32 s46, s65, 7
        s_lshl_b32 s46, s46, 7
        s_add_u32 s45, s45, s46
        s_add_u32 s56, s20, s45
        s_addc_u32 s57, s21, 0
        v_lshl_add_u32 v10, v12, 10, v13
        s_lshl_b32 s47, s64, 3
        s_mov_b32 s46, 0x8000
        L_ld_B:
        s_sub_u32 s58, {512*1792*2}, s45
        s_mov_b32 s60, 0
        L_ldB:
        s_waitcnt vmcnt({W-1})
        buffer_load_dwordx4 v10, s[56:59], s47 offen {cfg.ntW} lds
        s_addk_i32 m0, 0x1000
        s_add_u32 s47, s47, s46""")
        flagw()
        e(f"""
        s_add_u32 s60, s60, 1
        s_cmp_lt_u32 s60, 4
        s_cbranch_scc1 L_ldB
        L_ld_noB:
        """)
    def Kblock():
        e(f"""
        v_lshlrev_b32 v14, 8, v3
        v_xor_b32 v17, v3, v2
        v_lshl_add_u32 v4, v17, 4, v14
        v_xor_b32 v4, s{sWAVE}, v4
        s_lshr_b32 s45, s{sI}, 4
        s_lshl_b32 s45, s45, 26
        s_lshl_b32 s46, s{sG}, 23
        s_add_u32 s45, s45, s46
        s_and_b32 s46, s{sI}, 15
        s_lshl_b32 s46, s46, 16
        s_add_u32 s45, s45, s46
        s_add_u32 s45, s45, {28672*256}
        s_mov_b32 s50, 0x10000
        s_mov_b32 s51, 0x20000
        s_add_u32 s48, s6, s45
        s_addc_u32 s49, s7, 0
        s_mov_b32 s60, 0
        s_and_b32 s61, s44, 3
        L_ldK:
        s_lshr_b32 s47, s60, 2
        s_add_u32 s47, s47, s{sRS}
        s_and_b32 s47, s47, 3
        s_add_u32 s62, s61, s60
        s_and_b32 s62, s62, 3
        s_lshl2_add_u32 s47, s47, s62
        s_lshl_b32 s47, s47, 12
        s_add_u32 s47, s47, s64
        s_mov_b32 m0, s47
        s_add_u32 s60, s60, 1
        s_waitcnt vmcnt({W-1})
        buffer_load_dwordx4 v4, s[48:51], s47 offen {nt} lds""")
        flagw()
        e(f"""
        s_cmp_lt_u32 s60, 16
        s_cbranch_scc1 L_ldK
        """)
    if cfg.bpos:
        Kblock(); e("s_mov_b32 s66, s45"); Bblock(); e("s_mov_b32 s45, s66")
    else:
        Bblock(); Kblock()
    stamp(2)
    e(f"""
    v_lshlrev_b32 v17, 1, v3
    v_xor_b32 v17, v17, v2
    v_lshl_add_u32 v8, v17, 4, v14
    s_lshl_b32 s63, s63, 1
    v_xor_b32 v8, s63, v8
    v_lshlrev_b32 v14, 10, v3
    v_lshl_add_u32 v10, v17, 4, v14
    s_and_b32 s63, s{sWAVE}, 0x80
    v_xor_b32 v10, s63, v10
    s_add_u32 s52, s8, s45
    s_addc_u32 s53, s9, 0
    s_mov_b32 s54, 0x10000
    s_mov_b32 s55, 0x20000
    s_mov_b32 s60, 0
    s_and_b32 s61, s44, 3
    """)
    def vloop(name, end, win, noflag=False):
        e(f"""{name}:
        s_lshr_b32 s47, s60, 2
        s_add_u32 s47, s47, s{sRS}
        s_and_b32 s47, s47, 3
        s_add_u32 s62, s61, s60
        s_and_b32 s62, s62, 3
        s_lshl2_add_u32 s47, s47, s62
        s_lshl_b32 s47, s47, 12
        s_add_u32 s47, s47, s64
        s_add_u32 m0, s47, {L_V}
        s_add_u32 s60, s60, 1
        s_waitcnt vmcnt({win-1})
        buffer_load_dwordx4 v8, s[52:55], s47 offen {nt} lds""")
        if not noflag: flagw()
        e(f"""
        s_cmp_lt_u32 s60, {end}
        s_cbranch_scc1 {name}
        """)
    def woloop(name, g0, g1):
        if g0 == g1: return
        e(f"""
        s_add_u32 m0, s64, {L_WO + 4096*g0}
        s_lshl_b32 s47, s64, 2
        s_add_u32 s47, s47, {0x20000*g0}
        {name}:
        s_waitcnt vmcnt({W2-1})
        buffer_load_dwordx4 v10, s[56:59], s47 offen {cfg.ntW} lds
        s_addk_i32 m0, 0x1000
        s_add_u32 s47, s47, 0x20000""")
        flagw()
        e(f"""
        s_cmp_lt_u32 s47, {0x20000*g1}
        s_cbranch_scc1 {name}""")
    if W2 > W:
        assert cfg.w2at + (W2 - W) <= 12
        if cfg.w2at > 0: vloop("L_ldV0", cfg.w2at, W)
        vloop("L_ldV0b", cfg.w2at + W2 - W, W2, noflag=True)
        if cfg.w2at + W2 - W < 12: vloop("L_ldV1", 12, W2)
    elif W2 < W:
        vloop("L_ldV0", cfg.w2at, W)
        for k in range(W - W2):
            e(f"s_waitcnt vmcnt({W-1-k})")
            flagw()
        if cfg.w2at < 12: vloop("L_ldV1", 12, W2)
    else:
        vloop("L_ldV1", 12, W)
    e(f"""
    s_lshl_b32 s45, s{sG}, 19
    s_lshr_b32 s46, s{sI}, 2
    s_lshl_b32 s46, s46, 14
    s_add_u32 s45, s45, s46
    s_and_b32 s46, s{sI}, 3
    s_lshl_b32 s46, s46, 8
    s_add_u32 s45, s45, s46
    s_add_u32 s56, s12, s45
    s_addc_u32 s57, s13, 0
    s_mov_b32 s58, {(3*128+15)*1024+256}
    """)
    spin_ge(1, F_T, 2, 17)
    woloop("L_ldWO1", 0, cfg.woe)
    vloop("L_ldV2", 16, W2)
    woloop("L_ldWO2", cfg.woe, 4)
    stamp(3)
    if cfg.vlf:
        assert W2 - 1 >= 4 - cfg.woe
        e("v_mov_b32 v18, 1\ns_mov_b64 exec, 1")
    for k in range(W2-1, -1, -1):
        e(f"s_waitcnt vmcnt({k})")
        if k == 4 - cfg.woe and cfg.vlf: e(f"ds_add_u32 v1, v18 offset:{F_WO}")
        flagw()
        if k == 4 - cfg.woe: stamp(4)
    stamp(5)
    if cfg.trace:
        e(f"""s_mov_b64 exec, -1
        s_lshl_b32 s60, s2, 10
        s_lshl_b32 s61, s{sWAVE}, 2
        s_add_u32 s60, s60, s61
        s_add_u32 s68, s28, s60
        s_addc_u32 s69, s29, 0
        s_add_u32 s68, s68, 0x18000000
        s_addc_u32 s69, s69, 0
        v_lshlrev_b32 v21, 2, v0
        global_store_dword v21, v20, s[68:69]""")
    if cfg.diag: e(f"s_lshr_b32 s{sWAVE}, s{sWAVE}, 6")
    stamps_out(6)
    e("s_endpgm")

    e(f"""L_nl2:
    {f"s_mov_b64 exec, 1; v_mov_b32 v5, 2; ds_write_b32 v1, v5 offset:{F_T}; s_waitcnt vmcnt(0) lgkmcnt(0); s_endpgm".replace("; ", chr(10)) if cfg.only == 1 else ""}
    s_setprio {cfg.nprio}
    v_and_b32 v2, 15, v0
    v_lshrrev_b32 v3, 4, v0
    s_mul_i32 s44, s2, {cfg.rotmul}
    s_bfe_u32 s{sRS}, s44, 0x20002
    s_lshl_b32 s{sSLOT}, s{sG}, 5
    s_add_u32 s{sSLOT}, s{sSLOT}, s{sI}
    s_mov_b32 s{sCAP}, {SPIN_CAP}
    s_add_u32 s68, s{sG}, {7 - cfg.lightg}
    s_and_b32 s68, s68, 7
    s_cmp_lt_u32 s68, 7
    s_cselect_b32 s{sVB}, 24, 20
    s_mov_b32 s{sKEND}, {'20' if cfg.bpos else f's{sVB}'}
    v_mov_b32 v4, {TMASK}
    s_mov_b32 s{SRD_WS}, s28
    s_mov_b32 s{SRD_WS+1}, s29
    s_mov_b32 s{SRD_WS+2}, {ws_bytes()}
    s_mov_b32 s{SRD_WS+3}, 0x20000
    s_mov_b32 s{sOFF}, 0
    s_mov_b32 s{sBOFF}, {B_OFF}
    s_cmp_ge_u32 s{sWAVE}, 6
    s_cbranch_scc1 L_compute
    """)
    e(f"""
    s_cmp_eq_u32 s{sWAVE}, 4
    s_cbranch_scc0 L_roleB
    s_mov_b32 s44, 0
    s_lshr_b32 s53, s{sI}, 3
    s_lshl_b32 s52, s{sSLOT}, 9
    s_add_u32 s52, s52, {W_QP}
    s_mov_b32 s54, {L_WO}
    s_mov_b32 s55, {L_ACTA}
    s_mov_b32 s45, 4
    s_branch L_tilecommon
    L_roleB:
    s_add_u32 s54, s{sRS}, 3
    s_and_b32 s54, s54, 3
    s_add_u32 s54, s54, 4
    s_lshl_b32 s54, s54, 14
    s_mov_b32 s55, {L_ACTB}
    s_mov_b32 s45, {24 if cfg.bpos else 8}
    s_and_b32 s52, s{sI}, 15
    s_lshl4_add_u32 s52, s68, s52
    s_lshr_b32 s44, s{sI}, 4
    s_and_b32 s53, s52, 3
    s_lshr_b32 s46, s52, 3
    s_lshl_b32 s52, s52, 9
    s_cmp_eq_u32 s44, 0
    s_cselect_b32 s53, s53, s46
    s_mov_b32 s46, {fp_off()}
    s_cselect_b32 s46, {W_HP}, s46
    s_add_u32 s52, s52, s46
    s_cmp_eq_u32 s68, 7
    s_cselect_b32 s44, 2, s44
    L_tilecommon:
    """)
    estamp(2)
    stamp(1)
    e(f"""
    v_lshrrev_b32 v5, 2, v2
    v_lshl_add_u32 v5, v3, 3, v5
    v_lshlrev_b32 v5, 7, v5
    v_and_b32 v6, 3, v2
    v_lshl_add_u32 v5, v6, 3, v5
    v_add_u32 v5, s54, v5
    v_lshrrev_b32 v6, 3, v2
    v_and_b32 v7, 1, v3
    v_lshl_or_b32 v6, v7, 1, v6
    """)
    for u in range(4):
        e(f"v_xor_b32 v7, {u}, v6\nv_lshl_add_u32 v{16+u}, v7, 5, v5")
    e(f"""
    v_and_b32 v5, 1, v0
    v_mul_u32_u24 v5, 288, v5
    v_lshl_add_u32 v5, v3, 4, v5
    v_add_u32 v20, s55, v5
    v_mov_b32 v21, 1
    v_mov_b32 v60, 0
    s_waitcnt lgkmcnt(0)
    """)
    nonce_from_epoch()
    e(f"""
    s_cmp_eq_u32 s44, 0
    s_waitcnt vmcnt(0)
    s_cbranch_scc0 L_noLN
    """)
    estamp(4)
    for k in range(8):
        e(f"v_lshlrev_b32 v{24+2*k}, 16, v{8+k}\nv_and_b32 v{25+2*k}, 0xffff0000, v{8+k}")
    e("v_pk_add_f32 v[40:41], v[24:25], v[26:27]")
    for k in range(2, 8):
        e(f"v_pk_add_f32 v[40:41], v[40:41], v[{24+2*k}:{25+2*k}]")
    e("v_add_f32 v40, v40, v41")
    dpp_add(40, (8, 4, 2, 1))
    e("v_mov_b32 v41, v40\ns_nop 1\nv_permlane16_swap_b32 v40, v41\ns_nop 0\nv_add_f32 v40, v40, v41")
    e("v_mul_f32 v40, 0xbb000000, v40\nv_mov_b32 v41, v40")
    e("v_pk_add_f32 v[42:43], v[24:25], v[40:41]\nv_pk_mul_f32 v[44:45], v[42:43], v[42:43]")
    for k in range(1, 8):
        e(f"v_pk_add_f32 v[42:43], v[{24+2*k}:{25+2*k}], v[40:41]\nv_pk_fma_f32 v[44:45], v[42:43], v[42:43], v[44:45]")
    e("v_add_f32 v44, v44, v45")
    dpp_add(44, (8, 4, 2, 1))
    e("v_mov_b32 v45, v44\ns_nop 1\nv_permlane16_swap_b32 v44, v45\ns_nop 0\nv_add_f32 v44, v44, v45")
    e("v_mul_f32 v44, 0x3b000000, v44")
    rnd_bf16(44)
    e("v_add_f32 v44, 0x3727c5ac, v44")
    rnd_bf16(44)
    e("v_sqrt_f32 v44, v44\ns_nop 0")
    rnd_bf16(44)
    e("v_rcp_f32 v44, v44")
    rnd_bf16(40)
    e("v_mov_b32 v41, v40\nv_mov_b32 v45, v44")
    for k in range(8):
        e(f"v_pk_add_f32 v[42:43], v[{24+2*k}:{25+2*k}], v[40:41]")
        e(f"v_cvt_pk_bf16_f32 v42, v42, v43\nv_and_b32 v43, 0xffff0000, v42\nv_lshlrev_b32 v42, 16, v42")
        e(f"v_pk_mul_f32 v[42:43], v[42:43], v[44:45]\nv_cvt_pk_bf16_f32 v{8+k}, v42, v43")
    e(f"""
    v_bfe_u32 v5, v0, 3, 2
    v_lshrrev_b32 v6, 5, v0
    v_mul_u32_u24 v6, 288, v6
    v_and_b32 v7, 7, v0
    v_lshl_add_u32 v6, v7, 5, v6
    v_add_u32 v6, s55, v6
    v_cmp_eq_u32 vcc, s53, v5
    s_and_saveexec_b64 s[56:57], vcc
    ds_write_b128 v6, v[8:11]
    ds_write_b128 v6, v[12:15] offset:16
    s_mov_b64 exec, -1
    L_noLN:
    """)
    stamp(2)
    e(f"""
    s_cmp_eq_u32 s44, 2
    s_cbranch_scc1 L_notile
    """)
    spin_land(45, 5, slp=cfg.slp)
    estamp(5)
    for u in range(4):
        for t in range(4):
            r = 64 + 16*u + 4*t
            e(f"ds_read_b64_tr_b16 v[{r}:{r+1}], v{16+u} offset:{t*4096}")
            e(f"ds_read_b64_tr_b16 v[{r+2}:{r+3}], v{16+u} offset:{t*4096+512}")
    e(f"""
    s_waitcnt lgkmcnt(0)
    L_notile:
    """)
    flag_add(1, F_T, 21)
    stamp(3)
    e(f"""
    s_cmp_eq_u32 s44, 1
    s_cbranch_scc0 L_noH
    """)
    e(f"""
    v_bfe_u32 v5, v0, 4, 1
    v_lshlrev_b32 v5, 11, v5
    v_lshrrev_b32 v6, 5, v0
    v_lshl_add_u32 v5, v6, 8, v5
    v_lshl_add_u32 v5, v2, 4, v5
    s_lshl_b32 s56, s53, 12
    s_add_u32 s56, s56, {W_HP}
    v_add_u32 v5, s56, v5
    v_and_b32 v7, 31, v0
    v_lshlrev_b32 v7, 3, v7
    s_lshl_b32 s56, s53, 8
    v_add_u32 v22, s56, v7
    global_load_dwordx2 v[22:23], v22, s[18:19]
    v_mul_u32_u24 v6, 288, v6
    v_add3_u32 v6, v6, v7, s55
    """)
    e(f"s_mov_b32 s45, {cfg.hgate}")
    spin_land(45, 7, slp=cfg.slp)
    e("L_hretry:")
    for k in range(4):
        e(f"buffer_load_dwordx4 v[{24+4*k}:{27+4*k}], v5, s[{SRD_WS}:{SRD_WS+3}], s{sOFF} offen offset:{512*k} sc1")
    e("s_waitcnt vmcnt(0)")
    for k in range(4): tag_check(24+4*k, 7, k == 0)
    e(f"""
    v_and_b32 v7, v4, v7
    v_cmp_ne_u32 vcc, 0, v7
    s_cbranch_vccz L_hok""")
    get_loc(7)
    e(f"""
    s_sub_u32 s{sCAP}, s{sCAP}, 1
    s_cbranch_scc0 L_hretry
    s_mov_b32 s{sCAP}, 0
    L_hok:""")
    for k in range(16): e(f"v_and_b32 v{24+k}, 0xfffff800, v{24+k}")
    e("""
    v_pk_add_f32 v[24:25], v[24:25], v[28:29]
    v_pk_add_f32 v[26:27], v[26:27], v[30:31]
    v_pk_add_f32 v[32:33], v[32:33], v[36:37]
    v_pk_add_f32 v[34:35], v[34:35], v[38:39]
    v_pk_add_f32 v[24:25], v[24:25], v[32:33]
    v_pk_add_f32 v[26:27], v[26:27], v[34:35]
    v_cvt_pk_bf16_f32 v24, v24, v25
    v_cvt_pk_bf16_f32 v26, v26, v27
    v_and_b32 v25, 0xffff0000, v24
    v_lshlrev_b32 v24, 16, v24
    v_and_b32 v27, 0xffff0000, v26
    v_lshlrev_b32 v26, 16, v26
    v_lshlrev_b32 v28, 16, v22
    v_and_b32 v29, 0xffff0000, v22
    v_lshlrev_b32 v30, 16, v23
    v_and_b32 v31, 0xffff0000, v23
    v_pk_add_f32 v[24:25], v[24:25], v[28:29]
    v_pk_add_f32 v[26:27], v[26:27], v[30:31]
    v_cvt_pk_bf16_f32 v24, v24, v25
    v_cvt_pk_bf16_f32 v26, v26, v27
    v_and_b32 v25, 0xffff0000, v24
    v_lshlrev_b32 v24, 16, v24
    v_and_b32 v27, 0xffff0000, v26
    v_lshlrev_b32 v26, 16, v26
    v_max_f32 v24, 0, v24
    v_max_f32 v25, 0, v25
    v_max_f32 v26, 0, v26
    v_max_f32 v27, 0, v27
    v_pk_mul_f32 v[24:25], v[24:25], v[24:25]
    v_pk_mul_f32 v[26:27], v[26:27], v[26:27]
    v_cvt_pk_bf16_f32 v24, v24, v25
    v_cvt_pk_bf16_f32 v25, v26, v27
    ds_write_b64 v6, v[24:25]
    L_noH:
    s_cmp_eq_u32 s44, 2
    s_cbranch_scc1 L_nopub
    """)
    e("s_waitcnt lgkmcnt(0)")
    for t in range(4):
        e(f"ds_read_b128 v[{24+4*t}:{27+4*t}], v20 offset:{64*t}")
    e(f"""
    s_cmp_eq_u32 s44, 0
    s_cselect_b32 s56, 8, 4
    s_cselect_b32 s57, 6, 5
    s_cselect_b32 s58, 4, 7
    v_and_b32 v5, 1, v0
    v_lshlrev_b32 v5, s56, v5
    v_bfe_u32 v6, v0, 1, 2
    v_lshl_add_u32 v5, v6, s57, v5
    v_lshl_add_u32 v5, v3, s58, v5
    v_add_u32 v60, s52, v5
    v_and_b32 v6, 2, v0
    v_cmp_ne_u32 s[56:57], 0, v6
    v_and_b32 v6, 4, v0
    v_cmp_ne_u32 s[58:59], 0, v6
    s_waitcnt lgkmcnt(0)
    """)
    for t in range(4):
        for u in range(4):
            r = 64 + 16*u + 4*t
            c = f"v[{40+4*u}:{43+4*u}]"
            e(f"v_mfma_f32_16x16x32_bf16 {c}, v[{r}:{r+3}], v[{24+4*t}:{27+4*t}], {c if t else 0}")
    e("s_nop 7")
    for k in range(4):
        e(f"v_cndmask_b32 v{40+k}, v{40+k}, v{44+k}, s[56:57]")
    for k in range(4):
        e(f"v_cndmask_b32 v{48+k}, v{48+k}, v{52+k}, s[56:57]")
    for k in range(4):
        e(f"v_cndmask_b32 v{56+k}, v{40+k}, v{48+k}, s[58:59]")
    for k in range(4): e(f"v_add_u32 v{56+k}, 0x400, v{56+k}")
    tag_insert(56, 4)
    e(f"""
    s_mov_b32 s74, 0x00ff00ff
    s_mov_b32 s75, 0x00ff00ff
    s_mov_b64 exec, s[74:75]
    s_cmp_eq_u32 s44, 0
    s_cbranch_scc0 L_pubB
    buffer_store_dwordx4 v[56:59], v60, s[{SRD_WS}:{SRD_WS+3}], 0 offen {cfg.stA}
    s_branch L_pubE
    L_pubB:
    buffer_store_dwordx4 v[56:59], v60, s[{SRD_WS}:{SRD_WS+3}], 0 offen sc1
    L_pubE:
    s_mov_b64 exec, -1
    L_nopub:
    """)
    stamp(4)
    e(f"""
    s_cmp_eq_u32 s{sWAVE}, 4
    s_cbranch_scc0 L_final
    """)
    e(f"""
    v_lshlrev_b32 v10, 9, v3
    v_lshl_add_u32 v10, v2, 4, v10
    s_lshl_b32 s56, s{sG}, 14
    s_lshr_b32 s57, s{sI}, 4
    s_lshl_b32 s57, s57, 8
    s_add_u32 s56, s56, s57
    s_add_u32 s56, s56, {W_QP}
    v_add_u32 v10, s56, v10
    v_add_u32 v11, 0x1000, v10
    v_add_u32 v12, 0x2000, v10
    v_add_u32 v13, 0x3000, v10
    v_lshrrev_b32 v8, 5, v0
    v_lshlrev_b32 v8, 5, v8
    v_lshl_add_u32 v8, v0, 3, v8
    v_add_u32 v8, {L_QS}, v8
    s_sub_u32 s45, s{sKEND}, {cfg.qlead}
    s_getreg_b32 s76, hwreg(HW_REG_XCC_ID, 0, 4)
    s_lshl_b32 s56, s76, 16
    v_mov_b32 v64, s56
    v_mov_b32 v65, 0
    v_mov_b32 v66, 0
    v_mov_b32 v67, 0
    s_lshl_b32 s56, s{sSLOT}, 7
    s_add_u32 s56, s56, {W_ST+64}
    {'v_lshl_add_u32 v61, v0, 4, s56' if cfg.meta4 else 'v_mov_b32 v61, s56'}
    v_and_b32 v62, 31, v0
    v_lshlrev_b32 v62, 7, v62
    s_lshl_b32 s56, s{sG}, 12
    s_add_u32 s56, s56, {W_ST+64}
    v_add_u32 v62, s56, v62
    s_mov_b32 s77, 0
    s_mov_b32 s78, 0
    """)
    tag_insert(64, 4)
    e(f"""
    s_mov_b64 exec, {15 if cfg.meta4 else 1}
    buffer_store_dwordx4 v[64:67], v61, s[{SRD_WS}:{SRD_WS+3}], 0 offen {cfg.stA}
    s_mov_b64 exec, -1
    """)
    def pubB_q():
        L = lbl("L_pb")
        e(f"""
        s_cmp_eq_u32 s77, 0
        s_cbranch_scc0 {L}
        s_mov_b32 s77, 1
        s_mov_b64 exec, s[74:75]
        buffer_store_dwordx4 v[56:59], v60, s[{SRD_WS}:{SRD_WS+3}], s{sBOFF} offen sc1
        s_mov_b64 exec, 1
        buffer_store_dwordx4 v[64:67], v61, s[{SRD_WS}:{SRD_WS+3}], s{sBOFF} offen sc1
        s_mov_b64 exec, -1
        {L}:""")
    spin_land(45, 7, slp=cfg.slp)
    e("L_qretry:")
    for v in range(2):
        for k in range(4):
            r = 24 + 16*v + 4*k
            e(f"buffer_load_dwordx4 v[{r}:{r+3}], v{10+k}, s[{SRD_WS}:{SRD_WS+3}], s{sOFF} offen offset:{2048*v} {cfg.ldA}")
    e(f"buffer_load_dwordx4 v[68:71], v62, s[{SRD_WS}:{SRD_WS+3}], s{sOFF} offen {cfg.ldA}")
    e("s_waitcnt vmcnt(0)")
    for k in range(8): tag_check(24+4*k, 7, k == 0)
    tag_check(68, 7, False)
    e(f"""
    v_and_b32 v7, v4, v7
    v_cmp_ne_u32 vcc, 0, v7
    s_cbranch_vccz L_qok
    s_add_u32 s78, s78, 1
    s_cmp_lt_u32 s78, {cfg.ntmo}
    s_cbranch_scc1 L_qretry
    s_xor_b32 s{sOFF}, s{sOFF}, s{sBOFF}
    """)
    pubB_q()
    e(f"""
    s_sub_u32 s{sCAP}, s{sCAP}, 1
    s_cbranch_scc0 L_qretry
    s_mov_b32 s{sCAP}, 0
    L_qok:
    v_lshrrev_b32 v68, 16, v68
    v_cmp_ne_u32 vcc, s76, v68
    s_mov_b32 s{sOFF}, 0
    s_cbranch_vccz L_qloc
    s_mov_b32 s{sOFF}, s{sBOFF}
    """)
    pubB_q()
    e(f"""L_qloc:
    s_add_u32 s56, s{sOFF}, 1
    v_mov_b32 v9, s56
    """)
    for k in range(32): e(f"v_and_b32 v{24+k}, 0xfffff800, v{24+k}")
    for v in range(2):
        r = 24 + 16*v
        e(f"""
        v_pk_add_f32 v[{r}:{r+1}], v[{r}:{r+1}], v[{r+4}:{r+5}]
        v_pk_add_f32 v[{r+2}:{r+3}], v[{r+2}:{r+3}], v[{r+6}:{r+7}]
        v_pk_add_f32 v[{r+8}:{r+9}], v[{r+8}:{r+9}], v[{r+12}:{r+13}]
        v_pk_add_f32 v[{r+10}:{r+11}], v[{r+10}:{r+11}], v[{r+14}:{r+15}]
        v_pk_add_f32 v[{r}:{r+1}], v[{r}:{r+1}], v[{r+8}:{r+9}]
        v_pk_add_f32 v[{r+2}:{r+3}], v[{r+2}:{r+3}], v[{r+10}:{r+11}]
        v_cvt_pk_bf16_f32 v{r}, v{r}, v{r+1}
        v_cvt_pk_bf16_f32 v{r+1}, v{r+2}, v{r+3}
        ds_write_b64 v8, v[{r}:{r+1}] offset:{576*v}
        """)
    flag_set(1, F_Q, 9)
    stamp(5)
    e(f"""
    v_and_b32 v5, 31, v0
    v_lshrrev_b32 v6, 5, v0
    v_lshlrev_b32 v9, 4, v5
    v_lshl_add_u32 v9, v6, 2, v9
    v_add_u32 v9, {L_WT}, v9
    v_lshlrev_b32 v5, 7, v5
    v_lshl_add_u32 v5, v6, 4, v5
    s_lshl_b32 s56, s{sG}, 12
    s_add_u32 s56, s56, {W_ST}
    v_add_u32 v5, s56, v5
    """)
    if cfg.slead > 0:
        e(f"s_add_u32 s45, s{sVB}, {cfg.slead}")
        spin_land(45, 7, slp=cfg.slp)
    spin_ge(1, F_V, 4, 7, slp=cfg.slp)
    def lds_(r):
        e(f"""
        buffer_load_dwordx4 v[{r}:{r+3}], v5, s[{SRD_WS}:{SRD_WS+3}], s{sOFF} offen {cfg.ldA}
        buffer_load_dwordx4 v[{r+4}:{r+7}], v5, s[{SRD_WS}:{SRD_WS+3}], s{sOFF} offen offset:32 {cfg.ldA}""")
    if cfg.pps:
        def chks(r, L):
            tag_check(r, 7, True); tag_check(r+4, 7, False)
            e(f"v_and_b32 v7, v4, v7\nv_cmp_ne_u32 vcc, 0, v7\ns_cbranch_vccz {L}")
        lds_(32)
        e(f"s_add_u32 s45, s45, {cfg.pps}")
        spin_land(45, 7, slp=cfg.slp)
        lds_(40)
        e("s_mov_b64 s[62:63], -1\nL_sp2:\ns_waitcnt vmcnt(2)")
        chks(32, "L_sX")
        e("s_mov_b64 s[60:61], vcc\ns_mov_b64 exec, vcc")
        lds_(32)
        e("s_mov_b64 exec, s[62:63]\ns_waitcnt vmcnt(2)")
        chks(40, "L_sY")
        e("s_mov_b64 s[62:63], vcc\ns_mov_b64 exec, vcc")
        lds_(40)
        e(f"""
        s_mov_b64 exec, s[60:61]
        s_sub_u32 s{sCAP}, s{sCAP}, 1
        s_cbranch_scc0 L_sp2
        s_mov_b32 s{sCAP}, 0
        s_waitcnt vmcnt(0)
        L_sY:
        s_mov_b64 exec, -1""")
        for k in (0, 1, 4, 5): e(f"v_mov_b32 v{24+k}, v{40+k}")
        e("s_branch L_sj\nL_sX:\ns_mov_b64 exec, -1")
        for k in (0, 1, 4, 5): e(f"v_mov_b32 v{24+k}, v{32+k}")
        e("L_sj:")
    else:
        e("L_sretry:")
        lds_(24)
        e("s_waitcnt vmcnt(0)")
        tag_check(24, 7, True); tag_check(28, 7, False)
        tag_branch(7, "L_sretry", masked=True)
    e("""
    v_and_b32 v24, 0xfffff800, v24
    v_and_b32 v28, 0xfffff800, v28
    v_and_b32 v25, 0xfffff800, v25
    v_and_b32 v29, 0xfffff800, v29
    v_max_f32_dpp v26, v24, v24 row_ror:8 row_mask:0xf bank_mask:0xf
    v_max_f32_dpp v30, v28, v28 row_ror:8 row_mask:0xf bank_mask:0xf""")
    for r in (4, 2, 1):
        e(f"""s_nop 0
        v_max_f32_dpp v26, v26, v26 row_ror:{r} row_mask:0xf bank_mask:0xf
        v_max_f32_dpp v30, v30, v30 row_ror:{r} row_mask:0xf bank_mask:0xf""")
    e(f"""
    v_sub_f32 v24, v24, v26
    v_sub_f32 v28, v28, v30
    v_mul_f32 v24, {LOG2E}, v24
    v_mul_f32 v28, {LOG2E}, v28
    v_exp_f32 v24, v24
    v_exp_f32 v28, v28
    s_nop 0
    v_mul_f32 v25, v24, v25
    v_mul_f32 v29, v28, v29""")
    for r in (8, 4, 2, 1):
        e(f"""s_nop 0
        v_add_f32_dpp v25, v25, v25 row_ror:{r} row_mask:0xf bank_mask:0xf
        v_add_f32_dpp v29, v29, v29 row_ror:{r} row_mask:0xf bank_mask:0xf""")
    e(f"""
    v_rcp_f32 v25, v25
    v_rcp_f32 v29, v29
    s_nop 0
    v_mul_f32 v24, v24, v25
    v_mul_f32 v28, v28, v29
    ds_write2_b32 v9, v24, v28 offset0:0 offset1:2
    """)
    flag_set(1, F_W, 21)
    if cfg.dirty:
        e(f"s_mov_b32 s{SRD_WS+2}, 0x2000000\ns_mul_i32 s56, s2, {1024*cfg.dirty}\ns_add_u32 s56, s56, 0x400000\nv_lshlrev_b32 v5, 4, v0")
        for k in range(cfg.dirty):
            e(f"buffer_store_dwordx4 v[24:27], v5, s[{SRD_WS}:{SRD_WS+3}], s56 offen\ns_add_u32 s56, s56, 1024")
    stamp(6)
    if cfg.diag: e(f"s_waitcnt lgkmcnt(0)\ns_sub_u32 s94, {SPIN_CAP}, s{sCAP}\ns_lshl_b32 s94, s94, 8\ns_add_u32 s94, s94, s78\ns_mov_b32 s95, 0")
    if cfg.cntamp == 1: e("s_lshr_b32 s94, s94, 8\ns_mul_i32 s94, s94, 100\ns_add_u32 s94, s94, s80")
    if cfg.cntamp == 2: e("s_and_b32 s94, s94, 255\ns_mul_i32 s94, s94, 100\ns_add_u32 s94, s94, s80")
    stamps_out(8)
    e("s_endpgm")

    e(f"""L_final:
    {"s_waitcnt lgkmcnt(0); s_lshl_b32 s56, s2, 2; s_add_u32 s56, s56, 0x1E0000; v_mov_b32 v5, s56; v_mov_b32 v6, s80; s_mov_b64 exec, 1; buffer_store_dword v6, v5, s[36:39], 0 offen sc1; s_mov_b64 exec, -1".replace("; ", chr(10)) if cfg.skew else ""}
    s_cmp_eq_u32 s44, 0
    s_cbranch_scc0 L_fin0
    """)
    get_loc(7)
    e(f"""
    s_cmp_eq_u32 s{sOFF}, 0
    s_cbranch_scc1 L_fin0
    s_mov_b64 exec, s[74:75]
    buffer_store_dwordx4 v[56:59], v60, s[{SRD_WS}:{SRD_WS+3}], s{sBOFF} offen sc1
    s_mov_b64 exec, -1
    L_fin0:
    {f"s_lshr_b32 s63, s{sI}, 3; s_lshl2_add_u32 s63, s{sG}, s63" .replace("; ", chr(10)) if cfg.omap else f"s_lshr_b32 s63, s{sI}, 3; s_lshl3_add_u32 s63, s63, s{sG}".replace("; ", chr(10))}
    s_mov_b32 s69, s63
    s_lshr_b32 s56, s63, 3            ; ctile
    s_and_b32 s57, s{sI}, 1           ; b
    s_bfe_u32 s58, s{sI}, 0x10001     ; e
    s_bfe_u32 s59, s{sI}, 0x10002
    s_and_b32 s60, s63, 1
    s_lshl1_add_u32 s59, s60, s59     ; G
    s_bfe_u32 s60, s63, 0x20001       ; w
    s_lshl2_add_u32 s61, s56, s60     ; 4*ctile + w
    s_lshl1_add_u32 s62, s61, s58
    s_lshl2_add_u32 s62, s62, s59     ; nq = n0/4
    v_and_b32 v5, 1, v3
    v_lshlrev_b32 v5, 1, v5
    v_lshrrev_b32 v6, 1, v3
    v_or_b32 v5, v5, v6              ; e(R)
    v_lshlrev_b32 v5, 1, v5
    s_lshl_b32 s63, s62, 3
    v_add_u32 v6, s63, v5
    global_load_ushort v10, v6, s[22:23]
    s_lshl_b32 s63, s57, 10
    v_add_u32 v8, s63, v6
    global_load_ushort v11, v8, s[4:5]
    s_lshr_b32 s63, s62, 4           ; ctile8
    s_lshl2_add_u32 s63, s63, s59
    s_lshl_b32 s63, s63, 2
    s_bfe_u32 s61, s62, 0x20002      ; u
    s_add_u32 s63, s63, s61
    s_lshl1_add_u32 s63, s63, s57
    s_lshl4_add_u32 s63, s63, {fp_off()}
    v_min_u32 v5, 13, v0
    v_lshlrev_b32 v5, 12, v5
    v_add_u32 v5, s63, v5
    s_and_b32 s61, s{sI}, 7
    s_lshl3_add_u32 s63, s69, s61
    s_lshl4_add_u32 s63, s63, {W_SP}
    v_lshlrev_b32 v6, 12, v0
    {"v_lshrrev_b32 v7, 1, v0; v_lshl_add_u32 v6, v7, 13, v6".replace("; ", chr(10)) if cfg.dual3 else ""}
    v_add_u32 v6, s63, v6
    s_mov_b32 s59, {0x2000 if cfg.dual3 == 1 else 0}
    v_cmp_gt_u32 s[60:61], 14, v0
    s_mov_b32 s64, s24
    s_mov_b32 s65, s25
    s_mov_b32 s66, 2048
    s_mov_b32 s67, 0x20000
    s_add_u32 s45, s{sVB}, {cfg.flead}
    """)
    spin_land(45, 7, slp=cfg.slp)
    e(f"""L_fretry:
    buffer_load_dwordx4 v[24:27], v5, s[{SRD_WS}:{SRD_WS+3}], 0 offen sc1
    s_waitcnt vmcnt(0)
    """)
    tag_check(24, 7, True)
    tag_branch(7, "L_fretry", masked=True)
    def gate_math():
        for k in range(4):
            e(f"v_and_b32 v{24+k}, 0xfffff800, v{24+k}")
        for k in range(4):
            e(f"v_cndmask_b32 v{24+k}, 0, v{24+k}, s[60:61]")
        reduce4_rows(24, 28)
        dpp_add(24, (8, 4, 2, 1))
        rnd_bf16(24)
        e("v_lshlrev_b32 v10, 16, v10\nv_add_f32 v24, v24, v10")
        rnd_bf16(24)
        e(f"""
        v_mul_f32 v25, 0xbfb8aa3b, v24
        v_exp_f32 v25, v25
        s_nop 0
        v_add_f32 v25, 1.0, v25
        v_rcp_f32 v25, v25
        s_nop 0
        v_mul_f32 v12, v24, v25
        """)
        rnd_bf16(12)
        e("v_lshlrev_b32 v11, 16, v11")
    if not (cfg.pp3 and cfg.gap3 == 0): gate_math()
    stamp(5)
    if cfg.h3gate == 0: spin_ge(1, F_O, 4, 7, slp=cfg.slp)
    else: spin_ge(1, F_K, 4, 7, slp=cfg.slp)
    if cfg.h3slp: e(f"s_sleep {cfg.h3slp}")
    def ld3(r): e(f"buffer_load_dwordx4 v[{r}:{r+3}], v6, s[{SRD_WS}:{SRD_WS+3}], {'s59' if r == 36 else 0} offen sc1")
    def chk3(r, L):
        tag_check(r, 7, True)
        e(f"v_and_b32 v7, v4, v7\nv_cmp_ne_u32 vcc, 0, v7\ns_cbranch_vccz {L}")
    if cfg.hack4: e("v_and_b32 v6, 0xffffefff, v6\nv_or_b32 v6, 0, v6")
    if cfg.pp3:
        ld3(32)
        if cfg.gap3: e(f"s_sleep {cfg.gap3}")
        else: gate_math()
        ld3(36)
        e("s_mov_b64 s[62:63], -1\nL_3p:\ns_waitcnt vmcnt(1)")
        chk3(32, "L_3X")
        e("s_mov_b64 s[60:61], vcc\ns_mov_b64 exec, vcc")
        ld3(32)
        e("s_mov_b64 exec, s[62:63]\ns_waitcnt vmcnt(1)")
        chk3(36, "L_3Y")
        e("s_mov_b64 s[62:63], vcc\ns_mov_b64 exec, vcc")
        ld3(36)
        e(f"""
        s_mov_b64 exec, s[60:61]
        s_sub_u32 s{sCAP}, s{sCAP}, 1
        s_cbranch_scc0 L_3p
        s_mov_b32 s{sCAP}, 0
        s_waitcnt vmcnt(0)
        L_3Y:
        s_mov_b64 exec, -1""")
        for k in range(4): e(f"v_and_b32 v{24+k}, 0xfffff800, v{36+k}")
        e("s_branch L_3j\nL_3X:\ns_mov_b64 exec, -1")
        for k in range(4): e(f"v_and_b32 v{24+k}, 0xfffff800, v{32+k}")
        e("L_3j:")
    else:
        e("L_3retry:")
        ld3(24)
        e("s_waitcnt vmcnt(0)")
        tag_check(24, 7, True)
        tag_branch(7, "L_3retry", masked=True, slp=cfg.h3loop)
        for k in range(4): e(f"v_and_b32 v{24+k}, 0xfffff800, v{24+k}")
    stamp(6)
    reduce4_rows(24, 28)
    dpp_add(24, (8, 4, 2, 1))
    rnd_bf16(24)
    e("v_mul_f32 v24, v24, v12")
    rnd_bf16(24)
    e(f"""
    v_add_f32 v24, v24, v11
    v_cvt_pk_bf16_f32 v24, v24, v24
    s_mov_b32 s56, 0x00010001
    s_mov_b32 s57, 0x00010001
    s_mov_b64 exec, s[56:57]
    buffer_store_short v24, v8, s[64:67], 0 offen {cfg.outst}
    s_cmp_eq_u32 s2, {999 if cfg.noep else 0}
    s_cbranch_scc0 L_fin2
    s_mov_b64 exec, 1
    v_mov_b32 v26, s34
    v_mov_b32 v27, s35
    v_mov_b32 v28, 0
    buffer_store_dwordx2 v[26:27], v28, s[{SRD_WS}:{SRD_WS+3}], 0 offen {cfg.epst}
    L_fin2:
    """)
    if cfg.skew:
        e(f"""
        s_cmp_eq_u32 s2, 0
        s_cbranch_scc0 L_skend
        s_mov_b64 exec, -1
        v_lshlrev_b32 v5, 4, v0
        v_add_u32 v5, 0x1E0000, v5
        buffer_load_dwordx4 v[40:43], v5, s[{SRD_WS}:{SRD_WS+3}], 0 offen sc1
        s_waitcnt vmcnt(0) lgkmcnt(0)
        v_subrev_u32 v40, s80, v40
        v_subrev_u32 v41, s80, v41
        v_subrev_u32 v42, s80, v42
        v_subrev_u32 v43, s80, v43
        v_max3_i32 v44, v40, v41, v42
        v_max_i32 v44, v44, v43
        v_min3_i32 v45, v40, v41, v42
        v_min_i32 v45, v45, v43
        s_mov_b32 s60, 0x80000000
        s_mov_b32 s61, 0x7fffffff
        """)
        if cfg.skewg >= 0: e(f"v_mov_b32 v44, v{40 + (cfg.skewg & 3)}\ns_nop 1")
        for l in range(64):
            if cfg.skewg >= 0 and (l & 1) != (cfg.skewg >> 2):
                e(f"v_readlane_b32 s62, v45, {l}\nv_readlane_b32 s63, v45, {l}\ns_nop 1\ns_min_i32 s61, s61, s62\ns_min_i32 s61, s61, s63"); continue
            e(f"v_readlane_b32 s62, v44, {l}\nv_readlane_b32 s63, v45, {l}\ns_nop 1\ns_max_i32 s60, s60, s62\ns_min_i32 s61, s61, s63")
        e(f"""
        s_sub_u32 s60, s60, s61
        s_min_u32 s60, s60, 2000
        s_mul_i32 s60, s60, 20
        s_memrealtime s[62:63]
        s_waitcnt lgkmcnt(0)
        L_sksp:
        s_memrealtime s[68:69]
        s_waitcnt lgkmcnt(0)
        s_sub_u32 s61, s68, s62
        s_cmp_lt_u32 s61, s60
        s_cbranch_scc1 L_sksp
        L_skend:""")
    stamp(7)
    stamps_out(8)
    e("s_endpgm")

    sW = 44
    e(f"""L_compute:
    s_setprio {cfg.cprio}
    s_sub_u32 s{sW}, s{sWAVE}, 6
    """)
    if cfg.touch:
        e(f"""
        s_cmp_eq_u32 s{sW}, 2
        s_cbranch_scc0 L_notouch
        s_lshr_b32 s45, s{sI}, 4
        s_lshl_b32 s45, s45, 26
        s_lshl_b32 s46, s{sG}, 23
        s_add_u32 s45, s45, s46
        s_and_b32 s46, s{sI}, 15
        s_lshl_b32 s46, s46, 16
        s_add_u32 s45, s45, s46
        s_add_u32 s45, s45, {28672*256}
        v_mov_b32 v5, s45
        s_lshl_b32 s45, s{sG}, 19
        s_lshr_b32 s46, s{sI}, 2
        s_lshl_b32 s46, s46, 14
        s_add_u32 s45, s45, s46
        v_lshl_add_u32 v6, v0, 17, s45
        v_mov_b32 v7, 0
        s_mov_b64 exec, 1""")
        if 'k' in cfg.touch: e("global_load_dword v164, v5, s[6:7] nt")
        if 'v' in cfg.touch: e("global_load_dword v164, v5, s[8:9] nt")
        if 'o' in cfg.touch: e("s_mov_b64 exec, 15\nglobal_load_dword v164, v6, s[12:13] nt\ns_mov_b64 exec, 1")
        if 'w' in cfg.touch: e("global_load_dword v164, v7, s[28:29]")
        if 'u' in cfg.touch: e("global_load_dword v164, v7, s[24:25]")
        e("s_mov_b64 exec, -1\nL_notouch:")
    for r in range(64, 128): e(f"v_mov_b32 v{r}, 0")
    e(f"""
    s_lshl_b32 s45, s{sW}, 14
    v_lshlrev_b32 v5, 8, v2
    v_add_u32 v5, s45, v5
    v_xor_b32 v6, v3, v2
    """)
    for t in range(4):
        e(f"v_xor_b32 v7, {4*t}, v6\nv_lshl_add_u32 v{8+t}, v7, 4, v5")
    e(f"""
    v_and_b32 v13, 3, v2
    v_mul_u32_u24 v12, 288, v13
    v_lshl_add_u32 v12, v3, 4, v12
    v_add_u32 v12, {L_QS}, v12
    """)
    e(f"""
    v_lshl_add_u32 v15, v3, 2, v13
    v_lshlrev_b32 v15, 4, v15
    v_add_u32 v15, {L_PB}, v15
    v_lshrrev_b32 v5, 3, v2
    v_lshl_add_u32 v14, v5, 8, v15
    v_bfe_u32 v5, v2, 2, 1
    v_lshl_add_u32 v14, v5, 3, v14
    s_lshl_b32 s45, s{sW}, 9
    v_add_u32 v14, s45, v14
    v_lshlrev_b32 v17, 3, v13
    v_add_u32 v17, {L_SB}, v17
    s_lshl_b32 s45, s{sW}, 5
    v_add_u32 v16, s45, v17
    """)
    e(f"""
    v_lshrrev_b32 v5, 2, v2
    v_and_b32 v6, 1, v3
    v_lshl_add_u32 v6, v6, 2, v5
    s_lshl_b32 s45, s{sW}, 1
    v_xor_b32 v6, s45, v6
    v_lshlrev_b32 v7, 3, v13
    v_lshl_add_u32 v22, v6, 5, v7
    v_xor_b32 v23, 32, v22
    v_lshl_add_u32 v6, v3, 2, v5
    v_lshlrev_b32 v6, 8, v6
    v_add_u32 v6, {L_V}, v6
    v_add_u32 v18, v6, v22
    v_add_u32 v19, v6, v23
    v_lshl_add_u32 v6, v3, 3, v5
    v_lshlrev_b32 v6, 8, v6
    v_add_u32 v6, {L_WO}, v6
    v_add_u32 v20, v6, v22
    v_add_u32 v21, v6, v23
    """)
    e(f"""
    s_lshl_b32 s45, s{sW}, 7
    v_lshl_add_u32 v5, v3, 4, s45
    s_lshl_b32 s46, s{sSLOT}, 11
    s_add_u32 s46, s46, {W_OP}
    s_lshl2_add_u32 s46, s45, s46
    v_lshl_add_u32 v22, v0, 4, s46
    s_lshl_b32 s46, s{sSLOT}, 10
    {f"s_lshr_b32 s47, s{sSLOT}, 3; s_lshl_b32 s47, s47, 13; s_add_u32 s46, s46, s47".replace("; ", chr(10)) if cfg.dual3 else ""}
    s_add_u32 s46, s46, {W_SP}
    s_lshl1_add_u32 s46, s45, s46
    v_lshlrev_b32 v23, 4, v13
    v_lshl_add_u32 v23, v3, 6, v23
    v_add_u32 v23, s46, v23
    v_and_b32 v6, 1, v2
    v_lshlrev_b32 v28, 7, v6
    v_lshl_add_u32 v28, v3, 4, v28
    v_add_u32 v28, {L_OB}, v28
    s_lshr_b32 s45, s{sW}, 1          ; b'
    s_and_b32 s46, s{sW}, 1           ; dsub
    s_lshl_b32 s47, s{sG}, 16
    s_lshl_b32 s48, s45, 15
    s_add_u32 s47, s47, s48
    s_lshr_b32 s48, s{sI}, 2
    s_lshl_b32 s48, s48, 8
    s_add_u32 s47, s47, s48
    s_lshl_b32 s48, s46, 7
    s_add_u32 s47, s47, s48
    s_add_u32 s47, s47, {W_OP}
    v_lshrrev_b32 v5, 3, v0
    v_and_b32 v6, 7, v0
    v_lshlrev_b32 v24, 11, v5
    v_lshl_add_u32 v24, v6, 4, v24
    v_add_u32 v24, s47, v24
    v_add_u32 v25, 16384, v24
    s_lshl_b32 s47, s45, 8
    s_add_u32 s47, s47, {L_WT}
    v_lshl_add_u32 v26, v5, 4, s47
    v_and_b32 v5, 1, v3
    v_lshlrev_b32 v5, 1, v5
    v_lshrrev_b32 v7, 1, v3
    v_or_b32 v5, v5, v7
    v_lshl_add_u32 v5, v5, 4, v6
    s_lshl_b32 s47, s45, 7
    s_lshl_b32 s48, s46, 4
    s_add_u32 s47, s47, s48
    s_add_u32 s47, s47, {L_OB}
    v_lshl_add_u32 v27, v5, 1, s47
    s_lshl_b32 s47, s{sSLOT}, 7
    s_add_u32 s47, s47, {W_ST}
    v_lshl_add_u32 v29, v13, 4, s47
    v_and_b32 v5, 4, v0
    v_cmp_ne_u32 s[50:51], 0, v5
    v_and_b32 v5, 2, v0
    v_cmp_ne_u32 s[52:53], 0, v5
    v_mov_b32 v30, 1
    s_waitcnt lgkmcnt(0)
    """)
    nonce_from_epoch()
    for sp in range(4):
        e(f"""
        s_add_u32 s56, s{sRS}, {sp}
        s_and_b32 s56, s56, 3
        s_lshl_b32 s57, s56, 9
        v_add_u32 v{40+sp}, s57, v15
        s_lshl_b32 s57, s56, 14
        v_add_u32 v{48+2*sp}, s57, v18
        v_add_u32 v{49+2*sp}, s57, v19
        """)
    stamp(1)
    get_loc(6, slp=cfg.slpc)
    for tau in range(4):
        m = 0x000f000f << (4*tau)
        e(f"s_mov_b32 s54, {m:#x}\ns_mov_b32 s55, {m:#x}\ns_mov_b64 exec, s[54:55]")
        for t in range(4):
            r = 64 + 16*tau + 4*t
            e(f"ds_read_b128 v[{r}:{r+3}], v12 offset:{64*t}")
    e("s_mov_b64 exec, -1")
    e(f"""
    s_sub_u32 s58, s{sW}, s{sRS}
    s_and_b32 s58, s58, 3
    s_lshl2_add_u32 s58, s58, s{sKEND}
    s_sub_u32 s58, s58, 12
    """)
    spin_land(58, 6, slp=cfg.slpc)
    stamp(2)
    def kread(tau, t):
        r = 128 + 16*(tau & 1) + 4*t
        e(f"ds_read_b128 v[{r}:{r+3}], v{8+t} offset:{4096*tau}")
    for tau in range(2):
        for t in range(4): kread(tau, t)
    for tau in range(4):
        for t in range(4):
            n = 4*tau + t
            r = 128 + 16*(tau & 1) + 4*t; q = 64 + 16*tau + 4*t
            e(f"s_waitcnt lgkmcnt({7 if n < 8 else 15-n})")
            e(f"v_mfma_f32_16x16x32_bf16 v[32:35], v[{r}:{r+3}], v[{q}:{q+3}], {'v[32:35]' if n else 0}")
            if tau < 2: kread(tau+2, t)
    e(f"""
    s_mov_b32 s54, {SCALE:#x}
    s_mov_b32 s55, {LOG2E:#x}
    s_nop 5
    v_cvt_pk_bf16_f32 v32, v32, v33
    v_cvt_pk_bf16_f32 v34, v34, v35
    v_and_b32 v33, 0xffff0000, v32
    v_lshlrev_b32 v32, 16, v32
    v_and_b32 v35, 0xffff0000, v34
    v_lshlrev_b32 v34, 16, v34
    v_mul_f32 v32, s54, v32
    v_mul_f32 v33, s54, v33
    v_mul_f32 v34, s54, v34
    v_mul_f32 v35, s54, v35
    v_cvt_pk_bf16_f32 v32, v32, v33
    v_cvt_pk_bf16_f32 v34, v34, v35
    v_and_b32 v33, 0xffff0000, v32
    v_lshlrev_b32 v32, 16, v32
    v_and_b32 v35, 0xffff0000, v34
    v_lshlrev_b32 v34, 16, v34
    v_max_f32 v36, v32, v33
    v_max3_f32 v36, v34, v35, v36
    """)
    dpp_max(36, (8, 4))
    e("""
    v_mov_b32 v37, v36
    s_nop 1
    v_permlane16_swap_b32 v36, v37
    s_nop 0
    v_max_f32 v36, v36, v37
    v_mov_b32 v37, v36
    s_nop 1
    v_permlane32_swap_b32 v36, v37
    s_nop 0
    v_max_f32 v36, v36, v37
    v_sub_f32 v32, v32, v36
    v_sub_f32 v33, v33, v36
    v_sub_f32 v34, v34, v36
    v_sub_f32 v35, v35, v36
    v_mul_f32 v32, s55, v32
    v_mul_f32 v33, s55, v33
    v_mul_f32 v34, s55, v34
    v_mul_f32 v35, s55, v35
    v_exp_f32 v128, v32
    v_exp_f32 v129, v33
    v_exp_f32 v130, v34
    v_exp_f32 v131, v35
    v_add_f32 v37, v128, v129
    s_nop 0
    v_add_f32 v38, v130, v131
    v_add_f32 v37, v37, v38
    """)
    dpp_add(37, (8, 4))
    e(f"""
    v_mov_b32 v38, v37
    s_nop 1
    v_permlane16_swap_b32 v37, v38
    s_nop 0
    v_add_f32 v37, v37, v38
    v_mov_b32 v38, v37
    s_nop 1
    v_permlane32_swap_b32 v37, v38
    s_nop 0
    v_add_f32 v37, v37, v38
    s_mov_b64 exec, 15
    ds_write_b64 v16, v[36:37]
    s_mov_b64 exec, 1
    ds_add_u32 v1, v30 offset:{F_V}
    s_mov_b64 exec, -1
    """)
    spin_ge(1, F_V, 4, 6, extra="\n".join(f"ds_read_b64 v[{56+2*k}:{57+2*k}], v17 offset:{32*k}" for k in range(4)))
    def preg(ee, sp, sg): return (64 if sp < 2 else 96) + 16*ee + 8*(sp & 1) + 4*sg
    e("""
    v_max_f32 v32, v56, v58
    v_max3_f32 v32, v60, v62, v32
    v_sub_f32 v56, v56, v32
    v_sub_f32 v58, v58, v32
    v_sub_f32 v60, v60, v32
    v_sub_f32 v62, v62, v32
    v_sub_f32 v36, v36, v32
    v_mul_f32 v56, s55, v56
    v_mul_f32 v58, s55, v58
    v_mul_f32 v60, s55, v60
    v_mul_f32 v62, s55, v62
    v_mul_f32 v36, s55, v36
    v_exp_f32 v56, v56
    v_exp_f32 v58, v58
    v_exp_f32 v60, v60
    v_exp_f32 v62, v62
    v_exp_f32 v36, v36
    v_mul_f32 v33, v56, v57
    v_fmac_f32 v33, v58, v59
    v_fmac_f32 v33, v60, v61
    v_fmac_f32 v33, v62, v63
    v_mov_b32 v34, 0
    v_mov_b32 v35, 0
    """)
    e(f"s_cmp_eq_u32 s{sW}, 0\ns_cbranch_scc0 L_nostat")
    tag_insert(32, 4)
    e(f"""
    s_mov_b64 exec, 15
    buffer_store_dwordx4 v[32:35], v29, s[{SRD_WS}:{SRD_WS+3}], 0 offen {cfg.stA}
    s_cmp_eq_u32 s{sOFF}, 0
    s_cbranch_scc1 L_nostatB
    buffer_store_dwordx4 v[32:35], v29, s[{SRD_WS}:{SRD_WS+3}], s{sBOFF} offen sc1
    L_nostatB:
    s_mov_b64 exec, -1
    L_nostat:
    """)
    stamp(3)
    e("""
    v_mul_f32 v128, v128, v36
    v_mul_f32 v129, v129, v36
    v_mul_f32 v130, v130, v36
    v_mul_f32 v131, v131, v36
    v_cvt_pk_bf16_f32 v128, v128, v129
    v_cvt_pk_bf16_f32 v129, v130, v131
    ds_write_b64 v14, v[128:129]
    """)
    flag_add(1, F_P, 30)
    for r in range(96, 128): e(f"v_mov_b32 v{r}, 0")
    spin_ge(1, F_P, 4, 6)
    for ee in range(2):
        m = 0x000f000f << (4*ee)
        e(f"s_mov_b32 s56, {m:#x}\ns_mov_b32 s57, {m:#x}\ns_mov_b64 exec, s[56:57]")
        for sp in range(4):
            for sg in range(2):
                r = preg(ee, sp, sg)
                e(f"ds_read_b128 v[{r}:{r+3}], v{40+sp} offset:{256*sg}")
    e("s_mov_b64 exec, -1")
    for sp in range(4):
        e(f"s_add_u32 s58, s{sVB}, {4*(sp+1) + (cfg.woe if sp == 3 else 0)}")
        if sp == 3 and cfg.vlf: spin_ge(1, F_WO, 4, 6)
        else: spin_land(58, 6, slp=(cfg.slpc if sp < 3 else 0))
        if sp == 3: stamp(4)
        for sg in range(2):
            for ee in range(2):
                r = 128 + 8*sg + 4*ee
                e(f"ds_read_b64_tr_b16 v[{r}:{r+1}], v{48+2*sp+ee} offset:{8192*sg}")
                e(f"ds_read_b64_tr_b16 v[{r+2}:{r+3}], v{48+2*sp+ee} offset:{8192*sg+4096}")
        for sg in range(2):
            for ee in range(2):
                r = 128 + 8*sg + 4*ee
                p = preg(ee, sp, sg)
                e(f"s_waitcnt lgkmcnt({6 - 2*(2*sg+ee)})")
                e(f"v_mfma_f32_16x16x32_bf16 v[144:147], v[{p}:{p+3}], v[{r}:{r+3}], {'v[144:147]' if (sp or sg or ee) else 0}")
    e(f"s_cmp_eq_u32 s{sOFF}, 0\ns_mov_b32 exec_hi, 0\ns_nop 5")
    tag_insert(144, 4)
    e(f"""
    buffer_store_dwordx4 v[144:147], v22, s[{SRD_WS}:{SRD_WS+3}], 0 offen {cfg.stO}
    s_cbranch_scc1 L_oloc
    buffer_store_dwordx4 v[144:147], v22, s[{SRD_WS}:{SRD_WS+3}], s{sBOFF} offen sc1
    L_oloc:
    s_mov_b64 exec, -1
    {"v_mov_b32 v156, v144; v_mov_b32 v157, v145; v_mov_b32 v158, v146; v_mov_b32 v159, v147".replace("; ", chr(10)) if 0 else ""}
    buffer_load_dwordx4 v[32:35], v24, s[{SRD_WS}:{SRD_WS+3}], s{sOFF} offen {cfg.ldA}
    buffer_load_dwordx4 v[36:39], v25, s[{SRD_WS}:{SRD_WS+3}], s{sOFF} offen {cfg.ldA}
    s_add_u32 s58, s{sVB}, 20
    """)
    stamp(5)
    def wofr():
        for ee in range(2):
            for t in range(2):
                r = 64 + 8*ee + 4*t
                e(f"ds_read_b64_tr_b16 v[{r}:{r+1}], v{20+ee} offset:{8192*t}")
                e(f"ds_read_b64_tr_b16 v[{r+2}:{r+3}], v{20+ee} offset:{8192*t+1024}")
    if not cfg.late_wo:
        spin_land(58, 6)
        wofr()
    if cfg.clean:
        for k in range(4): e(f"v_mov_b32 v{156+k}, v{144+k}")
    spin_ge(1, F_W, 1, 6, extra="ds_read_b128 v[40:43], v26\nds_read_b128 v[44:47], v26 offset:128")
    def ld2(r):
        e(f"""
        buffer_load_dwordx4 v[{r}:{r+3}], v24, s[{SRD_WS}:{SRD_WS+3}], s{sOFF} offen {cfg.ldA}
        buffer_load_dwordx4 v[{r+4}:{r+7}], v25, s[{SRD_WS}:{SRD_WS+3}], s{sOFF} offen {cfg.ldA}""")
    def chk2(r, L):
        tag_check(r, 7, True); tag_check(r+4, 7, False)
        e(f"v_and_b32 v7, v4, v7\nv_cmp_ne_u32 vcc, 0, v7\ns_cbranch_vccz {L}")
    if cfg.pp2:
        ld2(48)
        e("s_mov_b64 s[62:63], -1\nL_op:\ns_waitcnt vmcnt(2)")
        chk2(32, "L_okX")
        e("s_mov_b64 s[60:61], vcc\ns_mov_b64 exec, vcc")
        ld2(32)
        e("s_mov_b64 exec, s[62:63]\ns_waitcnt vmcnt(2)")
        chk2(48, "L_okY")
        e("s_mov_b64 s[62:63], vcc\ns_mov_b64 exec, vcc")
        ld2(48)
        e(f"""
        s_mov_b64 exec, s[60:61]
        s_sub_u32 s{sCAP}, s{sCAP}, 1
        s_cbranch_scc0 L_op
        s_mov_b32 s{sCAP}, 0
        s_waitcnt vmcnt(0)
        L_okY:
        s_mov_b64 exec, -1""")
        for k in range(8): e(f"v_and_b32 v{56+k}, 0xfffff800, v{48+k}")
        e("s_branch L_oj\nL_okX:\ns_mov_b64 exec, -1")
        for k in range(8): e(f"v_and_b32 v{56+k}, 0xfffff800, v{32+k}")
        e("L_oj:")
    else:
        e("s_branch L_ochk\nL_oretry:")
        ld2(32)
        e("L_ochk:\ns_waitcnt vmcnt(0)")
        tag_check(32, 7, True); tag_check(36, 7, False)
        tag_branch(7, "L_oretry", masked=True, slp=cfg.o2loop)
        for k in range(8): e(f"v_and_b32 v{56+k}, 0xfffff800, v{32+k}")
    stamp(6)
    R = []
    if cfg.late_wo:
        R.append(f"ds_read_b128 v[152:155], v1 offset:{O_LAND}")
        for ee in range(2):
            for t in range(2):
                r = 64 + 8*ee + 4*t
                R.append(f"ds_read_b64_tr_b16 v[{r}:{r+1}], v{20+ee} offset:{8192*t}")
                R.append(f"ds_read_b64_tr_b16 v[{r+2}:{r+3}], v{20+ee} offset:{8192*t+1024}")
    else:
        R = ["s_nop 0"] * 9
    e(f"""
    v_pk_mul_f32 v[56:57], v[56:57], v[40:41]
    v_pk_mul_f32 v[58:59], v[58:59], v[42:43]
    v_pk_fma_f32 v[56:57], v[60:61], v[44:45], v[56:57]
    v_pk_fma_f32 v[58:59], v[62:63], v[46:47], v[58:59]
    {R[0]}
    {R[1]}
    v_permlane32_swap_b32 v56, v57
    v_permlane32_swap_b32 v58, v59
    {R[2]}
    v_add_f32 v56, v56, v57
    v_add_f32 v58, v58, v59
    {R[3]}
    {R[4]}
    v_permlane16_swap_b32 v56, v58
    {R[5]}
    v_add_f32 v56, v56, v58
    {R[6]}
    {R[7]}
    v_add_f32_dpp v56, v56, v56 row_ror:8 row_mask:0xf bank_mask:0xf
    {R[8]}
    """)
    e(f"""
    v_cvt_pk_bf16_f32 v56, v56, v56
    ds_write_b16 v27, v56
    s_mov_b64 exec, 1
    ds_add_u32 v1, v30 offset:{F_O}
    s_mov_b64 exec, -1
    s_mov_b32 s56, 0x000f000f
    s_mov_b32 s57, 0x000f000f
    s_mov_b32 s59, 0x2000
    """)
    spin_ge(1, F_O, 4, 6, extra="ds_read_b128 v[40:43], v28\nds_read_b128 v[44:47], v28 offset:64")
    if cfg.late_wo:
        e("""
        v_min3_i32 v152, v152, v153, v154
        v_min_i32 v152, v152, v155
        v_cmp_le_i32 vcc, s58, v152
        s_cbranch_vccz L_wolate
        L_wook:""".replace('s_cbranch_vccz', 's_branch' if cfg.forcelate else 's_cbranch_vccz'))
    for t in range(2):
        for ee in range(2):
            r = 64 + 8*ee + 4*t
            a = 144 + 4*ee
            e(f"v_mfma_f32_16x16x32_bf16 v[{a}:{a+3}], v[{r}:{r+3}], v[{40+4*t}:{43+4*t}], {f'v[{a}:{a+3}]' if t else 0}")
    e(f"""
    s_mov_b64 exec, s[56:57]
    s_nop 6
    """)
    for k in range(4):
        e(f"v_cndmask_b32 v{144+k}, v{144+k}, v{148+k}, s[52:53]")
    tag_insert(144, 4)
    e(f"""
    {"s_bitcmp1_b32 s32, 2; s_cbranch_scc1 L_end".replace("; ", chr(10)) if cfg.hack4 == 9 else ""}
    {"s_bitcmp1_b32 s32, 2; s_cselect_b64 exec, 0, exec".replace("; ", chr(10)) if cfg.hack4 else ""}
    buffer_store_dwordx4 v[144:147], v23, s[{SRD_WS}:{SRD_WS+3}], 0 offen sc1
    {f"buffer_store_dwordx4 v[144:147], v23, s[{SRD_WS}:{SRD_WS+3}], s59 offen sc1" if cfg.dual3 else ""}
    """)
    if cfg.clean == 1:
        e(f"s_mov_b32 s56, 0x00ff00ff\ns_mov_b32 s57, 0x00ff00ff\ns_mov_b64 exec, s[56:57]\nbuffer_store_dwordx4 v[156:159], v22, s[{SRD_WS}:{SRD_WS+3}], 0 offen sc1\ns_waitcnt vmcnt(1)")
    elif cfg.h3gate == 2: e("s_waitcnt vmcnt(0)")
    if cfg.clean == 2:
        e(f"s_mov_b32 s56, 0x00ff00ff\ns_mov_b32 s57, 0x00ff00ff\ns_mov_b64 exec, s[56:57]\nbuffer_store_dwordx4 v[156:159], v22, s[{SRD_WS}:{SRD_WS+3}], 0 offen sc1")
    if cfg.h3gate: e(f"s_mov_b64 exec, 1\nds_add_u32 v1, v30 offset:{F_K}")
    stamp(7)
    stamps_out(8)
    e("L_end:\ns_endpgm")
    if cfg.late_wo:
        e("L_wolate:")
        spin_land(58, 6)
        wofr()
        e("s_waitcnt lgkmcnt(0)\ns_branch L_wook")
    e("L_codeend:")
    if cfg.skip:
        res = []; sect = None
        for ln in out:
            t = ln.strip()
            if t.endswith(":"): sect = t[:-1]
            drop = False
            isg = t.startswith("buffer_load_dwordx4 v[") and "s[36:39]" in t
            if isg and sect in ("L_qretry",) and 'q' in cfg.skip: drop = True
            if isg and sect in ("L_hretry",) and 'h' in cfg.skip: drop = True
            if isg and sect in ("L_sretry",) and 's' in cfg.skip: drop = True
            if isg and sect in ("L_fretry",) and 'f' in cfg.skip: drop = True
            if t.startswith("s_cbranch_scc0 L_qretry") and 'q' in cfg.skip: drop = True
            if t.startswith("s_cbranch_scc0 L_hretry") and 'h' in cfg.skip: drop = True
            if t.startswith("s_cbranch_scc0 L_sretry") and 's' in cfg.skip: drop = True
            if t.startswith("s_cbranch_scc0 L_fretry") and 'f' in cfg.skip: drop = True
            if 'b' in cfg.skip and t.startswith("buffer_store_dwordx4") and "sc1" in t and ("v[56:59]" in t and sect == "L_pubB"): drop = True
            if 'a' in cfg.skip and t.startswith("buffer_store_dwordx4") and "sc1" not in t and ("v[56:59]" in t or "v[64:67]" in t or "v29" in t): drop = True
            if 'q' in cfg.skip and t.startswith("s_cbranch_vccz L_q"): ln = ln.replace("s_cbranch_vccz", "s_branch")
            if 'k' in cfg.skip and t.startswith("ds_read_b128 v[1") and "v1 offset" not in t: drop = True
            if 'v' in cfg.skip and t.startswith("ds_read_b64_tr_b16 v[1"): drop = True
            if not drop: res.append(ln)
        out[:] = res
    if cfg.mark:
        res = []; k = 0
        for ln in out:
            res.append(ln)
            if ln.strip() == f"s_mov_b32 s{sCAP}, 0":
                k += 1
                res += [f"    v_mov_b32 v164, {4*k}", "    v_mov_b32 v165, 1", "    global_atomic_add v164, v165, s[26:27]"]
        out[:] = res
    body = "\n".join(out)
    hdr = open("recurrent_scan__sliding_block_cached__dense_activation_squared_relu__decode.s.ref").read().split("; Override launch")[0]
    return f"""{hdr}; One fused launch: 256 workgroups (one per CU, all co-resident) x 10 waves.
; @launch grid=(256,1,1) block=(640,1,1) lds={LDS_TOTAL}
.amdgcn_target "amdgcn-amd-amdhsa--gfx950"
.text
.globl {KNAME}
.p2align 8
.type {KNAME},@function
{KNAME}:
{body}
.section .rodata,"a"
.p2align 6
.amdhsa_kernel {KNAME}
  .amdhsa_next_free_vgpr 168
  .amdhsa_next_free_sgpr 102
  .amdhsa_accum_offset 168
  .amdhsa_group_segment_fixed_size 0
  .amdhsa_kernarg_size 104
  .amdhsa_user_sgpr_count 2
  .amdhsa_user_sgpr_kernarg_segment_ptr 1
  .amdhsa_system_sgpr_workgroup_id_x 1
.end_amdhsa_kernel
"""

if __name__ == "__main__":
    path = sys.argv[1]
    for a in sys.argv[2:]:
        k, v = a.split("=")
        cur = getattr(cfg, k)
        setattr(cfg, k, type(cur)(int(v)) if isinstance(cur, (bool, int)) else v.replace("+", " "))
    open(path, "w").write(build())
```

```python
import sys
KNAME = "recurrent_scan__sliding_block_cached__dense_activation_squared_relu__decode_kernel"

cfg_dbgsel = {6: [(0,0,1),(0,1,0),(1,2,1),(1,3,0),(2,4,0),(4,5,1),(4,6,0),(5,7,0)], 7: [(4,8,0),(5,9,0),(6,10,0)], 8: [(5,11,0),(6,12,1),(6,13,0),(7,14,0)]}
class Cfg:
    early = False
    ampw = -1
    ampk = 0
    ampg = -1
    dbg = False
    diag = False
    lw = 5
    lw2 = 5
    win = 20
    qlead = 7
    woe = 0
    lprio = 3
    boost = 0
    loc3 = 0
    p8 = 0
    meta4 = 1
    stA = ''
    stO = ''
    noep = 0
    omap = 1
    splitka = 0
    forcelate = 0
    cntamp = 0
    dual3 = 0
    lightg = 0
    skew = 0
    skewg = -1
    bpos = 0
    pps = 0
    trace = 0
    hack4 = 0
    slpc = 0
    vlf = 0
    cprio = 1
    touch = ''
    clean = 0
    epst = ''
    outst = ''
    nprio = 1
    late_wo = 1
    pp2 = 1
    pp3 = 1
    gap3 = 0
    epf = 1
    dirty = 0
    h3gate = 2
    h3slp = 0
    h3loop = 0
    o2loop = 0
    mark = 0
    ntmo = 3
    skip = ''
    only = 0
    pfi = 28
    slp = 0
    win2 = 20
    w2at = 4
    slead = 10
    flead = 12
    hgate = 15
    ldA = 'sc1'
    pf = 1
    first = 'sc1'
    ntK = "nt"; ntW = "nt"
    rotmul = 5
cfg = Cfg()

L_K, L_V, L_WO = 0, 65536, 131072
SCR = 147456
L_QS = SCR
L_PB = SCR + 1152
L_SB = L_PB + 2048
L_WT = L_SB + 128
L_OB = L_WT + 512
L_ACTA = L_OB + 256
L_ACTB = L_ACTA + 576
L_FL = L_ACTB + 576
L_LAND = L_FL + 64
LDS_TOTAL = L_LAND + 16 + 256
F_Q, F_K, F_P, F_V, F_T, F_WO, F_W, F_O = [4*k for k in range(8)]
W_ST, W_QP, W_HP, W_OP, B_OFF, W_SP, W_FP = 0x8000, 0x10000, 0x30000, 0x40000, 0xC0000, 0x180000, 0x1C0000
def fp_off(): return 0x200000 if cfg.dual3 else W_FP
def ws_bytes(): return 0x210000 if cfg.dual3 else WS_BYTES
WS_BYTES = 0x200000
SPIN_CAP = 1000002
LOG2E = 0x3fb8aa3b
SCALE = 0x3db504f3

sWAVE, sG, sI, sNON = 30, 31, 32, 33
sT0, sT1, sT2, sT3 = 34, 33, 40, 79
TMASK, VMASK, TB = 0x7ff, 0xfffff800, 11
SRD_WS = 36
sSLOT = 41
sRS = 42
sCAP = 43
sVB, sOFF, sBOFF = 71, 72, 73
sKEND = 70
O_LAND = 64
STAMP0 = 80

out = []
def e(s):
    for ln in s.strip("\n").split("\n"):
        out.append("    " + ln.strip() if not ln.strip().endswith(":") else ln.strip())

def estamp(k):
    if cfg.diag and cfg.early:
        e(f"s_memrealtime s[{STAMP0+2*k}:{STAMP0+2*k+1}]")
def stamp(k):
    if cfg.diag and (not cfg.early or k == 0 or k >= 6):
        e(f"s_memrealtime s[{STAMP0+2*k}:{STAMP0+2*k+1}]")

def stamps_out(n):
    if not cfg.diag: return
    if cfg.ampw >= 0:
        L = lbl("L_amp"); Ls = lbl("L_amps")
        if cfg.ampk < n:
            e(f"""
            s_waitcnt lgkmcnt(0)
            s_cmp_eq_u32 s{sWAVE}, {cfg.ampw}
            s_cbranch_scc0 {Ls}
            {f's_cmp_eq_u32 s{sG}, {cfg.ampg}; s_cbranch_scc0 {Ls}'.replace('; ', chr(10)) if cfg.ampg >= 0 else ''}
            s_sub_u32 s60, s{STAMP0+2*cfg.ampk}, s{STAMP0}
            s_min_u32 s60, s60, 20000
            s_mul_i32 s60, s60, 10
            s_memrealtime s[62:63]
            s_waitcnt lgkmcnt(0)
            {L}:
            s_memrealtime s[68:69]
            s_waitcnt lgkmcnt(0)
            s_sub_u32 s61, s68, s62
            s_cmp_lt_u32 s61, s60
            s_cbranch_scc1 {L}
            {Ls}:
            """)
        return
    if cfg.dbg:
        sel = cfg_dbgsel[n] if n in cfg_dbgsel else []
        e("s_waitcnt lgkmcnt(0)\ns_mov_b64 exec, 1\nv_mov_b32 v1, 0")
        if n == 8: e(f"s_cmp_eq_u32 s{sWAVE}, 2\ns_cbranch_scc0 L_dbgskip{len(out)}"); lab = f"L_dbgskip{len(out)-2}"
        for (k, slot, mn) in sel:
            e(f"v_mov_b32 v4, s{STAMP0+2*k}")
            if mn: e("v_not_b32 v4, v4")
            e(f"global_atomic_umax v1, v4, s[26:27] offset:{4*slot}\ns_nop 1")
        if n == 8: e(f"{lab}:")
        e("s_waitcnt vmcnt(0)")
        return
    L = lbl("L_dly")
    e(f"""
    s_waitcnt lgkmcnt(0)
    s_add_u32 s61, s{STAMP0}, 1600
    {L}:
    s_sleep 8
    s_memrealtime s[68:69]
    s_waitcnt lgkmcnt(0)
    s_cmp_lt_u32 s68, s61
    s_cbranch_scc1 {L}
    s_lshl_b32 s60, s2, 4
    s_add_u32 s60, s60, s{sWAVE}
    s_lshl_b32 s60, s60, 6
    s_add_u32 s68, s28, s60
    s_addc_u32 s69, s29, 0
    s_add_u32 s68, s68, 0x10000000
    s_addc_u32 s69, s69, 0
    s_mov_b64 exec, 1
    v_mov_b32 v1, 0
    """)
    for k in range(8):
        if k < n:
            e(f"v_mov_b32 v4, s{STAMP0+2*k}\nv_mov_b32 v5, s{STAMP0+2*k+1}")
        else:
            e(f"v_mov_b32 v4, s{STAMP0}\nv_mov_b32 v5, s{STAMP0+1}")
        e(f"global_store_dwordx2 v1, v[4:5], s[68:69] offset:{8*k}\ns_nop 1")
    e("s_waitcnt vmcnt(0)")

lblc = [0]
def lbl(p="L"):
    lblc[0] += 1
    return f"{p}_{lblc[0]}"

def flag_set(vfl, off, vval):
    e(f"s_mov_b64 exec, 1\nds_write_b32 v{vfl}, v{vval} offset:{off}\ns_mov_b64 exec, -1")
def flag_add(vfl, off, vone):
    e(f"s_mov_b64 exec, 1\nds_add_u32 v{vfl}, v{vone} offset:{off}\ns_mov_b64 exec, -1")
def spin_ge(vfl, off, target, vtmp, extra="", slp=0):
    L = lbl("L_sp")
    e(f"""{L}:
    {f's_sleep {slp}' if slp else ''}
    ds_read_b32 v{vtmp}, v{vfl} offset:{off}
    {extra}
    s_waitcnt lgkmcnt(0)
    v_cmp_le_u32 vcc, {target}, v{vtmp}
    s_cbranch_vccz {L}""")

def spin_land(sreg, vtmp, extra="", slp=0):
    L = lbl("L_sl")
    e(f"""{L}:
    {f's_sleep {slp}' if slp else ''}
    ds_read_b128 v[160:163], v1 offset:{O_LAND}
    {extra}
    s_waitcnt lgkmcnt(0)
    v_min3_i32 v160, v160, v161, v162
    v_min_i32 v160, v160, v163
    v_cmp_le_i32 vcc, s{sreg}, v160
    s_cbranch_vccz {L}""")

def get_loc(vtmp, slp=None):
    spin_ge(1, F_Q, 1, vtmp, slp=cfg.slp if slp is None else slp)
    e(f"v_readfirstlane_b32 s{sOFF}, v{vtmp}\ns_nop 3\ns_and_b32 s{sOFF}, s{sOFF}, -2")

def tag_check(regs, acc, first):
    T = [sT0, sT1, sT2, sT3]
    for k in range(4):
        if first and k == 0:
            e(f"v_xor_b32 v{acc}, s{T[0]}, v{regs}")
        else:
            e(f"v_bitop3_b32 v{acc}, v{regs+k}, s{T[k]}, v{acc} bitop3:0xbe")
def tag_branch(acc, Lretry, toggle=False, masked=False, slp=0):
    Ld = lbl("L_ok")
    e(f"""
    v_and_b32 v{acc}, v4, v{acc}
    v_cmp_ne_u32 vcc, 0, v{acc}
    s_cbranch_vccz {Ld}""")
    if masked: e("s_mov_b64 exec, vcc")
    if slp: e(f"s_sleep {slp}")
    if toggle:
        e(f"""
        s_and_b32 s{sOFF}, s{sCAP}, 3
        s_cselect_b32 s{sOFF}, 0, s{sBOFF}""")
    e(f"""
    s_sub_u32 s{sCAP}, s{sCAP}, 1
    s_cbranch_scc0 {Lretry}
    s_mov_b32 s{sCAP}, 0
    {Ld}:""")
    if masked: e("s_mov_b64 exec, -1")
def tag_insert(regs, vff):
    T = [sT0, sT1, sT2, sT3]
    for k in range(4):
        e(f"v_bfi_b32 v{regs+k}, v{vff}, s{T[k]}, v{regs+k}")

def nonce_from_epoch():
    e(f"""
    s_add_u32 s34, s34, 0x01401801
    s_addc_u32 s35, s35, 14
    s_lshr_b32 s33, s34, 11
    s_lshr_b64 s[46:47], s[34:35], 22
    s_mov_b32 s40, s46
    s_lshr_b32 s79, s35, 1
    """)

def srd(r, lo, hi, nbytes):
    pass

def reduce4_rows(x, t):
    e(f"""
    s_nop 1
    v_permlane32_swap_b32 v{x}, v{x+1}
    v_permlane32_swap_b32 v{x+2}, v{x+3}
    s_nop 0
    v_add_f32 v{x}, v{x}, v{x+1}
    v_add_f32 v{x+2}, v{x+2}, v{x+3}
    s_nop 1
    v_permlane16_swap_b32 v{x}, v{x+2}
    s_nop 0
    v_add_f32 v{x}, v{x}, v{x+2}
    """)
def dpp_add(x, rots):
    for r in rots:
        e(f"s_nop 1\nv_add_f32_dpp v{x}, v{x}, v{x} row_ror:{r} row_mask:0xf bank_mask:0xf")
def dpp_max(x, rots):
    for r in rots:
        e(f"s_nop 1\nv_max_f32_dpp v{x}, v{x}, v{x} row_ror:{r} row_mask:0xf bank_mask:0xf")
def rnd_bf16(x):
    e(f"v_cvt_pk_bf16_f32 v{x}, v{x}, v{x}\nv_and_b32 v{x}, 0xffff0000, v{x}")

def build():
    out.clear()
    stamp(0)
    nt = cfg.ntK
    W = cfg.lw; W2 = cfg.lw2
    KA2 = 's_load_dwordx8 s[20:27], s[0:1], 64' + chr(10) + 's_load_dwordx2 s[28:29], s[0:1], 96'
    e(f"""
    s_load_dwordx16 s[4:19], s[0:1], 0
    {KA2 if not cfg.splitka else ''}
    v_readfirstlane_b32 s{sWAVE}, v0
    s_cmpk_ge_u32 s2, 0x100
    s_cbranch_scc1 L_end
    v_and_b32 v0, 63, v0
    s_and_b32 s{sG}, s2, 7
    s_lshr_b32 s{sI}, s2, 3
    s_cmpk_ge_u32 s{sWAVE}, 0x100
    s_cbranch_scc1 {'L_nl0' if cfg.splitka else 'L_notloader'}
    v_lshrrev_b32 v12, 3, v0
    s_lshl_b32 s64, s{sWAVE}, 4
    {"s_getpc_b64 s[48:49]; v_lshl_add_u32 v13, v12, 7, s64; global_load_dword v166, v13, s[48:49]".replace("; ", chr(10)) if cfg.epf else ""}
    v_and_b32 v13, 7, v0
    v_and_b32 v14, 2, v12
    v_xor_b32 v13, v13, v14
    v_lshlrev_b32 v13, 4, v13
    s_and_b32 s63, s{sWAVE}, 64
    v_xor_b32 v13, s63, v13
    v_lshl_add_u32 v10, v12, 13, v13
    s_lshr_b32 s45, s2, 6
    s_lshl_b32 s45, s45, 20
    s_and_b32 s46, s{sI}, 7
    s_lshl3_add_u32 s46, s{sG}, s46
    s_lshl_b32 s46, s46, 7
    s_add_u32 s45, s45, s46
    s_mov_b32 s58, {127*8192+128}
    s_mov_b32 s59, 0x20000
    s_lshl4_add_u32 m0, s{sWAVE}, {L_WO}
    s_lshl_b32 s47, s{sWAVE}, 10
    s_waitcnt lgkmcnt(0)
    s_add_u32 s56, s10, s45
    s_addc_u32 s57, s11, 0
    {'s_memrealtime s[82:83]' if cfg.early else ''}
    L_ldA:
    buffer_load_dwordx4 v10, s[56:59], s47 offen {cfg.ntW} lds
    s_addk_i32 m0, 0x1000
    s_add_u32 s47, s47, 0x40000
    s_bitcmp0_b32 s47, 20
    s_cbranch_scc1 L_ldA
    {'s_memrealtime s[84:85]' if cfg.early else ''}
    {KA2 if cfg.splitka else ''}
    s_branch L_ld2
    {('L_nl0:' + chr(10) + KA2 + chr(10) + 's_branch L_notloader') if cfg.splitka else ''}
    .p2align 8
    """)
    e(f"""L_notloader:
    v_mov_b32 v1, {L_FL}
    v_mov_b32 v5, 0
    v_lshl_add_u32 v6, v0, 2, v1
    ds_write_b32 v6, v5
    s_lshr_b32 s{sWAVE}, s{sWAVE}, 6
    """)
    if cfg.pf:
        e(f"""
        s_cmp_eq_u32 s{sWAVE}, 9
        s_cbranch_scc0 L_nopf
        s_getpc_b64 s[46:47]
        L_pc:
        s_mul_i32 s45, s{sI}, {2 if cfg.epf else 3}
        {'s_add_u32 s45, s45, 30' if cfg.epf else ''}
        v_min_u32 v5, {1 if cfg.epf else 2}, v0
        v_add_u32 v5, s45, v5
        v_lshlrev_b32 v5, 7, v5
        v_min_u32 v5, L_codeend-L_pc-4, v5
        global_load_dword v166, v5, s[46:47]
        L_nopf:""")
    e(f"""
    v_lshlrev_b32 v5, 5, v0
    s_cmp_ge_u32 s{sWAVE}, 6
    s_waitcnt lgkmcnt(0)
    s_load_dwordx2 s[34:35], s[28:29], 0
    s_cbranch_scc1 L_nox
    global_load_dwordx4 v[8:11], v5, s[4:5]
    global_load_dwordx4 v[12:15], v5, s[4:5] offset:16
    L_nox:
    s_barrier
    s_branch L_nl2
    """)
    def flagw():
        e("ds_write_b32 v16, v15\nv_add_u32 v15, 1, v15")
        if cfg.trace:
            e("s_memrealtime s[66:67]\ns_waitcnt lgkmcnt(0)\ns_mov_b64 s[68:69], exec\ns_lshl_b64 exec, 1, s70\nv_mov_b32 v20, s66\ns_mov_b64 exec, s[68:69]\ns_add_u32 s70, s70, 1")
    e(f"""L_ld2:
    s_mul_i32 s44, s2, {cfg.rotmul}
    s_bfe_u32 s{sRS}, s44, 0x20002
    v_and_b32 v2, 15, v0
    v_lshrrev_b32 v3, 4, v0
    s_add_u32 s62, s{sRS}, 3
    s_and_b32 s62, s62, 3
    s_add_u32 s62, s62, 4
    s_lshl_b32 s62, s62, 14
    v_mov_b32 v1, {L_FL}
    s_lshr_b32 s45, s{sWAVE}, 4
    s_add_u32 s45, s45, {L_LAND}
    v_lshl_add_u32 v16, v0, 2, v1
    v_add_u32 v16, {O_LAND+16}, v16
    v_writelane_b32 v16, s45, 0
    v_mov_b32 v15, {5-W}
    {"s_mov_b32 s70, 0; v_mov_b32 v20, 0".replace("; ", chr(10)) if cfg.trace else ""}
    s_setprio {cfg.lprio}
    {'s_waitcnt lgkmcnt(0)' if cfg.splitka else ''}
    s_barrier
    """)
    estamp(3)
    if cfg.early:
        e("s_waitcnt vmcnt(3)"); estamp(4); e("s_waitcnt vmcnt(0)"); estamp(5)
    stamp(1)
    def Bblock():
        e(f"""
        s_add_u32 s67, s{sG}, {7 - cfg.lightg}
        s_and_b32 s67, s67, 7
        s_cmp_lt_u32 s67, 7
        s_cbranch_scc0 L_ld_noB
        s_add_u32 m0, s62, s64
        s_and_b32 s65, s{sI}, 15
        s_lshl4_add_u32 s65, s67, s65
        s_cmp_lt_u32 s{sI}, 16
        s_cbranch_scc0 L_ld_w2
        s_and_b32 s45, s65, 3
        s_mul_i32 s45, s45, {128*3584}
        s_lshr_b32 s46, s65, 2
        s_lshl_b32 s46, s46, 7
        s_add_u32 s45, s45, s46
        s_add_u32 s56, s16, s45
        s_addc_u32 s57, s17, 0
        v_mul_u32_u24 v10, 3584, v12
        v_add_u32 v10, v10, v13
        s_mul_i32 s47, s64, 28
        s_mov_b32 s46, {32*3584}
        s_branch L_ld_B
        L_ld_w2:
        s_lshr_b32 s45, s65, 3
        s_lshl_b32 s45, s45, 17
        s_and_b32 s46, s65, 7
        s_lshl_b32 s46, s46, 7
        s_add_u32 s45, s45, s46
        s_add_u32 s56, s20, s45
        s_addc_u32 s57, s21, 0
        v_lshl_add_u32 v10, v12, 10, v13
        s_lshl_b32 s47, s64, 3
        s_mov_b32 s46, 0x8000
        L_ld_B:
        s_sub_u32 s58, {512*1792*2}, s45
        s_mov_b32 s60, 0
        L_ldB:
        {'' if cfg.boost else f's_waitcnt vmcnt({W-1})'}
        buffer_load_dwordx4 v10, s[56:59], s47 offen {cfg.ntW} lds
        s_addk_i32 m0, 0x1000
        s_add_u32 s47, s47, s46""")
        if not cfg.boost: flagw()
        e(f"""
        s_add_u32 s60, s60, 1
        s_cmp_lt_u32 s60, 4
        s_cbranch_scc1 L_ldB""")
        if cfg.boost:
            e("v_mov_b32 v15, 1")
            for k in range(7, W-1, -1):
                e(f"s_waitcnt vmcnt({k})"); flagw()
        e(f"""
        L_ld_noB:
        """)
    def Kblock():
        e(f"""
        v_lshlrev_b32 v14, 8, v3
        v_xor_b32 v17, v3, v2
        v_lshl_add_u32 v4, v17, 4, v14
        v_xor_b32 v4, s{sWAVE}, v4
        s_lshr_b32 s45, s{sI}, 4
        s_lshl_b32 s45, s45, 26
        s_lshl_b32 s46, s{sG}, 23
        s_add_u32 s45, s45, s46
        s_and_b32 s46, s{sI}, 15
        s_lshl_b32 s46, s46, 16
        s_add_u32 s45, s45, s46
        s_add_u32 s45, s45, {28672*256}
        s_mov_b32 s50, 0x10000
        s_mov_b32 s51, 0x20000
        s_add_u32 s48, s6, s45
        s_addc_u32 s49, s7, 0
        s_mov_b32 s60, 0
        s_and_b32 s61, s44, 3
        L_ldK:
        s_lshr_b32 s47, s60, 2
        s_add_u32 s47, s47, s{sRS}
        s_and_b32 s47, s47, 3
        s_add_u32 s62, s61, s60
        {"s_brev_b32 s62, s62; s_lshr_b32 s62, s62, 30".replace("; ", chr(10)) if cfg.p8 else "s_and_b32 s62, s62, 3"}
        s_lshl2_add_u32 s47, s47, s62
        s_lshl_b32 s47, s47, 12
        s_add_u32 s47, s47, s64
        s_mov_b32 m0, s47
        s_add_u32 s60, s60, 1
        s_waitcnt vmcnt({W-1})
        buffer_load_dwordx4 v4, s[48:51], s47 offen {nt} lds""")
        flagw()
        e(f"""
        s_cmp_lt_u32 s60, 16
        s_cbranch_scc1 L_ldK
        """)
    if cfg.bpos:
        Kblock(); e("s_mov_b32 s66, s45"); Bblock(); e("s_mov_b32 s45, s66")
    else:
        Bblock(); Kblock()
    stamp(2)
    e(f"""
    v_lshlrev_b32 v17, 1, v3
    v_xor_b32 v17, v17, v2
    v_lshl_add_u32 v8, v17, 4, v14
    s_lshl_b32 s63, s63, 1
    v_xor_b32 v8, s63, v8
    v_lshlrev_b32 v14, 10, v3
    v_lshl_add_u32 v10, v17, 4, v14
    s_and_b32 s63, s{sWAVE}, 0x80
    v_xor_b32 v10, s63, v10
    s_add_u32 s52, s8, s45
    s_addc_u32 s53, s9, 0
    s_mov_b32 s54, 0x10000
    s_mov_b32 s55, 0x20000
    s_mov_b32 s60, 0
    s_and_b32 s61, s44, 3
    """)
    def vloop(name, end, win, noflag=False):
        e(f"""{name}:
        s_lshr_b32 s47, s60, 2
        s_add_u32 s47, s47, s{sRS}
        s_and_b32 s47, s47, 3
        s_add_u32 s62, s61, s60
        {"s_brev_b32 s62, s62; s_lshr_b32 s62, s62, 30".replace("; ", chr(10)) if cfg.p8 else "s_and_b32 s62, s62, 3"}
        s_lshl2_add_u32 s47, s47, s62
        s_lshl_b32 s47, s47, 12
        s_add_u32 s47, s47, s64
        s_add_u32 m0, s47, {L_V}
        s_add_u32 s60, s60, 1
        s_waitcnt vmcnt({win-1})
        buffer_load_dwordx4 v8, s[52:55], s47 offen {nt} lds""")
        if not noflag: flagw()
        e(f"""
        s_cmp_lt_u32 s60, {end}
        s_cbranch_scc1 {name}
        """)
    def woloop(name, g0, g1):
        if g0 == g1: return
        e(f"""
        s_add_u32 m0, s64, {L_WO + 4096*g0}
        s_lshl_b32 s47, s64, 2
        s_add_u32 s47, s47, {0x20000*g0}
        {name}:
        s_waitcnt vmcnt({W2-1})
        buffer_load_dwordx4 v10, s[56:59], s47 offen {cfg.ntW} lds
        s_addk_i32 m0, 0x1000
        s_add_u32 s47, s47, 0x20000""")
        flagw()
        e(f"""
        s_cmp_lt_u32 s47, {0x20000*g1}
        s_cbranch_scc1 {name}""")
    if W2 > W:
        assert cfg.w2at + (W2 - W) <= 12
        if cfg.w2at > 0: vloop("L_ldV0", cfg.w2at, W)
        vloop("L_ldV0b", cfg.w2at + W2 - W, W2, noflag=True)
        if cfg.w2at + W2 - W < 12: vloop("L_ldV1", 12, W2)
    elif W2 < W:
        vloop("L_ldV0", cfg.w2at, W)
        for k in range(W - W2):
            e(f"s_waitcnt vmcnt({W-1-k})")
            flagw()
        if cfg.w2at < 12: vloop("L_ldV1", 12, W2)
    else:
        vloop("L_ldV1", 12, W)
    e(f"""
    s_lshl_b32 s45, s{sG}, 19
    s_lshr_b32 s46, s{sI}, 2
    s_lshl_b32 s46, s46, 14
    s_add_u32 s45, s45, s46
    s_and_b32 s46, s{sI}, 3
    s_lshl_b32 s46, s46, 8
    s_add_u32 s45, s45, s46
    s_add_u32 s56, s12, s45
    s_addc_u32 s57, s13, 0
    s_mov_b32 s58, {(3*128+15)*1024+256}
    """)
    spin_ge(1, F_T, 2, 17)
    woloop("L_ldWO1", 0, cfg.woe)
    vloop("L_ldV2", 16, W2)
    woloop("L_ldWO2", cfg.woe, 4)
    stamp(3)
    if cfg.vlf:
        assert W2 - 1 >= 4 - cfg.woe
        e("v_mov_b32 v18, 1\ns_mov_b64 exec, 1")
    for k in range(W2-1, -1, -1):
        e(f"s_waitcnt vmcnt({k})")
        if k == 4 - cfg.woe and cfg.vlf: e(f"ds_add_u32 v1, v18 offset:{F_WO}")
        flagw()
        if k == 4 - cfg.woe: stamp(4)
    stamp(5)
    if cfg.trace:
        e(f"""s_mov_b64 exec, -1
        s_lshl_b32 s60, s2, 10
        s_lshl_b32 s61, s{sWAVE}, 2
        s_add_u32 s60, s60, s61
        s_add_u32 s68, s28, s60
        s_addc_u32 s69, s29, 0
        s_add_u32 s68, s68, 0x18000000
        s_addc_u32 s69, s69, 0
        v_lshlrev_b32 v21, 2, v0
        global_store_dword v21, v20, s[68:69]""")
    if cfg.diag: e(f"s_lshr_b32 s{sWAVE}, s{sWAVE}, 6")
    stamps_out(6)
    e("s_endpgm")

    e(f"""L_nl2:
    {f"s_mov_b64 exec, 1; v_mov_b32 v5, 2; ds_write_b32 v1, v5 offset:{F_T}; s_waitcnt vmcnt(0) lgkmcnt(0); s_endpgm".replace("; ", chr(10)) if cfg.only == 1 else ""}
    s_setprio {cfg.nprio}
    v_and_b32 v2, 15, v0
    v_lshrrev_b32 v3, 4, v0
    s_mul_i32 s44, s2, {cfg.rotmul}
    s_bfe_u32 s{sRS}, s44, 0x20002
    s_lshl_b32 s{sSLOT}, s{sG}, 5
    s_add_u32 s{sSLOT}, s{sSLOT}, s{sI}
    s_mov_b32 s{sCAP}, {SPIN_CAP}
    s_add_u32 s68, s{sG}, {7 - cfg.lightg}
    s_and_b32 s68, s68, 7
    s_cmp_lt_u32 s68, 7
    s_cselect_b32 s{sVB}, 24, 20
    s_mov_b32 s{sKEND}, {'20' if cfg.bpos else f's{sVB}'}
    v_mov_b32 v4, {TMASK}
    s_mov_b32 s{SRD_WS}, s28
    s_mov_b32 s{SRD_WS+1}, s29
    s_mov_b32 s{SRD_WS+2}, {ws_bytes()}
    s_mov_b32 s{SRD_WS+3}, 0x20000
    s_mov_b32 s{sOFF}, 0
    s_mov_b32 s{sBOFF}, {B_OFF}
    s_cmp_ge_u32 s{sWAVE}, 6
    s_cbranch_scc1 L_compute
    """)
    e(f"""
    s_cmp_eq_u32 s{sWAVE}, 4
    s_cbranch_scc0 L_roleB
    s_mov_b32 s44, 0
    s_lshr_b32 s53, s{sI}, 3
    s_lshl_b32 s52, s{sSLOT}, 9
    s_add_u32 s52, s52, {W_QP}
    s_mov_b32 s54, {L_WO}
    s_mov_b32 s55, {L_ACTA}
    s_mov_b32 s45, 4
    s_branch L_tilecommon
    L_roleB:
    s_add_u32 s54, s{sRS}, 3
    s_and_b32 s54, s54, 3
    s_add_u32 s54, s54, 4
    s_lshl_b32 s54, s54, 14
    s_mov_b32 s55, {L_ACTB}
    s_mov_b32 s45, {24 if cfg.bpos else 8}
    s_and_b32 s52, s{sI}, 15
    s_lshl4_add_u32 s52, s68, s52
    s_lshr_b32 s44, s{sI}, 4
    s_and_b32 s53, s52, 3
    s_lshr_b32 s46, s52, 3
    s_lshl_b32 s52, s52, 9
    s_cmp_eq_u32 s44, 0
    s_cselect_b32 s53, s53, s46
    s_mov_b32 s46, {fp_off()}
    s_cselect_b32 s46, {W_HP}, s46
    s_add_u32 s52, s52, s46
    s_cmp_eq_u32 s68, 7
    s_cselect_b32 s44, 2, s44
    L_tilecommon:
    """)
    estamp(2)
    stamp(1)
    e(f"""
    v_lshrrev_b32 v5, 2, v2
    v_lshl_add_u32 v5, v3, 3, v5
    v_lshlrev_b32 v5, 7, v5
    v_and_b32 v6, 3, v2
    v_lshl_add_u32 v5, v6, 3, v5
    v_add_u32 v5, s54, v5
    v_lshrrev_b32 v6, 3, v2
    v_and_b32 v7, 1, v3
    v_lshl_or_b32 v6, v7, 1, v6
    """)
    for u in range(4):
        e(f"v_xor_b32 v7, {u}, v6\nv_lshl_add_u32 v{16+u}, v7, 5, v5")
    e(f"""
    v_and_b32 v5, 1, v0
    v_mul_u32_u24 v5, 288, v5
    v_lshl_add_u32 v5, v3, 4, v5
    v_add_u32 v20, s55, v5
    v_mov_b32 v21, 1
    v_mov_b32 v60, 0
    s_waitcnt lgkmcnt(0)
    """)
    nonce_from_epoch()
    e(f"""
    s_cmp_eq_u32 s44, 0
    s_waitcnt vmcnt(0)
    s_cbranch_scc0 L_noLN
    """)
    estamp(4)
    for k in range(8):
        e(f"v_lshlrev_b32 v{24+2*k}, 16, v{8+k}\nv_and_b32 v{25+2*k}, 0xffff0000, v{8+k}")
    e("v_pk_add_f32 v[40:41], v[24:25], v[26:27]")
    for k in range(2, 8):
        e(f"v_pk_add_f32 v[40:41], v[40:41], v[{24+2*k}:{25+2*k}]")
    e("v_add_f32 v40, v40, v41")
    dpp_add(40, (8, 4, 2, 1))
    e("v_mov_b32 v41, v40\ns_nop 1\nv_permlane16_swap_b32 v40, v41\ns_nop 0\nv_add_f32 v40, v40, v41")
    e("v_mul_f32 v40, 0xbb000000, v40\nv_mov_b32 v41, v40")
    e("v_pk_add_f32 v[42:43], v[24:25], v[40:41]\nv_pk_mul_f32 v[44:45], v[42:43], v[42:43]")
    for k in range(1, 8):
        e(f"v_pk_add_f32 v[42:43], v[{24+2*k}:{25+2*k}], v[40:41]\nv_pk_fma_f32 v[44:45], v[42:43], v[42:43], v[44:45]")
    e("v_add_f32 v44, v44, v45")
    dpp_add(44, (8, 4, 2, 1))
    e("v_mov_b32 v45, v44\ns_nop 1\nv_permlane16_swap_b32 v44, v45\ns_nop 0\nv_add_f32 v44, v44, v45")
    e("v_mul_f32 v44, 0x3b000000, v44")
    rnd_bf16(44)
    e("v_add_f32 v44, 0x3727c5ac, v44")
    rnd_bf16(44)
    e("v_sqrt_f32 v44, v44\ns_nop 0")
    rnd_bf16(44)
    e("v_rcp_f32 v44, v44")
    rnd_bf16(40)
    e("v_mov_b32 v41, v40\nv_mov_b32 v45, v44")
    for k in range(8):
        e(f"v_pk_add_f32 v[42:43], v[{24+2*k}:{25+2*k}], v[40:41]")
        e(f"v_cvt_pk_bf16_f32 v42, v42, v43\nv_and_b32 v43, 0xffff0000, v42\nv_lshlrev_b32 v42, 16, v42")
        e(f"v_pk_mul_f32 v[42:43], v[42:43], v[44:45]\nv_cvt_pk_bf16_f32 v{8+k}, v42, v43")
    e(f"""
    v_bfe_u32 v5, v0, 3, 2
    v_lshrrev_b32 v6, 5, v0
    v_mul_u32_u24 v6, 288, v6
    v_and_b32 v7, 7, v0
    v_lshl_add_u32 v6, v7, 5, v6
    v_add_u32 v6, s55, v6
    v_cmp_eq_u32 vcc, s53, v5
    s_and_saveexec_b64 s[56:57], vcc
    ds_write_b128 v6, v[8:11]
    ds_write_b128 v6, v[12:15] offset:16
    s_mov_b64 exec, -1
    L_noLN:
    """)
    stamp(2)
    e(f"""
    s_cmp_eq_u32 s44, 2
    s_cbranch_scc1 L_notile
    """)
    spin_land(45, 5, slp=cfg.slp)
    estamp(5)
    for u in range(4):
        for t in range(4):
            r = 64 + 16*u + 4*t
            e(f"ds_read_b64_tr_b16 v[{r}:{r+1}], v{16+u} offset:{t*4096}")
            e(f"ds_read_b64_tr_b16 v[{r+2}:{r+3}], v{16+u} offset:{t*4096+512}")
    e(f"""
    s_waitcnt lgkmcnt(0)
    L_notile:
    """)
    flag_add(1, F_T, 21)
    stamp(3)
    e(f"""
    s_cmp_eq_u32 s44, 1
    s_cbranch_scc0 L_noH
    """)
    e(f"""
    v_bfe_u32 v5, v0, 4, 1
    v_lshlrev_b32 v5, 11, v5
    v_lshrrev_b32 v6, 5, v0
    v_lshl_add_u32 v5, v6, 8, v5
    v_lshl_add_u32 v5, v2, 4, v5
    s_lshl_b32 s56, s53, 12
    s_add_u32 s56, s56, {W_HP}
    v_add_u32 v5, s56, v5
    v_and_b32 v7, 31, v0
    v_lshlrev_b32 v7, 3, v7
    s_lshl_b32 s56, s53, 8
    v_add_u32 v22, s56, v7
    global_load_dwordx2 v[22:23], v22, s[18:19]
    v_mul_u32_u24 v6, 288, v6
    v_add3_u32 v6, v6, v7, s55
    """)
    e(f"s_mov_b32 s45, {cfg.hgate}")
    spin_land(45, 7, slp=cfg.slp)
    e("L_hretry:")
    for k in range(4):
        e(f"buffer_load_dwordx4 v[{24+4*k}:{27+4*k}], v5, s[{SRD_WS}:{SRD_WS+3}], s{sOFF} offen offset:{512*k} sc1")
    e("s_waitcnt vmcnt(0)")
    for k in range(4): tag_check(24+4*k, 7, k == 0)
    e(f"""
    v_and_b32 v7, v4, v7
    v_cmp_ne_u32 vcc, 0, v7
    s_cbranch_vccz L_hok""")
    get_loc(7)
    e(f"""
    s_sub_u32 s{sCAP}, s{sCAP}, 1
    s_cbranch_scc0 L_hretry
    s_mov_b32 s{sCAP}, 0
    L_hok:""")
    for k in range(16): e(f"v_and_b32 v{24+k}, 0xfffff800, v{24+k}")
    e("""
    v_pk_add_f32 v[24:25], v[24:25], v[28:29]
    v_pk_add_f32 v[26:27], v[26:27], v[30:31]
    v_pk_add_f32 v[32:33], v[32:33], v[36:37]
    v_pk_add_f32 v[34:35], v[34:35], v[38:39]
    v_pk_add_f32 v[24:25], v[24:25], v[32:33]
    v_pk_add_f32 v[26:27], v[26:27], v[34:35]
    v_cvt_pk_bf16_f32 v24, v24, v25
    v_cvt_pk_bf16_f32 v26, v26, v27
    v_and_b32 v25, 0xffff0000, v24
    v_lshlrev_b32 v24, 16, v24
    v_and_b32 v27, 0xffff0000, v26
    v_lshlrev_b32 v26, 16, v26
    v_lshlrev_b32 v28, 16, v22
    v_and_b32 v29, 0xffff0000, v22
    v_lshlrev_b32 v30, 16, v23
    v_and_b32 v31, 0xffff0000, v23
    v_pk_add_f32 v[24:25], v[24:25], v[28:29]
    v_pk_add_f32 v[26:27], v[26:27], v[30:31]
    v_cvt_pk_bf16_f32 v24, v24, v25
    v_cvt_pk_bf16_f32 v26, v26, v27
    v_and_b32 v25, 0xffff0000, v24
    v_lshlrev_b32 v24, 16, v24
    v_and_b32 v27, 0xffff0000, v26
    v_lshlrev_b32 v26, 16, v26
    v_max_f32 v24, 0, v24
    v_max_f32 v25, 0, v25
    v_max_f32 v26, 0, v26
    v_max_f32 v27, 0, v27
    v_pk_mul_f32 v[24:25], v[24:25], v[24:25]
    v_pk_mul_f32 v[26:27], v[26:27], v[26:27]
    v_cvt_pk_bf16_f32 v24, v24, v25
    v_cvt_pk_bf16_f32 v25, v26, v27
    ds_write_b64 v6, v[24:25]
    L_noH:
    s_cmp_eq_u32 s44, 2
    s_cbranch_scc1 L_nopub
    """)
    e("s_waitcnt lgkmcnt(0)")
    for t in range(4):
        e(f"ds_read_b128 v[{24+4*t}:{27+4*t}], v20 offset:{64*t}")
    e(f"""
    s_cmp_eq_u32 s44, 0
    s_cselect_b32 s56, 8, 4
    s_cselect_b32 s57, 6, 5
    s_cselect_b32 s58, 4, 7
    v_and_b32 v5, 1, v0
    v_lshlrev_b32 v5, s56, v5
    v_bfe_u32 v6, v0, 1, 2
    v_lshl_add_u32 v5, v6, s57, v5
    v_lshl_add_u32 v5, v3, s58, v5
    v_add_u32 v60, s52, v5
    v_and_b32 v6, 2, v0
    v_cmp_ne_u32 s[56:57], 0, v6
    v_and_b32 v6, 4, v0
    v_cmp_ne_u32 s[58:59], 0, v6
    s_waitcnt lgkmcnt(0)
    """)
    for t in range(4):
        for u in range(4):
            r = 64 + 16*u + 4*t
            c = f"v[{40+4*u}:{43+4*u}]"
            e(f"v_mfma_f32_16x16x32_bf16 {c}, v[{r}:{r+3}], v[{24+4*t}:{27+4*t}], {c if t else 0}")
    e("s_nop 7")
    for k in range(4):
        e(f"v_cndmask_b32 v{40+k}, v{40+k}, v{44+k}, s[56:57]")
    for k in range(4):
        e(f"v_cndmask_b32 v{48+k}, v{48+k}, v{52+k}, s[56:57]")
    for k in range(4):
        e(f"v_cndmask_b32 v{56+k}, v{40+k}, v{48+k}, s[58:59]")
    for k in range(4): e(f"v_add_u32 v{56+k}, 0x400, v{56+k}")
    tag_insert(56, 4)
    e(f"""
    s_mov_b32 s74, 0x00ff00ff
    s_mov_b32 s75, 0x00ff00ff
    s_mov_b64 exec, s[74:75]
    s_cmp_eq_u32 s44, 0
    s_cbranch_scc0 L_pubB
    buffer_store_dwordx4 v[56:59], v60, s[{SRD_WS}:{SRD_WS+3}], 0 offen {cfg.stA}
    s_branch L_pubE
    L_pubB:
    buffer_store_dwordx4 v[56:59], v60, s[{SRD_WS}:{SRD_WS+3}], 0 offen sc1
    L_pubE:
    s_mov_b64 exec, -1
    L_nopub:
    """)
    stamp(4)
    e(f"""
    s_cmp_eq_u32 s{sWAVE}, 4
    s_cbranch_scc0 L_final
    """)
    e(f"""
    v_lshlrev_b32 v10, 9, v3
    v_lshl_add_u32 v10, v2, 4, v10
    s_lshl_b32 s56, s{sG}, 14
    s_lshr_b32 s57, s{sI}, 4
    s_lshl_b32 s57, s57, 8
    s_add_u32 s56, s56, s57
    s_add_u32 s56, s56, {W_QP}
    v_add_u32 v10, s56, v10
    v_add_u32 v11, 0x1000, v10
    v_add_u32 v12, 0x2000, v10
    v_add_u32 v13, 0x3000, v10
    v_lshrrev_b32 v8, 5, v0
    v_lshlrev_b32 v8, 5, v8
    v_lshl_add_u32 v8, v0, 3, v8
    v_add_u32 v8, {L_QS}, v8
    s_sub_u32 s45, s{sKEND}, {cfg.qlead}
    s_getreg_b32 s76, hwreg(HW_REG_XCC_ID, 0, 4)
    s_lshl_b32 s56, s76, 16
    v_mov_b32 v64, s56
    v_mov_b32 v65, 0
    v_mov_b32 v66, 0
    v_mov_b32 v67, 0
    s_lshl_b32 s56, s{sSLOT}, 7
    s_add_u32 s56, s56, {W_ST+64}
    {'v_lshl_add_u32 v61, v0, 4, s56' if cfg.meta4 else 'v_mov_b32 v61, s56'}
    v_and_b32 v62, 31, v0
    v_lshlrev_b32 v62, 7, v62
    s_lshl_b32 s56, s{sG}, 12
    s_add_u32 s56, s56, {W_ST+64}
    v_add_u32 v62, s56, v62
    s_mov_b32 s77, 0
    s_mov_b32 s78, 0
    """)
    tag_insert(64, 4)
    e(f"""
    s_mov_b64 exec, {15 if cfg.meta4 else 1}
    buffer_store_dwordx4 v[64:67], v61, s[{SRD_WS}:{SRD_WS+3}], 0 offen {cfg.stA}
    s_mov_b64 exec, -1
    """)
    def pubB_q():
        L = lbl("L_pb")
        e(f"""
        s_cmp_eq_u32 s77, 0
        s_cbranch_scc0 {L}
        s_mov_b32 s77, 1
        s_mov_b64 exec, s[74:75]
        buffer_store_dwordx4 v[56:59], v60, s[{SRD_WS}:{SRD_WS+3}], s{sBOFF} offen sc1
        s_mov_b64 exec, 1
        buffer_store_dwordx4 v[64:67], v61, s[{SRD_WS}:{SRD_WS+3}], s{sBOFF} offen sc1
        s_mov_b64 exec, -1
        {L}:""")
    spin_land(45, 7, slp=cfg.slp)
    e("L_qretry:")
    for v in range(2):
        for k in range(4):
            r = 24 + 16*v + 4*k
            e(f"buffer_load_dwordx4 v[{r}:{r+3}], v{10+k}, s[{SRD_WS}:{SRD_WS+3}], s{sOFF} offen offset:{2048*v} {cfg.ldA}")
    e(f"buffer_load_dwordx4 v[68:71], v62, s[{SRD_WS}:{SRD_WS+3}], s{sOFF} offen {cfg.ldA}")
    e("s_waitcnt vmcnt(0)")
    for k in range(8): tag_check(24+4*k, 7, k == 0)
    tag_check(68, 7, False)
    e(f"""
    v_and_b32 v7, v4, v7
    v_cmp_ne_u32 vcc, 0, v7
    s_cbranch_vccz L_qok
    s_add_u32 s78, s78, 1
    s_cmp_lt_u32 s78, {cfg.ntmo}
    s_cbranch_scc1 L_qretry
    s_xor_b32 s{sOFF}, s{sOFF}, s{sBOFF}
    """)
    pubB_q()
    e(f"""
    s_sub_u32 s{sCAP}, s{sCAP}, 1
    s_cbranch_scc0 L_qretry
    s_mov_b32 s{sCAP}, 0
    L_qok:
    v_lshrrev_b32 v68, 16, v68
    v_cmp_ne_u32 vcc, s76, v68
    s_mov_b32 s{sOFF}, 0
    s_cbranch_vccz L_qloc
    s_mov_b32 s{sOFF}, s{sBOFF}
    """)
    pubB_q()
    e(f"""L_qloc:
    s_add_u32 s56, s{sOFF}, 1
    v_mov_b32 v9, s56
    """)
    for k in range(32): e(f"v_and_b32 v{24+k}, 0xfffff800, v{24+k}")
    for v in range(2):
        r = 24 + 16*v
        e(f"""
        v_pk_add_f32 v[{r}:{r+1}], v[{r}:{r+1}], v[{r+4}:{r+5}]
        v_pk_add_f32 v[{r+2}:{r+3}], v[{r+2}:{r+3}], v[{r+6}:{r+7}]
        v_pk_add_f32 v[{r+8}:{r+9}], v[{r+8}:{r+9}], v[{r+12}:{r+13}]
        v_pk_add_f32 v[{r+10}:{r+11}], v[{r+10}:{r+11}], v[{r+14}:{r+15}]
        v_pk_add_f32 v[{r}:{r+1}], v[{r}:{r+1}], v[{r+8}:{r+9}]
        v_pk_add_f32 v[{r+2}:{r+3}], v[{r+2}:{r+3}], v[{r+10}:{r+11}]
        v_cvt_pk_bf16_f32 v{r}, v{r}, v{r+1}
        v_cvt_pk_bf16_f32 v{r+1}, v{r+2}, v{r+3}
        ds_write_b64 v8, v[{r}:{r+1}] offset:{576*v}
        """)
    flag_set(1, F_Q, 9)
    stamp(5)
    e(f"""
    v_and_b32 v5, 31, v0
    v_lshrrev_b32 v6, 5, v0
    v_lshlrev_b32 v9, 4, v5
    v_lshl_add_u32 v9, v6, 2, v9
    v_add_u32 v9, {L_WT}, v9
    v_lshlrev_b32 v5, 7, v5
    v_lshl_add_u32 v5, v6, 4, v5
    s_lshl_b32 s56, s{sG}, 12
    s_add_u32 s56, s56, {W_ST}
    v_add_u32 v5, s56, v5
    """)
    if cfg.slead > 0:
        e(f"s_add_u32 s45, s{sVB}, {cfg.slead}")
        spin_land(45, 7, slp=cfg.slp)
    spin_ge(1, F_V, 4, 7, slp=cfg.slp)
    def lds_(r):
        e(f"""
        buffer_load_dwordx4 v[{r}:{r+3}], v5, s[{SRD_WS}:{SRD_WS+3}], s{sOFF} offen {cfg.ldA}
        buffer_load_dwordx4 v[{r+4}:{r+7}], v5, s[{SRD_WS}:{SRD_WS+3}], s{sOFF} offen offset:32 {cfg.ldA}""")
    if cfg.pps:
        def chks(r, L):
            tag_check(r, 7, True); tag_check(r+4, 7, False)
            e(f"v_and_b32 v7, v4, v7\nv_cmp_ne_u32 vcc, 0, v7\ns_cbranch_vccz {L}")
        lds_(32)
        e(f"s_add_u32 s45, s45, {cfg.pps}")
        spin_land(45, 7, slp=cfg.slp)
        lds_(40)
        e("s_mov_b64 s[62:63], -1\nL_sp2:\ns_waitcnt vmcnt(2)")
        chks(32, "L_sX")
        e("s_mov_b64 s[60:61], vcc\ns_mov_b64 exec, vcc")
        lds_(32)
        e("s_mov_b64 exec, s[62:63]\ns_waitcnt vmcnt(2)")
        chks(40, "L_sY")
        e("s_mov_b64 s[62:63], vcc\ns_mov_b64 exec, vcc")
        lds_(40)
        e(f"""
        s_mov_b64 exec, s[60:61]
        s_sub_u32 s{sCAP}, s{sCAP}, 1
        s_cbranch_scc0 L_sp2
        s_mov_b32 s{sCAP}, 0
        s_waitcnt vmcnt(0)
        L_sY:
        s_mov_b64 exec, -1""")
        for k in (0, 1, 4, 5): e(f"v_mov_b32 v{24+k}, v{40+k}")
        e("s_branch L_sj\nL_sX:\ns_mov_b64 exec, -1")
        for k in (0, 1, 4, 5): e(f"v_mov_b32 v{24+k}, v{32+k}")
        e("L_sj:")
    else:
        e("L_sretry:")
        lds_(24)
        e("s_waitcnt vmcnt(0)")
        tag_check(24, 7, True); tag_check(28, 7, False)
        tag_branch(7, "L_sretry", masked=True)
    e("""
    v_and_b32 v24, 0xfffff800, v24
    v_and_b32 v28, 0xfffff800, v28
    v_and_b32 v25, 0xfffff800, v25
    v_and_b32 v29, 0xfffff800, v29
    v_max_f32_dpp v26, v24, v24 row_ror:8 row_mask:0xf bank_mask:0xf
    v_max_f32_dpp v30, v28, v28 row_ror:8 row_mask:0xf bank_mask:0xf""")
    for r in (4, 2, 1):
        e(f"""s_nop 0
        v_max_f32_dpp v26, v26, v26 row_ror:{r} row_mask:0xf bank_mask:0xf
        v_max_f32_dpp v30, v30, v30 row_ror:{r} row_mask:0xf bank_mask:0xf""")
    e(f"""
    v_sub_f32 v24, v24, v26
    v_sub_f32 v28, v28, v30
    v_mul_f32 v24, {LOG2E}, v24
    v_mul_f32 v28, {LOG2E}, v28
    v_exp_f32 v24, v24
    v_exp_f32 v28, v28
    s_nop 0
    v_mul_f32 v25, v24, v25
    v_mul_f32 v29, v28, v29""")
    for r in (8, 4, 2, 1):
        e(f"""s_nop 0
        v_add_f32_dpp v25, v25, v25 row_ror:{r} row_mask:0xf bank_mask:0xf
        v_add_f32_dpp v29, v29, v29 row_ror:{r} row_mask:0xf bank_mask:0xf""")
    e(f"""
    v_rcp_f32 v25, v25
    v_rcp_f32 v29, v29
    s_nop 0
    v_mul_f32 v24, v24, v25
    v_mul_f32 v28, v28, v29
    ds_write2_b32 v9, v24, v28 offset0:0 offset1:2
    """)
    flag_set(1, F_W, 21)
    if cfg.dirty:
        e(f"s_mov_b32 s{SRD_WS+2}, 0x2000000\ns_mul_i32 s56, s2, {1024*cfg.dirty}\ns_add_u32 s56, s56, 0x400000\nv_lshlrev_b32 v5, 4, v0")
        for k in range(cfg.dirty):
            e(f"buffer_store_dwordx4 v[24:27], v5, s[{SRD_WS}:{SRD_WS+3}], s56 offen\ns_add_u32 s56, s56, 1024")
    stamp(6)
    if cfg.diag: e(f"s_waitcnt lgkmcnt(0)\ns_sub_u32 s94, {SPIN_CAP}, s{sCAP}\ns_lshl_b32 s94, s94, 8\ns_add_u32 s94, s94, s78\ns_mov_b32 s95, 0")
    if cfg.cntamp == 1: e("s_lshr_b32 s94, s94, 8\ns_mul_i32 s94, s94, 100\ns_add_u32 s94, s94, s80")
    if cfg.cntamp == 2: e("s_and_b32 s94, s94, 255\ns_mul_i32 s94, s94, 100\ns_add_u32 s94, s94, s80")
    stamps_out(8)
    e("s_endpgm")

    e(f"""L_final:
    {"s_waitcnt lgkmcnt(0); s_lshl_b32 s56, s2, 2; s_add_u32 s56, s56, 0x1E0000; v_mov_b32 v5, s56; v_mov_b32 v6, s80; s_mov_b64 exec, 1; buffer_store_dword v6, v5, s[36:39], 0 offen sc1; s_mov_b64 exec, -1".replace("; ", chr(10)) if cfg.skew else ""}
    s_cmp_eq_u32 s44, 0
    s_cbranch_scc0 L_fin0
    """)
    get_loc(7)
    e(f"""
    s_cmp_eq_u32 s{sOFF}, 0
    s_cbranch_scc1 L_fin0
    s_mov_b64 exec, s[74:75]
    buffer_store_dwordx4 v[56:59], v60, s[{SRD_WS}:{SRD_WS+3}], s{sBOFF} offen sc1
    s_mov_b64 exec, -1
    L_fin0:
    {f"s_lshr_b32 s63, s{sI}, 3; s_lshl2_add_u32 s63, s{sG}, s63" .replace("; ", chr(10)) if cfg.omap else f"s_lshr_b32 s63, s{sI}, 3; s_lshl3_add_u32 s63, s63, s{sG}".replace("; ", chr(10))}
    s_mov_b32 s69, s63
    s_lshr_b32 s56, s63, 3            ; ctile
    s_and_b32 s57, s{sI}, 1           ; b
    s_bfe_u32 s58, s{sI}, 0x10001     ; e
    s_bfe_u32 s59, s{sI}, 0x10002
    s_and_b32 s60, s63, 1
    s_lshl1_add_u32 s59, s60, s59     ; G
    s_bfe_u32 s60, s63, 0x20001       ; w
    s_lshl2_add_u32 s61, s56, s60     ; 4*ctile + w
    s_lshl1_add_u32 s62, s61, s58
    s_lshl2_add_u32 s62, s62, s59     ; nq = n0/4
    v_and_b32 v5, 1, v3
    v_lshlrev_b32 v5, 1, v5
    v_lshrrev_b32 v6, 1, v3
    v_or_b32 v5, v5, v6              ; e(R)
    v_lshlrev_b32 v5, 1, v5
    s_lshl_b32 s63, s62, 3
    v_add_u32 v6, s63, v5
    global_load_ushort v10, v6, s[22:23]
    s_lshl_b32 s63, s57, 10
    v_add_u32 v8, s63, v6
    global_load_ushort v11, v8, s[4:5]
    s_lshr_b32 s63, s62, 4           ; ctile8
    s_lshl2_add_u32 s63, s63, s59
    s_lshl_b32 s63, s63, 2
    s_bfe_u32 s61, s62, 0x20002      ; u
    s_add_u32 s63, s63, s61
    s_lshl1_add_u32 s63, s63, s57
    s_lshl4_add_u32 s63, s63, {fp_off()}
    v_min_u32 v5, 13, v0
    v_lshlrev_b32 v5, 12, v5
    v_add_u32 v5, s63, v5
    s_and_b32 s61, s{sI}, 7
    s_lshl3_add_u32 s63, s69, s61
    s_lshl4_add_u32 s63, s63, {W_SP}
    v_lshlrev_b32 v6, 12, v0
    {"v_lshrrev_b32 v7, 1, v0; v_lshl_add_u32 v6, v7, 13, v6".replace("; ", chr(10)) if cfg.dual3 else ""}
    v_add_u32 v6, s63, v6
    s_mov_b32 s59, {0x2000 if cfg.dual3 == 1 else 0}
    v_cmp_gt_u32 s[60:61], 14, v0
    s_mov_b32 s64, s24
    s_mov_b32 s65, s25
    s_mov_b32 s66, 2048
    s_mov_b32 s67, 0x20000
    s_add_u32 s45, s{sVB}, {cfg.flead}
    """)
    spin_land(45, 7, slp=cfg.slp)
    e(f"""L_fretry:
    buffer_load_dwordx4 v[24:27], v5, s[{SRD_WS}:{SRD_WS+3}], 0 offen sc1
    s_waitcnt vmcnt(0)
    """)
    tag_check(24, 7, True)
    tag_branch(7, "L_fretry", masked=True)
    def gate_math():
        for k in range(4):
            e(f"v_and_b32 v{24+k}, 0xfffff800, v{24+k}")
        for k in range(4):
            e(f"v_cndmask_b32 v{24+k}, 0, v{24+k}, s[60:61]")
        reduce4_rows(24, 28)
        dpp_add(24, (8, 4, 2, 1))
        rnd_bf16(24)
        e("v_lshlrev_b32 v10, 16, v10\nv_add_f32 v24, v24, v10")
        rnd_bf16(24)
        e(f"""
        v_mul_f32 v25, 0xbfb8aa3b, v24
        v_exp_f32 v25, v25
        s_nop 0
        v_add_f32 v25, 1.0, v25
        v_rcp_f32 v25, v25
        s_nop 0
        v_mul_f32 v12, v24, v25
        """)
        rnd_bf16(12)
        e("v_lshlrev_b32 v11, 16, v11")
    if not (cfg.pp3 and cfg.gap3 == 0): gate_math()
    stamp(5)
    if cfg.h3gate == 0: spin_ge(1, F_O, 4, 7, slp=cfg.slp)
    else: spin_ge(1, F_K, 4, 7, slp=cfg.slp)
    if cfg.h3slp: e(f"s_sleep {cfg.h3slp}")
    def ld3(r): e(f"buffer_load_dwordx4 v[{r}:{r+3}], v6, s[{SRD_WS}:{SRD_WS+3}], {'s59' if r == 36 else 0} offen sc1")
    def chk3(r, L):
        tag_check(r, 7, True)
        e(f"v_and_b32 v7, v4, v7\nv_cmp_ne_u32 vcc, 0, v7\ns_cbranch_vccz {L}")
    if cfg.hack4: e("v_and_b32 v6, 0xffffefff, v6\nv_or_b32 v6, 0, v6")
    if cfg.pp3:
        ld3(32)
        if cfg.gap3: e(f"s_sleep {cfg.gap3}")
        else: gate_math()
        ld3(36)
        e("s_mov_b64 s[62:63], -1\nL_3p:\ns_waitcnt vmcnt(1)")
        chk3(32, "L_3X")
        e("s_mov_b64 s[60:61], vcc\ns_mov_b64 exec, vcc")
        ld3(32)
        e("s_mov_b64 exec, s[62:63]\ns_waitcnt vmcnt(1)")
        chk3(36, "L_3Y")
        e("s_mov_b64 s[62:63], vcc\ns_mov_b64 exec, vcc")
        ld3(36)
        e(f"""
        s_mov_b64 exec, s[60:61]
        s_sub_u32 s{sCAP}, s{sCAP}, 1
        s_cbranch_scc0 L_3p
        s_mov_b32 s{sCAP}, 0
        s_waitcnt vmcnt(0)
        L_3Y:
        s_mov_b64 exec, -1""")
        for k in range(4): e(f"v_and_b32 v{24+k}, 0xfffff800, v{36+k}")
        e("s_branch L_3j\nL_3X:\ns_mov_b64 exec, -1")
        for k in range(4): e(f"v_and_b32 v{24+k}, 0xfffff800, v{32+k}")
        e("L_3j:")
    else:
        e("L_3retry:")
        ld3(24)
        e("s_waitcnt vmcnt(0)")
        tag_check(24, 7, True)
        tag_branch(7, "L_3retry", masked=True, slp=cfg.h3loop)
        for k in range(4): e(f"v_and_b32 v{24+k}, 0xfffff800, v{24+k}")
    stamp(6)
    reduce4_rows(24, 28)
    dpp_add(24, (8, 4, 2, 1))
    rnd_bf16(24)
    e("v_mul_f32 v24, v24, v12")
    rnd_bf16(24)
    e(f"""
    v_add_f32 v24, v24, v11
    v_cvt_pk_bf16_f32 v24, v24, v24
    s_mov_b32 s56, 0x00010001
    s_mov_b32 s57, 0x00010001
    s_mov_b64 exec, s[56:57]
    buffer_store_short v24, v8, s[64:67], 0 offen {cfg.outst}
    s_cmp_eq_u32 s2, {999 if cfg.noep else 0}
    s_cbranch_scc0 L_fin2
    s_mov_b64 exec, 1
    v_mov_b32 v26, s34
    v_mov_b32 v27, s35
    v_mov_b32 v28, 0
    buffer_store_dwordx2 v[26:27], v28, s[{SRD_WS}:{SRD_WS+3}], 0 offen {cfg.epst}
    L_fin2:
    """)
    if cfg.skew:
        e(f"""
        s_cmp_eq_u32 s2, 0
        s_cbranch_scc0 L_skend
        s_mov_b64 exec, -1
        v_lshlrev_b32 v5, 4, v0
        v_add_u32 v5, 0x1E0000, v5
        buffer_load_dwordx4 v[40:43], v5, s[{SRD_WS}:{SRD_WS+3}], 0 offen sc1
        s_waitcnt vmcnt(0) lgkmcnt(0)
        v_subrev_u32 v40, s80, v40
        v_subrev_u32 v41, s80, v41
        v_subrev_u32 v42, s80, v42
        v_subrev_u32 v43, s80, v43
        v_max3_i32 v44, v40, v41, v42
        v_max_i32 v44, v44, v43
        v_min3_i32 v45, v40, v41, v42
        v_min_i32 v45, v45, v43
        s_mov_b32 s60, 0x80000000
        s_mov_b32 s61, 0x7fffffff
        """)
        if cfg.skewg >= 0: e(f"v_mov_b32 v44, v{40 + (cfg.skewg & 3)}\ns_nop 1")
        for l in range(64):
            if cfg.skewg >= 0 and (l & 1) != (cfg.skewg >> 2):
                e(f"v_readlane_b32 s62, v45, {l}\nv_readlane_b32 s63, v45, {l}\ns_nop 1\ns_min_i32 s61, s61, s62\ns_min_i32 s61, s61, s63"); continue
            e(f"v_readlane_b32 s62, v44, {l}\nv_readlane_b32 s63, v45, {l}\ns_nop 1\ns_max_i32 s60, s60, s62\ns_min_i32 s61, s61, s63")
        e(f"""
        s_sub_u32 s60, s60, s61
        s_min_u32 s60, s60, 2000
        s_mul_i32 s60, s60, 20
        s_memrealtime s[62:63]
        s_waitcnt lgkmcnt(0)
        L_sksp:
        s_memrealtime s[68:69]
        s_waitcnt lgkmcnt(0)
        s_sub_u32 s61, s68, s62
        s_cmp_lt_u32 s61, s60
        s_cbranch_scc1 L_sksp
        L_skend:""")
    stamp(7)
    stamps_out(8)
    e("s_endpgm")

    sW = 44
    e(f"""L_compute:
    s_setprio {cfg.cprio}
    s_sub_u32 s{sW}, s{sWAVE}, 6
    """)
    if cfg.touch:
        e(f"""
        s_cmp_eq_u32 s{sW}, 2
        s_cbranch_scc0 L_notouch
        s_lshr_b32 s45, s{sI}, 4
        s_lshl_b32 s45, s45, 26
        s_lshl_b32 s46, s{sG}, 23
        s_add_u32 s45, s45, s46
        s_and_b32 s46, s{sI}, 15
        s_lshl_b32 s46, s46, 16
        s_add_u32 s45, s45, s46
        s_add_u32 s45, s45, {28672*256}
        v_mov_b32 v5, s45
        s_lshl_b32 s45, s{sG}, 19
        s_lshr_b32 s46, s{sI}, 2
        s_lshl_b32 s46, s46, 14
        s_add_u32 s45, s45, s46
        v_lshl_add_u32 v6, v0, 17, s45
        v_mov_b32 v7, 0
        s_mov_b64 exec, 1""")
        if 'k' in cfg.touch: e("global_load_dword v164, v5, s[6:7] nt")
        if 'v' in cfg.touch: e("global_load_dword v164, v5, s[8:9] nt")
        if 'o' in cfg.touch: e("s_mov_b64 exec, 15\nglobal_load_dword v164, v6, s[12:13] nt\ns_mov_b64 exec, 1")
        if 'w' in cfg.touch: e("global_load_dword v164, v7, s[28:29]")
        if 'u' in cfg.touch: e("global_load_dword v164, v7, s[24:25]")
        e("s_mov_b64 exec, -1\nL_notouch:")
    for r in range(64, 128): e(f"v_mov_b32 v{r}, 0")
    e(f"""
    s_lshl_b32 s45, s{sW}, 14
    v_lshlrev_b32 v5, 8, v2
    v_add_u32 v5, s45, v5
    v_xor_b32 v6, v3, v2
    """)
    for t in range(4):
        e(f"v_xor_b32 v7, {4*t}, v6\nv_lshl_add_u32 v{8+t}, v7, 4, v5")
    e(f"""
    v_and_b32 v13, 3, v2
    v_mul_u32_u24 v12, 288, v13
    v_lshl_add_u32 v12, v3, 4, v12
    v_add_u32 v12, {L_QS}, v12
    """)
    e(f"""
    v_lshl_add_u32 v15, v3, 2, v13
    v_lshlrev_b32 v15, 4, v15
    v_add_u32 v15, {L_PB}, v15
    v_lshrrev_b32 v5, 3, v2
    v_lshl_add_u32 v14, v5, 8, v15
    v_bfe_u32 v5, v2, 2, 1
    v_lshl_add_u32 v14, v5, 3, v14
    s_lshl_b32 s45, s{sW}, 9
    v_add_u32 v14, s45, v14
    v_lshlrev_b32 v17, 3, v13
    v_add_u32 v17, {L_SB}, v17
    s_lshl_b32 s45, s{sW}, 5
    v_add_u32 v16, s45, v17
    """)
    e(f"""
    v_lshrrev_b32 v5, 2, v2
    v_and_b32 v6, 1, v3
    v_lshl_add_u32 v6, v6, 2, v5
    s_lshl_b32 s45, s{sW}, 1
    v_xor_b32 v6, s45, v6
    v_lshlrev_b32 v7, 3, v13
    v_lshl_add_u32 v22, v6, 5, v7
    v_xor_b32 v23, 32, v22
    v_lshl_add_u32 v6, v3, 2, v5
    v_lshlrev_b32 v6, 8, v6
    v_add_u32 v6, {L_V}, v6
    v_add_u32 v18, v6, v22
    v_add_u32 v19, v6, v23
    v_lshl_add_u32 v6, v3, 3, v5
    v_lshlrev_b32 v6, 8, v6
    v_add_u32 v6, {L_WO}, v6
    v_add_u32 v20, v6, v22
    v_add_u32 v21, v6, v23
    """)
    e(f"""
    s_lshl_b32 s45, s{sW}, 7
    v_lshl_add_u32 v5, v3, 4, s45
    s_lshl_b32 s46, s{sSLOT}, 11
    s_add_u32 s46, s46, {W_OP}
    s_lshl2_add_u32 s46, s45, s46
    v_lshl_add_u32 v22, v0, 4, s46
    s_lshl_b32 s46, s{sSLOT}, 10
    {f"s_lshr_b32 s47, s{sSLOT}, 3; s_lshl_b32 s47, s47, 13; s_add_u32 s46, s46, s47".replace("; ", chr(10)) if cfg.dual3 else ""}
    s_add_u32 s46, s46, {W_SP}
    s_lshl1_add_u32 s46, s45, s46
    v_lshlrev_b32 v23, 4, v13
    v_lshl_add_u32 v23, v3, 6, v23
    v_add_u32 v23, s46, v23
    v_and_b32 v6, 1, v2
    v_lshlrev_b32 v28, 7, v6
    v_lshl_add_u32 v28, v3, 4, v28
    v_add_u32 v28, {L_OB}, v28
    s_lshr_b32 s45, s{sW}, 1          ; b'
    s_and_b32 s46, s{sW}, 1           ; dsub
    s_lshl_b32 s47, s{sG}, 16
    s_lshl_b32 s48, s45, 15
    s_add_u32 s47, s47, s48
    s_lshr_b32 s48, s{sI}, 2
    s_lshl_b32 s48, s48, 8
    s_add_u32 s47, s47, s48
    s_lshl_b32 s48, s46, 7
    s_add_u32 s47, s47, s48
    s_add_u32 s47, s47, {W_OP}
    v_lshrrev_b32 v5, 3, v0
    v_and_b32 v6, 7, v0
    v_lshlrev_b32 v24, 11, v5
    v_lshl_add_u32 v24, v6, 4, v24
    v_add_u32 v24, s47, v24
    v_add_u32 v25, 16384, v24
    s_lshl_b32 s47, s45, 8
    s_add_u32 s47, s47, {L_WT}
    v_lshl_add_u32 v26, v5, 4, s47
    v_and_b32 v5, 1, v3
    v_lshlrev_b32 v5, 1, v5
    v_lshrrev_b32 v7, 1, v3
    v_or_b32 v5, v5, v7
    v_lshl_add_u32 v5, v5, 4, v6
    s_lshl_b32 s47, s45, 7
    s_lshl_b32 s48, s46, 4
    s_add_u32 s47, s47, s48
    s_add_u32 s47, s47, {L_OB}
    v_lshl_add_u32 v27, v5, 1, s47
    s_lshl_b32 s47, s{sSLOT}, 7
    s_add_u32 s47, s47, {W_ST}
    v_lshl_add_u32 v29, v13, 4, s47
    v_and_b32 v5, 4, v0
    v_cmp_ne_u32 s[50:51], 0, v5
    v_and_b32 v5, 2, v0
    v_cmp_ne_u32 s[52:53], 0, v5
    v_mov_b32 v30, 1
    s_waitcnt lgkmcnt(0)
    """)
    nonce_from_epoch()
    for sp in range(4):
        e(f"""
        s_add_u32 s56, s{sRS}, {sp}
        s_and_b32 s56, s56, 3
        s_lshl_b32 s57, s56, 9
        v_add_u32 v{40+sp}, s57, v15
        s_lshl_b32 s57, s56, 14
        v_add_u32 v{48+2*sp}, s57, v18
        v_add_u32 v{49+2*sp}, s57, v19
        """)
    stamp(1)
    get_loc(6, slp=cfg.slpc)
    if cfg.loc3:
        e(f"""
        s_and_b32 s66, s{sI}, 3
        s_lshr_b32 s67, s{sW}, 1
        s_lshl1_add_u32 s66, s66, s67
        s_xor_b32 s66, s66, s{sG}
        s_or_b32 s66, s66, s{sOFF}""")
    for tau in range(4):
        m = 0x000f000f << (4*tau)
        e(f"s_mov_b32 s54, {m:#x}\ns_mov_b32 s55, {m:#x}\ns_mov_b64 exec, s[54:55]")
        for t in range(4):
            r = 64 + 16*tau + 4*t
            e(f"ds_read_b128 v[{r}:{r+3}], v12 offset:{64*t}")
    e("s_mov_b64 exec, -1")
    e(f"""
    s_sub_u32 s58, s{sW}, s{sRS}
    s_and_b32 s58, s58, 3
    s_lshl2_add_u32 s58, s58, s{sKEND}
    s_sub_u32 s58, s58, 12
    """)
    spin_land(58, 6, slp=cfg.slpc)
    stamp(2)
    def kread(tau, t):
        r = 128 + 16*(tau & 1) + 4*t
        e(f"ds_read_b128 v[{r}:{r+3}], v{8+t} offset:{4096*tau}")
    for tau in range(2):
        for t in range(4): kread(tau, t)
    for tau in range(4):
        for t in range(4):
            n = 4*tau + t
            r = 128 + 16*(tau & 1) + 4*t; q = 64 + 16*tau + 4*t
            e(f"s_waitcnt lgkmcnt({7 if n < 8 else 15-n})")
            e(f"v_mfma_f32_16x16x32_bf16 v[32:35], v[{r}:{r+3}], v[{q}:{q+3}], {'v[32:35]' if n else 0}")
            if tau < 2: kread(tau+2, t)
    e(f"""
    s_mov_b32 s54, {SCALE:#x}
    s_mov_b32 s55, {LOG2E:#x}
    s_nop 5
    v_cvt_pk_bf16_f32 v32, v32, v33
    v_cvt_pk_bf16_f32 v34, v34, v35
    v_and_b32 v33, 0xffff0000, v32
    v_lshlrev_b32 v32, 16, v32
    v_and_b32 v35, 0xffff0000, v34
    v_lshlrev_b32 v34, 16, v34
    v_mul_f32 v32, s54, v32
    v_mul_f32 v33, s54, v33
    v_mul_f32 v34, s54, v34
    v_mul_f32 v35, s54, v35
    v_cvt_pk_bf16_f32 v32, v32, v33
    v_cvt_pk_bf16_f32 v34, v34, v35
    v_and_b32 v33, 0xffff0000, v32
    v_lshlrev_b32 v32, 16, v32
    v_and_b32 v35, 0xffff0000, v34
    v_lshlrev_b32 v34, 16, v34
    v_max_f32 v36, v32, v33
    v_max3_f32 v36, v34, v35, v36
    """)
    dpp_max(36, (8, 4))
    e("""
    v_mov_b32 v37, v36
    s_nop 1
    v_permlane16_swap_b32 v36, v37
    s_nop 0
    v_max_f32 v36, v36, v37
    v_mov_b32 v37, v36
    s_nop 1
    v_permlane32_swap_b32 v36, v37
    s_nop 0
    v_max_f32 v36, v36, v37
    v_sub_f32 v32, v32, v36
    v_sub_f32 v33, v33, v36
    v_sub_f32 v34, v34, v36
    v_sub_f32 v35, v35, v36
    v_mul_f32 v32, s55, v32
    v_mul_f32 v33, s55, v33
    v_mul_f32 v34, s55, v34
    v_mul_f32 v35, s55, v35
    v_exp_f32 v128, v32
    v_exp_f32 v129, v33
    v_exp_f32 v130, v34
    v_exp_f32 v131, v35
    v_add_f32 v37, v128, v129
    s_nop 0
    v_add_f32 v38, v130, v131
    v_add_f32 v37, v37, v38
    """)
    dpp_add(37, (8, 4))
    e(f"""
    v_mov_b32 v38, v37
    s_nop 1
    v_permlane16_swap_b32 v37, v38
    s_nop 0
    v_add_f32 v37, v37, v38
    v_mov_b32 v38, v37
    s_nop 1
    v_permlane32_swap_b32 v37, v38
    s_nop 0
    v_add_f32 v37, v37, v38
    s_mov_b64 exec, 15
    ds_write_b64 v16, v[36:37]
    s_mov_b64 exec, 1
    ds_add_u32 v1, v30 offset:{F_V}
    s_mov_b64 exec, -1
    """)
    spin_ge(1, F_V, 4, 6, extra="\n".join(f"ds_read_b64 v[{56+2*k}:{57+2*k}], v17 offset:{32*k}" for k in range(4)))
    def preg(ee, sp, sg): return (64 if sp < 2 else 96) + 16*ee + 8*(sp & 1) + 4*sg
    e("""
    v_max_f32 v32, v56, v58
    v_max3_f32 v32, v60, v62, v32
    v_sub_f32 v56, v56, v32
    v_sub_f32 v58, v58, v32
    v_sub_f32 v60, v60, v32
    v_sub_f32 v62, v62, v32
    v_sub_f32 v36, v36, v32
    v_mul_f32 v56, s55, v56
    v_mul_f32 v58, s55, v58
    v_mul_f32 v60, s55, v60
    v_mul_f32 v62, s55, v62
    v_mul_f32 v36, s55, v36
    v_exp_f32 v56, v56
    v_exp_f32 v58, v58
    v_exp_f32 v60, v60
    v_exp_f32 v62, v62
    v_exp_f32 v36, v36
    v_mul_f32 v33, v56, v57
    v_fmac_f32 v33, v58, v59
    v_fmac_f32 v33, v60, v61
    v_fmac_f32 v33, v62, v63
    v_mov_b32 v34, 0
    v_mov_b32 v35, 0
    """)
    e(f"s_cmp_eq_u32 s{sW}, 0\ns_cbranch_scc0 L_nostat")
    tag_insert(32, 4)
    e(f"""
    s_mov_b64 exec, 15
    buffer_store_dwordx4 v[32:35], v29, s[{SRD_WS}:{SRD_WS+3}], 0 offen {cfg.stA}
    s_cmp_eq_u32 s{sOFF}, 0
    s_cbranch_scc1 L_nostatB
    buffer_store_dwordx4 v[32:35], v29, s[{SRD_WS}:{SRD_WS+3}], s{sBOFF} offen sc1
    L_nostatB:
    s_mov_b64 exec, -1
    L_nostat:
    """)
    stamp(3)
    e("""
    v_mul_f32 v128, v128, v36
    v_mul_f32 v129, v129, v36
    v_mul_f32 v130, v130, v36
    v_mul_f32 v131, v131, v36
    v_cvt_pk_bf16_f32 v128, v128, v129
    v_cvt_pk_bf16_f32 v129, v130, v131
    ds_write_b64 v14, v[128:129]
    """)
    flag_add(1, F_P, 30)
    for r in range(96, 128): e(f"v_mov_b32 v{r}, 0")
    spin_ge(1, F_P, 4, 6)
    for ee in range(2):
        m = 0x000f000f << (4*ee)
        e(f"s_mov_b32 s56, {m:#x}\ns_mov_b32 s57, {m:#x}\ns_mov_b64 exec, s[56:57]")
        for sp in range(4):
            for sg in range(2):
                r = preg(ee, sp, sg)
                e(f"ds_read_b128 v[{r}:{r+3}], v{40+sp} offset:{256*sg}")
    e("s_mov_b64 exec, -1")
    for sp in range(4):
        e(f"s_add_u32 s58, s{sVB}, {4*(sp+1) + (cfg.woe if sp == 3 else 0)}")
        if sp == 3 and cfg.vlf: spin_ge(1, F_WO, 4, 6)
        else: spin_land(58, 6, slp=(cfg.slpc if sp < 3 else 0))
        if sp == 3: stamp(4)
        for sg in range(2):
            for ee in range(2):
                r = 128 + 8*sg + 4*ee
                e(f"ds_read_b64_tr_b16 v[{r}:{r+1}], v{48+2*sp+ee} offset:{8192*sg}")
                e(f"ds_read_b64_tr_b16 v[{r+2}:{r+3}], v{48+2*sp+ee} offset:{8192*sg+4096}")
        for sg in range(2):
            for ee in range(2):
                r = 128 + 8*sg + 4*ee
                p = preg(ee, sp, sg)
                e(f"s_waitcnt lgkmcnt({6 - 2*(2*sg+ee)})")
                e(f"v_mfma_f32_16x16x32_bf16 v[144:147], v[{p}:{p+3}], v[{r}:{r+3}], {'v[144:147]' if (sp or sg or ee) else 0}")
    e(f"s_cmp_eq_u32 s{sOFF}, 0\ns_mov_b32 exec_hi, 0\ns_nop 5")
    tag_insert(144, 4)
    e(f"""
    buffer_store_dwordx4 v[144:147], v22, s[{SRD_WS}:{SRD_WS+3}], 0 offen {cfg.stO}
    s_cbranch_scc1 L_oloc
    buffer_store_dwordx4 v[144:147], v22, s[{SRD_WS}:{SRD_WS+3}], s{sBOFF} offen sc1
    L_oloc:
    s_mov_b64 exec, -1
    {"v_mov_b32 v156, v144; v_mov_b32 v157, v145; v_mov_b32 v158, v146; v_mov_b32 v159, v147".replace("; ", chr(10)) if 0 else ""}
    buffer_load_dwordx4 v[32:35], v24, s[{SRD_WS}:{SRD_WS+3}], s{sOFF} offen {cfg.ldA}
    buffer_load_dwordx4 v[36:39], v25, s[{SRD_WS}:{SRD_WS+3}], s{sOFF} offen {cfg.ldA}
    s_add_u32 s58, s{sVB}, 20
    """)
    stamp(5)
    def wofr():
        for ee in range(2):
            for t in range(2):
                r = 64 + 8*ee + 4*t
                e(f"ds_read_b64_tr_b16 v[{r}:{r+1}], v{20+ee} offset:{8192*t}")
                e(f"ds_read_b64_tr_b16 v[{r+2}:{r+3}], v{20+ee} offset:{8192*t+1024}")
    if not cfg.late_wo:
        spin_land(58, 6)
        wofr()
    if cfg.clean:
        for k in range(4): e(f"v_mov_b32 v{156+k}, v{144+k}")
    spin_ge(1, F_W, 1, 6, extra="ds_read_b128 v[40:43], v26\nds_read_b128 v[44:47], v26 offset:128")
    def ld2(r):
        e(f"""
        buffer_load_dwordx4 v[{r}:{r+3}], v24, s[{SRD_WS}:{SRD_WS+3}], s{sOFF} offen {cfg.ldA}
        buffer_load_dwordx4 v[{r+4}:{r+7}], v25, s[{SRD_WS}:{SRD_WS+3}], s{sOFF} offen {cfg.ldA}""")
    def chk2(r, L):
        tag_check(r, 7, True); tag_check(r+4, 7, False)
        e(f"v_and_b32 v7, v4, v7\nv_cmp_ne_u32 vcc, 0, v7\ns_cbranch_vccz {L}")
    if cfg.pp2:
        ld2(48)
        e("s_mov_b64 s[62:63], -1\nL_op:\ns_waitcnt vmcnt(2)")
        chk2(32, "L_okX")
        e("s_mov_b64 s[60:61], vcc\ns_mov_b64 exec, vcc")
        ld2(32)
        e("s_mov_b64 exec, s[62:63]\ns_waitcnt vmcnt(2)")
        chk2(48, "L_okY")
        e("s_mov_b64 s[62:63], vcc\ns_mov_b64 exec, vcc")
        ld2(48)
        e(f"""
        s_mov_b64 exec, s[60:61]
        s_sub_u32 s{sCAP}, s{sCAP}, 1
        s_cbranch_scc0 L_op
        s_mov_b32 s{sCAP}, 0
        s_waitcnt vmcnt(0)
        L_okY:
        s_mov_b64 exec, -1""")
        for k in range(8): e(f"v_and_b32 v{56+k}, 0xfffff800, v{48+k}")
        e("s_branch L_oj\nL_okX:\ns_mov_b64 exec, -1")
        for k in range(8): e(f"v_and_b32 v{56+k}, 0xfffff800, v{32+k}")
        e("L_oj:")
    else:
        e("s_branch L_ochk\nL_oretry:")
        ld2(32)
        e("L_ochk:\ns_waitcnt vmcnt(0)")
        tag_check(32, 7, True); tag_check(36, 7, False)
        tag_branch(7, "L_oretry", masked=True, slp=cfg.o2loop)
        for k in range(8): e(f"v_and_b32 v{56+k}, 0xfffff800, v{32+k}")
    stamp(6)
    R = []
    if cfg.late_wo:
        R.append(f"ds_read_b128 v[152:155], v1 offset:{O_LAND}")
        for ee in range(2):
            for t in range(2):
                r = 64 + 8*ee + 4*t
                R.append(f"ds_read_b64_tr_b16 v[{r}:{r+1}], v{20+ee} offset:{8192*t}")
                R.append(f"ds_read_b64_tr_b16 v[{r+2}:{r+3}], v{20+ee} offset:{8192*t+1024}")
    else:
        R = ["s_nop 0"] * 9
    e(f"""
    v_pk_mul_f32 v[56:57], v[56:57], v[40:41]
    v_pk_mul_f32 v[58:59], v[58:59], v[42:43]
    v_pk_fma_f32 v[56:57], v[60:61], v[44:45], v[56:57]
    v_pk_fma_f32 v[58:59], v[62:63], v[46:47], v[58:59]
    {R[0]}
    {R[1]}
    v_permlane32_swap_b32 v56, v57
    v_permlane32_swap_b32 v58, v59
    {R[2]}
    v_add_f32 v56, v56, v57
    v_add_f32 v58, v58, v59
    {R[3]}
    {R[4]}
    v_permlane16_swap_b32 v56, v58
    {R[5]}
    v_add_f32 v56, v56, v58
    {R[6]}
    {R[7]}
    v_add_f32_dpp v56, v56, v56 row_ror:8 row_mask:0xf bank_mask:0xf
    {R[8]}
    """)
    e(f"""
    v_cvt_pk_bf16_f32 v56, v56, v56
    ds_write_b16 v27, v56
    s_mov_b64 exec, 1
    ds_add_u32 v1, v30 offset:{F_O}
    s_mov_b64 exec, -1
    s_mov_b32 s56, 0x000f000f
    s_mov_b32 s57, 0x000f000f
    s_mov_b32 s59, 0x2000
    """)
    spin_ge(1, F_O, 4, 6, extra="ds_read_b128 v[40:43], v28\nds_read_b128 v[44:47], v28 offset:64")
    if cfg.late_wo:
        e("""
        v_min3_i32 v152, v152, v153, v154
        v_min_i32 v152, v152, v155
        v_cmp_le_i32 vcc, s58, v152
        s_cbranch_vccz L_wolate
        L_wook:""".replace('s_cbranch_vccz', 's_branch' if cfg.forcelate else 's_cbranch_vccz'))
    for t in range(2):
        for ee in range(2):
            r = 64 + 8*ee + 4*t
            a = 144 + 4*ee
            e(f"v_mfma_f32_16x16x32_bf16 v[{a}:{a+3}], v[{r}:{r+3}], v[{40+4*t}:{43+4*t}], {f'v[{a}:{a+3}]' if t else 0}")
    e(f"""
    s_mov_b64 exec, s[56:57]
    {"s_cmp_eq_u32 s66, 0" + chr(10) + "s_nop 5" if cfg.loc3 else "s_nop 6"}
    """)
    for k in range(4):
        e(f"v_cndmask_b32 v{144+k}, v{144+k}, v{148+k}, s[52:53]")
    tag_insert(144, 4)
    e(f"""
    {"s_bitcmp1_b32 s32, 2; s_cbranch_scc1 L_end".replace("; ", chr(10)) if cfg.hack4 == 9 else ""}
    {"s_bitcmp1_b32 s32, 2; s_cselect_b64 exec, 0, exec".replace("; ", chr(10)) if cfg.hack4 else ""}
    {"s_cbranch_scc1 L_s3loc" if cfg.loc3 else ""}
    buffer_store_dwordx4 v[144:147], v23, s[{SRD_WS}:{SRD_WS+3}], 0 offen sc1
    {"L_s3done:" if cfg.loc3 else ""}
    {f"buffer_store_dwordx4 v[144:147], v23, s[{SRD_WS}:{SRD_WS+3}], s59 offen sc1" if cfg.dual3 else ""}
    """)
    if cfg.clean == 1:
        e(f"s_mov_b32 s56, 0x00ff00ff\ns_mov_b32 s57, 0x00ff00ff\ns_mov_b64 exec, s[56:57]\nbuffer_store_dwordx4 v[156:159], v22, s[{SRD_WS}:{SRD_WS+3}], 0 offen sc1\ns_waitcnt vmcnt(1)")
    elif cfg.h3gate == 2: e("s_waitcnt vmcnt(0)")
    if cfg.clean == 2:
        e(f"s_mov_b32 s56, 0x00ff00ff\ns_mov_b32 s57, 0x00ff00ff\ns_mov_b64 exec, s[56:57]\nbuffer_store_dwordx4 v[156:159], v22, s[{SRD_WS}:{SRD_WS+3}], 0 offen sc1")
    if cfg.h3gate: e(f"s_mov_b64 exec, 1\nds_add_u32 v1, v30 offset:{F_K}")
    stamp(7)
    stamps_out(8)
    e("L_end:\ns_endpgm")
    if cfg.loc3:
        e(f"L_s3loc:\nbuffer_store_dwordx4 v[144:147], v23, s[{SRD_WS}:{SRD_WS+3}], 0 offen\ns_branch L_s3done")
    if cfg.late_wo:
        e("L_wolate:")
        spin_land(58, 6)
        wofr()
        e("s_waitcnt lgkmcnt(0)\ns_branch L_wook")
    e("L_codeend:")
    if cfg.skip:
        res = []; sect = None
        for ln in out:
            t = ln.strip()
            if t.endswith(":"): sect = t[:-1]
            drop = False
            isg = t.startswith("buffer_load_dwordx4 v[") and "s[36:39]" in t
            if isg and sect in ("L_qretry",) and 'q' in cfg.skip: drop = True
            if isg and sect in ("L_hretry",) and 'h' in cfg.skip: drop = True
            if isg and sect in ("L_sretry",) and 's' in cfg.skip: drop = True
            if isg and sect in ("L_fretry",) and 'f' in cfg.skip: drop = True
            if t.startswith("s_cbranch_scc0 L_qretry") and 'q' in cfg.skip: drop = True
            if t.startswith("s_cbranch_scc0 L_hretry") and 'h' in cfg.skip: drop = True
            if t.startswith("s_cbranch_scc0 L_sretry") and 's' in cfg.skip: drop = True
            if t.startswith("s_cbranch_scc0 L_fretry") and 'f' in cfg.skip: drop = True
            if 'b' in cfg.skip and t.startswith("buffer_store_dwordx4") and "sc1" in t and ("v[56:59]" in t and sect == "L_pubB"): drop = True
            if 'a' in cfg.skip and t.startswith("buffer_store_dwordx4") and "sc1" not in t and ("v[56:59]" in t or "v[64:67]" in t or "v29" in t): drop = True
            if 'q' in cfg.skip and t.startswith("s_cbranch_vccz L_q"): ln = ln.replace("s_cbranch_vccz", "s_branch")
            if 'k' in cfg.skip and t.startswith("ds_read_b128 v[1") and "v1 offset" not in t: drop = True
            if 'v' in cfg.skip and t.startswith("ds_read_b64_tr_b16 v[1"): drop = True
            if not drop: res.append(ln)
        out[:] = res
    if cfg.mark:
        res = []; k = 0
        for ln in out:
            res.append(ln)
            if ln.strip() == f"s_mov_b32 s{sCAP}, 0":
                k += 1
                res += [f"    v_mov_b32 v164, {4*k}", "    v_mov_b32 v165, 1", "    global_atomic_add v164, v165, s[26:27]"]
        out[:] = res
    body = "\n".join(out)
    hdr = open("recurrent_scan__sliding_block_cached__dense_activation_squared_relu__decode.s.ref").read().split("; Override launch")[0]
    return f"""{hdr}; One fused launch: 256 workgroups (one per CU, all co-resident) x 10 waves.
; @launch grid=(256,1,1) block=(640,1,1) lds={LDS_TOTAL}
.amdgcn_target "amdgcn-amd-amdhsa--gfx950"
.text
.globl {KNAME}
.p2align 8
.type {KNAME},@function
{KNAME}:
{body}
.section .rodata,"a"
.p2align 6
.amdhsa_kernel {KNAME}
  .amdhsa_next_free_vgpr 168
  .amdhsa_next_free_sgpr 102
  .amdhsa_accum_offset 168
  .amdhsa_group_segment_fixed_size 0
  .amdhsa_kernarg_size 104
  .amdhsa_user_sgpr_count 2
  .amdhsa_user_sgpr_kernarg_segment_ptr 1
  .amdhsa_system_sgpr_workgroup_id_x 1
.end_amdhsa_kernel
"""

if __name__ == "__main__":
    path = sys.argv[1]
    for a in sys.argv[2:]:
        k, v = a.split("=")
        cur = getattr(cfg, k)
        setattr(cfg, k, type(cur)(int(v)) if isinstance(cur, (bool, int)) else v.replace("+", " "))
    open(path, "w").write(build())
```
